```python
import torch

def _softmax(x, axis=-1):
    return torch.softmax(x, dim=axis)
def _gelu(x):
    return torch.nn.functional.gelu(x, approximate="tanh")
def _silu(x):
    return torch.nn.functional.silu(x)
def _sigmoid(x):
    return torch.sigmoid(x)
def _layernorm(x, axis=-1, eps=1e-5):
    m = x.mean(dim=axis, keepdim=True)
    v = x.var(dim=axis, keepdim=True, unbiased=False)
    return (x - m) / torch.sqrt(v + eps)
def _scatter_add(tgt, idx, src, axis=0):
    return tgt.clone().index_add_(axis, idx, src)
def _segment_sum(src, seg, n):
    out = torch.zeros((n,) + src.shape[1:], dtype=src.dtype)
    return out.index_add_(0, seg, src)
def _pad(x, pw):
    flat = tuple(v for pair in reversed(pw) for v in pair)
    return torch.nn.functional.pad(x, flat)

kernel_name = 'parallel_sum__ssm_conv_s5__mixer_token_mlp__prompt'

def setup_inputs():

    _w = (lambda a: (lambda t: t.to(torch.bfloat16) if t.is_floating_point() else t)(torch.as_tensor(a)))
    def _A_setup():
        B, S, D = 1, 2048, 576
        P = D
        Lambda_re = -0.5 * (lambda _x: torch.exp(torch.as_tensor(_x)))((lambda *s: torch.randn(*s, dtype=torch.bfloat16) * 0.2)(P))
        Lambda_im = (lambda *s: torch.randn(*s, dtype=torch.bfloat16) * 0.8)(P) * 1.0
        B_re = (lambda *s: torch.randn(*s, dtype=torch.bfloat16) * 0.2)(P, D) * (D ** -0.5)
        B_im = (lambda *s: torch.randn(*s, dtype=torch.bfloat16) * 0.2)(P, D) * (D ** -0.5)
        C_re = (lambda *s: torch.randn(*s, dtype=torch.bfloat16) * 0.2)(D, P) * (P ** -0.5)
        C_im = (lambda *s: torch.randn(*s, dtype=torch.bfloat16) * 0.2)(D, P) * (P ** -0.5)
        log_dt = (lambda *s: torch.randn(*s, dtype=torch.bfloat16) * 0.2)(P) * 0.3 - 2.0
        Dskip = (lambda *s: torch.randn(*s, dtype=torch.bfloat16) * 0.05)(D)
        return {
            "x": _w((lambda *s: torch.randn(*s, dtype=torch.bfloat16) * 0.05)(B, S, D)),
            "Lambda_re": _w(Lambda_re),
            "Lambda_im": _w(Lambda_im),
            "B_re": _w(B_re),
            "B_im": _w(B_im),
            "C_re": _w(C_re),
            "C_im": _w(C_im),
            "log_dt": _w(log_dt),
            "Dskip": _w(Dskip),
        }
    _A_in = _A_setup()

    def _B_setup():
        B, S, D, F = 1, 2048, 576, 4608
        return {
            "x": _w((lambda *s: torch.randn(*s, dtype=torch.bfloat16) * 0.05)(B, S, D)),
            "w1": _w((lambda *s: torch.randn(*s, dtype=torch.bfloat16) * 0.8)(S, F) * (S ** -0.5)),
            "b1": _w((lambda *s: torch.randn(*s, dtype=torch.bfloat16) * 3.2)(F) * 0.02),
            "w2": _w((lambda *s: torch.randn(*s, dtype=torch.bfloat16) * 0.4)(F, S) * (F ** -0.5)),
            "b2": _w((lambda *s: torch.randn(*s, dtype=torch.bfloat16) * 3.2)(S) * 0.02),
        }
    _B_in = _B_setup()

    return {
        "A_x": _A_in["x"],
        "A_Lambda_re": _A_in["Lambda_re"],
        "A_Lambda_im": _A_in["Lambda_im"],
        "A_B_re": _A_in["B_re"],
        "A_B_im": _A_in["B_im"],
        "A_C_re": _A_in["C_re"],
        "A_C_im": _A_in["C_im"],
        "A_log_dt": _A_in["log_dt"],
        "A_Dskip": _A_in["Dskip"],
        "B_x": _B_in["x"],
        "B_w1": _B_in["w1"],
        "B_b1": _B_in["b1"],
        "B_w2": _B_in["w2"],
        "B_b2": _B_in["b2"],
    }

def reference(A_x, A_Lambda_re, A_Lambda_im, A_B_re, A_B_im, A_C_re, A_C_im, A_log_dt, A_Dskip, B_x, B_w1, B_b1, B_w2, B_b2):
    def _A_ref(x, Lambda_re, Lambda_im, B_re, B_im, C_re, C_im, log_dt, Dskip):
        Bsz, L, H = x.shape
        Lam = Lambda_re + 1j * Lambda_im
        Bmat = B_re + 1j * B_im
        Cmat = C_re + 1j * C_im
        dt = torch.exp(log_dt)
        Lam_bar = torch.exp(dt * Lam)
        B_bar = ((Lam_bar - 1.0) / Lam)[:, None] * Bmat
        Bu = torch.einsum("bld,pd->blp", x + 0j, B_bar)
        h = torch.zeros_like(Bu[:, 0, :])
        hs = []
        for t in range(L):
            h = Lam_bar[None, :] * h + Bu[:, t, :]
            hs.append(h)
        hseq = torch.stack(hs, 1)
        y = 2.0 * torch.einsum("blp,dp->bld", hseq, Cmat).real + x * Dskip[None, None, :]
        return y

    def _B_ref(x, w1, b1, w2, b2):
        B, S, D = x.shape
        h = _layernorm(x, axis=-1)
        u = torch.einsum("bsd,sf->bdf", h, w1) + b1
        u = _gelu(u)
        y = torch.einsum("bdf,fs->bds", u, w2) + b2
        return (lambda x, *d: x.permute(*d))(y, 0, 2, 1)

    x = A_x
    xn = _layernorm(x, axis=-1)
    return x + _A_ref(xn, A_Lambda_re, A_Lambda_im, A_B_re, A_B_im, A_C_re, A_C_im, A_log_dt, A_Dskip) + _B_ref(xn, B_w1, B_b1, B_w2, B_b2)
```

```python
class Asm:
    def __init__(self):
        self.lines = []
        self._lbl = 0
    def __call__(self, s, *args):
        if args:
            s = s % args
        for ln in s.split("\n"):
            ln = ln.strip()
            if ln:
                self.lines.append("    " + ln if not ln.endswith(":") else ln)
    def raw(self, s):
        self.lines.append(s)
    def label(self, name):
        self.lines.append(name + ":")
    def newlabel(self, base="L"):
        self._lbl += 1
        return "%s_%d" % (base, self._lbl)
    def text(self):
        return "\n".join(self.lines) + "\n"

def v(i, n=1):
    return "v%d" % i if n == 1 else "v[%d:%d]" % (i, i + n - 1)
def s(i, n=1):
    return "s%d" % i if n == 1 else "s[%d:%d]" % (i, i + n - 1)
def a(i, n=1):
    return "a%d" % i if n == 1 else "a[%d:%d]" % (i, i + n - 1)

class Regs:
    def __init__(self, start, limit):
        self.next = start; self.limit = limit; self.hi = start
    def alloc(self, n=1, align=1):
        self.next = (self.next + align - 1) // align * align
        r = self.next
        self.next += n
        assert self.next <= self.limit, "out of registers"
        self.hi = max(self.hi, self.next)
        return r
    def mark(self):
        return self.next
    def release(self, m):
        self.next = m

def srd(A, d, base, nbytes, off=0):
    if off:
        A("s_add_u32 s%d, s%d, 0x%x" % (d, base, off))
        A("s_addc_u32 s%d, s%d, 0" % (d + 1, base + 1))
    else:
        A("s_mov_b32 s%d, s%d" % (d, base))
        A("s_mov_b32 s%d, s%d" % (d + 1, base + 1))
    A("s_mov_b32 s%d, 0x%x" % (d + 2, nbytes))
    A("s_mov_b32 s%d, 0x00020000" % (d + 3))

def kd(name, vgpr, sgpr, accum=None):
    if accum is None:
        accum = (vgpr + 3) // 4 * 4
    return """.amdhsa_kernel %s
  .amdhsa_next_free_vgpr %d
  .amdhsa_next_free_sgpr %d
  .amdhsa_accum_offset %d
  .amdhsa_group_segment_fixed_size 0
  .amdhsa_kernarg_size 136
  .amdhsa_user_sgpr_count 2
  .amdhsa_user_sgpr_kernarg_segment_ptr 1
  .amdhsa_system_sgpr_workgroup_id_x 1
.end_amdhsa_kernel
""" % (name, vgpr, sgpr, accum)

import struct
def f2u(x):
    return struct.unpack("<I", struct.pack("<f", x))[0]
```

```python
import sys, math, ast
from asmlib import *

WS_HF = 0x0
WS_UF = 0x400000
WS_G = 0xA00000
WS_HT = 0x1400000
WS_ST = 0x1900000
WS_PART = 0x2000000
WS_STAMP = 0xC000000
SZ_HF = 2359296
SZ_UF = 5308416
SZ_G = 9437184
SZ_HT = 4718592
SZ_ST = 16384
SZ_PART1 = 4718592

K_X, K_LRE, K_LIM, K_BRE, K_BIM, K_CRE, K_CIM, K_LOGDT, K_DSKIP, K_BX, K_W1, K_B1, K_W2, K_B2, K_OUT, K_DBG, K_WS = [8 * i for i in range(17)]

class Cfg:
    stamp = False

def stamp_begin(A, cfg):
    if cfg.stamp:
        A("s_memrealtime s[90:91]")
        A("s_memtime s[92:93]")

def stamp_mid(A, cfg, idx):
    if cfg.stamp:
        A("s_memtime s[%d:%d]" % (82 + 2 * idx, 83 + 2 * idx))
        A("s_waitcnt lgkmcnt(0)")

def stamp_end(A, cfg, kidx, wsreg, wavereg, lanereg, wave=0):
    if not cfg.stamp:
        return
    skip = A.newlabel("st_skip")
    A("s_cmp_lg_u32 s%d, %d" % (wavereg, wave))
    A("s_cbranch_scc1 %s" % skip)
    A("s_waitcnt vmcnt(0)")
    A("s_memrealtime s[94:95]")
    A("s_memtime s[96:97]")
    srd(A, 76, wsreg, 65536 * 2, WS_STAMP + kidx * 131072)
    A("s_waitcnt lgkmcnt(0)")
    regs = [90, 91, 94, 95, 92, 96, 82, 84, 86, 88]
    for i, r in enumerate(regs):
        A("v_mov_b32 v%d, s%d" % (4 + i, r))
    A("s_lshl_b32 s80, s2, 6")
    A("v_mov_b32 v3, 0")
    A("v_cmp_eq_u32 vcc, 0, v%d" % lanereg)
    A("s_and_saveexec_b64 s[98:99], vcc")
    A("buffer_store_dwordx4 v[4:7], v3, s[76:79], s80 offen")
    A("buffer_store_dwordx4 v[8:11], v3, s[76:79], s80 offen offset:16")
    A("buffer_store_dwordx2 v[12:13], v3, s[76:79], s80 offen offset:32")
    A.label(skip)

def loader_loop(A, pfx, issue, per, NS, KT, cnt_sreg, kt_sreg=None):
    for j in range(NS):
        issue()
    A("s_waitcnt vmcnt(%d)" % ((NS - 1) * per))
    A("s_barrier")
    if kt_sreg is None:
        A("s_mov_b32 s%d, %d" % (cnt_sreg, KT - NS))
    else:
        A("s_sub_u32 s%d, s%d, %d" % (cnt_sreg, kt_sreg, NS))
    A.label(pfx + "_lloop")
    A("s_waitcnt vmcnt(%d)" % ((NS - 2) * per))
    A("s_barrier")
    issue()
    A("s_sub_u32 s%d, s%d, 1" % (cnt_sreg, cnt_sreg))
    A("s_cmp_lg_u32 s%d, 0" % cnt_sreg)
    A("s_cbranch_scc1 %s_lloop" % pfx)
    for j in range(KT - NS + 1, KT):
        A("s_waitcnt vmcnt(%d)" % (min(NS - 2, KT - 1 - j) * per))
        A("s_barrier")

def interleave(A, ms, rs, extra=(), per=2):
    rs = list(rs); extra = list(extra)
    for m in ms:
        A(m)
        for _ in range(per):
            if rs:
                A(rs.pop(0))
        if not rs and extra:
            A(extra.pop(0))
    for r in rs: A(r)
    for e in extra: A(e)

def consumer_loop(A, pfx, reads, mfmas, addr_update, KT, cnt_sreg, kt_sreg=None, cfg=None):
    A("s_barrier")
    if cfg: stamp_mid(A, cfg, 0)
    for r in reads(0, 0): A(r)
    if kt_sreg is None:
        A("s_mov_b32 s%d, %d" % (cnt_sreg, KT - 1))
    else:
        A("s_sub_u32 s%d, s%d, 1" % (cnt_sreg, kt_sreg))
    A.label(pfx + "_cloop")
    A("s_waitcnt lgkmcnt(0)")
    interleave(A, mfmas(0), reads(1, 1), addr_update())
    A("s_waitcnt lgkmcnt(0)")
    A("s_barrier")
    interleave(A, mfmas(1), reads(0, 0))
    A("s_sub_u32 s%d, s%d, 1" % (cnt_sreg, cnt_sreg))
    A("s_cmp_lg_u32 s%d, 0" % cnt_sreg)
    A("s_cbranch_scc1 %s_cloop" % pfx)
    A("s_waitcnt lgkmcnt(0)")
    interleave(A, mfmas(0), reads(1, 1))
    A("s_waitcnt lgkmcnt(0)")
    interleave(A, mfmas(1), [])
    if cfg: stamp_mid(A, cfg, 1)

def slot_advance(sreg, SLOT, NS):
    return "s_add_u32 s%d, s%d, %d\ns_cmp_eq_u32 s%d, %d\ns_cselect_b32 s%d, 0, s%d" % (sreg, sreg, SLOT, sreg, NS * SLOT, sreg, sreg)

def row16_sum(A, reg, tmp=None):
    regs = reg if isinstance(reg, list) else [reg]
    for sh in (8, 4, 2, 1):
        if len(regs) < 3:
            A("s_nop 1")
        for r in regs:
            A("v_add_f32_dpp v%d, v%d, v%d row_ror:%d row_mask:0xf bank_mask:0xf" % (r, r, r, sh))

def round_bf16(A, dst, src):
    A("v_cvt_pk_bf16_f32 v%d, v%d, v%d" % (dst, src, src))
    A("v_lshlrev_b32 v%d, 16, v%d" % (dst, dst))

def kernel_head(A, name):
    A.raw(".globl %s\n.p2align 8\n.type %s,@function" % (name, name))
    A.label(name)

def gen_k1(A, cfg):
    NS = 5; SLOT = 28672; KT = 9
    kernel_head(A, "k1_kernel")
    stamp_begin(A, cfg)
    A("s_cmp_ge_u32 s2, 256")
    A("s_cbranch_scc1 k1_end")
    A("s_load_dwordx2 s[24:25], s[0:1], %d" % K_X)
    A("s_load_dwordx4 s[28:31], s[0:1], %d" % (K_BRE - 8))
    A("s_load_dwordx2 s[32:33], s[0:1], %d" % K_BIM)
    A("s_load_dwordx2 s[26:27], s[0:1], %d" % K_WS)
    A("v_lshrrev_b32 v1, 6, v0")
    A("v_and_b32 v2, 63, v0")
    A("v_readfirstlane_b32 s20, v1")
    A("s_and_b32 s3, s2, 7")
    A("s_lshr_b32 s21, s2, 3")
    A("s_cmp_ge_u32 s21, 24")
    A("s_cbranch_scc1 k1_ln")
    A("s_cmp_ge_u32 s21, 12")
    A("s_cselect_b32 s22, 1, 0")
    A("s_mul_i32 s23, s22, 12")
    A("s_sub_u32 s23, s21, s23")
    A("s_lshl_b32 s3, s3, 1")
    A("s_add_u32 s22, s22, s3")
    A("s_cmp_lt_u32 s20, 4")
    A("s_cbranch_scc1 k1_cons")
    A("s_sub_u32 s34, s20, 4")
    A("v_lshrrev_b32 v3, 3, v2")
    A("v_and_b32 v4, 7, v2")
    A("v_xor_b32 v4, v4, v3")
    A("s_movk_i32 s35, 1152")
    A("v_mul_lo_u32 v5, v3, s35")
    A("v_lshl_add_u32 v10, v4, 4, v5")
    D = 8 * 1152 - 1024
    for m in range(1, 4):
        A("v_add_u32 v%d, 0x%x, v10" % (10 + m, m * D))
    A("s_lshl_b32 s36, s22, 7")
    A("s_lshl_b32 s37, s34, 5")
    A("s_add_u32 s36, s36, s37")
    A("s_mul_i32 s36, s36, 1152")
    A("s_mul_i32 s37, s23, 48")
    A("s_and_b32 s38, s34, 1")
    A("s_mul_i32 s38, s38, 24")
    A("s_add_u32 s37, s37, s38")
    A("s_mul_i32 s37, s37, 1152")
    A("s_lshl_b32 s38, s34, 12")
    A("s_mul_i32 s39, s34, 3072")
    A("s_add_u32 s39, s39, 16384")
    A("s_mov_b32 s40, 0")
    A("s_waitcnt lgkmcnt(0)")
    srd(A, 4, 24, 2359296)
    A("s_cmp_ge_u32 s34, 2")
    A("s_cselect_b32 s8, s32, s30")
    A("s_cselect_b32 s9, s33, s31")
    A("s_mov_b32 s10, %d" % (576 * 1152))
    A("s_mov_b32 s11, 0x00020000")
    def issue():
        A("s_add_u32 m0, s40, s38")
        A("s_add_u32 s41, s40, s39")
        for m in range(4):
            A("buffer_load_dwordx4 v%d, s[4:7], s36 offen offset:%d lds" % (10 + m, m * 1024))
        A("s_mov_b32 m0, s41")
        A("s_add_u32 s36, s36, 128")
        for m in range(3):
            A("buffer_load_dwordx4 v%d, s[8:11], s37 offen offset:%d lds" % (10 + m, m * 1024))
        A("s_add_u32 s37, s37, 128")
        A(slot_advance(40, SLOT, NS))
    loader_loop(A, "k1", issue, 7, NS, KT, 42)
    A("s_endpgm")
    A.label("k1_cons")
    A("s_and_b32 s34, s20, 1")
    A("s_lshr_b32 s35, s20, 1")
    A("v_and_b32 v3, 15, v2")
    A("v_lshrrev_b32 v4, 4, v2")
    A("v_and_b32 v5, 7, v3")
    A("v_xor_b32 v5, v5, v4")
    A("v_lshlrev_b32 v5, 4, v5")
    A("v_lshl_add_u32 v5, v3, 7, v5")
    A("v_xor_b32 v6, 64, v5")
    A("s_lshl_b32 s36, s34, 13")
    A("s_mul_i32 s37, s35, 6144")
    A("s_add_u32 s37, s37, 16384")
    BB = 10; CB = 14
    A("v_add_u32 v10, s36, v5")
    A("v_add_u32 v11, s36, v6")
    A("v_add_u32 v12, s37, v5")
    A("v_add_u32 v13, s37, v6")
    for i in range(4):
        A("v_mov_b32 v%d, v%d" % (CB + i, BB + i))
    ACC = 32; SETS = [80, 108]
    for i in range(48):
        A("v_mov_b32 v%d, 0" % (ACC + i))
    A("s_mov_b32 s40, 0")
    def reads(st, ks):
        b = SETS[st]; r = []
        for aa in range(4):
            r.append("ds_read_b128 %s, v%d offset:%d" % (v(b + 4 * aa, 4), CB + ks, aa * 2048))
        for xb in range(3):
            r.append("ds_read_b128 %s, v%d offset:%d" % (v(b + 16 + 4 * xb, 4), CB + 2 + ks, xb * 2048))
        return r
    def mfmas(st):
        b = SETS[st]; m = []
        for aa in range(4):
            for xb in range(3):
                d = v(ACC + (aa * 3 + xb) * 4, 4)
                m.append("v_mfma_f32_16x16x32_bf16 %s, %s, %s, %s" % (d, v(b + 4 * aa, 4), v(b + 16 + 4 * xb, 4), d))
        return m
    def addr_update():
        return [slot_advance(40, SLOT, NS)] + ["v_add_u32 v%d, s40, v%d" % (CB + i, BB + i) for i in range(4)]
    A("s_waitcnt lgkmcnt(0)")
    srd(A, 12, 26, SZ_G, WS_G)
    consumer_loop(A, "k1", reads, mfmas, addr_update, KT, 42, cfg=cfg)
    A("s_mul_i32 s36, s23, 6")
    A("s_add_u32 s36, s36, s35")
    A("s_lshl_b32 s36, s36, 7")
    A("s_lshl_b32 s37, s22, 3")
    A("s_add_u32 s36, s36, s37")
    A("s_lshl_b32 s37, s34, 2")
    A("s_add_u32 s36, s36, s37")
    A("s_lshl_b32 s36, s36, 10")
    A("s_add_u32 s37, s36, %d" % (256 * 1024))
    A("s_add_u32 s38, s36, %d" % (512 * 1024))
    A("v_lshlrev_b32 v9, 4, v2")
    A("s_nop 4")
    for aa in range(4):
        for xb in range(3):
            A("buffer_store_dwordx4 %s, v9, s[12:15], s%d offen offset:%d" % (v(ACC + (aa * 3 + xb) * 4, 4), 36 + xb, aa * 1024))
    stamp_end(A, cfg, 0, 26, 20, 2)
    A("s_endpgm")
    A.label("k1_ln")
    A("s_sub_u32 s21, s21, 24")
    A("s_lshl_b32 s21, s21, 3")
    A("s_add_u32 s21, s21, s3")
    A("v_lshrrev_b32 v3, 4, v0")
    A("v_and_b32 v4, 15, v0")
    A("s_movk_i32 s35, 1152")
    A("v_mul_lo_u32 v5, v3, s35")
    A("v_lshl_add_u32 v5, v4, 3, v5")
    A("s_mul_i32 s36, s21, %d" % (32 * 1152))
    A("s_waitcnt lgkmcnt(0)")
    srd(A, 4, 24, 2359296)
    srd(A, 8, 26, SZ_HF, WS_HF)
    srd(A, 12, 26, SZ_ST, WS_ST)
    RAW = 16; X = 40
    for j in range(9):
        A("buffer_load_dwordx2 %s, v5, s[4:7], s36 offen offset:%d" % (v(RAW + 2 * j, 2), j * 128))
    RS = 1184
    A("s_movk_i32 s35, %d" % RS)
    A("v_mul_lo_u32 v6, v3, s35")
    A("v_lshl_add_u32 v6, v4, 3, v6")
    A("v_lshrrev_b32 v7, 2, v2")
    A("v_mul_lo_u32 v7, v7, s35")
    A("v_and_b32 v8, 3, v2")
    A("v_lshl_add_u32 v7, v8, 3, v7")
    A("s_lshl_b32 s37, s20, 5")
    A("v_add_u32 v7, s37, v7")
    A("s_mov_b32 s38, 0x%x" % f2u(1.0 / 576))
    A("s_mov_b32 s39, 0x%x" % f2u(1e-5))
    N = 36
    def unpack(src_packed):
        for j in range(18):
            A("v_lshlrev_b32 v%d, 16, v%d" % (X + 2 * j, src_packed + j))
            A("v_and_b32 v%d, 0xffff0000, v%d" % (X + 2 * j + 1, src_packed + j))
    S0, S1, S2, S3, M, MB, RSV, TT = 10, 11, 12, 13, 14, 15, 34, 80
    def layernorm(first):
        A("v_add_f32 v%d, v%d, v%d" % (S0, X, X + 1))
        A("v_add_f32 v%d, v%d, v%d" % (S1, X + 2, X + 3))
        for j in range(4, N, 2):
            A("v_add_f32 v%d, v%d, v%d" % (S0, S0, X + j))
            A("v_add_f32 v%d, v%d, v%d" % (S1, S1, X + j + 1))
        A("v_add_f32 v%d, v%d, v%d" % (S0, S0, S1))
        row16_sum(A, S0)
        A("v_mul_f32 v%d, s38, v%d" % (M, S0))
        round_bf16(A, MB, M)
        for j in range(N):
            A("v_sub_f32 v%d, v%d, v%d" % (TT + j, X + j, M))
        A("v_mul_f32 v%d, v%d, v%d" % (S0, TT, TT))
        A("v_mul_f32 v%d, v%d, v%d" % (S1, TT + 1, TT + 1))
        for j in range(2, N, 2):
            A("v_fmac_f32 v%d, v%d, v%d" % (S0, TT + j, TT + j))
            A("v_fmac_f32 v%d, v%d, v%d" % (S1, TT + j + 1, TT + j + 1))
        A("v_add_f32 v%d, v%d, v%d" % (S0, S0, S1))
        row16_sum(A, S0)
        A("v_mul_f32 v%d, s38, v%d" % (S0, S0))
        round_bf16(A, S0, S0)
        A("v_add_f32 v%d, s39, v%d" % (S0, S0))
        round_bf16(A, S0, S0)
        A("v_sqrt_f32 v%d, v%d" % (S0, S0))
        A("s_nop 0")
        round_bf16(A, S0, S0)
        A("v_rcp_f32 v%d, v%d" % (RSV, S0))
        for j in range(N):
            A("v_sub_f32 v%d, v%d, v%d" % (X + j, X + j, MB))
        for j in range(18):
            A("v_cvt_pk_bf16_f32 v%d, v%d, v%d" % (RAW + j, X + 2 * j, X + 2 * j + 1))
        unpack(RAW)
        for j in range(N):
            A("v_mul_f32 v%d, v%d, v%d" % (X + j, X + j, RSV))
        for j in range(18):
            A("v_cvt_pk_bf16_f32 v%d, v%d, v%d" % (RAW + j, X + 2 * j, X + 2 * j + 1))
    A("s_waitcnt vmcnt(0)")
    unpack(RAW)
    layernorm(True)
    A("v_mov_b32 v36, v%d" % MB)
    A("v_mov_b32 v37, v%d" % RSV)
    A("v_lshlrev_b32 v9, 3, v3")
    A("s_lshl_b32 s40, s21, 8")
    A("v_cmp_eq_u32 vcc, 0, v4")
    A("s_and_saveexec_b64 s[42:43], vcc")
    A("buffer_store_dwordx2 v[36:37], v9, s[12:15], s40 offen")
    A("s_mov_b64 exec, s[42:43]")
    unpack(RAW)
    layernorm(False)
    for j in range(9):
        A("ds_write_b64 v6, %s offset:%d" % (v(RAW + 2 * j, 2), j * 128))
    A("s_waitcnt lgkmcnt(0)")
    A("s_barrier")
    A("s_lshr_b32 s36, s21, 1")
    A("s_mul_i32 s36, s36, 36")
    A("s_add_u32 s36, s36, s20")
    A("s_lshl_b32 s36, s36, 1")
    A("s_and_b32 s37, s21, 1")
    A("s_add_u32 s36, s36, s37")
    A("s_lshl_b32 s36, s36, 10")
    A("v_lshlrev_b32 v9, 4, v2")
    for n in range(5):
        A("ds_read_b64_tr_b16 %s, v7 offset:%d" % (v(X + 4 * n, 2), n * 256))
        A("ds_read_b64_tr_b16 %s, v7 offset:%d" % (v(X + 4 * n + 2, 2), n * 256 + 16 * RS))
    for n in range(5):
        if n == 4:
            A("s_cmp_ge_u32 s20, 4")
            A("s_cbranch_scc1 k1_ln_done")
        A("s_waitcnt lgkmcnt(%d)" % (8 - 2 * n))
        A("buffer_store_dwordx4 %s, v9, s[8:11], s36 offen" % v(X + 4 * n, 4))
        A("s_add_u32 s36, s36, %d" % (8 * 2048))
    A.label("k1_ln_done")
    stamp_end(A, cfg, 0, 26, 20, 2)
    A.label("k1_end")
    A("s_endpgm")
    return NS * SLOT

def gen_k2(A, cfg):
    NS = 5; SLOT = 28672; KT = 32
    kernel_head(A, "k2_kernel")
    stamp_begin(A, cfg)
    A("s_cmp_ge_u32 s2, 256")
    A("s_cbranch_scc1 k2_end")
    A("s_load_dwordx4 s[24:27], s[0:1], %d" % K_W1)
    A("s_load_dwordx2 s[28:29], s[0:1], %d" % K_WS)
    A("v_lshrrev_b32 v1, 6, v0")
    A("v_and_b32 v2, 63, v0")
    A("v_readfirstlane_b32 s20, v1")
    A("s_and_b32 s3, s2, 7")
    A("s_lshr_b32 s21, s2, 3")
    A("s_cmp_ge_u32 s21, 27")
    A("s_cbranch_scc1 k2_scan")
    A("s_mul_i32 s3, s3, 27")
    A("s_add_u32 s3, s3, s21")
    A("s_mul_i32 s21, s3, 43691")
    A("s_lshr_b32 s21, s21, 18")
    A("s_mul_i32 s22, s21, 6")
    A("s_sub_u32 s22, s3, s22")
    A("s_cmp_lt_u32 s20, 4")
    A("s_cbranch_scc1 k2_cons")
    A("s_sub_u32 s23, s20, 4")
    A("v_lshrrev_b32 v3, 4, v2")
    A("v_and_b32 v4, 15, v2")
    A("s_movk_i32 s30, 9216")
    A("v_mul_lo_u32 v5, v3, s30")
    A("v_lshlrev_b32 v6, 1, v3")
    A("v_xor_b32 v7, v4, v6")
    A("v_xor_b32 v8, 8, v7")
    A("v_lshl_add_u32 v10, v7, 4, v5")
    A("v_lshl_add_u32 v11, v8, 4, v5")
    D = 4 * 9216 - 1024
    A("v_add_u32 v12, 0x%x, v10" % (2 * D))
    A("v_add_u32 v13, 0x%x, v11" % (3 * D))
    A("v_add_u32 v11, 0x%x, v11" % (1 * D))
    A("v_lshlrev_b32 v14, 4, v2")
    A("s_mul_i32 s31, s23, %d" % (16 * 9216))
    A("s_lshl_b32 s32, s21, 8")
    A("s_add_u32 s31, s31, s32")
    A("s_mul_i32 s32, s22, 12")
    A("s_mul_i32 s33, s23, 3")
    A("s_add_u32 s32, s32, s33")
    A("s_lshl_b32 s32, s32, 10")
    A("s_lshl_b32 s33, s23, 12")
    A("s_mul_i32 s34, s23, 3072")
    A("s_add_u32 s34, s34, 16384")
    A("s_mov_b32 s35, 0")
    A("s_waitcnt lgkmcnt(0)")
    srd(A, 4, 24, 2048 * 9216)
    srd(A, 8, 28, SZ_HF, WS_HF)
    def issue():
        A("s_add_u32 m0, s35, s33")
        A("s_add_u32 s36, s35, s34")
        for m in range(4):
            A("buffer_load_dwordx4 v%d, s[4:7], s31 offen offset:%d lds" % (10 + m, m * 1024))
        A("s_mov_b32 m0, s36")
        A("s_add_u32 s31, s31, %d" % (64 * 9216))
        for m in range(3):
            A("buffer_load_dwordx4 v14, s[8:11], s32 offen offset:%d lds" % (m * 1024))
        A("s_add_u32 s32, s32, %d" % (72 * 1024))
        A(slot_advance(35, SLOT, NS))
    loader_loop(A, "k2", issue, 7, NS, KT, 37)
    A("s_endpgm")
    A.label("k2_cons")
    A("s_and_b32 s23, s20, 1")
    A("s_lshr_b32 s30, s20, 1")
    A("v_lshrrev_b32 v3, 4, v2")
    A("v_lshlrev_b32 v4, 3, v3")
    A("s_lshl_b32 s31, s21, 8")
    A("s_lshl_b32 s32, s23, 7")
    A("s_add_u32 s31, s31, s32")
    A("v_lshrrev_b32 v5, 2, v2")
    A("v_and_b32 v6, 7, v5")
    A("v_and_b32 v7, 3, v2")
    A("v_lshlrev_b32 v7, 3, v7")
    A("v_lshl_add_u32 v7, v5, 8, v7")
    A("s_lshl_b32 s32, s23, 2")
    BW = 10; CW = 15; BIAS = 20
    for aa in range(4):
        A("s_add_u32 s33, s32, %d" % aa)
        A("v_xor_b32 v8, s33, v6")
        A("v_lshl_add_u32 v%d, v8, 5, v7" % (BW + aa))
    A("s_mul_i32 s33, s30, 6144")
    A("s_add_u32 s33, s33, 16384")
    A("v_lshlrev_b32 v8, 4, v2")
    A("v_add_u32 v%d, s33, v8" % (BW + 4))
    for i in range(5):
        A("v_mov_b32 v%d, v%d" % (CW + i, BW + i))
    ACC = 32; SETS = [80, 108]
    for i in range(48):
        A("v_mov_b32 v%d, 0" % (ACC + i))
    A("s_mov_b32 s35, 0")
    A("s_waitcnt lgkmcnt(0)")
    srd(A, 12, 28, SZ_UF, WS_UF)
    srd(A, 16, 26, 9216)
    for aa in range(4):
        A("buffer_load_dwordx2 %s, v4, s[16:19], s31 offen offset:%d" % (v(BIAS + 2 * aa, 2), aa * 32))
    def reads(st, ks):
        b = SETS[st]; r = []
        for aa in range(4):
            r.append("ds_read_b64_tr_b16 %s, v%d offset:%d" % (v(b + 4 * aa, 2), CW + aa, ks * 8192))
            r.append("ds_read_b64_tr_b16 %s, v%d offset:%d" % (v(b + 4 * aa + 2, 2), CW + aa, ks * 8192 + 4096))
        for xb in range(3):
            r.append("ds_read_b128 %s, v%d offset:%d" % (v(b + 16 + 4 * xb, 4), CW + 4, xb * 2048 + ks * 1024))
        return r
    def mfmas(st):
        b = SETS[st]; m = []
        for aa in range(4):
            for xb in range(3):
                d = v(ACC + (aa * 3 + xb) * 4, 4)
                m.append("v_mfma_f32_16x16x32_bf16 %s, %s, %s, %s" % (d, v(b + 4 * aa, 4), v(b + 16 + 4 * xb, 4), d))
        return m
    def addr_update():
        return [slot_advance(35, SLOT, NS)] + ["v_add_u32 v%d, s35, v%d" % (CW + i, BW + i) for i in range(5)]
    consumer_loop(A, "k2", reads, mfmas, addr_update, KT, 37, cfg=cfg)
    c1 = -2.0 * math.sqrt(2.0 / math.pi) * math.log2(math.e)
    c2 = c1 * 0.044715
    A("s_mov_b32 s38, 0x%x" % f2u(c1))
    A("s_mov_b32 s39, 0x%x" % f2u(c2))
    A("s_waitcnt vmcnt(0)")
    BF = 80
    for aa in range(4):
        for h in range(2):
            A("v_lshlrev_b32 v%d, 16, v%d" % (BF + aa * 4 + 2 * h, BIAS + 2 * aa + h))
            A("v_and_b32 v%d, 0xffff0000, v%d" % (BF + aa * 4 + 2 * h + 1, BIAS + 2 * aa + h))
    A("v_mov_b32 v96, s38")
    A("s_lshl_b32 s31, s21, 1")
    A("s_add_u32 s31, s31, s23")
    A("s_mul_i32 s31, s31, 36")
    A("s_mul_i32 s32, s22, 6")
    A("s_add_u32 s31, s31, s32")
    A("s_mul_i32 s32, s30, 3")
    A("s_add_u32 s31, s31, s32")
    A("s_lshl_b32 s31, s31, 11")
    A("s_add_u32 s32, s31, 4096")
    A("v_lshlrev_b32 v9, 4, v2")
    T = 100
    for xb in range(3):
        for ap in range(2):
            regs = []
            for h in range(2):
                aa = ap * 2 + h
                for r in range(4):
                    regs.append((ACC + (aa * 3 + xb) * 4 + r, BF + aa * 4 + r))
            for i, (x, b) in enumerate(regs): A("v_add_f32 v%d, v%d, v%d" % (x, x, b))
            for i, (x, b) in enumerate(regs): A("v_mul_f32 v%d, v%d, v%d" % (T + i, x, x))
            for i, (x, b) in enumerate(regs): A("v_fma_f32 v%d, v%d, s39, v96" % (T + i, T + i))
            for i, (x, b) in enumerate(regs): A("v_mul_f32 v%d, v%d, v%d" % (T + i, T + i, x))
            for i, (x, b) in enumerate(regs): A("v_exp_f32 v%d, v%d" % (T + i, T + i))
            for i, (x, b) in enumerate(regs): A("v_add_f32 v%d, 1.0, v%d" % (T + i, T + i))
            for i, (x, b) in enumerate(regs): A("v_rcp_f32 v%d, v%d" % (T + i, T + i))
            for i, (x, b) in enumerate(regs): A("v_mul_f32 v%d, v%d, v%d" % (T + i, T + i, x))
            O = 112 + 4 * ((ap + xb * 2) % 2)
            for i in range(4):
                A("v_cvt_pk_bf16_f32 v%d, v%d, v%d" % (O + i, T + 2 * i, T + 2 * i + 1))
            off = xb * 2048 + ap * 1024
            A("buffer_store_dwordx4 %s, v9, s[12:15], s%d offen offset:%d" % (v(O, 4), 31 + off // 4096, off % 4096))
    stamp_end(A, cfg, 1, 28, 20, 2)
    A("s_endpgm")
    A.label("k2_scan")
    A("s_sub_u32 s21, s21, 27")
    A("s_lshl_b32 s21, s21, 3")
    A("s_add_u32 s21, s21, s3")
    A("s_cmp_ge_u32 s21, 36")
    A("s_cbranch_scc1 k2_end")
    A("s_load_dwordx8 s[40:47], s[0:1], %d" % K_LRE)
    A("s_load_dwordx2 s[48:49], s[0:1], %d" % K_LOGDT)
    A("v_and_b32 v3, 15, v0")
    A("v_lshrrev_b32 v4, 4, v0")
    A("v_lshlrev_b32 v5, 12, v4")
    A("v_lshl_add_u32 v5, v3, 4, v5")
    A("s_lshl_b32 s22, s21, 18")
    A("s_add_u32 s23, s22, 131072")
    A("s_waitcnt lgkmcnt(0)")
    srd(A, 4, 28, SZ_G, WS_G)
    srd(A, 8, 28, SZ_ST, WS_ST)
    srd(A, 12, 28, SZ_HT, WS_HT)
    A("s_cmp_ge_u32 s20, 4")
    A("s_cselect_b32 s16, s46, s44")
    A("s_cselect_b32 s17, s47, s45")
    A("s_mov_b32 s18, %d" % (576 * 1152))
    A("s_mov_b32 s19, 0x00020000")
    A("v_and_b32 v6, 15, v4")
    A("s_movk_i32 s30, 1152")
    A("v_mul_lo_u32 v6, v6, s30")
    A("v_lshl_add_u32 v6, v3, 3, v6")
    A("s_mul_i32 s31, s21, %d" % (16 * 1152))
    CS = 200
    for j in range(9):
        A("buffer_load_dwordx2 %s, v6, s[16:19], s31 offen offset:%d" % (v(CS + 2 * j, 2), j * 128))
    A("v_lshlrev_b32 v7, 5, v0")
    A("buffer_load_dwordx4 v[220:223], v7, s[8:11], 0 offen")
    A("buffer_load_dwordx4 v[224:227], v7, s[8:11], 0 offen offset:16")
    srd(A, 52, 40, 1152)
    srd(A, 56, 42, 1152)
    srd(A, 60, 48, 1152)
    A("v_lshlrev_b32 v8, 1, v3")
    A("s_lshl_b32 s32, s21, 5")
    A("buffer_load_ushort v10, v8, s[52:55], s32 offen")
    A("buffer_load_ushort v11, v8, s[56:59], s32 offen")
    A("buffer_load_ushort v12, v8, s[60:63], s32 offen")
    GR = 64; GI = 128
    for q in range(16):
        A("buffer_load_dwordx4 %s, v5, s[4:7], s22 offen offset:%d" % (v(GR + 4 * q, 4), q * 256))
        A("buffer_load_dwordx4 %s, v5, s[4:7], s23 offen offset:%d" % (v(GI + 4 * q, 4), q * 256))
    A("s_waitcnt vmcnt(37)")
    A("s_mov_b32 s33, 0x3f803f80")
    A("v_mov_b32 v13, 0")
    A("v_mov_b32 v14, 0")
    for j in range(9):
        A("v_dot2_f32_bf16 v13, v%d, s33, v13" % (CS + 2 * j))
        A("v_dot2_f32_bf16 v14, v%d, s33, v14" % (CS + 2 * j + 1))
    A("s_nop 2")
    A("v_add_f32 v13, v13, v14")
    row16_sum(A, 13)
    LDS_CS = 16896; LDS_AGG = 17408
    A("v_lshlrev_b32 v15, 2, v4")
    A("ds_write_b32 v15, v13 offset:%d" % LDS_CS)
    A("v_mul_u32_u24 v16, 528, v4")
    A("v_lshl_add_u32 v17, v3, 5, v16")
    A("s_waitcnt vmcnt(35)")
    A("ds_write_b128 v17, v[220:223]")
    A("ds_write_b128 v17, v[224:227] offset:16")
    A("s_waitcnt vmcnt(32)")
    LRE, LIM, DT, ZR, ZI, LA, LB, L64A, L64B, C2R, C2I = 10, 11, 12, 18, 19, 20, 21, 22, 23, 24, 25
    A("v_lshlrev_b32 v10, 16, v10")
    A("v_lshlrev_b32 v11, 16, v11")
    A("v_lshlrev_b32 v12, 16, v12")
    A("s_mov_b32 s34, 0x%x" % f2u(math.log2(math.e)))
    A("s_mov_b32 s35, 0x%x" % f2u(1.0 / (2 * math.pi)))
    A("v_mul_f32 v12, s34, v12")
    A("v_exp_f32 v12, v12")
    A("s_nop 0")
    round_bf16(A, DT, DT)
    A("v_mul_f32 v%d, v%d, v%d" % (ZR, DT, LRE))
    A("v_mul_f32 v%d, v%d, v%d" % (ZI, DT, LIM))
    A("v_mul_f32 v%d, s34, v%d" % (ZR, ZR))
    A("v_mul_f32 v%d, s35, v%d" % (ZI, ZI))
    A("v_exp_f32 v26, v%d" % ZR)
    A("v_fract_f32 v27, v%d" % ZI)
    A("v_cos_f32 v28, v27")
    A("v_sin_f32 v29, v27")
    A("s_nop 0")
    A("v_mul_f32 v%d, v26, v28" % LA)
    A("v_mul_f32 v%d, v26, v29" % LB)
    A("v_mov_b32 v%d, v%d" % (L64A, LA))
    A("v_mov_b32 v%d, v%d" % (L64B, LB))
    for _ in range(6):
        A("v_mul_f32 v26, v%d, v%d" % (L64B, L64B))
        A("v_mul_f32 v27, v%d, v%d" % (L64A, L64B))
        A("v_fma_f32 v%d, v%d, v%d, -v26" % (L64A, L64A, L64A))
        A("v_add_f32 v%d, v27, v27" % L64B)
    A("v_add_f32 v26, -1.0, v%d" % LA)
    A("v_mul_f32 v27, v%d, v%d" % (LRE, LRE))
    A("v_fmac_f32 v27, v%d, v%d" % (LIM, LIM))
    A("v_rcp_f32 v27, v27")
    A("v_mul_f32 v28, v26, v%d" % LRE)
    A("v_fmac_f32 v28, v%d, v%d" % (LB, LIM))
    A("v_mul_f32 v29, v%d, v%d" % (LB, LRE))
    A("v_fma_f32 v29, -v26, v%d, v29" % LIM)
    A("v_add_f32 v27, v27, v27")
    A("v_mul_f32 v%d, v28, v27" % C2R)
    A("v_mul_f32 v%d, v29, v27" % C2I)
    A("s_waitcnt lgkmcnt(0)")
    A("s_barrier")
    CSR, CSI = 30, 31
    A("v_lshlrev_b32 v15, 2, v3")
    A("ds_read_b32 v%d, v15 offset:%d" % (CSR, LDS_CS))
    A("ds_read_b32 v%d, v15 offset:%d" % (CSI, LDS_CS + 64))
    ST = 192
    HR, HI, T1, T2 = 32, 33, 34, 35
    A("v_mov_b32 v%d, 0" % HR)
    A("v_mov_b32 v%d, 0" % HI)
    def st_reads(blk):
        for k in range(4):
            A("ds_read_b128 %s, v16 offset:%d" % (v(ST + (blk % 2) * 16 + 4 * k, 4), blk * 64 + k * 16))
    st_reads(0)
    for blk in range(8):
        if blk < 7:
            st_reads(blk + 1)
            A("s_waitcnt lgkmcnt(4)")
        else:
            A("s_waitcnt lgkmcnt(0)")
        A("s_waitcnt vmcnt(%d)" % (28 - 4 * blk))
        for k in range(8):
            t = blk * 8 + k
            m = ST + (blk % 2) * 16 + 2 * k
            A("v_fma_f32 v%d, -v%d, v%d, v%d" % (GR + t, m, CSR, GR + t))
            A("v_fma_f32 v%d, -v%d, v%d, v%d" % (GI + t, m, CSI, GI + t))
            A("v_mul_f32 v%d, v%d, v%d" % (GR + t, GR + t, m + 1))
            A("v_mul_f32 v%d, v%d, v%d" % (GI + t, GI + t, m + 1))
        for k in range(8):
            t = blk * 8 + k
            A("v_fma_f32 v%d, v%d, v%d, v%d" % (T1, LA, HR, GR + t))
            A("v_fma_f32 v%d, v%d, v%d, v%d" % (T2, LA, HI, GI + t))
            A("v_fma_f32 v%d, -v%d, v%d, v%d" % (T1, LB, HI, T1))
            A("v_fma_f32 v%d, v%d, v%d, v%d" % (HI, LB, HR, T2))
            A("v_mov_b32 v%d, v%d" % (HR, T1))
    A("v_lshlrev_b32 v15, 3, v0")
    A("ds_write_b64 v15, v[%d:%d] offset:%d" % (HR, HI, LDS_AGG))
    A("s_waitcnt lgkmcnt(0)")
    A("s_barrier")
    AG = 192
    A("v_lshlrev_b32 v15, 3, v3")
    for j in range(31):
        A("ds_read_b64 %s, v15 offset:%d" % (v(AG + 2 * j, 2), LDS_AGG + j * 128))
        if j == 14 or j == 29:
            A("s_waitcnt lgkmcnt(0)")
    A("v_mov_b32 v%d, 0" % HR)
    A("v_mov_b32 v%d, 0" % HI)
    A("s_waitcnt lgkmcnt(0)")
    for j in range(31):
        A("v_cmpx_lt_u32 vcc, %d, v4" % j)
        A("v_fma_f32 v%d, v%d, v%d, v%d" % (T1, L64A, HR, AG + 2 * j))
        A("v_fma_f32 v%d, v%d, v%d, v%d" % (T2, L64A, HI, AG + 2 * j + 1))
        A("v_fma_f32 v%d, -v%d, v%d, v%d" % (T1, L64B, HI, T1))
        A("v_fma_f32 v%d, v%d, v%d, v%d" % (HI, L64B, HR, T2))
        A("v_mov_b32 v%d, v%d" % (HR, T1))
    A("s_mov_b64 exec, -1")
    A("s_lshl_b32 s36, s21, 4")
    A("v_add_u32 v36, s36, v3")
    A("v_and_b32 v37, 3, v36")
    A("v_bfe_u32 v38, v36, 2, 1")
    A("v_lshl_add_u32 v37, v38, 4, v37")
    A("v_bfe_u32 v38, v36, 3, 2")
    A("v_lshl_add_u32 v37, v38, 2, v37")
    A("v_and_b32 v38, 0xffffffe0, v36")
    A("v_add_u32 v37, v37, v38")
    A("v_lshlrev_b32 v37, 12, v37")
    A("v_lshl_add_u32 v37, v4, 7, v37")
    A("s_mov_b32 s37, %d" % (576 * 4096))
    OR, OI = 40, 48
    PK = 192
    for blk in range(8):
        for k in range(8):
            t = blk * 8 + k
            A("v_fma_f32 v%d, v%d, v%d, v%d" % (T1, LA, HR, GR + t))
            A("v_fma_f32 v%d, v%d, v%d, v%d" % (T2, LA, HI, GI + t))
            A("v_fma_f32 v%d, -v%d, v%d, v%d" % (T1, LB, HI, T1))
            A("v_fma_f32 v%d, v%d, v%d, v%d" % (HI, LB, HR, T2))
            A("v_mov_b32 v%d, v%d" % (HR, T1))
            A("v_mul_f32 v%d, v%d, v%d" % (OR + k, C2R, T1))
            A("v_mul_f32 v%d, v%d, v%d" % (OI + k, C2I, T1))
            A("v_fma_f32 v%d, -v%d, v%d, v%d" % (OR + k, C2I, HI, OR + k))
            A("v_fma_f32 v%d, -v%d, v%d, -v%d" % (OI + k, C2R, HI, OI + k))
        pk = PK + (blk % 2) * 8
        for k in range(4):
            A("v_cvt_pk_bf16_f32 v%d, v%d, v%d" % (pk + k, OR + 2 * k, OR + 2 * k + 1))
            A("v_cvt_pk_bf16_f32 v%d, v%d, v%d" % (pk + 4 + k, OI + 2 * k, OI + 2 * k + 1))
        A("buffer_store_dwordx4 %s, v37, s[12:15], 0 offen offset:%d" % (v(pk, 4), blk * 16))
        A("buffer_store_dwordx4 %s, v37, s[12:15], s37 offen offset:%d" % (v(pk + 4, 4), blk * 16))
    stamp_end(A, cfg, 1, 28, 20, 2)
    A.label("k2_end")
    A("s_endpgm")
    return NS * SLOT

def gen_k3(A, cfg):
    NS = 4; SLOT = 34816
    kernel_head(A, "k3_kernel")
    stamp_begin(A, cfg)
    A("s_cmp_ge_u32 s2, 256")
    A("s_cbranch_scc1 k3_end")
    A("s_load_dwordx2 s[24:25], s[0:1], %d" % K_W2)
    A("s_load_dwordx4 s[28:31], s[0:1], %d" % (K_CRE - 8))
    A("s_load_dwordx2 s[32:33], s[0:1], %d" % K_CIM)
    A("s_load_dwordx2 s[26:27], s[0:1], %d" % K_WS)
    A("v_lshrrev_b32 v1, 6, v0")
    A("v_and_b32 v2, 63, v0")
    A("v_readfirstlane_b32 s20, v1")
    A("s_and_b32 s3, s2, 7")
    A("s_lshr_b32 s21, s2, 3")
    A("s_lshr_b32 s22, s3, 1")
    A("s_and_b32 s3, s3, 1")
    A("s_lshl_b32 s3, s3, 3")
    A("s_lshr_b32 s23, s21, 2")
    A("s_add_u32 s23, s23, s3")
    A("s_and_b32 s21, s21, 3")
    A("s_mul_i32 s34, s22, 23")
    A("s_cmp_eq_u32 s22, 3")
    A("s_cselect_b32 s34, 68, s34")
    A("s_cmp_ge_u32 s22, 2")
    A("s_cselect_b32 s35, 22, 23")
    A("s_cmp_lt_u32 s20, 4")
    A("s_cbranch_scc1 k3_cons")
    A("s_sub_u32 s36, s20, 4")
    A("v_lshrrev_b32 v3, 4, v2")
    A("v_and_b32 v4, 15, v2")
    A("v_lshlrev_b32 v5, 12, v3")
    A("v_lshlrev_b32 v6, 1, v3")
    A("v_xor_b32 v7, v4, v6")
    A("v_xor_b32 v8, 8, v7")
    A("v_lshl_add_u32 v10, v7, 4, v5")
    A("v_lshl_add_u32 v11, v8, 4, v5")
    D = 4 * 4096 - 1024
    A("v_add_u32 v12, 0x%x, v10" % (2 * D))
    A("v_add_u32 v13, 0x%x, v11" % (3 * D))
    A("v_add_u32 v11, 0x%x, v11" % (1 * D))
    for m in range(4):
        A("v_lshlrev_b32 v%d, 4, v2" % (14 + m))
    A("v_lshrrev_b32 v3, 3, v2")
    A("v_and_b32 v4, 7, v2")
    A("v_xor_b32 v4, v4, v3")
    A("s_movk_i32 s37, 1152")
    A("v_mul_lo_u32 v5, v3, s37")
    A("v_lshl_add_u32 v20, v4, 4, v5")
    DC = 8 * 1152 - 1024
    for m in range(1, 4):
        A("v_add_u32 v%d, 0x%x, v20" % (20 + m, m * DC))
    A("s_lshl_b32 s38, s34, 6")
    A("s_lshl_b32 s39, s36, 4")
    A("s_add_u32 s38, s38, s39")
    A("s_lshl_b32 s38, s38, 12")
    A("s_lshl_b32 s39, s23, 8")
    A("s_add_u32 s38, s38, s39")
    A("s_mul_i32 s40, s34, 36")
    A("s_mul_i32 s41, s21, 9")
    A("s_add_u32 s40, s40, s41")
    A("s_lshl_b32 s40, s40, 11")
    A("s_and_b32 s42, s36, 1")
    A("s_add_u32 s42, s42, 16")
    A("s_lshl_b32 s41, s42, 10")
    A("s_add_u32 s41, s41, s40")
    A("s_lshl_b32 s43, s36, 12")
    A("s_add_u32 s40, s40, s43")
    A("s_add_u32 s44, s43, 16384")
    A("s_lshl_b32 s45, s42, 10")
    A("s_add_u32 s45, s45, 16384")
    A("s_mov_b32 s46, 0")
    A("s_mov_b32 s47, %d" % (72 * 1024))
    A("s_mov_b32 s48, s34")
    A("s_mul_i32 s49, s21, 144")
    A("s_lshl_b32 s50, s42, 3")
    A("s_add_u32 s50, s50, s49")
    A("s_mul_i32 s50, s50, 1152")
    A("s_lshl_b32 s51, s36, 5")
    A("s_add_u32 s49, s49, s51")
    A("s_mul_i32 s49, s49, 1152")
    A("s_lshl_b32 s51, s36, 16")
    A("s_add_u32 s51, s51, s39")
    A("s_waitcnt lgkmcnt(0)")
    srd(A, 4, 24, 4608 * 4096)
    srd(A, 8, 26, SZ_UF, WS_UF)
    def issue():
        sw1 = A.newlabel("k3_sw"); sw2 = A.newlabel("k3_sw")
        A("s_cmp_lg_u32 s48, 72")
        A("s_cbranch_scc1 %s" % sw1)
        srd(A, 4, 26, SZ_HT, WS_HT)
        srd(A, 8, 30, 576 * 1152)
        A("s_mov_b32 s38, s51")
        A("s_mov_b32 s40, s49")
        A("s_mov_b32 s41, s50")
        A("s_mov_b32 s47, 128")
        for m in range(4):
            A("v_mov_b32 v%d, v%d" % (14 + m, 20 + m))
        A.label(sw1)
        A("s_cmp_lg_u32 s48, 81")
        A("s_cbranch_scc1 %s" % sw2)
        srd(A, 8, 32, 576 * 1152)
        A("s_mov_b32 s40, s49")
        A("s_mov_b32 s41, s50")
        A.label(sw2)
        A("s_add_u32 m0, s46, s43")
        A("s_add_u32 s52, s46, s44")
        for m in range(4):
            A("buffer_load_dwordx4 v%d, s[4:7], s38 offen offset:%d lds" % (10 + m, m * 1024))
        A("s_mov_b32 m0, s52")
        A("s_add_u32 s38, s38, %d" % (64 * 4096))
        for m in range(4):
            A("buffer_load_dwordx4 v%d, s[8:11], s40 offen offset:%d lds" % (14 + m, m * 1024))
        A("s_add_u32 m0, s46, s45")
        A("s_add_u32 s40, s40, s47")
        A("buffer_load_dwordx4 v14, s[8:11], s41 offen lds")
        A("s_add_u32 s41, s41, s47")
        A("s_add_u32 s48, s48, 1")
        A(slot_advance(46, SLOT, NS))
    loader_loop(A, "k3", issue, 9, NS, 22, 53, kt_sreg=35)
    A("s_endpgm")
    A.label("k3_cons")
    A("v_lshrrev_b32 v5, 2, v2")
    A("v_and_b32 v6, 7, v5")
    A("v_and_b32 v7, 3, v2")
    A("v_lshlrev_b32 v7, 3, v7")
    A("v_lshl_add_u32 v7, v5, 8, v7")
    A("s_lshl_b32 s36, s20, 1")
    BW = 10; CW = 14; BC = 18
    for aa in range(2):
        A("s_add_u32 s37, s36, %d" % aa)
        A("v_xor_b32 v8, s37, v6")
        A("v_lshl_add_u32 v%d, v8, 5, v7" % (BW + aa))
    A("v_lshlrev_b32 v8, 4, v2")
    A("v_add_u32 v%d, 16384, v8" % (BW + 2))
    A("v_add_u32 v%d, 17408, v8" % (BW + 3))
    A("v_and_b32 v3, 15, v2")
    A("v_lshrrev_b32 v4, 4, v2")
    A("v_and_b32 v5, 7, v3")
    A("v_xor_b32 v5, v5, v4")
    A("v_lshlrev_b32 v5, 4, v5")
    A("v_lshl_add_u32 v5, v3, 7, v5")
    A("v_add_u32 v%d, 16384, v5" % BC)
    A("v_xor_b32 v%d, 64, v%d" % (BC + 1, BC))
    for i in range(4):
        A("v_mov_b32 v%d, v%d" % (CW + i, BW + i))
    ACC = 24; SETS = [96, 140]
    for i in range(72):
        A("v_mov_b32 v%d, 0" % (ACC + i))
    A("s_mov_b32 s46, 0")
    A("s_mov_b32 s48, s34")
    A("s_waitcnt lgkmcnt(0)")
    srd(A, 12, 26, 4 * SZ_PART1, WS_PART)
    def reads(st, ks):
        b = SETS[st]; r = []
        r.append("ds_read_b128 %s, v%d offset:%d" % (v(b + 8, 4), CW + 2 + ks, 0))
        for aa in range(2):
            r.append("ds_read_b64_tr_b16 %s, v%d offset:%d" % (v(b + 4 * aa, 2), CW + aa, ks * 8192))
            r.append("ds_read_b64_tr_b16 %s, v%d offset:%d" % (v(b + 4 * aa + 2, 2), CW + aa, ks * 8192 + 4096))
        for xb in range(1, 9):
            r.append("ds_read_b128 %s, v%d offset:%d" % (v(b + 8 + 4 * xb, 4), CW + 2 + ks, xb * 2048))
        return r
    def mfmas(st):
        b = SETS[st]; m = []
        for xb in range(9):
            for aa in range(2):
                d = v(ACC + (xb * 2 + aa) * 4, 4)
                m.append("v_mfma_f32_16x16x32_bf16 %s, %s, %s, %s" % (d, v(b + 8 + 4 * xb, 4), v(b + 4 * aa, 4), d))
        return m
    def addr_update():
        sw = A.newlabel("k3_csw")
        e = [slot_advance(46, SLOT, NS) + "\ns_add_u32 s48, s48, 1\ns_cmp_lg_u32 s48, 72\ns_cbranch_scc1 %s\nv_mov_b32 v%d, v%d\nv_mov_b32 v%d, v%d\n%s:" % (sw, BW + 2, BC, BW + 3, BC + 1, sw)]
        return e + ["v_add_u32 v%d, s46, v%d" % (CW + i, BW + i) for i in range(4)]
    consumer_loop(A, "k3", reads, mfmas, addr_update, 22, 53, kt_sreg=35, cfg=cfg)
    A("s_lshl_b32 s36, s23, 3")
    A("s_lshl_b32 s37, s20, 1")
    A("s_add_u32 s36, s36, s37")
    A("s_mul_i32 s36, s36, 36")
    A("s_mul_i32 s37, s21, 9")
    A("s_add_u32 s36, s36, s37")
    A("s_lshl_b32 s36, s36, 10")
    A("s_mul_i32 s37, s22, %d" % SZ_PART1)
    A("s_add_u32 s36, s36, s37")
    A("v_lshlrev_b32 v9, 4, v2")
    for aa in range(2):
        for q in range(3):
            A("s_add_u32 s%d, s36, %d" % (38 + aa * 3 + q, aa * 36 * 1024 + q * 4096))
    A("s_nop 2")
    for xb in range(9):
        for aa in range(2):
            A("buffer_store_dwordx4 %s, v9, s[12:15], s%d offen offset:%d" % (v(ACC + (xb * 2 + aa) * 4, 4), 38 + aa * 3 + xb // 4, (xb % 4) * 1024))
    stamp_end(A, cfg, 2, 26, 20, 2)
    A.label("k3_end")
    A("s_endpgm")
    return NS * SLOT

def gen_k4(A, cfg):
    kernel_head(A, "k4_kernel")
    stamp_begin(A, cfg)
    A("s_cmp_ge_u32 s2, 1152")
    A("s_cbranch_scc1 k4_end")
    A("s_load_dwordx2 s[24:25], s[0:1], %d" % K_X)
    A("s_load_dwordx2 s[28:29], s[0:1], %d" % K_DSKIP)
    A("s_load_dwordx4 s[32:35], s[0:1], %d" % K_B2)
    A("s_load_dwordx2 s[26:27], s[0:1], %d" % K_WS)
    A("v_lshrrev_b32 v1, 6, v0")
    A("v_and_b32 v2, 63, v0")
    A("v_readfirstlane_b32 s20, v1")
    A("s_lshl_b32 s21, s2, 2")
    A("s_add_u32 s21, s21, s20")
    A("s_mul_i32 s22, s21, 58255")
    A("s_lshr_b32 s22, s22, 21")
    A("s_mul_i32 s23, s22, 36")
    A("s_sub_u32 s23, s21, s23")
    A("v_and_b32 v3, 15, v2")
    A("v_lshrrev_b32 v4, 4, v2")
    A("v_lshlrev_b32 v5, 4, v2")
    A("s_lshl_b32 s36, s21, 10")
    A("s_movk_i32 s37, 1152")
    A("v_mul_lo_u32 v6, v3, s37")
    A("v_lshl_add_u32 v6, v4, 3, v6")
    A("v_lshlrev_b32 v7, 1, v6")
    A("s_mul_i32 s38, s22, %d" % (16 * 1152))
    A("s_lshl_b32 s39, s23, 5")
    A("s_add_u32 s38, s38, s39")
    A("s_lshl_b32 s40, s38, 1")
    A("v_lshlrev_b32 v8, 3, v4")
    A("v_lshlrev_b32 v9, 3, v3")
    A("v_lshlrev_b32 v10, 1, v3")
    A("s_lshl_b32 s41, s22, 7")
    A("s_lshl_b32 s42, s22, 5")
    A("s_waitcnt lgkmcnt(0)")
    srd(A, 4, 26, 4 * SZ_PART1, WS_PART)
    srd(A, 8, 24, 2359296)
    srd(A, 12, 28, 1152)
    srd(A, 16, 26, SZ_ST, WS_ST)
    srd(A, 44, 32, 4096)
    srd(A, 48, 34, 2048 * 576 * 4)
    for sp in range(4):
        A("buffer_load_dwordx4 %s, v5, s[4:7], s36 offen" % v(16 + 4 * sp, 4))
        if sp < 3:
            A("s_add_u32 s36, s36, %d" % SZ_PART1)
    A("buffer_load_dwordx2 v[32:33], v6, s[8:11], s38 offen")
    A("buffer_load_dwordx2 v[34:35], v8, s[12:15], s39 offen")
    A("buffer_load_dwordx2 v[36:37], v9, s[16:19], s41 offen")
    A("buffer_load_ushort v38, v10, s[44:47], s42 offen")
    A("s_waitcnt vmcnt(0)")
    for h in range(2):
        A("v_lshlrev_b32 v%d, 16, v%d" % (40 + 2 * h, 32 + h))
        A("v_and_b32 v%d, 0xffff0000, v%d" % (41 + 2 * h, 32 + h))
        A("v_lshlrev_b32 v%d, 16, v%d" % (44 + 2 * h, 34 + h))
        A("v_and_b32 v%d, 0xffff0000, v%d" % (45 + 2 * h, 34 + h))
    A("v_lshlrev_b32 v38, 16, v38")
    for r in range(4):
        A("v_sub_f32 v%d, v%d, v36" % (48 + r, 40 + r))
    def rnd4(b):
        A("v_cvt_pk_bf16_f32 v52, v%d, v%d" % (b, b + 1))
        A("v_cvt_pk_bf16_f32 v53, v%d, v%d" % (b + 2, b + 3))
        for h in range(2):
            A("v_lshlrev_b32 v%d, 16, v%d" % (b + 2 * h, 52 + h))
            A("v_and_b32 v%d, 0xffff0000, v%d" % (b + 2 * h + 1, 52 + h))
    rnd4(48)
    for r in range(4):
        A("v_mul_f32 v%d, v%d, v37" % (48 + r, 48 + r))
    rnd4(48)
    for r in range(4):
        A("v_mul_f32 v%d, v%d, v%d" % (48 + r, 48 + r, 44 + r))
    rnd4(48)
    for r in range(4):
        A("v_add_f32 v%d, v%d, v%d" % (16 + r, 16 + r, 20 + r))
        A("v_add_f32 v%d, v%d, v%d" % (24 + r, 24 + r, 28 + r))
        A("v_add_f32 v%d, v%d, v%d" % (48 + r, 48 + r, 40 + r))
    for r in range(4):
        A("v_add_f32 v%d, v%d, v%d" % (16 + r, 16 + r, 24 + r))
        A("v_add_f32 v%d, v%d, v38" % (48 + r, 48 + r))
    for r in range(4):
        A("v_add_f32 v%d, v%d, v%d" % (16 + r, 16 + r, 48 + r))
    A("buffer_store_dwordx4 v[16:19], v7, s[48:51], s40 offen")
    stamp_end(A, cfg, 3, 26, 20, 2)
    A.label("k4_end")
    A("s_endpgm")
    return 0

HEADER = open("parallel_sum__ssm_conv_s5__mixer_token_mlp__prompt.s.ref").read().split("; Override launch")[0]

def gen(**kw):
    cfg = Cfg()
    for k, val in kw.items():
        setattr(cfg, k, val)
    B = Asm()
    l1 = gen_k1(B, cfg); l2 = gen_k2(B, cfg); l3 = gen_k3(B, cfg); l4 = gen_k4(B, cfg)
    out = HEADER
    out += "; @launch kernel=k1_kernel grid=(256,1,1) block=(512,1,1) lds=%d\n" % l1
    out += "; @launch kernel=k2_kernel grid=(256,1,1) block=(512,1,1) lds=%d\n" % l2
    out += "; @launch kernel=k3_kernel grid=(256,1,1) block=(512,1,1) lds=%d\n" % l3
    out += "; @launch kernel=k4_kernel grid=(1152,1,1) block=(256,1,1) lds=0\n"
    out += '.amdgcn_target "amdgcn-amd-amdhsa--gfx950"\n.text\n'
    out += B.text()
    out += '.section .rodata,"a"\n'
    for name, vg in (("k1_kernel", 136), ("k2_kernel", 256), ("k3_kernel", 184), ("k4_kernel", 56)):
        out += ".p2align 6\n" + kd(name, vg, 102)
    return out

if __name__ == "__main__":
    kw = {}
    for a_ in sys.argv[2:]:
        k, val = a_.split("=")
        kw[k] = ast.literal_eval(val)
    open(sys.argv[1], "w").write(gen(**kw))
```

```python
import sys, math, ast
from asmlib import *

WS_HF = 0x0
WS_UF = 0x400000
WS_G = 0xC00000
WS_HT = 0x1400000
WS_ST = 0x1900000
WS_EX = 0x2000000
WS_FL = 0x1910000
SZ_FL = 32768
WS_STAMP = 0xC000000
import os
PAIR = int(os.environ.get('PAIR', 3072))
SZ_HF = 32 * 36 * PAIR
SZ_UF = 72 * 36 * PAIR
SZ_G = 4718592
SZ_HT = 4718592
SZ_ST = 16384
SZ_EX = 64 * 16 * 9216
SZ_W = 2048 * 9216
SZ_C = 576 * 1152

K_X, K_LRE, K_LIM, K_BRE, K_BIM, K_CRE, K_CIM, K_LOGDT, K_DSKIP, K_BX, K_W1, K_B1, K_W2, K_B2, K_OUT, K_DBG, K_WS = [8 * i for i in range(17)]

class Cfg:
    stamp = False
    ln1 = 1
    ln2 = 1
    g1pf = 0
    sce = 0
    scm = (1, 1, 1)
    scl = 3
    idle_extra = 2
    g2pf = 0
    st1 = ""; st2 = ""; st2s = ""; sto = ""
    b2 = ((1, 16), (12, 16))
    pos_b3 = 0
    touch1 = 0
    d3 = 2
    rot2 = 1
    adv2 = 0
    wrapw = 31
    wrapx = 31
    lprio = 0
    cprio = 0
    d2 = 3
    pts2 = (0, 3, 6)
    pts3 = (0, 6)
    rot3 = 0
    rot1 = 0
    skipw1 = 1
    ra = 1
    rb = 1
    kstep = 1
    b3 = ((1, 20),)

def stamp_begin(A, cfg):
    if cfg.stamp:
        A("s_memrealtime s[90:91]")
        A("s_memtime s[92:93]")

def stamp_mid(A, cfg, idx):
    if cfg.stamp:
        A("s_memtime s[%d:%d]" % (82 + 2 * idx, 83 + 2 * idx))
        A("s_waitcnt lgkmcnt(0)")

def stamp_end(A, cfg, kidx, wsreg, wavereg, lanereg, wave=0):
    if not cfg.stamp:
        return
    A("s_waitcnt vmcnt(0)")
    A("s_memrealtime s[94:95]")
    A("s_memtime s[96:97]")
    srd(A, 76, wsreg, 65536 * 2, WS_STAMP + kidx * 131072)
    A("s_waitcnt lgkmcnt(0)")
    regs = [90, 91, 94, 95, 92, 96, 82, 84, 86, 88]
    for i, r in enumerate(regs):
        A("v_mov_b32 v%d, s%d" % (4 + i, r))
    A("s_lshl_b32 s80, s2, 3")
    A("s_add_u32 s80, s80, s%d" % wavereg)
    A("s_lshl_b32 s80, s80, 6")
    A("v_mov_b32 v3, 0")
    A("v_cmp_eq_u32 vcc, 0, v%d" % lanereg)
    A("s_and_saveexec_b64 s[98:99], vcc")
    A("buffer_store_dwordx4 v[4:7], v3, s[76:79], s80 offen")
    A("buffer_store_dwordx4 v[8:11], v3, s[76:79], s80 offen offset:16")
    A("buffer_store_dwordx2 v[12:13], v3, s[76:79], s80 offen offset:32")

LPRIO = [0, 0]
def loader_loop(A, pfx, issue, per, D, KT, cnt_sreg, kt_sreg=None, after_last_issue=None):
    if LPRIO[0]: A("s_setprio %d" % LPRIO[0])
    for j in range(D):
        issue()
    if kt_sreg is None:
        A("s_mov_b32 s%d, %d" % (cnt_sreg, KT - D))
    else:
        A("s_sub_u32 s%d, s%d, %d" % (cnt_sreg, kt_sreg, D))
    A.label(pfx + "_lloop")
    A("s_waitcnt vmcnt(%d)" % ((D - 1) * per))
    A("s_barrier")
    issue()
    A("s_sub_u32 s%d, s%d, 1" % (cnt_sreg, cnt_sreg))
    A("s_cmp_lg_u32 s%d, 0" % cnt_sreg)
    A("s_cbranch_scc1 %s_lloop" % pfx)
    extra = after_last_issue() if after_last_issue else 0
    for j in range(D):
        A("s_waitcnt vmcnt(%d)" % ((D - 1 - j) * per + extra))
        A("s_barrier")

WAITPTS = [None]
def group(A, ms, rs, nprev, extra=(), pts=None):
    rs = list(rs); issued = 0; waited = -1
    for i, (m, need) in enumerate(ms):
        if pts is not None:
            if i in pts:
                nxt = min([p for p in pts if p > i] + [len(ms)])
                need = max(n for _, n in ms[i:nxt])
            else:
                assert need <= waited
        if need > waited:
            A("s_waitcnt lgkmcnt(%d)" % min(15, nprev - 1 - need + issued))
            waited = need
        A(m)
        if rs:
            A(rs.pop(0)); issued += 1
        for pos, t in extra:
            if pos == i: A(t)
    for r in rs: A(r)

def consumer_loop(A, pfx, reads, mfmas, addr_update, KT, cnt_sreg, kt_sreg=None, cfg=None, extraB=(), before_tail=None, early=False, pts=None):
    if LPRIO[1]: A("s_setprio %d" % LPRIO[1])
    A("s_barrier")
    if cfg: stamp_mid(A, cfg, 0)
    for r in reads(0, 0): A(r)
    n = len(reads(0, 0))
    if kt_sreg is None:
        A("s_mov_b32 s%d, %d" % (cnt_sreg, KT - 1))
    else:
        A("s_sub_u32 s%d, s%d, 1" % (cnt_sreg, kt_sreg))
    A.label(pfx + "_cloop")
    group(A, mfmas(0), reads(1, 1), n, addr_update(), pts)
    if early: A("s_waitcnt lgkmcnt(0)")
    A("s_barrier")
    nm = len(mfmas(1))
    group(A, mfmas(1), reads(0, 0), n, list(extraB) + [(nm - 3, "s_sub_u32 s%d, s%d, 1" % (cnt_sreg, cnt_sreg)), (nm - 2, "s_cmp_lg_u32 s%d, 0" % cnt_sreg)], pts)
    A("s_cbranch_scc1 %s_cloop" % pfx)
    if before_tail: before_tail()
    group(A, mfmas(0), reads(1, 1), n, (), pts)
    group(A, mfmas(1), [], n, (), pts)
    if cfg: stamp_mid(A, cfg, 1)

def slot_advance(sreg, SLOT, NS):
    return "s_add_u32 s%d, s%d, %d\ns_cmp_eq_u32 s%d, %d\ns_cselect_b32 s%d, 0, s%d" % (sreg, sreg, SLOT, sreg, NS * SLOT, sreg, sreg)

def row16_sum(A, r):
    for sh in (8, 4, 2, 1):
        A("s_nop 1")
        A("v_add_f32_dpp v%d, v%d, v%d row_ror:%d row_mask:0xf bank_mask:0xf" % (r, r, r, sh))

def round_bf16(A, dst, src):
    A("v_cvt_pk_bf16_f32 v%d, v%d, v%d" % (dst, src, src))
    A("v_lshlrev_b32 v%d, 16, v%d" % (dst, dst))

def frag_lane_off(A, dst0, dst1, lane, tmp):
    A("v_lshlrev_b32 v%d, 4, v%d" % (dst0, lane))
    if PAIR == 2048:
        A("v_add_u32 v%d, 1024, v%d" % (dst1, dst0))
        return
    A("v_add_u32 v%d, 1152, v%d" % (dst1, dst0))
    A("v_cmp_le_u32 vcc, 24, v%d" % lane)
    A("v_add_u32 v%d, 128, v%d" % (tmp, dst0))
    A("s_nop 0")
    A("v_cndmask_b32 v%d, v%d, v%d, vcc" % (dst0, dst0, tmp))
    A("v_cmp_le_u32 vcc, 16, v%d" % lane)
    A("v_add_u32 v%d, 128, v%d" % (tmp, dst1))
    A("s_nop 0")
    A("v_cndmask_b32 v%d, v%d, v%d, vcc" % (dst1, dst1, tmp))

L_C = 2304; L_W2 = 2304 + 162; L_END = L_W2 + 73 * 32
def pf_decode(A, idx, d, off, t, w1, cre, cim, w2, lo=0):
    A("s_sub_u32 s%d, s%d, %d" % (off, idx, L_W2 + 128))
    A("s_lshr_b32 s%d, s%d, 5" % (t, off))
    A("s_mul_i32 s%d, s%d, 21846" % (t + 1, t))
    A("s_lshr_b32 s%d, s%d, 16" % (t + 1, t + 1))
    A("s_mul_i32 s%d, s%d, 23" % (t, t))
    A("s_mul_i32 s%d, s%d, 68" % (t + 1, t + 1))
    A("s_sub_u32 s%d, s%d, s%d" % (t, t, t + 1))
    A("s_lshl_b32 s%d, s%d, 5" % (t, t))
    A("s_and_b32 s%d, s%d, 31" % (off, off))
    A("s_add_u32 s%d, s%d, s%d" % (off, off, t))
    A("s_cmp_ge_u32 s%d, %d" % (idx, L_END))
    A("s_cselect_b32 s%d, 4096, s%d" % (off, off))
    A("s_mov_b32 s%d, s%d\ns_mov_b32 s%d, s%d\ns_mov_b32 s%d, %d" % (d, w2, d + 1, w2 + 1, d + 2, SZ_W))
    for (hi, sub, base, sz) in ((L_W2 + 128, L_W2 - 68 * 32, w2, SZ_W), (L_W2, L_C + 81, cim, SZ_C), (L_C + 81, L_C, cre, SZ_C), (L_C, 0, w1, SZ_W)):
        if hi <= lo: continue
        A("s_sub_u32 s%d, s%d, %d" % (t, idx, sub))
        A("s_cmp_lt_u32 s%d, %d" % (idx, hi))
        A("s_cselect_b32 s%d, s%d, s%d" % (off, t, off))
        if base != w2:
            A("s_cselect_b32 s%d, s%d, s%d" % (d, base, d))
            A("s_cselect_b32 s%d, s%d, s%d" % (d + 1, base + 1, d + 1))
            A("s_cselect_b32 s%d, %d, s%d" % (d + 2, sz, d + 2))
    A("s_mov_b32 s%d, 0x00020000" % (d + 3))
    A("s_lshl_b32 s%d, s%d, 13" % (off, off))

def kernel_head(A, name):
    A.raw(".globl %s\n.p2align 8\n.type %s,@function" % (name, name))
    A.label(name)

MFMA = "v_mfma_f32_16x16x32_bf16"

def gen_k1(A, cfg):
    NS = 5; SLOT = 28672; KT = 9
    kernel_head(A, "k1_kernel")
    stamp_begin(A, cfg)
    A("s_cmp_ge_u32 s2, 256")
    A("s_cbranch_scc1 k1_end")
    A("s_load_dwordx2 s[24:25], s[0:1], %d" % K_X)
    A("s_load_dwordx4 s[28:31], s[0:1], %d" % K_BRE)
    A("s_load_dwordx2 s[44:45], s[0:1], %d" % K_W1)
    A("s_load_dwordx2 s[26:27], s[0:1], %d" % K_WS)
    A("v_lshrrev_b32 v1, 6, v0")
    A("v_and_b32 v2, 63, v0")
    A("v_readfirstlane_b32 s20, v1")
    A("s_and_b32 s3, s2, 7")
    A("s_lshr_b32 s21, s2, 3")
    A("s_cmp_ge_u32 s21, 24")
    A("s_cbranch_scc1 k1_ln")
    A("s_cmp_ge_u32 s21, 12")
    A("s_cselect_b32 s22, 1, 0")
    A("s_mul_i32 s23, s22, 12")
    A("s_sub_u32 s23, s21, s23")
    A("s_lshl_b32 s3, s3, 1")
    A("s_add_u32 s22, s22, s3")
    A("s_cmp_lt_u32 s20, 4")
    A("s_cbranch_scc1 k1_cons")
    A("s_cmp_ge_u32 s20, 8")
    A("s_cbranch_scc1 k1_help")
    A("s_sub_u32 s34, s20, 4")
    A("v_lshrrev_b32 v3, 3, v2")
    A("v_and_b32 v4, 7, v2")
    A("v_xor_b32 v6, v4, v3")
    A("s_movk_i32 s35, 1152")
    A("v_mul_lo_u32 v5, v3, s35")
    A("v_lshlrev_b32 v8, 1, v5")
    A("v_lshl_add_u32 v10, v6, 4, v8")
    A("s_lshr_b32 s35, s34, 1")
    A("v_and_b32 v7, 6, v3")
    A("v_or_b32 v7, s35, v7")
    A("v_xor_b32 v7, v4, v7")
    A("v_lshl_add_u32 v14, v7, 4, v5")
    D = 8 * 1152 - 1024
    for m in range(1, 4):
        A("v_add_u32 v%d, 0x%x, v10" % (10 + m, (16 * (m & 1) + (m >> 1)) * 1152 - (m & 1) * 1024))
    for m in range(1, 3):
        A("v_add_u32 v%d, 0x%x, v14" % (14 + m, m * D))
    A("s_lshl_b32 s36, s22, 7")
    A("s_lshl_b32 s37, s34, 5")
    A("s_add_u32 s36, s36, s37")
    A("s_mul_i32 s36, s36, 1152")
    A("s_mul_i32 s37, s23, 48")
    A("s_and_b32 s38, s34, 1")
    A("s_mul_i32 s38, s38, 24")
    A("s_add_u32 s37, s37, s38")
    A("s_mul_i32 s37, s37, 1152")
    A("s_lshl_b32 s38, s34, 12")
    A("s_mul_i32 s39, s34, 3072")
    A("s_add_u32 s39, s39, 16384")
    A("s_mov_b32 s40, 0")
    if cfg.rot1:
        A("s_lshl_b32 s50, s22, 2")
        A("s_add_u32 s50, s50, s23")
        A("s_mul_i32 s51, s50, 7282")
        A("s_lshr_b32 s51, s51, 16")
        A("s_mul_i32 s51, s51, 9")
        A("s_sub_u32 s50, s50, s51")
        A("s_lshl_b32 s51, s50, 7")
        A("s_add_u32 s36, s36, s51")
        A("s_add_u32 s37, s37, s51")
    A("s_waitcnt lgkmcnt(0)")
    srd(A, 4, 24, 2359296)
    A("s_cmp_ge_u32 s34, 2")
    A("s_cselect_b32 s8, s30, s28")
    A("s_cselect_b32 s9, s31, s29")
    A("s_mov_b32 s10, %d" % SZ_C)
    A("s_mov_b32 s11, 0x00020000")
    def issue():
        A("s_add_u32 m0, s40, s38")
        A("s_add_u32 s41, s40, s39")
        for m in range(4):
            if m == 2:
                A("s_add_u32 m0, m0, 2048")
                A("s_nop 0")
            A("buffer_load_dwordx4 v%d, s[4:7], s36 offen offset:%d lds" % (10 + m, (m & 1) * 1024))
        A("s_mov_b32 m0, s41")
        A("s_add_u32 s36, s36, 128")
        for m in range(3):
            A("buffer_load_dwordx4 v%d, s[8:11], s37 offen offset:%d lds" % (14 + m, m * 1024))
        A("s_add_u32 s37, s37, 128")
        if cfg.rot1:
            A("s_add_u32 s50, s50, 1")
            A("s_cmp_eq_u32 s50, 9")
            A("s_cselect_b32 s51, 1152, 0")
            A("s_sub_u32 s36, s36, s51")
            A("s_sub_u32 s37, s37, s51")
        A(slot_advance(40, SLOT, NS))
    def tailpf():
        if not cfg.g1pf: return 0
        srd(A, 16, 44, SZ_W)
        A("s_mul_i32 s46, s22, 12")
        A("s_add_u32 s46, s46, s23")
        A("s_lshl_b32 s46, s46, 2")
        A("s_add_u32 s46, s46, s34")
        A("s_add_u32 s46, s46, %d" % ((cfg.ln1 + cfg.ln2) * 512))
        A("s_lshl_b32 s46, s46, 13")
        A("v_lshlrev_b32 v20, 7, v2")
        A("buffer_load_dword v21, v20, s[16:19], s46 offen")
        return 1
    loader_loop(A, "k1", issue, 7, NS - 2, KT, 42, after_last_issue=tailpf)
    stamp_end(A, cfg, 0, 26, 20, 2)
    A("s_endpgm")
    A.label("k1_help")
    LDS_SUM = NS * SLOT
    SA = 24; SD = 32
    A("s_sub_u32 s34, s20, 8")
    A("s_lshr_b32 s35, s34, 1")
    A("v_lshrrev_b32 v3, 3, v2")
    A("s_lshl_b32 s38, s34, 12")
    A("s_mul_i32 s39, s34, 3072")
    A("s_add_u32 s39, s39, 16384")
    A("v_lshlrev_b32 v20, 4, v2")
    A("v_add_u32 v21, s39, v20")
    A("v_add_u32 v20, s38, v20")
    for m in range(7): A("v_mov_b32 v%d, 0" % (SA + m))
    A("s_mov_b32 s52, 0x3f803f80")
    A("s_mov_b32 s40, 0")
    A("s_mov_b32 s42, %d" % KT)
    A.label("k1_hloop")
    A("v_add_u32 v22, s40, v20")
    A("v_add_u32 v23, s40, v21")
    A("s_barrier")
    for m in range(7):
        A("ds_read_b128 %s, v%d offset:%d" % (v(SD + 4 * m, 4), 22 if m < 4 else 23, (m if m < 4 else m - 4) * 1024))
    A(slot_advance(40, SLOT, NS))
    for q in range(4):
        for m in range(7):
            if q == 0: A("s_waitcnt lgkmcnt(%d)" % (6 - m))
            A("v_dot2_f32_bf16 v%d, v%d, s52, v%d" % (SA + m, SD + 4 * m + q, SA + m))
    A("s_sub_u32 s42, s42, 1")
    A("s_cmp_lg_u32 s42, 0")
    A("s_cbranch_scc1 k1_hloop")
    A("s_nop 2")
    for dpp in ("quad_perm:[1,0,3,2]", "quad_perm:[2,3,0,1]", "row_half_mirror"):
        for m in range(7):
            A("v_add_f32_dpp v%d, v%d, v%d %s row_mask:0xf bank_mask:0xf" % (SA + m, SA + m, SA + m, dpp))
    A("s_lshl_b32 s53, s34, 7")
    A("s_add_u32 s53, s53, %d" % LDS_SUM)
    A("v_lshl_add_u32 v22, v3, 2, s53")
    A("s_and_b32 s53, s34, 1")
    A("s_mul_i32 s53, s53, 192")
    A("s_lshl_b32 s54, s35, 2")
    A("s_add_u32 s53, s53, s54")
    A("s_add_u32 s53, s53, %d" % (LDS_SUM + 512))
    A("v_lshl_add_u32 v23, v3, 3, s53")
    for m in range(4): A("ds_write_b32 v22, v%d offset:%d" % (SA + m, m * 32))
    for m in range(3): A("ds_write_b32 v23, v%d offset:%d" % (SA + 4 + m, m * 64))
    A("s_waitcnt lgkmcnt(0)")
    A("s_barrier")
    A("s_endpgm")
    A.label("k1_cons")
    A("s_and_b32 s34, s20, 1")
    A("s_lshr_b32 s35, s20, 1")
    A("v_and_b32 v3, 15, v2")
    A("v_lshrrev_b32 v4, 4, v2")
    A("v_and_b32 v5, 7, v3")
    A("v_xor_b32 v5, v5, v4")
    A("v_lshlrev_b32 v5, 4, v5")
    A("v_lshl_add_u32 v5, v3, 7, v5")
    A("v_and_b32 v6, 1, v3")
    A("v_lshrrev_b32 v7, 1, v3")
    A("v_and_b32 v8, 6, v7")
    A("v_or_b32 v8, v8, v6")
    A("v_xor_b32 v8, v8, v4")
    A("v_lshlrev_b32 v8, 4, v8")
    A("v_mul_u32_u24 v6, 48, v6")
    A("v_add_u32 v6, v6, v7")
    A("v_lshl_add_u32 v8, v6, 7, v8")
    A("s_lshl_b32 s36, s34, 13")
    A("s_mul_i32 s37, s35, 3072")
    A("s_add_u32 s37, s37, 16384")
    BB = 10; CB = 14
    A("v_add_u32 v10, s36, v5")
    A("v_xor_b32 v11, 64, v10")
    A("v_add_u32 v12, s37, v8")
    A("v_xor_b32 v13, 64, v12")
    for i in range(4):
        A("v_mov_b32 v%d, v%d" % (CB + i, BB + i))
    ACC = 32; SETS = [80, 108]; RSUM = 136; CSUM = 152; ONES = 20
    for i in range(48):
        A("v_mov_b32 v%d, 0" % (ACC + i))
    A("s_lshl_b32 s50, s34, 8")
    A("s_add_u32 s50, s50, %d" % LDS_SUM)
    A("v_lshl_add_u32 v20, v3, 2, s50")
    A("s_mul_i32 s50, s35, 192")
    A("s_add_u32 s50, s50, %d" % (LDS_SUM + 512))
    A("v_lshl_add_u32 v21, v4, 4, s50")
    A("s_mov_b32 s40, 0")
    def reads(st, ks):
        b = SETS[st]
        P = lambda aa: "ds_read_b128 %s, v%d offset:%d" % (v(b + 4 * aa, 4), CB + ks, aa * 2048)
        Q = lambda xb: "ds_read_b128 %s, v%d offset:%d" % (v(b + 16 + 4 * xb, 4), CB + 2 + ks, xb * 1024)
        return [P(0), Q(0), Q(1), Q(2), P(1), P(2), P(3)]
    def mfmas(st):
        b = SETS[st]; m = []
        for aa in range(4):
            for xb in range(3):
                d = v(ACC + (aa * 3 + xb) * 4, 4)
                need = max(1 + xb, 3 + aa if aa else 0)
                m.append(("%s %s, %s, %s, %s" % (MFMA, d, v(b + 16 + 4 * xb, 4), v(b + 4 * aa, 4), d), need))
        return m
    def addr_update():
        sa = slot_advance(40, SLOT, NS).split("\n")
        return [(4, sa[0]), (5, sa[1]), (6, sa[2])] + [(7 + i, "v_add_u32 v%d, s40, v%d" % (CB + i, BB + i)) for i in range(4)]
    A("v_lshlrev_b32 v18, 4, v4")
    A("v_lshl_add_u32 v18, v3, 6, v18")
    A("s_mul_i32 s36, s23, 6")
    A("s_mul_i32 s37, s35, 3")
    A("s_add_u32 s36, s36, s37")
    A("s_lshl_b32 s36, s36, 16")
    A("s_lshl_b32 s37, s22, 1")
    A("s_add_u32 s37, s37, s34")
    A("s_lshl_b32 s37, s37, 11")
    A("s_add_u32 s46, s36, s37")
    A("s_add_u32 s47, s46, 65536")
    A("s_add_u32 s48, s46, 131072")
    A("s_mov_b32 s50, 0x%x" % f2u(1.0 / 576))
    A("s_waitcnt lgkmcnt(0)")
    srd(A, 12, 26, SZ_G, WS_G)
    if cfg.touch1:
        A("s_mul_i32 s52, s22, 12")
        A("s_add_u32 s52, s52, s23")
        A("s_lshl_b32 s52, s52, 2")
        A("s_add_u32 s52, s52, s20")
        A("s_mul_i32 s53, s52, 38401")
        A("s_lshr_b32 s53, s53, 16")
        A("s_mov_b32 s56, s24\ns_mov_b32 s57, s25\ns_mov_b32 s58, 2359296\ns_mov_b32 s54, s53")
        for (lo, base) in ((288, 28), (369, 30)):
            A("s_sub_u32 s55, s53, %d" % lo)
            A("s_cmp_ge_u32 s53, %d" % lo)
            A("s_cselect_b32 s54, s55, s54")
            A("s_cselect_b32 s56, s%d, s56" % base)
            A("s_cselect_b32 s57, s%d, s57" % (base + 1))
            A("s_cselect_b32 s58, %d, s58" % SZ_C)
        A("s_mov_b32 s59, 0x00020000")
        A("s_lshl_b32 s54, s54, 13")
        A("v_lshlrev_b32 v24, 7, v2")
        A("buffer_load_dword v25, v24, s[56:59], s54 offen")
    consumer_loop(A, "k1", reads, mfmas, addr_update, KT, 42, cfg=cfg)
    A("s_barrier")
    for aa in range(4):
        A("ds_read_b32 v%d, v20 offset:%d" % (RSUM + aa, aa * 64))
    for xb in range(3):
        A("ds_read_b128 %s, v21 offset:%d" % (v(CSUM + 4 * xb, 4), xb * 64))
    A("s_waitcnt lgkmcnt(0)")
    MN = 80
    for aa in range(4):
        A("v_mul_f32 v%d, s50, v%d" % (MN + 2 * aa, RSUM + aa))
    for aa in range(4):
        round_bf16(A, MN + 2 * aa, MN + 2 * aa)
    for ap in range(2):
        for xb in range(3):
            O = 96 + 4 * ((ap * 3 + xb) % 3)
            for h in range(2):
                aa = 2 * ap + h; d = ACC + (aa * 3 + xb) * 4
                for q in range(2):
                    A("v_pk_fma_f32 %s, %s, %s, %s op_sel_hi:[0,1,1] neg_lo:[1,0,0] neg_hi:[1,0,0]" % (v(d + 2 * q, 2), v(MN + 2 * aa, 2), v(CSUM + 4 * xb + 2 * q, 2), v(d + 2 * q, 2)))
            for h in range(2):
                aa = 2 * ap + h; d = ACC + (aa * 3 + xb) * 4
                for q in range(2):
                    A("v_cvt_pk_bf16_f32 v%d, v%d, v%d" % (O + 2 * h + q, d + 2 * q, d + 2 * q + 1))
            A("buffer_store_dwordx4 %s, v18, s[12:15], s%d offen offset:%d %s" % (v(O, 4), 46 + xb, ap * 1024, cfg.st1))
    stamp_end(A, cfg, 0, 26, 20, 2)
    A("s_endpgm")
    A.label("k1_ln")
    A("s_sub_u32 s21, s21, 24")
    A("s_lshl_b32 s21, s21, 3")
    A("s_add_u32 s21, s21, s3")
    A("s_cmp_ge_u32 s20, 8")
    A("s_cbranch_scc1 k1_end")
    A("v_lshrrev_b32 v3, 4, v0")
    A("v_and_b32 v4, 15, v0")
    A("s_movk_i32 s35, 1152")
    A("v_mul_lo_u32 v5, v3, s35")
    A("v_lshl_add_u32 v5, v4, 3, v5")
    A("s_mul_i32 s36, s21, %d" % (32 * 1152))
    A("s_movk_i32 s54, %d\ns_movk_i32 s55, 0" % K_B1)
    for (kb, off, sz) in ((0, K_B1, 9216), (1, K_B2, 4096), (2, K_DSKIP, 1152), (3, K_LRE, 1152), (4, K_LIM, 1152), (5, K_LOGDT, 1152)):
        A("s_cmp_eq_u32 s21, %d" % kb)
        A("s_cselect_b32 s54, %d, s54" % off)
        A("s_cselect_b32 s55, %d, s55" % sz)
    A("s_waitcnt lgkmcnt(0)")
    srd(A, 4, 24, 2359296)
    RAW = 16; X = 40
    for j in range(9):
        A("buffer_load_dwordx2 %s, v5, s[4:7], s36 offen offset:%d" % (v(RAW + 2 * j, 2), j * 128))
    srd(A, 8, 26, SZ_HF, WS_HF)
    srd(A, 12, 26, SZ_ST, WS_ST)
    srd(A, 16, 44, SZ_W)
    A("v_lshlrev_b32 v120, 7, v0")
    A("s_lshl_b32 s46, s21, 16")
    def lnpf(n):
        for _ in range(n):
            A("buffer_load_dword v121, v120, s[16:19], s46 offen")
            A("s_add_u32 s46, s46, 0x400000")
    A("s_load_dwordx2 s[52:53], s[0:1], s54")
    lnpf(cfg.ln1)
    RS = 1184
    A("s_movk_i32 s35, %d" % RS)
    A("v_mul_lo_u32 v6, v3, s35")
    A("v_lshl_add_u32 v6, v4, 3, v6")
    A("v_lshrrev_b32 v7, 2, v2")
    A("v_mul_lo_u32 v7, v7, s35")
    A("v_and_b32 v8, 3, v2")
    A("v_lshl_add_u32 v7, v8, 3, v7")
    A("s_lshl_b32 s37, s20, 5")
    A("v_add_u32 v7, s37, v7")
    frag_lane_off(A, 116, 117, 2, 9)
    A("s_bitcmp1_b32 s21, 0")
    A("s_cbranch_scc0 k1_ks0")
    A("v_mov_b32 v116, v117")
    A.label("k1_ks0")
    A("s_mov_b32 s38, 0x%x" % f2u(1.0 / 576))
    A("s_mov_b32 s39, 0x%x" % f2u(1e-5))
    N = 36
    def unpack(src):
        for j in range(18):
            A("v_lshlrev_b32 v%d, 16, v%d" % (X + 2 * j, src + j))
            A("v_and_b32 v%d, 0xffff0000, v%d" % (X + 2 * j + 1, src + j))
    S0, S2, M, MB, RSV, TT = 10, 12, 14, 36, 38, 80
    def pk(op, d, a, b, mods=""):
        A("v_pk_%s_f32 %s, %s, %s %s" % (op, v(d, 2), v(a, 2), v(b, 2), mods))
    def layernorm():
        pk("add", S0, X, X + 2)
        pk("add", S2, X + 4, X + 6)
        for j in range(8, N, 4):
            pk("add", S0, S0, X + j)
            pk("add", S2, S2, X + j + 2)
        pk("add", S0, S0, S2)
        A("v_add_f32 v%d, v%d, v%d" % (S0, S0, S0 + 1))
        row16_sum(A, S0)
        A("v_mul_f32 v%d, s38, v%d" % (M, S0))
        round_bf16(A, MB, M)
        for j in range(0, N, 2):
            pk("add", TT + j, X + j, M, "op_sel_hi:[1,0] neg_lo:[0,1] neg_hi:[0,1]")
        pk("mul", S0, TT, TT)
        pk("mul", S2, TT + 2, TT + 2)
        for j in range(4, N, 4):
            A("v_pk_fma_f32 %s, %s, %s, %s" % (v(S0, 2), v(TT + j, 2), v(TT + j, 2), v(S0, 2)))
            A("v_pk_fma_f32 %s, %s, %s, %s" % (v(S2, 2), v(TT + j + 2, 2), v(TT + j + 2, 2), v(S2, 2)))
        pk("add", S0, S0, S2)
        A("v_add_f32 v%d, v%d, v%d" % (S0, S0, S0 + 1))
        for j in range(0, N, 2):
            pk("add", X + j, X + j, MB, "op_sel_hi:[1,0] neg_lo:[0,1] neg_hi:[0,1]")
        row16_sum(A, S0)
        A("v_mul_f32 v%d, s38, v%d" % (S0, S0))
        round_bf16(A, S0, S0)
        A("v_add_f32 v%d, s39, v%d" % (S0, S0))
        round_bf16(A, S0, S0)
        A("v_sqrt_f32 v%d, v%d" % (S0, S0))
        for j in range(18):
            A("v_cvt_pk_bf16_f32 v%d, v%d, v%d" % (RAW + j, X + 2 * j, X + 2 * j + 1))
        round_bf16(A, S0, S0)
        A("v_rcp_f32 v%d, v%d" % (RSV, S0))
        unpack(RAW)
        for j in range(0, N, 2):
            pk("mul", X + j, X + j, RSV, "op_sel_hi:[1,0]")
        for j in range(18):
            A("v_cvt_pk_bf16_f32 v%d, v%d, v%d" % (RAW + j, X + 2 * j, X + 2 * j + 1))
    A("s_waitcnt vmcnt(%d)" % cfg.ln1)
    stamp_mid(A, cfg, 0)
    unpack(RAW)
    layernorm()
    stamp_mid(A, cfg, 2)
    A("v_mov_b32 v118, v%d" % MB)
    A("v_mov_b32 v119, v%d" % RSV)
    A("v_lshlrev_b32 v9, 3, v3")
    A("s_lshl_b32 s40, s21, 8")
    A("v_cmp_eq_u32 vcc, 0, v4")
    A("s_and_saveexec_b64 s[42:43], vcc")
    A("buffer_store_dwordx2 v[118:119], v9, s[12:15], s40 offen")
    A("s_mov_b64 exec, s[42:43]")
    A("s_waitcnt lgkmcnt(0)")
    A("s_mov_b32 s56, s52\ns_mov_b32 s57, s53\ns_mov_b32 s58, s55\ns_mov_b32 s59, 0x00020000")
    A("buffer_load_dword v121, v120, s[56:59], 0 offen")
    srd(A, 48, 26, SZ_FL, WS_FL)
    for i in range(4): A("v_mov_b32 v%d, 0" % (124 + i))
    A("v_lshlrev_b32 v122, 4, v0")
    A("s_lshl_b32 s40, s21, 9")
    A("v_cmp_gt_u32 vcc, 32, v0")
    A("s_and_saveexec_b64 s[42:43], vcc")
    A("s_cbranch_execz k1_nof")
    A("buffer_store_dwordx4 v[124:127], v122, s[48:51], s40 offen")
    A.label("k1_nof")
    A("s_mov_b64 exec, s[42:43]")
    unpack(RAW)
    layernorm()
    stamp_mid(A, cfg, 3)
    for j in range(9):
        A("ds_write_b64 v6, %s offset:%d" % (v(RAW + 2 * j, 2), j * 128))
    A("s_waitcnt lgkmcnt(0)")
    A("s_barrier")
    A("s_lshr_b32 s36, s21, 1")
    A("s_mul_i32 s36, s36, 36")
    A("s_add_u32 s36, s36, s20")
    A("s_mul_i32 s36, s36, %d" % PAIR)
    for n in range(5):
        A("ds_read_b64_tr_b16 %s, v7 offset:%d" % (v(X + 4 * n, 2), n * 256))
        A("ds_read_b64_tr_b16 %s, v7 offset:%d" % (v(X + 4 * n + 2, 2), n * 256 + 16 * RS))
    for n in range(5):
        if n == 4:
            A("s_cmp_ge_u32 s20, 4")
            A("s_cbranch_scc1 k1_ln_done")
        A("s_waitcnt lgkmcnt(%d)" % (8 - 2 * n))
        A("buffer_store_dwordx4 %s, v116, s[8:11], s36 offen %s" % (v(X + 4 * n, 4), cfg.st1))
        A("s_add_u32 s36, s36, %d" % (8 * PAIR))
    A.label("k1_ln_done")
    stamp_mid(A, cfg, 1)
    lnpf(cfg.ln2)
    stamp_end(A, cfg, 0, 26, 20, 2)
    A.label("k1_end")
    A("s_endpgm")
    return NS * SLOT + 1024

def gen_k2(A, cfg):
    NS = 5; SLOT = 28672; KT = 32
    w1_done = min(2304, (cfg.ln1 + cfg.ln2) * 512 + (768 if cfg.g1pf else 0))
    kernel_head(A, "k2_kernel")
    stamp_begin(A, cfg)
    A("s_cmp_ge_u32 s2, 256")
    A("s_cbranch_scc1 k2_end")
    A("s_load_dwordx4 s[24:27], s[0:1], %d" % K_W1)
    A("s_load_dwordx2 s[64:65], s[0:1], %d" % K_W2)
    A("s_load_dwordx4 s[60:63], s[0:1], %d" % K_CRE)
    A("s_load_dwordx2 s[28:29], s[0:1], %d" % K_WS)
    A("v_lshrrev_b32 v1, 6, v0")
    A("v_and_b32 v2, 63, v0")
    A("v_readfirstlane_b32 s20, v1")
    A("s_and_b32 s3, s2, 7")
    A("s_lshr_b32 s21, s2, 3")
    A("s_cmp_ge_u32 s21, 27")
    A("s_cbranch_scc1 k2_scan")
    A("s_mul_i32 s3, s3, 27")
    A("s_add_u32 s3, s3, s21")
    A("s_mul_i32 s21, s3, 43691")
    A("s_lshr_b32 s21, s21, 18")
    A("s_mul_i32 s22, s21, 6")
    A("s_sub_u32 s22, s3, s22")
    A("s_cmp_lt_u32 s20, 4")
    A("s_cbranch_scc1 k2_cons")
    A("s_sub_u32 s23, s20, 4")
    A("v_lshrrev_b32 v3, 4, v2")
    A("v_and_b32 v4, 15, v2")
    A("s_movk_i32 s30, 9216")
    A("v_mul_lo_u32 v5, v3, s30")
    A("v_lshlrev_b32 v6, 1, v3")
    A("v_xor_b32 v7, v4, v6")
    A("v_xor_b32 v8, 8, v7")
    A("v_lshl_add_u32 v10, v7, 4, v5")
    A("v_lshl_add_u32 v11, v8, 4, v5")
    D = 4 * 9216 - 1024
    A("v_add_u32 v12, 0x%x, v10" % (2 * D))
    A("v_add_u32 v13, 0x%x, v11" % (3 * D))
    A("v_add_u32 v11, 0x%x, v11" % (1 * D))
    frag_lane_off(A, 17, 18, 2, 19)
    A("v_mov_b32 v14, v17")
    A("v_add_u32 v15, %d, v18" % ((-1024) & 0xffffffff))
    A("v_add_u32 v16, %d, v17" % (PAIR - 2048))
    A("s_bitcmp1_b32 s23, 0")
    A("s_cbranch_scc0 k2_qe")
    A("v_mov_b32 v14, v18")
    A("v_add_u32 v15, %d, v17" % (PAIR - 1024))
    A("v_add_u32 v16, %d, v18" % (PAIR - 2048))
    A.label("k2_qe")
    A("s_mul_i32 s31, s23, %d" % (16 * 9216))
    A("s_lshl_b32 s32, s21, 8")
    A("s_add_u32 s31, s31, s32")
    A("s_mul_i32 s32, s22, 6")
    A("s_mul_i32 s33, s23, 3")
    A("s_lshr_b32 s33, s33, 1")
    A("s_add_u32 s32, s32, s33")
    A("s_mul_i32 s32, s32, %d" % PAIR)
    A("s_lshl_b32 s33, s23, 12")
    A("s_mul_i32 s34, s23, 3072")
    A("s_add_u32 s34, s34, 16384")
    A("s_mov_b32 s35, 0")
    A("s_waitcnt lgkmcnt(0)")
    srd(A, 4, 24, SZ_W)
    srd(A, 8, 28, SZ_HF, WS_HF)
    R = cfg.rot2
    def rot_next():
        A("s_add_u32 s42, s40, s41")
        A("s_and_b32 s42, s42, %d" % (R - 1))
        if cfg.adv2:
            A("s_cselect_b32 s42, 0, %d" % cfg.adv2)
            A("s_add_u32 s42, s42, s40")
            A("s_and_b32 s42, s42, 31")
        else:
            A("s_andn2_b32 s43, s40, %d" % (R - 1))
            A("s_or_b32 s42, s42, s43")
        A("s_and_b32 s43, s42, %d" % cfg.wrapw)
        A("s_mul_i32 s31, s43, %d" % (64 * 9216))
        A("s_add_u32 s31, s31, s38")
        A("s_and_b32 s43, s42, %d" % cfg.wrapx)
        A("s_mul_i32 s32, s43, %d" % (36 * PAIR))
        A("s_add_u32 s32, s32, s39")
        A("s_add_u32 s40, s40, 1")
    if R > 1:
        A("s_mov_b32 s38, s31\ns_mov_b32 s39, s32\ns_mov_b32 s40, 0")
        A("s_mul_i32 s41, s22, %d" % cfg.ra)
        A("s_mul_i32 s42, s21, %d" % cfg.rb)
        A("s_add_u32 s41, s41, s42")
        rot_next()
    def issue():
        A("s_add_u32 m0, s35, s33")
        A("s_add_u32 s36, s35, s34")
        for m in range(4):
            A("buffer_load_dwordx4 v%d, s[4:7], s31 offen offset:%d lds" % (10 + m, m * 1024))
        A("s_mov_b32 m0, s36")
        A("s_add_u32 s31, s31, %d" % (64 * 9216))
        for m in range(3):
            A("buffer_load_dwordx4 v%d, s[8:11], s32 offen offset:%d lds" % (14 + m, m * 1024))
        A("s_add_u32 s32, s32, %d" % (36 * PAIR))
        if R > 1: rot_next()
        A(slot_advance(35, SLOT, NS))
    pos_b2 = w1_done
    pos_sc = pos_b2 + 648 * len(cfg.b2)
    if cfg.skipw1: pos_sc = max(pos_sc, L_C)
    pos_tail = pos_sc + (cfg.sce + cfg.scl + sum(cfg.scm)) * 320
    cfg.pos_b3 = pos_tail + (864 if cfg.g2pf else 0)
    def tailpf():
        if not cfg.g2pf: return 0
        A("s_lshl_b32 s46, s3, 2")
        A("s_add_u32 s46, s46, s23")
        A("s_add_u32 s46, s46, %d" % pos_tail)
        pf_decode(A, 46, 16, 47, 48, 24, 60, 62, 64, lo=pos_tail)
        A("v_lshlrev_b32 v20, 7, v2")
        A("buffer_load_dword v21, v20, s[16:19], s47 offen")
        return 1
    loader_loop(A, "k2", issue, 7, cfg.d2, KT, 37, after_last_issue=tailpf)
    stamp_end(A, cfg, 1, 28, 20, 2)
    A("s_endpgm")
    A.label("k2_cons")
    A("s_and_b32 s23, s20, 1")
    A("s_lshr_b32 s30, s20, 1")
    A("v_lshrrev_b32 v3, 4, v2")
    A("v_lshlrev_b32 v4, 3, v3")
    A("s_lshl_b32 s31, s21, 8")
    A("s_lshl_b32 s32, s23, 7")
    A("s_add_u32 s31, s31, s32")
    A("v_lshrrev_b32 v5, 2, v2")
    A("v_and_b32 v6, 7, v5")
    A("v_and_b32 v7, 3, v2")
    A("v_lshlrev_b32 v7, 3, v7")
    A("v_lshl_add_u32 v7, v5, 8, v7")
    A("s_lshl_b32 s32, s23, 2")
    BW = 10; CW = 15; BIAS = 20
    for aa in range(4):
        A("s_add_u32 s33, s32, %d" % aa)
        A("v_xor_b32 v8, s33, v6")
        A("v_lshl_add_u32 v%d, v8, 5, v7" % (BW + aa))
    A("s_mul_i32 s33, s30, 6144")
    A("s_add_u32 s33, s33, 16384")
    A("v_lshlrev_b32 v8, 4, v2")
    A("v_add_u32 v%d, s33, v8" % (BW + 4))
    for i in range(5):
        A("v_mov_b32 v%d, v%d" % (CW + i, BW + i))
    ACC = 32; SETS = [80, 108]
    A("s_mov_b32 s35, 0")
    A("s_waitcnt lgkmcnt(0)")
    srd(A, 12, 28, SZ_UF, WS_UF)
    srd(A, 16, 26, 9216)
    for aa in range(4):
        A("buffer_load_dwordx2 %s, v4, s[16:19], s31 offen offset:%d" % (v(BIAS + 2 * aa, 2), aa * 32))
    A("s_lshl_b32 s31, s21, 1")
    A("s_add_u32 s31, s31, s23")
    A("s_mul_i32 s31, s31, 36")
    A("s_mul_i32 s32, s22, 6")
    A("s_add_u32 s31, s31, s32")
    A("s_mul_i32 s32, s30, 3")
    A("s_add_u32 s31, s31, s32")
    A("s_mul_i32 s31, s31, %d" % PAIR)
    A("s_add_u32 s32, s31, %d" % PAIR)
    A("s_add_u32 s33, s32, %d" % PAIR)
    frag_lane_off(A, 8, 9, 2, 3)
    c1 = -2.0 * math.sqrt(2.0 / math.pi) * math.log2(math.e)
    c2 = c1 * 0.044715
    A("v_mov_b32 v28, 0x%x" % f2u(c1))
    A("v_mov_b32 v29, 0x%x" % f2u(c2))
    for i in range(48):
        A("v_mov_b32 v%d, 0" % (ACC + i))
    def reads(st, ks):
        b = SETS[st]
        P = lambda aa: ["ds_read_b64_tr_b16 %s, v%d offset:%d" % (v(b + 4 * aa, 2), CW + aa, ks * 8192),
                        "ds_read_b64_tr_b16 %s, v%d offset:%d" % (v(b + 4 * aa + 2, 2), CW + aa, ks * 8192 + 4096)]
        Q = lambda xb: ["ds_read_b128 %s, v%d offset:%d" % (v(b + 16 + 4 * xb, 4), CW + 4, xb * 2048 + ks * 1024)]
        return P(0) + Q(0) + Q(1) + Q(2) + P(1) + P(2) + P(3)
    def mfmas(st):
        b = SETS[st]; m = []
        for aa in range(4):
            for xb in range(3):
                d = v(ACC + (aa * 3 + xb) * 4, 4)
                need = max(2 + xb, 4 + 2 * aa if aa else 0)
                m.append(("%s %s, %s, %s, %s" % (MFMA, d, v(b + 4 * aa, 4), v(b + 16 + 4 * xb, 4), d), need))
        return m
    def addr_update():
        U = lambda i: "v_add_u32 v%d, s35, v%d" % (CW + i, BW + i)
        sa = slot_advance(35, SLOT, NS).split("\n")
        return [(0, sa[0]), (1, sa[1]), (2, sa[2]), (4, U(0)), (5, U(4)), (7, U(1)), (9, U(2)), (11, U(3))]
    extraB = []
    if cfg.b2:
        A("s_add_u32 s38, s21, 2")
        A("s_lshr_b32 s38, s38, 2")
        A("s_sub_u32 s38, s21, s38")
        A("s_mul_i32 s39, s22, 27")
        A("s_add_u32 s38, s38, s39")
        A("s_and_b32 s39, s21, 3")
        A("v_lshlrev_b32 v30, 7, v2")
        for bi, (first, rate) in enumerate(cfg.b2):
            d = 44 + 8 * bi
            A("s_lshl_b32 s40, s38, 2")
            A("s_add_u32 s40, s40, s20")
            A("s_add_u32 s40, s40, %d" % (pos_b2 + 648 * bi))
            pf_decode(A, 40, d, d + 4, 41, 24, 60, 62, 64, lo=pos_b2 + 648 * bi)
            A("s_mul_i32 s%d, s38, %d" % (d + 5, (65536 + rate - 1) // rate))
            A("s_lshr_b32 s%d, s%d, 16" % (d + 5, d + 5))
            A("s_sub_u32 s%d, %d, s%d" % (d + 5, KT - 1 - first, d + 5))
            A("s_cmp_eq_u32 s39, 1")
            A("s_cselect_b32 s%d, 1000, s%d" % (d + 5, d + 5))
            extraB.append((3 + 2 * bi, "s_cmp_lg_u32 s37, s%d\ns_cbranch_scc1 k2_nb%d\nbuffer_load_dword v31, v30, s[%d:%d], s%d offen\nk2_nb%d:" % (d + 5, bi, d, d + 3, d + 4, bi)))
    consumer_loop(A, "k2", reads, mfmas, addr_update, KT, 37, cfg=cfg, extraB=extraB, early=(cfg.d2 == 4), pts=cfg.pts2)
    A("s_waitcnt vmcnt(0)")
    BF = 104
    for k in range(8):
        A("v_lshlrev_b32 v%d, 16, v%d" % (BF + 2 * k, BIAS + k))
        A("v_and_b32 v%d, 0xffff0000, v%d" % (BF + 2 * k + 1, BIAS + k))
    T = 80
    for ap in range(2):
        for xb in range(3):
            prs = [ACC + ((ap * 2 + h) * 3 + xb) * 4 + 2 * q for h in range(2) for q in range(2)]
            for i, x in enumerate(prs): A("v_pk_add_f32 %s, %s, %s" % (v(x, 2), v(x, 2), v(BF + ap * 8 + 2 * i, 2)))
            for i, x in enumerate(prs): A("v_pk_mul_f32 %s, %s, %s" % (v(T + 2 * i, 2), v(x, 2), v(x, 2)))
            for i, x in enumerate(prs): A("v_pk_fma_f32 %s, %s, v[28:29], v[28:29] op_sel:[0,1,0] op_sel_hi:[1,1,0]" % (v(T + 2 * i, 2), v(T + 2 * i, 2)))
            for i, x in enumerate(prs): A("v_pk_mul_f32 %s, %s, %s" % (v(T + 2 * i, 2), v(T + 2 * i, 2), v(x, 2)))
            for i in range(8): A("v_exp_f32 v%d, v%d" % (T + i, T + i))
            for i, x in enumerate(prs): A("v_pk_add_f32 %s, %s, 1.0 op_sel_hi:[1,0]" % (v(T + 2 * i, 2), v(T + 2 * i, 2)))
            for i in range(8): A("v_rcp_f32 v%d, v%d" % (T + i, T + i))
            for i, x in enumerate(prs): A("v_pk_mul_f32 %s, %s, %s" % (v(T + 2 * i, 2), v(T + 2 * i, 2), v(x, 2)))
            O = 96 + 4 * ((ap * 3 + xb) % 2)
            for i in range(4):
                A("v_cvt_pk_bf16_f32 v%d, v%d, v%d" % (O + i, T + 2 * i, T + 2 * i + 1))
            A("buffer_store_dwordx4 %s, v%d, s[12:15], s%d offen %s" % (v(O, 4), 8 + ap, 31 + xb, cfg.st2))
    stamp_end(A, cfg, 1, 28, 20, 2)
    A("s_endpgm")
    A.label("k2_scan")
    A("s_sub_u32 s21, s21, 27")
    A("s_lshl_b32 s21, s21, 3")
    A("s_add_u32 s21, s21, s3")
    A("s_load_dwordx4 s[40:43], s[0:1], %d" % K_LRE)
    A("s_load_dwordx2 s[52:53], s[0:1], %d" % K_LOGDT)
    A("v_lshlrev_b32 v56, 7, v2")
    A("s_lshl_b32 s66, s21, 3")
    A("s_add_u32 s66, s66, s20")
    A("s_add_u32 s66, s66, %d" % pos_sc)
    def scpf():
        pf_decode(A, 66, 68, 67, 54, 24, 60, 62, 64, lo=pos_sc)
        A("buffer_load_dword v57, v56, s[68:71], s67 offen")
        A("s_add_u32 s66, s66, 320")
    A("s_waitcnt lgkmcnt(0)")
    A("s_cmp_lt_u32 s21, 36")
    A("s_cbranch_scc1 k2_scan2")
    for _ in range(cfg.sce + cfg.scl + sum(cfg.scm)): scpf()
    stamp_end(A, cfg, 1, 28, 20, 2)
    A("s_endpgm")
    A.label("k2_scan2")
    A("v_and_b32 v3, 7, v0")
    A("v_lshrrev_b32 v4, 3, v0")
    A("v_lshlrev_b32 v5, 10, v4")
    A("v_and_b32 v6, 3, v3")
    A("v_lshl_add_u32 v5, v6, 4, v5")
    A("v_lshrrev_b32 v6, 2, v3")
    A("v_lshl_add_u32 v5, v6, 16, v5")
    A("s_lshl_b32 s22, s21, 17")
    srd(A, 4, 28, SZ_G, WS_G)
    srd(A, 8, 28, SZ_ST, WS_ST)
    srd(A, 12, 28, SZ_HT, WS_HT)
    srd(A, 56, 40, 1152)
    srd(A, 44, 42, 1152)
    srd(A, 72, 52, 1152)
    A("v_lshlrev_b32 v7, 5, v0")
    A("buffer_load_dwordx4 v[48:51], v7, s[8:11], 0 offen")
    A("buffer_load_dwordx4 v[52:55], v7, s[8:11], 0 offen offset:16")
    G0 = 64; RW = 192
    for j in range(16):
        A("buffer_load_dwordx4 %s, v5, s[4:7], s22 offen offset:%d" % (v(RW + 4 * j, 4), j * 64))
    A("v_lshlrev_b32 v9, 2, v3")
    A("s_lshl_b32 s32, s21, 5")
    A("buffer_load_dword v10, v9, s[56:59], s32 offen")
    A("buffer_load_dword v11, v9, s[44:47], s32 offen")
    A("buffer_load_dword v12, v9, s[72:75], s32 offen")
    for _ in range(cfg.sce): scpf()
    E = cfg.sce
    LDS_RS = 0; LDS_AGG = 9216; LDS_WAGG = LDS_AGG + 8192; LDS_OUT = 0
    A("v_mul_u32_u24 v16, 144, v4")
    A("v_lshl_add_u32 v17, v3, 4, v16")
    A("s_waitcnt vmcnt(%d)" % (19 + E))
    A("v_mov_b32 v48, v49")
    A("v_mov_b32 v49, v51")
    A("v_mov_b32 v50, v53")
    A("v_mov_b32 v51, v55")
    A("ds_write_b128 v17, v[48:51]")
    A("s_waitcnt lgkmcnt(0)")
    RSV = 18
    for k in range(8):
        A("ds_read_b128 %s, v16 offset:%d" % (v(RSV + 4 * k, 4), k * 16))
    A("s_waitcnt lgkmcnt(0)")
    for j in range(16):
        A("s_waitcnt vmcnt(%d)" % (15 - j + 3 + E))
        for e in range(2):
            g = G0 + 4 * (2 * j + e)
            for c in range(2):
                A("v_lshlrev_b32 v%d, 16, v%d" % (g + 2 * c, RW + 4 * j + 2 * e + c))
                A("v_and_b32 v%d, 0xffff0000, v%d" % (g + 2 * c + 1, RW + 4 * j + 2 * e + c))
        for e in range(2):
            g = G0 + 4 * (2 * j + e)
            for c in range(2):
                A("v_pk_mul_f32 %s, %s, %s %s" % (v(g + 2 * c, 2), v(g + 2 * c, 2), v(RSV + 2 * j, 2), "op_sel:[0,1]" if e else "op_sel_hi:[1,0]"))
    A("s_waitcnt vmcnt(%d)" % E)
    for _ in range(cfg.scm[0]): scpf()
    L = [18, 20]; L32 = [22, 24]; L256 = [26, 28]; C2 = [30, 32]
    A("s_mov_b32 s34, 0x%x" % f2u(math.log2(math.e)))
    A("s_mov_b32 s35, 0x%x" % f2u(1.0 / (2 * math.pi)))
    def sq(d, s_):
        A("v_mul_f32 v40, v%d, v%d" % (s_ + 1, s_ + 1))
        A("v_mul_f32 v41, v%d, v%d" % (s_, s_ + 1))
        A("v_fma_f32 v%d, v%d, v%d, -v40" % (d, s_, s_))
        A("v_add_f32 v%d, v41, v41" % (d + 1))
    for c in range(2):
        LRE, LIM, DT = 34, 35, 36
        for (d, s_) in ((LRE, 10), (LIM, 11), (DT, 12)):
            if c == 0: A("v_lshlrev_b32 v%d, 16, v%d" % (d, s_))
            else: A("v_and_b32 v%d, 0xffff0000, v%d" % (d, s_))
        A("v_mul_f32 v36, s34, v36")
        A("v_exp_f32 v36, v36")
        A("s_nop 0")
        round_bf16(A, DT, DT)
        A("v_mul_f32 v37, v36, v34")
        A("v_mul_f32 v38, v36, v35")
        A("v_mul_f32 v37, s34, v37")
        A("v_mul_f32 v38, s35, v38")
        A("v_exp_f32 v37, v37")
        A("v_fract_f32 v38, v38")
        A("v_cos_f32 v39, v38")
        A("v_sin_f32 v38, v38")
        A("s_nop 0")
        A("v_mul_f32 v%d, v37, v39" % L[c])
        A("v_mul_f32 v%d, v37, v38" % (L[c] + 1))
        sq(L32[c], L[c])
        for _ in range(4): sq(L32[c], L32[c])
        sq(L256[c], L32[c])
        for _ in range(2): sq(L256[c], L256[c])
        A("v_add_f32 v37, -1.0, v%d" % L[c])
        A("v_mul_f32 v38, v34, v34")
        A("v_fmac_f32 v38, v35, v35")
        A("v_rcp_f32 v38, v38")
        A("v_mul_f32 v39, v37, v34")
        A("v_fmac_f32 v39, v%d, v35" % (L[c] + 1))
        A("v_mul_f32 v40, v%d, v34" % (L[c] + 1))
        A("v_fma_f32 v40, -v37, v35, v40")
        A("v_add_f32 v38, v38, v38")
        A("v_mul_f32 v%d, v39, v38" % C2[c])
        A("v_mul_f32 v%d, v40, v38" % (C2[c] + 1))
    H = 40
    T = 44
    A("v_lshlrev_b32 v15, 4, v3")
    for i in range(4): A("v_mov_b32 v%d, v%d" % (H + i, G0 + i))
    def step(Lr, src):
        for c in range(2):
            A("v_pk_fma_f32 %s, %s, %s, %s op_sel_hi:[0,1,1]" % (v(T + 2 * c, 2), v(Lr[c], 2), v(H + 2 * c, 2), v(src + 2 * c, 2)))
        for c in range(2):
            A("v_pk_fma_f32 %s, %s, %s, %s op_sel:[1,1,0] op_sel_hi:[1,0,1] neg_lo:[1,0,0]" % (v(H + 2 * c, 2), v(Lr[c], 2), v(H + 2 * c, 2), v(T + 2 * c, 2)))
    for t in range(1, 32):
        step(L, G0 + 4 * t)
    stamp_mid(A, cfg, 0)
    for _ in range(cfg.scm[1]): scpf()
    A("v_lshlrev_b32 v17, 4, v0")
    A("ds_write_b128 v17, %s offset:%d" % (v(H, 4), LDS_AGG))
    A("s_lshl_b32 s36, s20, 10")
    A("v_add_u32 v17, s36, v15")
    A("s_waitcnt lgkmcnt(0)")
    AG = 192; WG_ = 224
    for j in range(8):
        A("ds_read_b128 %s, v17 offset:%d" % (v(AG + 4 * j, 4), LDS_AGG + j * 128))
    A("s_waitcnt lgkmcnt(7)")
    for i in range(4): A("v_mov_b32 v%d, v%d" % (H + i, AG + i))
    for j in range(1, 8):
        A("s_waitcnt lgkmcnt(%d)" % (7 - j))
        step(L32, AG + 4 * j)
    A("s_lshl_b32 s36, s20, 7")
    A("v_add_u32 v17, s36, v15")
    A("ds_write_b128 v17, %s offset:%d" % (v(H, 4), LDS_WAGG))
    A("s_waitcnt lgkmcnt(0)")
    A("s_barrier")
    for j in range(7):
        A("ds_read_b128 %s, v15 offset:%d" % (v(WG_ + 4 * j, 4), LDS_WAGG + j * 128))
    for i in range(4): A("v_mov_b32 v%d, 0" % (H + i))
    A("v_lshrrev_b32 v17, 3, v2")
    A("s_waitcnt lgkmcnt(0)")
    for j in range(7):
        A("s_cmp_le_u32 s20, %d" % j)
        A("s_cbranch_scc1 k2_wdone")
        step(L256, WG_ + 4 * j)
    A.label("k2_wdone")
    for j in range(7):
        A("v_cmpx_lt_u32 vcc, %d, v17" % j)
        step(L32, AG + 4 * j)
    A("s_mov_b64 exec, -1")
    A("s_barrier")
    stamp_mid(A, cfg, 2)
    for _ in range(cfg.scm[2]): scpf()
    A("s_mul_i32 s36, s20, %d" % (32 * 528))
    A("v_mul_u32_u24 v48, 528, v3")
    A("v_lshl_add_u32 v48, v17, 6, v48")
    A("v_add_u32 v48, s36, v48")
    A("v_lshrrev_b32 v49, 5, v2")
    A("v_and_b32 v50, 31, v2")
    A("v_lshlrev_b32 v50, 4, v50")
    A("v_mul_u32_u24 v51, 528, v49")
    A("v_add3_u32 v51, v51, v50, s36")
    A("v_lshl_add_u32 v50, v49, 13, v50")
    A("s_lshr_b32 s37, s21, 1")
    A("s_lshl_b32 s37, s37, 5")
    A("s_and_b32 s38, s21, 1")
    A("s_lshl_b32 s38, s38, 3")
    A("s_add_u32 s37, s37, s38")
    A("s_lshl_b32 s37, s37, 12")
    A("s_lshl_b32 s38, s20, 9")
    A("s_add_u32 s37, s37, s38")
    PK = 192
    for blk in range(4):
        for k in range(8):
            g = G0 + 4 * (blk * 8 + k)
            step(L, g)
            for c in range(2):
                A("v_pk_mul_f32 %s, %s, %s op_sel_hi:[0,1] neg_hi:[1,0]" % (v(g + 2 * c, 2), v(C2[c], 2), v(H + 2 * c, 2)))
            for c in range(2):
                A("v_pk_fma_f32 %s, %s, %s, %s op_sel:[1,1,0] op_sel_hi:[1,0,1] neg_lo:[1,0,0] neg_hi:[1,0,0]" % (v(g + 2 * c, 2), v(C2[c], 2), v(H + 2 * c, 2), v(g + 2 * c, 2)))
        pkb = PK + blk * 16
        for q in range(4):
            for k in range(4):
                g = G0 + 4 * (blk * 8 + 2 * k)
                A("v_cvt_pk_bf16_f32 v%d, v%d, v%d" % (pkb + 4 * q + k, g + q, g + 4 + q))
        for q in range(4):
            A("ds_write_b128 v48, %s offset:%d" % (v(pkb + 4 * q, 4), q * 8 * 528 + blk * 16))
    A("s_waitcnt lgkmcnt(0)")
    stamp_mid(A, cfg, 3)
    for n in range(16):
        A("ds_read_b128 %s, v51 offset:%d" % (v(G0 + 4 * n, 4), n * 2 * 528))
        if n == 7: A("s_waitcnt lgkmcnt(0)")
    for n in range(16):
        q = n >> 2; k = n & 3; c = q >> 1; part = q & 1
        row = 16 * (k & 1) + 4 * (k >> 1) + c + 576 * part
        if n >= 8: A("s_waitcnt lgkmcnt(%d)" % (15 - n))
        A("s_add_u32 s38, s37, %d" % (row * 4096))
        A("buffer_store_dwordx4 %s, v50, s[12:15], s38 offen %s" % (v(G0 + 4 * n, 4), cfg.st2s))
    stamp_mid(A, cfg, 1)
    for _ in range(cfg.scl): scpf()
    stamp_end(A, cfg, 1, 28, 20, 2)
    A.label("k2_end")
    A("s_endpgm")
    return NS * SLOT

def gen_k3(A, cfg):
    NS = 4; SLOT = 34816
    kernel_head(A, "k3_kernel")
    stamp_begin(A, cfg)
    A("s_cmp_ge_u32 s2, 256")
    A("s_cbranch_scc1 k3_end")
    A("s_load_dwordx8 s[24:31], s[0:1], %d" % K_W2)
    A("s_load_dwordx4 s[56:59], s[0:1], %d" % K_CRE)
    A("s_load_dwordx2 s[32:33], s[0:1], %d" % K_WS)
    A("s_load_dwordx2 s[60:61], s[0:1], %d" % K_X)
    A("s_load_dwordx2 s[62:63], s[0:1], %d" % K_DSKIP)
    A("v_lshrrev_b32 v1, 6, v0")
    A("v_and_b32 v2, 63, v0")
    A("v_readfirstlane_b32 s20, v1")
    A("s_and_b32 s3, s2, 7")
    A("s_lshr_b32 s21, s2, 3")
    A("s_lshr_b32 s22, s3, 1")
    A("s_and_b32 s3, s3, 1")
    A("s_lshl_b32 s3, s3, 3")
    A("s_lshr_b32 s23, s21, 2")
    A("s_add_u32 s23, s23, s3")
    A("s_and_b32 s21, s21, 3")
    A("s_cmp_ge_u32 s22, 2")
    A("s_cselect_b32 s35, 22, 23")
    KS = cfg.kstep
    if KS == 4:
        A("s_mov_b32 s34, s22")
    else:
        A("s_mul_i32 s34, s22, 23")
        A("s_cmp_eq_u32 s22, 3")
        A("s_cselect_b32 s34, 68, s34")
    A("s_cmp_lt_u32 s20, 4")
    A("s_cbranch_scc1 k3_cons")
    A("s_sub_u32 s36, s20, 4")
    A("v_lshrrev_b32 v3, 4, v2")
    A("v_and_b32 v4, 15, v2")
    A("v_lshlrev_b32 v5, 12, v3")
    A("v_lshlrev_b32 v6, 1, v3")
    A("v_xor_b32 v7, v4, v6")
    A("v_xor_b32 v8, 8, v7")
    A("v_lshl_add_u32 v10, v7, 4, v5")
    A("v_lshl_add_u32 v11, v8, 4, v5")
    D = 4 * 4096 - 1024
    A("v_add_u32 v12, 0x%x, v10" % (2 * D))
    A("v_add_u32 v13, 0x%x, v11" % (3 * D))
    A("v_add_u32 v11, 0x%x, v11" % (1 * D))
    frag_lane_off(A, 14, 19, 2, 3)
    A("v_add_u32 v15, %d, v19" % ((-1024) & 0xffffffff))
    A("v_add_u32 v16, %d, v14" % (PAIR - 2048))
    A("v_add_u32 v17, %d, v19" % ((PAIR - 3072) & 0xffffffff))
    A("v_mov_b32 v18, v14")
    A("s_cmp_eq_u32 s36, 1")
    A("s_cbranch_scc0 k3_x0")
    A("v_mov_b32 v18, v19")
    A.label("k3_x0")
    A("s_lshl_b32 s38, s34, 6")
    A("s_lshl_b32 s39, s36, 4")
    A("s_add_u32 s38, s38, s39")
    A("s_lshl_b32 s38, s38, 12")
    A("s_lshl_b32 s39, s23, 8")
    A("s_add_u32 s38, s38, s39")
    A("s_mul_i32 s40, s34, 36")
    A("s_mul_i32 s41, s21, 9")
    A("s_add_u32 s40, s40, s41")
    A("s_mul_i32 s40, s40, %d" % PAIR)
    A("s_add_u32 s42, s36, 16")
    A("s_lshl_b32 s41, s42, 10")
    A("s_add_u32 s45, s41, 16384")
    A("s_add_u32 s41, s40, %d" % (8 * PAIR))
    A("s_mul_i32 s43, s36, %d" % (2 * PAIR))
    A("s_add_u32 s40, s40, s43")
    A("s_lshl_b32 s43, s36, 12")
    A("s_add_u32 s44, s43, 16384")
    A("s_mov_b32 s46, 0")
    A("s_mov_b32 s47, %d" % (KS * 36 * PAIR))
    A("s_mov_b32 s48, s34")
    A("s_add_u32 s101, s21, s23")
    A("s_and_b32 s101, s101, 3")
    A("s_cmp_eq_u32 s22, 3")
    A("s_cselect_b32 s101, 7, s101")
    A("s_waitcnt lgkmcnt(0)")
    srd(A, 4, 24, SZ_W)
    srd(A, 8, 32, SZ_UF, WS_UF)
    first = [True]
    def cmode_setup():
        A("v_lshrrev_b32 v3, 3, v2")
        A("v_and_b32 v4, 7, v2")
        A("v_xor_b32 v4, v4, v3")
        A("s_movk_i32 s37, 1152")
        A("v_mul_lo_u32 v5, v3, s37")
        A("v_lshl_add_u32 v20, v4, 4, v5")
        DC = 8 * 1152 - 1024
        for m in range(1, 4):
            A("v_add_u32 v%d, 0x%x, v20" % (20 + m, m * DC))
        A("s_mul_i32 s49, s21, 144")
        A("s_lshl_b32 s50, s42, 3")
        A("s_add_u32 s50, s50, s49")
        A("s_mul_i32 s50, s50, 1152")
        A("s_lshl_b32 s51, s36, 5")
        A("s_add_u32 s49, s49, s51")
        A("s_mul_i32 s49, s49, 1152")
    def mk_issue(extra):
        cnt = [0]
        def issue():
            cnt[0] += 1
            if cnt[0] == cfg.d3 + 1:
                sw1 = A.newlabel("k3_sw"); sw2 = A.newlabel("k3_sw")
                A("s_sub_u32 s52, s48, 72")
                A("s_cmp_ge_u32 s52, %d" % KS)
                A("s_cbranch_scc1 %s" % sw1)
                srd(A, 4, 32, SZ_HT, WS_HT)
                srd(A, 8, 56, SZ_C)
                A("s_sub_u32 s38, s38, %d" % (72 * 262144))
                A("s_lshl_b32 s52, s52, 7")
                A("s_add_u32 s40, s49, s52")
                A("s_add_u32 s41, s50, s52")
                A("s_movk_i32 s47, %d" % (128 * KS))
                for m in range(4):
                    A("v_mov_b32 v%d, v%d" % (14 + m, 20 + m))
                A("v_mov_b32 v18, v20")
                A.label(sw1)
                A("s_sub_u32 s52, s48, 81")
                A("s_cmp_ge_u32 s52, %d" % KS)
                A("s_cbranch_scc1 %s" % sw2)
                srd(A, 8, 58, SZ_C)
                A("s_sub_u32 s40, s40, 1152")
                A("s_sub_u32 s41, s41, 1152")
                A.label(sw2)
            P_, Q_, X_ = (98, 99, 100) if cfg.rot3 else (38, 40, 41)
            if cfg.rot3:
                A("s_sub_u32 s98, s48, s34")
                A("s_andn2_b32 s99, s98, 3")
                A("s_sub_u32 s99, 0, s99")
                A("s_add_u32 s100, s98, 4")
                A("s_cmp_lt_u32 s100, s35")
                A("s_cselect_b32 s99, 4, s99")
                A("s_and_b32 s98, s98, 3")
                A("s_cmp_eq_u32 s98, s101")
                A("s_cselect_b32 s99, s99, 0")
                A("s_lshl_b32 s98, s99, 18")
                A("s_add_u32 s98, s98, s38")
                A("s_mul_i32 s100, s99, %d" % (36 * PAIR))
                A("s_add_u32 s99, s100, s40")
                A("s_add_u32 s100, s100, s41")
            A("s_add_u32 m0, s46, s43")
            A("s_add_u32 s52, s46, s44")
            for m in range(4):
                A("buffer_load_dwordx4 v%d, s[4:7], s%d offen offset:%d lds" % (10 + m, P_, m * 1024))
            A("s_mov_b32 m0, s52")
            A("s_add_u32 s38, s38, %d" % (KS * 262144))
            for m in range(4):
                A("buffer_load_dwordx4 v%d, s[8:11], s%d offen offset:%d lds" % (14 + m, Q_, m * 1024))
            A("s_add_u32 s40, s40, s47")
            if extra:
                A("s_add_u32 m0, s46, s45")
                A("s_nop 0")
                A("buffer_load_dwordx4 v18, s[8:11], s%d offen lds" % X_)
                A("s_add_u32 s41, s41, s47")
            A("s_add_u32 s48, s48, %d" % KS)
            A(slot_advance(46, SLOT, NS))
            if cnt[0] == 2:
                cmode_setup()
                fin_setup()
        return issue
    XR = 24; DS = 36; STT = 42; B2 = 72; BASE = 48; PR = 80; OWN = 120
    LDS_OWN = NS * SLOT
    def fin_setup():
        A("v_and_b32 v3, 15, v2")
        A("v_lshrrev_b32 v4, 4, v2")
        A("s_movk_i32 s76, 1152")
        A("v_mul_lo_u32 v6, v3, s76")
        A("v_lshl_add_u32 v6, v4, 3, v6")
        A("v_lshlrev_b32 v7, 1, v6")
        A("v_lshlrev_b32 v8, 3, v4")
        A("v_lshlrev_b32 v5, 3, v3")
        A("v_lshlrev_b32 v3, 1, v3")
        A("s_lshl_b32 s76, s23, 3")
        A("s_lshl_b32 s77, s22, 1")
        A("s_add_u32 s76, s76, s77")
        A("s_mul_i32 s77, s21, 9")
        A("s_add_u32 s77, s77, s36")
        A("s_lshl_b32 s77, s77, 5")
        A("s_mul_i32 s78, s76, %d" % (16 * 1152))
        A("s_add_u32 s78, s78, s77")
        A("s_add_u32 s79, s78, %d" % (16 * 1152))
        A("s_lshl_b32 s54, s78, 1")
        A("s_lshl_b32 s55, s79, 1")
        A("s_lshl_b32 s80, s76, 7")
        A("s_lshl_b32 s81, s76, 5")
        srd(A, 12, 60, 2359296)
        srd(A, 16, 62, 1152)
        srd(A, 72, 32, SZ_ST, WS_ST)
        srd(A, 64, 26, 4096)
        srd(A, 68, 28, 2048 * 576 * 4)
    def partA():
        for aa in range(2):
            A("buffer_load_dwordx2 %s, v5, s[72:75], s80 offen offset:%d" % (v(STT + 2 * aa, 2), aa * 128))
            A("buffer_load_ushort v%d, v3, s[64:67], s81 offen offset:%d" % (B2 + 2 * aa, aa * 32))
        sk = A.newlabel("k3_pa")
        for n in range(3):
            if n == 2:
                A("s_cmp_lg_u32 s36, 0")
                A("s_cbranch_scc1 %s" % sk)
            A("buffer_load_dwordx2 %s, v8, s[16:19], s77 offen offset:%d" % (v(DS + 2 * n, 2), n * 128))
            for aa in range(2):
                A("buffer_load_dwordx2 %s, v6, s[12:15], s%d offen offset:%d" % (v(XR + 4 * n + 2 * aa, 2), (78, 79)[aa], n * 128))
        A.label(sk)
    def base(n):
        dd = 76; xx = 116; tt = 144
        for h in range(2):
            A("v_lshlrev_b32 v%d, 16, v%d" % (dd + 2 * h, DS + 2 * n + h))
            A("v_and_b32 v%d, 0xffff0000, v%d" % (dd + 2 * h + 1, DS + 2 * n + h))
        for aa in range(2):
            b = BASE + 8 * n + 4 * aa
            for h in range(2):
                A("v_lshlrev_b32 v%d, 16, v%d" % (xx + 2 * h, XR + 4 * n + 2 * aa + h))
                A("v_and_b32 v%d, 0xffff0000, v%d" % (xx + 2 * h + 1, XR + 4 * n + 2 * aa + h))
            for h in range(2):
                A("v_pk_mul_f32 %s, %s, %s op_sel:[0,1]" % (v(tt + 2 * h, 2), v(dd + 2 * h, 2), v(STT + 2 * aa, 2)))
                A("v_pk_add_f32 %s, %s, %s op_sel_hi:[1,0]" % (v(b + 2 * h, 2), v(xx + 2 * h, 2), v(B2 + 2 * aa, 2)))
                A("v_pk_add_f32 %s, %s, %s op_sel_hi:[1,0] neg_lo:[0,1] neg_hi:[0,1]" % (v(xx + 2 * h, 2), v(xx + 2 * h, 2), v(STT + 2 * aa, 2)))
            for h in range(2):
                A("v_pk_fma_f32 %s, %s, %s, %s" % (v(b + 2 * h, 2), v(xx + 2 * h, 2), v(tt + 2 * h, 2), v(b + 2 * h, 2)))
    A("s_cmp_ge_u32 s36, 2")
    A("s_cbranch_scc1 k3_ld2")
    loader_loop(A, "k3a", mk_issue(True), 9, cfg.d3, 22, 53, kt_sreg=35)
    A("s_branch k3_fin")
    A.label("k3_ld2")
    loader_loop(A, "k3b", mk_issue(False), 8, cfg.d3, 22, 53, kt_sreg=35)
    A("s_branch k3_fin")
    A.label("k3_cons")
    A("v_lshrrev_b32 v5, 2, v2")
    A("v_and_b32 v6, 7, v5")
    A("v_and_b32 v7, 3, v2")
    A("v_lshlrev_b32 v7, 3, v7")
    A("v_lshl_add_u32 v7, v5, 8, v7")
    A("s_lshl_b32 s36, s20, 1")
    BW = 10; CW = 14; BC = 18
    for aa in range(2):
        A("s_add_u32 s37, s36, %d" % aa)
        A("v_xor_b32 v8, s37, v6")
        A("v_lshl_add_u32 v%d, v8, 5, v7" % (BW + aa))
    A("v_lshlrev_b32 v9, 4, v2")
    A("v_add_u32 v%d, 16384, v9" % (BW + 2))
    A("v_add_u32 v%d, 17408, v9" % (BW + 3))
    A("v_and_b32 v3, 15, v2")
    A("v_lshrrev_b32 v4, 4, v2")
    A("v_and_b32 v5, 7, v3")
    A("v_xor_b32 v5, v5, v4")
    A("v_lshlrev_b32 v5, 4, v5")
    A("v_lshl_add_u32 v5, v3, 7, v5")
    A("v_add_u32 v%d, 16384, v5" % BC)
    A("v_xor_b32 v%d, 64, v%d" % (BC + 1, BC))
    for i in range(4):
        A("v_mov_b32 v%d, v%d" % (CW + i, BW + i))
    ACC = 24; SETS = [96, 140]
    for i in range(72):
        A("v_mov_b32 v%d, 0" % (ACC + i))
    A("s_mov_b32 s46, 0")
    A("s_mov_b32 s48, s34")
    def reads(st, ks):
        b = SETS[st]; r = []
        r.append("ds_read_b128 %s, v%d offset:%d" % (v(b + 8, 4), CW + 2 + ks, 0))
        for aa in range(2):
            r.append("ds_read_b64_tr_b16 %s, v%d offset:%d" % (v(b + 4 * aa, 2), CW + aa, ks * 8192))
            r.append("ds_read_b64_tr_b16 %s, v%d offset:%d" % (v(b + 4 * aa + 2, 2), CW + aa, ks * 8192 + 4096))
        for xb in range(1, 9):
            r.append("ds_read_b128 %s, v%d offset:%d" % (v(b + 8 + 4 * xb, 4), CW + 2 + ks, xb * 2048))
        return r
    def mfmas(st):
        b = SETS[st]; m = []
        for xb in range(9):
            for aa in range(2):
                d = v(ACC + (xb * 2 + aa) * 4, 4)
                need = max(2 + 2 * aa, 4 + xb if xb else 0)
                m.append(("%s %s, %s, %s, %s" % (MFMA, d, v(b + 8 + 4 * xb, 4), v(b + 4 * aa, 4), d), need))
        return m
    def addr_update():
        sa = slot_advance(46, SLOT, NS).split("\n")
        U = lambda i: "v_add_u32 v%d, s46, v%d" % (CW + i, BW + i)
        return [(1, "s_add_u32 s48, s48, %d" % KS), (3, "s_cmp_ge_u32 s48, 72"), (5, "s_cbranch_scc1 k3_csw\nk3_cswr:"),
                (7, sa[0]), (8, sa[1]), (9, sa[2]), (11, U(0)), (13, U(1)), (14, U(2)), (15, U(3))]
    A("s_lshl_b32 s44, s23, 2")
    A("s_add_u32 s44, s44, s21")
    A("s_lshl_b32 s36, s44, 2")
    A("s_add_u32 s36, s36, s20")
    A("s_lshl_b32 s36, s36, 2")
    A("s_add_u32 s36, s36, s22")
    A("s_mul_i32 s36, s36, 9216")
    A("s_lshl_b32 s45, s44, 2")
    A("s_add_u32 s45, s45, s20")
    A("s_lshl_b32 s45, s45, 7")
    A("s_lshl_b32 s37, s22, 2")
    A("s_add_u32 s45, s45, s37")
    A("v_mov_b32 v20, 1")
    A("v_mov_b32 v21, 0")
    A("s_waitcnt lgkmcnt(0)")
    srd(A, 12, 32, SZ_EX, WS_EX)
    srd(A, 72, 32, SZ_FL, WS_FL)
    extraB = []
    if cfg.b3:
        A("s_add_u32 s38, s23, 2")
        A("s_lshr_b32 s38, s38, 2")
        A("s_sub_u32 s38, s23, s38")
        A("s_lshl_b32 s38, s38, 2")
        A("s_add_u32 s38, s38, s21")
        A("s_lshl_b32 s38, s38, 2")
        A("s_add_u32 s38, s38, s22")
        A("s_and_b32 s39, s23, 3")
        A("v_lshlrev_b32 v22, 7, v2")
        for bi, (first, rate) in enumerate(cfg.b3):
            d = (64, 4)[bi]
            A("s_lshl_b32 s40, s38, 2")
            A("s_add_u32 s40, s40, s20")
            A("s_add_u32 s40, s40, %d" % (cfg.pos_b3 + 768 * bi))
            pf_decode(A, 40, d, d + 4, 41, 24, 56, 58, 24, lo=max(L_C, cfg.pos_b3 + 768 * bi))
            A("s_mul_i32 s%d, s38, %d" % (d + 5, (65536 + rate - 1) // rate))
            A("s_lshr_b32 s%d, s%d, 16" % (d + 5, d + 5))
            A("s_sub_u32 s%d, %d, s%d" % (d + 5, 22 - first, d + 5))
            A("s_cmp_eq_u32 s39, 1")
            A("s_cselect_b32 s%d, 1000, s%d" % (d + 5, d + 5))
            extraB.append((3 + 2 * bi, "s_cmp_lg_u32 s53, s%d\ns_cbranch_scc1 k3_nb%d\nbuffer_load_dword v23, v22, s[%d:%d], s%d offen\nk3_nb%d:" % (d + 5, bi, d, d + 3, d + 4, bi)))
    consumer_loop(A, "k3", reads, mfmas, addr_update, 22, 53, kt_sreg=35, cfg=cfg, extraB=extraB, early=(cfg.d3 == 3), pts=cfg.pts3)
    A("s_nop 4")
    A("s_cmp_eq_u32 s20, s22")
    A("s_cbranch_scc1 k3_own")
    for xb in range(9):
        o = 96 + 4 * xb
        for k in range(4):
            A("v_cvt_pk_bf16_f32 v%d, v%d, v%d" % (o + k, ACC + 8 * xb + 2 * k, ACC + 8 * xb + 2 * k + 1))
        A("buffer_store_dwordx4 %s, v9, s[12:15], s36 offen offset:%d sc1" % (v(o, 4), (xb % 4) * 1024))
        if xb % 4 == 3: A("s_add_u32 s36, s36, 4096")
    A("s_waitcnt vmcnt(0)")
    A("s_mov_b64 exec, 1")
    A("buffer_store_dword v20, v21, s[72:75], s45 offen sc1")
    if not cfg.stamp: A("s_endpgm")
    A("s_barrier")
    A("s_mov_b64 exec, -1")
    stamp_mid(A, cfg, 2)
    A("s_branch k3_done")
    A.label("k3_own")
    A("v_add_u32 v10, %d, v9" % LDS_OWN)
    for t in range(18):
        A("ds_write_b128 v10, %s offset:%d" % (v(ACC + 4 * t, 4), t * 1024))
    A("s_waitcnt lgkmcnt(0)")
    A("s_barrier")
    stamp_mid(A, cfg, 2)
    A("s_branch k3_done")
    A.label("k3_csw")
    A("v_mov_b32 v%d, v%d" % (BW + 2, BC))
    A("v_mov_b32 v%d, v%d" % (BW + 3, BC + 1))
    A("s_mov_b32 s48, 0")
    A("s_branch k3_cswr")
    A.label("k3_fin")
    partA()
    A("v_lshlrev_b32 v9, 4, v2")
    A("s_lshl_b32 s44, s23, 2")
    A("s_add_u32 s44, s44, s21")
    A("s_lshl_b32 s45, s44, 2")
    A("s_add_u32 s45, s45, s22")
    A("s_mul_i32 s47, s45, %d" % (4 * 9216))
    A("s_lshl_b32 s45, s45, 7")
    srd(A, 72, 32, SZ_FL, WS_FL)
    srd(A, 12, 32, SZ_EX, WS_EX)
    A("s_lshl_b32 s46, s36, 10")
    A("s_add_u32 s47, s47, s46")
    for j in range(3):
        A("s_add_u32 s48, s22, %d" % (1 + j))
        A("s_and_b32 s48, s48, 3")
        A("s_mul_i32 s48, s48, 9216")
        A("s_add_u32 s%d, s47, s48" % (49 + j))
    A("v_add_u32 v15, 4096, v9")
    A("v_add_u32 v18, 8192, v9")
    A("s_lshl_b32 s46, s36, 11")
    A("s_add_u32 s46, s46, %d" % LDS_OWN)
    A("v_add_u32 v10, s46, v9")
    A("s_waitcnt vmcnt(0)")
    for aa in range(2):
        A("v_lshlrev_b32 v%d, 16, v%d" % (B2 + 2 * aa, B2 + 2 * aa))
    base(0); base(1); base(2)
    A("s_barrier")
    stamp_mid(A, cfg, 2)
    for n in range(3):
        for aa in range(2):
            A("ds_read_b128 %s, v10 offset:%d" % (v(OWN + 8 * n + 4 * aa, 4), n * 8192 + aa * 1024))
    A("s_mov_b32 s52, 0")
    A("v_mov_b32 v13, 0")
    A("s_waitcnt lgkmcnt(0)")
    for k in range(12):
        A("v_pk_add_f32 %s, %s, %s" % (v(BASE + 2 * k, 2), v(BASE + 2 * k, 2), v(OWN + 2 * k, 2)))
    A.label("k3_poll")
    A("buffer_load_dwordx4 v[24:27], v13, s[72:75], s45 offen sc1")
    A("s_add_u32 s52, s52, 1")
    A("s_waitcnt vmcnt(0)")
    A("v_add3_u32 v24, v24, v25, v26")
    A("v_add_u32 v24, v24, v27")
    A("s_cmp_gt_u32 s52, 0x400000")
    A("v_readfirstlane_b32 s53, v24")
    A("s_cbranch_scc1 k3_go")
    A("s_cmp_lt_u32 s53, 3")
    A("s_cbranch_scc1 k3_poll")
    A.label("k3_go")
    stamp_mid(A, cfg, 3)
    def ld(n):
        for j in range(3):
            A("buffer_load_dwordx4 %s, v%d, s[12:15], s%d offen sc1" % (v(PR + (n * 3 + j) * 4, 4), (9, 15, 18)[n], 49 + j))
    def fin(n):
        b = BASE + 8 * n
        for j in range(3):
            p = PR + (n * 3 + j) * 4
            for k in range(4):
                A("v_lshlrev_b32 v%d, 16, v%d" % (28 + 2 * (k % 2), p + k))
                A("v_and_b32 v%d, 0xffff0000, v%d" % (29 + 2 * (k % 2), p + k))
                A("v_pk_add_f32 %s, %s, %s" % (v(b + 2 * k, 2), v(b + 2 * k, 2), v(28 + 2 * (k % 2), 2)))
        for aa in range(2):
            A("buffer_store_dwordx4 %s, v7, s[68:71], s%d offen offset:%d %s" % (v(b + 4 * aa, 4), (54, 55)[aa], n * 256, cfg.sto))
    A("s_cmp_lg_u32 s36, 0")
    A("s_cbranch_scc1 k3_l1")
    ld(2); ld(0); ld(1)
    A("s_waitcnt vmcnt(6)")
    fin(2)
    A("s_waitcnt vmcnt(5)")
    fin(0)
    A("s_waitcnt vmcnt(4)")
    fin(1)
    A("s_branch k3_done")
    A.label("k3_l1")
    ld(0); ld(1)
    A("s_waitcnt vmcnt(3)")
    fin(0)
    A("s_waitcnt vmcnt(2)")
    fin(1)
    A.label("k3_done")
    stamp_end(A, cfg, 2, 32, 20, 2)
    A.label("k3_end")
    A("s_endpgm")
    return NS * SLOT + 24576

HEADER = open("parallel_sum__ssm_conv_s5__mixer_token_mlp__prompt.s.ref").read().split("; Override launch")[0]

def gen(**kw):
    cfg = Cfg()
    for k, val in kw.items():
        assert hasattr(Cfg, k), k
        setattr(cfg, k, val)
    B = Asm()
    LPRIO[0] = cfg.lprio; LPRIO[1] = cfg.cprio
    l1 = gen_k1(B, cfg); l2 = gen_k2(B, cfg); l3 = gen_k3(B, cfg)
    sys.stderr.write("list: k3 bursts start at %d, end %d of %d\n" % (cfg.pos_b3, cfg.pos_b3 + 768 * len(cfg.b3), L_END))
    out = HEADER
    out += "; @launch kernel=k1_kernel grid=(256,1,1) block=(768,1,1) lds=%d\n" % l1
    out += "; @launch kernel=k2_kernel grid=(256,1,1) block=(512,1,1) lds=%d\n" % l2
    out += "; @launch kernel=k3_kernel grid=(256,1,1) block=(512,1,1) lds=%d\n" % l3
    out += '.amdgcn_target "amdgcn-amd-amdhsa--gfx950"\n.text\n'
    out += B.text()
    out += '.section .rodata,"a"\n'
    for name, vg in (("k1_kernel", 168), ("k2_kernel", 256), ("k3_kernel", 184)):
        out += ".p2align 6\n" + kd(name, vg, 102)
    return out

if __name__ == "__main__":
    kw = {}
    for a_ in sys.argv[2:]:
        k, val = a_.split("=")
        kw[k] = ast.literal_eval(val)
    open(sys.argv[1], "w").write(gen(**kw))
```

```python
import sys, math, ast
from asmlib import *

WS_HF = 0x0
WS_UF = 0x400000
WS_G = 0xC00000
WS_HT = 0x1400000
WS_ST = 0x1900000
WS_EX = 0x2000000
WS_FL = 0x1910000
SZ_FL = 32768
WS_STAMP = 0xC000000
import os
PAIR = int(os.environ.get('PAIR', 3072))
SZ_HF = 32 * 36 * PAIR
SZ_UF = 72 * 36 * PAIR
SZ_G = 4718592
SZ_HT = 4718592
SZ_ST = 16384
SZ_EX = 64 * 16 * 9216
SZ_W = 2048 * 9216
SZ_C = 576 * 1152

K_X, K_LRE, K_LIM, K_BRE, K_BIM, K_CRE, K_CIM, K_LOGDT, K_DSKIP, K_BX, K_W1, K_B1, K_W2, K_B2, K_OUT, K_DBG, K_WS = [8 * i for i in range(17)]

class Cfg:
    stamp = False
    ln1 = 1
    ln2 = 1
    g1pf = 0
    sce = 0
    scm = (1, 1, 1)
    scl = 3
    idle_extra = 2
    g2pf = 0
    st1 = ""; st2 = ""; st2s = ""; sto = ""
    b2 = ((1, 16), (12, 16))
    pos_b3 = 0
    touch1 = 0
    d3 = 2
    rot2 = 1
    adv2 = 0
    wrapw = 31
    wrapx = 31
    lprio = 0
    cprio = 0
    d2 = 3
    pts2 = (0, 3, 6)
    pts3 = (0, 6)
    rot3 = 0
    rot1 = 0
    skipw1 = 1
    leadnt = 0
    codepf = 1
    ra = 1
    rb = 1
    kstep = 1
    b3 = ((1, 20),)

def stamp_begin(A, cfg):
    if cfg.stamp:
        A("s_memrealtime s[90:91]")
        A("s_memtime s[92:93]")

def stamp_mid(A, cfg, idx):
    if cfg.stamp:
        A("s_memtime s[%d:%d]" % (82 + 2 * idx, 83 + 2 * idx))
        A("s_waitcnt lgkmcnt(0)")

def stamp_end(A, cfg, kidx, wsreg, wavereg, lanereg, wave=0):
    if not cfg.stamp:
        return
    A("s_waitcnt vmcnt(0)")
    A("s_memrealtime s[94:95]")
    A("s_memtime s[96:97]")
    srd(A, 76, wsreg, 65536 * 2, WS_STAMP + kidx * 131072)
    A("s_waitcnt lgkmcnt(0)")
    regs = [90, 91, 94, 95, 92, 96, 82, 84, 86, 88]
    for i, r in enumerate(regs):
        A("v_mov_b32 v%d, s%d" % (4 + i, r))
    A("s_lshl_b32 s80, s2, 3")
    A("s_add_u32 s80, s80, s%d" % wavereg)
    A("s_lshl_b32 s80, s80, 6")
    A("v_mov_b32 v3, 0")
    A("v_cmp_eq_u32 vcc, 0, v%d" % lanereg)
    A("s_and_saveexec_b64 s[98:99], vcc")
    A("buffer_store_dwordx4 v[4:7], v3, s[76:79], s80 offen")
    A("buffer_store_dwordx4 v[8:11], v3, s[76:79], s80 offen offset:16")
    A("buffer_store_dwordx2 v[12:13], v3, s[76:79], s80 offen offset:32")

LPRIO = [0, 0]
def loader_loop(A, pfx, issue, per, D, KT, cnt_sreg, kt_sreg=None, after_last_issue=None):
    if LPRIO[0]: A("s_setprio %d" % LPRIO[0])
    for j in range(D):
        issue()
    if kt_sreg is None:
        A("s_mov_b32 s%d, %d" % (cnt_sreg, KT - D))
    else:
        A("s_sub_u32 s%d, s%d, %d" % (cnt_sreg, kt_sreg, D))
    A.label(pfx + "_lloop")
    A("s_waitcnt vmcnt(%d)" % ((D - 1) * per))
    A("s_barrier")
    issue()
    A("s_sub_u32 s%d, s%d, 1" % (cnt_sreg, cnt_sreg))
    A("s_cmp_lg_u32 s%d, 0" % cnt_sreg)
    A("s_cbranch_scc1 %s_lloop" % pfx)
    extra = after_last_issue() if after_last_issue else 0
    for j in range(D):
        A("s_waitcnt vmcnt(%d)" % ((D - 1 - j) * per + extra))
        A("s_barrier")

WAITPTS = [None]
def group(A, ms, rs, nprev, extra=(), pts=None):
    rs = list(rs); issued = 0; waited = -1
    for i, (m, need) in enumerate(ms):
        if pts is not None:
            if i in pts:
                nxt = min([p for p in pts if p > i] + [len(ms)])
                need = max(n for _, n in ms[i:nxt])
            else:
                assert need <= waited
        if need > waited:
            A("s_waitcnt lgkmcnt(%d)" % min(15, nprev - 1 - need + issued))
            waited = need
        A(m)
        if rs:
            A(rs.pop(0)); issued += 1
        for pos, t in extra:
            if pos == i: A(t)
    for r in rs: A(r)

def consumer_loop(A, pfx, reads, mfmas, addr_update, KT, cnt_sreg, kt_sreg=None, cfg=None, extraB=(), before_tail=None, early=False, pts=None):
    if LPRIO[1]: A("s_setprio %d" % LPRIO[1])
    A("s_barrier")
    if cfg: stamp_mid(A, cfg, 0)
    for r in reads(0, 0): A(r)
    n = len(reads(0, 0))
    if kt_sreg is None:
        A("s_mov_b32 s%d, %d" % (cnt_sreg, KT - 1))
    else:
        A("s_sub_u32 s%d, s%d, 1" % (cnt_sreg, kt_sreg))
    A.label(pfx + "_cloop")
    group(A, mfmas(0), reads(1, 1), n, addr_update(), pts)
    if early: A("s_waitcnt lgkmcnt(0)")
    A("s_barrier")
    nm = len(mfmas(1))
    group(A, mfmas(1), reads(0, 0), n, list(extraB) + [(nm - 3, "s_sub_u32 s%d, s%d, 1" % (cnt_sreg, cnt_sreg)), (nm - 2, "s_cmp_lg_u32 s%d, 0" % cnt_sreg)], pts)
    A("s_cbranch_scc1 %s_cloop" % pfx)
    if before_tail: before_tail()
    group(A, mfmas(0), reads(1, 1), n, (), pts)
    group(A, mfmas(1), [], n, (), pts)
    if cfg: stamp_mid(A, cfg, 1)

def slot_advance(sreg, SLOT, NS):
    return "s_add_u32 s%d, s%d, %d\ns_cmp_eq_u32 s%d, %d\ns_cselect_b32 s%d, 0, s%d" % (sreg, sreg, SLOT, sreg, NS * SLOT, sreg, sreg)

def row16_sum(A, r):
    for sh in (8, 4, 2, 1):
        A("s_nop 1")
        A("v_add_f32_dpp v%d, v%d, v%d row_ror:%d row_mask:0xf bank_mask:0xf" % (r, r, r, sh))

def round_bf16(A, dst, src):
    A("v_cvt_pk_bf16_f32 v%d, v%d, v%d" % (dst, src, src))
    A("v_lshlrev_b32 v%d, 16, v%d" % (dst, dst))

def frag_lane_off(A, dst0, dst1, lane, tmp):
    A("v_lshlrev_b32 v%d, 4, v%d" % (dst0, lane))
    if PAIR == 2048:
        A("v_add_u32 v%d, 1024, v%d" % (dst1, dst0))
        return
    A("v_add_u32 v%d, 1152, v%d" % (dst1, dst0))
    A("v_cmp_le_u32 vcc, 24, v%d" % lane)
    A("v_add_u32 v%d, 128, v%d" % (tmp, dst0))
    A("s_nop 0")
    A("v_cndmask_b32 v%d, v%d, v%d, vcc" % (dst0, dst0, tmp))
    A("v_cmp_le_u32 vcc, 16, v%d" % lane)
    A("v_add_u32 v%d, 128, v%d" % (tmp, dst1))
    A("s_nop 0")
    A("v_cndmask_b32 v%d, v%d, v%d, vcc" % (dst1, dst1, tmp))

L_C = 2304; L_W2 = 2304 + 162; L_END = L_W2 + 73 * 32
def pf_decode(A, idx, d, off, t, w1, cre, cim, w2, lo=0):
    A("s_sub_u32 s%d, s%d, %d" % (off, idx, L_W2 + 128))
    A("s_lshr_b32 s%d, s%d, 5" % (t, off))
    A("s_mul_i32 s%d, s%d, 21846" % (t + 1, t))
    A("s_lshr_b32 s%d, s%d, 16" % (t + 1, t + 1))
    A("s_mul_i32 s%d, s%d, 23" % (t, t))
    A("s_mul_i32 s%d, s%d, 68" % (t + 1, t + 1))
    A("s_sub_u32 s%d, s%d, s%d" % (t, t, t + 1))
    A("s_lshl_b32 s%d, s%d, 5" % (t, t))
    A("s_and_b32 s%d, s%d, 31" % (off, off))
    A("s_add_u32 s%d, s%d, s%d" % (off, off, t))
    A("s_cmp_ge_u32 s%d, %d" % (idx, L_END))
    A("s_cselect_b32 s%d, 4096, s%d" % (off, off))
    A("s_mov_b32 s%d, s%d\ns_mov_b32 s%d, s%d\ns_mov_b32 s%d, %d" % (d, w2, d + 1, w2 + 1, d + 2, SZ_W))
    for (hi, sub, base, sz) in ((L_W2 + 128, L_W2 - 68 * 32, w2, SZ_W), (L_W2, L_C + 81, cim, SZ_C), (L_C + 81, L_C, cre, SZ_C), (L_C, 0, w1, SZ_W)):
        if hi <= lo: continue
        A("s_sub_u32 s%d, s%d, %d" % (t, idx, sub))
        A("s_cmp_lt_u32 s%d, %d" % (idx, hi))
        A("s_cselect_b32 s%d, s%d, s%d" % (off, t, off))
        if base != w2:
            A("s_cselect_b32 s%d, s%d, s%d" % (d, base, d))
            A("s_cselect_b32 s%d, s%d, s%d" % (d + 1, base + 1, d + 1))
            A("s_cselect_b32 s%d, %d, s%d" % (d + 2, sz, d + 2))
    A("s_mov_b32 s%d, 0x00020000" % (d + 3))
    A("s_lshl_b32 s%d, s%d, 13" % (off, off))

def kernel_head(A, name):
    A.raw(".globl %s\n.p2align 8\n.type %s,@function" % (name, name))
    A.label(name)

MFMA = "v_mfma_f32_16x16x32_bf16"

def gen_k1(A, cfg):
    NS = 5; SLOT = 28672; KT = 9
    kernel_head(A, "k1_kernel")
    stamp_begin(A, cfg)
    A("s_cmp_ge_u32 s2, 256")
    A("s_cbranch_scc1 k1_end")
    A("s_load_dwordx2 s[24:25], s[0:1], %d" % K_X)
    A("s_load_dwordx4 s[28:31], s[0:1], %d" % K_BRE)
    A("s_load_dwordx2 s[44:45], s[0:1], %d" % K_W1)
    A("s_load_dwordx2 s[26:27], s[0:1], %d" % K_WS)
    A("v_lshrrev_b32 v1, 6, v0")
    A("v_and_b32 v2, 63, v0")
    A("v_readfirstlane_b32 s20, v1")
    A("s_and_b32 s3, s2, 7")
    A("s_lshr_b32 s21, s2, 3")
    A("s_cmp_ge_u32 s21, 24")
    A("s_cbranch_scc1 k1_ln")
    A("s_cmp_ge_u32 s21, 12")
    A("s_cselect_b32 s22, 1, 0")
    A("s_mul_i32 s23, s22, 12")
    A("s_sub_u32 s23, s21, s23")
    A("s_lshl_b32 s3, s3, 1")
    A("s_add_u32 s22, s22, s3")
    A("s_cmp_lt_u32 s20, 4")
    A("s_cbranch_scc1 k1_cons")
    A("s_cmp_ge_u32 s20, 8")
    A("s_cbranch_scc1 k1_help")
    A("s_sub_u32 s34, s20, 4")
    A("v_lshrrev_b32 v3, 3, v2")
    A("v_and_b32 v4, 7, v2")
    A("v_xor_b32 v6, v4, v3")
    A("s_movk_i32 s35, 1152")
    A("v_mul_lo_u32 v5, v3, s35")
    A("v_lshlrev_b32 v8, 1, v5")
    A("v_lshl_add_u32 v10, v6, 4, v8")
    A("s_lshr_b32 s35, s34, 1")
    A("v_and_b32 v7, 6, v3")
    A("v_or_b32 v7, s35, v7")
    A("v_xor_b32 v7, v4, v7")
    A("v_lshl_add_u32 v14, v7, 4, v5")
    D = 8 * 1152 - 1024
    for m in range(1, 4):
        A("v_add_u32 v%d, 0x%x, v10" % (10 + m, (16 * (m & 1) + (m >> 1)) * 1152 - (m & 1) * 1024))
    for m in range(1, 3):
        A("v_add_u32 v%d, 0x%x, v14" % (14 + m, m * D))
    A("s_lshl_b32 s36, s22, 7")
    A("s_lshl_b32 s37, s34, 5")
    A("s_add_u32 s36, s36, s37")
    A("s_mul_i32 s36, s36, 1152")
    A("s_mul_i32 s37, s23, 48")
    A("s_and_b32 s38, s34, 1")
    A("s_mul_i32 s38, s38, 24")
    A("s_add_u32 s37, s37, s38")
    A("s_mul_i32 s37, s37, 1152")
    A("s_lshl_b32 s38, s34, 12")
    A("s_mul_i32 s39, s34, 3072")
    A("s_add_u32 s39, s39, 16384")
    A("s_mov_b32 s40, 0")
    if cfg.rot1:
        A("s_lshl_b32 s50, s22, 2")
        A("s_add_u32 s50, s50, s23")
        A("s_mul_i32 s51, s50, 7282")
        A("s_lshr_b32 s51, s51, 16")
        A("s_mul_i32 s51, s51, 9")
        A("s_sub_u32 s50, s50, s51")
        A("s_lshl_b32 s51, s50, 7")
        A("s_add_u32 s36, s36, s51")
        A("s_add_u32 s37, s37, s51")
    A("s_waitcnt lgkmcnt(0)")
    srd(A, 4, 24, 2359296)
    A("s_cmp_ge_u32 s34, 2")
    A("s_cselect_b32 s8, s30, s28")
    A("s_cselect_b32 s9, s31, s29")
    A("s_mov_b32 s10, %d" % SZ_C)
    A("s_mov_b32 s11, 0x00020000")
    def issue():
        A("s_add_u32 m0, s40, s38")
        A("s_add_u32 s41, s40, s39")
        for m in range(4):
            if m == 2:
                A("s_add_u32 m0, m0, 2048")
                A("s_nop 0")
            A("buffer_load_dwordx4 v%d, s[4:7], s36 offen offset:%d lds" % (10 + m, (m & 1) * 1024))
        A("s_mov_b32 m0, s41")
        A("s_add_u32 s36, s36, 128")
        for m in range(3):
            A("buffer_load_dwordx4 v%d, s[8:11], s37 offen offset:%d lds" % (14 + m, m * 1024))
        A("s_add_u32 s37, s37, 128")
        if cfg.rot1:
            A("s_add_u32 s50, s50, 1")
            A("s_cmp_eq_u32 s50, 9")
            A("s_cselect_b32 s51, 1152, 0")
            A("s_sub_u32 s36, s36, s51")
            A("s_sub_u32 s37, s37, s51")
        A(slot_advance(40, SLOT, NS))
    def tailpf():
        if not cfg.g1pf: return 0
        srd(A, 16, 44, SZ_W)
        A("s_mul_i32 s46, s22, 12")
        A("s_add_u32 s46, s46, s23")
        A("s_lshl_b32 s46, s46, 2")
        A("s_add_u32 s46, s46, s34")
        A("s_add_u32 s46, s46, %d" % ((cfg.ln1 + cfg.ln2) * 512))
        A("s_lshl_b32 s46, s46, 13")
        A("v_lshlrev_b32 v20, 7, v2")
        A("buffer_load_dword v21, v20, s[16:19], s46 offen")
        return 1
    loader_loop(A, "k1", issue, 7, NS - 2, KT, 42, after_last_issue=tailpf)
    stamp_end(A, cfg, 0, 26, 20, 2)
    A("s_endpgm")
    A.label("k1_help")
    LDS_SUM = NS * SLOT
    SA = 24; SD = 32
    A("s_sub_u32 s34, s20, 8")
    A("s_lshr_b32 s35, s34, 1")
    A("v_lshrrev_b32 v3, 3, v2")
    A("s_lshl_b32 s38, s34, 12")
    A("s_mul_i32 s39, s34, 3072")
    A("s_add_u32 s39, s39, 16384")
    A("v_lshlrev_b32 v20, 4, v2")
    A("v_add_u32 v21, s39, v20")
    A("v_add_u32 v20, s38, v20")
    for m in range(7): A("v_mov_b32 v%d, 0" % (SA + m))
    A("s_mov_b32 s52, 0x3f803f80")
    A("s_mov_b32 s40, 0")
    A("s_mov_b32 s42, %d" % KT)
    A.label("k1_hloop")
    A("v_add_u32 v22, s40, v20")
    A("v_add_u32 v23, s40, v21")
    A("s_barrier")
    for m in range(7):
        A("ds_read_b128 %s, v%d offset:%d" % (v(SD + 4 * m, 4), 22 if m < 4 else 23, (m if m < 4 else m - 4) * 1024))
    A(slot_advance(40, SLOT, NS))
    for q in range(4):
        for m in range(7):
            if q == 0: A("s_waitcnt lgkmcnt(%d)" % (6 - m))
            A("v_dot2_f32_bf16 v%d, v%d, s52, v%d" % (SA + m, SD + 4 * m + q, SA + m))
    A("s_sub_u32 s42, s42, 1")
    A("s_cmp_lg_u32 s42, 0")
    A("s_cbranch_scc1 k1_hloop")
    A("s_nop 2")
    for dpp in ("quad_perm:[1,0,3,2]", "quad_perm:[2,3,0,1]", "row_half_mirror"):
        for m in range(7):
            A("v_add_f32_dpp v%d, v%d, v%d %s row_mask:0xf bank_mask:0xf" % (SA + m, SA + m, SA + m, dpp))
    A("s_lshl_b32 s53, s34, 7")
    A("s_add_u32 s53, s53, %d" % LDS_SUM)
    A("v_lshl_add_u32 v22, v3, 2, s53")
    A("s_and_b32 s53, s34, 1")
    A("s_mul_i32 s53, s53, 192")
    A("s_lshl_b32 s54, s35, 2")
    A("s_add_u32 s53, s53, s54")
    A("s_add_u32 s53, s53, %d" % (LDS_SUM + 512))
    A("v_lshl_add_u32 v23, v3, 3, s53")
    for m in range(4): A("ds_write_b32 v22, v%d offset:%d" % (SA + m, m * 32))
    for m in range(3): A("ds_write_b32 v23, v%d offset:%d" % (SA + 4 + m, m * 64))
    A("s_waitcnt lgkmcnt(0)")
    A("s_barrier")
    A("s_endpgm")
    A.label("k1_cons")
    A("s_and_b32 s34, s20, 1")
    A("s_lshr_b32 s35, s20, 1")
    A("v_and_b32 v3, 15, v2")
    A("v_lshrrev_b32 v4, 4, v2")
    A("v_and_b32 v5, 7, v3")
    A("v_xor_b32 v5, v5, v4")
    A("v_lshlrev_b32 v5, 4, v5")
    A("v_lshl_add_u32 v5, v3, 7, v5")
    A("v_and_b32 v6, 1, v3")
    A("v_lshrrev_b32 v7, 1, v3")
    A("v_and_b32 v8, 6, v7")
    A("v_or_b32 v8, v8, v6")
    A("v_xor_b32 v8, v8, v4")
    A("v_lshlrev_b32 v8, 4, v8")
    A("v_mul_u32_u24 v6, 48, v6")
    A("v_add_u32 v6, v6, v7")
    A("v_lshl_add_u32 v8, v6, 7, v8")
    A("s_lshl_b32 s36, s34, 13")
    A("s_mul_i32 s37, s35, 3072")
    A("s_add_u32 s37, s37, 16384")
    BB = 10; CB = 14
    A("v_add_u32 v10, s36, v5")
    A("v_xor_b32 v11, 64, v10")
    A("v_add_u32 v12, s37, v8")
    A("v_xor_b32 v13, 64, v12")
    for i in range(4):
        A("v_mov_b32 v%d, v%d" % (CB + i, BB + i))
    ACC = 32; SETS = [80, 108]; RSUM = 136; CSUM = 152; ONES = 20
    for i in range(48):
        A("v_mov_b32 v%d, 0" % (ACC + i))
    A("s_lshl_b32 s50, s34, 8")
    A("s_add_u32 s50, s50, %d" % LDS_SUM)
    A("v_lshl_add_u32 v20, v3, 2, s50")
    A("s_mul_i32 s50, s35, 192")
    A("s_add_u32 s50, s50, %d" % (LDS_SUM + 512))
    A("v_lshl_add_u32 v21, v4, 4, s50")
    A("s_mov_b32 s40, 0")
    def reads(st, ks):
        b = SETS[st]
        P = lambda aa: "ds_read_b128 %s, v%d offset:%d" % (v(b + 4 * aa, 4), CB + ks, aa * 2048)
        Q = lambda xb: "ds_read_b128 %s, v%d offset:%d" % (v(b + 16 + 4 * xb, 4), CB + 2 + ks, xb * 1024)
        return [P(0), Q(0), Q(1), Q(2), P(1), P(2), P(3)]
    def mfmas(st):
        b = SETS[st]; m = []
        for aa in range(4):
            for xb in range(3):
                d = v(ACC + (aa * 3 + xb) * 4, 4)
                need = max(1 + xb, 3 + aa if aa else 0)
                m.append(("%s %s, %s, %s, %s" % (MFMA, d, v(b + 16 + 4 * xb, 4), v(b + 4 * aa, 4), d), need))
        return m
    def addr_update():
        sa = slot_advance(40, SLOT, NS).split("\n")
        return [(4, sa[0]), (5, sa[1]), (6, sa[2])] + [(7 + i, "v_add_u32 v%d, s40, v%d" % (CB + i, BB + i)) for i in range(4)]
    A("v_lshlrev_b32 v18, 4, v4")
    A("v_lshl_add_u32 v18, v3, 6, v18")
    A("s_mul_i32 s36, s23, 6")
    A("s_mul_i32 s37, s35, 3")
    A("s_add_u32 s36, s36, s37")
    A("s_lshl_b32 s36, s36, 16")
    A("s_lshl_b32 s37, s22, 1")
    A("s_add_u32 s37, s37, s34")
    A("s_lshl_b32 s37, s37, 11")
    A("s_add_u32 s46, s36, s37")
    A("s_add_u32 s47, s46, 65536")
    A("s_add_u32 s48, s46, 131072")
    A("s_mov_b32 s50, 0x%x" % f2u(1.0 / 576))
    A("s_waitcnt lgkmcnt(0)")
    srd(A, 12, 26, SZ_G, WS_G)
    if cfg.touch1:
        A("s_mul_i32 s52, s22, 12")
        A("s_add_u32 s52, s52, s23")
        A("s_lshl_b32 s52, s52, 2")
        A("s_add_u32 s52, s52, s20")
        A("s_mul_i32 s53, s52, 38401")
        A("s_lshr_b32 s53, s53, 16")
        A("s_mov_b32 s56, s24\ns_mov_b32 s57, s25\ns_mov_b32 s58, 2359296\ns_mov_b32 s54, s53")
        for (lo, base) in ((288, 28), (369, 30)):
            A("s_sub_u32 s55, s53, %d" % lo)
            A("s_cmp_ge_u32 s53, %d" % lo)
            A("s_cselect_b32 s54, s55, s54")
            A("s_cselect_b32 s56, s%d, s56" % base)
            A("s_cselect_b32 s57, s%d, s57" % (base + 1))
            A("s_cselect_b32 s58, %d, s58" % SZ_C)
        A("s_mov_b32 s59, 0x00020000")
        A("s_lshl_b32 s54, s54, 13")
        A("v_lshlrev_b32 v24, 7, v2")
        A("buffer_load_dword v25, v24, s[56:59], s54 offen")
    consumer_loop(A, "k1", reads, mfmas, addr_update, KT, 42, cfg=cfg)
    A("s_barrier")
    for aa in range(4):
        A("ds_read_b32 v%d, v20 offset:%d" % (RSUM + aa, aa * 64))
    for xb in range(3):
        A("ds_read_b128 %s, v21 offset:%d" % (v(CSUM + 4 * xb, 4), xb * 64))
    A("s_waitcnt lgkmcnt(0)")
    MN = 80
    for aa in range(4):
        A("v_mul_f32 v%d, s50, v%d" % (MN + 2 * aa, RSUM + aa))
    for aa in range(4):
        round_bf16(A, MN + 2 * aa, MN + 2 * aa)
    for ap in range(2):
        for xb in range(3):
            O = 96 + 4 * ((ap * 3 + xb) % 3)
            for h in range(2):
                aa = 2 * ap + h; d = ACC + (aa * 3 + xb) * 4
                for q in range(2):
                    A("v_pk_fma_f32 %s, %s, %s, %s op_sel_hi:[0,1,1] neg_lo:[1,0,0] neg_hi:[1,0,0]" % (v(d + 2 * q, 2), v(MN + 2 * aa, 2), v(CSUM + 4 * xb + 2 * q, 2), v(d + 2 * q, 2)))
            for h in range(2):
                aa = 2 * ap + h; d = ACC + (aa * 3 + xb) * 4
                for q in range(2):
                    A("v_cvt_pk_bf16_f32 v%d, v%d, v%d" % (O + 2 * h + q, d + 2 * q, d + 2 * q + 1))
            A("buffer_store_dwordx4 %s, v18, s[12:15], s%d offen offset:%d %s" % (v(O, 4), 46 + xb, ap * 1024, cfg.st1))
    stamp_end(A, cfg, 0, 26, 20, 2)
    A("s_endpgm")
    A.label("k1_ln")
    A("s_sub_u32 s21, s21, 24")
    A("s_lshl_b32 s21, s21, 3")
    A("s_add_u32 s21, s21, s3")
    A("s_cmp_ge_u32 s20, 8")
    A("s_cbranch_scc1 k1_cpf")
    A("v_lshrrev_b32 v3, 4, v0")
    A("v_and_b32 v4, 15, v0")
    A("s_movk_i32 s35, 1152")
    A("v_mul_lo_u32 v5, v3, s35")
    A("v_lshl_add_u32 v5, v4, 3, v5")
    A("s_mul_i32 s36, s21, %d" % (32 * 1152))
    A("s_movk_i32 s54, %d\ns_movk_i32 s55, 0" % K_B1)
    for (kb, off, sz) in ((0, K_B1, 9216), (1, K_B2, 4096), (2, K_DSKIP, 1152), (3, K_LRE, 1152), (4, K_LIM, 1152), (5, K_LOGDT, 1152)):
        A("s_cmp_eq_u32 s21, %d" % kb)
        A("s_cselect_b32 s54, %d, s54" % off)
        A("s_cselect_b32 s55, %d, s55" % sz)
    A("s_waitcnt lgkmcnt(0)")
    srd(A, 4, 24, 2359296)
    RAW = 16; X = 40
    for j in range(9):
        A("buffer_load_dwordx2 %s, v5, s[4:7], s36 offen offset:%d" % (v(RAW + 2 * j, 2), j * 128))
    srd(A, 8, 26, SZ_HF, WS_HF)
    srd(A, 12, 26, SZ_ST, WS_ST)
    srd(A, 16, 44, SZ_W)
    A("v_lshlrev_b32 v120, 7, v0")
    A("s_lshl_b32 s46, s21, 16")
    def lnpf(n):
        for _ in range(n):
            A("buffer_load_dword v121, v120, s[16:19], s46 offen")
            A("s_add_u32 s46, s46, 0x400000")
    A("s_load_dwordx2 s[52:53], s[0:1], s54")
    lnpf(cfg.ln1)
    RS = 1184
    A("s_movk_i32 s35, %d" % RS)
    A("v_mul_lo_u32 v6, v3, s35")
    A("v_lshl_add_u32 v6, v4, 3, v6")
    A("v_lshrrev_b32 v7, 2, v2")
    A("v_mul_lo_u32 v7, v7, s35")
    A("v_and_b32 v8, 3, v2")
    A("v_lshl_add_u32 v7, v8, 3, v7")
    A("s_lshl_b32 s37, s20, 5")
    A("v_add_u32 v7, s37, v7")
    frag_lane_off(A, 116, 117, 2, 9)
    A("s_bitcmp1_b32 s21, 0")
    A("s_cbranch_scc0 k1_ks0")
    A("v_mov_b32 v116, v117")
    A.label("k1_ks0")
    A("s_mov_b32 s38, 0x%x" % f2u(1.0 / 576))
    A("s_mov_b32 s39, 0x%x" % f2u(1e-5))
    N = 36
    def unpack(src):
        for j in range(18):
            A("v_lshlrev_b32 v%d, 16, v%d" % (X + 2 * j, src + j))
            A("v_and_b32 v%d, 0xffff0000, v%d" % (X + 2 * j + 1, src + j))
    S0, S2, M, MB, RSV, TT = 10, 12, 14, 36, 38, 80
    def pk(op, d, a, b, mods=""):
        A("v_pk_%s_f32 %s, %s, %s %s" % (op, v(d, 2), v(a, 2), v(b, 2), mods))
    def layernorm():
        pk("add", S0, X, X + 2)
        pk("add", S2, X + 4, X + 6)
        for j in range(8, N, 4):
            pk("add", S0, S0, X + j)
            pk("add", S2, S2, X + j + 2)
        pk("add", S0, S0, S2)
        A("v_add_f32 v%d, v%d, v%d" % (S0, S0, S0 + 1))
        row16_sum(A, S0)
        A("v_mul_f32 v%d, s38, v%d" % (M, S0))
        round_bf16(A, MB, M)
        for j in range(0, N, 2):
            pk("add", TT + j, X + j, M, "op_sel_hi:[1,0] neg_lo:[0,1] neg_hi:[0,1]")
        pk("mul", S0, TT, TT)
        pk("mul", S2, TT + 2, TT + 2)
        for j in range(4, N, 4):
            A("v_pk_fma_f32 %s, %s, %s, %s" % (v(S0, 2), v(TT + j, 2), v(TT + j, 2), v(S0, 2)))
            A("v_pk_fma_f32 %s, %s, %s, %s" % (v(S2, 2), v(TT + j + 2, 2), v(TT + j + 2, 2), v(S2, 2)))
        pk("add", S0, S0, S2)
        A("v_add_f32 v%d, v%d, v%d" % (S0, S0, S0 + 1))
        for j in range(0, N, 2):
            pk("add", X + j, X + j, MB, "op_sel_hi:[1,0] neg_lo:[0,1] neg_hi:[0,1]")
        row16_sum(A, S0)
        A("v_mul_f32 v%d, s38, v%d" % (S0, S0))
        round_bf16(A, S0, S0)
        A("v_add_f32 v%d, s39, v%d" % (S0, S0))
        round_bf16(A, S0, S0)
        A("v_sqrt_f32 v%d, v%d" % (S0, S0))
        for j in range(18):
            A("v_cvt_pk_bf16_f32 v%d, v%d, v%d" % (RAW + j, X + 2 * j, X + 2 * j + 1))
        round_bf16(A, S0, S0)
        A("v_rcp_f32 v%d, v%d" % (RSV, S0))
        unpack(RAW)
        for j in range(0, N, 2):
            pk("mul", X + j, X + j, RSV, "op_sel_hi:[1,0]")
        for j in range(18):
            A("v_cvt_pk_bf16_f32 v%d, v%d, v%d" % (RAW + j, X + 2 * j, X + 2 * j + 1))
    A("s_waitcnt vmcnt(%d)" % cfg.ln1)
    stamp_mid(A, cfg, 0)
    unpack(RAW)
    layernorm()
    stamp_mid(A, cfg, 2)
    A("v_mov_b32 v118, v%d" % MB)
    A("v_mov_b32 v119, v%d" % RSV)
    A("v_lshlrev_b32 v9, 3, v3")
    A("s_lshl_b32 s40, s21, 8")
    A("v_cmp_eq_u32 vcc, 0, v4")
    A("s_and_saveexec_b64 s[42:43], vcc")
    A("buffer_store_dwordx2 v[118:119], v9, s[12:15], s40 offen")
    A("s_mov_b64 exec, s[42:43]")
    A("s_waitcnt lgkmcnt(0)")
    A("s_mov_b32 s56, s52\ns_mov_b32 s57, s53\ns_mov_b32 s58, s55\ns_mov_b32 s59, 0x00020000")
    A("buffer_load_dword v121, v120, s[56:59], 0 offen")
    srd(A, 48, 26, SZ_FL, WS_FL)
    for i in range(4): A("v_mov_b32 v%d, 0" % (124 + i))
    A("v_lshlrev_b32 v122, 4, v0")
    A("s_lshl_b32 s40, s21, 9")
    A("v_cmp_gt_u32 vcc, 32, v0")
    A("s_and_saveexec_b64 s[42:43], vcc")
    A("s_cbranch_execz k1_nof")
    A("buffer_store_dwordx4 v[124:127], v122, s[48:51], s40 offen")
    A.label("k1_nof")
    A("s_mov_b64 exec, s[42:43]")
    unpack(RAW)
    layernorm()
    stamp_mid(A, cfg, 3)
    for j in range(9):
        A("ds_write_b64 v6, %s offset:%d" % (v(RAW + 2 * j, 2), j * 128))
    A("s_waitcnt lgkmcnt(0)")
    A("s_barrier")
    A("s_lshr_b32 s36, s21, 1")
    A("s_mul_i32 s36, s36, 36")
    A("s_add_u32 s36, s36, s20")
    A("s_mul_i32 s36, s36, %d" % PAIR)
    for n in range(5):
        A("ds_read_b64_tr_b16 %s, v7 offset:%d" % (v(X + 4 * n, 2), n * 256))
        A("ds_read_b64_tr_b16 %s, v7 offset:%d" % (v(X + 4 * n + 2, 2), n * 256 + 16 * RS))
    for n in range(5):
        if n == 4:
            A("s_cmp_ge_u32 s20, 4")
            A("s_cbranch_scc1 k1_ln_done")
        A("s_waitcnt lgkmcnt(%d)" % (8 - 2 * n))
        A("buffer_store_dwordx4 %s, v116, s[8:11], s36 offen %s" % (v(X + 4 * n, 4), cfg.st1))
        A("s_add_u32 s36, s36, %d" % (8 * PAIR))
    A.label("k1_ln_done")
    stamp_mid(A, cfg, 1)
    lnpf(cfg.ln2)
    stamp_end(A, cfg, 0, 26, 20, 2)
    A("s_endpgm")
    A.label("k1_cpf")
    if cfg.codepf:
        A("s_cmp_ge_u32 s21, 8")
        A("s_cbranch_scc1 k1_end")
        A("s_getpc_b64 s[40:41]")
        A.label("k1_pc")
        A("s_sub_u32 s40, s40, k1_pc-k1_kernel")
        A("s_subb_u32 s41, s41, 0")
        A("v_subrev_u32 v3, 512, v0")
        A("v_lshlrev_b32 v3, 7, v3")
        A("s_mov_b32 s42, text_end-k1_kernel")
        for r in range(2):
            A("v_cmp_gt_u32 vcc, s42, v3")
            A("s_and_saveexec_b64 s[44:45], vcc")
            A("s_cbranch_execz k1_end")
            A("global_load_dword v%d, v3, s[40:41]" % (4 + r))
            A("v_add_u32 v3, 32768, v3")
    A.label("k1_end")
    A("s_endpgm")
    return NS * SLOT + 1024

def gen_k2(A, cfg):
    NS = 5; SLOT = 28672; KT = 32
    w1_done = min(2304, (cfg.ln1 + cfg.ln2) * 512 + (768 if cfg.g1pf else 0))
    kernel_head(A, "k2_kernel")
    stamp_begin(A, cfg)
    A("s_cmp_ge_u32 s2, 256")
    A("s_cbranch_scc1 k2_end")
    A("s_load_dwordx4 s[24:27], s[0:1], %d" % K_W1)
    A("s_load_dwordx2 s[64:65], s[0:1], %d" % K_W2)
    A("s_load_dwordx4 s[60:63], s[0:1], %d" % K_CRE)
    A("s_load_dwordx2 s[28:29], s[0:1], %d" % K_WS)
    A("v_lshrrev_b32 v1, 6, v0")
    A("v_and_b32 v2, 63, v0")
    A("v_readfirstlane_b32 s20, v1")
    A("s_and_b32 s3, s2, 7")
    A("s_lshr_b32 s21, s2, 3")
    A("s_cmp_ge_u32 s21, 27")
    A("s_cbranch_scc1 k2_scan")
    A("s_mul_i32 s3, s3, 27")
    A("s_add_u32 s3, s3, s21")
    A("s_mul_i32 s21, s3, 43691")
    A("s_lshr_b32 s21, s21, 18")
    A("s_mul_i32 s22, s21, 6")
    A("s_sub_u32 s22, s3, s22")
    A("s_cmp_lt_u32 s20, 4")
    A("s_cbranch_scc1 k2_cons")
    A("s_sub_u32 s23, s20, 4")
    A("v_lshrrev_b32 v3, 4, v2")
    A("v_and_b32 v4, 15, v2")
    A("s_movk_i32 s30, 9216")
    A("v_mul_lo_u32 v5, v3, s30")
    A("v_lshlrev_b32 v6, 1, v3")
    A("v_xor_b32 v7, v4, v6")
    A("v_xor_b32 v8, 8, v7")
    A("v_lshl_add_u32 v10, v7, 4, v5")
    A("v_lshl_add_u32 v11, v8, 4, v5")
    D = 4 * 9216 - 1024
    A("v_add_u32 v12, 0x%x, v10" % (2 * D))
    A("v_add_u32 v13, 0x%x, v11" % (3 * D))
    A("v_add_u32 v11, 0x%x, v11" % (1 * D))
    frag_lane_off(A, 17, 18, 2, 19)
    A("v_mov_b32 v14, v17")
    A("v_add_u32 v15, %d, v18" % ((-1024) & 0xffffffff))
    A("v_add_u32 v16, %d, v17" % (PAIR - 2048))
    A("s_bitcmp1_b32 s23, 0")
    A("s_cbranch_scc0 k2_qe")
    A("v_mov_b32 v14, v18")
    A("v_add_u32 v15, %d, v17" % (PAIR - 1024))
    A("v_add_u32 v16, %d, v18" % (PAIR - 2048))
    A.label("k2_qe")
    A("s_mul_i32 s31, s23, %d" % (16 * 9216))
    A("s_lshl_b32 s32, s21, 8")
    A("s_add_u32 s31, s31, s32")
    A("s_mul_i32 s32, s22, 6")
    A("s_mul_i32 s33, s23, 3")
    A("s_lshr_b32 s33, s33, 1")
    A("s_add_u32 s32, s32, s33")
    A("s_mul_i32 s32, s32, %d" % PAIR)
    A("s_lshl_b32 s33, s23, 12")
    A("s_mul_i32 s34, s23, 3072")
    A("s_add_u32 s34, s34, 16384")
    A("s_mov_b32 s35, 0")
    A("s_waitcnt lgkmcnt(0)")
    srd(A, 4, 24, SZ_W)
    srd(A, 8, 28, SZ_HF, WS_HF)
    R = cfg.rot2
    def rot_next():
        if R == 6:
            A("s_add_u32 s42, s40, 6")
            A("s_cmp_lt_u32 s42, 32")
            A("s_cselect_b32 s42, s42, s45")
            A("s_cmp_eq_u32 s45, s22")
            A("s_cselect_b32 s42, s42, s40")
            A("s_mul_i32 s31, s42, %d" % (64 * 9216))
            A("s_add_u32 s31, s31, s38")
            A("s_mul_i32 s32, s42, %d" % (36 * PAIR))
            A("s_add_u32 s32, s32, s39")
            A("s_add_u32 s40, s40, 1")
            A("s_add_u32 s45, s45, 1")
            A("s_cmp_eq_u32 s45, 6")
            A("s_cselect_b32 s45, 0, s45")
            return
        A("s_add_u32 s42, s40, s41")
        A("s_and_b32 s42, s42, %d" % (R - 1))
        if cfg.adv2:
            A("s_cselect_b32 s42, 0, %d" % cfg.adv2)
            A("s_mov_b32 s44, s42")
            A("s_add_u32 s42, s42, s40")
            A("s_and_b32 s42, s42, 31")
        else:
            A("s_andn2_b32 s43, s40, %d" % (R - 1))
            A("s_or_b32 s42, s42, s43")
        A("s_and_b32 s43, s42, %d" % cfg.wrapw)
        A("s_mul_i32 s31, s43, %d" % (64 * 9216))
        A("s_add_u32 s31, s31, s38")
        A("s_and_b32 s43, s42, %d" % cfg.wrapx)
        A("s_mul_i32 s32, s43, %d" % (36 * PAIR))
        A("s_add_u32 s32, s32, s39")
        A("s_add_u32 s40, s40, 1")
    if R > 1:
        A("s_mov_b32 s38, s31\ns_mov_b32 s39, s32\ns_mov_b32 s40, 0\ns_mov_b32 s45, 0")
        A("s_mul_i32 s41, s22, %d" % cfg.ra)
        A("s_mul_i32 s42, s21, %d" % cfg.rb)
        A("s_add_u32 s41, s41, s42")
        rot_next()
    def issue():
        A("s_add_u32 m0, s35, s33")
        A("s_add_u32 s36, s35, s34")
        if cfg.leadnt:
            l1 = A.newlabel("k2_nt"); l2 = A.newlabel("k2_nt")
            A("s_cmp_eq_u32 s44, 0")
            A("s_cbranch_scc1 %s" % l1)
            for m in range(4):
                A("buffer_load_dwordx4 v%d, s[4:7], s31 offen offset:%d nt lds" % (10 + m, m * 1024))
            A("s_branch %s" % l2)
            A.label(l1)
        for m in range(4):
            A("buffer_load_dwordx4 v%d, s[4:7], s31 offen offset:%d lds" % (10 + m, m * 1024))
        if cfg.leadnt: A.label(l2)
        A("s_mov_b32 m0, s36")
        A("s_add_u32 s31, s31, %d" % (64 * 9216))
        for m in range(3):
            A("buffer_load_dwordx4 v%d, s[8:11], s32 offen offset:%d lds" % (14 + m, m * 1024))
        A("s_add_u32 s32, s32, %d" % (36 * PAIR))
        if R > 1: rot_next()
        A(slot_advance(35, SLOT, NS))
    pos_b2 = w1_done
    pos_sc = pos_b2 + 648 * len(cfg.b2)
    if cfg.skipw1: pos_sc = max(pos_sc, L_C)
    pos_tail = pos_sc + (cfg.sce + cfg.scl + sum(cfg.scm)) * 320
    cfg.pos_b3 = pos_tail + (864 if cfg.g2pf else 0)
    def tailpf():
        if not cfg.g2pf: return 0
        A("s_lshl_b32 s46, s3, 2")
        A("s_add_u32 s46, s46, s23")
        A("s_add_u32 s46, s46, %d" % pos_tail)
        pf_decode(A, 46, 16, 47, 48, 24, 60, 62, 64, lo=pos_tail)
        A("v_lshlrev_b32 v20, 7, v2")
        A("buffer_load_dword v21, v20, s[16:19], s47 offen")
        return 1
    loader_loop(A, "k2", issue, 7, cfg.d2, KT, 37, after_last_issue=tailpf)
    stamp_end(A, cfg, 1, 28, 20, 2)
    A("s_endpgm")
    A.label("k2_cons")
    A("s_and_b32 s23, s20, 1")
    A("s_lshr_b32 s30, s20, 1")
    A("v_lshrrev_b32 v3, 4, v2")
    A("v_lshlrev_b32 v4, 3, v3")
    A("s_lshl_b32 s31, s21, 8")
    A("s_lshl_b32 s32, s23, 7")
    A("s_add_u32 s31, s31, s32")
    A("v_lshrrev_b32 v5, 2, v2")
    A("v_and_b32 v6, 7, v5")
    A("v_and_b32 v7, 3, v2")
    A("v_lshlrev_b32 v7, 3, v7")
    A("v_lshl_add_u32 v7, v5, 8, v7")
    A("s_lshl_b32 s32, s23, 2")
    BW = 10; CW = 15; BIAS = 20
    for aa in range(4):
        A("s_add_u32 s33, s32, %d" % aa)
        A("v_xor_b32 v8, s33, v6")
        A("v_lshl_add_u32 v%d, v8, 5, v7" % (BW + aa))
    A("s_mul_i32 s33, s30, 6144")
    A("s_add_u32 s33, s33, 16384")
    A("v_lshlrev_b32 v8, 4, v2")
    A("v_add_u32 v%d, s33, v8" % (BW + 4))
    for i in range(5):
        A("v_mov_b32 v%d, v%d" % (CW + i, BW + i))
    ACC = 32; SETS = [80, 108]
    A("s_mov_b32 s35, 0")
    A("s_waitcnt lgkmcnt(0)")
    srd(A, 12, 28, SZ_UF, WS_UF)
    srd(A, 16, 26, 9216)
    for aa in range(4):
        A("buffer_load_dwordx2 %s, v4, s[16:19], s31 offen offset:%d" % (v(BIAS + 2 * aa, 2), aa * 32))
    A("s_lshl_b32 s31, s21, 1")
    A("s_add_u32 s31, s31, s23")
    A("s_mul_i32 s31, s31, 36")
    A("s_mul_i32 s32, s22, 6")
    A("s_add_u32 s31, s31, s32")
    A("s_mul_i32 s32, s30, 3")
    A("s_add_u32 s31, s31, s32")
    A("s_mul_i32 s31, s31, %d" % PAIR)
    A("s_add_u32 s32, s31, %d" % PAIR)
    A("s_add_u32 s33, s32, %d" % PAIR)
    frag_lane_off(A, 8, 9, 2, 3)
    c1 = -2.0 * math.sqrt(2.0 / math.pi) * math.log2(math.e)
    c2 = c1 * 0.044715
    A("v_mov_b32 v28, 0x%x" % f2u(c1))
    A("v_mov_b32 v29, 0x%x" % f2u(c2))
    for i in range(48):
        A("v_mov_b32 v%d, 0" % (ACC + i))
    def reads(st, ks):
        b = SETS[st]
        P = lambda aa: ["ds_read_b64_tr_b16 %s, v%d offset:%d" % (v(b + 4 * aa, 2), CW + aa, ks * 8192),
                        "ds_read_b64_tr_b16 %s, v%d offset:%d" % (v(b + 4 * aa + 2, 2), CW + aa, ks * 8192 + 4096)]
        Q = lambda xb: ["ds_read_b128 %s, v%d offset:%d" % (v(b + 16 + 4 * xb, 4), CW + 4, xb * 2048 + ks * 1024)]
        return P(0) + Q(0) + Q(1) + Q(2) + P(1) + P(2) + P(3)
    def mfmas(st):
        b = SETS[st]; m = []
        for aa in range(4):
            for xb in range(3):
                d = v(ACC + (aa * 3 + xb) * 4, 4)
                need = max(2 + xb, 4 + 2 * aa if aa else 0)
                m.append(("%s %s, %s, %s, %s" % (MFMA, d, v(b + 4 * aa, 4), v(b + 16 + 4 * xb, 4), d), need))
        return m
    def addr_update():
        U = lambda i: "v_add_u32 v%d, s35, v%d" % (CW + i, BW + i)
        sa = slot_advance(35, SLOT, NS).split("\n")
        return [(0, sa[0]), (1, sa[1]), (2, sa[2]), (4, U(0)), (5, U(4)), (7, U(1)), (9, U(2)), (11, U(3))]
    extraB = []
    if cfg.b2:
        A("s_add_u32 s38, s21, 2")
        A("s_lshr_b32 s38, s38, 2")
        A("s_sub_u32 s38, s21, s38")
        A("s_mul_i32 s39, s22, 27")
        A("s_add_u32 s38, s38, s39")
        A("s_and_b32 s39, s21, 3")
        A("v_lshlrev_b32 v30, 7, v2")
        for bi, (first, rate) in enumerate(cfg.b2):
            d = 44 + 8 * bi
            A("s_lshl_b32 s40, s38, 2")
            A("s_add_u32 s40, s40, s20")
            A("s_add_u32 s40, s40, %d" % (pos_b2 + 648 * bi))
            pf_decode(A, 40, d, d + 4, 41, 24, 60, 62, 64, lo=pos_b2 + 648 * bi)
            A("s_mul_i32 s%d, s38, %d" % (d + 5, (65536 + rate - 1) // rate))
            A("s_lshr_b32 s%d, s%d, 16" % (d + 5, d + 5))
            A("s_sub_u32 s%d, %d, s%d" % (d + 5, KT - 1 - first, d + 5))
            A("s_cmp_eq_u32 s39, 1")
            A("s_cselect_b32 s%d, 1000, s%d" % (d + 5, d + 5))
            extraB.append((3 + 2 * bi, "s_cmp_lg_u32 s37, s%d\ns_cbranch_scc1 k2_nb%d\nbuffer_load_dword v31, v30, s[%d:%d], s%d offen\nk2_nb%d:" % (d + 5, bi, d, d + 3, d + 4, bi)))
    consumer_loop(A, "k2", reads, mfmas, addr_update, KT, 37, cfg=cfg, extraB=extraB, early=(cfg.d2 == 4), pts=cfg.pts2)
    A("s_waitcnt vmcnt(0)")
    BF = 104
    for k in range(8):
        A("v_lshlrev_b32 v%d, 16, v%d" % (BF + 2 * k, BIAS + k))
        A("v_and_b32 v%d, 0xffff0000, v%d" % (BF + 2 * k + 1, BIAS + k))
    T = 80
    for ap in range(2):
        for xb in range(3):
            prs = [ACC + ((ap * 2 + h) * 3 + xb) * 4 + 2 * q for h in range(2) for q in range(2)]
            for i, x in enumerate(prs): A("v_pk_add_f32 %s, %s, %s" % (v(x, 2), v(x, 2), v(BF + ap * 8 + 2 * i, 2)))
            for i, x in enumerate(prs): A("v_pk_mul_f32 %s, %s, %s" % (v(T + 2 * i, 2), v(x, 2), v(x, 2)))
            for i, x in enumerate(prs): A("v_pk_fma_f32 %s, %s, v[28:29], v[28:29] op_sel:[0,1,0] op_sel_hi:[1,1,0]" % (v(T + 2 * i, 2), v(T + 2 * i, 2)))
            for i, x in enumerate(prs): A("v_pk_mul_f32 %s, %s, %s" % (v(T + 2 * i, 2), v(T + 2 * i, 2), v(x, 2)))
            for i in range(8): A("v_exp_f32 v%d, v%d" % (T + i, T + i))
            for i, x in enumerate(prs): A("v_pk_add_f32 %s, %s, 1.0 op_sel_hi:[1,0]" % (v(T + 2 * i, 2), v(T + 2 * i, 2)))
            for i in range(8): A("v_rcp_f32 v%d, v%d" % (T + i, T + i))
            for i, x in enumerate(prs): A("v_pk_mul_f32 %s, %s, %s" % (v(T + 2 * i, 2), v(T + 2 * i, 2), v(x, 2)))
            O = 96 + 4 * ((ap * 3 + xb) % 2)
            for i in range(4):
                A("v_cvt_pk_bf16_f32 v%d, v%d, v%d" % (O + i, T + 2 * i, T + 2 * i + 1))
            A("buffer_store_dwordx4 %s, v%d, s[12:15], s%d offen %s" % (v(O, 4), 8 + ap, 31 + xb, cfg.st2))
    stamp_end(A, cfg, 1, 28, 20, 2)
    A("s_endpgm")
    A.label("k2_scan")
    A("s_sub_u32 s21, s21, 27")
    A("s_lshl_b32 s21, s21, 3")
    A("s_add_u32 s21, s21, s3")
    A("s_load_dwordx4 s[40:43], s[0:1], %d" % K_LRE)
    A("s_load_dwordx2 s[52:53], s[0:1], %d" % K_LOGDT)
    A("v_lshlrev_b32 v56, 7, v2")
    A("s_lshl_b32 s66, s21, 3")
    A("s_add_u32 s66, s66, s20")
    A("s_add_u32 s66, s66, %d" % pos_sc)
    def scpf():
        pf_decode(A, 66, 68, 67, 54, 24, 60, 62, 64, lo=pos_sc)
        A("buffer_load_dword v57, v56, s[68:71], s67 offen")
        A("s_add_u32 s66, s66, 320")
    A("s_waitcnt lgkmcnt(0)")
    A("s_cmp_lt_u32 s21, 36")
    A("s_cbranch_scc1 k2_scan2")
    for _ in range(cfg.sce + cfg.scl + sum(cfg.scm)): scpf()
    stamp_end(A, cfg, 1, 28, 20, 2)
    A("s_endpgm")
    A.label("k2_scan2")
    A("v_and_b32 v3, 7, v0")
    A("v_lshrrev_b32 v4, 3, v0")
    A("v_lshlrev_b32 v5, 10, v4")
    A("v_and_b32 v6, 3, v3")
    A("v_lshl_add_u32 v5, v6, 4, v5")
    A("v_lshrrev_b32 v6, 2, v3")
    A("v_lshl_add_u32 v5, v6, 16, v5")
    A("s_lshl_b32 s22, s21, 17")
    srd(A, 4, 28, SZ_G, WS_G)
    srd(A, 8, 28, SZ_ST, WS_ST)
    srd(A, 12, 28, SZ_HT, WS_HT)
    srd(A, 56, 40, 1152)
    srd(A, 44, 42, 1152)
    srd(A, 72, 52, 1152)
    A("v_lshlrev_b32 v7, 5, v0")
    A("buffer_load_dwordx4 v[48:51], v7, s[8:11], 0 offen")
    A("buffer_load_dwordx4 v[52:55], v7, s[8:11], 0 offen offset:16")
    G0 = 64; RW = 192
    for j in range(16):
        A("buffer_load_dwordx4 %s, v5, s[4:7], s22 offen offset:%d" % (v(RW + 4 * j, 4), j * 64))
    A("v_lshlrev_b32 v9, 2, v3")
    A("s_lshl_b32 s32, s21, 5")
    A("buffer_load_dword v10, v9, s[56:59], s32 offen")
    A("buffer_load_dword v11, v9, s[44:47], s32 offen")
    A("buffer_load_dword v12, v9, s[72:75], s32 offen")
    for _ in range(cfg.sce): scpf()
    E = cfg.sce
    LDS_RS = 0; LDS_AGG = 9216; LDS_WAGG = LDS_AGG + 8192; LDS_OUT = 0
    A("v_mul_u32_u24 v16, 144, v4")
    A("v_lshl_add_u32 v17, v3, 4, v16")
    A("s_waitcnt vmcnt(%d)" % (19 + E))
    A("v_mov_b32 v48, v49")
    A("v_mov_b32 v49, v51")
    A("v_mov_b32 v50, v53")
    A("v_mov_b32 v51, v55")
    A("ds_write_b128 v17, v[48:51]")
    A("s_waitcnt lgkmcnt(0)")
    RSV = 18
    for k in range(8):
        A("ds_read_b128 %s, v16 offset:%d" % (v(RSV + 4 * k, 4), k * 16))
    A("s_waitcnt lgkmcnt(0)")
    for j in range(16):
        A("s_waitcnt vmcnt(%d)" % (15 - j + 3 + E))
        for e in range(2):
            g = G0 + 4 * (2 * j + e)
            for c in range(2):
                A("v_lshlrev_b32 v%d, 16, v%d" % (g + 2 * c, RW + 4 * j + 2 * e + c))
                A("v_and_b32 v%d, 0xffff0000, v%d" % (g + 2 * c + 1, RW + 4 * j + 2 * e + c))
        for e in range(2):
            g = G0 + 4 * (2 * j + e)
            for c in range(2):
                A("v_pk_mul_f32 %s, %s, %s %s" % (v(g + 2 * c, 2), v(g + 2 * c, 2), v(RSV + 2 * j, 2), "op_sel:[0,1]" if e else "op_sel_hi:[1,0]"))
    A("s_waitcnt vmcnt(%d)" % E)
    for _ in range(cfg.scm[0]): scpf()
    L = [18, 20]; L32 = [22, 24]; L256 = [26, 28]; C2 = [30, 32]
    A("s_mov_b32 s34, 0x%x" % f2u(math.log2(math.e)))
    A("s_mov_b32 s35, 0x%x" % f2u(1.0 / (2 * math.pi)))
    def sq(d, s_):
        A("v_mul_f32 v40, v%d, v%d" % (s_ + 1, s_ + 1))
        A("v_mul_f32 v41, v%d, v%d" % (s_, s_ + 1))
        A("v_fma_f32 v%d, v%d, v%d, -v40" % (d, s_, s_))
        A("v_add_f32 v%d, v41, v41" % (d + 1))
    for c in range(2):
        LRE, LIM, DT = 34, 35, 36
        for (d, s_) in ((LRE, 10), (LIM, 11), (DT, 12)):
            if c == 0: A("v_lshlrev_b32 v%d, 16, v%d" % (d, s_))
            else: A("v_and_b32 v%d, 0xffff0000, v%d" % (d, s_))
        A("v_mul_f32 v36, s34, v36")
        A("v_exp_f32 v36, v36")
        A("s_nop 0")
        round_bf16(A, DT, DT)
        A("v_mul_f32 v37, v36, v34")
        A("v_mul_f32 v38, v36, v35")
        A("v_mul_f32 v37, s34, v37")
        A("v_mul_f32 v38, s35, v38")
        A("v_exp_f32 v37, v37")
        A("v_fract_f32 v38, v38")
        A("v_cos_f32 v39, v38")
        A("v_sin_f32 v38, v38")
        A("s_nop 0")
        A("v_mul_f32 v%d, v37, v39" % L[c])
        A("v_mul_f32 v%d, v37, v38" % (L[c] + 1))
        sq(L32[c], L[c])
        for _ in range(4): sq(L32[c], L32[c])
        sq(L256[c], L32[c])
        for _ in range(2): sq(L256[c], L256[c])
        A("v_add_f32 v37, -1.0, v%d" % L[c])
        A("v_mul_f32 v38, v34, v34")
        A("v_fmac_f32 v38, v35, v35")
        A("v_rcp_f32 v38, v38")
        A("v_mul_f32 v39, v37, v34")
        A("v_fmac_f32 v39, v%d, v35" % (L[c] + 1))
        A("v_mul_f32 v40, v%d, v34" % (L[c] + 1))
        A("v_fma_f32 v40, -v37, v35, v40")
        A("v_add_f32 v38, v38, v38")
        A("v_mul_f32 v%d, v39, v38" % C2[c])
        A("v_mul_f32 v%d, v40, v38" % (C2[c] + 1))
    H = 40
    T = 44
    A("v_lshlrev_b32 v15, 4, v3")
    for i in range(4): A("v_mov_b32 v%d, v%d" % (H + i, G0 + i))
    def step(Lr, src):
        for c in range(2):
            A("v_pk_fma_f32 %s, %s, %s, %s op_sel_hi:[0,1,1]" % (v(T + 2 * c, 2), v(Lr[c], 2), v(H + 2 * c, 2), v(src + 2 * c, 2)))
        for c in range(2):
            A("v_pk_fma_f32 %s, %s, %s, %s op_sel:[1,1,0] op_sel_hi:[1,0,1] neg_lo:[1,0,0]" % (v(H + 2 * c, 2), v(Lr[c], 2), v(H + 2 * c, 2), v(T + 2 * c, 2)))
    for t in range(1, 32):
        step(L, G0 + 4 * t)
    stamp_mid(A, cfg, 0)
    for _ in range(cfg.scm[1]): scpf()
    A("v_lshlrev_b32 v17, 4, v0")
    A("ds_write_b128 v17, %s offset:%d" % (v(H, 4), LDS_AGG))
    A("s_lshl_b32 s36, s20, 10")
    A("v_add_u32 v17, s36, v15")
    A("s_waitcnt lgkmcnt(0)")
    AG = 192; WG_ = 224
    for j in range(8):
        A("ds_read_b128 %s, v17 offset:%d" % (v(AG + 4 * j, 4), LDS_AGG + j * 128))
    A("s_waitcnt lgkmcnt(7)")
    for i in range(4): A("v_mov_b32 v%d, v%d" % (H + i, AG + i))
    for j in range(1, 8):
        A("s_waitcnt lgkmcnt(%d)" % (7 - j))
        step(L32, AG + 4 * j)
    A("s_lshl_b32 s36, s20, 7")
    A("v_add_u32 v17, s36, v15")
    A("ds_write_b128 v17, %s offset:%d" % (v(H, 4), LDS_WAGG))
    A("s_waitcnt lgkmcnt(0)")
    A("s_barrier")
    for j in range(7):
        A("ds_read_b128 %s, v15 offset:%d" % (v(WG_ + 4 * j, 4), LDS_WAGG + j * 128))
    for i in range(4): A("v_mov_b32 v%d, 0" % (H + i))
    A("v_lshrrev_b32 v17, 3, v2")
    A("s_waitcnt lgkmcnt(0)")
    for j in range(7):
        A("s_cmp_le_u32 s20, %d" % j)
        A("s_cbranch_scc1 k2_wdone")
        step(L256, WG_ + 4 * j)
    A.label("k2_wdone")
    for j in range(7):
        A("v_cmpx_lt_u32 vcc, %d, v17" % j)
        step(L32, AG + 4 * j)
    A("s_mov_b64 exec, -1")
    A("s_barrier")
    stamp_mid(A, cfg, 2)
    for _ in range(cfg.scm[2]): scpf()
    A("s_mul_i32 s36, s20, %d" % (32 * 528))
    A("v_mul_u32_u24 v48, 528, v3")
    A("v_lshl_add_u32 v48, v17, 6, v48")
    A("v_add_u32 v48, s36, v48")
    A("v_lshrrev_b32 v49, 5, v2")
    A("v_and_b32 v50, 31, v2")
    A("v_lshlrev_b32 v50, 4, v50")
    A("v_mul_u32_u24 v51, 528, v49")
    A("v_add3_u32 v51, v51, v50, s36")
    A("v_lshl_add_u32 v50, v49, 13, v50")
    A("s_lshr_b32 s37, s21, 1")
    A("s_lshl_b32 s37, s37, 5")
    A("s_and_b32 s38, s21, 1")
    A("s_lshl_b32 s38, s38, 3")
    A("s_add_u32 s37, s37, s38")
    A("s_lshl_b32 s37, s37, 12")
    A("s_lshl_b32 s38, s20, 9")
    A("s_add_u32 s37, s37, s38")
    PK = 192
    for blk in range(4):
        for k in range(8):
            g = G0 + 4 * (blk * 8 + k)
            step(L, g)
            for c in range(2):
                A("v_pk_mul_f32 %s, %s, %s op_sel_hi:[0,1] neg_hi:[1,0]" % (v(g + 2 * c, 2), v(C2[c], 2), v(H + 2 * c, 2)))
            for c in range(2):
                A("v_pk_fma_f32 %s, %s, %s, %s op_sel:[1,1,0] op_sel_hi:[1,0,1] neg_lo:[1,0,0] neg_hi:[1,0,0]" % (v(g + 2 * c, 2), v(C2[c], 2), v(H + 2 * c, 2), v(g + 2 * c, 2)))
        pkb = PK + blk * 16
        for q in range(4):
            for k in range(4):
                g = G0 + 4 * (blk * 8 + 2 * k)
                A("v_cvt_pk_bf16_f32 v%d, v%d, v%d" % (pkb + 4 * q + k, g + q, g + 4 + q))
        for q in range(4):
            A("ds_write_b128 v48, %s offset:%d" % (v(pkb + 4 * q, 4), q * 8 * 528 + blk * 16))
    A("s_waitcnt lgkmcnt(0)")
    stamp_mid(A, cfg, 3)
    for n in range(16):
        A("ds_read_b128 %s, v51 offset:%d" % (v(G0 + 4 * n, 4), n * 2 * 528))
        if n == 7: A("s_waitcnt lgkmcnt(0)")
    for n in range(16):
        q = n >> 2; k = n & 3; c = q >> 1; part = q & 1
        row = 16 * (k & 1) + 4 * (k >> 1) + c + 576 * part
        if n >= 8: A("s_waitcnt lgkmcnt(%d)" % (15 - n))
        A("s_add_u32 s38, s37, %d" % (row * 4096))
        A("buffer_store_dwordx4 %s, v50, s[12:15], s38 offen %s" % (v(G0 + 4 * n, 4), cfg.st2s))
    stamp_mid(A, cfg, 1)
    for _ in range(cfg.scl): scpf()
    stamp_end(A, cfg, 1, 28, 20, 2)
    A.label("k2_end")
    A("s_endpgm")
    return NS * SLOT

def gen_k3(A, cfg):
    NS = 4; SLOT = 34816
    kernel_head(A, "k3_kernel")
    stamp_begin(A, cfg)
    A("s_cmp_ge_u32 s2, 256")
    A("s_cbranch_scc1 k3_end")
    A("s_load_dwordx8 s[24:31], s[0:1], %d" % K_W2)
    A("s_load_dwordx4 s[56:59], s[0:1], %d" % K_CRE)
    A("s_load_dwordx2 s[32:33], s[0:1], %d" % K_WS)
    A("s_load_dwordx2 s[60:61], s[0:1], %d" % K_X)
    A("s_load_dwordx2 s[62:63], s[0:1], %d" % K_DSKIP)
    A("v_lshrrev_b32 v1, 6, v0")
    A("v_and_b32 v2, 63, v0")
    A("v_readfirstlane_b32 s20, v1")
    A("s_and_b32 s3, s2, 7")
    A("s_lshr_b32 s21, s2, 3")
    A("s_lshr_b32 s22, s3, 1")
    A("s_and_b32 s3, s3, 1")
    A("s_lshl_b32 s3, s3, 3")
    A("s_lshr_b32 s23, s21, 2")
    A("s_add_u32 s23, s23, s3")
    A("s_and_b32 s21, s21, 3")
    A("s_cmp_ge_u32 s22, 2")
    A("s_cselect_b32 s35, 22, 23")
    KS = cfg.kstep
    if KS == 4:
        A("s_mov_b32 s34, s22")
    else:
        A("s_mul_i32 s34, s22, 23")
        A("s_cmp_eq_u32 s22, 3")
        A("s_cselect_b32 s34, 68, s34")
    A("s_cmp_lt_u32 s20, 4")
    A("s_cbranch_scc1 k3_cons")
    A("s_sub_u32 s36, s20, 4")
    A("v_lshrrev_b32 v3, 4, v2")
    A("v_and_b32 v4, 15, v2")
    A("v_lshlrev_b32 v5, 12, v3")
    A("v_lshlrev_b32 v6, 1, v3")
    A("v_xor_b32 v7, v4, v6")
    A("v_xor_b32 v8, 8, v7")
    A("v_lshl_add_u32 v10, v7, 4, v5")
    A("v_lshl_add_u32 v11, v8, 4, v5")
    D = 4 * 4096 - 1024
    A("v_add_u32 v12, 0x%x, v10" % (2 * D))
    A("v_add_u32 v13, 0x%x, v11" % (3 * D))
    A("v_add_u32 v11, 0x%x, v11" % (1 * D))
    frag_lane_off(A, 14, 19, 2, 3)
    A("v_add_u32 v15, %d, v19" % ((-1024) & 0xffffffff))
    A("v_add_u32 v16, %d, v14" % (PAIR - 2048))
    A("v_add_u32 v17, %d, v19" % ((PAIR - 3072) & 0xffffffff))
    A("v_mov_b32 v18, v14")
    A("s_cmp_eq_u32 s36, 1")
    A("s_cbranch_scc0 k3_x0")
    A("v_mov_b32 v18, v19")
    A.label("k3_x0")
    A("s_lshl_b32 s38, s34, 6")
    A("s_lshl_b32 s39, s36, 4")
    A("s_add_u32 s38, s38, s39")
    A("s_lshl_b32 s38, s38, 12")
    A("s_lshl_b32 s39, s23, 8")
    A("s_add_u32 s38, s38, s39")
    A("s_mul_i32 s40, s34, 36")
    A("s_mul_i32 s41, s21, 9")
    A("s_add_u32 s40, s40, s41")
    A("s_mul_i32 s40, s40, %d" % PAIR)
    A("s_add_u32 s42, s36, 16")
    A("s_lshl_b32 s41, s42, 10")
    A("s_add_u32 s45, s41, 16384")
    A("s_add_u32 s41, s40, %d" % (8 * PAIR))
    A("s_mul_i32 s43, s36, %d" % (2 * PAIR))
    A("s_add_u32 s40, s40, s43")
    A("s_lshl_b32 s43, s36, 12")
    A("s_add_u32 s44, s43, 16384")
    A("s_mov_b32 s46, 0")
    A("s_mov_b32 s47, %d" % (KS * 36 * PAIR))
    A("s_mov_b32 s48, s34")
    A("s_add_u32 s101, s21, s23")
    A("s_and_b32 s101, s101, 3")
    A("s_cmp_eq_u32 s22, 3")
    A("s_cselect_b32 s101, 7, s101")
    A("s_waitcnt lgkmcnt(0)")
    srd(A, 4, 24, SZ_W)
    srd(A, 8, 32, SZ_UF, WS_UF)
    first = [True]
    def cmode_setup():
        A("v_lshrrev_b32 v3, 3, v2")
        A("v_and_b32 v4, 7, v2")
        A("v_xor_b32 v4, v4, v3")
        A("s_movk_i32 s37, 1152")
        A("v_mul_lo_u32 v5, v3, s37")
        A("v_lshl_add_u32 v20, v4, 4, v5")
        DC = 8 * 1152 - 1024
        for m in range(1, 4):
            A("v_add_u32 v%d, 0x%x, v20" % (20 + m, m * DC))
        A("s_mul_i32 s49, s21, 144")
        A("s_lshl_b32 s50, s42, 3")
        A("s_add_u32 s50, s50, s49")
        A("s_mul_i32 s50, s50, 1152")
        A("s_lshl_b32 s51, s36, 5")
        A("s_add_u32 s49, s49, s51")
        A("s_mul_i32 s49, s49, 1152")
    def mk_issue(extra):
        cnt = [0]
        def issue():
            cnt[0] += 1
            if cnt[0] == cfg.d3 + 1:
                sw1 = A.newlabel("k3_sw"); sw2 = A.newlabel("k3_sw")
                A("s_sub_u32 s52, s48, 72")
                A("s_cmp_ge_u32 s52, %d" % KS)
                A("s_cbranch_scc1 %s" % sw1)
                srd(A, 4, 32, SZ_HT, WS_HT)
                srd(A, 8, 56, SZ_C)
                A("s_sub_u32 s38, s38, %d" % (72 * 262144))
                A("s_lshl_b32 s52, s52, 7")
                A("s_add_u32 s40, s49, s52")
                A("s_add_u32 s41, s50, s52")
                A("s_movk_i32 s47, %d" % (128 * KS))
                for m in range(4):
                    A("v_mov_b32 v%d, v%d" % (14 + m, 20 + m))
                A("v_mov_b32 v18, v20")
                A.label(sw1)
                A("s_sub_u32 s52, s48, 81")
                A("s_cmp_ge_u32 s52, %d" % KS)
                A("s_cbranch_scc1 %s" % sw2)
                srd(A, 8, 58, SZ_C)
                A("s_sub_u32 s40, s40, 1152")
                A("s_sub_u32 s41, s41, 1152")
                A.label(sw2)
            P_, Q_, X_ = (98, 99, 100) if cfg.rot3 else (38, 40, 41)
            if cfg.rot3:
                A("s_sub_u32 s98, s48, s34")
                A("s_andn2_b32 s99, s98, 3")
                A("s_sub_u32 s99, 0, s99")
                A("s_add_u32 s100, s98, 4")
                A("s_cmp_lt_u32 s100, s35")
                A("s_cselect_b32 s99, 4, s99")
                A("s_and_b32 s98, s98, 3")
                A("s_cmp_eq_u32 s98, s101")
                A("s_cselect_b32 s99, s99, 0")
                A("s_lshl_b32 s98, s99, 18")
                A("s_add_u32 s98, s98, s38")
                A("s_mul_i32 s100, s99, %d" % (36 * PAIR))
                A("s_add_u32 s99, s100, s40")
                A("s_add_u32 s100, s100, s41")
            A("s_add_u32 m0, s46, s43")
            A("s_add_u32 s52, s46, s44")
            for m in range(4):
                A("buffer_load_dwordx4 v%d, s[4:7], s%d offen offset:%d lds" % (10 + m, P_, m * 1024))
            A("s_mov_b32 m0, s52")
            A("s_add_u32 s38, s38, %d" % (KS * 262144))
            for m in range(4):
                A("buffer_load_dwordx4 v%d, s[8:11], s%d offen offset:%d lds" % (14 + m, Q_, m * 1024))
            A("s_add_u32 s40, s40, s47")
            if extra:
                A("s_add_u32 m0, s46, s45")
                A("s_nop 0")
                A("buffer_load_dwordx4 v18, s[8:11], s%d offen lds" % X_)
                A("s_add_u32 s41, s41, s47")
            A("s_add_u32 s48, s48, %d" % KS)
            A(slot_advance(46, SLOT, NS))
            if cnt[0] == 2:
                cmode_setup()
                fin_setup()
        return issue
    XR = 24; DS = 36; STT = 42; B2 = 72; BASE = 48; PR = 80; OWN = 120
    LDS_OWN = NS * SLOT
    def fin_setup():
        A("v_and_b32 v3, 15, v2")
        A("v_lshrrev_b32 v4, 4, v2")
        A("s_movk_i32 s76, 1152")
        A("v_mul_lo_u32 v6, v3, s76")
        A("v_lshl_add_u32 v6, v4, 3, v6")
        A("v_lshlrev_b32 v7, 1, v6")
        A("v_lshlrev_b32 v8, 3, v4")
        A("v_lshlrev_b32 v5, 3, v3")
        A("v_lshlrev_b32 v3, 1, v3")
        A("s_lshl_b32 s76, s23, 3")
        A("s_lshl_b32 s77, s22, 1")
        A("s_add_u32 s76, s76, s77")
        A("s_mul_i32 s77, s21, 9")
        A("s_add_u32 s77, s77, s36")
        A("s_lshl_b32 s77, s77, 5")
        A("s_mul_i32 s78, s76, %d" % (16 * 1152))
        A("s_add_u32 s78, s78, s77")
        A("s_add_u32 s79, s78, %d" % (16 * 1152))
        A("s_lshl_b32 s54, s78, 1")
        A("s_lshl_b32 s55, s79, 1")
        A("s_lshl_b32 s80, s76, 7")
        A("s_lshl_b32 s81, s76, 5")
        srd(A, 12, 60, 2359296)
        srd(A, 16, 62, 1152)
        srd(A, 72, 32, SZ_ST, WS_ST)
        srd(A, 64, 26, 4096)
        srd(A, 68, 28, 2048 * 576 * 4)
    def partA():
        for aa in range(2):
            A("buffer_load_dwordx2 %s, v5, s[72:75], s80 offen offset:%d" % (v(STT + 2 * aa, 2), aa * 128))
            A("buffer_load_ushort v%d, v3, s[64:67], s81 offen offset:%d" % (B2 + 2 * aa, aa * 32))
        sk = A.newlabel("k3_pa")
        for n in range(3):
            if n == 2:
                A("s_cmp_lg_u32 s36, 0")
                A("s_cbranch_scc1 %s" % sk)
            A("buffer_load_dwordx2 %s, v8, s[16:19], s77 offen offset:%d" % (v(DS + 2 * n, 2), n * 128))
            for aa in range(2):
                A("buffer_load_dwordx2 %s, v6, s[12:15], s%d offen offset:%d" % (v(XR + 4 * n + 2 * aa, 2), (78, 79)[aa], n * 128))
        A.label(sk)
    def base(n):
        dd = 76; xx = 116; tt = 144
        for h in range(2):
            A("v_lshlrev_b32 v%d, 16, v%d" % (dd + 2 * h, DS + 2 * n + h))
            A("v_and_b32 v%d, 0xffff0000, v%d" % (dd + 2 * h + 1, DS + 2 * n + h))
        for aa in range(2):
            b = BASE + 8 * n + 4 * aa
            for h in range(2):
                A("v_lshlrev_b32 v%d, 16, v%d" % (xx + 2 * h, XR + 4 * n + 2 * aa + h))
                A("v_and_b32 v%d, 0xffff0000, v%d" % (xx + 2 * h + 1, XR + 4 * n + 2 * aa + h))
            for h in range(2):
                A("v_pk_mul_f32 %s, %s, %s op_sel:[0,1]" % (v(tt + 2 * h, 2), v(dd + 2 * h, 2), v(STT + 2 * aa, 2)))
                A("v_pk_add_f32 %s, %s, %s op_sel_hi:[1,0]" % (v(b + 2 * h, 2), v(xx + 2 * h, 2), v(B2 + 2 * aa, 2)))
                A("v_pk_add_f32 %s, %s, %s op_sel_hi:[1,0] neg_lo:[0,1] neg_hi:[0,1]" % (v(xx + 2 * h, 2), v(xx + 2 * h, 2), v(STT + 2 * aa, 2)))
            for h in range(2):
                A("v_pk_fma_f32 %s, %s, %s, %s" % (v(b + 2 * h, 2), v(xx + 2 * h, 2), v(tt + 2 * h, 2), v(b + 2 * h, 2)))
    A("s_cmp_ge_u32 s36, 2")
    A("s_cbranch_scc1 k3_ld2")
    loader_loop(A, "k3a", mk_issue(True), 9, cfg.d3, 22, 53, kt_sreg=35)
    A("s_branch k3_fin")
    A.label("k3_ld2")
    loader_loop(A, "k3b", mk_issue(False), 8, cfg.d3, 22, 53, kt_sreg=35)
    A("s_branch k3_fin")
    A.label("k3_cons")
    A("v_lshrrev_b32 v5, 2, v2")
    A("v_and_b32 v6, 7, v5")
    A("v_and_b32 v7, 3, v2")
    A("v_lshlrev_b32 v7, 3, v7")
    A("v_lshl_add_u32 v7, v5, 8, v7")
    A("s_lshl_b32 s36, s20, 1")
    BW = 10; CW = 14; BC = 18
    for aa in range(2):
        A("s_add_u32 s37, s36, %d" % aa)
        A("v_xor_b32 v8, s37, v6")
        A("v_lshl_add_u32 v%d, v8, 5, v7" % (BW + aa))
    A("v_lshlrev_b32 v9, 4, v2")
    A("v_add_u32 v%d, 16384, v9" % (BW + 2))
    A("v_add_u32 v%d, 17408, v9" % (BW + 3))
    A("v_and_b32 v3, 15, v2")
    A("v_lshrrev_b32 v4, 4, v2")
    A("v_and_b32 v5, 7, v3")
    A("v_xor_b32 v5, v5, v4")
    A("v_lshlrev_b32 v5, 4, v5")
    A("v_lshl_add_u32 v5, v3, 7, v5")
    A("v_add_u32 v%d, 16384, v5" % BC)
    A("v_xor_b32 v%d, 64, v%d" % (BC + 1, BC))
    for i in range(4):
        A("v_mov_b32 v%d, v%d" % (CW + i, BW + i))
    ACC = 24; SETS = [96, 140]
    for i in range(72):
        A("v_mov_b32 v%d, 0" % (ACC + i))
    A("s_mov_b32 s46, 0")
    A("s_mov_b32 s48, s34")
    def reads(st, ks):
        b = SETS[st]; r = []
        r.append("ds_read_b128 %s, v%d offset:%d" % (v(b + 8, 4), CW + 2 + ks, 0))
        for aa in range(2):
            r.append("ds_read_b64_tr_b16 %s, v%d offset:%d" % (v(b + 4 * aa, 2), CW + aa, ks * 8192))
            r.append("ds_read_b64_tr_b16 %s, v%d offset:%d" % (v(b + 4 * aa + 2, 2), CW + aa, ks * 8192 + 4096))
        for xb in range(1, 9):
            r.append("ds_read_b128 %s, v%d offset:%d" % (v(b + 8 + 4 * xb, 4), CW + 2 + ks, xb * 2048))
        return r
    def mfmas(st):
        b = SETS[st]; m = []
        for xb in range(9):
            for aa in range(2):
                d = v(ACC + (xb * 2 + aa) * 4, 4)
                need = max(2 + 2 * aa, 4 + xb if xb else 0)
                m.append(("%s %s, %s, %s, %s" % (MFMA, d, v(b + 8 + 4 * xb, 4), v(b + 4 * aa, 4), d), need))
        return m
    def addr_update():
        sa = slot_advance(46, SLOT, NS).split("\n")
        U = lambda i: "v_add_u32 v%d, s46, v%d" % (CW + i, BW + i)
        return [(1, "s_add_u32 s48, s48, %d" % KS), (3, "s_cmp_ge_u32 s48, 72"), (5, "s_cbranch_scc1 k3_csw\nk3_cswr:"),
                (7, sa[0]), (8, sa[1]), (9, sa[2]), (11, U(0)), (13, U(1)), (14, U(2)), (15, U(3))]
    A("s_lshl_b32 s44, s23, 2")
    A("s_add_u32 s44, s44, s21")
    A("s_lshl_b32 s36, s44, 2")
    A("s_add_u32 s36, s36, s20")
    A("s_lshl_b32 s36, s36, 2")
    A("s_add_u32 s36, s36, s22")
    A("s_mul_i32 s36, s36, 9216")
    A("s_lshl_b32 s45, s44, 2")
    A("s_add_u32 s45, s45, s20")
    A("s_lshl_b32 s45, s45, 7")
    A("s_lshl_b32 s37, s22, 2")
    A("s_add_u32 s45, s45, s37")
    A("v_mov_b32 v20, 1")
    A("v_mov_b32 v21, 0")
    A("s_waitcnt lgkmcnt(0)")
    srd(A, 12, 32, SZ_EX, WS_EX)
    srd(A, 72, 32, SZ_FL, WS_FL)
    extraB = []
    if cfg.b3:
        A("s_add_u32 s38, s23, 2")
        A("s_lshr_b32 s38, s38, 2")
        A("s_sub_u32 s38, s23, s38")
        A("s_lshl_b32 s38, s38, 2")
        A("s_add_u32 s38, s38, s21")
        A("s_lshl_b32 s38, s38, 2")
        A("s_add_u32 s38, s38, s22")
        A("s_and_b32 s39, s23, 3")
        A("v_lshlrev_b32 v22, 7, v2")
        for bi, (first, rate) in enumerate(cfg.b3):
            d = (64, 4)[bi]
            A("s_lshl_b32 s40, s38, 2")
            A("s_add_u32 s40, s40, s20")
            A("s_add_u32 s40, s40, %d" % (cfg.pos_b3 + 768 * bi))
            pf_decode(A, 40, d, d + 4, 41, 24, 56, 58, 24, lo=max(L_C, cfg.pos_b3 + 768 * bi))
            A("s_mul_i32 s%d, s38, %d" % (d + 5, (65536 + rate - 1) // rate))
            A("s_lshr_b32 s%d, s%d, 16" % (d + 5, d + 5))
            A("s_sub_u32 s%d, %d, s%d" % (d + 5, 22 - first, d + 5))
            A("s_cmp_eq_u32 s39, 1")
            A("s_cselect_b32 s%d, 1000, s%d" % (d + 5, d + 5))
            extraB.append((3 + 2 * bi, "s_cmp_lg_u32 s53, s%d\ns_cbranch_scc1 k3_nb%d\nbuffer_load_dword v23, v22, s[%d:%d], s%d offen\nk3_nb%d:" % (d + 5, bi, d, d + 3, d + 4, bi)))
    consumer_loop(A, "k3", reads, mfmas, addr_update, 22, 53, kt_sreg=35, cfg=cfg, extraB=extraB, early=(cfg.d3 == 3), pts=cfg.pts3)
    A("s_nop 4")
    A("s_cmp_eq_u32 s20, s22")
    A("s_cbranch_scc1 k3_own")
    for xb in range(9):
        o = 96 + 4 * xb
        for k in range(4):
            A("v_cvt_pk_bf16_f32 v%d, v%d, v%d" % (o + k, ACC + 8 * xb + 2 * k, ACC + 8 * xb + 2 * k + 1))
        A("buffer_store_dwordx4 %s, v9, s[12:15], s36 offen offset:%d sc1" % (v(o, 4), (xb % 4) * 1024))
        if xb % 4 == 3: A("s_add_u32 s36, s36, 4096")
    A("s_waitcnt vmcnt(0)")
    A("s_mov_b64 exec, 1")
    A("buffer_store_dword v20, v21, s[72:75], s45 offen sc1")
    if not cfg.stamp: A("s_endpgm")
    A("s_barrier")
    A("s_mov_b64 exec, -1")
    stamp_mid(A, cfg, 2)
    A("s_branch k3_done")
    A.label("k3_own")
    A("v_add_u32 v10, %d, v9" % LDS_OWN)
    for t in range(18):
        A("ds_write_b128 v10, %s offset:%d" % (v(ACC + 4 * t, 4), t * 1024))
    A("s_waitcnt lgkmcnt(0)")
    A("s_barrier")
    stamp_mid(A, cfg, 2)
    A("s_branch k3_done")
    A.label("k3_csw")
    A("v_mov_b32 v%d, v%d" % (BW + 2, BC))
    A("v_mov_b32 v%d, v%d" % (BW + 3, BC + 1))
    A("s_mov_b32 s48, 0")
    A("s_branch k3_cswr")
    A.label("k3_fin")
    partA()
    A("v_lshlrev_b32 v9, 4, v2")
    A("s_lshl_b32 s44, s23, 2")
    A("s_add_u32 s44, s44, s21")
    A("s_lshl_b32 s45, s44, 2")
    A("s_add_u32 s45, s45, s22")
    A("s_mul_i32 s47, s45, %d" % (4 * 9216))
    A("s_lshl_b32 s45, s45, 7")
    srd(A, 72, 32, SZ_FL, WS_FL)
    srd(A, 12, 32, SZ_EX, WS_EX)
    A("s_lshl_b32 s46, s36, 10")
    A("s_add_u32 s47, s47, s46")
    for j in range(3):
        A("s_add_u32 s48, s22, %d" % (1 + j))
        A("s_and_b32 s48, s48, 3")
        A("s_mul_i32 s48, s48, 9216")
        A("s_add_u32 s%d, s47, s48" % (49 + j))
    A("v_add_u32 v15, 4096, v9")
    A("v_add_u32 v18, 8192, v9")
    A("s_lshl_b32 s46, s36, 11")
    A("s_add_u32 s46, s46, %d" % LDS_OWN)
    A("v_add_u32 v10, s46, v9")
    A("s_waitcnt vmcnt(0)")
    for aa in range(2):
        A("v_lshlrev_b32 v%d, 16, v%d" % (B2 + 2 * aa, B2 + 2 * aa))
    base(0); base(1); base(2)
    A("s_barrier")
    stamp_mid(A, cfg, 2)
    for n in range(3):
        for aa in range(2):
            A("ds_read_b128 %s, v10 offset:%d" % (v(OWN + 8 * n + 4 * aa, 4), n * 8192 + aa * 1024))
    A("s_mov_b32 s52, 0")
    A("v_mov_b32 v13, 0")
    A("s_waitcnt lgkmcnt(0)")
    for k in range(12):
        A("v_pk_add_f32 %s, %s, %s" % (v(BASE + 2 * k, 2), v(BASE + 2 * k, 2), v(OWN + 2 * k, 2)))
    A.label("k3_poll")
    A("buffer_load_dwordx4 v[24:27], v13, s[72:75], s45 offen sc1")
    A("s_add_u32 s52, s52, 1")
    A("s_waitcnt vmcnt(0)")
    A("v_add3_u32 v24, v24, v25, v26")
    A("v_add_u32 v24, v24, v27")
    A("s_cmp_gt_u32 s52, 0x400000")
    A("v_readfirstlane_b32 s53, v24")
    A("s_cbranch_scc1 k3_go")
    A("s_cmp_lt_u32 s53, 3")
    A("s_cbranch_scc1 k3_poll")
    A.label("k3_go")
    stamp_mid(A, cfg, 3)
    def ld(n):
        for j in range(3):
            A("buffer_load_dwordx4 %s, v%d, s[12:15], s%d offen sc1" % (v(PR + (n * 3 + j) * 4, 4), (9, 15, 18)[n], 49 + j))
    def fin(n):
        b = BASE + 8 * n
        for j in range(3):
            p = PR + (n * 3 + j) * 4
            for k in range(4):
                A("v_lshlrev_b32 v%d, 16, v%d" % (28 + 2 * (k % 2), p + k))
                A("v_and_b32 v%d, 0xffff0000, v%d" % (29 + 2 * (k % 2), p + k))
                A("v_pk_add_f32 %s, %s, %s" % (v(b + 2 * k, 2), v(b + 2 * k, 2), v(28 + 2 * (k % 2), 2)))
        for aa in range(2):
            A("buffer_store_dwordx4 %s, v7, s[68:71], s%d offen offset:%d %s" % (v(b + 4 * aa, 4), (54, 55)[aa], n * 256, cfg.sto))
    A("s_cmp_lg_u32 s36, 0")
    A("s_cbranch_scc1 k3_l1")
    ld(2); ld(0); ld(1)
    A("s_waitcnt vmcnt(6)")
    fin(2)
    A("s_waitcnt vmcnt(5)")
    fin(0)
    A("s_waitcnt vmcnt(4)")
    fin(1)
    A("s_branch k3_done")
    A.label("k3_l1")
    ld(0); ld(1)
    A("s_waitcnt vmcnt(3)")
    fin(0)
    A("s_waitcnt vmcnt(2)")
    fin(1)
    A.label("k3_done")
    stamp_end(A, cfg, 2, 32, 20, 2)
    A.label("k3_end")
    A("s_endpgm")
    return NS * SLOT + 24576

HEADER = open("parallel_sum__ssm_conv_s5__mixer_token_mlp__prompt.s.ref").read().split("; Override launch")[0]

def gen(**kw):
    cfg = Cfg()
    for k, val in kw.items():
        assert hasattr(Cfg, k), k
        setattr(cfg, k, val)
    B = Asm()
    LPRIO[0] = cfg.lprio; LPRIO[1] = cfg.cprio
    l1 = gen_k1(B, cfg); l2 = gen_k2(B, cfg); l3 = gen_k3(B, cfg)
    sys.stderr.write("list: k3 bursts start at %d, end %d of %d\n" % (cfg.pos_b3, cfg.pos_b3 + 768 * len(cfg.b3), L_END))
    out = HEADER
    out += "; @launch kernel=k1_kernel grid=(256,1,1) block=(768,1,1) lds=%d\n" % l1
    out += "; @launch kernel=k2_kernel grid=(256,1,1) block=(512,1,1) lds=%d\n" % l2
    out += "; @launch kernel=k3_kernel grid=(256,1,1) block=(512,1,1) lds=%d\n" % l3
    out += '.amdgcn_target "amdgcn-amd-amdhsa--gfx950"\n.text\n'
    out += B.text()
    out += "text_end:\n    s_endpgm\n"
    out += '.section .rodata,"a"\n'
    for name, vg in (("k1_kernel", 168), ("k2_kernel", 256), ("k3_kernel", 184)):
        out += ".p2align 6\n" + kd(name, vg, 102)
    return out

if __name__ == "__main__":
    kw = {}
    for a_ in sys.argv[2:]:
        k, val = a_.split("=")
        kw[k] = ast.literal_eval(val)
    open(sys.argv[1], "w").write(gen(**kw))
```

```python
import sys, math, ast
from asmlib import *

NAME = "parallel_sum__ssm_conv_s5__mixer_token_mlp__prompt"
PAIR = 2048
WS_HF = 0x0;        SZ_HF = 32 * 36 * PAIR
WS_UF = 0x400000;   SZ_UF = 72 * 36 * PAIR
WS_G = 0xC00000;    SZ_G = 4718592
WS_HT = 0x1400000;  SZ_HT = 4718592
WS_ST = 0x1900000;  SZ_ST = 16384
WS_FL = 0x1910000;  SZ_FL = 65536
WS_EX = 0x2000000;  SZ_EX = 64 * 16 * 9216
WS_STAMP = 0xC000000
SZ_W = 2048 * 9216; SZ_C = 576 * 1152; SZ_X = 2359296
FL_H = 0
FL_G = 2048
FL_U = FL_G + 12 * 512
FL_T = FL_U + 16 * 512
FL_X = FL_T + 8 * 512
assert FL_X + 256 * 128 <= SZ_FL

PX, PLRE, PLIM, PBRE, PBIM, PCRE, PCIM, PLOGDT, PDSK, PBX, PW1, PB1, PW2, PB2, POUT, PDBG, PWS = [64 + 2 * i for i in range(17)]
WAVE, SLOTR, XCD = 20, 21, 22
TAG = 24
RING = 26
CNT = 27
EVT = 28
NS = 4; SLOT = 34816; LDS_OWN = NS * SLOT
MFMA = "v_mfma_f32_16x16x32_bf16"
SPIN = 1 << 17

class Cfg:
    stamp = False
    pf_a = 1
    scm = (0, 0, 0)
    pf_b = 2
    lnpf = 1
    rot1 = 1; rot2 = 1; rot3 = 1
    hl = "sc1"
    codepf = 1
    gl = ""
    pf_a2 = 0
    e1 = (7,)

class G:
    pass

def stamp(A, cfg, idx):
    if cfg.stamp:
        A("s_memrealtime s[98:99]")
        A("s_waitcnt lgkmcnt(0)")
        A("v_writelane_b32 v255, s98, %d" % idx)

def stamp_end(A, cfg):
    if not cfg.stamp: return
    A("s_waitcnt vmcnt(0)")
    stamp(A, cfg, 15)
    srd(A, 4, PWS, 131072, WS_STAMP)
    A("s_lshl_b32 s30, s2, 3")
    A("s_add_u32 s30, s30, s%d" % WAVE)
    A("s_lshl_b32 s30, s30, 6")
    A("v_lshlrev_b32 v3, 2, v2")
    A("s_mov_b64 exec, 0xffff")
    A("buffer_store_dword v255, v3, s[4:7], s30 offen")

def slot_adv(sreg=RING):
    return ["s_add_u32 s%d, s%d, %d" % (sreg, sreg, SLOT), "s_cmp_eq_u32 s%d, %d" % (sreg, NS * SLOT), "s_cselect_b32 s%d, 0, s%d" % (sreg, sreg)]

def row16_sum(A, r):
    for sh in (8, 4, 2, 1):
        A("s_nop 1")
        A("v_add_f32_dpp v%d, v%d, v%d row_ror:%d row_mask:0xf bank_mask:0xf" % (r, r, r, sh))

def round_bf16(A, dst, src):
    A("v_cvt_pk_bf16_f32 v%d, v%d, v%d" % (dst, src, src))
    A("v_lshlrev_b32 v%d, 16, v%d" % (dst, dst))

L_C = 2304; L_W2 = 2304 + 162; L_END = L_W2 + 72 * 32
def pf_decode(A, idx, d, off, t, lo=0):
    A("s_sub_u32 s%d, s%d, %d" % (off, idx, L_W2))
    A("s_bfe_u32 s%d, s%d, 0x20005" % (t, off))
    A("s_mul_i32 s%d, s%d, %d" % (t, t, 18 * 32))
    A("s_lshr_b32 s%d, s%d, 7" % (t + 1, off))
    A("s_lshl_b32 s%d, s%d, 5" % (t + 1, t + 1))
    A("s_add_u32 s%d, s%d, s%d" % (t, t, t + 1))
    A("s_and_b32 s%d, s%d, 31" % (off, off))
    A("s_add_u32 s%d, s%d, s%d" % (off, off, t))
    A("s_cmp_ge_u32 s%d, %d" % (idx, L_END))
    A("s_cselect_b32 s%d, 4096, s%d" % (off, off))
    A("s_mov_b32 s%d, s%d\ns_mov_b32 s%d, s%d\ns_mov_b32 s%d, %d" % (d, PW2, d + 1, PW2 + 1, d + 2, SZ_W))
    for (hi, sub, base, sz) in ((L_W2, L_C + 81, PCIM, SZ_C), (L_C + 81, L_C, PCRE, SZ_C), (L_C, 0, PW1, SZ_W)):
        if hi <= lo: continue
        A("s_sub_u32 s%d, s%d, %d" % (t, idx, sub))
        A("s_cmp_lt_u32 s%d, %d" % (idx, hi))
        A("s_cselect_b32 s%d, s%d, s%d" % (off, t, off))
        A("s_cselect_b32 s%d, s%d, s%d" % (d, base, d))
        A("s_cselect_b32 s%d, s%d, s%d" % (d + 1, base + 1, d + 1))
        A("s_cselect_b32 s%d, %d, s%d" % (d + 2, sz, d + 2))
    A("s_mov_b32 s%d, 0x00020000" % (d + 3))
    A("s_lshl_b32 s%d, s%d, 13" % (off, off))

FSRD = 16; VL8 = 248; VT = 250; VP = 252
def tag_issue(A):
    srd(A, 60, PDBG, 256)
    A("v_mov_b32 v249, 0")
    A("buffer_load_dwordx2 v[%d:%d], v249, s[60:63], 0 offen sc1" % (VT, VT + 1))
def tag_check(A):
    lp = A.newlabel("tg"); ok = A.newlabel("tg")
    A("s_mov_b32 s59, 0")
    A.label(lp)
    A("s_waitcnt vmcnt(0)")
    A("v_readfirstlane_b32 s%d, v%d" % (TAG, VT))
    A("s_add_u32 s59, s59, 1")
    A("s_cmp_lg_u32 s%d, 0" % TAG)
    A("s_cbranch_scc1 %s" % ok)
    A("s_cmp_gt_u32 s59, %d" % SPIN)
    A("s_cbranch_scc1 %s" % ok)
    A("s_sleep 2")
    tag_issue(A)
    A("s_branch %s" % lp)
    A.label(ok)
def publish(A, offreg):
    A("s_mov_b64 exec, 1")
    A("buffer_store_dwordx2 v[%d:%d], v%d, s[%d:%d], s%d offen sc1" % (VT, VT + 1, VL8, FSRD, FSRD + 3, offreg))
    A("s_mov_b64 exec, -1")
def gate_issue(A, offreg):
    A("buffer_load_dwordx2 v[%d:%d], v%d, s[%d:%d], s%d offen sc1" % (VP, VP + 1, VL8, FSRD, FSRD + 3, offreg))
def gate_check(A, offreg, mask):
    lp = A.newlabel("gt"); ok = A.newlabel("gt")
    A("s_mov_b32 s59, 0")
    if isinstance(mask, int):
        A("s_mov_b32 s56, 0x%x" % (mask & 0xffffffff))
        A("s_mov_b32 s57, 0x%x" % (mask >> 32))
        mask = "s[56:57]"
    A.label(lp)
    A("s_waitcnt vmcnt(0)")
    A("v_cmp_ne_u64 vcc, v[%d:%d], v[%d:%d]" % (VP, VP + 1, VT, VT + 1))
    A("s_add_u32 s59, s59, 1")
    A("s_and_b64 vcc, vcc, %s" % mask)
    A("s_cbranch_scc0 %s" % ok)
    A("s_cmp_gt_u32 s59, %d" % SPIN)
    A("s_cbranch_scc1 %s" % ok)
    A("s_sleep 8")
    gate_issue(A, offreg)
    A("s_branch %s" % lp)
    A.label(ok)

VW = 240
def wide_issue(A):
    A("v_lshlrev_b32 v249, 4, v2")
    A("buffer_load_dwordx4 v[%d:%d], v249, s[%d:%d], 0 offen sc1" % (VW, VW + 3, FSRD, FSRD + 3))
    A("buffer_load_dwordx4 v[%d:%d], v249, s[%d:%d], 0 offen offset:1024 sc1" % (VW + 4, VW + 7, FSRD, FSRD + 3))
def wide_check(A):
    lp = A.newlabel("gw"); ok = A.newlabel("gw")
    A("s_mov_b32 s59, 0")
    A.label(lp)
    A("s_waitcnt vmcnt(0)")
    A("v_cmp_ne_u64 vcc, v[%d:%d], v[%d:%d]" % (VW, VW + 1, VT, VT + 1))
    for q in range(1, 4):
        A("v_cmp_ne_u64 s[56:57], v[%d:%d], v[%d:%d]" % (VW + 2 * q, VW + 2 * q + 1, VT, VT + 1))
        A("s_or_b64 vcc, vcc, s[56:57]")
    A("s_cbranch_scc0 %s" % ok)
    A("s_add_u32 s59, s59, 1")
    A("s_cmp_gt_u32 s59, %d" % SPIN)
    A("s_cbranch_scc1 %s" % ok)
    A("s_sleep 8")
    wide_issue(A)
    A("s_branch %s" % lp)
    A.label(ok)

def group(A, ms, rs, nprev, extra=(), pts=None):
    rs = list(rs); issued = 0; waited = -1
    for i, (m, need) in enumerate(ms):
        if pts is not None:
            if i in pts:
                nxt = min([p for p in pts if p > i] + [len(ms)])
                need = max(n for _, n in ms[i:nxt])
            else:
                assert need <= waited
        if need > waited:
            A("s_waitcnt lgkmcnt(%d)" % min(15, nprev - 1 - need + issued))
            waited = need
        A(m)
        if rs:
            A(rs.pop(0)); issued += 1
        for pos, t in extra:
            if pos == i: A(t)
    for r in rs: A(r)

def consumer_phase(A, pfx, reads, mfmas, addr_update, kt, pts, events, evpos):
    n = len(reads(0, 0)); nm = len(mfmas(1))
    for r in reads(0, 0): A(r)
    if isinstance(kt, int): A("s_mov_b32 s%d, %d" % (CNT, kt - 2))
    else: A("s_sub_u32 s%d, %s, 2" % (CNT, kt))
    A("s_mov_b32 s%d, %s" % (EVT, events[0][0] if events else "1000"))
    group(A, mfmas(0), reads(1, 1), n, addr_update(), pts)
    group(A, mfmas(1), reads(0, 0), n, (), pts)
    A.label(pfx + "_loop")
    group(A, mfmas(0), reads(1, 1), n, addr_update() + [(evpos, "s_cmp_eq_u32 s%d, s%d" % (CNT, EVT))], pts)
    A("s_cbranch_scc1 %s_ev" % pfx)
    A.label(pfx + "_evr")
    A("s_barrier")
    group(A, mfmas(1), reads(0, 0), n, [(nm - 3, "s_sub_u32 s%d, s%d, 1" % (CNT, CNT)), (nm - 2, "s_cmp_lg_u32 s%d, 0" % CNT)], pts)
    A("s_cbranch_scc1 %s_loop" % pfx)
    group(A, mfmas(0), reads(1, 1), n, [(i, t) for i, t in enumerate(slot_adv())], pts)
    group(A, mfmas(1), [], n, (), pts)
    def evcode():
        A.label(pfx + "_ev")
        for i, (key, fn) in enumerate(events):
            nx = A.newlabel(pfx + "_e")
            A("s_cmp_lg_u32 s%d, %s" % (CNT, key))
            A("s_cbranch_scc1 %s" % nx)
            fn()
            A("s_mov_b32 s%d, %s" % (EVT, events[i + 1][0] if i + 1 < len(events) else "1000"))
            A.label(nx)
        A("s_branch %s_evr" % pfx)
    return evcode

def gen(**kw):
    cfg = Cfg()
    for k, val in kw.items():
        assert hasattr(Cfg, k), k
        setattr(cfg, k, val)
    A = Asm()
    HL = cfg.hl
    late = []
    KN = NAME + "_kernel"
    A.raw(".globl %s\n.p2align 8\n.type %s,@function" % (KN, KN))
    A.label(KN)
    A("s_cmp_ge_u32 s2, 256")
    A("s_cbranch_scc1 k_end")
    A("s_load_dwordx16 s[64:79], s[0:1], 0")
    A("s_load_dwordx16 s[80:95], s[0:1], 64")
    A("s_load_dwordx2 s[96:97], s[0:1], 128")
    A("s_memrealtime s[%d:%d]" % (TAG, TAG + 1))
    A("v_lshrrev_b32 v1, 6, v0")
    A("v_and_b32 v2, 63, v0")
    A("v_readfirstlane_b32 s%d, v1" % WAVE)
    A("s_and_b32 s%d, s2, 7" % XCD)
    A("s_lshr_b32 s%d, s2, 3" % SLOTR)
    A("s_mov_b32 s%d, 0" % RING)
    A("v_lshlrev_b32 v%d, 3, v2" % VL8)
    if cfg.stamp:
        A("v_mov_b32 v255, 0")
        A("s_waitcnt lgkmcnt(0)")
        A("v_writelane_b32 v255, s%d, 0" % TAG)
    TT, PT, FT, DT, SP, ST, D3, KT3, NF, F0 = 30, 31, 32, 33, 34, 35, 36, 37, 38, 39
    A("s_cmp_ge_u32 s%d, 12" % SLOTR)
    A("s_cselect_b32 s%d, 1, 0" % TT)
    A("s_mul_i32 s%d, s%d, 12" % (PT, TT))
    A("s_sub_u32 s%d, s%d, s%d" % (PT, SLOTR, PT))
    A("s_lshl_b32 s3, s%d, 1" % XCD)
    A("s_add_u32 s%d, s%d, s3" % (TT, TT))
    A("s_cmp_ge_u32 s%d, 24" % SLOTR)
    A("s_cbranch_scc1 ln_entry")
    A("s_cmp_lt_u32 s%d, 4" % WAVE)
    A("s_cbranch_scc1 c1_entry")

    def ids23():
        A("s_mul_i32 s3, s%d, 27" % XCD)
        A("s_add_u32 s3, s3, s%d" % SLOTR)
        A("s_mul_i32 s%d, s3, 43691" % FT)
        A("s_lshr_b32 s%d, s%d, 18" % (FT, FT))
        A("s_mul_i32 s%d, s%d, 6" % (DT, FT))
        A("s_sub_u32 s%d, s3, s%d" % (DT, DT))
        A("s_lshr_b32 s%d, s%d, 1" % (SP, XCD))
        A("s_and_b32 s3, s%d, 1" % XCD)
        A("s_lshl_b32 s3, s3, 3")
        A("s_lshr_b32 s%d, s%d, 2" % (ST, SLOTR))
        A("s_add_u32 s%d, s%d, s3" % (ST, ST))
        A("s_and_b32 s%d, s%d, 3" % (D3, SLOTR))
        A("s_cmp_ge_u32 s%d, 2" % SP)
        A("s_cselect_b32 s%d, 4, 5" % NF)
        A("s_add_u32 s%d, s%d, 18" % (KT3, NF))
        A("s_mul_i32 s%d, s%d, 5" % (F0, SP))
        A("s_cmp_eq_u32 s%d, 3" % SP)
        A("s_cselect_b32 s%d, 14, s%d" % (F0, F0))

    LW = 23
    M0P, M0Q = 40, 41
    OP, OQ = 42, 43
    A("s_sub_u32 s%d, s%d, 4" % (LW, WAVE))
    A("v_lshrrev_b32 v3, 3, v2")
    A("v_and_b32 v4, 7, v2")
    A("v_xor_b32 v6, v4, v3")
    A("s_movk_i32 s44, 1152")
    A("v_mul_lo_u32 v5, v3, s44")
    A("v_lshlrev_b32 v8, 1, v5")
    A("v_lshl_add_u32 v10, v6, 4, v8")
    A("s_lshr_b32 s44, s%d, 1" % LW)
    A("v_and_b32 v7, 6, v3")
    A("v_or_b32 v7, s44, v7")
    A("v_xor_b32 v7, v4, v7")
    A("v_lshl_add_u32 v14, v7, 4, v5")
    for m in range(1, 4):
        A("v_add_u32 v%d, 0x%x, v10" % (10 + m, (16 * (m & 1) + (m >> 1)) * 1152 - (m & 1) * 1024))
    for m in range(1, 3):
        A("v_add_u32 v%d, 0x%x, v14" % (14 + m, m * (8 * 1152 - 1024)))
    A("s_lshl_b32 s%d, s%d, 7" % (OP, TT))
    A("s_lshl_b32 s45, s%d, 5" % LW)
    A("s_add_u32 s%d, s%d, s45" % (OP, OP))
    A("s_mul_i32 s%d, s%d, 1152" % (OP, OP))
    A("s_mul_i32 s%d, s%d, 48" % (OQ, PT))
    A("s_and_b32 s45, s%d, 1" % LW)
    A("s_mul_i32 s45, s45, 24")
    A("s_add_u32 s%d, s%d, s45" % (OQ, OQ))
    A("s_mul_i32 s%d, s%d, 1152" % (OQ, OQ))
    A("s_lshl_b32 s%d, s%d, 12" % (M0P, LW))
    A("s_mul_i32 s%d, s%d, 3072" % (M0Q, LW))
    A("s_add_u32 s%d, s%d, 16384" % (M0Q, M0Q))
    if cfg.rot1:
        A("s_lshl_b32 s46, s%d, 2" % TT)
        A("s_add_u32 s46, s46, s%d" % PT)
        A("s_mul_i32 s47, s46, 7282")
        A("s_lshr_b32 s47, s47, 16")
        A("s_mul_i32 s47, s47, 9")
        A("s_sub_u32 s46, s46, s47")
        A("s_lshl_b32 s47, s46, 7")
        A("s_add_u32 s%d, s%d, s47" % (OP, OP))
        A("s_add_u32 s%d, s%d, s47" % (OQ, OQ))
    A("s_waitcnt lgkmcnt(0)")
    srd(A, 4, PX, SZ_X)
    A("s_cmp_ge_u32 s%d, 2" % LW)
    A("s_cselect_b32 s8, s%d, s%d" % (PBIM, PBRE))
    A("s_cselect_b32 s9, s%d, s%d" % (PBIM + 1, PBRE + 1))
    A("s_mov_b32 s10, %d" % SZ_C)
    A("s_mov_b32 s11, 0x00020000")
    def issue1():
        A("s_add_u32 m0, s%d, s%d" % (RING, M0P))
        A("s_add_u32 s45, s%d, s%d" % (RING, M0Q))
        for m in range(4):
            if m == 2:
                A("s_add_u32 m0, m0, 2048")
                A("s_nop 0")
            A("buffer_load_dwordx4 v%d, s[4:7], s%d offen offset:%d lds" % (10 + m, OP, (m & 1) * 1024))
        A("s_mov_b32 m0, s45")
        A("s_add_u32 s%d, s%d, 128" % (OP, OP))
        for m in range(3):
            A("buffer_load_dwordx4 v%d, s[8:11], s%d offen offset:%d lds" % (14 + m, OQ, m * 1024))
        A("s_add_u32 s%d, s%d, 128" % (OQ, OQ))
        if cfg.rot1:
            A("s_add_u32 s46, s46, 1")
            A("s_cmp_eq_u32 s46, 9")
            A("s_cselect_b32 s47, 1152, 0")
            A("s_sub_u32 s%d, s%d, s47" % (OP, OP))
            A("s_sub_u32 s%d, s%d, s47" % (OQ, OQ))
        for t in slot_adv(): A(t)
    def lane23():
        A("v_lshrrev_b32 v3, 4, v2")
        A("v_and_b32 v4, 15, v2")
        A("v_lshlrev_b32 v6, 1, v3")
        A("v_xor_b32 v7, v4, v6")
        A("v_xor_b32 v8, 8, v7")
        for (b, stride) in ((20, 9216), (24, 4096)):
            A("s_movk_i32 s44, %d" % stride)
            A("v_mul_lo_u32 v5, v3, s44")
            A("v_lshl_add_u32 v%d, v7, 4, v5" % b)
            A("v_lshl_add_u32 v%d, v8, 4, v5" % (b + 1))
            D = 4 * stride - 1024
            A("v_add_u32 v%d, 0x%x, v%d" % (b + 2, 2 * D, b))
            A("v_add_u32 v%d, 0x%x, v%d" % (b + 3, 3 * D, b + 1))
            A("v_add_u32 v%d, 0x%x, v%d" % (b + 1, D, b + 1))
        A("v_lshlrev_b32 v28, 4, v2")
        A("v_lshrrev_b32 v3, 3, v2")
        A("v_and_b32 v4, 7, v2")
        A("v_xor_b32 v4, v4, v3")
        A("s_movk_i32 s44, 1152")
        A("v_mul_lo_u32 v5, v3, s44")
        A("v_lshl_add_u32 v30, v4, 4, v5")
        for m in range(1, 4):
            A("v_add_u32 v%d, 0x%x, v30" % (30 + m, m * (8 * 1152 - 1024)))
    B2P, B2Q, N2, M6 = 48, 49, 50, 51
    def setup2():
        A("s_mul_i32 s%d, s%d, %d" % (B2P, LW, 16 * 9216))
        A("s_lshl_b32 s44, s%d, 8" % FT)
        A("s_add_u32 s%d, s%d, s44" % (B2P, B2P))
        A("s_mul_i32 s%d, s%d, 12" % (B2Q, DT))
        A("s_mul_i32 s44, s%d, 3" % LW)
        A("s_add_u32 s%d, s%d, s44" % (B2Q, B2Q))
        A("s_lshl_b32 s%d, s%d, 10" % (B2Q, B2Q))
        A("s_mov_b32 s%d, 0\ns_mov_b32 s%d, 0" % (N2, M6))
    def srd2():
        srd(A, 4, PW1, SZ_W)
        srd(A, 8, PWS, SZ_HF, WS_HF)
    def issue2():
        if cfg.rot2:
            A("s_add_u32 s44, s%d, 6" % N2)
            A("s_cmp_lt_u32 s44, 32")
            A("s_cselect_b32 s44, s44, s%d" % M6)
            A("s_cmp_eq_u32 s%d, s%d" % (M6, DT))
            A("s_cselect_b32 s44, s44, s%d" % N2)
        else:
            A("s_mov_b32 s44, s%d" % N2)
        A("s_mul_i32 s%d, s44, %d" % (OP, 64 * 9216))
        A("s_add_u32 s%d, s%d, s%d" % (OP, OP, B2P))
        A("s_add_u32 m0, s%d, s%d" % (RING, M0P))
        A("s_mul_i32 s%d, s44, %d" % (OQ, 36 * PAIR))
        for m in range(4):
            A("buffer_load_dwordx4 v%d, s[4:7], s%d offen offset:%d lds" % (20 + m, OP, m * 1024))
        A("s_add_u32 m0, s%d, s%d" % (RING, M0Q))
        A("s_add_u32 s%d, s%d, s%d" % (OQ, OQ, B2Q))
        for m in range(3):
            A("buffer_load_dwordx4 v28, s[8:11], s%d offen offset:%d %s lds" % (OQ, m * 1024, HL))
        A("s_add_u32 s%d, s%d, 1" % (N2, N2))
        A("s_add_u32 s%d, s%d, 1" % (M6, M6))
        A("s_cmp_eq_u32 s%d, 6" % M6)
        A("s_cselect_b32 s%d, 0, s%d" % (M6, M6))
        for t in slot_adv(): A(t)
    B3P, B3C, B3U, N3, PH3, M0X, M0Q3 = 52, 53, 54, 55, 46, 47, 29
    def setup3():
        A("s_lshl_b32 s%d, s%d, 16" % (B3P, LW))
        A("s_lshl_b32 s44, s%d, 8" % ST)
        A("s_add_u32 s%d, s%d, s44" % (B3P, B3P))
        A("s_mul_i32 s%d, s%d, %d" % (B3C, D3, 144 * 1152))
        A("s_mul_i32 s%d, s%d, %d" % (B3U, D3, 9 * PAIR))
        A("s_mul_i32 s44, s%d, %d" % (SP, 18 * 36 * PAIR))
        A("s_add_u32 s%d, s%d, s44" % (B3U, B3U))
        A("s_mov_b32 s%d, s%d" % (N3, F0))
        A("s_add_u32 s%d, s%d, s%d" % (PH3, D3, ST))
        A("s_and_b32 s%d, s%d, 3" % (PH3, PH3))
        A("s_lshl_b32 s%d, s%d, 10" % (M0X, LW))
        A("s_add_u32 s%d, s%d, %d" % (M0X, M0X, 32768))
        A("s_add_u32 s%d, s%d, 16384" % (M0Q3, M0P))
    def issue3f(extra):
        srd(A, 4, PWS, SZ_HT, WS_HT)
        A("s_cmp_ge_u32 s%d, 9" % N3)
        A("s_cselect_b32 s8, s%d, s%d" % (PCIM, PCRE))
        A("s_cselect_b32 s9, s%d, s%d" % (PCIM + 1, PCRE + 1))
        A("s_cselect_b32 s44, 9, 0")
        A("s_mov_b32 s10, %d" % SZ_C)
        A("s_mov_b32 s11, 0x00020000")
        A("s_lshl_b32 s%d, s%d, 18" % (OP, N3))
        A("s_add_u32 s%d, s%d, s%d" % (OP, OP, B3P))
        A("s_add_u32 m0, s%d, s%d" % (RING, M0P))
        A("s_sub_u32 s44, s%d, s44" % N3)
        for m in range(4):
            A("buffer_load_dwordx4 v%d, s[4:7], s%d offen offset:%d %s lds" % (24 + m, OP, m * 1024, HL))
        A("s_lshl_b32 s44, s44, 7")
        A("s_add_u32 s44, s44, s%d" % B3C)
        A("s_mul_i32 s%d, s%d, %d" % (OQ, LW, 32 * 1152))
        A("s_add_u32 m0, s%d, s%d" % (RING, M0Q3))
        A("s_add_u32 s%d, s%d, s44" % (OQ, OQ))
        for m in range(4):
            A("buffer_load_dwordx4 v%d, s[8:11], s%d offen offset:%d lds" % (30 + m, OQ, m * 1024))
        if extra:
            A("s_mul_i32 s%d, s%d, %d" % (OQ, LW, 8 * 1152))
            A("s_add_u32 s44, s44, %d" % (128 * 1152))
            A("s_add_u32 m0, s%d, s%d" % (RING, M0X))
            A("s_add_u32 s%d, s%d, s44" % (OQ, OQ))
            A("buffer_load_dwordx4 v30, s[8:11], s%d offen lds" % OQ)
        A("s_add_u32 s%d, s%d, 1" % (N3, N3))
        for t in slot_adv(): A(t)
    def switch3u():
        srd(A, 4, PW2, SZ_W)
        srd(A, 8, PWS, SZ_UF, WS_UF)
        A("s_mul_i32 s44, s%d, %d" % (SP, 18 * 262144))
        A("s_add_u32 s%d, s%d, s44" % (B3P, B3P))
        A("s_mov_b32 s%d, 0" % N3)
    def issue3u(extra):
        if cfg.rot3:
            A("s_and_b32 s45, s%d, 3" % N3)
            A("s_add_u32 s44, s%d, 4" % N3)
            A("s_cmp_lt_u32 s44, 18")
            A("s_cselect_b32 s44, s44, s45")
            A("s_cmp_eq_u32 s45, s%d" % PH3)
            A("s_cselect_b32 s44, s44, s%d" % N3)
        else:
            A("s_mov_b32 s44, s%d" % N3)
        A("s_lshl_b32 s%d, s44, 18" % OP)
        A("s_add_u32 s%d, s%d, s%d" % (OP, OP, B3P))
        A("s_add_u32 m0, s%d, s%d" % (RING, M0P))
        A("s_mul_i32 s44, s44, %d" % (36 * PAIR))
        for m in range(4):
            A("buffer_load_dwordx4 v%d, s[4:7], s%d offen offset:%d lds" % (24 + m, OP, m * 1024))
        A("s_add_u32 s44, s44, s%d" % B3U)
        A("s_add_u32 m0, s%d, s%d" % (RING, M0Q3))
        A("s_add_u32 s%d, s44, s%d" % (OQ, M0P))
        for m in range(4):
            A("buffer_load_dwordx4 v28, s[8:11], s%d offen offset:%d %s lds" % (OQ, m * 1024, HL))
        if extra:
            A("s_add_u32 s44, s44, s%d" % M0X)
            A("s_add_u32 m0, s%d, s%d" % (RING, M0X))
            A("s_sub_u32 s%d, s44, 16384" % OQ)
            A("buffer_load_dwordx4 v28, s[8:11], s%d offen %s lds" % (OQ, HL))
        A("s_add_u32 s%d, s%d, 1" % (N3, N3))
        for t in slot_adv(): A(t)
    def step(wait, issue):
        A("s_waitcnt vmcnt(%d)" % wait)
        A("s_barrier")
        if issue: issue()
    def lloop(label, count, wait, issue):
        if isinstance(count, int): A("s_mov_b32 s%d, %d" % (CNT, count))
        else: A(count)
        A.label(label)
        step(wait, issue)
        A("s_sub_u32 s%d, s%d, 1" % (CNT, CNT))
        A("s_cmp_lg_u32 s%d, 0" % CNT)
        A("s_cbranch_scc1 %s" % label)
    issue1(); issue1()
    ids23(); lane23(); setup2()
    issue1(); issue1()
    step(21, None); step(14, None)
    lloop("l1_loop", 5, 7, issue1)
    srd2()
    step(7, issue2); step(7, issue2)
    A("s_branch l2_main")
    A.label("l2_entry")
    A("s_sub_u32 s%d, s%d, 4" % (LW, WAVE))
    A("s_lshl_b32 s%d, s%d, 12" % (M0P, LW))
    A("s_mul_i32 s%d, s%d, 3072" % (M0Q, LW))
    A("s_add_u32 s%d, s%d, 16384" % (M0Q, M0Q))
    lane23(); setup2(); srd2()
    issue2(); issue2()
    A.label("l2_main")
    setup3()
    lloop("l2_loop", 30, 7, issue2)
    A("s_cmp_ge_u32 s%d, 2" % LW)
    A("s_cbranch_scc1 l3b_t")
    for (sfx, extra, per) in (("a", True, 9), ("b", False, 8)):
        if sfx == "b": A.label("l3b_t")
        step(7, lambda: issue3f(extra)); step(per, lambda: issue3f(extra))
        A("s_branch l3%s_main" % sfx)
        A.label("l3%s_entry" % sfx)
        issue3f(extra); issue3f(extra)
        A.label("l3%s_main" % sfx)
        lloop("l3%s_f" % sfx, "s_sub_u32 s%d, s%d, 2" % (CNT, NF), per, lambda: issue3f(extra))
        switch3u()
        lloop("l3%s_u" % sfx, 18, per, lambda: issue3u(extra))
        step(per, None); step(0, None)
        A("s_branch fin")
    A.label("l3_entry")
    A("s_sub_u32 s%d, s%d, 4" % (LW, WAVE))
    A("s_lshl_b32 s%d, s%d, 12" % (M0P, LW))
    lane23(); setup3()
    A("s_cmp_ge_u32 s%d, 2" % LW)
    A("s_cbranch_scc1 l3b_entry")
    A("s_branch l3a_entry")

    WR, WC = 40, 41
    KEY3 = 42
    def lane_c23():
        A("v_lshrrev_b32 v5, 2, v2")
        A("v_and_b32 v6, 7, v5")
        A("v_and_b32 v7, 3, v2")
        A("v_lshlrev_b32 v7, 3, v7")
        A("v_lshl_add_u32 v7, v5, 8, v7")
        A("s_lshl_b32 s44, s%d, 2" % WR)
        for aa in range(4):
            A("s_add_u32 s45, s44, %d" % aa)
            A("v_xor_b32 v8, s45, v6")
            A("v_lshl_add_u32 v%d, v8, 5, v7" % (204 + aa))
        A("s_mul_i32 s45, s%d, 6144" % WC)
        A("s_add_u32 s45, s45, 16384")
        A("v_lshlrev_b32 v216, 4, v2")
        A("v_add_u32 v208, s45, v216")
        A("s_lshl_b32 s44, s%d, 1" % WAVE)
        for aa in range(2):
            A("s_add_u32 s45, s44, %d" % aa)
            A("v_xor_b32 v8, s45, v6")
            A("v_lshl_add_u32 v%d, v8, 5, v7" % (209 + aa))
        A("v_and_b32 v3, 15, v2")
        A("v_lshrrev_b32 v4, 4, v2")
        A("v_and_b32 v5, 7, v3")
        A("v_xor_b32 v5, v5, v4")
        A("v_lshlrev_b32 v5, 4, v5")
        A("v_lshl_add_u32 v5, v3, 7, v5")
        A("v_add_u32 v211, 16384, v5")
        A("v_xor_b32 v212, 64, v211")
        A("v_add_u32 v213, 16384, v216")
        A("v_add_u32 v214, 17408, v216")
        A("v_lshlrev_b32 v217, 3, v4")
    def wrwc():
        A("s_and_b32 s%d, s%d, 1" % (WR, WAVE))
        A("s_lshr_b32 s%d, s%d, 1" % (WC, WAVE))
    RAW = 164; X = 174; TT_ = 220; RS = 1344
    S0, S2, M, MB, RSV = 192, 193, 194, 196, 197
    LA = 238
    def ln_load():
        A("s_lshr_b32 s44, s2, 2")
        A("s_lshl_b32 s44, s44, 5")
        A("s_and_b32 s45, s2, 3")
        A("s_lshl_b32 s45, s45, 2")
        A("s_add_u32 s44, s44, s45")
        A("s_lshr_b32 s45, s%d, 1" % WAVE)
        A("s_lshl_b32 s45, s45, 4")
        A("s_add_u32 s44, s44, s45")
        A("s_and_b32 s45, s%d, 1" % WAVE)
        A("s_lshl_b32 s45, s45, 1")
        A("s_add_u32 s51, s44, s45")
        A("s_mul_i32 s44, s51, 1152")
        A("v_lshrrev_b32 v3, 5, v2")
        A("v_and_b32 v4, 31, v2")
        A("v_mul_u32_u24 v5, 1152, v3")
        A("v_lshl_add_u32 v6, v4, 2, v5")
        A("v_lshl_add_u32 v5, v4, 3, v5")
        A("s_waitcnt lgkmcnt(0)")
        srd(A, 4, PX, SZ_X)
        for j in range(4):
            A("buffer_load_dwordx2 %s, v5, s[4:7], s44 offen offset:%d" % (v(RAW + 2 * j, 2), j * 256))
        A("buffer_load_dword v%d, v6, s[4:7], s44 offen offset:1024" % (RAW + 8))
        A("s_mul_i32 s45, s%d, %d" % (WAVE, 2 * RS))
        A("s_add_u32 s45, s45, %d" % LDS_OWN)
        A("v_mul_u32_u24 v%d, %d, v3" % (LA, RS))
        A("v_add_u32 v%d, s45, v%d" % (LA, LA))
        A("v_lshl_add_u32 v195, v4, 2, v%d" % LA)
        A("v_lshl_add_u32 v%d, v4, 3, v%d" % (LA, LA))
        A("v_lshlrev_b32 v198, 3, v3")
        A("v_bfe_u32 v5, v2, 2, 2")
        A("v_mul_u32_u24 v5, %d, v5" % RS)
        A("v_and_b32 v6, 3, v2")
        A("v_lshl_add_u32 v5, v6, 3, v5")
        A("v_lshrrev_b32 v6, 4, v2")
        A("v_lshl_add_u32 v5, v6, 5, v5")
        A("s_lshl_b32 s45, s%d, 7" % WAVE)
        A("s_add_u32 s45, s45, %d" % LDS_OWN)
        A("v_add_u32 v%d, s45, v5" % (LA + 1))
        A("v_and_b32 v5, 15, v2")
        A("v_lshlrev_b32 v5, 4, v5")
        A("v_lshl_add_u32 v199, v6, 11, v5")
    N = 18
    def unpack(src):
        for j in range(9):
            A("v_lshlrev_b32 v%d, 16, v%d" % (X + 2 * j, src + j))
            A("v_and_b32 v%d, 0xffff0000, v%d" % (X + 2 * j + 1, src + j))
    def sum32(r):
        row16_sum(A, r)
        A("v_mov_b32 v%d, v%d" % (S2, r))
        A("s_nop 1")
        A("v_permlane16_swap_b32 v%d, v%d" % (r, S2))
        A("s_nop 1")
        A("v_add_f32 v%d, v%d, v%d" % (r, r, S2))
    def layernorm():
        A("v_add_f32 v%d, v%d, v%d" % (S0, X, X + 1))
        A("v_add_f32 v%d, v%d, v%d" % (S2, X + 2, X + 3))
        for j in range(4, N, 2):
            A("v_add_f32 v%d, v%d, v%d" % (S0, S0, X + j))
            A("v_add_f32 v%d, v%d, v%d" % (S2, S2, X + j + 1))
        A("v_add_f32 v%d, v%d, v%d" % (S0, S0, S2))
        sum32(S0)
        A("v_mul_f32 v%d, s46, v%d" % (M, S0))
        round_bf16(A, MB, M)
        for j in range(N): A("v_sub_f32 v%d, v%d, v%d" % (TT_ + j, X + j, M))
        A("v_mul_f32 v%d, v%d, v%d" % (S0, TT_, TT_))
        A("v_mul_f32 v%d, v%d, v%d" % (S2, TT_ + 1, TT_ + 1))
        for j in range(2, N, 2):
            A("v_fmac_f32 v%d, v%d, v%d" % (S0, TT_ + j, TT_ + j))
            A("v_fmac_f32 v%d, v%d, v%d" % (S2, TT_ + j + 1, TT_ + j + 1))
        A("v_add_f32 v%d, v%d, v%d" % (S0, S0, S2))
        sum32(S0)
        A("v_mul_f32 v%d, s46, v%d" % (S0, S0))
        round_bf16(A, S0, S0)
        A("v_add_f32 v%d, s47, v%d" % (S0, S0))
        round_bf16(A, S0, S0)
        A("v_sqrt_f32 v%d, v%d" % (S0, S0))
        for j in range(N): A("v_sub_f32 v%d, v%d, v%d" % (X + j, X + j, MB))
        round_bf16(A, S0, S0)
        A("v_rcp_f32 v%d, v%d" % (RSV, S0))
        for j in range(9): A("v_cvt_pk_bf16_f32 v%d, v%d, v%d" % (RAW + j, X + 2 * j, X + 2 * j + 1))
        unpack(RAW)
        for j in range(N): A("v_mul_f32 v%d, v%d, v%d" % (X + j, X + j, RSV))
        for j in range(9): A("v_cvt_pk_bf16_f32 v%d, v%d, v%d" % (RAW + j, X + 2 * j, X + 2 * j + 1))
    def ln_compute():
        srd(A, 8, PWS, SZ_HF, WS_HF)
        srd(A, 12, PWS, SZ_ST, WS_ST)
        A("s_mov_b32 s46, 0x%x" % f2u(1.0 / 576))
        A("s_mov_b32 s47, 0x%x" % f2u(1e-5))
        A("s_lshl_b32 s51, s51, 3")
        A("s_waitcnt vmcnt(0)")
        tag_issue(A)
        unpack(RAW)
        layernorm()
        A("s_mov_b32 exec_lo, 1\ns_mov_b32 exec_hi, 1")
        A("buffer_store_dwordx2 v[%d:%d], v198, s[12:15], s51 offen sc1" % (MB, RSV))
        A("s_mov_b64 exec, -1")
        unpack(RAW)
        layernorm()
        for j in range(4):
            A("ds_write_b64 v%d, %s offset:%d" % (LA, v(RAW + 2 * j, 2), j * 256))
        A("ds_write_b32 v195, v%d offset:1024" % (RAW + 8))
        A("s_lshr_b32 s44, s2, 3")
        A("s_mul_i32 s44, s44, 9")
        A("s_add_u32 s44, s44, s%d" % WAVE)
        A("s_lshl_b32 s44, s44, 13")
        A("s_and_b32 s45, s2, 7")
        A("s_lshl_b32 s45, s45, 8")
        A("s_add_u32 s44, s44, s45")
        A("s_waitcnt lgkmcnt(0)")
    def ln_store():
        sk = A.newlabel("lns")
        for k in range(3):
            A("ds_read_b64_tr_b16 %s, v%d offset:%d" % (v(X + 4 * k, 2), LA + 1, k * 512))
            A("ds_read_b64_tr_b16 %s, v%d offset:%d" % (v(X + 4 * k + 2, 2), LA + 1, k * 512 + 4 * RS))
        for k in range(3):
            if k == 2:
                A("s_cmp_lg_u32 s%d, 0" % WAVE)
                A("s_cbranch_scc1 %s" % sk)
            A("s_waitcnt lgkmcnt(%d)" % (4 - 2 * k))
            A("buffer_store_dwordx4 %s, v199, s[8:11], s44 offen sc1" % v(X + 4 * k, 4))
            A("s_add_u32 s44, s44, %d" % (16 * 2048))
        A.label(sk)
        A("s_waitcnt lgkmcnt(0)")
    def pubH():
        sk = A.newlabel("ph")
        A("s_cmp_lg_u32 s%d, 0" % WAVE)
        A("s_cbranch_scc1 %s" % sk)
        A("s_lshl_b32 s52, s2, 3")
        publish(A, 52)
        A.label(sk)
    A.label("c1_entry")
    ln_load()
    A("s_or_b32 s44, s2, s%d" % WAVE)
    A("s_cbranch_scc1 c1_notag")
    srd(A, 60, PDBG, 256)
    A("s_or_b32 s%d, s%d, 1" % (TAG, TAG))
    A("v_mov_b32 v4, s%d\nv_mov_b32 v5, s%d\nv_mov_b32 v6, 0" % (TAG, TAG + 1))
    A("s_mov_b64 exec, 1")
    A("buffer_store_dwordx2 v[4:5], v6, s[60:63], 0 offen sc1")
    A("s_mov_b64 exec, -1")
    A.label("c1_notag")
    wrwc()
    A("v_and_b32 v3, 15, v2")
    A("v_lshrrev_b32 v4, 4, v2")
    A("v_and_b32 v5, 7, v3")
    A("v_xor_b32 v5, v5, v4")
    A("v_lshlrev_b32 v5, 4, v5")
    A("v_lshl_add_u32 v5, v3, 7, v5")
    A("v_and_b32 v6, 1, v3")
    A("v_lshrrev_b32 v7, 1, v3")
    A("v_and_b32 v8, 6, v7")
    A("v_or_b32 v8, v8, v6")
    A("v_xor_b32 v8, v8, v4")
    A("v_lshlrev_b32 v8, 4, v8")
    A("v_mul_u32_u24 v6, 48, v6")
    A("v_add_u32 v6, v6, v7")
    A("v_lshl_add_u32 v8, v6, 7, v8")
    A("s_lshl_b32 s44, s%d, 13" % WR)
    A("s_mul_i32 s45, s%d, 3072" % WC)
    A("s_add_u32 s45, s45, 16384")
    A("v_add_u32 v200, s44, v5")
    A("v_xor_b32 v201, 64, v200")
    A("v_add_u32 v202, s45, v8")
    A("v_xor_b32 v203, 64, v202")
    A("v_lshlrev_b32 v218, 4, v4")
    A("v_lshl_add_u32 v218, v3, 6, v218")
    CA = 10
    for i in range(4): A("v_mov_b32 v%d, v%d" % (CA + i, 200 + i))
    ACC1 = 32; SETS1 = [80, 108]; RSUM = 136; CSUM = 152; ONES = 20
    for i in range(48): A("v_mov_b32 v%d, 0" % (ACC1 + i))
    for i in range(12): A("v_mov_b32 v%d, 0" % (CSUM + i))
    A("v_lshlrev_b32 v219, 4, v3")
    for i in range(4): A("v_mov_b32 v%d, 0x3f803f80" % (ONES + i))
    ids23(); lane_c23()
    srd(A, FSRD, PWS, SZ_FL, WS_FL)
    def reads1(st, ks):
        b = SETS1[st]
        P = lambda aa: "ds_read_b128 %s, v%d offset:%d" % (v(b + 4 * aa, 4), CA + ks, aa * 2048)
        Q = lambda xb: "ds_read_b128 %s, v%d offset:%d" % (v(b + 16 + 4 * xb, 4), CA + 2 + ks, xb * 1024)
        return [P(0), Q(0), Q(1), Q(2), P(1), P(2), P(3)]
    def mfmas1(st):
        b = SETS1[st]; m = []
        for aa in range(4):
            for xb in range(3):
                d = v(ACC1 + (aa * 3 + xb) * 4, 4)
                m.append(("%s %s, %s, %s, %s" % (MFMA, d, v(b + 16 + 4 * xb, 4), v(b + 4 * aa, 4), d), max(1 + xb, 3 + aa if aa else 0)))
            if aa < 3:
                d = v(CSUM + 4 * aa, 4)
                m.append(("%s %s, %s, %s, %s" % (MFMA, d, v(b + 16 + 4 * aa, 4), v(ONES, 4), d), 0))
        return m
    def upd1():
        sa = slot_adv()
        return [(5, sa[0]), (6, sa[1]), (7, sa[2])] + [(8 + i, "v_add_u32 v%d, s%d, v%d" % (CA + i, RING, 200 + i)) for i in range(4)]
    def only3(fn):
        def f():
            sk = A.newlabel("w3")
            A("s_cmp_lg_u32 s%d, 3" % WAVE)
            A("s_cbranch_scc1 %s" % sk)
            fn()
            A.label(sk)
        return f
    ln_compute()
    stamp(A, cfg, 1)
    A("s_barrier")
    ln_store()
    A("s_barrier")
    stamp(A, cfg, 2)
    def statld():
        srd(A, 12, PWS, SZ_ST, WS_ST)
        A("s_lshl_b32 s44, s%d, 1" % TT)
        A("s_add_u32 s44, s44, s%d" % WR)
        A("s_lshl_b32 s44, s44, 9")
        for ap in range(2):
            A("buffer_load_dwordx4 %s, v219, s[12:15], s44 offen offset:%d sc1" % (v(RSUM + 4 * ap, 4), ap * 256))
    ev1 = [("%d" % cfg.e1[0], lambda: tag_check(A)), ("%d" % (cfg.e1[0] - 1), pubH), ("3", only3(lambda: wide_issue(A))), ("2", only3(lambda: (stamp(A, cfg, 11), wide_check(A), stamp(A, cfg, 14)))), ("1", statld)]
    late.append(consumer_phase(A, "c1", reads1, mfmas1, upd1, 9, (0, 4), ev1, 14))
    stamp(A, cfg, 3)
    A("s_barrier")
    srd(A, 12, PWS, SZ_G, WS_G)
    A("s_mul_i32 s44, s%d, 6" % PT)
    A("s_mul_i32 s45, s%d, 3" % WC)
    A("s_add_u32 s44, s44, s45")
    A("s_lshl_b32 s44, s44, 16")
    A("s_lshl_b32 s45, s%d, 1" % TT)
    A("s_add_u32 s45, s45, s%d" % WR)
    A("s_lshl_b32 s45, s45, 11")
    A("s_add_u32 s46, s44, s45")
    A("s_add_u32 s47, s46, 65536")
    A("s_add_u32 s48, s46, 131072")
    MN = 80; RR = 88
    A("s_waitcnt vmcnt(0)")
    for aa in range(4):
        for q in range(2):
            A("v_sub_f32 v%d, 0, v%d" % (MN + 2 * aa + q, RSUM + 2 * aa))
            A("v_mov_b32 v%d, v%d" % (RR + 2 * aa + q, RSUM + 2 * aa + 1))
    for ap in range(2):
        for xb in range(3):
            O = 168 + 4 * (ap * 3 + xb)
            hq = [(h, q) for h in range(2) for q in range(2)]
            D_ = lambda h, q: ACC1 + ((2 * ap + h) * 3 + xb) * 4 + 2 * q
            for h, q in hq: A("v_pk_fma_f32 %s, %s, %s, %s" % (v(D_(h, q), 2), v(MN + 2 * (2 * ap + h), 2), v(CSUM + 4 * xb + 2 * q, 2), v(D_(h, q), 2)))
            for h, q in hq: A("v_pk_mul_f32 %s, %s, %s" % (v(D_(h, q), 2), v(D_(h, q), 2), v(RR + 2 * (2 * ap + h), 2)))
            for h, q in hq: A("v_cvt_pk_bf16_f32 v%d, v%d, v%d" % (O + 2 * h + q, D_(h, q), D_(h, q) + 1))
            A("buffer_store_dwordx4 %s, v218, s[12:15], s%d offen offset:%d sc1" % (v(O, 4), 46 + xb, ap * 1024))
    A("s_lshl_b32 s52, s%d, 4" % PT)
    A("s_add_u32 s52, s52, s%d" % TT)
    A("s_lshl_b32 s52, s52, 2")
    A("s_add_u32 s52, s52, s%d" % WAVE)
    A("s_lshl_b32 s52, s52, 3")
    A("s_add_u32 s52, s52, %d" % FL_G)
    ACC2 = 32; SETS2 = [80, 108]; BIAS = 20
    A("s_mov_b32 s53, 1")
    A("s_branch c2_main")
    A.label("c2_entry")
    wrwc(); lane_c23()
    A("s_mov_b32 s53, 0")
    A("s_barrier")
    A.label("c2_main")
    for i in range(48): A("v_mov_b32 v%d, 0" % (ACC2 + i))
    for i in range(5): A("v_add_u32 v%d, s%d, v%d" % (CA + i, RING, 204 + i))
    A("s_barrier")
    stamp(A, cfg, 4)
    def reads2(st, ks):
        b = SETS2[st]
        P = lambda aa: ["ds_read_b64_tr_b16 %s, v%d offset:%d" % (v(b + 4 * aa, 2), CA + aa, ks * 8192),
                        "ds_read_b64_tr_b16 %s, v%d offset:%d" % (v(b + 4 * aa + 2, 2), CA + aa, ks * 8192 + 4096)]
        Q = lambda xb: ["ds_read_b128 %s, v%d offset:%d" % (v(b + 16 + 4 * xb, 4), CA + 4, xb * 2048 + ks * 1024)]
        return P(0) + Q(0) + Q(1) + Q(2) + P(1) + P(2) + P(3)
    def mfmas2(st):
        b = SETS2[st]; m = []
        for aa in range(4):
            for xb in range(3):
                d = v(ACC2 + (aa * 3 + xb) * 4, 4)
                m.append(("%s %s, %s, %s, %s" % (MFMA, d, v(b + 4 * aa, 4), v(b + 16 + 4 * xb, 4), d), max(2 + xb, 4 + 2 * aa if aa else 0)))
        return m
    def upd2():
        sa = slot_adv()
        U = lambda i: "v_add_u32 v%d, s%d, v%d" % (CA + i, RING, 204 + i)
        return [(0, sa[0]), (1, sa[1]), (2, sa[2]), (4, U(0)), (5, U(4)), (7, U(1)), (9, U(2)), (11, U(3))]
    def pubG():
        sk = A.newlabel("pg")
        A("s_cmp_eq_u32 s53, 0")
        A("s_cbranch_scc1 %s" % sk)
        A("s_waitcnt vmcnt(0)")
        publish(A, 52)
        A.label(sk)
    def biasld():
        srd(A, 12, PB1, 9216)
        A("s_lshl_b32 s44, s%d, 8" % FT)
        A("s_lshl_b32 s45, s%d, 7" % WR)
        A("s_add_u32 s44, s44, s45")
        for aa in range(4):
            A("buffer_load_dwordx2 %s, v217, s[12:15], s44 offen offset:%d" % (v(BIAS + 2 * aa, 2), aa * 32))
        A("s_lshr_b32 s43, s%d, 1" % ST)
        A("s_lshl_b32 s43, s43, 9")
        A("s_add_u32 s43, s43, %d" % FL_T)
    ev2 = [("30", lambda: (pubG(), stamp(A, cfg, 10))), ("8", biasld), ("4", only3(lambda: gate_issue(A, 43))), ("2", only3(lambda: gate_check(A, 43, (1 << 36) - 1)))]
    late.append(consumer_phase(A, "c2", reads2, mfmas2, upd2, 32, (0, 3, 6), ev2, 10))
    stamp(A, cfg, 5)
    A("s_barrier")
    c1 = -2.0 * math.sqrt(2.0 / math.pi) * math.log2(math.e); c2 = c1 * 0.044715
    for (r, val) in ((28, c1), (136, c2), (138, 1.0)):
        A("v_mov_b32 v%d, 0x%x\nv_mov_b32 v%d, 0x%x" % (r, f2u(val), r + 1, f2u(val)))
    srd(A, 12, PWS, SZ_UF, WS_UF)
    A("s_lshl_b32 s44, s%d, 1" % FT)
    A("s_add_u32 s44, s44, s%d" % WR)
    A("s_lshl_b32 s45, s%d, 1" % DT)
    A("s_add_u32 s45, s45, s%d" % WC)
    A("s_mul_i32 s46, s44, 12")
    A("s_add_u32 s46, s46, s45")
    A("s_mul_i32 s46, s46, %d" % (3 * PAIR))
    A("s_add_u32 s47, s46, 4096")
    A("s_mul_i32 s48, s44, 3641")
    A("s_lshr_b32 s48, s48, 16")
    A("s_mul_i32 s49, s45, 21846")
    A("s_lshr_b32 s49, s49, 16")
    A("s_mul_i32 s50, s48, 18")
    A("s_sub_u32 s50, s44, s50")
    A("s_sub_u32 s50, s50, s49")
    A("s_mul_i32 s50, s50, 3")
    A("s_add_u32 s50, s50, s45")
    A("s_lshl_b32 s50, s50, 3")
    A("s_lshl_b32 s49, s49, 2")
    A("s_add_u32 s49, s49, s48")
    A("s_lshl_b32 s49, s49, 9")
    A("s_add_u32 s52, s50, s49")
    A("s_add_u32 s52, s52, %d" % FL_U)
    A("s_waitcnt vmcnt(0)")
    BF = 104
    for k in range(8):
        A("v_lshlrev_b32 v%d, 16, v%d" % (BF + 2 * k, BIAS + k))
        A("v_and_b32 v%d, 0xffff0000, v%d" % (BF + 2 * k + 1, BIAS + k))
    T = 80
    for ap in range(2):
        for xb in range(3):
            prs = [ACC2 + ((ap * 2 + h) * 3 + xb) * 4 + 2 * q for h in range(2) for q in range(2)]
            for i, x in enumerate(prs): A("v_pk_add_f32 %s, %s, %s" % (v(x, 2), v(x, 2), v(BF + ap * 8 + 2 * i, 2)))
            for i, x in enumerate(prs): A("v_pk_mul_f32 %s, %s, %s" % (v(T + 2 * i, 2), v(x, 2), v(x, 2)))
            for i, x in enumerate(prs): A("v_pk_fma_f32 %s, %s, v[136:137], v[28:29]" % (v(T + 2 * i, 2), v(T + 2 * i, 2)))
            for i, x in enumerate(prs): A("v_pk_mul_f32 %s, %s, %s" % (v(T + 2 * i, 2), v(T + 2 * i, 2), v(x, 2)))
            for i in range(8): A("v_exp_f32 v%d, v%d" % (T + i, T + i))
            for i, x in enumerate(prs): A("v_pk_add_f32 %s, %s, v[138:139]" % (v(T + 2 * i, 2), v(T + 2 * i, 2)))
            for i in range(8): A("v_rcp_f32 v%d, v%d" % (T + i, T + i))
            for i, x in enumerate(prs): A("v_pk_mul_f32 %s, %s, %s" % (v(T + 2 * i, 2), v(T + 2 * i, 2), v(x, 2)))
            O = 220 + 4 * (ap * 3 + xb)
            for i in range(4):
                A("v_cvt_pk_bf16_f32 v%d, v%d, v%d" % (O + i, T + 2 * i, T + 2 * i + 1))
            off = xb * 2048 + ap * 1024
            A("buffer_store_dwordx4 %s, v216, s[12:15], s%d offen offset:%d sc1" % (v(O, 4), 46 + off // 4096, off % 4096))
    ACC3 = 24; SETS3 = [96, 140]
    A("s_barrier")
    for i in range(72): A("v_mov_b32 v%d, 0" % (ACC3 + i))
    A("s_waitcnt vmcnt(0)")
    publish(A, 52)
    A("s_branch c3_main")
    A.label("c3_entry")
    wrwc(); lane_c23()
    for i in range(72): A("v_mov_b32 v%d, 0" % (ACC3 + i))
    A("s_barrier")
    A("s_barrier")
    A.label("c3_main")
    stamp(A, cfg, 6)
    for i in range(4): A("v_add_u32 v%d, s%d, v%d" % (CA + i, RING, 209 + i))
    def reads3(st, ks):
        b = SETS3[st]; r = ["ds_read_b128 %s, v%d offset:0" % (v(b + 8, 4), CA + 2 + ks)]
        for aa in range(2):
            r.append("ds_read_b64_tr_b16 %s, v%d offset:%d" % (v(b + 4 * aa, 2), CA + aa, ks * 8192))
            r.append("ds_read_b64_tr_b16 %s, v%d offset:%d" % (v(b + 4 * aa + 2, 2), CA + aa, ks * 8192 + 4096))
        for xb in range(1, 9):
            r.append("ds_read_b128 %s, v%d offset:%d" % (v(b + 8 + 4 * xb, 4), CA + 2 + ks, xb * 2048))
        return r
    def mfmas3(st):
        b = SETS3[st]; m = []
        for xb in range(9):
            for aa in range(2):
                d = v(ACC3 + (xb * 2 + aa) * 4, 4)
                m.append(("%s %s, %s, %s, %s" % (MFMA, d, v(b + 8 + 4 * xb, 4), v(b + 4 * aa, 4), d), max(2 + 2 * aa, 4 + xb if xb else 0)))
        return m
    def upd3():
        sa = slot_adv()
        U = lambda i: "v_add_u32 v%d, s%d, v%d" % (CA + i, RING, 209 + i)
        return [(7, sa[0]), (8, sa[1]), (9, sa[2]), (11, U(0)), (13, U(1)), (14, U(2)), (15, U(3))]
    A("s_lshl_b32 s43, s%d, 2" % D3)
    A("s_add_u32 s43, s43, s%d" % SP)
    A("s_lshl_b32 s43, s43, 9")
    A("s_add_u32 s43, s43, %d" % FL_U)
    A("s_sub_u32 s54, s%d, 2" % KT3)
    def pub_and_issue():
        only3(lambda: gate_issue(A, 43))()
    def umode():
        A("v_mov_b32 v211, v213\nv_mov_b32 v212, v214")
        A("v_add_u32 v%d, s%d, v213" % (CA + 2, RING))
        A("v_add_u32 v%d, s%d, v214" % (CA + 3, RING))
    ev3 = [("s54", pub_and_issue), ("20", only3(lambda: (stamp(A, cfg, 12), gate_check(A, 43, (1 << 54) - 1), stamp(A, cfg, 13)))), ("18", umode)]
    late.append(consumer_phase(A, "c3", reads3, mfmas3, upd3, "s%d" % KT3, (0, 6), ev3, 16))
    stamp(A, cfg, 7)
    srd(A, 12, PWS, SZ_EX, WS_EX)
    A("s_lshl_b32 s44, s%d, 2" % ST)
    A("s_add_u32 s44, s44, s%d" % D3)
    A("s_lshl_b32 s44, s44, 2")
    A("s_add_u32 s44, s44, s%d" % WAVE)
    A("s_lshl_b32 s52, s44, 7")
    A("s_lshl_b32 s45, s%d, 3" % SP)
    A("s_add_u32 s52, s52, s45")
    A("s_add_u32 s52, s52, %d" % FL_X)
    A("s_lshl_b32 s44, s44, 2")
    A("s_add_u32 s44, s44, s%d" % SP)
    A("s_mul_i32 s44, s44, 9216")
    A("s_cmp_eq_u32 s%d, s%d" % (WAVE, SP))
    A("s_cbranch_scc1 c3_own")
    for xb in range(9):
        o = 96 + 4 * xb
        for k in range(4):
            A("v_cvt_pk_bf16_f32 v%d, v%d, v%d" % (o + k, ACC3 + 8 * xb + 2 * k, ACC3 + 8 * xb + 2 * k + 1))
        A("buffer_store_dwordx4 %s, v216, s[12:15], s44 offen offset:%d sc1" % (v(o, 4), (xb % 4) * 1024))
        if xb % 4 == 3: A("s_add_u32 s44, s44, 4096")
    A("s_waitcnt vmcnt(0)")
    publish(A, 52)
    if cfg.stamp:
        A("s_barrier")
        A("s_branch k_done")
    A("s_endpgm")
    A.label("c3_own")
    A("v_add_u32 v10, %d, v216" % LDS_OWN)
    for t in range(18):
        A("ds_write_b128 v10, %s offset:%d" % (v(ACC3 + 4 * t, 4), t * 1024))
    A("s_waitcnt lgkmcnt(0)")
    A("s_barrier")
    A("s_branch k_done")
    for f in late: f()

    A.label("fin")
    stamp(A, cfg, 7)
    XR = 24; DS = 36; STT = 42; B2 = 72; BASE = 48; PR = 80; OWN = 120
    A("v_and_b32 v3, 15, v2")
    A("v_lshrrev_b32 v4, 4, v2")
    A("s_movk_i32 s44, 1152")
    A("v_mul_lo_u32 v6, v3, s44")
    A("v_lshl_add_u32 v6, v4, 3, v6")
    A("v_lshlrev_b32 v7, 1, v6")
    A("v_lshlrev_b32 v8, 3, v4")
    A("v_lshlrev_b32 v5, 3, v3")
    A("v_lshlrev_b32 v3, 1, v3")
    A("s_lshl_b32 s44, s%d, 3" % ST)
    A("s_lshl_b32 s45, s%d, 1" % SP)
    A("s_add_u32 s44, s44, s45")
    A("s_mul_i32 s45, s%d, 9" % D3)
    A("s_add_u32 s45, s45, s%d" % LW)
    A("s_lshl_b32 s45, s45, 5")
    A("s_mul_i32 s46, s44, %d" % (16 * 1152))
    A("s_add_u32 s46, s46, s45")
    A("s_add_u32 s47, s46, %d" % (16 * 1152))
    A("s_lshl_b32 s48, s44, 7")
    A("s_lshl_b32 s49, s44, 5")
    srd(A, 4, PWS, SZ_ST, WS_ST)
    srd(A, 8, PB2, 4096)
    for aa in range(2):
        A("buffer_load_dwordx2 %s, v5, s[4:7], s48 offen offset:%d %s" % (v(STT + 2 * aa, 2), aa * 128, HL))
        A("buffer_load_ushort v%d, v3, s[8:11], s49 offen offset:%d" % (B2 + 2 * aa, aa * 32))
    srd(A, 4, PX, SZ_X)
    srd(A, 8, PDSK, 1152)
    for n in range(3):
        if n == 2:
            A("s_cmp_lg_u32 s%d, 0" % LW)
            A("s_cbranch_scc1 fin_a")
        A("buffer_load_dwordx2 %s, v8, s[8:11], s45 offen offset:%d" % (v(DS + 2 * n, 2), n * 128))
        for aa in range(2):
            A("buffer_load_dwordx2 %s, v6, s[4:7], s%d offen offset:%d" % (v(XR + 4 * n + 2 * aa, 2), (46, 47)[aa], n * 128))
    A.label("fin_a")
    tag_issue(A)
    A("s_lshl_b32 s54, s46, 1")
    A("s_lshl_b32 s55, s47, 1")
    A("v_lshlrev_b32 v9, 4, v2")
    A("s_lshl_b32 s44, s%d, 2" % ST)
    A("s_add_u32 s44, s44, s%d" % D3)
    A("s_lshl_b32 s44, s44, 2")
    A("s_add_u32 s44, s44, s%d" % SP)
    A("s_lshl_b32 s43, s44, 7")
    A("s_add_u32 s43, s43, %d" % FL_X)
    A("s_mul_i32 s47, s44, %d" % (4 * 9216))
    A("s_lshl_b32 s46, s%d, 10" % LW)
    A("s_add_u32 s47, s47, s46")
    for j in range(3):
        A("s_add_u32 s48, s%d, %d" % (SP, 1 + j))
        A("s_and_b32 s48, s48, 3")
        A("s_mul_i32 s48, s48, 9216")
        A("s_add_u32 s%d, s47, s48" % (49 + j))
    A("v_add_u32 v15, 4096, v9")
    A("v_add_u32 v18, 8192, v9")
    A("s_lshl_b32 s46, s%d, 11" % LW)
    A("s_add_u32 s46, s46, %d" % LDS_OWN)
    A("v_add_u32 v10, s46, v9")
    A("s_lshl_b32 s52, 1, s%d" % SP)
    A("s_xor_b32 s52, s52, 15")
    A("s_mov_b32 s53, 0")
    srd(A, FSRD, PWS, SZ_FL, WS_FL)
    srd(A, 12, PWS, SZ_EX, WS_EX)
    srd(A, 8, POUT, 2048 * 576 * 4)
    tag_check(A)
    for aa in range(2): A("v_lshlrev_b32 v%d, 16, v%d" % (B2 + 2 * aa, B2 + 2 * aa))
    for n in range(3):
        dd = 76; xx = 116; tt = 144
        for h in range(2):
            A("v_lshlrev_b32 v%d, 16, v%d" % (dd + 2 * h, DS + 2 * n + h))
            A("v_and_b32 v%d, 0xffff0000, v%d" % (dd + 2 * h + 1, DS + 2 * n + h))
        for aa in range(2):
            b = BASE + 8 * n + 4 * aa
            for h in range(2):
                A("v_lshlrev_b32 v%d, 16, v%d" % (xx + 2 * h, XR + 4 * n + 2 * aa + h))
                A("v_and_b32 v%d, 0xffff0000, v%d" % (xx + 2 * h + 1, XR + 4 * n + 2 * aa + h))
            for r in range(4): A("v_mul_f32 v%d, v%d, v%d" % (tt + r, dd + r, STT + 2 * aa + 1))
            for r in range(4): A("v_add_f32 v%d, v%d, v%d" % (b + r, xx + r, B2 + 2 * aa))
            for r in range(4): A("v_sub_f32 v%d, v%d, v%d" % (xx + r, xx + r, STT + 2 * aa))
            for r in range(4): A("v_fmac_f32 v%d, v%d, v%d" % (b + r, xx + r, tt + r))
    A("s_barrier")
    stamp(A, cfg, 8)
    gate_issue(A, 43)
    for n in range(3):
        for aa in range(2):
            A("ds_read_b128 %s, v10 offset:%d" % (v(OWN + 8 * n + 4 * aa, 4), n * 8192 + aa * 1024))
    A("s_waitcnt lgkmcnt(0)")
    for k in range(12):
        A("v_pk_add_f32 %s, %s, %s" % (v(BASE + 2 * k, 2), v(BASE + 2 * k, 2), v(OWN + 2 * k, 2)))
    gate_check(A, 43, "s[52:53]")
    stamp(A, cfg, 9)
    def ld(n):
        for j in range(3):
            A("buffer_load_dwordx4 %s, v%d, s[12:15], s%d offen sc1" % (v(PR + (n * 3 + j) * 4, 4), (9, 15, 18)[n], 49 + j))
    def fin(n):
        b = BASE + 8 * n
        for j in range(3):
            p = PR + (n * 3 + j) * 4
            for k in range(4):
                A("v_lshlrev_b32 v%d, 16, v%d" % (28 + 2 * (k % 2), p + k))
                A("v_and_b32 v%d, 0xffff0000, v%d" % (29 + 2 * (k % 2), p + k))
                A("v_pk_add_f32 %s, %s, %s" % (v(b + 2 * k, 2), v(b + 2 * k, 2), v(28 + 2 * (k % 2), 2)))
    def st(n):
        for aa in range(2):
            A("buffer_store_dwordx4 %s, v7, s[8:11], s%d offen offset:%d" % (v(BASE + 8 * n + 4 * aa, 4), (54, 55)[aa], n * 256))
    A("s_cmp_lg_u32 s%d, 0" % LW)
    A("s_cbranch_scc1 fin_b")
    ld(2); ld(0); ld(1)
    A("s_waitcnt vmcnt(6)"); fin(2)
    A("s_waitcnt vmcnt(3)"); fin(0)
    A("s_waitcnt vmcnt(0)"); st(2); st(0); fin(1); st(1)
    A("s_branch k_done")
    A.label("fin_b")
    ld(0); ld(1)
    A("s_waitcnt vmcnt(3)"); fin(0)
    A("s_waitcnt vmcnt(0)"); st(0); fin(1); st(1)
    A.label("k_done")
    stamp_end(A, cfg)
    A.label("k_end")
    A("s_endpgm")

    A.label("ln_entry")
    KB = 29
    PFI = 23
    A("s_sub_u32 s%d, s%d, 24" % (KB, SLOTR))
    A("s_lshl_b32 s%d, s%d, 3" % (KB, KB))
    A("s_add_u32 s%d, s%d, s%d" % (KB, KB, XCD))
    A("s_cmp_ge_u32 s%d, 4" % WAVE)
    A("s_cbranch_scc1 ln_hi")
    ln_load()
    ids23()
    srd(A, FSRD, PWS, SZ_FL, WS_FL)
    ln_compute()
    stamp(A, cfg, 1)
    A("s_barrier")
    ln_store()
    tag_check(A)
    A("s_barrier")
    pubH()
    stamp(A, cfg, 2)
    A("s_branch ln_join")
    A.label("ln_hi")
    ids23()
    A("v_lshlrev_b32 v120, 7, v2")
    A("s_waitcnt lgkmcnt(0)")
    srd(A, FSRD, PWS, SZ_FL, WS_FL)
    A("s_lshl_b32 s44, s%d, 2" % KB)
    A("s_add_u32 s44, s44, s%d" % WAVE)
    A("s_sub_u32 s44, s44, 4")
    A("s_mov_b32 s4, s%d\ns_mov_b32 s5, s%d\ns_mov_b32 s6, 0\ns_mov_b32 s45, 0" % (PB1, PB1 + 1))
    for (w, ptr, sz) in ((32, PB1, 9216), (33, PB1, 9216), (34, PB2, 4096), (35, PDSK, 1152), (36, PLRE, 1152), (37, PLIM, 1152), (38, PLOGDT, 1152)):
        A("s_cmp_eq_u32 s44, %d" % w)
        A("s_cselect_b32 s4, s%d, s4" % ptr)
        A("s_cselect_b32 s5, s%d, s5" % (ptr + 1))
        A("s_cselect_b32 s6, %d, s6" % sz)
        if w == 33: A("s_cselect_b32 s45, 8192, s45")
    A("s_mov_b32 s7, 0x00020000")
    A("s_cmp_eq_u32 s6, 0")
    A("s_cbranch_scc1 ln_nt")
    A("buffer_load_dword v121, v120, s[4:7], s45 offen")
    A.label("ln_nt")
    if cfg.codepf:
        A("s_cmp_ge_u32 s44, 32")
        A("s_cbranch_scc1 ln_nc")
        A("s_getpc_b64 s[46:47]")
        A.label("ln_pc")
        A("s_sub_u32 s46, s46, ln_pc-%s" % KN)
        A("s_subb_u32 s47, s47, 0")
        A("s_and_b32 s45, s44, 3")
        A("s_lshl_b32 s45, s45, 13")
        A("v_add_u32 v122, s45, v120")
        A("s_mov_b32 s45, text_end-%s" % KN)
        for r in range(2):
            A("v_cmp_gt_u32 vcc, s45, v122")
            A("s_and_saveexec_b64 s[48:49], vcc")
            A("s_cbranch_execz ln_nc2")
            A("global_load_dword v%d, v122, s[46:47]" % (123 + r))
            A("v_add_u32 v122, 32768, v122")
        A.label("ln_nc2")
        A("s_mov_b64 exec, -1")
        A.label("ln_nc")
    A("s_barrier")
    srd(A, 4, PW1, SZ_W)
    A("s_lshl_b32 s45, s44, 13")
    for r in range(cfg.lnpf):
        A("buffer_load_dword v121, v120, s[4:7], s45 offen")
        A("s_add_u32 s45, s45, %d" % (256 * 8192))
    tag_issue(A)
    A("s_barrier")
    tag_check(A)
    A.label("ln_join")
    A("s_cmp_ge_u32 s%d, 27" % SLOTR)
    A("s_cbranch_scc1 scan_entry")
    A("s_cmp_lg_u32 s%d, 0" % WAVE)
    A("s_cbranch_scc1 ln_g")
    A("s_sleep 16")
    wide_issue(A)
    wide_check(A)
    A.label("ln_g")
    A("s_waitcnt vmcnt(0)")
    A("s_barrier")
    stamp(A, cfg, 3)
    A("s_cmp_lt_u32 s%d, 4" % WAVE)
    A("s_cbranch_scc1 c2_entry")
    A("s_branch l2_entry")

    A.label("scan_entry")
    CB = 29
    A("s_sub_u32 s%d, s%d, 24" % (CB, KB))
    A("v_lshlrev_b32 v56, 7, v2")
    A("s_lshl_b32 s%d, s%d, 3" % (PFI, CB))
    A("s_add_u32 s%d, s%d, s%d" % (PFI, PFI, WAVE))
    A("s_add_u32 s%d, s%d, %d" % (PFI, PFI, 256 * cfg.lnpf))
    def scpf(lo=0):
        pf_decode(A, PFI, 60, 58, 54, lo=lo)
        A("buffer_load_dword v57, v56, s[60:63], s58 offen")
        A("s_add_u32 s%d, s%d, 320" % (PFI, PFI))
    for _ in range(cfg.pf_a): scpf()
    A("s_add_u32 s%d, s%d, %d" % (PFI, PFI, L_C - 320 * cfg.pf_a - 256 * cfg.lnpf))
    for _ in range(cfg.pf_a2): scpf(L_C)
    A("s_cmp_lt_u32 s%d, 36" % CB)
    A("s_cbranch_scc1 scan2")
    for _ in range(sum(cfg.scm) + cfg.pf_b): scpf(L_C)
    A("s_branch scan_done")
    A.label("scan2")
    A("v_and_b32 v3, 7, v0")
    A("v_lshrrev_b32 v4, 3, v0")
    A("v_lshlrev_b32 v5, 10, v4")
    A("v_and_b32 v6, 3, v3")
    A("v_lshl_add_u32 v5, v6, 4, v5")
    A("v_lshrrev_b32 v6, 2, v3")
    A("v_lshl_add_u32 v5, v6, 16, v5")
    A("s_lshl_b32 s40, s%d, 17" % CB)
    A("v_lshlrev_b32 v9, 2, v3")
    A("s_lshl_b32 s41, s%d, 5" % CB)
    for (r, ptr) in ((10, PLRE), (11, PLIM), (12, PLOGDT)):
        srd(A, 4, ptr, 1152)
        A("buffer_load_dword v%d, v9, s[4:7], s41 offen" % r)
    L = [18, 20]; L32 = [22, 24]; L256 = [26, 28]; C2 = [30, 32]
    A("s_mov_b32 s44, 0x%x" % f2u(math.log2(math.e)))
    A("s_mov_b32 s45, 0x%x" % f2u(1.0 / (2 * math.pi)))
    A("s_waitcnt vmcnt(0)")
    def sq(d, s_):
        A("v_mul_f32 v40, v%d, v%d" % (s_ + 1, s_ + 1))
        A("v_mul_f32 v41, v%d, v%d" % (s_, s_ + 1))
        A("v_fma_f32 v%d, v%d, v%d, -v40" % (d, s_, s_))
        A("v_add_f32 v%d, v41, v41" % (d + 1))
    for c in range(2):
        for (d, s_) in ((34, 10), (35, 11), (36, 12)):
            if c == 0: A("v_lshlrev_b32 v%d, 16, v%d" % (d, s_))
            else: A("v_and_b32 v%d, 0xffff0000, v%d" % (d, s_))
        A("v_mul_f32 v36, s44, v36")
        A("v_exp_f32 v36, v36")
        A("s_nop 0")
        round_bf16(A, 36, 36)
        A("v_mul_f32 v37, v36, v34")
        A("v_mul_f32 v38, v36, v35")
        A("v_mul_f32 v37, s44, v37")
        A("v_mul_f32 v38, s45, v38")
        A("v_exp_f32 v37, v37")
        A("v_fract_f32 v38, v38")
        A("v_cos_f32 v39, v38")
        A("v_sin_f32 v38, v38")
        A("s_nop 0")
        A("v_mul_f32 v%d, v37, v39" % L[c])
        A("v_mul_f32 v%d, v37, v38" % (L[c] + 1))
        sq(L32[c], L[c])
        for _ in range(4): sq(L32[c], L32[c])
        sq(L256[c], L32[c])
        for _ in range(2): sq(L256[c], L256[c])
        A("v_add_f32 v37, -1.0, v%d" % L[c])
        A("v_mul_f32 v38, v34, v34")
        A("v_fmac_f32 v38, v35, v35")
        A("v_rcp_f32 v38, v38")
        A("v_mul_f32 v39, v37, v34")
        A("v_fmac_f32 v39, v%d, v35" % (L[c] + 1))
        A("v_mul_f32 v40, v%d, v34" % (L[c] + 1))
        A("v_fma_f32 v40, -v37, v35, v40")
        A("v_add_f32 v38, v38, v38")
        A("v_mul_f32 v%d, v39, v38" % C2[c])
        A("v_mul_f32 v%d, v40, v38" % (C2[c] + 1))
    A("s_mul_i32 s43, s%d, 21846" % CB)
    A("s_lshr_b32 s43, s43, 16")
    A("s_lshl_b32 s43, s43, 9")
    A("s_add_u32 s43, s43, %d" % FL_G)
    A("s_cmp_lg_u32 s%d, 0" % WAVE)
    A("s_cbranch_scc1 scan_g")
    gate_issue(A, 43)
    gate_check(A, 43, (1 << 64) - 1)
    A.label("scan_g")
    A("s_barrier")
    stamp(A, cfg, 3)
    srd(A, 4, PWS, SZ_G, WS_G)
    srd(A, 12, PWS, SZ_HT, WS_HT)
    G0 = 56; RW = 184
    for j in range(16):
        A("buffer_load_dwordx4 %s, v5, s[4:7], s40 offen offset:%d %s" % (v(RW + 4 * j, 4), j * 64, cfg.gl))
    LDS_AGG = 9216; LDS_WAGG = LDS_AGG + 8192
    H = 10; T2 = 34
    def stepf(Lr, src):
        for c in range(2):
            A("v_pk_fma_f32 %s, %s, %s, %s op_sel_hi:[0,1,1]" % (v(T2 + 2 * c, 2), v(Lr[c], 2), v(H + 2 * c, 2), v(src + 2 * c, 2)))
        for c in range(2):
            A("v_pk_fma_f32 %s, %s, %s, %s op_sel:[1,1,0] op_sel_hi:[1,0,1] neg_lo:[1,0,0]" % (v(H + 2 * c, 2), v(Lr[c], 2), v(H + 2 * c, 2), v(T2 + 2 * c, 2)))
    for i in range(4): A("v_mov_b32 v%d, 0" % (H + i))
    for j in range(16):
        A("s_waitcnt vmcnt(%d)" % (15 - j))
        for e in range(2):
            g = G0 + 4 * (2 * j + e)
            for c in range(2):
                A("v_lshlrev_b32 v%d, 16, v%d" % (g + 2 * c, RW + 4 * j + 2 * e + c))
                A("v_and_b32 v%d, 0xffff0000, v%d" % (g + 2 * c + 1, RW + 4 * j + 2 * e + c))
        for e in range(2): stepf(L, G0 + 4 * (2 * j + e))
    A("v_lshlrev_b32 v8, 7, v2")
    def scpf2():
        pf_decode(A, PFI, 60, 58, 54, lo=L_C)
        A("buffer_load_dword v9, v8, s[60:63], s58 offen")
        A("s_add_u32 s%d, s%d, 320" % (PFI, PFI))
    for _ in range(cfg.scm[0] + cfg.scm[1]): scpf2()
    stamp(A, cfg, 4)
    A("v_lshlrev_b32 v15, 4, v3")
    A("v_lshlrev_b32 v17, 4, v0")
    A("ds_write_b128 v17, %s offset:%d" % (v(H, 4), LDS_AGG))
    A("s_lshl_b32 s44, s%d, 10" % WAVE)
    A("v_add_u32 v17, s44, v15")
    A("s_waitcnt lgkmcnt(0)")
    AG = 184; WG_ = 216
    for j in range(8): A("ds_read_b128 %s, v17 offset:%d" % (v(AG + 4 * j, 4), LDS_AGG + j * 128))
    A("s_waitcnt lgkmcnt(7)")
    for i in range(4): A("v_mov_b32 v%d, v%d" % (H + i, AG + i))
    for j in range(1, 8):
        A("s_waitcnt lgkmcnt(%d)" % (7 - j))
        stepf(L32, AG + 4 * j)
    A("s_lshl_b32 s44, s%d, 7" % WAVE)
    A("v_add_u32 v17, s44, v15")
    A("ds_write_b128 v17, %s offset:%d" % (v(H, 4), LDS_WAGG))
    A("s_waitcnt lgkmcnt(0)")
    A("s_barrier")
    for j in range(7): A("ds_read_b128 %s, v15 offset:%d" % (v(WG_ + 4 * j, 4), LDS_WAGG + j * 128))
    for i in range(4): A("v_mov_b32 v%d, 0" % (H + i))
    A("v_lshrrev_b32 v17, 3, v2")
    A("s_waitcnt lgkmcnt(0)")
    for j in range(7):
        A("s_cmp_le_u32 s%d, %d" % (WAVE, j))
        A("s_cbranch_scc1 scan_w")
        stepf(L256, WG_ + 4 * j)
    A.label("scan_w")
    for j in range(7):
        A("v_cmpx_lt_u32 vcc, %d, v17" % j)
        stepf(L32, AG + 4 * j)
    A("s_mov_b64 exec, -1")
    A("s_barrier")
    stamp(A, cfg, 10)
    for _ in range(cfg.scm[2]): scpf2()
    A("s_mul_i32 s44, s%d, %d" % (WAVE, 32 * 528))
    A("v_mul_u32_u24 v48, 528, v3")
    A("v_lshl_add_u32 v48, v17, 6, v48")
    A("v_add_u32 v48, s44, v48")
    A("v_lshrrev_b32 v49, 5, v2")
    A("v_and_b32 v50, 31, v2")
    A("v_lshlrev_b32 v50, 4, v50")
    A("v_mul_u32_u24 v51, 528, v49")
    A("v_add3_u32 v51, v51, v50, s44")
    A("v_lshl_add_u32 v50, v49, 13, v50")
    A("s_lshr_b32 s45, s%d, 1" % CB)
    A("s_lshl_b32 s45, s45, 5")
    A("s_and_b32 s46, s%d, 1" % CB)
    A("s_lshl_b32 s46, s46, 3")
    A("s_add_u32 s45, s45, s46")
    A("s_lshl_b32 s45, s45, 12")
    A("s_lshl_b32 s46, s%d, 9" % WAVE)
    A("s_add_u32 s45, s45, s46")
    PK = 184
    for blk in range(4):
        for k in range(8):
            g = G0 + 4 * (blk * 8 + k)
            stepf(L, g)
            for c in range(2):
                A("v_pk_mul_f32 %s, %s, %s op_sel_hi:[0,1] neg_hi:[1,0]" % (v(g + 2 * c, 2), v(C2[c], 2), v(H + 2 * c, 2)))
            for c in range(2):
                A("v_pk_fma_f32 %s, %s, %s, %s op_sel:[1,1,0] op_sel_hi:[1,0,1] neg_lo:[1,0,0] neg_hi:[1,0,0]" % (v(g + 2 * c, 2), v(C2[c], 2), v(H + 2 * c, 2), v(g + 2 * c, 2)))
        pkb = PK + blk * 16
        for q in range(4):
            for k in range(4):
                g = G0 + 4 * (blk * 8 + 2 * k)
                A("v_cvt_pk_bf16_f32 v%d, v%d, v%d" % (pkb + 4 * q + k, g + q, g + 4 + q))
        for q in range(4):
            A("ds_write_b128 v48, %s offset:%d" % (v(pkb + 4 * q, 4), q * 8 * 528 + blk * 16))
    A("s_waitcnt lgkmcnt(0)")
    stamp(A, cfg, 11)
    for n in range(16):
        A("ds_read_b128 %s, v51 offset:%d" % (v(G0 + 4 * n, 4), n * 2 * 528))
        if n == 7: A("s_waitcnt lgkmcnt(0)")
    for n in range(16):
        q = n >> 2; k = n & 3; c = q >> 1; part = q & 1
        row = 16 * (k & 1) + 4 * (k >> 1) + c + 576 * part
        if n >= 8: A("s_waitcnt lgkmcnt(%d)" % (15 - n))
        A("s_add_u32 s46, s45, %d" % (row * 4096))
        A("buffer_store_dwordx4 %s, v50, s[12:15], s46 offen sc1" % v(G0 + 4 * n, 4))
    A("s_lshl_b32 s52, s%d, 9" % WAVE)
    A("s_lshl_b32 s44, s%d, 3" % CB)
    A("s_add_u32 s52, s52, s44")
    A("s_add_u32 s52, s52, %d" % FL_T)
    A("s_waitcnt vmcnt(0)")
    publish(A, 52)
    stamp(A, cfg, 5)
    A("s_barrier")
    for _ in range(cfg.pf_b): scpf2()
    A.label("scan_done")
    A("s_lshr_b32 s43, s%d, 1" % ST)
    A("s_lshl_b32 s43, s43, 9")
    A("s_add_u32 s43, s43, %d" % FL_T)
    A("s_cmp_lg_u32 s%d, 0" % WAVE)
    A("s_cbranch_scc1 scan_h")
    gate_issue(A, 43)
    gate_check(A, 43, (1 << 36) - 1)
    A.label("scan_h")
    A("s_waitcnt vmcnt(0)")
    A("s_barrier")
    A("s_cmp_lt_u32 s%d, 4" % WAVE)
    A("s_cbranch_scc1 c3_entry")
    A("s_branch l3_entry")
    A.label("text_end")
    A("s_endpgm")

    HEADER = open("cdna_kernels/%s.s.ref" % NAME).read().split("; @launch")[0]
    out = HEADER + "; @launch grid=(256,1,1) block=(512,1,1) lds=163840\n"
    out += '.amdgcn_target "amdgcn-amd-amdhsa--gfx950"\n.text\n' + A.text()
    out += '.section .rodata,"a"\n.p2align 6\n' + kd(KN, 256, 102)
    return out

if __name__ == "__main__":
    kw = {}
    for a_ in sys.argv[2:]:
        k, val = a_.split("=")
        kw[k] = ast.literal_eval(val)
    open(sys.argv[1], "w").write(gen(**kw))
```

```python
import sys, math, ast
from asmlib import *

NAME = "parallel_sum__ssm_conv_s5__mixer_token_mlp__prompt"
PAIR = 2048
WS_HF = 0x0;        SZ_HF = 32 * 36 * PAIR
WS_UF = 0x400000;   SZ_UF = 72 * 36 * PAIR
WS_G = 0xC00000;    SZ_G = 4718592
WS_HT = 0x1400000;  SZ_HT = 4718592
WS_ST = 0x1900000;  SZ_ST = 16384
WS_FL = 0x1910000;  SZ_FL = 65536
WS_EX = 0x2000000;  SZ_EX = 64 * 16 * 9216
WS_STAMP = 0xC000000
SZ_W = 2048 * 9216; SZ_C = 576 * 1152; SZ_X = 2359296
FL_H = 0
FL_G = 2048
FL_U = FL_G + 12 * 512
FL_T = FL_U + 16 * 512
FL_X = FL_T + 8 * 512
assert FL_X + 256 * 128 <= SZ_FL

PX, PLRE, PLIM, PBRE, PBIM, PCRE, PCIM, PLOGDT, PDSK, PBX, PW1, PB1, PW2, PB2, POUT, PDBG, PWS = [64 + 2 * i for i in range(17)]
WAVE, SLOTR, XCD = 20, 21, 22
TAG = 24
RING = 26
CNT = 27
EVT = 28
NS = 4; SLOT = 34816; LDS_OWN = NS * SLOT
MFMA = "v_mfma_f32_16x16x32_bf16"
SPIN = 1 << 17

class Cfg:
    stamp = False
    pf_a = 1
    scm = (0, 0, 0)
    pf_b = 2
    lnpf = 1
    rot1 = 1; rot2 = 1; rot3 = 1
    hl = "sc1"
    codepf = 1
    gl = ""
    pf_a2 = 1
    dbgst = 0
    e1 = (7,)

class G:
    pass

def stamp(A, cfg, idx):
    if cfg.stamp:
        A("s_memrealtime s[98:99]")
        A("s_waitcnt lgkmcnt(0)")
        A("v_writelane_b32 v255, s98, %d" % idx)

def stamp_end(A, cfg):
    if not cfg.stamp: return
    A("s_waitcnt vmcnt(0)")
    stamp(A, cfg, 15)
    srd(A, 4, PWS, 131072, WS_STAMP)
    A("s_lshl_b32 s30, s2, 3")
    A("s_add_u32 s30, s30, s%d" % WAVE)
    A("s_lshl_b32 s30, s30, 6")
    A("v_lshlrev_b32 v3, 2, v2")
    A("s_mov_b64 exec, 0xffff")
    A("buffer_store_dword v255, v3, s[4:7], s30 offen")
    if cfg.dbgst:
        A("s_cmp_lg_u32 s2, %d" % cfg.dbgst)
        A("s_cbranch_scc1 dbg_skip")
        srd(A, 4, PDBG, 256)
        A("v_readlane_b32 s31, v255, 0")
        A("s_nop 3")
        A("v_subrev_u32 v255, s31, v255")
        A("s_cmp_eq_u32 s%d, 3" % WAVE)
        A("s_cbranch_scc0 dbg_l")
        A("s_mov_b64 exec, 0x3ffc")
        A("buffer_store_dword v255, v3, s[4:7], 0 offen")
        A.label("dbg_l")
        A("s_cmp_eq_u32 s%d, 4" % WAVE)
        A("s_cbranch_scc0 dbg_skip")
        A("s_mov_b64 exec, 0x8000")
        A("buffer_store_dword v255, v3, s[4:7], 0 offen")
        A("s_mov_b64 exec, 0x200")
        A("buffer_store_dword v255, v3, s[4:7], 0 offen offset:20")
        A.label("dbg_skip")

def slot_adv(sreg=RING):
    return ["s_add_u32 s%d, s%d, %d" % (sreg, sreg, SLOT), "s_cmp_eq_u32 s%d, %d" % (sreg, NS * SLOT), "s_cselect_b32 s%d, 0, s%d" % (sreg, sreg)]

def row16_sum(A, r):
    for sh in (8, 4, 2, 1):
        A("s_nop 1")
        A("v_add_f32_dpp v%d, v%d, v%d row_ror:%d row_mask:0xf bank_mask:0xf" % (r, r, r, sh))

def round_bf16(A, dst, src):
    A("v_cvt_pk_bf16_f32 v%d, v%d, v%d" % (dst, src, src))
    A("v_lshlrev_b32 v%d, 16, v%d" % (dst, dst))

L_C = 2304; L_W2 = 2304 + 162; L_END = L_W2 + 72 * 32
def pf_decode(A, idx, d, off, t, lo=0):
    A("s_sub_u32 s%d, s%d, %d" % (off, idx, L_W2))
    A("s_bfe_u32 s%d, s%d, 0x20005" % (t, off))
    A("s_mul_i32 s%d, s%d, %d" % (t, t, 18 * 32))
    A("s_lshr_b32 s%d, s%d, 7" % (t + 1, off))
    A("s_lshl_b32 s%d, s%d, 5" % (t + 1, t + 1))
    A("s_add_u32 s%d, s%d, s%d" % (t, t, t + 1))
    A("s_and_b32 s%d, s%d, 31" % (off, off))
    A("s_add_u32 s%d, s%d, s%d" % (off, off, t))
    A("s_cmp_ge_u32 s%d, %d" % (idx, L_END))
    A("s_cselect_b32 s%d, 4096, s%d" % (off, off))
    A("s_mov_b32 s%d, s%d\ns_mov_b32 s%d, s%d\ns_mov_b32 s%d, %d" % (d, PW2, d + 1, PW2 + 1, d + 2, SZ_W))
    for (hi, sub, base, sz) in ((L_W2, L_C + 81, PCIM, SZ_C), (L_C + 81, L_C, PCRE, SZ_C), (L_C, 0, PW1, SZ_W)):
        if hi <= lo: continue
        A("s_sub_u32 s%d, s%d, %d" % (t, idx, sub))
        A("s_cmp_lt_u32 s%d, %d" % (idx, hi))
        A("s_cselect_b32 s%d, s%d, s%d" % (off, t, off))
        A("s_cselect_b32 s%d, s%d, s%d" % (d, base, d))
        A("s_cselect_b32 s%d, s%d, s%d" % (d + 1, base + 1, d + 1))
        A("s_cselect_b32 s%d, %d, s%d" % (d + 2, sz, d + 2))
    A("s_mov_b32 s%d, 0x00020000" % (d + 3))
    A("s_lshl_b32 s%d, s%d, 13" % (off, off))

FSRD = 16; VL8 = 248; VT = 250; VP = 252
def tag_issue(A):
    srd(A, 60, PDBG, 256)
    A("v_mov_b32 v249, 0")
    A("buffer_load_dwordx2 v[%d:%d], v249, s[60:63], 0 offen sc1" % (VT, VT + 1))
def tag_check(A):
    lp = A.newlabel("tg"); ok = A.newlabel("tg")
    A("s_mov_b32 s59, 0")
    A.label(lp)
    A("s_waitcnt vmcnt(0)")
    A("v_readfirstlane_b32 s%d, v%d" % (TAG, VT))
    A("s_add_u32 s59, s59, 1")
    A("s_cmp_lg_u32 s%d, 0" % TAG)
    A("s_cbranch_scc1 %s" % ok)
    A("s_cmp_gt_u32 s59, %d" % SPIN)
    A("s_cbranch_scc1 %s" % ok)
    A("s_sleep 2")
    tag_issue(A)
    A("s_branch %s" % lp)
    A.label(ok)
def publish(A, offreg):
    A("s_mov_b64 exec, 1")
    A("buffer_store_dwordx2 v[%d:%d], v%d, s[%d:%d], s%d offen sc1" % (VT, VT + 1, VL8, FSRD, FSRD + 3, offreg))
    A("s_mov_b64 exec, -1")
def gate_issue(A, offreg):
    A("buffer_load_dwordx2 v[%d:%d], v%d, s[%d:%d], s%d offen sc1" % (VP, VP + 1, VL8, FSRD, FSRD + 3, offreg))
def gate_check(A, offreg, mask):
    lp = A.newlabel("gt"); ok = A.newlabel("gt")
    A("s_mov_b32 s59, 0")
    if isinstance(mask, int):
        A("s_mov_b32 s56, 0x%x" % (mask & 0xffffffff))
        A("s_mov_b32 s57, 0x%x" % (mask >> 32))
        mask = "s[56:57]"
    A.label(lp)
    A("s_waitcnt vmcnt(0)")
    A("v_cmp_ne_u64 vcc, v[%d:%d], v[%d:%d]" % (VP, VP + 1, VT, VT + 1))
    A("s_add_u32 s59, s59, 1")
    A("s_and_b64 vcc, vcc, %s" % mask)
    A("s_cbranch_scc0 %s" % ok)
    A("s_cmp_gt_u32 s59, %d" % SPIN)
    A("s_cbranch_scc1 %s" % ok)
    A("s_sleep 8")
    gate_issue(A, offreg)
    A("s_branch %s" % lp)
    A.label(ok)

VW = 240
def wide_issue(A):
    A("v_lshlrev_b32 v249, 4, v2")
    A("buffer_load_dwordx4 v[%d:%d], v249, s[%d:%d], 0 offen sc1" % (VW, VW + 3, FSRD, FSRD + 3))
    A("buffer_load_dwordx4 v[%d:%d], v249, s[%d:%d], 0 offen offset:1024 sc1" % (VW + 4, VW + 7, FSRD, FSRD + 3))
def wide_check(A):
    lp = A.newlabel("gw"); ok = A.newlabel("gw")
    A("s_mov_b32 s59, 0")
    A.label(lp)
    A("s_waitcnt vmcnt(0)")
    A("v_cmp_ne_u64 vcc, v[%d:%d], v[%d:%d]" % (VW, VW + 1, VT, VT + 1))
    for q in range(1, 4):
        A("v_cmp_ne_u64 s[56:57], v[%d:%d], v[%d:%d]" % (VW + 2 * q, VW + 2 * q + 1, VT, VT + 1))
        A("s_or_b64 vcc, vcc, s[56:57]")
    A("s_cbranch_scc0 %s" % ok)
    A("s_add_u32 s59, s59, 1")
    A("s_cmp_gt_u32 s59, %d" % SPIN)
    A("s_cbranch_scc1 %s" % ok)
    A("s_sleep 8")
    wide_issue(A)
    A("s_branch %s" % lp)
    A.label(ok)

def group(A, ms, rs, nprev, extra=(), pts=None):
    rs = list(rs); issued = 0; waited = -1
    for i, (m, need) in enumerate(ms):
        if pts is not None:
            if i in pts:
                nxt = min([p for p in pts if p > i] + [len(ms)])
                need = max(n for _, n in ms[i:nxt])
            else:
                assert need <= waited
        if need > waited:
            A("s_waitcnt lgkmcnt(%d)" % min(15, nprev - 1 - need + issued))
            waited = need
        A(m)
        if rs:
            A(rs.pop(0)); issued += 1
        for pos, t in extra:
            if pos == i: A(t)
    for r in rs: A(r)

def consumer_phase(A, pfx, reads, mfmas, addr_update, kt, pts, events, evpos):
    n = len(reads(0, 0)); nm = len(mfmas(1))
    for r in reads(0, 0): A(r)
    if isinstance(kt, int): A("s_mov_b32 s%d, %d" % (CNT, kt - 2))
    else: A("s_sub_u32 s%d, %s, 2" % (CNT, kt))
    A("s_mov_b32 s%d, %s" % (EVT, events[0][0] if events else "1000"))
    group(A, mfmas(0), reads(1, 1), n, addr_update(), pts)
    group(A, mfmas(1), reads(0, 0), n, (), pts)
    A.label(pfx + "_loop")
    group(A, mfmas(0), reads(1, 1), n, addr_update() + [(evpos, "s_cmp_eq_u32 s%d, s%d" % (CNT, EVT))], pts)
    A("s_cbranch_scc1 %s_ev" % pfx)
    A.label(pfx + "_evr")
    A("s_barrier")
    group(A, mfmas(1), reads(0, 0), n, [(nm - 3, "s_sub_u32 s%d, s%d, 1" % (CNT, CNT)), (nm - 2, "s_cmp_lg_u32 s%d, 0" % CNT)], pts)
    A("s_cbranch_scc1 %s_loop" % pfx)
    group(A, mfmas(0), reads(1, 1), n, [(i, t) for i, t in enumerate(slot_adv())], pts)
    group(A, mfmas(1), [], n, (), pts)
    def evcode():
        A.label(pfx + "_ev")
        for i, (key, fn) in enumerate(events):
            nx = A.newlabel(pfx + "_e")
            A("s_cmp_lg_u32 s%d, %s" % (CNT, key))
            A("s_cbranch_scc1 %s" % nx)
            fn()
            A("s_mov_b32 s%d, %s" % (EVT, events[i + 1][0] if i + 1 < len(events) else "1000"))
            A.label(nx)
        A("s_branch %s_evr" % pfx)
    return evcode

def gen(**kw):
    cfg = Cfg()
    for k, val in kw.items():
        assert hasattr(Cfg, k), k
        setattr(cfg, k, val)
    A = Asm()
    HL = cfg.hl
    late = []
    KN = NAME + "_kernel"
    A.raw(".globl %s\n.p2align 8\n.type %s,@function" % (KN, KN))
    A.label(KN)
    A("s_cmp_ge_u32 s2, 256")
    A("s_cbranch_scc1 k_end")
    A("s_load_dwordx16 s[64:79], s[0:1], 0")
    A("s_load_dwordx16 s[80:95], s[0:1], 64")
    A("s_load_dwordx2 s[96:97], s[0:1], 128")
    A("s_memrealtime s[%d:%d]" % (TAG, TAG + 1))
    A("v_lshrrev_b32 v1, 6, v0")
    A("v_and_b32 v2, 63, v0")
    A("v_readfirstlane_b32 s%d, v1" % WAVE)
    A("s_and_b32 s%d, s2, 7" % XCD)
    A("s_lshr_b32 s%d, s2, 3" % SLOTR)
    A("s_mov_b32 s%d, 0" % RING)
    A("v_lshlrev_b32 v%d, 3, v2" % VL8)
    if cfg.stamp:
        A("v_mov_b32 v255, 0")
        A("s_waitcnt lgkmcnt(0)")
        A("v_writelane_b32 v255, s%d, 0" % TAG)
    TT, PT, FT, DT, SP, ST, D3, KT3, NF, F0 = 30, 31, 32, 33, 34, 35, 36, 37, 38, 39
    A("s_cmp_ge_u32 s%d, 12" % SLOTR)
    A("s_cselect_b32 s%d, 1, 0" % TT)
    A("s_mul_i32 s%d, s%d, 12" % (PT, TT))
    A("s_sub_u32 s%d, s%d, s%d" % (PT, SLOTR, PT))
    A("s_lshl_b32 s3, s%d, 1" % XCD)
    A("s_add_u32 s%d, s%d, s3" % (TT, TT))
    A("s_cmp_ge_u32 s%d, 24" % SLOTR)
    A("s_cbranch_scc1 ln_entry")
    A("s_cmp_lt_u32 s%d, 4" % WAVE)
    A("s_cbranch_scc1 c1_entry")

    def ids23():
        A("s_mul_i32 s3, s%d, 27" % XCD)
        A("s_add_u32 s3, s3, s%d" % SLOTR)
        A("s_mul_i32 s%d, s3, 43691" % FT)
        A("s_lshr_b32 s%d, s%d, 18" % (FT, FT))
        A("s_mul_i32 s%d, s%d, 6" % (DT, FT))
        A("s_sub_u32 s%d, s3, s%d" % (DT, DT))
        A("s_lshr_b32 s%d, s%d, 1" % (SP, XCD))
        A("s_and_b32 s3, s%d, 1" % XCD)
        A("s_lshl_b32 s3, s3, 3")
        A("s_lshr_b32 s%d, s%d, 2" % (ST, SLOTR))
        A("s_add_u32 s%d, s%d, s3" % (ST, ST))
        A("s_and_b32 s%d, s%d, 3" % (D3, SLOTR))
        A("s_cmp_ge_u32 s%d, 2" % SP)
        A("s_cselect_b32 s%d, 4, 5" % NF)
        A("s_add_u32 s%d, s%d, 18" % (KT3, NF))
        A("s_mul_i32 s%d, s%d, 5" % (F0, SP))
        A("s_cmp_eq_u32 s%d, 3" % SP)
        A("s_cselect_b32 s%d, 14, s%d" % (F0, F0))

    LW = 23
    M0P, M0Q = 40, 41
    OP, OQ = 42, 43
    A("s_sub_u32 s%d, s%d, 4" % (LW, WAVE))
    A("v_lshrrev_b32 v3, 3, v2")
    A("v_and_b32 v4, 7, v2")
    A("v_xor_b32 v6, v4, v3")
    A("s_movk_i32 s44, 1152")
    A("v_mul_lo_u32 v5, v3, s44")
    A("v_lshlrev_b32 v8, 1, v5")
    A("v_lshl_add_u32 v10, v6, 4, v8")
    A("s_lshr_b32 s44, s%d, 1" % LW)
    A("v_and_b32 v7, 6, v3")
    A("v_or_b32 v7, s44, v7")
    A("v_xor_b32 v7, v4, v7")
    A("v_lshl_add_u32 v14, v7, 4, v5")
    for m in range(1, 4):
        A("v_add_u32 v%d, 0x%x, v10" % (10 + m, (16 * (m & 1) + (m >> 1)) * 1152 - (m & 1) * 1024))
    for m in range(1, 3):
        A("v_add_u32 v%d, 0x%x, v14" % (14 + m, m * (8 * 1152 - 1024)))
    A("s_lshl_b32 s%d, s%d, 7" % (OP, TT))
    A("s_lshl_b32 s45, s%d, 5" % LW)
    A("s_add_u32 s%d, s%d, s45" % (OP, OP))
    A("s_mul_i32 s%d, s%d, 1152" % (OP, OP))
    A("s_mul_i32 s%d, s%d, 48" % (OQ, PT))
    A("s_and_b32 s45, s%d, 1" % LW)
    A("s_mul_i32 s45, s45, 24")
    A("s_add_u32 s%d, s%d, s45" % (OQ, OQ))
    A("s_mul_i32 s%d, s%d, 1152" % (OQ, OQ))
    A("s_lshl_b32 s%d, s%d, 12" % (M0P, LW))
    A("s_mul_i32 s%d, s%d, 3072" % (M0Q, LW))
    A("s_add_u32 s%d, s%d, 16384" % (M0Q, M0Q))
    if cfg.rot1:
        A("s_lshl_b32 s46, s%d, 2" % TT)
        A("s_add_u32 s46, s46, s%d" % PT)
        A("s_mul_i32 s47, s46, 7282")
        A("s_lshr_b32 s47, s47, 16")
        A("s_mul_i32 s47, s47, 9")
        A("s_sub_u32 s46, s46, s47")
        A("s_lshl_b32 s47, s46, 7")
        A("s_add_u32 s%d, s%d, s47" % (OP, OP))
        A("s_add_u32 s%d, s%d, s47" % (OQ, OQ))
    A("s_waitcnt lgkmcnt(0)")
    srd(A, 4, PX, SZ_X)
    A("s_cmp_ge_u32 s%d, 2" % LW)
    A("s_cselect_b32 s8, s%d, s%d" % (PBIM, PBRE))
    A("s_cselect_b32 s9, s%d, s%d" % (PBIM + 1, PBRE + 1))
    A("s_mov_b32 s10, %d" % SZ_C)
    A("s_mov_b32 s11, 0x00020000")
    def issue1():
        A("s_add_u32 m0, s%d, s%d" % (RING, M0P))
        A("s_add_u32 s45, s%d, s%d" % (RING, M0Q))
        for m in range(4):
            if m == 2:
                A("s_add_u32 m0, m0, 2048")
                A("s_nop 0")
            A("buffer_load_dwordx4 v%d, s[4:7], s%d offen offset:%d lds" % (10 + m, OP, (m & 1) * 1024))
        A("s_mov_b32 m0, s45")
        A("s_add_u32 s%d, s%d, 128" % (OP, OP))
        for m in range(3):
            A("buffer_load_dwordx4 v%d, s[8:11], s%d offen offset:%d lds" % (14 + m, OQ, m * 1024))
        A("s_add_u32 s%d, s%d, 128" % (OQ, OQ))
        if cfg.rot1:
            A("s_add_u32 s46, s46, 1")
            A("s_cmp_eq_u32 s46, 9")
            A("s_cselect_b32 s47, 1152, 0")
            A("s_sub_u32 s%d, s%d, s47" % (OP, OP))
            A("s_sub_u32 s%d, s%d, s47" % (OQ, OQ))
        for t in slot_adv(): A(t)
    def lane23():
        A("v_lshrrev_b32 v3, 4, v2")
        A("v_and_b32 v4, 15, v2")
        A("v_lshlrev_b32 v6, 1, v3")
        A("v_xor_b32 v7, v4, v6")
        A("v_xor_b32 v8, 8, v7")
        for (b, stride) in ((20, 9216), (24, 4096)):
            A("s_movk_i32 s44, %d" % stride)
            A("v_mul_lo_u32 v5, v3, s44")
            A("v_lshl_add_u32 v%d, v7, 4, v5" % b)
            A("v_lshl_add_u32 v%d, v8, 4, v5" % (b + 1))
            D = 4 * stride - 1024
            A("v_add_u32 v%d, 0x%x, v%d" % (b + 2, 2 * D, b))
            A("v_add_u32 v%d, 0x%x, v%d" % (b + 3, 3 * D, b + 1))
            A("v_add_u32 v%d, 0x%x, v%d" % (b + 1, D, b + 1))
        A("v_lshlrev_b32 v28, 4, v2")
        A("v_lshrrev_b32 v3, 3, v2")
        A("v_and_b32 v4, 7, v2")
        A("v_xor_b32 v4, v4, v3")
        A("s_movk_i32 s44, 1152")
        A("v_mul_lo_u32 v5, v3, s44")
        A("v_lshl_add_u32 v30, v4, 4, v5")
        for m in range(1, 4):
            A("v_add_u32 v%d, 0x%x, v30" % (30 + m, m * (8 * 1152 - 1024)))
    B2P, B2Q, N2, M6 = 48, 49, 50, 51
    def setup2():
        A("s_mul_i32 s%d, s%d, %d" % (B2P, LW, 16 * 9216))
        A("s_lshl_b32 s44, s%d, 8" % FT)
        A("s_add_u32 s%d, s%d, s44" % (B2P, B2P))
        A("s_mul_i32 s%d, s%d, 12" % (B2Q, DT))
        A("s_mul_i32 s44, s%d, 3" % LW)
        A("s_add_u32 s%d, s%d, s44" % (B2Q, B2Q))
        A("s_lshl_b32 s%d, s%d, 10" % (B2Q, B2Q))
        A("s_mov_b32 s%d, 0\ns_mov_b32 s%d, 0" % (N2, M6))
    def srd2():
        srd(A, 4, PW1, SZ_W)
        srd(A, 8, PWS, SZ_HF, WS_HF)
    def issue2():
        if cfg.rot2:
            A("s_add_u32 s44, s%d, 6" % N2)
            A("s_cmp_lt_u32 s44, 32")
            A("s_cselect_b32 s44, s44, s%d" % M6)
            A("s_cmp_eq_u32 s%d, s%d" % (M6, DT))
            A("s_cselect_b32 s44, s44, s%d" % N2)
        else:
            A("s_mov_b32 s44, s%d" % N2)
        A("s_mul_i32 s%d, s44, %d" % (OP, 64 * 9216))
        A("s_add_u32 s%d, s%d, s%d" % (OP, OP, B2P))
        A("s_add_u32 m0, s%d, s%d" % (RING, M0P))
        A("s_mul_i32 s%d, s44, %d" % (OQ, 36 * PAIR))
        for m in range(4):
            A("buffer_load_dwordx4 v%d, s[4:7], s%d offen offset:%d lds" % (20 + m, OP, m * 1024))
        A("s_add_u32 m0, s%d, s%d" % (RING, M0Q))
        A("s_add_u32 s%d, s%d, s%d" % (OQ, OQ, B2Q))
        for m in range(3):
            A("buffer_load_dwordx4 v28, s[8:11], s%d offen offset:%d %s lds" % (OQ, m * 1024, HL))
        A("s_add_u32 s%d, s%d, 1" % (N2, N2))
        A("s_add_u32 s%d, s%d, 1" % (M6, M6))
        A("s_cmp_eq_u32 s%d, 6" % M6)
        A("s_cselect_b32 s%d, 0, s%d" % (M6, M6))
        for t in slot_adv(): A(t)
    B3P, B3C, B3U, N3, PH3, M0X, M0Q3 = 52, 53, 54, 55, 46, 47, 29
    def setup3():
        A("s_lshl_b32 s%d, s%d, 16" % (B3P, LW))
        A("s_lshl_b32 s44, s%d, 8" % ST)
        A("s_add_u32 s%d, s%d, s44" % (B3P, B3P))
        A("s_mul_i32 s%d, s%d, %d" % (B3C, D3, 144 * 1152))
        A("s_mul_i32 s%d, s%d, %d" % (B3U, D3, 9 * PAIR))
        A("s_mul_i32 s44, s%d, %d" % (SP, 18 * 36 * PAIR))
        A("s_add_u32 s%d, s%d, s44" % (B3U, B3U))
        A("s_mov_b32 s%d, s%d" % (N3, F0))
        A("s_add_u32 s%d, s%d, s%d" % (PH3, D3, ST))
        A("s_and_b32 s%d, s%d, 3" % (PH3, PH3))
        A("s_lshl_b32 s%d, s%d, 10" % (M0X, LW))
        A("s_add_u32 s%d, s%d, %d" % (M0X, M0X, 32768))
        A("s_add_u32 s%d, s%d, 16384" % (M0Q3, M0P))
    def issue3f(extra):
        srd(A, 4, PWS, SZ_HT, WS_HT)
        A("s_cmp_ge_u32 s%d, 9" % N3)
        A("s_cselect_b32 s8, s%d, s%d" % (PCIM, PCRE))
        A("s_cselect_b32 s9, s%d, s%d" % (PCIM + 1, PCRE + 1))
        A("s_cselect_b32 s44, 9, 0")
        A("s_mov_b32 s10, %d" % SZ_C)
        A("s_mov_b32 s11, 0x00020000")
        A("s_lshl_b32 s%d, s%d, 18" % (OP, N3))
        A("s_add_u32 s%d, s%d, s%d" % (OP, OP, B3P))
        A("s_add_u32 m0, s%d, s%d" % (RING, M0P))
        A("s_sub_u32 s44, s%d, s44" % N3)
        for m in range(4):
            A("buffer_load_dwordx4 v%d, s[4:7], s%d offen offset:%d %s lds" % (24 + m, OP, m * 1024, HL))
        A("s_lshl_b32 s44, s44, 7")
        A("s_add_u32 s44, s44, s%d" % B3C)
        A("s_mul_i32 s%d, s%d, %d" % (OQ, LW, 32 * 1152))
        A("s_add_u32 m0, s%d, s%d" % (RING, M0Q3))
        A("s_add_u32 s%d, s%d, s44" % (OQ, OQ))
        for m in range(4):
            A("buffer_load_dwordx4 v%d, s[8:11], s%d offen offset:%d lds" % (30 + m, OQ, m * 1024))
        if extra:
            A("s_mul_i32 s%d, s%d, %d" % (OQ, LW, 8 * 1152))
            A("s_add_u32 s44, s44, %d" % (128 * 1152))
            A("s_add_u32 m0, s%d, s%d" % (RING, M0X))
            A("s_add_u32 s%d, s%d, s44" % (OQ, OQ))
            A("buffer_load_dwordx4 v30, s[8:11], s%d offen lds" % OQ)
        A("s_add_u32 s%d, s%d, 1" % (N3, N3))
        for t in slot_adv(): A(t)
    def switch3u():
        srd(A, 4, PW2, SZ_W)
        srd(A, 8, PWS, SZ_UF, WS_UF)
        A("s_mul_i32 s44, s%d, %d" % (SP, 18 * 262144))
        A("s_add_u32 s%d, s%d, s44" % (B3P, B3P))
        A("s_mov_b32 s%d, 0" % N3)
    def issue3u(extra):
        if cfg.rot3:
            A("s_and_b32 s45, s%d, 3" % N3)
            A("s_add_u32 s44, s%d, 4" % N3)
            A("s_cmp_lt_u32 s44, 18")
            A("s_cselect_b32 s44, s44, s45")
            A("s_cmp_eq_u32 s45, s%d" % PH3)
            A("s_cselect_b32 s44, s44, s%d" % N3)
        else:
            A("s_mov_b32 s44, s%d" % N3)
        A("s_lshl_b32 s%d, s44, 18" % OP)
        A("s_add_u32 s%d, s%d, s%d" % (OP, OP, B3P))
        A("s_add_u32 m0, s%d, s%d" % (RING, M0P))
        A("s_mul_i32 s44, s44, %d" % (36 * PAIR))
        for m in range(4):
            A("buffer_load_dwordx4 v%d, s[4:7], s%d offen offset:%d lds" % (24 + m, OP, m * 1024))
        A("s_add_u32 s44, s44, s%d" % B3U)
        A("s_add_u32 m0, s%d, s%d" % (RING, M0Q3))
        A("s_add_u32 s%d, s44, s%d" % (OQ, M0P))
        for m in range(4):
            A("buffer_load_dwordx4 v28, s[8:11], s%d offen offset:%d %s lds" % (OQ, m * 1024, HL))
        if extra:
            A("s_add_u32 s44, s44, s%d" % M0X)
            A("s_add_u32 m0, s%d, s%d" % (RING, M0X))
            A("s_sub_u32 s%d, s44, 16384" % OQ)
            A("buffer_load_dwordx4 v28, s[8:11], s%d offen %s lds" % (OQ, HL))
        A("s_add_u32 s%d, s%d, 1" % (N3, N3))
        for t in slot_adv(): A(t)
    def step(wait, issue):
        A("s_waitcnt vmcnt(%d)" % wait)
        A("s_barrier")
        if issue: issue()
    def lloop(label, count, wait, issue):
        if isinstance(count, int): A("s_mov_b32 s%d, %d" % (CNT, count))
        else: A(count)
        A.label(label)
        step(wait, issue)
        A("s_sub_u32 s%d, s%d, 1" % (CNT, CNT))
        A("s_cmp_lg_u32 s%d, 0" % CNT)
        A("s_cbranch_scc1 %s" % label)
    issue1(); issue1()
    ids23(); lane23(); setup2()
    issue1(); issue1()
    step(21, None); step(14, None)
    lloop("l1_loop", 5, 7, issue1)
    srd2()
    step(7, issue2); step(7, issue2)
    A("s_branch l2_main")
    A.label("l2_entry")
    A("s_sub_u32 s%d, s%d, 4" % (LW, WAVE))
    A("s_lshl_b32 s%d, s%d, 12" % (M0P, LW))
    A("s_mul_i32 s%d, s%d, 3072" % (M0Q, LW))
    A("s_add_u32 s%d, s%d, 16384" % (M0Q, M0Q))
    lane23(); setup2(); srd2()
    issue2(); issue2()
    A.label("l2_main")
    setup3()
    lloop("l2_loop", 30, 7, issue2)
    A("s_cmp_ge_u32 s%d, 2" % LW)
    A("s_cbranch_scc1 l3b_t")
    for (sfx, extra, per) in (("a", True, 9), ("b", False, 8)):
        if sfx == "b": A.label("l3b_t")
        step(7, lambda: issue3f(extra)); step(per, lambda: issue3f(extra))
        A("s_branch l3%s_main" % sfx)
        A.label("l3%s_entry" % sfx)
        issue3f(extra); issue3f(extra)
        A.label("l3%s_main" % sfx)
        lloop("l3%s_f" % sfx, "s_sub_u32 s%d, s%d, 2" % (CNT, NF), per, lambda: issue3f(extra))
        switch3u()
        lloop("l3%s_u" % sfx, 18, per, lambda: issue3u(extra))
        step(per, None); step(0, None)
        A("s_branch fin")
    A.label("l3_entry")
    A("s_sub_u32 s%d, s%d, 4" % (LW, WAVE))
    A("s_lshl_b32 s%d, s%d, 12" % (M0P, LW))
    lane23(); setup3()
    A("s_cmp_ge_u32 s%d, 2" % LW)
    A("s_cbranch_scc1 l3b_entry")
    A("s_branch l3a_entry")

    WR, WC = 40, 41
    KEY3 = 42
    def lane_c23():
        A("v_lshrrev_b32 v5, 2, v2")
        A("v_and_b32 v6, 7, v5")
        A("v_and_b32 v7, 3, v2")
        A("v_lshlrev_b32 v7, 3, v7")
        A("v_lshl_add_u32 v7, v5, 8, v7")
        A("s_lshl_b32 s44, s%d, 2" % WR)
        for aa in range(4):
            A("s_add_u32 s45, s44, %d" % aa)
            A("v_xor_b32 v8, s45, v6")
            A("v_lshl_add_u32 v%d, v8, 5, v7" % (204 + aa))
        A("s_mul_i32 s45, s%d, 6144" % WC)
        A("s_add_u32 s45, s45, 16384")
        A("v_lshlrev_b32 v216, 4, v2")
        A("v_add_u32 v208, s45, v216")
        A("s_lshl_b32 s44, s%d, 1" % WAVE)
        for aa in range(2):
            A("s_add_u32 s45, s44, %d" % aa)
            A("v_xor_b32 v8, s45, v6")
            A("v_lshl_add_u32 v%d, v8, 5, v7" % (209 + aa))
        A("v_and_b32 v3, 15, v2")
        A("v_lshrrev_b32 v4, 4, v2")
        A("v_and_b32 v5, 7, v3")
        A("v_xor_b32 v5, v5, v4")
        A("v_lshlrev_b32 v5, 4, v5")
        A("v_lshl_add_u32 v5, v3, 7, v5")
        A("v_add_u32 v211, 16384, v5")
        A("v_xor_b32 v212, 64, v211")
        A("v_add_u32 v213, 16384, v216")
        A("v_add_u32 v214, 17408, v216")
        A("v_lshlrev_b32 v217, 3, v4")
    def wrwc():
        A("s_and_b32 s%d, s%d, 1" % (WR, WAVE))
        A("s_lshr_b32 s%d, s%d, 1" % (WC, WAVE))
    RAW = 164; X = 174; TT_ = 220; RS = 1344
    S0, S2, M, MB, RSV = 192, 193, 194, 196, 197
    LA = 238
    def ln_load():
        A("s_lshr_b32 s44, s2, 2")
        A("s_lshl_b32 s44, s44, 5")
        A("s_and_b32 s45, s2, 3")
        A("s_lshl_b32 s45, s45, 2")
        A("s_add_u32 s44, s44, s45")
        A("s_lshr_b32 s45, s%d, 1" % WAVE)
        A("s_lshl_b32 s45, s45, 4")
        A("s_add_u32 s44, s44, s45")
        A("s_and_b32 s45, s%d, 1" % WAVE)
        A("s_lshl_b32 s45, s45, 1")
        A("s_add_u32 s51, s44, s45")
        A("s_mul_i32 s44, s51, 1152")
        A("v_lshrrev_b32 v3, 5, v2")
        A("v_and_b32 v4, 31, v2")
        A("v_mul_u32_u24 v5, 1152, v3")
        A("v_lshl_add_u32 v6, v4, 2, v5")
        A("v_lshl_add_u32 v5, v4, 3, v5")
        A("s_waitcnt lgkmcnt(0)")
        srd(A, 4, PX, SZ_X)
        for j in range(4):
            A("buffer_load_dwordx2 %s, v5, s[4:7], s44 offen offset:%d" % (v(RAW + 2 * j, 2), j * 256))
        A("buffer_load_dword v%d, v6, s[4:7], s44 offen offset:1024" % (RAW + 8))
        A("s_mul_i32 s45, s%d, %d" % (WAVE, 2 * RS))
        A("s_add_u32 s45, s45, %d" % LDS_OWN)
        A("v_mul_u32_u24 v%d, %d, v3" % (LA, RS))
        A("v_add_u32 v%d, s45, v%d" % (LA, LA))
        A("v_lshl_add_u32 v195, v4, 2, v%d" % LA)
        A("v_lshl_add_u32 v%d, v4, 3, v%d" % (LA, LA))
        A("v_lshlrev_b32 v198, 3, v3")
        A("v_bfe_u32 v5, v2, 2, 2")
        A("v_mul_u32_u24 v5, %d, v5" % RS)
        A("v_and_b32 v6, 3, v2")
        A("v_lshl_add_u32 v5, v6, 3, v5")
        A("v_lshrrev_b32 v6, 4, v2")
        A("v_lshl_add_u32 v5, v6, 5, v5")
        A("s_lshl_b32 s45, s%d, 7" % WAVE)
        A("s_add_u32 s45, s45, %d" % LDS_OWN)
        A("v_add_u32 v%d, s45, v5" % (LA + 1))
        A("v_and_b32 v5, 15, v2")
        A("v_lshlrev_b32 v5, 4, v5")
        A("v_lshl_add_u32 v199, v6, 11, v5")
    N = 18
    def unpack(src):
        for j in range(9):
            A("v_lshlrev_b32 v%d, 16, v%d" % (X + 2 * j, src + j))
            A("v_and_b32 v%d, 0xffff0000, v%d" % (X + 2 * j + 1, src + j))
    def sum32(r):
        row16_sum(A, r)
        A("v_mov_b32 v%d, v%d" % (S2, r))
        A("s_nop 1")
        A("v_permlane16_swap_b32 v%d, v%d" % (r, S2))
        A("s_nop 1")
        A("v_add_f32 v%d, v%d, v%d" % (r, r, S2))
    def layernorm():
        A("v_add_f32 v%d, v%d, v%d" % (S0, X, X + 1))
        A("v_add_f32 v%d, v%d, v%d" % (S2, X + 2, X + 3))
        for j in range(4, N, 2):
            A("v_add_f32 v%d, v%d, v%d" % (S0, S0, X + j))
            A("v_add_f32 v%d, v%d, v%d" % (S2, S2, X + j + 1))
        A("v_add_f32 v%d, v%d, v%d" % (S0, S0, S2))
        sum32(S0)
        A("v_mul_f32 v%d, s46, v%d" % (M, S0))
        round_bf16(A, MB, M)
        for j in range(N): A("v_sub_f32 v%d, v%d, v%d" % (TT_ + j, X + j, M))
        A("v_mul_f32 v%d, v%d, v%d" % (S0, TT_, TT_))
        A("v_mul_f32 v%d, v%d, v%d" % (S2, TT_ + 1, TT_ + 1))
        for j in range(2, N, 2):
            A("v_fmac_f32 v%d, v%d, v%d" % (S0, TT_ + j, TT_ + j))
            A("v_fmac_f32 v%d, v%d, v%d" % (S2, TT_ + j + 1, TT_ + j + 1))
        A("v_add_f32 v%d, v%d, v%d" % (S0, S0, S2))
        sum32(S0)
        A("v_mul_f32 v%d, s46, v%d" % (S0, S0))
        round_bf16(A, S0, S0)
        A("v_add_f32 v%d, s47, v%d" % (S0, S0))
        round_bf16(A, S0, S0)
        A("v_sqrt_f32 v%d, v%d" % (S0, S0))
        for j in range(N): A("v_sub_f32 v%d, v%d, v%d" % (X + j, X + j, MB))
        round_bf16(A, S0, S0)
        A("v_rcp_f32 v%d, v%d" % (RSV, S0))
        for j in range(9): A("v_cvt_pk_bf16_f32 v%d, v%d, v%d" % (RAW + j, X + 2 * j, X + 2 * j + 1))
        unpack(RAW)
        for j in range(N): A("v_mul_f32 v%d, v%d, v%d" % (X + j, X + j, RSV))
        for j in range(9): A("v_cvt_pk_bf16_f32 v%d, v%d, v%d" % (RAW + j, X + 2 * j, X + 2 * j + 1))
    def ln_compute():
        srd(A, 8, PWS, SZ_HF, WS_HF)
        srd(A, 12, PWS, SZ_ST, WS_ST)
        A("s_mov_b32 s46, 0x%x" % f2u(1.0 / 576))
        A("s_mov_b32 s47, 0x%x" % f2u(1e-5))
        A("s_lshl_b32 s51, s51, 3")
        A("s_waitcnt vmcnt(0)")
        tag_issue(A)
        unpack(RAW)
        layernorm()
        A("s_mov_b32 exec_lo, 1\ns_mov_b32 exec_hi, 1")
        A("buffer_store_dwordx2 v[%d:%d], v198, s[12:15], s51 offen sc1" % (MB, RSV))
        A("s_mov_b64 exec, -1")
        unpack(RAW)
        layernorm()
        for j in range(4):
            A("ds_write_b64 v%d, %s offset:%d" % (LA, v(RAW + 2 * j, 2), j * 256))
        A("ds_write_b32 v195, v%d offset:1024" % (RAW + 8))
        A("s_lshr_b32 s44, s2, 3")
        A("s_mul_i32 s44, s44, 9")
        A("s_add_u32 s44, s44, s%d" % WAVE)
        A("s_lshl_b32 s44, s44, 13")
        A("s_and_b32 s45, s2, 7")
        A("s_lshl_b32 s45, s45, 8")
        A("s_add_u32 s44, s44, s45")
        A("s_waitcnt lgkmcnt(0)")
    def ln_store():
        sk = A.newlabel("lns")
        for k in range(3):
            A("ds_read_b64_tr_b16 %s, v%d offset:%d" % (v(X + 4 * k, 2), LA + 1, k * 512))
            A("ds_read_b64_tr_b16 %s, v%d offset:%d" % (v(X + 4 * k + 2, 2), LA + 1, k * 512 + 4 * RS))
        for k in range(3):
            if k == 2:
                A("s_cmp_lg_u32 s%d, 0" % WAVE)
                A("s_cbranch_scc1 %s" % sk)
            A("s_waitcnt lgkmcnt(%d)" % (4 - 2 * k))
            A("buffer_store_dwordx4 %s, v199, s[8:11], s44 offen sc1" % v(X + 4 * k, 4))
            A("s_add_u32 s44, s44, %d" % (16 * 2048))
        A.label(sk)
        A("s_waitcnt lgkmcnt(0)")
    def pubH():
        sk = A.newlabel("ph")
        A("s_cmp_lg_u32 s%d, 0" % WAVE)
        A("s_cbranch_scc1 %s" % sk)
        A("s_lshl_b32 s52, s2, 3")
        publish(A, 52)
        A.label(sk)
    A.label("c1_entry")
    ln_load()
    A("s_or_b32 s44, s2, s%d" % WAVE)
    A("s_cbranch_scc1 c1_notag")
    srd(A, 60, PDBG, 256)
    A("s_or_b32 s%d, s%d, 1" % (TAG, TAG))
    A("v_mov_b32 v4, s%d\nv_mov_b32 v5, s%d\nv_mov_b32 v6, 0" % (TAG, TAG + 1))
    A("s_mov_b64 exec, 1")
    A("buffer_store_dwordx2 v[4:5], v6, s[60:63], 0 offen sc1")
    A("s_mov_b64 exec, -1")
    A.label("c1_notag")
    wrwc()
    A("v_and_b32 v3, 15, v2")
    A("v_lshrrev_b32 v4, 4, v2")
    A("v_and_b32 v5, 7, v3")
    A("v_xor_b32 v5, v5, v4")
    A("v_lshlrev_b32 v5, 4, v5")
    A("v_lshl_add_u32 v5, v3, 7, v5")
    A("v_and_b32 v6, 1, v3")
    A("v_lshrrev_b32 v7, 1, v3")
    A("v_and_b32 v8, 6, v7")
    A("v_or_b32 v8, v8, v6")
    A("v_xor_b32 v8, v8, v4")
    A("v_lshlrev_b32 v8, 4, v8")
    A("v_mul_u32_u24 v6, 48, v6")
    A("v_add_u32 v6, v6, v7")
    A("v_lshl_add_u32 v8, v6, 7, v8")
    A("s_lshl_b32 s44, s%d, 13" % WR)
    A("s_mul_i32 s45, s%d, 3072" % WC)
    A("s_add_u32 s45, s45, 16384")
    A("v_add_u32 v200, s44, v5")
    A("v_xor_b32 v201, 64, v200")
    A("v_add_u32 v202, s45, v8")
    A("v_xor_b32 v203, 64, v202")
    A("v_lshlrev_b32 v218, 4, v4")
    A("v_lshl_add_u32 v218, v3, 6, v218")
    CA = 10
    for i in range(4): A("v_mov_b32 v%d, v%d" % (CA + i, 200 + i))
    ACC1 = 32; SETS1 = [80, 108]; RSUM = 136; CSUM = 152; ONES = 20
    for i in range(48): A("v_mov_b32 v%d, 0" % (ACC1 + i))
    for i in range(12): A("v_mov_b32 v%d, 0" % (CSUM + i))
    A("v_lshlrev_b32 v219, 4, v3")
    for i in range(4): A("v_mov_b32 v%d, 0x3f803f80" % (ONES + i))
    ids23(); lane_c23()
    srd(A, FSRD, PWS, SZ_FL, WS_FL)
    def reads1(st, ks):
        b = SETS1[st]
        P = lambda aa: "ds_read_b128 %s, v%d offset:%d" % (v(b + 4 * aa, 4), CA + ks, aa * 2048)
        Q = lambda xb: "ds_read_b128 %s, v%d offset:%d" % (v(b + 16 + 4 * xb, 4), CA + 2 + ks, xb * 1024)
        return [P(0), Q(0), Q(1), Q(2), P(1), P(2), P(3)]
    def mfmas1(st):
        b = SETS1[st]; m = []
        for aa in range(4):
            for xb in range(3):
                d = v(ACC1 + (aa * 3 + xb) * 4, 4)
                m.append(("%s %s, %s, %s, %s" % (MFMA, d, v(b + 16 + 4 * xb, 4), v(b + 4 * aa, 4), d), max(1 + xb, 3 + aa if aa else 0)))
            if aa < 3:
                d = v(CSUM + 4 * aa, 4)
                m.append(("%s %s, %s, %s, %s" % (MFMA, d, v(b + 16 + 4 * aa, 4), v(ONES, 4), d), 0))
        return m
    def upd1():
        sa = slot_adv()
        return [(5, sa[0]), (6, sa[1]), (7, sa[2])] + [(8 + i, "v_add_u32 v%d, s%d, v%d" % (CA + i, RING, 200 + i)) for i in range(4)]
    def only3(fn):
        def f():
            sk = A.newlabel("w3")
            A("s_cmp_lg_u32 s%d, 3" % WAVE)
            A("s_cbranch_scc1 %s" % sk)
            fn()
            A.label(sk)
        return f
    ln_compute()
    stamp(A, cfg, 1)
    A("s_barrier")
    ln_store()
    A("s_barrier")
    stamp(A, cfg, 2)
    def statld():
        srd(A, 12, PWS, SZ_ST, WS_ST)
        A("s_lshl_b32 s44, s%d, 1" % TT)
        A("s_add_u32 s44, s44, s%d" % WR)
        A("s_lshl_b32 s44, s44, 9")
        for ap in range(2):
            A("buffer_load_dwordx4 %s, v219, s[12:15], s44 offen offset:%d sc1" % (v(RSUM + 4 * ap, 4), ap * 256))
    ev1 = [("%d" % cfg.e1[0], lambda: tag_check(A)), ("%d" % (cfg.e1[0] - 1), pubH), ("3", only3(lambda: wide_issue(A))), ("2", only3(lambda: (stamp(A, cfg, 11), wide_check(A), stamp(A, cfg, 14)))), ("1", statld)]
    late.append(consumer_phase(A, "c1", reads1, mfmas1, upd1, 9, (0, 4), ev1, 14))
    stamp(A, cfg, 3)
    A("s_barrier")
    srd(A, 12, PWS, SZ_G, WS_G)
    A("s_mul_i32 s44, s%d, 6" % PT)
    A("s_mul_i32 s45, s%d, 3" % WC)
    A("s_add_u32 s44, s44, s45")
    A("s_lshl_b32 s44, s44, 16")
    A("s_lshl_b32 s45, s%d, 1" % TT)
    A("s_add_u32 s45, s45, s%d" % WR)
    A("s_lshl_b32 s45, s45, 11")
    A("s_add_u32 s46, s44, s45")
    A("s_add_u32 s47, s46, 65536")
    A("s_add_u32 s48, s46, 131072")
    MN = 80; RR = 88
    A("s_waitcnt vmcnt(0)")
    for aa in range(4):
        for q in range(2):
            A("v_sub_f32 v%d, 0, v%d" % (MN + 2 * aa + q, RSUM + 2 * aa))
            A("v_mov_b32 v%d, v%d" % (RR + 2 * aa + q, RSUM + 2 * aa + 1))
    for ap in range(2):
        for xb in range(3):
            O = 168 + 4 * (ap * 3 + xb)
            hq = [(h, q) for h in range(2) for q in range(2)]
            D_ = lambda h, q: ACC1 + ((2 * ap + h) * 3 + xb) * 4 + 2 * q
            for h, q in hq: A("v_pk_fma_f32 %s, %s, %s, %s" % (v(D_(h, q), 2), v(MN + 2 * (2 * ap + h), 2), v(CSUM + 4 * xb + 2 * q, 2), v(D_(h, q), 2)))
            for h, q in hq: A("v_pk_mul_f32 %s, %s, %s" % (v(D_(h, q), 2), v(D_(h, q), 2), v(RR + 2 * (2 * ap + h), 2)))
            for h, q in hq: A("v_cvt_pk_bf16_f32 v%d, v%d, v%d" % (O + 2 * h + q, D_(h, q), D_(h, q) + 1))
            A("buffer_store_dwordx4 %s, v218, s[12:15], s%d offen offset:%d sc1" % (v(O, 4), 46 + xb, ap * 1024))
    A("s_lshl_b32 s52, s%d, 4" % PT)
    A("s_add_u32 s52, s52, s%d" % TT)
    A("s_lshl_b32 s52, s52, 2")
    A("s_add_u32 s52, s52, s%d" % WAVE)
    A("s_lshl_b32 s52, s52, 3")
    A("s_add_u32 s52, s52, %d" % FL_G)
    ACC2 = 32; SETS2 = [80, 108]; BIAS = 20
    A("s_mov_b32 s53, 1")
    A("s_branch c2_main")
    A.label("c2_entry")
    wrwc(); lane_c23()
    A("s_mov_b32 s53, 0")
    A("s_barrier")
    A.label("c2_main")
    for i in range(48): A("v_mov_b32 v%d, 0" % (ACC2 + i))
    for i in range(5): A("v_add_u32 v%d, s%d, v%d" % (CA + i, RING, 204 + i))
    A("s_barrier")
    stamp(A, cfg, 4)
    def reads2(st, ks):
        b = SETS2[st]
        P = lambda aa: ["ds_read_b64_tr_b16 %s, v%d offset:%d" % (v(b + 4 * aa, 2), CA + aa, ks * 8192),
                        "ds_read_b64_tr_b16 %s, v%d offset:%d" % (v(b + 4 * aa + 2, 2), CA + aa, ks * 8192 + 4096)]
        Q = lambda xb: ["ds_read_b128 %s, v%d offset:%d" % (v(b + 16 + 4 * xb, 4), CA + 4, xb * 2048 + ks * 1024)]
        return P(0) + Q(0) + Q(1) + Q(2) + P(1) + P(2) + P(3)
    def mfmas2(st):
        b = SETS2[st]; m = []
        for aa in range(4):
            for xb in range(3):
                d = v(ACC2 + (aa * 3 + xb) * 4, 4)
                m.append(("%s %s, %s, %s, %s" % (MFMA, d, v(b + 4 * aa, 4), v(b + 16 + 4 * xb, 4), d), max(2 + xb, 4 + 2 * aa if aa else 0)))
        return m
    def upd2():
        sa = slot_adv()
        U = lambda i: "v_add_u32 v%d, s%d, v%d" % (CA + i, RING, 204 + i)
        return [(0, sa[0]), (1, sa[1]), (2, sa[2]), (4, U(0)), (5, U(4)), (7, U(1)), (9, U(2)), (11, U(3))]
    def pubG():
        sk = A.newlabel("pg")
        A("s_cmp_eq_u32 s53, 0")
        A("s_cbranch_scc1 %s" % sk)
        A("s_waitcnt vmcnt(0)")
        publish(A, 52)
        A.label(sk)
    def biasld():
        srd(A, 12, PB1, 9216)
        A("s_lshl_b32 s44, s%d, 8" % FT)
        A("s_lshl_b32 s45, s%d, 7" % WR)
        A("s_add_u32 s44, s44, s45")
        for aa in range(4):
            A("buffer_load_dwordx2 %s, v217, s[12:15], s44 offen offset:%d" % (v(BIAS + 2 * aa, 2), aa * 32))
        A("s_lshr_b32 s43, s%d, 1" % ST)
        A("s_lshl_b32 s43, s43, 9")
        A("s_add_u32 s43, s43, %d" % FL_T)
    ev2 = [("30", lambda: (pubG(), stamp(A, cfg, 10))), ("8", biasld), ("4", only3(lambda: gate_issue(A, 43))), ("2", only3(lambda: gate_check(A, 43, (1 << 36) - 1)))]
    late.append(consumer_phase(A, "c2", reads2, mfmas2, upd2, 32, (0, 3, 6), ev2, 10))
    stamp(A, cfg, 5)
    A("s_barrier")
    c1 = -2.0 * math.sqrt(2.0 / math.pi) * math.log2(math.e); c2 = c1 * 0.044715
    for (r, val) in ((28, c1), (136, c2), (138, 1.0)):
        A("v_mov_b32 v%d, 0x%x\nv_mov_b32 v%d, 0x%x" % (r, f2u(val), r + 1, f2u(val)))
    srd(A, 12, PWS, SZ_UF, WS_UF)
    A("s_lshl_b32 s44, s%d, 1" % FT)
    A("s_add_u32 s44, s44, s%d" % WR)
    A("s_lshl_b32 s45, s%d, 1" % DT)
    A("s_add_u32 s45, s45, s%d" % WC)
    A("s_mul_i32 s46, s44, 12")
    A("s_add_u32 s46, s46, s45")
    A("s_mul_i32 s46, s46, %d" % (3 * PAIR))
    A("s_add_u32 s47, s46, 4096")
    A("s_mul_i32 s48, s44, 3641")
    A("s_lshr_b32 s48, s48, 16")
    A("s_mul_i32 s49, s45, 21846")
    A("s_lshr_b32 s49, s49, 16")
    A("s_mul_i32 s50, s48, 18")
    A("s_sub_u32 s50, s44, s50")
    A("s_sub_u32 s50, s50, s49")
    A("s_mul_i32 s50, s50, 3")
    A("s_add_u32 s50, s50, s45")
    A("s_lshl_b32 s50, s50, 3")
    A("s_lshl_b32 s49, s49, 2")
    A("s_add_u32 s49, s49, s48")
    A("s_lshl_b32 s49, s49, 9")
    A("s_add_u32 s52, s50, s49")
    A("s_add_u32 s52, s52, %d" % FL_U)
    A("s_waitcnt vmcnt(0)")
    BF = 104
    for k in range(8):
        A("v_lshlrev_b32 v%d, 16, v%d" % (BF + 2 * k, BIAS + k))
        A("v_and_b32 v%d, 0xffff0000, v%d" % (BF + 2 * k + 1, BIAS + k))
    T = 80
    for ap in range(2):
        for xb in range(3):
            prs = [ACC2 + ((ap * 2 + h) * 3 + xb) * 4 + 2 * q for h in range(2) for q in range(2)]
            for i, x in enumerate(prs): A("v_pk_add_f32 %s, %s, %s" % (v(x, 2), v(x, 2), v(BF + ap * 8 + 2 * i, 2)))
            for i, x in enumerate(prs): A("v_pk_mul_f32 %s, %s, %s" % (v(T + 2 * i, 2), v(x, 2), v(x, 2)))
            for i, x in enumerate(prs): A("v_pk_fma_f32 %s, %s, v[136:137], v[28:29]" % (v(T + 2 * i, 2), v(T + 2 * i, 2)))
            for i, x in enumerate(prs): A("v_pk_mul_f32 %s, %s, %s" % (v(T + 2 * i, 2), v(T + 2 * i, 2), v(x, 2)))
            for i in range(8): A("v_exp_f32 v%d, v%d" % (T + i, T + i))
            for i, x in enumerate(prs): A("v_pk_add_f32 %s, %s, v[138:139]" % (v(T + 2 * i, 2), v(T + 2 * i, 2)))
            for i in range(8): A("v_rcp_f32 v%d, v%d" % (T + i, T + i))
            for i, x in enumerate(prs): A("v_pk_mul_f32 %s, %s, %s" % (v(T + 2 * i, 2), v(T + 2 * i, 2), v(x, 2)))
            O = 220 + 4 * (ap * 3 + xb)
            for i in range(4):
                A("v_cvt_pk_bf16_f32 v%d, v%d, v%d" % (O + i, T + 2 * i, T + 2 * i + 1))
            off = xb * 2048 + ap * 1024
            A("buffer_store_dwordx4 %s, v216, s[12:15], s%d offen offset:%d sc1" % (v(O, 4), 46 + off // 4096, off % 4096))
    ACC3 = 24; SETS3 = [96, 140]
    A("s_barrier")
    for i in range(72): A("v_mov_b32 v%d, 0" % (ACC3 + i))
    A("s_waitcnt vmcnt(0)")
    publish(A, 52)
    A("s_branch c3_main")
    A.label("c3_entry")
    wrwc(); lane_c23()
    for i in range(72): A("v_mov_b32 v%d, 0" % (ACC3 + i))
    A("s_barrier")
    A("s_barrier")
    A.label("c3_main")
    stamp(A, cfg, 6)
    for i in range(4): A("v_add_u32 v%d, s%d, v%d" % (CA + i, RING, 209 + i))
    def reads3(st, ks):
        b = SETS3[st]; r = ["ds_read_b128 %s, v%d offset:0" % (v(b + 8, 4), CA + 2 + ks)]
        for aa in range(2):
            r.append("ds_read_b64_tr_b16 %s, v%d offset:%d" % (v(b + 4 * aa, 2), CA + aa, ks * 8192))
            r.append("ds_read_b64_tr_b16 %s, v%d offset:%d" % (v(b + 4 * aa + 2, 2), CA + aa, ks * 8192 + 4096))
        for xb in range(1, 9):
            r.append("ds_read_b128 %s, v%d offset:%d" % (v(b + 8 + 4 * xb, 4), CA + 2 + ks, xb * 2048))
        return r
    def mfmas3(st):
        b = SETS3[st]; m = []
        for xb in range(9):
            for aa in range(2):
                d = v(ACC3 + (xb * 2 + aa) * 4, 4)
                m.append(("%s %s, %s, %s, %s" % (MFMA, d, v(b + 8 + 4 * xb, 4), v(b + 4 * aa, 4), d), max(2 + 2 * aa, 4 + xb if xb else 0)))
        return m
    def upd3():
        sa = slot_adv()
        U = lambda i: "v_add_u32 v%d, s%d, v%d" % (CA + i, RING, 209 + i)
        return [(7, sa[0]), (8, sa[1]), (9, sa[2]), (11, U(0)), (13, U(1)), (14, U(2)), (15, U(3))]
    A("s_lshl_b32 s43, s%d, 2" % D3)
    A("s_add_u32 s43, s43, s%d" % SP)
    A("s_lshl_b32 s43, s43, 9")
    A("s_add_u32 s43, s43, %d" % FL_U)
    A("s_sub_u32 s54, s%d, 2" % KT3)
    def pub_and_issue():
        only3(lambda: gate_issue(A, 43))()
    def umode():
        A("v_mov_b32 v211, v213\nv_mov_b32 v212, v214")
        A("v_add_u32 v%d, s%d, v213" % (CA + 2, RING))
        A("v_add_u32 v%d, s%d, v214" % (CA + 3, RING))
    ev3 = [("s54", pub_and_issue), ("20", only3(lambda: (stamp(A, cfg, 12), gate_check(A, 43, (1 << 54) - 1), stamp(A, cfg, 13)))), ("18", umode)]
    late.append(consumer_phase(A, "c3", reads3, mfmas3, upd3, "s%d" % KT3, (0, 6), ev3, 16))
    stamp(A, cfg, 7)
    srd(A, 12, PWS, SZ_EX, WS_EX)
    A("s_lshl_b32 s44, s%d, 2" % ST)
    A("s_add_u32 s44, s44, s%d" % D3)
    A("s_lshl_b32 s44, s44, 2")
    A("s_add_u32 s44, s44, s%d" % WAVE)
    A("s_lshl_b32 s52, s44, 7")
    A("s_lshl_b32 s45, s%d, 3" % SP)
    A("s_add_u32 s52, s52, s45")
    A("s_add_u32 s52, s52, %d" % FL_X)
    A("s_lshl_b32 s44, s44, 2")
    A("s_add_u32 s44, s44, s%d" % SP)
    A("s_mul_i32 s44, s44, 9216")
    A("s_cmp_eq_u32 s%d, s%d" % (WAVE, SP))
    A("s_cbranch_scc1 c3_own")
    for xb in range(9):
        o = 96 + 4 * xb
        for k in range(4):
            A("v_cvt_pk_bf16_f32 v%d, v%d, v%d" % (o + k, ACC3 + 8 * xb + 2 * k, ACC3 + 8 * xb + 2 * k + 1))
        A("buffer_store_dwordx4 %s, v216, s[12:15], s44 offen offset:%d sc1" % (v(o, 4), (xb % 4) * 1024))
        if xb % 4 == 3: A("s_add_u32 s44, s44, 4096")
    A("s_waitcnt vmcnt(0)")
    publish(A, 52)
    if cfg.stamp:
        A("s_barrier")
        A("s_branch k_done")
    A("s_endpgm")
    A.label("c3_own")
    A("v_add_u32 v10, %d, v216" % LDS_OWN)
    for t in range(18):
        A("ds_write_b128 v10, %s offset:%d" % (v(ACC3 + 4 * t, 4), t * 1024))
    A("s_waitcnt lgkmcnt(0)")
    A("s_barrier")
    A("s_branch k_done")
    for f in late: f()

    A.label("fin")
    stamp(A, cfg, 7)
    XR = 24; DS = 36; STT = 42; B2 = 72; BASE = 48; PR = 80; OWN = 120
    A("v_and_b32 v3, 15, v2")
    A("v_lshrrev_b32 v4, 4, v2")
    A("s_movk_i32 s44, 1152")
    A("v_mul_lo_u32 v6, v3, s44")
    A("v_lshl_add_u32 v6, v4, 3, v6")
    A("v_lshlrev_b32 v7, 1, v6")
    A("v_lshlrev_b32 v8, 3, v4")
    A("v_lshlrev_b32 v5, 3, v3")
    A("v_lshlrev_b32 v3, 1, v3")
    A("s_lshl_b32 s44, s%d, 3" % ST)
    A("s_lshl_b32 s45, s%d, 1" % SP)
    A("s_add_u32 s44, s44, s45")
    A("s_mul_i32 s45, s%d, 9" % D3)
    A("s_add_u32 s45, s45, s%d" % LW)
    A("s_lshl_b32 s45, s45, 5")
    A("s_mul_i32 s46, s44, %d" % (16 * 1152))
    A("s_add_u32 s46, s46, s45")
    A("s_add_u32 s47, s46, %d" % (16 * 1152))
    A("s_lshl_b32 s48, s44, 7")
    A("s_lshl_b32 s49, s44, 5")
    srd(A, 4, PWS, SZ_ST, WS_ST)
    srd(A, 8, PB2, 4096)
    for aa in range(2):
        A("buffer_load_dwordx2 %s, v5, s[4:7], s48 offen offset:%d %s" % (v(STT + 2 * aa, 2), aa * 128, HL))
        A("buffer_load_ushort v%d, v3, s[8:11], s49 offen offset:%d" % (B2 + 2 * aa, aa * 32))
    srd(A, 4, PX, SZ_X)
    srd(A, 8, PDSK, 1152)
    for n in range(3):
        if n == 2:
            A("s_cmp_lg_u32 s%d, 0" % LW)
            A("s_cbranch_scc1 fin_a")
        A("buffer_load_dwordx2 %s, v8, s[8:11], s45 offen offset:%d" % (v(DS + 2 * n, 2), n * 128))
        for aa in range(2):
            A("buffer_load_dwordx2 %s, v6, s[4:7], s%d offen offset:%d" % (v(XR + 4 * n + 2 * aa, 2), (46, 47)[aa], n * 128))
    A.label("fin_a")
    tag_issue(A)
    A("s_lshl_b32 s54, s46, 1")
    A("s_lshl_b32 s55, s47, 1")
    A("v_lshlrev_b32 v9, 4, v2")
    A("s_lshl_b32 s44, s%d, 2" % ST)
    A("s_add_u32 s44, s44, s%d" % D3)
    A("s_lshl_b32 s44, s44, 2")
    A("s_add_u32 s44, s44, s%d" % SP)
    A("s_lshl_b32 s43, s44, 7")
    A("s_add_u32 s43, s43, %d" % FL_X)
    A("s_mul_i32 s47, s44, %d" % (4 * 9216))
    A("s_lshl_b32 s46, s%d, 10" % LW)
    A("s_add_u32 s47, s47, s46")
    for j in range(3):
        A("s_add_u32 s48, s%d, %d" % (SP, 1 + j))
        A("s_and_b32 s48, s48, 3")
        A("s_mul_i32 s48, s48, 9216")
        A("s_add_u32 s%d, s47, s48" % (49 + j))
    A("v_add_u32 v15, 4096, v9")
    A("v_add_u32 v18, 8192, v9")
    A("s_lshl_b32 s46, s%d, 11" % LW)
    A("s_add_u32 s46, s46, %d" % LDS_OWN)
    A("v_add_u32 v10, s46, v9")
    A("s_lshl_b32 s52, 1, s%d" % SP)
    A("s_xor_b32 s52, s52, 15")
    A("s_mov_b32 s53, 0")
    srd(A, FSRD, PWS, SZ_FL, WS_FL)
    srd(A, 12, PWS, SZ_EX, WS_EX)
    srd(A, 8, POUT, 2048 * 576 * 4)
    tag_check(A)
    for aa in range(2): A("v_lshlrev_b32 v%d, 16, v%d" % (B2 + 2 * aa, B2 + 2 * aa))
    for n in range(3):
        dd = 76; xx = 116; tt = 144
        for h in range(2):
            A("v_lshlrev_b32 v%d, 16, v%d" % (dd + 2 * h, DS + 2 * n + h))
            A("v_and_b32 v%d, 0xffff0000, v%d" % (dd + 2 * h + 1, DS + 2 * n + h))
        for aa in range(2):
            b = BASE + 8 * n + 4 * aa
            for h in range(2):
                A("v_lshlrev_b32 v%d, 16, v%d" % (xx + 2 * h, XR + 4 * n + 2 * aa + h))
                A("v_and_b32 v%d, 0xffff0000, v%d" % (xx + 2 * h + 1, XR + 4 * n + 2 * aa + h))
            for r in range(4): A("v_mul_f32 v%d, v%d, v%d" % (tt + r, dd + r, STT + 2 * aa + 1))
            for r in range(4): A("v_add_f32 v%d, v%d, v%d" % (b + r, xx + r, B2 + 2 * aa))
            for r in range(4): A("v_sub_f32 v%d, v%d, v%d" % (xx + r, xx + r, STT + 2 * aa))
            for r in range(4): A("v_fmac_f32 v%d, v%d, v%d" % (b + r, xx + r, tt + r))
    A("s_barrier")
    stamp(A, cfg, 8)
    gate_issue(A, 43)
    for n in range(3):
        for aa in range(2):
            A("ds_read_b128 %s, v10 offset:%d" % (v(OWN + 8 * n + 4 * aa, 4), n * 8192 + aa * 1024))
    A("s_waitcnt lgkmcnt(0)")
    for k in range(12):
        A("v_pk_add_f32 %s, %s, %s" % (v(BASE + 2 * k, 2), v(BASE + 2 * k, 2), v(OWN + 2 * k, 2)))
    gate_check(A, 43, "s[52:53]")
    stamp(A, cfg, 9)
    def ld(n):
        for j in range(3):
            A("buffer_load_dwordx4 %s, v%d, s[12:15], s%d offen sc1" % (v(PR + (n * 3 + j) * 4, 4), (9, 15, 18)[n], 49 + j))
    def fin(n):
        b = BASE + 8 * n
        for j in range(3):
            p = PR + (n * 3 + j) * 4
            for k in range(4):
                A("v_lshlrev_b32 v%d, 16, v%d" % (28 + 2 * (k % 2), p + k))
                A("v_and_b32 v%d, 0xffff0000, v%d" % (29 + 2 * (k % 2), p + k))
                A("v_pk_add_f32 %s, %s, %s" % (v(b + 2 * k, 2), v(b + 2 * k, 2), v(28 + 2 * (k % 2), 2)))
    def st(n):
        for aa in range(2):
            A("buffer_store_dwordx4 %s, v7, s[8:11], s%d offen offset:%d" % (v(BASE + 8 * n + 4 * aa, 4), (54, 55)[aa], n * 256))
    A("s_cmp_lg_u32 s%d, 0" % LW)
    A("s_cbranch_scc1 fin_b")
    ld(2); ld(0); ld(1)
    A("s_waitcnt vmcnt(6)"); fin(2)
    A("s_waitcnt vmcnt(3)"); fin(0)
    A("s_waitcnt vmcnt(0)"); st(2); st(0); fin(1); st(1)
    A("s_branch k_done")
    A.label("fin_b")
    ld(0); ld(1)
    A("s_waitcnt vmcnt(3)"); fin(0)
    A("s_waitcnt vmcnt(0)"); st(0); fin(1); st(1)
    A.label("k_done")
    stamp_end(A, cfg)
    A.label("k_end")
    A("s_endpgm")

    A.label("ln_entry")
    KB = 29
    PFI = 23
    A("s_sub_u32 s%d, s%d, 24" % (KB, SLOTR))
    A("s_lshl_b32 s%d, s%d, 3" % (KB, KB))
    A("s_add_u32 s%d, s%d, s%d" % (KB, KB, XCD))
    A("s_cmp_ge_u32 s%d, 4" % WAVE)
    A("s_cbranch_scc1 ln_hi")
    ln_load()
    ids23()
    srd(A, FSRD, PWS, SZ_FL, WS_FL)
    ln_compute()
    stamp(A, cfg, 1)
    A("s_barrier")
    ln_store()
    tag_check(A)
    A("s_barrier")
    pubH()
    stamp(A, cfg, 2)
    A("s_branch ln_join")
    A.label("ln_hi")
    ids23()
    A("v_lshlrev_b32 v120, 7, v2")
    A("s_waitcnt lgkmcnt(0)")
    srd(A, FSRD, PWS, SZ_FL, WS_FL)
    A("s_lshl_b32 s44, s%d, 2" % KB)
    A("s_add_u32 s44, s44, s%d" % WAVE)
    A("s_sub_u32 s44, s44, 4")
    A("s_mov_b32 s4, s%d\ns_mov_b32 s5, s%d\ns_mov_b32 s6, 0\ns_mov_b32 s45, 0" % (PB1, PB1 + 1))
    for (w, ptr, sz) in ((32, PB1, 9216), (33, PB1, 9216), (34, PB2, 4096), (35, PDSK, 1152), (36, PLRE, 1152), (37, PLIM, 1152), (38, PLOGDT, 1152)):
        A("s_cmp_eq_u32 s44, %d" % w)
        A("s_cselect_b32 s4, s%d, s4" % ptr)
        A("s_cselect_b32 s5, s%d, s5" % (ptr + 1))
        A("s_cselect_b32 s6, %d, s6" % sz)
        if w == 33: A("s_cselect_b32 s45, 8192, s45")
    A("s_mov_b32 s7, 0x00020000")
    A("s_cmp_eq_u32 s6, 0")
    A("s_cbranch_scc1 ln_nt")
    A("buffer_load_dword v121, v120, s[4:7], s45 offen")
    A.label("ln_nt")
    if cfg.codepf:
        A("s_cmp_ge_u32 s44, 32")
        A("s_cbranch_scc1 ln_nc")
        A("s_getpc_b64 s[46:47]")
        A.label("ln_pc")
        A("s_sub_u32 s46, s46, ln_pc-%s" % KN)
        A("s_subb_u32 s47, s47, 0")
        A("s_and_b32 s45, s44, 3")
        A("s_lshl_b32 s45, s45, 13")
        A("v_add_u32 v122, s45, v120")
        A("s_mov_b32 s45, text_end-%s" % KN)
        for r in range(2):
            A("v_cmp_gt_u32 vcc, s45, v122")
            A("s_and_saveexec_b64 s[48:49], vcc")
            A("s_cbranch_execz ln_nc2")
            A("global_load_dword v%d, v122, s[46:47]" % (123 + r))
            A("v_add_u32 v122, 32768, v122")
        A.label("ln_nc2")
        A("s_mov_b64 exec, -1")
        A.label("ln_nc")
    A("s_barrier")
    srd(A, 4, PW1, SZ_W)
    A("s_lshl_b32 s45, s44, 13")
    for r in range(cfg.lnpf):
        A("buffer_load_dword v121, v120, s[4:7], s45 offen")
        A("s_add_u32 s45, s45, %d" % (256 * 8192))
    tag_issue(A)
    A("s_barrier")
    tag_check(A)
    A.label("ln_join")
    A("s_cmp_ge_u32 s%d, 27" % SLOTR)
    A("s_cbranch_scc1 scan_entry")
    A("s_cmp_lg_u32 s%d, 0" % WAVE)
    A("s_cbranch_scc1 ln_g")
    A("s_sleep 16")
    wide_issue(A)
    wide_check(A)
    A.label("ln_g")
    A("s_waitcnt vmcnt(0)")
    A("s_barrier")
    stamp(A, cfg, 3)
    A("s_cmp_lt_u32 s%d, 4" % WAVE)
    A("s_cbranch_scc1 c2_entry")
    A("s_branch l2_entry")

    A.label("scan_entry")
    CB = 29
    A("s_sub_u32 s%d, s%d, 24" % (CB, KB))
    A("v_lshlrev_b32 v56, 7, v2")
    A("s_lshl_b32 s%d, s%d, 3" % (PFI, CB))
    A("s_add_u32 s%d, s%d, s%d" % (PFI, PFI, WAVE))
    A("s_add_u32 s%d, s%d, %d" % (PFI, PFI, 256 * cfg.lnpf))
    def scpf(lo=0):
        pf_decode(A, PFI, 60, 58, 54, lo=lo)
        A("buffer_load_dword v57, v56, s[60:63], s58 offen")
        A("s_add_u32 s%d, s%d, 320" % (PFI, PFI))
    for _ in range(cfg.pf_a): scpf()
    A("s_add_u32 s%d, s%d, %d" % (PFI, PFI, L_C - 320 * cfg.pf_a - 256 * cfg.lnpf))
    for _ in range(cfg.pf_a2): scpf(L_C)
    A("s_cmp_lt_u32 s%d, 36" % CB)
    A("s_cbranch_scc1 scan2")
    for _ in range(sum(cfg.scm) + cfg.pf_b): scpf(L_C)
    A("s_branch scan_done")
    A.label("scan2")
    A("v_and_b32 v3, 7, v0")
    A("v_lshrrev_b32 v4, 3, v0")
    A("v_lshlrev_b32 v5, 10, v4")
    A("v_and_b32 v6, 3, v3")
    A("v_lshl_add_u32 v5, v6, 4, v5")
    A("v_lshrrev_b32 v6, 2, v3")
    A("v_lshl_add_u32 v5, v6, 16, v5")
    A("s_lshl_b32 s40, s%d, 17" % CB)
    A("v_lshlrev_b32 v9, 2, v3")
    A("s_lshl_b32 s41, s%d, 5" % CB)
    for (r, ptr) in ((10, PLRE), (11, PLIM), (12, PLOGDT)):
        srd(A, 4, ptr, 1152)
        A("buffer_load_dword v%d, v9, s[4:7], s41 offen" % r)
    L = [18, 20]; L32 = [22, 24]; L256 = [26, 28]; C2 = [30, 32]
    A("s_mov_b32 s44, 0x%x" % f2u(math.log2(math.e)))
    A("s_mov_b32 s45, 0x%x" % f2u(1.0 / (2 * math.pi)))
    A("s_waitcnt vmcnt(0)")
    def sq(d, s_):
        A("v_mul_f32 v40, v%d, v%d" % (s_ + 1, s_ + 1))
        A("v_mul_f32 v41, v%d, v%d" % (s_, s_ + 1))
        A("v_fma_f32 v%d, v%d, v%d, -v40" % (d, s_, s_))
        A("v_add_f32 v%d, v41, v41" % (d + 1))
    for c in range(2):
        for (d, s_) in ((34, 10), (35, 11), (36, 12)):
            if c == 0: A("v_lshlrev_b32 v%d, 16, v%d" % (d, s_))
            else: A("v_and_b32 v%d, 0xffff0000, v%d" % (d, s_))
        A("v_mul_f32 v36, s44, v36")
        A("v_exp_f32 v36, v36")
        A("s_nop 0")
        round_bf16(A, 36, 36)
        A("v_mul_f32 v37, v36, v34")
        A("v_mul_f32 v38, v36, v35")
        A("v_mul_f32 v37, s44, v37")
        A("v_mul_f32 v38, s45, v38")
        A("v_exp_f32 v37, v37")
        A("v_fract_f32 v38, v38")
        A("v_cos_f32 v39, v38")
        A("v_sin_f32 v38, v38")
        A("s_nop 0")
        A("v_mul_f32 v%d, v37, v39" % L[c])
        A("v_mul_f32 v%d, v37, v38" % (L[c] + 1))
        sq(L32[c], L[c])
        for _ in range(4): sq(L32[c], L32[c])
        sq(L256[c], L32[c])
        for _ in range(2): sq(L256[c], L256[c])
        A("v_add_f32 v37, -1.0, v%d" % L[c])
        A("v_mul_f32 v38, v34, v34")
        A("v_fmac_f32 v38, v35, v35")
        A("v_rcp_f32 v38, v38")
        A("v_mul_f32 v39, v37, v34")
        A("v_fmac_f32 v39, v%d, v35" % (L[c] + 1))
        A("v_mul_f32 v40, v%d, v34" % (L[c] + 1))
        A("v_fma_f32 v40, -v37, v35, v40")
        A("v_add_f32 v38, v38, v38")
        A("v_mul_f32 v%d, v39, v38" % C2[c])
        A("v_mul_f32 v%d, v40, v38" % (C2[c] + 1))
    A("s_mul_i32 s43, s%d, 21846" % CB)
    A("s_lshr_b32 s43, s43, 16")
    A("s_lshl_b32 s43, s43, 9")
    A("s_add_u32 s43, s43, %d" % FL_G)
    A("s_cmp_lg_u32 s%d, 0" % WAVE)
    A("s_cbranch_scc1 scan_g")
    gate_issue(A, 43)
    gate_check(A, 43, (1 << 64) - 1)
    A.label("scan_g")
    A("s_barrier")
    stamp(A, cfg, 3)
    srd(A, 4, PWS, SZ_G, WS_G)
    srd(A, 12, PWS, SZ_HT, WS_HT)
    G0 = 56; RW = 184
    for j in range(16):
        A("buffer_load_dwordx4 %s, v5, s[4:7], s40 offen offset:%d %s" % (v(RW + 4 * j, 4), j * 64, cfg.gl))
    LDS_AGG = 9216; LDS_WAGG = LDS_AGG + 8192
    H = 10; T2 = 34
    def stepf(Lr, src):
        for c in range(2):
            A("v_pk_fma_f32 %s, %s, %s, %s op_sel_hi:[0,1,1]" % (v(T2 + 2 * c, 2), v(Lr[c], 2), v(H + 2 * c, 2), v(src + 2 * c, 2)))
        for c in range(2):
            A("v_pk_fma_f32 %s, %s, %s, %s op_sel:[1,1,0] op_sel_hi:[1,0,1] neg_lo:[1,0,0]" % (v(H + 2 * c, 2), v(Lr[c], 2), v(H + 2 * c, 2), v(T2 + 2 * c, 2)))
    for i in range(4): A("v_mov_b32 v%d, 0" % (H + i))
    for j in range(16):
        A("s_waitcnt vmcnt(%d)" % (15 - j))
        for e in range(2):
            g = G0 + 4 * (2 * j + e)
            for c in range(2):
                A("v_lshlrev_b32 v%d, 16, v%d" % (g + 2 * c, RW + 4 * j + 2 * e + c))
                A("v_and_b32 v%d, 0xffff0000, v%d" % (g + 2 * c + 1, RW + 4 * j + 2 * e + c))
        for e in range(2): stepf(L, G0 + 4 * (2 * j + e))
    A("v_lshlrev_b32 v8, 7, v2")
    def scpf2():
        pf_decode(A, PFI, 60, 58, 54, lo=L_C)
        A("buffer_load_dword v9, v8, s[60:63], s58 offen")
        A("s_add_u32 s%d, s%d, 320" % (PFI, PFI))
    for _ in range(cfg.scm[0] + cfg.scm[1]): scpf2()
    stamp(A, cfg, 4)
    A("v_lshlrev_b32 v15, 4, v3")
    A("v_lshlrev_b32 v17, 4, v0")
    A("ds_write_b128 v17, %s offset:%d" % (v(H, 4), LDS_AGG))
    A("s_lshl_b32 s44, s%d, 10" % WAVE)
    A("v_add_u32 v17, s44, v15")
    A("s_waitcnt lgkmcnt(0)")
    AG = 184; WG_ = 216
    for j in range(8): A("ds_read_b128 %s, v17 offset:%d" % (v(AG + 4 * j, 4), LDS_AGG + j * 128))
    A("s_waitcnt lgkmcnt(7)")
    for i in range(4): A("v_mov_b32 v%d, v%d" % (H + i, AG + i))
    for j in range(1, 8):
        A("s_waitcnt lgkmcnt(%d)" % (7 - j))
        stepf(L32, AG + 4 * j)
    A("s_lshl_b32 s44, s%d, 7" % WAVE)
    A("v_add_u32 v17, s44, v15")
    A("ds_write_b128 v17, %s offset:%d" % (v(H, 4), LDS_WAGG))
    A("s_waitcnt lgkmcnt(0)")
    A("s_barrier")
    for j in range(7): A("ds_read_b128 %s, v15 offset:%d" % (v(WG_ + 4 * j, 4), LDS_WAGG + j * 128))
    for i in range(4): A("v_mov_b32 v%d, 0" % (H + i))
    A("v_lshrrev_b32 v17, 3, v2")
    A("s_waitcnt lgkmcnt(0)")
    for j in range(7):
        A("s_cmp_le_u32 s%d, %d" % (WAVE, j))
        A("s_cbranch_scc1 scan_w")
        stepf(L256, WG_ + 4 * j)
    A.label("scan_w")
    for j in range(7):
        A("v_cmpx_lt_u32 vcc, %d, v17" % j)
        stepf(L32, AG + 4 * j)
    A("s_mov_b64 exec, -1")
    A("s_barrier")
    stamp(A, cfg, 10)
    for _ in range(cfg.scm[2]): scpf2()
    A("s_mul_i32 s44, s%d, %d" % (WAVE, 32 * 528))
    A("v_mul_u32_u24 v48, 528, v3")
    A("v_lshl_add_u32 v48, v17, 6, v48")
    A("v_add_u32 v48, s44, v48")
    A("v_lshrrev_b32 v49, 5, v2")
    A("v_and_b32 v50, 31, v2")
    A("v_lshlrev_b32 v50, 4, v50")
    A("v_mul_u32_u24 v51, 528, v49")
    A("v_add3_u32 v51, v51, v50, s44")
    A("v_lshl_add_u32 v50, v49, 13, v50")
    A("s_lshr_b32 s45, s%d, 1" % CB)
    A("s_lshl_b32 s45, s45, 5")
    A("s_and_b32 s46, s%d, 1" % CB)
    A("s_lshl_b32 s46, s46, 3")
    A("s_add_u32 s45, s45, s46")
    A("s_lshl_b32 s45, s45, 12")
    A("s_lshl_b32 s46, s%d, 9" % WAVE)
    A("s_add_u32 s45, s45, s46")
    PK = 184
    for blk in range(4):
        for k in range(8):
            g = G0 + 4 * (blk * 8 + k)
            stepf(L, g)
            for c in range(2):
                A("v_pk_mul_f32 %s, %s, %s op_sel_hi:[0,1] neg_hi:[1,0]" % (v(g + 2 * c, 2), v(C2[c], 2), v(H + 2 * c, 2)))
            for c in range(2):
                A("v_pk_fma_f32 %s, %s, %s, %s op_sel:[1,1,0] op_sel_hi:[1,0,1] neg_lo:[1,0,0] neg_hi:[1,0,0]" % (v(g + 2 * c, 2), v(C2[c], 2), v(H + 2 * c, 2), v(g + 2 * c, 2)))
        pkb = PK + blk * 16
        for q in range(4):
            for k in range(4):
                g = G0 + 4 * (blk * 8 + 2 * k)
                A("v_cvt_pk_bf16_f32 v%d, v%d, v%d" % (pkb + 4 * q + k, g + q, g + 4 + q))
        for q in range(4):
            A("ds_write_b128 v48, %s offset:%d" % (v(pkb + 4 * q, 4), q * 8 * 528 + blk * 16))
    A("s_waitcnt lgkmcnt(0)")
    stamp(A, cfg, 11)
    for n in range(16):
        A("ds_read_b128 %s, v51 offset:%d" % (v(G0 + 4 * n, 4), n * 2 * 528))
        if n == 7: A("s_waitcnt lgkmcnt(0)")
    for n in range(16):
        q = n >> 2; k = n & 3; c = q >> 1; part = q & 1
        row = 16 * (k & 1) + 4 * (k >> 1) + c + 576 * part
        if n >= 8: A("s_waitcnt lgkmcnt(%d)" % (15 - n))
        A("s_add_u32 s46, s45, %d" % (row * 4096))
        A("buffer_store_dwordx4 %s, v50, s[12:15], s46 offen sc1" % v(G0 + 4 * n, 4))
    A("s_lshl_b32 s52, s%d, 9" % WAVE)
    A("s_lshl_b32 s44, s%d, 3" % CB)
    A("s_add_u32 s52, s52, s44")
    A("s_add_u32 s52, s52, %d" % FL_T)
    A("s_waitcnt vmcnt(0)")
    publish(A, 52)
    stamp(A, cfg, 5)
    A("s_barrier")
    for _ in range(cfg.pf_b): scpf2()
    A.label("scan_done")
    A("s_lshr_b32 s43, s%d, 1" % ST)
    A("s_lshl_b32 s43, s43, 9")
    A("s_add_u32 s43, s43, %d" % FL_T)
    A("s_cmp_lg_u32 s%d, 0" % WAVE)
    A("s_cbranch_scc1 scan_h")
    gate_issue(A, 43)
    gate_check(A, 43, (1 << 36) - 1)
    A.label("scan_h")
    A("s_waitcnt vmcnt(0)")
    A("s_barrier")
    A("s_cmp_lt_u32 s%d, 4" % WAVE)
    A("s_cbranch_scc1 c3_entry")
    A("s_branch l3_entry")
    A.label("text_end")
    A("s_endpgm")

    HEADER = open("cdna_kernels/%s.s.ref" % NAME).read().split("; @launch")[0]
    out = HEADER + "; @launch grid=(256,1,1) block=(512,1,1) lds=163840\n"
    out += '.amdgcn_target "amdgcn-amd-amdhsa--gfx950"\n.text\n' + A.text()
    out += '.section .rodata,"a"\n.p2align 6\n' + kd(KN, 256, 102)
    return out

if __name__ == "__main__":
    kw = {}
    for a_ in sys.argv[2:]:
        k, val = a_.split("=")
        kw[k] = ast.literal_eval(val)
    open(sys.argv[1], "w").write(gen(**kw))
```

```python
import sys, math, ast
from asmlib import *

NAME = "parallel_sum__ssm_conv_s5__mixer_token_mlp__prompt"
PAIR = 2048
WS_HF = 0x0;        SZ_HF = 32 * 36 * PAIR
WS_UF = 0x400000;   SZ_UF = 72 * 36 * PAIR
WS_G = 0xC00000;    SZ_G = 4718592
WS_HT = 0x1400000;  SZ_HT = 4718592
WS_ST = 0x1900000;  SZ_ST = 16384
WS_FL = 0x1910000;  SZ_FL = 65536
WS_EX = 0x2000000;  SZ_EX = 64 * 16 * 9216
WS_STAMP = 0xC000000
SZ_W = 2048 * 9216; SZ_C = 576 * 1152; SZ_X = 2359296
FL_H = 0
FL_G = 2048
FL_U = FL_G + 12 * 512
FL_T = FL_U + 16 * 512
FL_X = FL_T + 8 * 512
assert FL_X + 256 * 128 <= SZ_FL

PX, PLRE, PLIM, PBRE, PBIM, PCRE, PCIM, PLOGDT, PDSK, PBX, PW1, PB1, PW2, PB2, POUT, PDBG, PWS = [64 + 2 * i for i in range(17)]
WAVE, SLOTR, XCD = 20, 21, 22
TAG = 24
RING = 26
CNT = 27
EVT = 28
NS = 4; SLOT = 34816; LDS_OWN = NS * SLOT
MFMA = "v_mfma_f32_16x16x32_bf16"
SPIN = 1 << 14
SIG = 163776
NS2 = 5; SLOT2 = 28672; LDS_LN = NS2 * SLOT2

class Cfg:
    stamp = False
    pf_a = 1
    scm = (0, 0, 0)
    pf_b = 1
    lnpf = 1
    rot1 = 1; rot2 = 1; rot3 = 1
    hl = "sc1"
    codepf = 1
    gl = ""
    pf_a2 = 2
    dbgst = 0
    fast = 0
    hoist = 1
    hack3 = 0
    ord2 = 0
    ord3 = 0
    pair2 = 0
    pair3 = 0
    bsleep = 50
    gsleep = 8
    csleep = 0
    pro = 3
    e1 = (7,)

class G:
    pass

def stamp(A, cfg, idx):
    if cfg.stamp:
        A("s_memrealtime s[98:99]")
        A("s_memtime s[100:101]")
        A("s_waitcnt lgkmcnt(0)")
        A("v_writelane_b32 v255, s98, %d" % idx)
        A("v_writelane_b32 v255, s100, %d" % (idx + 16))

def stamp_end(A, cfg):
    if not cfg.stamp: return
    A("s_waitcnt vmcnt(0)")
    stamp(A, cfg, 15)
    srd(A, 4, PWS, 262144, WS_STAMP)
    A("s_lshl_b32 s30, s2, 3")
    A("s_add_u32 s30, s30, s%d" % WAVE)
    A("s_lshl_b32 s30, s30, 7")
    A("v_lshlrev_b32 v3, 2, v2")
    A("s_mov_b32 exec_lo, -1\ns_mov_b32 exec_hi, 0")
    A("buffer_store_dword v255, v3, s[4:7], s30 offen")
    if cfg.dbgst:
        A("s_cmp_lg_u32 s2, %d" % cfg.dbgst)
        A("s_cbranch_scc1 dbg_skip")
        srd(A, 4, PDBG, 256)
        A("v_readlane_b32 s31, v255, 0")
        A("s_nop 3")
        A("v_subrev_u32 v255, s31, v255")
        A("s_cmp_eq_u32 s%d, 3" % WAVE)
        A("s_cbranch_scc0 dbg_l")
        A("s_mov_b64 exec, 0x3ffc")
        A("buffer_store_dword v255, v3, s[4:7], 0 offen")
        A.label("dbg_l")
        A("s_cmp_eq_u32 s%d, 4" % WAVE)
        A("s_cbranch_scc0 dbg_skip")
        A("s_mov_b64 exec, 0x8000")
        A("buffer_store_dword v255, v3, s[4:7], 0 offen")
        A("s_mov_b64 exec, 0x200")
        A("buffer_store_dword v255, v3, s[4:7], 0 offen offset:20")
        A.label("dbg_skip")

def slot_adv(ph, sreg=RING):
    sl, n = (SLOT, NS) if ph == 3 else (SLOT2, NS2)
    return ["s_add_u32 s%d, s%d, %d" % (sreg, sreg, sl), "s_cmp_eq_u32 s%d, %d" % (sreg, n * sl), "s_cselect_b32 s%d, 0, s%d" % (sreg, sreg)]

def row16_sum(A, r):
    for sh in (8, 4, 2, 1):
        A("s_nop 1")
        A("v_add_f32_dpp v%d, v%d, v%d row_ror:%d row_mask:0xf bank_mask:0xf" % (r, r, r, sh))

def round_bf16(A, dst, src):
    A("v_cvt_pk_bf16_f32 v%d, v%d, v%d" % (dst, src, src))
    A("v_lshlrev_b32 v%d, 16, v%d" % (dst, dst))

L_C = 2304; L_W2 = 2304 + 162; L_END = L_W2 + 72 * 32
def pf_decode(A, idx, d, off, t, lo=0):
    A("s_sub_u32 s%d, s%d, %d" % (off, idx, L_W2))
    A("s_bfe_u32 s%d, s%d, 0x20005" % (t, off))
    A("s_mul_i32 s%d, s%d, %d" % (t, t, 18 * 32))
    A("s_lshr_b32 s%d, s%d, 7" % (t + 1, off))
    A("s_lshl_b32 s%d, s%d, 5" % (t + 1, t + 1))
    A("s_add_u32 s%d, s%d, s%d" % (t, t, t + 1))
    A("s_and_b32 s%d, s%d, 31" % (off, off))
    A("s_add_u32 s%d, s%d, s%d" % (off, off, t))
    A("s_cmp_ge_u32 s%d, %d" % (idx, L_END))
    A("s_cselect_b32 s%d, 4096, s%d" % (off, off))
    A("s_mov_b32 s%d, s%d\ns_mov_b32 s%d, s%d\ns_mov_b32 s%d, %d" % (d, PW2, d + 1, PW2 + 1, d + 2, SZ_W))
    for (hi, sub, base, sz) in ((L_W2, L_C + 81, PCIM, SZ_C), (L_C + 81, L_C, PCRE, SZ_C), (L_C, 0, PW1, SZ_W)):
        if hi <= lo: continue
        A("s_sub_u32 s%d, s%d, %d" % (t, idx, sub))
        A("s_cmp_lt_u32 s%d, %d" % (idx, hi))
        A("s_cselect_b32 s%d, s%d, s%d" % (off, t, off))
        A("s_cselect_b32 s%d, s%d, s%d" % (d, base, d))
        A("s_cselect_b32 s%d, s%d, s%d" % (d + 1, base + 1, d + 1))
        A("s_cselect_b32 s%d, %d, s%d" % (d + 2, sz, d + 2))
    A("s_mov_b32 s%d, 0x00020000" % (d + 3))
    A("s_lshl_b32 s%d, s%d, 13" % (off, off))

GSLEEP = [8]
FSRD = 16; VL8 = 248; VT = 250; VP = 252
def tag_issue(A):
    srd(A, 60, PDBG, 256)
    A("v_mov_b32 v249, 0")
    A("buffer_load_dwordx2 v[%d:%d], v249, s[60:63], 0 offen sc1" % (VT, VT + 1))
def tag_check(A):
    lp = A.newlabel("tg"); ok = A.newlabel("tg"); rt = A.newlabel("tg")
    A("s_mov_b32 s59, 0")
    A.label(lp)
    A("s_waitcnt vmcnt(0)")
    A("v_readfirstlane_b32 s58, v%d" % VT)
    A("s_add_u32 s59, s59, 1")
    A("s_cmp_eq_u32 s58, 0")
    A("s_cbranch_scc1 %s" % rt)
    A("s_sub_u32 s58, s%d, s58" % TAG)
    A("s_cmp_lt_i32 s58, 1500")
    A("s_cbranch_scc1 %s" % ok)
    A("s_cmp_gt_u32 s59, 64")
    A("s_cbranch_scc1 %s" % ok)
    A.label(rt)
    A("s_cmp_gt_u32 s59, %d" % SPIN)
    A("s_cbranch_scc1 %s" % ok)
    A("s_sleep 2")
    tag_issue(A)
    A("s_branch %s" % lp)
    A.label(ok)
def publish(A, offreg):
    A("s_mov_b64 exec, 1")
    A("buffer_store_dwordx2 v[%d:%d], v%d, s[%d:%d], s%d offen sc1" % (VT, VT + 1, VL8, FSRD, FSRD + 3, offreg))
    A("s_mov_b64 exec, -1")
def gate_issue(A, offreg):
    A("buffer_load_dwordx2 v[%d:%d], v%d, s[%d:%d], s%d offen sc1" % (VP, VP + 1, VL8, FSRD, FSRD + 3, offreg))
def gate_check(A, offreg, mask, first_wait=0):
    lp = A.newlabel("gt"); ok = A.newlabel("gt")
    A("s_mov_b32 s59, 0")
    if isinstance(mask, int):
        A("s_mov_b32 s56, 0x%x" % (mask & 0xffffffff))
        A("s_mov_b32 s57, 0x%x" % (mask >> 32))
        mask = "s[56:57]"
    A("s_waitcnt vmcnt(%d)" % first_wait)
    A.label(lp)
    A("v_cmp_ne_u64 vcc, v[%d:%d], v[%d:%d]" % (VP, VP + 1, VT, VT + 1))
    A("s_add_u32 s59, s59, 1")
    A("s_and_b64 vcc, vcc, %s" % mask)
    A("s_cbranch_scc0 %s" % ok)
    A("s_cmp_gt_u32 s59, %d" % SPIN)
    A("s_cbranch_scc1 %s" % ok)
    A("s_sleep %d" % GSLEEP[0])
    gate_issue(A, offreg)
    A("s_waitcnt vmcnt(0)")
    A("s_branch %s" % lp)
    A.label(ok)

VW = 240
def wide_issue(A):
    A("v_lshlrev_b32 v249, 4, v2")
    A("buffer_load_dwordx4 v[%d:%d], v249, s[%d:%d], 0 offen sc1" % (VW, VW + 3, FSRD, FSRD + 3))
    A("buffer_load_dwordx4 v[%d:%d], v249, s[%d:%d], 0 offen offset:1024 sc1" % (VW + 4, VW + 7, FSRD, FSRD + 3))
def wide_check(A):
    lp = A.newlabel("gw"); ok = A.newlabel("gw")
    A("s_mov_b32 s59, 0")
    A.label(lp)
    A("s_waitcnt vmcnt(0)")
    A("v_cmp_ne_u64 vcc, v[%d:%d], v[%d:%d]" % (VW, VW + 1, VT, VT + 1))
    for q in range(1, 4):
        A("v_cmp_ne_u64 s[56:57], v[%d:%d], v[%d:%d]" % (VW + 2 * q, VW + 2 * q + 1, VT, VT + 1))
        A("s_or_b64 vcc, vcc, s[56:57]")
    A("s_cbranch_scc0 %s" % ok)
    A("s_add_u32 s59, s59, 1")
    A("s_cmp_gt_u32 s59, %d" % SPIN)
    A("s_cbranch_scc1 %s" % ok)
    A("s_sleep %d" % GSLEEP[0])
    wide_issue(A)
    A("s_branch %s" % lp)
    A.label(ok)

def group(A, ms, rs, nprev, extra=(), pts=None):
    rs = list(rs); issued = 0; waited = -1
    for i, (m, need) in enumerate(ms):
        if pts is not None:
            if i in pts:
                nxt = min([p for p in pts if p > i] + [len(ms)])
                need = max(n for _, n in ms[i:nxt])
            else:
                assert need <= waited
        if need > waited:
            A("s_waitcnt lgkmcnt(%d)" % min(15, nprev - 1 - need + issued))
            waited = need
        A(m)
        if rs:
            A(rs.pop(0)); issued += 1
        for pos, t in extra:
            if pos == i: A(t)
    for r in rs: A(r)

def consumer_phase(A, pfx, reads, mfmas, addr_update, kt, pts, events, evpos, ph, first_done=None):
    n = len(reads(0, 0)); nm = len(mfmas(1))
    for r in reads(0, 0): A(r)
    if isinstance(kt, int): A("s_mov_b32 s%d, %d" % (CNT, kt - 2))
    else: A("s_sub_u32 s%d, %s, 2" % (CNT, kt))
    A("s_mov_b32 s%d, %s" % (EVT, events[0][0] if events else "1000"))
    m0 = [(m[:m.rindex(",")] + ", 0", need) for m, need in mfmas(0)]
    group(A, m0, reads(1, 1), n, addr_update(), pts)
    group(A, mfmas(1), reads(0, 0), n, (), pts)
    if first_done: first_done()
    A.label(pfx + "_loop")
    group(A, mfmas(0), reads(1, 1), n, addr_update() + [(evpos, "s_cmp_eq_u32 s%d, s%d" % (CNT, EVT))], pts)
    A("s_cbranch_scc1 %s_ev" % pfx)
    A.label(pfx + "_evr")
    A("s_barrier")
    group(A, mfmas(1), reads(0, 0), n, [(nm - 3, "s_sub_u32 s%d, s%d, 1" % (CNT, CNT)), (nm - 2, "s_cmp_lg_u32 s%d, 0" % CNT)], pts)
    A("s_cbranch_scc1 %s_loop" % pfx)
    group(A, mfmas(0), reads(1, 1), n, [(i, t) for i, t in enumerate(slot_adv(ph))], pts)
    group(A, mfmas(1), [], n, (), pts)
    def evcode():
        A.label(pfx + "_ev")
        for i, (key, fn) in enumerate(events):
            nx = A.newlabel(pfx + "_e")
            A("s_cmp_lg_u32 s%d, %s" % (CNT, key))
            A("s_cbranch_scc1 %s" % nx)
            fn()
            A("s_mov_b32 s%d, %s" % (EVT, events[i + 1][0] if i + 1 < len(events) else "1000"))
            A.label(nx)
        A("s_branch %s_evr" % pfx)
    return evcode

def gen(**kw):
    cfg = Cfg()
    for k, val in kw.items():
        assert hasattr(Cfg, k), k
        setattr(cfg, k, val)
    A = Asm()
    HL = cfg.hl
    GSLEEP[0] = cfg.gsleep
    late = []
    KN = NAME + "_kernel"
    A.raw(".globl %s\n.p2align 8\n.type %s,@function" % (KN, KN))
    A.label(KN)
    A("s_cmp_ge_u32 s2, 256")
    A("s_cbranch_scc1 k_end")
    A("s_load_dwordx16 s[64:79], s[0:1], 0")
    A("s_load_dwordx16 s[80:95], s[0:1], 64")
    A("s_load_dwordx2 s[96:97], s[0:1], 128")
    A("s_memrealtime s[%d:%d]" % (TAG, TAG + 1))
    A("v_lshrrev_b32 v1, 6, v0")
    A("v_and_b32 v2, 63, v0")
    A("v_readfirstlane_b32 s%d, v1" % WAVE)
    A("s_and_b32 s%d, s2, 7" % XCD)
    A("s_lshr_b32 s%d, s2, 3" % SLOTR)
    A("s_cmp_ge_u32 s%d, 24" % SLOTR)
    A("s_cselect_b32 s%d, %d, %d" % (RING, 3, 4))
    A("s_cmp_ge_u32 s%d, 27" % SLOTR)
    A("s_cselect_b32 s%d, 0, s%d" % (RING, RING))
    A("s_mul_i32 s%d, s%d, %d" % (RING, RING, SLOT2))
    A("v_lshlrev_b32 v%d, 3, v2" % VL8)
    if cfg.stamp:
        A("v_mov_b32 v255, 0")
        A("s_waitcnt lgkmcnt(0)")
        A("v_writelane_b32 v255, s%d, 0" % TAG)
    TT, PT, FT, DT, SP, ST, D3, KT3, NF, F0 = 30, 31, 32, 33, 34, 35, 36, 37, 38, 39
    A("s_cmp_ge_u32 s%d, 12" % SLOTR)
    A("s_cselect_b32 s%d, 1, 0" % TT)
    A("s_mul_i32 s%d, s%d, 12" % (PT, TT))
    A("s_sub_u32 s%d, s%d, s%d" % (PT, SLOTR, PT))
    A("s_lshl_b32 s3, s%d, 1" % XCD)
    A("s_add_u32 s%d, s%d, s3" % (TT, TT))
    A("s_cmp_ge_u32 s%d, 24" % SLOTR)
    A("s_cbranch_scc1 ln_entry")
    A("s_cmp_lt_u32 s%d, 4" % WAVE)
    A("s_cbranch_scc1 c1_entry")

    def ids23():
        A("s_mul_i32 s3, s%d, 27" % XCD)
        A("s_add_u32 s3, s3, s%d" % SLOTR)
        A("s_mul_i32 s%d, s3, 43691" % FT)
        A("s_lshr_b32 s%d, s%d, 18" % (FT, FT))
        A("s_mul_i32 s%d, s%d, 6" % (DT, FT))
        A("s_sub_u32 s%d, s3, s%d" % (DT, DT))
        A("s_lshr_b32 s%d, s%d, 1" % (SP, XCD))
        A("s_and_b32 s3, s%d, 1" % XCD)
        A("s_lshl_b32 s3, s3, 3")
        A("s_lshr_b32 s%d, s%d, 2" % (ST, SLOTR))
        A("s_add_u32 s%d, s%d, s3" % (ST, ST))
        A("s_and_b32 s%d, s%d, 3" % (D3, SLOTR))
        A("s_cmp_ge_u32 s%d, 2" % SP)
        A("s_cselect_b32 s%d, 4, 5" % NF)
        A("s_add_u32 s%d, s%d, 18" % (KT3, NF))
        A("s_mul_i32 s%d, s%d, 5" % (F0, SP))
        A("s_cmp_eq_u32 s%d, 3" % SP)
        A("s_cselect_b32 s%d, 14, s%d" % (F0, F0))

    LW = 23
    M0P, M0Q = 40, 41
    OP, OQ = 42, 43
    A("s_sub_u32 s%d, s%d, 4" % (LW, WAVE))
    A("v_lshrrev_b32 v3, 3, v2")
    A("v_and_b32 v4, 7, v2")
    A("v_xor_b32 v6, v4, v3")
    A("s_movk_i32 s44, 1152")
    A("v_mul_lo_u32 v5, v3, s44")
    A("v_lshlrev_b32 v8, 1, v5")
    A("v_lshl_add_u32 v10, v6, 4, v8")
    A("s_lshr_b32 s44, s%d, 1" % LW)
    A("v_and_b32 v7, 6, v3")
    A("v_or_b32 v7, s44, v7")
    A("v_xor_b32 v7, v4, v7")
    A("v_lshl_add_u32 v14, v7, 4, v5")
    for m in range(1, 4):
        A("v_add_u32 v%d, 0x%x, v10" % (10 + m, (16 * (m & 1) + (m >> 1)) * 1152 - (m & 1) * 1024))
    for m in range(1, 3):
        A("v_add_u32 v%d, 0x%x, v14" % (14 + m, m * (8 * 1152 - 1024)))
    A("s_lshl_b32 s%d, s%d, 7" % (OP, TT))
    A("s_lshl_b32 s45, s%d, 5" % LW)
    A("s_add_u32 s%d, s%d, s45" % (OP, OP))
    A("s_mul_i32 s%d, s%d, 1152" % (OP, OP))
    A("s_mul_i32 s%d, s%d, 48" % (OQ, PT))
    A("s_and_b32 s45, s%d, 1" % LW)
    A("s_mul_i32 s45, s45, 24")
    A("s_add_u32 s%d, s%d, s45" % (OQ, OQ))
    A("s_mul_i32 s%d, s%d, 1152" % (OQ, OQ))
    A("s_lshl_b32 s%d, s%d, 12" % (M0P, LW))
    A("s_mul_i32 s%d, s%d, 3072" % (M0Q, LW))
    A("s_add_u32 s%d, s%d, 16384" % (M0Q, M0Q))
    if cfg.rot1:
        A("s_lshl_b32 s46, s%d, 2" % TT)
        A("s_add_u32 s46, s46, s%d" % PT)
        A("s_mul_i32 s47, s46, 7282")
        A("s_lshr_b32 s47, s47, 16")
        A("s_mul_i32 s47, s47, 9")
        A("s_sub_u32 s46, s46, s47")
        A("s_lshl_b32 s47, s46, 7")
        A("s_add_u32 s%d, s%d, s47" % (OP, OP))
        A("s_add_u32 s%d, s%d, s47" % (OQ, OQ))
    A("s_waitcnt lgkmcnt(0)")
    srd(A, 4, PX, SZ_X)
    A("s_cmp_ge_u32 s%d, 2" % LW)
    A("s_cselect_b32 s8, s%d, s%d" % (PBIM, PBRE))
    A("s_cselect_b32 s9, s%d, s%d" % (PBIM + 1, PBRE + 1))
    A("s_mov_b32 s10, %d" % SZ_C)
    A("s_mov_b32 s11, 0x00020000")
    def issue1():
        A("s_add_u32 m0, s%d, s%d" % (RING, M0P))
        A("s_add_u32 s45, s%d, s%d" % (RING, M0Q))
        for m in range(4):
            if m == 2:
                A("s_add_u32 m0, m0, 2048")
                A("s_nop 0")
            A("buffer_load_dwordx4 v%d, s[4:7], s%d offen offset:%d lds" % (10 + m, OP, (m & 1) * 1024))
        A("s_mov_b32 m0, s45")
        A("s_add_u32 s%d, s%d, 128" % (OP, OP))
        for m in range(3):
            A("buffer_load_dwordx4 v%d, s[8:11], s%d offen offset:%d lds" % (14 + m, OQ, m * 1024))
        A("s_add_u32 s%d, s%d, 128" % (OQ, OQ))
        if cfg.rot1:
            A("s_add_u32 s46, s46, 1")
            A("s_cmp_eq_u32 s46, 9")
            A("s_cselect_b32 s47, 1152, 0")
            A("s_sub_u32 s%d, s%d, s47" % (OP, OP))
            A("s_sub_u32 s%d, s%d, s47" % (OQ, OQ))
        for t in slot_adv(1): A(t)
    def lane23():
        A("v_lshrrev_b32 v3, 4, v2")
        A("v_and_b32 v4, 15, v2")
        A("v_lshlrev_b32 v6, 1, v3")
        A("v_xor_b32 v7, v4, v6")
        A("v_xor_b32 v8, 8, v7")
        for (b, stride) in ((20, 9216), (24, 4096)):
            A("s_movk_i32 s44, %d" % stride)
            A("v_mul_lo_u32 v5, v3, s44")
            A("v_lshl_add_u32 v%d, v7, 4, v5" % b)
            A("v_lshl_add_u32 v%d, v8, 4, v5" % (b + 1))
            D = 4 * stride - 1024
            A("v_add_u32 v%d, 0x%x, v%d" % (b + 2, 2 * D, b))
            A("v_add_u32 v%d, 0x%x, v%d" % (b + 3, 3 * D, b + 1))
            A("v_add_u32 v%d, 0x%x, v%d" % (b + 1, D, b + 1))
        A("v_lshlrev_b32 v28, 4, v2")
        A("v_lshrrev_b32 v3, 3, v2")
        A("v_and_b32 v4, 7, v2")
        A("v_xor_b32 v4, v4, v3")
        A("s_movk_i32 s44, 1152")
        A("v_mul_lo_u32 v5, v3, s44")
        A("v_lshl_add_u32 v30, v4, 4, v5")
        for m in range(1, 4):
            A("v_add_u32 v%d, 0x%x, v30" % (30 + m, m * (8 * 1152 - 1024)))
    B2P, B2Q, N2, M6 = 48, 49, 50, 51
    def setup2():
        A("s_mul_i32 s%d, s%d, %d" % (B2P, LW, 16 * 9216))
        A("s_lshl_b32 s44, s%d, 8" % FT)
        A("s_add_u32 s%d, s%d, s44" % (B2P, B2P))
        A("s_mul_i32 s%d, s%d, 12" % (B2Q, DT))
        A("s_mul_i32 s44, s%d, 3" % LW)
        A("s_add_u32 s%d, s%d, s44" % (B2Q, B2Q))
        A("s_lshl_b32 s%d, s%d, 10" % (B2Q, B2Q))
        A("s_mov_b32 s%d, 0\ns_mov_b32 s%d, 0" % (N2, M6))
    def srd2():
        srd(A, 4, PW1, SZ_W)
        srd(A, 8, PWS, SZ_HF, WS_HF)
    par2 = [0]
    def issue2():
        odd = par2[0] & 1; par2[0] += 1
        if cfg.pair2:
            A("s_add_u32 s44, s%d, 12" % N2)
            A("s_lshl_b32 s45, s%d, 1" % M6)
            if odd: A("s_add_u32 s45, s45, 1")
            A("s_cmp_lt_u32 s44, 32")
            A("s_cselect_b32 s44, s44, s45")
            A("s_cmp_eq_u32 s%d, s%d" % (M6, DT))
            A("s_cselect_b32 s44, s44, s%d" % N2)
        elif cfg.rot2:
            A("s_add_u32 s44, s%d, 6" % N2)
            A("s_cmp_lt_u32 s44, 32")
            A("s_cselect_b32 s44, s44, s%d" % M6)
            A("s_cmp_eq_u32 s%d, s%d" % (M6, DT))
            A("s_cselect_b32 s44, s44, s%d" % N2)
        else:
            A("s_mov_b32 s44, s%d" % N2)
        A("s_mul_i32 s%d, s44, %d" % (OP, 64 * 9216))
        A("s_add_u32 s%d, s%d, s%d" % (OP, OP, B2P))
        A("s_mul_i32 s%d, s44, %d" % (OQ, 36 * PAIR))
        A("s_add_u32 s%d, s%d, s%d" % (OQ, OQ, B2Q))
        def W():
            A("s_add_u32 m0, s%d, s%d" % (RING, M0P))
            A("s_nop 0")
            for m in range(4):
                A("buffer_load_dwordx4 v%d, s[4:7], s%d offen offset:%d lds" % (20 + m, OP, m * 1024))
        def X():
            A("s_add_u32 m0, s%d, s%d" % (RING, M0Q))
            A("s_nop 0")
            for m in range(3):
                A("buffer_load_dwordx4 v28, s[8:11], s%d offen offset:%d %s lds" % (OQ, m * 1024, HL))
        if cfg.pair2 and not odd: X(); W()
        else: W(); X()
        A("s_add_u32 s%d, s%d, 1" % (N2, N2))
        if odd or not cfg.pair2:
            A("s_add_u32 s%d, s%d, 1" % (M6, M6))
            A("s_cmp_eq_u32 s%d, 6" % M6)
            A("s_cselect_b32 s%d, 0, s%d" % (M6, M6))
        for t in slot_adv(2): A(t)
    B3P, B3C, B3U, N3, PH3, M0X, M0Q3 = 52, 53, 54, 55, 46, 47, 29
    def setup3():
        A("s_lshl_b32 s%d, s%d, 16" % (B3P, LW))
        A("s_lshl_b32 s44, s%d, 8" % ST)
        A("s_add_u32 s%d, s%d, s44" % (B3P, B3P))
        A("s_mul_i32 s%d, s%d, %d" % (B3C, D3, 144 * 1152))
        A("s_mul_i32 s%d, s%d, %d" % (B3U, D3, 9 * PAIR))
        A("s_mul_i32 s44, s%d, %d" % (SP, 18 * 36 * PAIR))
        A("s_add_u32 s%d, s%d, s44" % (B3U, B3U))
        A("s_mov_b32 s%d, s%d" % (N3, F0))
        A("s_add_u32 s%d, s%d, s%d" % (PH3, D3, ST))
        A("s_and_b32 s%d, s%d, 3" % (PH3, PH3))
        A("s_lshl_b32 s%d, s%d, 10" % (M0X, LW))
        A("s_add_u32 s%d, s%d, %d" % (M0X, M0X, 32768))
        A("s_add_u32 s%d, s%d, 16384" % (M0Q3, M0P))
    def issue3f(extra):
        srd(A, 4, PWS, SZ_HT, WS_HT)
        A("s_cmp_ge_u32 s%d, 9" % N3)
        A("s_cselect_b32 s8, s%d, s%d" % (PCIM, PCRE))
        A("s_cselect_b32 s9, s%d, s%d" % (PCIM + 1, PCRE + 1))
        A("s_cselect_b32 s44, 9, 0")
        A("s_mov_b32 s10, %d" % SZ_C)
        A("s_mov_b32 s11, 0x00020000")
        A("s_lshl_b32 s%d, s%d, 18" % (OP, N3))
        A("s_add_u32 s%d, s%d, s%d" % (OP, OP, B3P))
        A("s_add_u32 m0, s%d, s%d" % (RING, M0P))
        A("s_sub_u32 s44, s%d, s44" % N3)
        for m in range(4):
            A("buffer_load_dwordx4 v%d, s[4:7], s%d offen offset:%d %s lds" % (24 + m, OP, m * 1024, HL))
        A("s_lshl_b32 s44, s44, 7")
        A("s_add_u32 s44, s44, s%d" % B3C)
        A("s_mul_i32 s%d, s%d, %d" % (OQ, LW, 32 * 1152))
        A("s_add_u32 m0, s%d, s%d" % (RING, M0Q3))
        A("s_add_u32 s%d, s%d, s44" % (OQ, OQ))
        for m in range(4):
            A("buffer_load_dwordx4 v%d, s[8:11], s%d offen offset:%d lds" % (30 + m, OQ, m * 1024))
        if extra:
            A("s_mul_i32 s%d, s%d, %d" % (OQ, LW, 8 * 1152))
            A("s_add_u32 s44, s44, %d" % (128 * 1152))
            A("s_add_u32 m0, s%d, s%d" % (RING, M0X))
            A("s_add_u32 s%d, s%d, s44" % (OQ, OQ))
            A("buffer_load_dwordx4 v30, s[8:11], s%d offen lds" % OQ)
        A("s_add_u32 s%d, s%d, 1" % (N3, N3))
        for t in slot_adv(3): A(t)
    def switch3u():
        srd(A, 4, PW2, SZ_W)
        srd(A, 8, PWS, SZ_UF, WS_UF)
        A("s_mul_i32 s44, s%d, %d" % (SP, 18 * 262144))
        A("s_add_u32 s%d, s%d, s44" % (B3P, B3P))
        A("s_mov_b32 s%d, 0" % N3)
    par3 = [0]
    def issue3u(extra, which="WX"):
        odd = par3[0] & 1; par3[0] += 1
        if cfg.pair3:
            A("s_bfe_u32 s45, s%d, 0x20001" % N3)
            A("s_add_u32 s44, s%d, 8" % N3)
            A("s_and_b32 s%d, s%d, 7" % (OP, N3))
            A("s_cmp_lt_u32 s44, 18")
            A("s_cselect_b32 s44, s44, s%d" % OP)
            A("s_cmp_eq_u32 s45, s%d" % PH3)
            A("s_cselect_b32 s44, s44, s%d" % N3)
        elif cfg.rot3:
            A("s_and_b32 s45, s%d, 3" % N3)
            A("s_add_u32 s44, s%d, 4" % N3)
            A("s_cmp_lt_u32 s44, 18")
            A("s_cselect_b32 s44, s44, s45")
            A("s_cmp_eq_u32 s45, s%d" % PH3)
            A("s_cselect_b32 s44, s44, s%d" % N3)
        else:
            A("s_mov_b32 s44, s%d" % N3)
        A("s_lshl_b32 s%d, s44, 18" % OP)
        A("s_add_u32 s%d, s%d, s%d" % (OP, OP, B3P))
        A("s_mul_i32 s45, s44, %d" % (36 * PAIR))
        A("s_add_u32 s45, s45, s%d" % B3U)
        A("s_add_u32 s%d, s45, s%d" % (OQ, M0P))
        if extra:
            A("s_add_u32 s45, s45, s%d" % M0X)
            A("s_sub_u32 s45, s45, 16384")
        def W():
            A("s_add_u32 m0, s%d, s%d" % (RING, M0P))
            A("s_nop 0")
            for m in range(4):
                A("buffer_load_dwordx4 v%d, s[4:7], s%d offen offset:%d lds" % (24 + m, OP, m * 1024))
        def X():
            A("s_add_u32 m0, s%d, s%d" % (RING, M0Q3))
            A("s_nop 0")
            for m in range(4):
                A("buffer_load_dwordx4 v28, s[8:11], s%d offen offset:%d %s lds" % (OQ, m * 1024, HL))
            if extra:
                A("s_add_u32 m0, s%d, s%d" % (RING, M0X))
                A("s_nop 0")
                A("buffer_load_dwordx4 v28, s[8:11], s45 offen %s lds" % HL)
        if which == "W": W()
        elif which == "X": X()
        elif cfg.pair3 and not odd: X(); W()
        else: W(); X()
        A("s_add_u32 s%d, s%d, 1" % (N3, N3))
        for t in slot_adv(3): A(t)
    def step(wait, issue):
        if issue and cfg.hoist:
            mark = len(A.lines)
            issue()
            body = A.lines[mark:]; del A.lines[mark:]
            k = 0
            while k < len(body) and body[k].strip().startswith("s_") and not body[k].strip().startswith(("s_cbranch", "s_branch")): k += 1
            A.lines += body[:k]
            A("s_waitcnt vmcnt(%d)" % wait)
            A("s_barrier")
            A.lines += body[k:]
            return
        A("s_waitcnt vmcnt(%d)" % wait)
        A("s_barrier")
        if issue: issue()
    def lloop(label, count, wait, issue, unroll=1):
        if isinstance(count, int): A("s_mov_b32 s%d, %d" % (CNT, count))
        else: A(count)
        A.label(label)
        for _ in range(unroll): step(wait, issue)
        A("s_sub_u32 s%d, s%d, 1" % (CNT, CNT))
        A("s_cmp_lg_u32 s%d, 0" % CNT)
        A("s_cbranch_scc1 %s" % label)
    def fast_loop(label, count, wait, sel, ph, vW, nX, strideW, bW, bQ, m0q, extra):
        QA = (OQ, 63); XA = (45, 3); MQ = (56, 57); MX = (58, 59)
        def prep(k):
            sel()
            if strideW == 262144: A("s_lshl_b32 s%d, s44, 18" % OP)
            else: A("s_mul_i32 s%d, s44, %d" % (OP, strideW))
            A("s_add_u32 s%d, s%d, s%d" % (OP, OP, bW))
            A("s_mul_i32 s44, s44, %d" % (36 * PAIR))
            A("s_add_u32 s%d, s44, s%d" % (QA[k], bQ))
            if extra:
                A("s_add_u32 s%d, s44, s%d" % (XA[k], extra))
                A("s_add_u32 s%d, s%d, s%d" % (MX[k], RING, M0X))
            A("s_add_u32 s%d, s%d, s%d" % (MQ[k], RING, m0q))
            A("s_add_u32 s62, s%d, s%d" % (RING, M0P))
            for t in slot_adv(ph): A(t)
        def body(k, last):
            A("s_mov_b32 m0, s62")
            A("s_waitcnt vmcnt(%d)" % wait)
            A("s_barrier")
            for m in range(4):
                A("buffer_load_dwordx4 v%d, s[4:7], s%d offen offset:%d lds" % (vW + m, OP, m * 1024))
            A("s_mov_b32 m0, s%d" % MQ[k])
            if not last: prep(1 - k)
            else: A("s_nop 0")
            if k == 1 and not last:
                A("s_sub_u32 s%d, s%d, 1" % (CNT, CNT))
                A("s_cmp_lg_u32 s%d, 0" % CNT)
            for m in range(nX):
                A("buffer_load_dwordx4 v28, s[8:11], s%d offen offset:%d %s lds" % (QA[k], m * 1024, HL))
            if extra:
                A("s_mov_b32 m0, s%d" % MX[k])
                A("s_nop 0")
                A("buffer_load_dwordx4 v28, s[8:11], s%d offen %s lds" % (XA[k], HL))
        prep(0)
        A("s_mov_b32 s%d, %d" % (CNT, count - 1))
        A.label(label)
        body(0, False); body(1, False)
        A("s_cbranch_scc1 %s" % label)
        body(0, False); body(1, True)
    def sel2():
        A("s_add_u32 s44, s%d, 6" % N2)
        A("s_cmp_lt_u32 s44, 32")
        A("s_cselect_b32 s44, s44, s%d" % M6)
        A("s_cmp_eq_u32 s%d, s%d" % (M6, DT))
        A("s_cselect_b32 s44, s44, s%d" % N2)
        A("s_add_u32 s%d, s%d, 1" % (N2, N2))
        A("s_add_u32 s%d, s%d, 1" % (M6, M6))
        A("s_cmp_eq_u32 s%d, 6" % M6)
        A("s_cselect_b32 s%d, 0, s%d" % (M6, M6))
    def sel3():
        A("s_and_b32 s%d, s%d, 3" % (OP, N3))
        A("s_add_u32 s44, s%d, 4" % N3)
        A("s_cmp_lt_u32 s44, 18")
        A("s_cselect_b32 s44, s44, s%d" % OP)
        A("s_cmp_eq_u32 s%d, s%d" % (OP, PH3))
        A("s_cselect_b32 s44, s44, s%d" % N3)
        A("s_add_u32 s%d, s%d, 1" % (N3, N3))
    issue1(); issue1()
    ids23(); lane23(); setup2()
    if cfg.pro == 5:
        issue1(); issue1(); issue1()
        step(28, None); step(21, None)
    else:
        issue1()
        step(14, issue1); step(14, issue1)
    lloop("l1_loop", 4, 14, issue1)
    srd2()
    step(14, None)
    step(7, lambda: (issue2(), issue2()))
    step(14, issue2)
    A("s_branch l2_main")
    A.label("l2_entry")
    A("s_sub_u32 s%d, s%d, 4" % (LW, WAVE))
    A("s_lshl_b32 s%d, s%d, 12" % (M0P, LW))
    A("s_mul_i32 s%d, s%d, 3072" % (M0Q, LW))
    A("s_add_u32 s%d, s%d, 16384" % (M0Q, M0Q))
    lane23(); setup2(); srd2()
    par2[0] = 0
    issue2(); issue2(); issue2()
    A.label("l2_main")
    setup3()
    step(14, issue2)
    if cfg.fast: fast_loop("l2_loop", 13, 14, sel2, 2, 20, 3, 64 * 9216, B2P, B2Q, M0Q, None)
    else: lloop("l2_loop", 13, 14, issue2, 2)
    def lgate_issue(off):
        sk = A.newlabel("lg")
        A("s_cmp_lg_u32 s%d, 0" % LW)
        A("s_cbranch_scc1 %s" % sk)
        gate_issue(A, off)
        A.label(sk)
    def lgate_wait(off, mask, word, younger):
        ot = A.newlabel("lg"); dn = A.newlabel("lg"); lp = A.newlabel("lg")
        A("s_cmp_lg_u32 s%d, 0" % LW)
        A("s_cbranch_scc1 %s" % ot)
        gate_check(A, off, mask, first_wait=younger)
        A("v_mov_b32 v40, 1")
        A("ds_write_b32 v41, v40 offset:%d" % (8 + 4 * word))
        A("s_branch %s" % dn)
        A.label(ot)
        A("s_mov_b32 s59, 0")
        A.label(lp)
        A("ds_read_b32 v40, v41 offset:%d" % (8 + 4 * word))
        A("s_add_u32 s59, s59, 1")
        A("s_waitcnt lgkmcnt(0)")
        A("v_readfirstlane_b32 s58, v40")
        A("s_cmp_gt_u32 s59, %d" % (SPIN * 64))
        A("s_cbranch_scc1 %s" % dn)
        A("s_cmp_eq_u32 s58, 0")
        A("s_cbranch_scc1 %s" % lp)
        A.label(dn)
    XR = 150; DS = 162; STT = 168; B2 = 172; BASE = 48; PR = 80; OWN = 120
    def base_ld():
        A("v_and_b32 v42, 15, v2")
        A("v_lshrrev_b32 v43, 4, v2")
        A("v_mul_u32_u24 v46, 1152, v42")
        A("v_lshl_add_u32 v46, v43, 3, v46")
        A("v_lshlrev_b32 v47, 1, v46")
        A("v_lshlrev_b32 v43, 3, v43")
        A("v_lshlrev_b32 v45, 3, v42")
        A("v_lshlrev_b32 v42, 1, v42")
        A("s_lshl_b32 s44, s%d, 3" % ST)
        A("s_lshl_b32 s45, s%d, 1" % SP)
        A("s_add_u32 s44, s44, s45")
        A("s_mul_i32 s45, s%d, 9" % D3)
        A("s_add_u32 s45, s45, s%d" % LW)
        A("s_lshl_b32 s45, s45, 5")
        A("s_mul_i32 s50, s44, %d" % (16 * 1152))
        A("s_add_u32 s50, s50, s45")
        A("s_add_u32 s51, s50, %d" % (16 * 1152))
        A("s_lshl_b32 s48, s44, 7")
        A("s_lshl_b32 s49, s44, 5")
        srd(A, 12, PWS, SZ_ST, WS_ST)
        for aa in range(2):
            A("buffer_load_dwordx2 %s, v45, s[12:15], s48 offen offset:%d %s" % (v(STT + 2 * aa, 2), aa * 128, HL))
        srd(A, 12, PB2, 4096)
        for aa in range(2):
            A("buffer_load_ushort v%d, v42, s[12:15], s49 offen offset:%d" % (B2 + 2 * aa, aa * 32))
        srd(A, 12, PDSK, 1152)
        for n in range(3):
            A("buffer_load_dwordx2 %s, v43, s[12:15], s45 offen offset:%d" % (v(DS + 2 * n, 2), n * 128))
        srd(A, 12, PX, SZ_X)
        sk = A.newlabel("bl")
        for n in range(3):
            if n == 2:
                A("s_cmp_lg_u32 s%d, 0" % LW)
                A("s_cbranch_scc1 %s" % sk)
            for aa in range(2):
                A("buffer_load_dwordx2 %s, v46, s[12:15], s%d offen offset:%d" % (v(XR + 4 * n + 2 * aa, 2), (50, 51)[aa], n * 128))
        A.label(sk)
        A("s_lshl_b32 s50, s50, 1")
        A("s_lshl_b32 s51, s51, 1")
    def base_calc():
        for aa in range(2): A("v_lshlrev_b32 v%d, 16, v%d" % (B2 + 2 * aa, B2 + 2 * aa))
        for n in range(3):
            dd = 76; xx = 116; tt = 144
            for h in range(2):
                A("v_lshlrev_b32 v%d, 16, v%d" % (dd + 2 * h, DS + 2 * n + h))
                A("v_and_b32 v%d, 0xffff0000, v%d" % (dd + 2 * h + 1, DS + 2 * n + h))
            for aa in range(2):
                b = BASE + 8 * n + 4 * aa
                for h in range(2):
                    A("v_lshlrev_b32 v%d, 16, v%d" % (xx + 2 * h, XR + 4 * n + 2 * aa + h))
                    A("v_and_b32 v%d, 0xffff0000, v%d" % (xx + 2 * h + 1, XR + 4 * n + 2 * aa + h))
                for r in range(4): A("v_mul_f32 v%d, v%d, v%d" % (tt + r, dd + r, STT + 2 * aa + 1))
                for r in range(4): A("v_add_f32 v%d, v%d, v%d" % (b + r, xx + r, B2 + 2 * aa))
                for r in range(4): A("v_sub_f32 v%d, v%d, v%d" % (xx + r, xx + r, STT + 2 * aa))
                for r in range(4): A("v_fmac_f32 v%d, v%d, v%d" % (b + r, xx + r, tt + r))
    GT, GU = 60, 61
    def gates3():
        A("v_mov_b32 v41, %d" % SIG)
        A("ds_read_b64 v[%d:%d], v41" % (VT, VT + 1))
        srd(A, FSRD, PWS, SZ_FL, WS_FL)
        A("s_lshr_b32 s%d, s%d, 1" % (GT, ST))
        A("s_lshl_b32 s%d, s%d, 9" % (GT, GT))
        A("s_add_u32 s%d, s%d, %d" % (GT, GT, FL_T))
        A("s_lshl_b32 s%d, s%d, 2" % (GU, D3))
        A("s_add_u32 s%d, s%d, s%d" % (GU, GU, SP))
        A("s_lshl_b32 s%d, s%d, 9" % (GU, GU))
        A("s_add_u32 s%d, s%d, %d" % (GU, GU, FL_U))
        A("s_waitcnt lgkmcnt(0)")
    gates3()
    step(14, issue2)
    lgate_issue(GT)
    step(14, issue2)
    base_ld()
    step(14 + 11, None)
    A("s_cmp_lg_u32 s%d, 0" % LW)
    A("s_cbranch_scc1 l2_e1")
    A("s_waitcnt vmcnt(%d)" % (7 + 11))
    A("v_cmp_ne_u64 vcc, v[%d:%d], v[%d:%d]" % (VP, VP + 1, VT, VT + 1))
    A("s_and_b32 vcc_hi, vcc_hi, 15")
    A("s_cmp_lg_u64 vcc, 0")
    A("s_cbranch_scc1 l2_e1")
    A("v_mov_b32 v40, 1")
    A("ds_write_b32 v41, v40 offset:8")
    A("s_waitcnt lgkmcnt(0)")
    A.label("l2_e1")
    step(7 + 11, None)
    A("ds_read_b32 v40, v41 offset:8")
    A("s_waitcnt lgkmcnt(0)")
    A("v_readfirstlane_b32 s58, v40")
    A("s_cmp_lg_u32 s58, 0")
    A("s_cbranch_scc1 l3_early")
    step(0, lambda: lgate_issue(GT))
    A("s_barrier")
    A.label("l3_main")
    stamp(A, cfg, 10)
    lgate_wait(GT, (1 << 36) - 1, 0, 0)
    A.label("l3_main2")
    stamp(A, cfg, 11)
    A("s_cmp_ge_u32 s%d, 2" % LW)
    A("s_cbranch_scc1 l3b")
    A("s_branch l3a")
    A.label("l3_early")
    A("s_cmp_ge_u32 s%d, 2" % LW)
    A("s_cbranch_scc1 l3b_early")
    for (sfx, extra, per) in (("a", True, 9), ("b", False, 8)):
        A.label("l3%s_early" % sfx)
        issue3f(extra)
        step(per, lambda: issue3f(extra))
        A("s_barrier")
        A("s_branch l3%s_j" % sfx)
        A.label("l3%s" % sfx)
        issue3f(extra); issue3f(extra)
        A.label("l3%s_j" % sfx)
        issue3f(extra); issue3f(extra)
        A("s_waitcnt vmcnt(%d)" % (4 * per))
        base_calc()
        step(3 * per, None); step(2 * per, None)
        sk = A.newlabel("nf")
        A("s_cmp_eq_u32 s%d, 4" % NF)
        A("s_cbranch_scc1 %s" % sk)
        step(per, lambda: issue3f(extra))
        A.label(sk)
        switch3u()
        A("s_mov_b32 s62, s%d" % RING)
        step(per, lambda: issue3u(extra, "W"))
        step(4, lambda: (lgate_issue(GU), issue3u(extra, "W")))
        stamp(A, cfg, 12)
        lgate_wait(GU, (1 << 54) - 1, 1, 4)
        stamp(A, cfg, 13)
        A("s_mov_b32 s%d, s62" % RING)
        A("s_mov_b32 s%d, 0" % N3)
        issue3u(extra, "X"); issue3u(extra, "X")
        step(per - 4, lambda: issue3u(extra))
        step(per, lambda: issue3u(extra))
        if cfg.fast:
            A("s_add_u32 s60, s%d, s%d" % (B3U, M0P))
            A("s_add_u32 s61, s%d, s%d" % (B3U, M0X))
            A("s_sub_u32 s61, s61, 16384")
            fast_loop("l3%s_u" % sfx, 7, per, sel3, 3, 24, 4, 262144, B3P, 60, M0Q3, 61 if extra else None)
        else: lloop("l3%s_u" % sfx, 7, per, lambda: issue3u(extra), 2)
        step(per, None); step(0, None)
        A("s_branch fin")
    A.label("l3_entry")
    A("s_sub_u32 s%d, s%d, 4" % (LW, WAVE))
    A("s_lshl_b32 s%d, s%d, 12" % (M0P, LW))
    lane23(); setup3(); gates3()
    lgate_issue(GT)
    lgate_wait(GT, (1 << 36) - 1, 0, 0)
    base_ld()
    A("s_branch l3_main2")

    WR, WC = 40, 41
    KEY3 = 42
    def lane_c23():
        A("v_lshrrev_b32 v5, 2, v2")
        A("v_and_b32 v6, 7, v5")
        A("v_and_b32 v7, 3, v2")
        A("v_lshlrev_b32 v7, 3, v7")
        A("v_lshl_add_u32 v7, v5, 8, v7")
        A("s_lshl_b32 s44, s%d, 2" % WR)
        for aa in range(4):
            A("s_add_u32 s45, s44, %d" % aa)
            A("v_xor_b32 v8, s45, v6")
            A("v_lshl_add_u32 v%d, v8, 5, v7" % (204 + aa))
        A("s_mul_i32 s45, s%d, 6144" % WC)
        A("s_add_u32 s45, s45, 16384")
        A("v_lshlrev_b32 v216, 4, v2")
        A("v_add_u32 v208, s45, v216")
        A("s_lshl_b32 s44, s%d, 1" % WAVE)
        for aa in range(2):
            A("s_add_u32 s45, s44, %d" % aa)
            A("v_xor_b32 v8, s45, v6")
            A("v_lshl_add_u32 v%d, v8, 5, v7" % (209 + aa))
        A("v_and_b32 v3, 15, v2")
        A("v_lshrrev_b32 v4, 4, v2")
        A("v_and_b32 v5, 7, v3")
        A("v_xor_b32 v5, v5, v4")
        A("v_lshlrev_b32 v5, 4, v5")
        A("v_lshl_add_u32 v5, v3, 7, v5")
        A("v_add_u32 v211, 16384, v5")
        A("v_xor_b32 v212, 64, v211")
        A("v_add_u32 v213, 16384, v216")
        A("v_add_u32 v214, 17408, v216")
        A("v_lshlrev_b32 v217, 3, v4")
    def wrwc():
        A("s_and_b32 s%d, s%d, 1" % (WR, WAVE))
        A("s_lshr_b32 s%d, s%d, 1" % (WC, WAVE))
    RAW = 164; X = 174; TT_ = 220; RS = 1344
    S0, S2, M, MB, RSV = 192, 193, 194, 196, 197
    LA = 238
    def ln_load():
        A("s_lshr_b32 s44, s2, 2")
        A("s_lshl_b32 s44, s44, 5")
        A("s_and_b32 s45, s2, 3")
        A("s_lshl_b32 s45, s45, 2")
        A("s_add_u32 s44, s44, s45")
        A("s_lshr_b32 s45, s%d, 1" % WAVE)
        A("s_lshl_b32 s45, s45, 4")
        A("s_add_u32 s44, s44, s45")
        A("s_and_b32 s45, s%d, 1" % WAVE)
        A("s_lshl_b32 s45, s45, 1")
        A("s_add_u32 s51, s44, s45")
        A("s_mul_i32 s44, s51, 1152")
        A("v_lshrrev_b32 v3, 5, v2")
        A("v_and_b32 v4, 31, v2")
        A("v_mul_u32_u24 v5, 1152, v3")
        A("v_lshl_add_u32 v6, v4, 2, v5")
        A("v_lshl_add_u32 v5, v4, 3, v5")
        A("s_waitcnt lgkmcnt(0)")
        srd(A, 4, PX, SZ_X)
        for j in range(4):
            A("buffer_load_dwordx2 %s, v5, s[4:7], s44 offen offset:%d" % (v(RAW + 2 * j, 2), j * 256))
        A("buffer_load_dword v%d, v6, s[4:7], s44 offen offset:1024" % (RAW + 8))
        A("s_mul_i32 s45, s%d, %d" % (WAVE, 2 * RS))
        A("s_add_u32 s45, s45, %d" % LDS_LN)
        A("v_mul_u32_u24 v%d, %d, v3" % (LA, RS))
        A("v_add_u32 v%d, s45, v%d" % (LA, LA))
        A("v_lshl_add_u32 v195, v4, 2, v%d" % LA)
        A("v_lshl_add_u32 v%d, v4, 3, v%d" % (LA, LA))
        A("v_lshlrev_b32 v198, 3, v3")
        A("v_bfe_u32 v5, v2, 2, 2")
        A("v_mul_u32_u24 v5, %d, v5" % RS)
        A("v_and_b32 v6, 3, v2")
        A("v_lshl_add_u32 v5, v6, 3, v5")
        A("v_lshrrev_b32 v6, 4, v2")
        A("v_lshl_add_u32 v5, v6, 5, v5")
        A("s_lshl_b32 s45, s%d, 7" % WAVE)
        A("s_add_u32 s45, s45, %d" % LDS_LN)
        A("v_add_u32 v%d, s45, v5" % (LA + 1))
        A("v_and_b32 v5, 15, v2")
        A("v_lshlrev_b32 v5, 4, v5")
        A("v_lshl_add_u32 v199, v6, 11, v5")
    N = 18
    def unpack(src):
        for j in range(9):
            A("v_lshlrev_b32 v%d, 16, v%d" % (X + 2 * j, src + j))
            A("v_and_b32 v%d, 0xffff0000, v%d" % (X + 2 * j + 1, src + j))
    def sum32(r):
        row16_sum(A, r)
        A("v_mov_b32 v%d, v%d" % (S2, r))
        A("s_nop 1")
        A("v_permlane16_swap_b32 v%d, v%d" % (r, S2))
        A("s_nop 1")
        A("v_add_f32 v%d, v%d, v%d" % (r, r, S2))
    def layernorm():
        A("v_add_f32 v%d, v%d, v%d" % (S0, X, X + 1))
        A("v_add_f32 v%d, v%d, v%d" % (S2, X + 2, X + 3))
        for j in range(4, N, 2):
            A("v_add_f32 v%d, v%d, v%d" % (S0, S0, X + j))
            A("v_add_f32 v%d, v%d, v%d" % (S2, S2, X + j + 1))
        A("v_add_f32 v%d, v%d, v%d" % (S0, S0, S2))
        sum32(S0)
        A("v_mul_f32 v%d, s46, v%d" % (M, S0))
        round_bf16(A, MB, M)
        for j in range(N): A("v_sub_f32 v%d, v%d, v%d" % (TT_ + j, X + j, M))
        A("v_mul_f32 v%d, v%d, v%d" % (S0, TT_, TT_))
        A("v_mul_f32 v%d, v%d, v%d" % (S2, TT_ + 1, TT_ + 1))
        for j in range(2, N, 2):
            A("v_fmac_f32 v%d, v%d, v%d" % (S0, TT_ + j, TT_ + j))
            A("v_fmac_f32 v%d, v%d, v%d" % (S2, TT_ + j + 1, TT_ + j + 1))
        A("v_add_f32 v%d, v%d, v%d" % (S0, S0, S2))
        sum32(S0)
        A("v_mul_f32 v%d, s46, v%d" % (S0, S0))
        round_bf16(A, S0, S0)
        A("v_add_f32 v%d, s47, v%d" % (S0, S0))
        round_bf16(A, S0, S0)
        A("v_sqrt_f32 v%d, v%d" % (S0, S0))
        for j in range(N): A("v_sub_f32 v%d, v%d, v%d" % (X + j, X + j, MB))
        round_bf16(A, S0, S0)
        A("v_rcp_f32 v%d, v%d" % (RSV, S0))
        for j in range(9): A("v_cvt_pk_bf16_f32 v%d, v%d, v%d" % (RAW + j, X + 2 * j, X + 2 * j + 1))
        unpack(RAW)
        for j in range(N): A("v_mul_f32 v%d, v%d, v%d" % (X + j, X + j, RSV))
        for j in range(9): A("v_cvt_pk_bf16_f32 v%d, v%d, v%d" % (RAW + j, X + 2 * j, X + 2 * j + 1))
    def ln_compute():
        srd(A, 8, PWS, SZ_HF, WS_HF)
        srd(A, 12, PWS, SZ_ST, WS_ST)
        A("s_mov_b32 s46, 0x%x" % f2u(1.0 / 576))
        A("s_mov_b32 s47, 0x%x" % f2u(1e-5))
        A("s_lshl_b32 s51, s51, 3")
        A("s_waitcnt vmcnt(0)")
        tag_issue(A)
        unpack(RAW)
        layernorm()
        A("s_mov_b32 exec_lo, 1\ns_mov_b32 exec_hi, 1")
        A("buffer_store_dwordx2 v[%d:%d], v198, s[12:15], s51 offen sc1" % (MB, RSV))
        A("s_mov_b64 exec, -1")
        unpack(RAW)
        layernorm()
        for j in range(4):
            A("ds_write_b64 v%d, %s offset:%d" % (LA, v(RAW + 2 * j, 2), j * 256))
        A("ds_write_b32 v195, v%d offset:1024" % (RAW + 8))
        A("s_lshr_b32 s44, s2, 3")
        A("s_mul_i32 s44, s44, 9")
        A("s_add_u32 s44, s44, s%d" % WAVE)
        A("s_lshl_b32 s44, s44, 13")
        A("s_and_b32 s45, s2, 7")
        A("s_lshl_b32 s45, s45, 8")
        A("s_add_u32 s44, s44, s45")
        A("s_waitcnt lgkmcnt(0)")
    def ln_store():
        sk = A.newlabel("lns")
        for k in range(3):
            A("ds_read_b64_tr_b16 %s, v%d offset:%d" % (v(X + 4 * k, 2), LA + 1, k * 512))
            A("ds_read_b64_tr_b16 %s, v%d offset:%d" % (v(X + 4 * k + 2, 2), LA + 1, k * 512 + 4 * RS))
        for k in range(3):
            if k == 2:
                A("s_cmp_lg_u32 s%d, 0" % WAVE)
                A("s_cbranch_scc1 %s" % sk)
            A("s_waitcnt lgkmcnt(%d)" % (4 - 2 * k))
            A("buffer_store_dwordx4 %s, v199, s[8:11], s44 offen sc1" % v(X + 4 * k, 4))
            A("s_add_u32 s44, s44, %d" % (16 * 2048))
        A.label(sk)
        A("s_waitcnt lgkmcnt(0)")
    def pubH():
        sk = A.newlabel("ph")
        A("s_cmp_lg_u32 s%d, 0" % WAVE)
        A("s_cbranch_scc1 %s" % sk)
        A("s_lshl_b32 s52, s2, 3")
        publish(A, 52)
        A("v_mov_b32 v252, 0\nv_mov_b32 v253, 0\nv_mov_b32 v249, %d" % SIG)
        A("ds_write_b128 v249, v[250:253]")
        A("s_waitcnt lgkmcnt(0)")
        A.label(sk)
    A.label("c1_entry")
    ln_load()
    A("s_or_b32 s44, s2, s%d" % WAVE)
    A("s_cbranch_scc1 c1_notag")
    srd(A, 60, PDBG, 256)
    A("s_or_b32 s%d, s%d, 1" % (TAG, TAG))
    A("v_mov_b32 v4, s%d\nv_mov_b32 v5, s%d\nv_mov_b32 v6, 0" % (TAG, TAG + 1))
    A("s_mov_b64 exec, 1")
    A("buffer_store_dwordx2 v[4:5], v6, s[60:63], 0 offen sc1")
    A("s_mov_b64 exec, -1")
    A.label("c1_notag")
    wrwc()
    A("v_and_b32 v3, 15, v2")
    A("v_lshrrev_b32 v4, 4, v2")
    A("v_and_b32 v5, 7, v3")
    A("v_xor_b32 v5, v5, v4")
    A("v_lshlrev_b32 v5, 4, v5")
    A("v_lshl_add_u32 v5, v3, 7, v5")
    A("v_and_b32 v6, 1, v3")
    A("v_lshrrev_b32 v7, 1, v3")
    A("v_and_b32 v8, 6, v7")
    A("v_or_b32 v8, v8, v6")
    A("v_xor_b32 v8, v8, v4")
    A("v_lshlrev_b32 v8, 4, v8")
    A("v_mul_u32_u24 v6, 48, v6")
    A("v_add_u32 v6, v6, v7")
    A("v_lshl_add_u32 v8, v6, 7, v8")
    A("s_lshl_b32 s44, s%d, 13" % WR)
    A("s_mul_i32 s45, s%d, 3072" % WC)
    A("s_add_u32 s45, s45, 16384")
    A("v_add_u32 v200, s44, v5")
    A("v_xor_b32 v201, 64, v200")
    A("v_add_u32 v202, s45, v8")
    A("v_xor_b32 v203, 64, v202")
    A("v_lshlrev_b32 v218, 4, v4")
    A("v_lshl_add_u32 v218, v3, 6, v218")
    CA = 10
    for i in range(4): A("v_add_u32 v%d, s%d, v%d" % (CA + i, RING, 200 + i))
    ACC1 = 32; SETS1 = [80, 108]; RSUM = 136; CSUM = 152; ONES = 20
    A("v_lshlrev_b32 v219, 4, v3")
    for i in range(4): A("v_mov_b32 v%d, 0x3f803f80" % (ONES + i))
    ids23(); lane_c23()
    srd(A, FSRD, PWS, SZ_FL, WS_FL)
    def reads1(st, ks):
        b = SETS1[st]
        P = lambda aa: "ds_read_b128 %s, v%d offset:%d" % (v(b + 4 * aa, 4), CA + ks, aa * 2048)
        Q = lambda xb: "ds_read_b128 %s, v%d offset:%d" % (v(b + 16 + 4 * xb, 4), CA + 2 + ks, xb * 1024)
        return [P(0), Q(0), Q(1), Q(2), P(1), P(2), P(3)]
    def mfmas1(st):
        b = SETS1[st]; m = []
        for aa in range(4):
            for xb in range(3):
                d = v(ACC1 + (aa * 3 + xb) * 4, 4)
                m.append(("%s %s, %s, %s, %s" % (MFMA, d, v(b + 16 + 4 * xb, 4), v(b + 4 * aa, 4), d), max(1 + xb, 3 + aa if aa else 0)))
            if aa < 3:
                d = v(CSUM + 4 * aa, 4)
                m.append(("%s %s, %s, %s, %s" % (MFMA, d, v(b + 16 + 4 * aa, 4), v(ONES, 4), d), 0))
        return m
    def upd1():
        sa = slot_adv(1)
        return [(5, sa[0]), (6, sa[1]), (7, sa[2])] + [(8 + i, "v_add_u32 v%d, s%d, v%d" % (CA + i, RING, 200 + i)) for i in range(4)]
    def only3(fn):
        def f():
            sk = A.newlabel("w3")
            A("s_cmp_lg_u32 s%d, 3" % WAVE)
            A("s_cbranch_scc1 %s" % sk)
            fn()
            A.label(sk)
        return f
    ln_compute()
    stamp(A, cfg, 1)
    A("s_barrier")
    ln_store()
    A("s_barrier")
    stamp(A, cfg, 2)
    def statld():
        srd(A, 12, PWS, SZ_ST, WS_ST)
        A("s_lshl_b32 s44, s%d, 1" % TT)
        A("s_add_u32 s44, s44, s%d" % WR)
        A("s_lshl_b32 s44, s44, 9")
        for ap in range(2):
            A("buffer_load_dwordx4 %s, v219, s[12:15], s44 offen offset:%d sc1" % (v(RSUM + 4 * ap, 4), ap * 256))
        srd(A, 12, PWS, SZ_G, WS_G)
        A("s_mul_i32 s44, s%d, 6" % PT)
        A("s_mul_i32 s45, s%d, 3" % WC)
        A("s_add_u32 s44, s44, s45")
        A("s_lshl_b32 s44, s44, 16")
        A("s_lshl_b32 s45, s%d, 1" % TT)
        A("s_add_u32 s45, s45, s%d" % WR)
        A("s_lshl_b32 s45, s45, 11")
        A("s_add_u32 s46, s44, s45")
        A("s_add_u32 s47, s46, 65536")
        A("s_add_u32 s48, s46, 131072")
        A("s_lshl_b32 s52, s%d, 4" % PT)
        A("s_add_u32 s52, s52, s%d" % TT)
        A("s_lshl_b32 s52, s52, 2")
        A("s_add_u32 s52, s52, s%d" % WAVE)
        A("s_lshl_b32 s52, s52, 3")
        A("s_add_u32 s52, s52, %d" % FL_G)

    ev1 = [("%d" % cfg.e1[0], lambda: (stamp(A, cfg, 8), tag_check(A), stamp(A, cfg, 9))), ("%d" % (cfg.e1[0] - 1), pubH), ("3", only3(lambda: wide_issue(A))), ("2", only3(lambda: (stamp(A, cfg, 11), wide_check(A), stamp(A, cfg, 14)))), ("1", statld)]
    late.append(consumer_phase(A, "c1", reads1, mfmas1, upd1, 9, (0, 4), ev1, 14, 1))
    stamp(A, cfg, 3)
    A("s_barrier")
    MN = 80; RR = 88
    A("s_waitcnt vmcnt(0)")
    for aa in range(4):
        for q in range(2):
            A("v_sub_f32 v%d, 0, v%d" % (MN + 2 * aa + q, RSUM + 2 * aa))
            A("v_mov_b32 v%d, v%d" % (RR + 2 * aa + q, RSUM + 2 * aa + 1))
    for ap in range(2):
        for xb in range(3):
            O = 168 + 4 * (ap * 3 + xb)
            hq = [(h, q) for h in range(2) for q in range(2)]
            D_ = lambda h, q: ACC1 + ((2 * ap + h) * 3 + xb) * 4 + 2 * q
            for h, q in hq: A("v_pk_fma_f32 %s, %s, %s, %s" % (v(D_(h, q), 2), v(MN + 2 * (2 * ap + h), 2), v(CSUM + 4 * xb + 2 * q, 2), v(D_(h, q), 2)))
            for h, q in hq: A("v_pk_mul_f32 %s, %s, %s" % (v(D_(h, q), 2), v(D_(h, q), 2), v(RR + 2 * (2 * ap + h), 2)))
            for h, q in hq: A("v_cvt_pk_bf16_f32 v%d, v%d, v%d" % (O + 2 * h + q, D_(h, q), D_(h, q) + 1))
            A("buffer_store_dwordx4 %s, v218, s[12:15], s%d offen offset:%d sc1" % (v(O, 4), 46 + xb, ap * 1024))
    ACC2 = 32; SETS2 = [80, 108]; BIAS = 20
    A("s_mov_b32 s53, 1")
    A("s_branch c2_main")
    A.label("c2_entry")
    wrwc(); lane_c23()
    A("s_mov_b32 s53, 0")
    A("s_barrier")
    A.label("c2_main")
    for i in range(5): A("v_add_u32 v%d, s%d, v%d" % (CA + i, RING, 204 + i))
    A("s_barrier")
    stamp(A, cfg, 4)
    def reads2(st, ks):
        b = SETS2[st]
        P = lambda aa: ["ds_read_b64_tr_b16 %s, v%d offset:%d" % (v(b + 4 * aa, 2), CA + aa, ks * 8192),
                        "ds_read_b64_tr_b16 %s, v%d offset:%d" % (v(b + 4 * aa + 2, 2), CA + aa, ks * 8192 + 4096)]
        Q = lambda xb: ["ds_read_b128 %s, v%d offset:%d" % (v(b + 16 + 4 * xb, 4), CA + 4, xb * 2048 + ks * 1024)]
        if cfg.ord2 == 2: return P(0) + Q(0) + P(1) + P(2) + P(3) + Q(1) + Q(2)
        return P(0) + Q(0) + Q(1) + Q(2) + P(1) + P(2) + P(3)
    def mfmas2(st):
        b = SETS2[st]; m = []
        if cfg.ord2 == 2:
            order = [(aa if xb % 2 == 0 else 3 - aa, xb) for xb in range(3) for aa in range(4)]
            need = lambda aa, xb: max(2 + 2 * aa if aa else 2, 8 + xb if xb else 0)
        else:
            order = [(aa, xb if (cfg.ord2 == 0 or aa % 2 == 0) else 2 - xb) for aa in range(4) for xb in range(3)]
            need = lambda aa, xb: max(2 + xb, 4 + 2 * aa if aa else 0)
        for aa, xb in order:
            d = v(ACC2 + (aa * 3 + xb) * 4, 4)
            m.append(("%s %s, %s, %s, %s" % (MFMA, d, v(b + 4 * aa, 4), v(b + 16 + 4 * xb, 4), d), need(aa, xb)))
        return m
    def upd2():
        sa = slot_adv(2)
        U = lambda i: "v_add_u32 v%d, s%d, v%d" % (CA + i, RING, 204 + i)
        if cfg.ord2 == 2: return [(0, sa[0]), (1, sa[1]), (2, sa[2]), (4, U(0)), (5, U(1)), (7, U(2)), (9, U(3)), (11, U(4))]
        return [(0, sa[0]), (1, sa[1]), (2, sa[2]), (4, U(0)), (5, U(4)), (7, U(1)), (9, U(2)), (11, U(3))]
    def pubG():
        sk = A.newlabel("pg")
        A("s_cmp_eq_u32 s53, 0")
        A("s_cbranch_scc1 %s" % sk)
        A("s_waitcnt vmcnt(0)")
        publish(A, 52)
        A.label(sk)
    def biasld():
        srd(A, 12, PB1, 9216)
        A("s_lshl_b32 s44, s%d, 8" % FT)
        A("s_lshl_b32 s45, s%d, 7" % WR)
        A("s_add_u32 s44, s44, s45")
        for aa in range(4):
            A("buffer_load_dwordx2 %s, v217, s[12:15], s44 offen offset:%d" % (v(BIAS + 2 * aa, 2), aa * 32))
        A("s_lshr_b32 s43, s%d, 1" % ST)
        A("s_lshl_b32 s43, s43, 9")
        A("s_add_u32 s43, s43, %d" % FL_T)
    BF = 140
    def gelu_setup():
        c1 = -2.0 * math.sqrt(2.0 / math.pi) * math.log2(math.e); c2 = c1 * 0.044715
        for (r, val) in ((28, c1), (136, c2), (138, 1.0)):
            A("v_mov_b32 v%d, 0x%x\nv_mov_b32 v%d, 0x%x" % (r, f2u(val), r + 1, f2u(val)))
        srd(A, 12, PWS, SZ_UF, WS_UF)
        A("s_lshl_b32 s44, s%d, 1" % FT)
        A("s_add_u32 s44, s44, s%d" % WR)
        A("s_lshl_b32 s45, s%d, 1" % DT)
        A("s_add_u32 s45, s45, s%d" % WC)
        A("s_mul_i32 s46, s44, 12")
        A("s_add_u32 s46, s46, s45")
        A("s_mul_i32 s46, s46, %d" % (3 * PAIR))
        A("s_add_u32 s47, s46, 4096")
        A("s_mul_i32 s48, s44, 3641")
        A("s_lshr_b32 s48, s48, 16")
        A("s_mul_i32 s49, s45, 21846")
        A("s_lshr_b32 s49, s49, 16")
        A("s_mul_i32 s50, s48, 18")
        A("s_sub_u32 s50, s44, s50")
        A("s_sub_u32 s50, s50, s49")
        A("s_mul_i32 s50, s50, 3")
        A("s_add_u32 s50, s50, s45")
        A("s_lshl_b32 s50, s50, 3")
        A("s_lshl_b32 s49, s49, 2")
        A("s_add_u32 s49, s49, s48")
        A("s_lshl_b32 s49, s49, 9")
        A("s_add_u32 s52, s50, s49")
        A("s_add_u32 s52, s52, %d" % FL_U)
        A("s_waitcnt vmcnt(0)")
        for k in range(8):
            A("v_lshlrev_b32 v%d, 16, v%d" % (BF + 2 * k, BIAS + k))
            A("v_and_b32 v%d, 0xffff0000, v%d" % (BF + 2 * k + 1, BIAS + k))

    ev2 = [("8", biasld), ("4", lambda: gelu_setup())]
    late.append(consumer_phase(A, "c2", reads2, mfmas2, upd2, 32, (0, 2, 4) if cfg.ord2 == 2 else (0, 3, 6), ev2, 10, 2, first_done=lambda: (pubG(), stamp(A, cfg, 10))))
    stamp(A, cfg, 5)
    A("s_barrier")
    T = 80
    for ap in range(2):
        for xb in range(3):
            prs = [ACC2 + ((ap * 2 + h) * 3 + xb) * 4 + 2 * q for h in range(2) for q in range(2)]
            for i, x in enumerate(prs): A("v_pk_add_f32 %s, %s, %s" % (v(x, 2), v(x, 2), v(BF + ap * 8 + 2 * i, 2)))
            for i, x in enumerate(prs): A("v_pk_mul_f32 %s, %s, %s" % (v(T + 2 * i, 2), v(x, 2), v(x, 2)))
            for i, x in enumerate(prs): A("v_pk_fma_f32 %s, %s, v[136:137], v[28:29]" % (v(T + 2 * i, 2), v(T + 2 * i, 2)))
            for i, x in enumerate(prs): A("v_pk_mul_f32 %s, %s, %s" % (v(T + 2 * i, 2), v(T + 2 * i, 2), v(x, 2)))
            for i in range(8): A("v_exp_f32 v%d, v%d" % (T + i, T + i))
            for i, x in enumerate(prs): A("v_pk_add_f32 %s, %s, v[138:139]" % (v(T + 2 * i, 2), v(T + 2 * i, 2)))
            for i in range(8): A("v_rcp_f32 v%d, v%d" % (T + i, T + i))
            for i, x in enumerate(prs): A("v_pk_mul_f32 %s, %s, %s" % (v(T + 2 * i, 2), v(T + 2 * i, 2), v(x, 2)))
            O = 220 + 4 * (ap * 3 + xb)
            for i in range(4):
                A("v_cvt_pk_bf16_f32 v%d, v%d, v%d" % (O + i, T + 2 * i, T + 2 * i + 1))
            off = xb * 2048 + ap * 1024
            A("buffer_store_dwordx4 %s, v216, s[12:15], s%d offen offset:%d sc1" % (v(O, 4), 46 + off // 4096, off % 4096))
    ACC3 = 24; SETS3 = [96, 140]
    A("s_mov_b32 s53, 1")
    A("s_branch c3_main")
    A.label("c3_entry")
    wrwc(); lane_c23()
    A("s_mov_b32 s53, 0")
    A.label("c3_main")
    A("s_barrier")
    A("s_barrier")
    stamp(A, cfg, 6)
    for i in range(4): A("v_add_u32 v%d, s%d, v%d" % (CA + i, RING, 209 + i))
    def reads3(st, ks):
        b = SETS3[st]; r = ["ds_read_b128 %s, v%d offset:0" % (v(b + 8, 4), CA + 2 + ks)]
        for aa in range(2):
            r.append("ds_read_b64_tr_b16 %s, v%d offset:%d" % (v(b + 4 * aa, 2), CA + aa, ks * 8192))
            r.append("ds_read_b64_tr_b16 %s, v%d offset:%d" % (v(b + 4 * aa + 2, 2), CA + aa, ks * 8192 + 4096))
        for xb in range(1, 9):
            if cfg.hack3 and xb % 2: continue
            r.append("ds_read_b128 %s, v%d offset:%d" % (v(b + 8 + 4 * xb, 4), CA + 2 + ks, xb * 2048))
        return r
    def mfmas3(st):
        b = SETS3[st]; m = []
        order = [(xb, aa if (cfg.ord3 == 0 or xb % 2 == 0) else 1 - aa) for xb in range(9) for aa in range(2)]
        for xb, aa in order:
            if True:
                d = v(ACC3 + (xb * 2 + aa) * 4, 4)
                m.append(("%s %s, %s, %s, %s" % (MFMA, d, v(b + 8 + 4 * (xb & ~1 if cfg.hack3 else xb), 4), v(b + 4 * aa, 4), d), max(2 + 2 * aa, (4 + xb // 2 if cfg.hack3 else 4 + xb) if xb else 0)))
        return m
    def upd3():
        sa = slot_adv(3)
        U = lambda i: "v_add_u32 v%d, s%d, v%d" % (CA + i, RING, 209 + i)
        return [(7, sa[0]), (8, sa[1]), (9, sa[2]), (11, U(0)), (13, U(1)), (14, U(2)), (15, U(3))]
    def umode():
        A("v_mov_b32 v211, v213\nv_mov_b32 v212, v214")
        A("v_add_u32 v%d, s%d, v213" % (CA + 2, RING))
        A("v_add_u32 v%d, s%d, v214" % (CA + 3, RING))
    def exsetup():
        srd(A, 12, PWS, SZ_EX, WS_EX)
        A("s_lshl_b32 s44, s%d, 2" % ST)
        A("s_add_u32 s44, s44, s%d" % D3)
        A("s_lshl_b32 s44, s44, 2")
        A("s_add_u32 s44, s44, s%d" % WAVE)
        A("s_lshl_b32 s52, s44, 7")
        A("s_lshl_b32 s45, s%d, 3" % SP)
        A("s_add_u32 s52, s52, s45")
        A("s_add_u32 s52, s52, %d" % FL_X)
        A("s_lshl_b32 s44, s44, 2")
        A("s_add_u32 s44, s44, s%d" % SP)
        A("s_mul_i32 s44, s44, 9216")

    ev3 = [("18", lambda: (umode(), exsetup(), stamp(A, cfg, 13)))]
    late.append(consumer_phase(A, "c3", reads3, mfmas3, upd3, "s%d" % KT3, (0, 6), ev3, 16, 3, first_done=lambda: (pubG(), stamp(A, cfg, 12))))
    stamp(A, cfg, 7)
    A("s_nop 3")
    A("s_cmp_eq_u32 s%d, s%d" % (WAVE, SP))
    A("s_cbranch_scc1 c3_own")
    for xb in range(9):
        o = 96 + 4 * xb
        for k in range(4):
            A("v_cvt_pk_bf16_f32 v%d, v%d, v%d" % (o + k, ACC3 + 8 * xb + 2 * k, ACC3 + 8 * xb + 2 * k + 1))
        A("buffer_store_dwordx4 %s, v216, s[12:15], s44 offen offset:%d sc1" % (v(o, 4), (xb % 4) * 1024))
        if xb % 4 == 3: A("s_add_u32 s44, s44, 4096")
    A("s_waitcnt vmcnt(0)")
    publish(A, 52)
    if cfg.stamp:
        A("s_barrier")
        A("s_branch k_done")
    A("s_endpgm")
    A.label("c3_own")
    A("v_add_u32 v10, %d, v216" % LDS_OWN)
    for t in range(18):
        A("ds_write_b128 v10, %s offset:%d" % (v(ACC3 + 4 * t, 4), t * 1024))
    A("s_waitcnt lgkmcnt(0)")
    A("s_barrier")
    A("s_branch k_done")
    for f in late: f()

    A.label("fin")
    stamp(A, cfg, 7)
    A("v_lshlrev_b32 v9, 4, v2")
    A("s_lshl_b32 s44, s%d, 2" % ST)
    A("s_add_u32 s44, s44, s%d" % D3)
    A("s_lshl_b32 s44, s44, 2")
    A("s_add_u32 s44, s44, s%d" % SP)
    A("s_lshl_b32 s43, s44, 7")
    A("s_add_u32 s43, s43, %d" % FL_X)
    A("s_mul_i32 s47, s44, %d" % (4 * 9216))
    A("s_lshl_b32 s46, s%d, 10" % LW)
    A("s_add_u32 s47, s47, s46")
    for j in range(3):
        A("s_add_u32 s48, s%d, %d" % (SP, 1 + j))
        A("s_and_b32 s48, s48, 3")
        A("s_mul_i32 s48, s48, 9216")
        A("s_add_u32 s%d, s47, s48" % (40 + j))
    A("v_add_u32 v15, 4096, v9")
    A("v_add_u32 v18, 8192, v9")
    A("s_lshl_b32 s46, s%d, 11" % LW)
    A("s_add_u32 s46, s46, %d" % LDS_OWN)
    A("v_add_u32 v10, s46, v9")
    A("s_lshl_b32 s52, 1, s%d" % SP)
    A("s_xor_b32 s52, s52, 15")
    A("s_mov_b32 s53, 0")
    srd(A, 12, PWS, SZ_EX, WS_EX)
    srd(A, 8, POUT, 2048 * 576 * 4)
    A("s_barrier")
    stamp(A, cfg, 8)
    gate_issue(A, 43)
    for n in range(3):
        for aa in range(2):
            A("ds_read_b128 %s, v10 offset:%d" % (v(OWN + 8 * n + 4 * aa, 4), n * 8192 + aa * 1024))
    A("s_waitcnt lgkmcnt(0)")
    for k in range(12):
        A("v_pk_add_f32 %s, %s, %s" % (v(BASE + 2 * k, 2), v(BASE + 2 * k, 2), v(OWN + 2 * k, 2)))
    gate_check(A, 43, "s[52:53]")
    stamp(A, cfg, 9)
    def ld(n):
        for j in range(3):
            A("buffer_load_dwordx4 %s, v%d, s[12:15], s%d offen sc1" % (v(PR + (n * 3 + j) * 4, 4), (9, 15, 18)[n], 40 + j))
    def fin(n):
        b = BASE + 8 * n
        for j in range(3):
            p = PR + (n * 3 + j) * 4
            for k in range(4):
                A("v_lshlrev_b32 v%d, 16, v%d" % (28 + 2 * (k % 2), p + k))
                A("v_and_b32 v%d, 0xffff0000, v%d" % (29 + 2 * (k % 2), p + k))
                A("v_pk_add_f32 %s, %s, %s" % (v(b + 2 * k, 2), v(b + 2 * k, 2), v(28 + 2 * (k % 2), 2)))
    def st(n):
        for aa in range(2):
            A("buffer_store_dwordx4 %s, v47, s[8:11], s%d offen offset:%d" % (v(BASE + 8 * n + 4 * aa, 4), (50, 51)[aa], n * 256))
    A("s_cmp_lg_u32 s%d, 0" % LW)
    A("s_cbranch_scc1 fin_b")
    ld(2); ld(0); ld(1)
    A("s_waitcnt vmcnt(6)"); fin(2)
    A("s_waitcnt vmcnt(3)"); fin(0)
    A("s_waitcnt vmcnt(0)"); st(2); st(0); fin(1); st(1)
    A("s_branch k_done")
    A.label("fin_b")
    ld(0); ld(1)
    A("s_waitcnt vmcnt(3)"); fin(0)
    A("s_waitcnt vmcnt(0)"); st(0); fin(1); st(1)
    A.label("k_done")
    stamp_end(A, cfg)
    A.label("k_end")
    A("s_endpgm")

    A.label("ln_entry")
    KB = 29
    PFI = 23
    A("s_sub_u32 s%d, s%d, 24" % (KB, SLOTR))
    A("s_lshl_b32 s%d, s%d, 3" % (KB, KB))
    A("s_add_u32 s%d, s%d, s%d" % (KB, KB, XCD))
    A("s_cmp_ge_u32 s%d, 4" % WAVE)
    A("s_cbranch_scc1 ln_hi")
    ln_load()
    ids23()
    srd(A, FSRD, PWS, SZ_FL, WS_FL)
    ln_compute()
    stamp(A, cfg, 1)
    A("s_barrier")
    ln_store()
    tag_check(A)
    A("s_barrier")
    pubH()
    stamp(A, cfg, 2)
    A("s_branch ln_join")
    A.label("ln_hi")
    ids23()
    A("v_lshlrev_b32 v120, 7, v2")
    A("s_waitcnt lgkmcnt(0)")
    srd(A, FSRD, PWS, SZ_FL, WS_FL)
    srd(A, 12, PWS, SZ_ST, WS_ST)
    A("s_lshl_b32 s44, s%d, 2" % KB)
    A("s_add_u32 s44, s44, s%d" % WAVE)
    A("s_sub_u32 s44, s44, 4")
    A("s_mov_b32 s4, s%d\ns_mov_b32 s5, s%d\ns_mov_b32 s6, 0\ns_mov_b32 s45, 0" % (PB1, PB1 + 1))
    for (w, ptr, sz) in ((32, PB1, 9216), (33, PB1, 9216), (34, PB2, 4096), (35, PDSK, 1152), (36, PLRE, 1152), (37, PLIM, 1152), (38, PLOGDT, 1152)):
        A("s_cmp_eq_u32 s44, %d" % w)
        A("s_cselect_b32 s4, s%d, s4" % ptr)
        A("s_cselect_b32 s5, s%d, s5" % (ptr + 1))
        A("s_cselect_b32 s6, %d, s6" % sz)
        if w == 33: A("s_cselect_b32 s45, 8192, s45")
    A("s_mov_b32 s7, 0x00020000")
    A("s_cmp_eq_u32 s6, 0")
    A("s_cbranch_scc1 ln_nt")
    A("buffer_load_dword v121, v120, s[4:7], s45 offen")
    A.label("ln_nt")
    if cfg.codepf:
        A("s_cmp_ge_u32 s44, 32")
        A("s_cbranch_scc1 ln_nc")
        A("s_getpc_b64 s[46:47]")
        A.label("ln_pc")
        A("s_sub_u32 s46, s46, ln_pc-%s" % KN)
        A("s_subb_u32 s47, s47, 0")
        A("s_and_b32 s45, s44, 3")
        A("s_lshl_b32 s45, s45, 13")
        A("v_add_u32 v122, s45, v120")
        A("s_mov_b32 s45, text_end-%s" % KN)
        for r in range(2):
            A("v_cmp_gt_u32 vcc, s45, v122")
            A("s_and_saveexec_b64 s[48:49], vcc")
            A("s_cbranch_execz ln_nc2")
            A("global_load_dword v%d, v122, s[46:47]" % (123 + r))
            A("v_add_u32 v122, 32768, v122")
        A.label("ln_nc2")
        A("s_mov_b64 exec, -1")
        A.label("ln_nc")
    srd(A, 4, PW1, SZ_W)
    A("s_lshl_b32 s45, s44, 13")
    for r in range(cfg.lnpf):
        A("buffer_load_dword v121, v120, s[4:7], s45 offen")
        A("s_add_u32 s45, s45, %d" % (256 * 8192))
    A("s_barrier")
    tag_issue(A)
    A("s_barrier")
    tag_check(A)
    A.label("ln_join")
    A("s_cmp_ge_u32 s%d, 27" % SLOTR)
    A("s_cbranch_scc1 scan_entry")
    A("s_cmp_lg_u32 s%d, 0" % WAVE)
    A("s_cbranch_scc1 ln_g")
    A("s_sleep %d" % cfg.bsleep)
    wide_issue(A)
    wide_check(A)
    A.label("ln_g")
    A("s_waitcnt vmcnt(0)")
    A("s_barrier")
    stamp(A, cfg, 3)
    A("s_cmp_lt_u32 s%d, 4" % WAVE)
    A("s_cbranch_scc1 c2_entry")
    A("s_branch l2_entry")

    A.label("scan_entry")
    CB = 29
    A("s_sub_u32 s%d, s%d, 24" % (CB, KB))
    A("v_lshlrev_b32 v56, 7, v2")
    A("s_lshl_b32 s%d, s%d, 3" % (PFI, CB))
    A("s_add_u32 s%d, s%d, s%d" % (PFI, PFI, WAVE))
    A("s_add_u32 s%d, s%d, %d" % (PFI, PFI, 256 * cfg.lnpf))
    def scpf(lo=0):
        pf_decode(A, PFI, 60, 58, 54, lo=lo)
        A("buffer_load_dword v57, v56, s[60:63], s58 offen")
        A("s_add_u32 s%d, s%d, 320" % (PFI, PFI))
    for _ in range(cfg.pf_a): scpf()
    A("s_add_u32 s%d, s%d, %d" % (PFI, PFI, L_C - 320 * cfg.pf_a - 256 * cfg.lnpf))
    for _ in range(cfg.pf_a2): scpf(L_C)
    A("s_cmp_lt_u32 s%d, 36" % CB)
    A("s_cbranch_scc1 scan2")
    for _ in range(sum(cfg.scm) + cfg.pf_b): scpf(L_C)
    A("s_branch scan_done")
    A.label("scan2")
    A("v_and_b32 v3, 7, v0")
    A("v_lshrrev_b32 v4, 3, v0")
    A("v_lshlrev_b32 v5, 10, v4")
    A("v_and_b32 v6, 3, v3")
    A("v_lshl_add_u32 v5, v6, 4, v5")
    A("v_lshrrev_b32 v6, 2, v3")
    A("v_lshl_add_u32 v5, v6, 16, v5")
    A("s_lshl_b32 s40, s%d, 17" % CB)
    A("v_lshlrev_b32 v9, 2, v3")
    A("s_lshl_b32 s41, s%d, 5" % CB)
    for (r, ptr) in ((10, PLRE), (11, PLIM), (12, PLOGDT)):
        srd(A, 4, ptr, 1152)
        A("buffer_load_dword v%d, v9, s[4:7], s41 offen" % r)
    L = [18, 20]; L32 = [22, 24]; L256 = [26, 28]; C2 = [30, 32]
    A("s_mov_b32 s44, 0x%x" % f2u(math.log2(math.e)))
    A("s_mov_b32 s45, 0x%x" % f2u(1.0 / (2 * math.pi)))
    A("s_waitcnt vmcnt(0)")
    def sq(d, s_):
        A("v_mul_f32 v40, v%d, v%d" % (s_ + 1, s_ + 1))
        A("v_mul_f32 v41, v%d, v%d" % (s_, s_ + 1))
        A("v_fma_f32 v%d, v%d, v%d, -v40" % (d, s_, s_))
        A("v_add_f32 v%d, v41, v41" % (d + 1))
    for c in range(2):
        for (d, s_) in ((34, 10), (35, 11), (36, 12)):
            if c == 0: A("v_lshlrev_b32 v%d, 16, v%d" % (d, s_))
            else: A("v_and_b32 v%d, 0xffff0000, v%d" % (d, s_))
        A("v_mul_f32 v36, s44, v36")
        A("v_exp_f32 v36, v36")
        A("s_nop 0")
        round_bf16(A, 36, 36)
        A("v_mul_f32 v37, v36, v34")
        A("v_mul_f32 v38, v36, v35")
        A("v_mul_f32 v37, s44, v37")
        A("v_mul_f32 v38, s45, v38")
        A("v_exp_f32 v37, v37")
        A("v_fract_f32 v38, v38")
        A("v_cos_f32 v39, v38")
        A("v_sin_f32 v38, v38")
        A("s_nop 0")
        A("v_mul_f32 v%d, v37, v39" % L[c])
        A("v_mul_f32 v%d, v37, v38" % (L[c] + 1))
        sq(L32[c], L[c])
        for _ in range(4): sq(L32[c], L32[c])
        sq(L256[c], L32[c])
        for _ in range(2): sq(L256[c], L256[c])
        A("v_add_f32 v37, -1.0, v%d" % L[c])
        A("v_mul_f32 v38, v34, v34")
        A("v_fmac_f32 v38, v35, v35")
        A("v_rcp_f32 v38, v38")
        A("v_mul_f32 v39, v37, v34")
        A("v_fmac_f32 v39, v%d, v35" % (L[c] + 1))
        A("v_mul_f32 v40, v%d, v34" % (L[c] + 1))
        A("v_fma_f32 v40, -v37, v35, v40")
        A("v_add_f32 v38, v38, v38")
        A("v_mul_f32 v%d, v39, v38" % C2[c])
        A("v_mul_f32 v%d, v40, v38" % (C2[c] + 1))
    A("s_mul_i32 s43, s%d, 21846" % CB)
    A("s_lshr_b32 s43, s43, 16")
    A("s_lshl_b32 s43, s43, 9")
    A("s_add_u32 s43, s43, %d" % FL_G)
    A("s_cmp_lg_u32 s%d, 0" % WAVE)
    A("s_cbranch_scc1 scan_g")
    gate_issue(A, 43)
    gate_check(A, 43, (1 << 64) - 1)
    A.label("scan_g")
    A("s_barrier")
    stamp(A, cfg, 3)
    srd(A, 4, PWS, SZ_G, WS_G)
    srd(A, 12, PWS, SZ_HT, WS_HT)
    G0 = 56; RW = 184
    for j in range(16):
        A("buffer_load_dwordx4 %s, v5, s[4:7], s40 offen offset:%d %s" % (v(RW + 4 * j, 4), j * 64, cfg.gl))
    LDS_AGG = 9216; LDS_WAGG = LDS_AGG + 8192
    H = 10; T2 = 34
    def stepf(Lr, src):
        for c in range(2):
            A("v_pk_fma_f32 %s, %s, %s, %s op_sel_hi:[0,1,1]" % (v(T2 + 2 * c, 2), v(Lr[c], 2), v(H + 2 * c, 2), v(src + 2 * c, 2)))
        for c in range(2):
            A("v_pk_fma_f32 %s, %s, %s, %s op_sel:[1,1,0] op_sel_hi:[1,0,1] neg_lo:[1,0,0]" % (v(H + 2 * c, 2), v(Lr[c], 2), v(H + 2 * c, 2), v(T2 + 2 * c, 2)))
    for i in range(4): A("v_mov_b32 v%d, 0" % (H + i))
    for j in range(16):
        A("s_waitcnt vmcnt(%d)" % (15 - j))
        for e in range(2):
            g = G0 + 4 * (2 * j + e)
            for c in range(2):
                A("v_lshlrev_b32 v%d, 16, v%d" % (g + 2 * c, RW + 4 * j + 2 * e + c))
                A("v_and_b32 v%d, 0xffff0000, v%d" % (g + 2 * c + 1, RW + 4 * j + 2 * e + c))
        for e in range(2): stepf(L, G0 + 4 * (2 * j + e))
    A("v_lshlrev_b32 v8, 7, v2")
    def scpf2():
        pf_decode(A, PFI, 60, 58, 54, lo=L_C)
        A("buffer_load_dword v9, v8, s[60:63], s58 offen")
        A("s_add_u32 s%d, s%d, 320" % (PFI, PFI))
    for _ in range(cfg.scm[0] + cfg.scm[1]): scpf2()
    stamp(A, cfg, 4)
    A("v_lshlrev_b32 v15, 4, v3")
    A("v_lshlrev_b32 v17, 4, v0")
    A("ds_write_b128 v17, %s offset:%d" % (v(H, 4), LDS_AGG))
    A("s_lshl_b32 s44, s%d, 10" % WAVE)
    A("v_add_u32 v17, s44, v15")
    A("s_waitcnt lgkmcnt(0)")
    AG = 184; WG_ = 216
    for j in range(8): A("ds_read_b128 %s, v17 offset:%d" % (v(AG + 4 * j, 4), LDS_AGG + j * 128))
    A("s_waitcnt lgkmcnt(7)")
    for i in range(4): A("v_mov_b32 v%d, v%d" % (H + i, AG + i))
    for j in range(1, 8):
        A("s_waitcnt lgkmcnt(%d)" % (7 - j))
        stepf(L32, AG + 4 * j)
    A("s_lshl_b32 s44, s%d, 7" % WAVE)
    A("v_add_u32 v17, s44, v15")
    A("ds_write_b128 v17, %s offset:%d" % (v(H, 4), LDS_WAGG))
    A("s_waitcnt lgkmcnt(0)")
    A("s_barrier")
    for j in range(7): A("ds_read_b128 %s, v15 offset:%d" % (v(WG_ + 4 * j, 4), LDS_WAGG + j * 128))
    for i in range(4): A("v_mov_b32 v%d, 0" % (H + i))
    A("v_lshrrev_b32 v17, 3, v2")
    A("s_waitcnt lgkmcnt(0)")
    for j in range(7):
        A("s_cmp_le_u32 s%d, %d" % (WAVE, j))
        A("s_cbranch_scc1 scan_w")
        stepf(L256, WG_ + 4 * j)
    A.label("scan_w")
    for j in range(7):
        A("v_cmpx_lt_u32 vcc, %d, v17" % j)
        stepf(L32, AG + 4 * j)
    A("s_mov_b64 exec, -1")
    A("s_barrier")
    stamp(A, cfg, 10)
    for _ in range(cfg.scm[2]): scpf2()
    A("s_mul_i32 s44, s%d, %d" % (WAVE, 32 * 528))
    A("v_mul_u32_u24 v48, 528, v3")
    A("v_lshl_add_u32 v48, v17, 6, v48")
    A("v_add_u32 v48, s44, v48")
    A("v_lshrrev_b32 v49, 5, v2")
    A("v_and_b32 v50, 31, v2")
    A("v_lshlrev_b32 v50, 4, v50")
    A("v_mul_u32_u24 v51, 528, v49")
    A("v_add3_u32 v51, v51, v50, s44")
    A("v_lshl_add_u32 v50, v49, 13, v50")
    A("s_lshr_b32 s45, s%d, 1" % CB)
    A("s_lshl_b32 s45, s45, 5")
    A("s_and_b32 s46, s%d, 1" % CB)
    A("s_lshl_b32 s46, s46, 3")
    A("s_add_u32 s45, s45, s46")
    A("s_lshl_b32 s45, s45, 12")
    A("s_lshl_b32 s46, s%d, 9" % WAVE)
    A("s_add_u32 s45, s45, s46")
    PK = 184
    for blk in range(4):
        for k in range(8):
            g = G0 + 4 * (blk * 8 + k)
            stepf(L, g)
            for c in range(2):
                A("v_pk_mul_f32 %s, %s, %s op_sel_hi:[0,1] neg_hi:[1,0]" % (v(g + 2 * c, 2), v(C2[c], 2), v(H + 2 * c, 2)))
            for c in range(2):
                A("v_pk_fma_f32 %s, %s, %s, %s op_sel:[1,1,0] op_sel_hi:[1,0,1] neg_lo:[1,0,0] neg_hi:[1,0,0]" % (v(g + 2 * c, 2), v(C2[c], 2), v(H + 2 * c, 2), v(g + 2 * c, 2)))
        pkb = PK + blk * 16
        for q in range(4):
            for k in range(4):
                g = G0 + 4 * (blk * 8 + 2 * k)
                A("v_cvt_pk_bf16_f32 v%d, v%d, v%d" % (pkb + 4 * q + k, g + q, g + 4 + q))
        for q in range(4):
            A("ds_write_b128 v48, %s offset:%d" % (v(pkb + 4 * q, 4), q * 8 * 528 + blk * 16))
    A("s_waitcnt lgkmcnt(0)")
    stamp(A, cfg, 11)
    for n in range(16):
        A("ds_read_b128 %s, v51 offset:%d" % (v(G0 + 4 * n, 4), n * 2 * 528))
        if n == 7: A("s_waitcnt lgkmcnt(0)")
    for n in range(16):
        q = n >> 2; k = n & 3; c = q >> 1; part = q & 1
        row = 16 * (k & 1) + 4 * (k >> 1) + c + 576 * part
        if n >= 8: A("s_waitcnt lgkmcnt(%d)" % (15 - n))
        A("s_add_u32 s46, s45, %d" % (row * 4096))
        A("buffer_store_dwordx4 %s, v50, s[12:15], s46 offen sc1" % v(G0 + 4 * n, 4))
    A("s_lshl_b32 s52, s%d, 9" % WAVE)
    A("s_lshl_b32 s44, s%d, 3" % CB)
    A("s_add_u32 s52, s52, s44")
    A("s_add_u32 s52, s52, %d" % FL_T)
    A("s_waitcnt vmcnt(0)")
    publish(A, 52)
    stamp(A, cfg, 5)
    A("s_barrier")
    for _ in range(cfg.pf_b): scpf2()
    A.label("scan_done")
    A("s_waitcnt vmcnt(0)")
    A("s_barrier")
    A("s_cmp_lt_u32 s%d, 4" % WAVE)
    A("s_cbranch_scc1 c3_entry")
    A("s_branch l3_entry")
    A.label("text_end")
    A("s_endpgm")

    HEADER = open("cdna_kernels/%s.s.ref" % NAME).read().split("; @launch")[0]
    out = HEADER + "; @launch grid=(256,1,1) block=(512,1,1) lds=163840\n"
    out += '.amdgcn_target "amdgcn-amd-amdhsa--gfx950"\n.text\n' + A.text()
    out += '.section .rodata,"a"\n.p2align 6\n' + kd(KN, 256, 102)
    return out

if __name__ == "__main__":
    kw = {}
    for a_ in sys.argv[2:]:
        k, val = a_.split("=")
        kw[k] = ast.literal_eval(val)
    open(sys.argv[1], "w").write(gen(**kw))
```

```python
import sys, math, ast
from asmlib import *

NAME = "parallel_sum__ssm_conv_s5__mixer_token_mlp__prompt"
PAIR = 2048
WS_HF = 0x0;        SZ_HF = 32 * 36 * PAIR
WS_UF = 0x400000;   SZ_UF = 72 * 36 * PAIR
WS_G = 0xC00000;    SZ_G = 4718592
WS_HT = 0x1400000;  SZ_HT = 4718592
WS_ST = 0x1900000;  SZ_ST = 16384
WS_FL = 0x1910000;  SZ_FL = 65536
WS_EX = 0x2000000;  SZ_EX = 64 * 16 * 9216
WS_STAMP = 0xC000000
SZ_W = 2048 * 9216; SZ_C = 576 * 1152; SZ_X = 2359296
FL_H = 0
FL_G = 2048
FL_U = FL_G + 12 * 512
FL_T = FL_U + 16 * 512
FL_X = FL_T + 8 * 512
assert FL_X + 256 * 128 <= SZ_FL

PX, PLRE, PLIM, PBRE, PBIM, PCRE, PCIM, PLOGDT, PDSK, PBX, PW1, PB1, PW2, PB2, POUT, PDBG, PWS = [64 + 2 * i for i in range(17)]
WAVE, SLOTR, XCD = 20, 21, 22
TAG = 24
RING = 26
CNT = 27
EVT = 28
NS = 4; SLOT = 34816; LDS_OWN = NS * SLOT
MFMA = "v_mfma_f32_16x16x32_bf16"
SPIN = 1 << 14
SIG = 163776
NS2 = 5; SLOT2 = 28672; LDS_LN = NS2 * SLOT2

class Cfg:
    stamp = False
    pf_a = 1
    scm = (0, 0, 0)
    pf_b = 1
    lnpf = 1
    rot1 = 1; rot2 = 1; rot3 = 1
    hl = "sc1"
    codepf = 1
    gl = ""
    pf_a2 = 2
    dbgst = 0
    tlbw = 0
    fast = 0
    hoist = 1
    hack3 = 0
    ord2 = 0
    ord3 = 0
    pair2 = 0
    pair3 = 0
    bsleep = 36
    gsleep = 8
    csleep = 0
    pro = 3
    e1 = (7,)

class G:
    pass

def stamp(A, cfg, idx):
    if cfg.stamp:
        A("s_memrealtime s[98:99]")
        A("s_memtime s[100:101]")
        A("s_waitcnt lgkmcnt(0)")
        A("v_writelane_b32 v255, s98, %d" % idx)
        A("v_writelane_b32 v255, s100, %d" % (idx + 16))

def stamp_end(A, cfg):
    if not cfg.stamp: return
    A("s_waitcnt vmcnt(0)")
    stamp(A, cfg, 15)
    srd(A, 4, PWS, 262144, WS_STAMP)
    A("s_lshl_b32 s30, s2, 3")
    A("s_add_u32 s30, s30, s%d" % WAVE)
    A("s_lshl_b32 s30, s30, 7")
    A("v_lshlrev_b32 v3, 2, v2")
    A("s_mov_b32 exec_lo, -1\ns_mov_b32 exec_hi, 0")
    A("buffer_store_dword v255, v3, s[4:7], s30 offen")
    if cfg.dbgst:
        A("s_cmp_lg_u32 s2, %d" % cfg.dbgst)
        A("s_cbranch_scc1 dbg_skip")
        srd(A, 4, PDBG, 256)
        A("v_readlane_b32 s31, v255, 0")
        A("s_nop 3")
        A("v_subrev_u32 v255, s31, v255")
        A("s_cmp_eq_u32 s%d, 3" % WAVE)
        A("s_cbranch_scc0 dbg_l")
        A("s_mov_b64 exec, 0x3ffc")
        A("buffer_store_dword v255, v3, s[4:7], 0 offen")
        A.label("dbg_l")
        A("s_cmp_eq_u32 s%d, 4" % WAVE)
        A("s_cbranch_scc0 dbg_skip")
        A("s_mov_b64 exec, 0x8000")
        A("buffer_store_dword v255, v3, s[4:7], 0 offen")
        A("s_mov_b64 exec, 0x200")
        A("buffer_store_dword v255, v3, s[4:7], 0 offen offset:20")
        A.label("dbg_skip")

def slot_adv(ph, sreg=RING):
    sl, n = (SLOT, NS) if ph == 3 else (SLOT2, NS2)
    return ["s_add_u32 s%d, s%d, %d" % (sreg, sreg, sl), "s_cmp_eq_u32 s%d, %d" % (sreg, n * sl), "s_cselect_b32 s%d, 0, s%d" % (sreg, sreg)]

def row16_sum(A, r):
    for sh in (8, 4, 2, 1):
        A("s_nop 1")
        A("v_add_f32_dpp v%d, v%d, v%d row_ror:%d row_mask:0xf bank_mask:0xf" % (r, r, r, sh))

def round_bf16(A, dst, src):
    A("v_cvt_pk_bf16_f32 v%d, v%d, v%d" % (dst, src, src))
    A("v_lshlrev_b32 v%d, 16, v%d" % (dst, dst))

L_C = 2304; L_W2 = 2304 + 162; L_END = L_W2 + 72 * 32
def pf_decode(A, idx, d, off, t, lo=0):
    A("s_sub_u32 s%d, s%d, %d" % (off, idx, L_W2))
    A("s_bfe_u32 s%d, s%d, 0x20005" % (t, off))
    A("s_mul_i32 s%d, s%d, %d" % (t, t, 18 * 32))
    A("s_lshr_b32 s%d, s%d, 7" % (t + 1, off))
    A("s_lshl_b32 s%d, s%d, 5" % (t + 1, t + 1))
    A("s_add_u32 s%d, s%d, s%d" % (t, t, t + 1))
    A("s_and_b32 s%d, s%d, 31" % (off, off))
    A("s_add_u32 s%d, s%d, s%d" % (off, off, t))
    A("s_cmp_ge_u32 s%d, %d" % (idx, L_END))
    A("s_cselect_b32 s%d, 4096, s%d" % (off, off))
    A("s_mov_b32 s%d, s%d\ns_mov_b32 s%d, s%d\ns_mov_b32 s%d, %d" % (d, PW2, d + 1, PW2 + 1, d + 2, SZ_W))
    for (hi, sub, base, sz) in ((L_W2, L_C + 81, PCIM, SZ_C), (L_C + 81, L_C, PCRE, SZ_C), (L_C, 0, PW1, SZ_W)):
        if hi <= lo: continue
        A("s_sub_u32 s%d, s%d, %d" % (t, idx, sub))
        A("s_cmp_lt_u32 s%d, %d" % (idx, hi))
        A("s_cselect_b32 s%d, s%d, s%d" % (off, t, off))
        A("s_cselect_b32 s%d, s%d, s%d" % (d, base, d))
        A("s_cselect_b32 s%d, s%d, s%d" % (d + 1, base + 1, d + 1))
        A("s_cselect_b32 s%d, %d, s%d" % (d + 2, sz, d + 2))
    A("s_mov_b32 s%d, 0x00020000" % (d + 3))
    A("s_lshl_b32 s%d, s%d, 13" % (off, off))

GSLEEP = [8]
FSRD = 16; VL8 = 248; VT = 250; VP = 252
def tag_issue(A):
    srd(A, 60, PDBG, 256)
    A("v_mov_b32 v249, 0")
    A("buffer_load_dwordx2 v[%d:%d], v249, s[60:63], 0 offen sc1" % (VT, VT + 1))
def tag_check(A):
    lp = A.newlabel("tg"); ok = A.newlabel("tg"); rt = A.newlabel("tg")
    A("s_mov_b32 s59, 0")
    A.label(lp)
    A("s_waitcnt vmcnt(0)")
    A("v_readfirstlane_b32 s58, v%d" % VT)
    A("s_add_u32 s59, s59, 1")
    A("s_cmp_eq_u32 s58, 0")
    A("s_cbranch_scc1 %s" % rt)
    A("s_sub_u32 s58, s%d, s58" % TAG)
    A("s_cmp_lt_i32 s58, 1500")
    A("s_cbranch_scc1 %s" % ok)
    A("s_cmp_gt_u32 s59, 64")
    A("s_cbranch_scc1 %s" % ok)
    A.label(rt)
    A("s_cmp_gt_u32 s59, %d" % SPIN)
    A("s_cbranch_scc1 %s" % ok)
    A("s_sleep 2")
    tag_issue(A)
    A("s_branch %s" % lp)
    A.label(ok)
def publish(A, offreg):
    A("s_mov_b64 exec, 1")
    A("buffer_store_dwordx2 v[%d:%d], v%d, s[%d:%d], s%d offen sc1" % (VT, VT + 1, VL8, FSRD, FSRD + 3, offreg))
    A("s_mov_b64 exec, -1")
def gate_issue(A, offreg):
    A("buffer_load_dwordx2 v[%d:%d], v%d, s[%d:%d], s%d offen sc1" % (VP, VP + 1, VL8, FSRD, FSRD + 3, offreg))
def gate_check(A, offreg, mask, first_wait=0):
    lp = A.newlabel("gt"); ok = A.newlabel("gt")
    A("s_mov_b32 s59, 0")
    if isinstance(mask, int):
        A("s_mov_b32 s56, 0x%x" % (mask & 0xffffffff))
        A("s_mov_b32 s57, 0x%x" % (mask >> 32))
        mask = "s[56:57]"
    A("s_waitcnt vmcnt(%d)" % first_wait)
    A.label(lp)
    A("v_cmp_ne_u64 vcc, v[%d:%d], v[%d:%d]" % (VP, VP + 1, VT, VT + 1))
    A("s_add_u32 s59, s59, 1")
    A("s_and_b64 vcc, vcc, %s" % mask)
    A("s_cbranch_scc0 %s" % ok)
    A("s_cmp_gt_u32 s59, %d" % SPIN)
    A("s_cbranch_scc1 %s" % ok)
    A("s_sleep %d" % GSLEEP[0])
    gate_issue(A, offreg)
    A("s_waitcnt vmcnt(0)")
    A("s_branch %s" % lp)
    A.label(ok)

VW = 240
def wide_issue(A):
    A("v_lshlrev_b32 v249, 4, v2")
    A("buffer_load_dwordx4 v[%d:%d], v249, s[%d:%d], 0 offen sc1" % (VW, VW + 3, FSRD, FSRD + 3))
    A("buffer_load_dwordx4 v[%d:%d], v249, s[%d:%d], 0 offen offset:1024 sc1" % (VW + 4, VW + 7, FSRD, FSRD + 3))
def wide_check(A):
    lp = A.newlabel("gw"); ok = A.newlabel("gw")
    A("s_mov_b32 s59, 0")
    A.label(lp)
    A("s_waitcnt vmcnt(0)")
    A("v_cmp_ne_u64 vcc, v[%d:%d], v[%d:%d]" % (VW, VW + 1, VT, VT + 1))
    for q in range(1, 4):
        A("v_cmp_ne_u64 s[56:57], v[%d:%d], v[%d:%d]" % (VW + 2 * q, VW + 2 * q + 1, VT, VT + 1))
        A("s_or_b64 vcc, vcc, s[56:57]")
    A("s_cbranch_scc0 %s" % ok)
    A("s_add_u32 s59, s59, 1")
    A("s_cmp_gt_u32 s59, %d" % SPIN)
    A("s_cbranch_scc1 %s" % ok)
    A("s_sleep %d" % GSLEEP[0])
    wide_issue(A)
    A("s_branch %s" % lp)
    A.label(ok)

def group(A, ms, rs, nprev, extra=(), pts=None):
    rs = list(rs); issued = 0; waited = -1
    for i, (m, need) in enumerate(ms):
        if pts is not None:
            if i in pts:
                nxt = min([p for p in pts if p > i] + [len(ms)])
                need = max(n for _, n in ms[i:nxt])
            else:
                assert need <= waited
        if need > waited:
            A("s_waitcnt lgkmcnt(%d)" % min(15, nprev - 1 - need + issued))
            waited = need
        A(m)
        if rs:
            A(rs.pop(0)); issued += 1
        for pos, t in extra:
            if pos == i: A(t)
    for r in rs: A(r)

def capture(A, fn):
    mark = len(A.lines); fn()
    body = [l.strip() for l in A.lines[mark:]]; del A.lines[mark:]
    return body

def spread(instrs, n, start=0, per=2):
    out = []
    for k, t in enumerate(instrs):
        out.append((min(n - 1, start + k // per), t))
    return out

class Phase:
    def __init__(self, A, pfx, reads, mfmas, upd, pts, ph):
        self.A, self.pfx, self.reads, self.mfmas, self.upd, self.pts, self.ph = A, pfx, reads, mfmas, upd, pts, ph
        self.n = len(reads(0, 0)); self.nm = len(mfmas(1))
    def first(self, xb=()):
        A = self.A
        for r in self.reads(0, 0): A(r)
        m0 = [(m[:m.rindex(",")] + ", 0", need) for m, need in self.mfmas(0)]
        group(A, m0, self.reads(1, 1), self.n, self.upd(), self.pts)
        group(A, self.mfmas(1), self.reads(0, 0), self.n, xb, self.pts)
    def it(self, pre=None, xb=()):
        A = self.A
        group(A, self.mfmas(0), self.reads(1, 1), self.n, self.upd(), self.pts)
        if pre: pre()
        A("s_barrier")
        group(A, self.mfmas(1), self.reads(0, 0), self.n, xb, self.pts)
    def loop(self, tag, count):
        A = self.A
        if isinstance(count, int): A("s_mov_b32 s%d, %d" % (CNT, count))
        else: A(count)
        A.label(self.pfx + tag)
        self.it(None, [(self.nm - 3, "s_sub_u32 s%d, s%d, 1" % (CNT, CNT)), (self.nm - 2, "s_cmp_lg_u32 s%d, 0" % CNT)])
        A("s_cbranch_scc1 %s%s" % (self.pfx, tag))
    def tail(self, work=()):
        A = self.A
        work = list(work)
        na = self.nm - 3
        group(A, self.mfmas(0), self.reads(1, 1), self.n, list(enumerate(slot_adv(self.ph))) + spread(work[:na], self.nm, 3, 1), self.pts)
        group(A, self.mfmas(1), [], self.n, spread(work[na:], self.nm, 0, 2), self.pts)

def gen(**kw):
    cfg = Cfg()
    for k, val in kw.items():
        assert hasattr(Cfg, k), k
        setattr(cfg, k, val)
    A = Asm()
    HL = cfg.hl
    GSLEEP[0] = cfg.gsleep
    late = []
    KN = NAME + "_kernel"
    A.raw(".globl %s\n.p2align 8\n.type %s,@function" % (KN, KN))
    A.label(KN)
    A("s_cmp_ge_u32 s2, 256")
    A("s_cbranch_scc1 k_end")
    A("s_load_dwordx16 s[64:79], s[0:1], 0")
    A("s_load_dwordx16 s[80:95], s[0:1], 64")
    A("s_load_dwordx2 s[96:97], s[0:1], 128")
    A("s_memrealtime s[%d:%d]" % (TAG, TAG + 1))
    A("v_lshrrev_b32 v1, 6, v0")
    A("v_and_b32 v2, 63, v0")
    A("v_readfirstlane_b32 s%d, v1" % WAVE)
    A("s_and_b32 s%d, s2, 7" % XCD)
    A("s_lshr_b32 s%d, s2, 3" % SLOTR)
    A("s_cmp_ge_u32 s%d, 24" % SLOTR)
    A("s_cselect_b32 s%d, %d, %d" % (RING, 3, 4))
    A("s_cmp_ge_u32 s%d, 27" % SLOTR)
    A("s_cselect_b32 s%d, 0, s%d" % (RING, RING))
    A("s_mul_i32 s%d, s%d, %d" % (RING, RING, SLOT2))
    A("v_lshlrev_b32 v%d, 3, v2" % VL8)
    if cfg.stamp:
        A("v_mov_b32 v255, 0")
        A("s_waitcnt lgkmcnt(0)")
        A("v_writelane_b32 v255, s%d, 0" % TAG)
    TT, PT, FT, DT, SP, ST, D3, KT3, NF, F0 = 30, 31, 32, 33, 34, 35, 36, 37, 38, 39
    A("s_cmp_ge_u32 s%d, 12" % SLOTR)
    A("s_cselect_b32 s%d, 1, 0" % TT)
    A("s_mul_i32 s%d, s%d, 12" % (PT, TT))
    A("s_sub_u32 s%d, s%d, s%d" % (PT, SLOTR, PT))
    A("s_lshl_b32 s3, s%d, 1" % XCD)
    A("s_add_u32 s%d, s%d, s3" % (TT, TT))
    A("s_cmp_ge_u32 s%d, 4" % WAVE)
    A("s_cbranch_scc1 hi_entry")

    def ids23():
        A("s_mul_i32 s3, s%d, 27" % XCD)
        A("s_add_u32 s3, s3, s%d" % SLOTR)
        A("s_mul_i32 s%d, s3, 43691" % FT)
        A("s_lshr_b32 s%d, s%d, 18" % (FT, FT))
        A("s_mul_i32 s%d, s%d, 6" % (DT, FT))
        A("s_sub_u32 s%d, s3, s%d" % (DT, DT))
        A("s_lshr_b32 s%d, s%d, 1" % (SP, XCD))
        A("s_and_b32 s3, s%d, 1" % XCD)
        A("s_lshl_b32 s3, s3, 3")
        A("s_lshr_b32 s%d, s%d, 2" % (ST, SLOTR))
        A("s_add_u32 s%d, s%d, s3" % (ST, ST))
        A("s_and_b32 s%d, s%d, 3" % (D3, SLOTR))
        A("s_cmp_ge_u32 s%d, 2" % SP)
        A("s_cselect_b32 s%d, 4, 5" % NF)
        A("s_add_u32 s%d, s%d, 18" % (KT3, NF))
        A("s_mul_i32 s%d, s%d, 5" % (F0, SP))
        A("s_cmp_eq_u32 s%d, 3" % SP)
        A("s_cselect_b32 s%d, 14, s%d" % (F0, F0))

    WR, WC = 40, 41
    KEY3 = 42
    def lane_c23():
        A("v_lshrrev_b32 v5, 2, v2")
        A("v_and_b32 v6, 7, v5")
        A("v_and_b32 v7, 3, v2")
        A("v_lshlrev_b32 v7, 3, v7")
        A("v_lshl_add_u32 v7, v5, 8, v7")
        A("s_lshl_b32 s44, s%d, 2" % WR)
        for aa in range(4):
            A("s_add_u32 s45, s44, %d" % aa)
            A("v_xor_b32 v8, s45, v6")
            A("v_lshl_add_u32 v%d, v8, 5, v7" % (204 + aa))
        A("s_mul_i32 s45, s%d, 6144" % WC)
        A("s_add_u32 s45, s45, 16384")
        A("v_lshlrev_b32 v216, 4, v2")
        A("v_add_u32 v208, s45, v216")
        A("s_lshl_b32 s44, s%d, 1" % WAVE)
        for aa in range(2):
            A("s_add_u32 s45, s44, %d" % aa)
            A("v_xor_b32 v8, s45, v6")
            A("v_lshl_add_u32 v%d, v8, 5, v7" % (209 + aa))
        A("v_and_b32 v3, 15, v2")
        A("v_lshrrev_b32 v4, 4, v2")
        A("v_and_b32 v5, 7, v3")
        A("v_xor_b32 v5, v5, v4")
        A("v_lshlrev_b32 v5, 4, v5")
        A("v_lshl_add_u32 v5, v3, 7, v5")
        A("v_add_u32 v211, 16384, v5")
        A("v_xor_b32 v212, 64, v211")
        A("v_add_u32 v213, 16384, v216")
        A("v_add_u32 v214, 17408, v216")
        A("v_lshlrev_b32 v217, 3, v4")
    def wrwc():
        A("s_and_b32 s%d, s%d, 1" % (WR, WAVE))
        A("s_lshr_b32 s%d, s%d, 1" % (WC, WAVE))
    RAW = 164; X = 174; TT_ = 220; RS = 1344
    S0, S2, M, MB, RSV = 192, 193, 194, 196, 197
    LA = 238
    def ln_load():
        A("s_lshr_b32 s44, s2, 2")
        A("s_lshl_b32 s44, s44, 5")
        A("s_and_b32 s45, s2, 3")
        A("s_lshl_b32 s45, s45, 2")
        A("s_add_u32 s44, s44, s45")
        A("s_lshr_b32 s45, s%d, 1" % WAVE)
        A("s_lshl_b32 s45, s45, 4")
        A("s_add_u32 s44, s44, s45")
        A("s_and_b32 s45, s%d, 1" % WAVE)
        A("s_lshl_b32 s45, s45, 1")
        A("s_add_u32 s51, s44, s45")
        A("s_mul_i32 s44, s51, 1152")
        A("v_lshrrev_b32 v3, 5, v2")
        A("v_and_b32 v4, 31, v2")
        A("v_mul_u32_u24 v5, 1152, v3")
        A("v_lshl_add_u32 v6, v4, 2, v5")
        A("v_lshl_add_u32 v5, v4, 3, v5")
        A("s_waitcnt lgkmcnt(0)")
        srd(A, 4, PX, SZ_X)
        for j in range(4):
            A("buffer_load_dwordx2 %s, v5, s[4:7], s44 offen offset:%d" % (v(RAW + 2 * j, 2), j * 256))
        A("buffer_load_dword v%d, v6, s[4:7], s44 offen offset:1024" % (RAW + 8))
        A("s_mul_i32 s45, s%d, %d" % (WAVE, 2 * RS))
        A("s_add_u32 s45, s45, %d" % LDS_LN)
        A("v_mul_u32_u24 v%d, %d, v3" % (LA, RS))
        A("v_add_u32 v%d, s45, v%d" % (LA, LA))
        A("v_lshl_add_u32 v195, v4, 2, v%d" % LA)
        A("v_lshl_add_u32 v%d, v4, 3, v%d" % (LA, LA))
        A("v_lshlrev_b32 v198, 3, v3")
        A("v_bfe_u32 v5, v2, 2, 2")
        A("v_mul_u32_u24 v5, %d, v5" % RS)
        A("v_and_b32 v6, 3, v2")
        A("v_lshl_add_u32 v5, v6, 3, v5")
        A("v_lshrrev_b32 v6, 4, v2")
        A("v_lshl_add_u32 v5, v6, 5, v5")
        A("v_add_u32 v%d, %d, v5" % (LA + 1, LDS_LN))
        A("v_and_b32 v5, 15, v2")
        A("v_lshlrev_b32 v5, 4, v5")
        A("v_lshl_add_u32 v199, v6, 11, v5")
    N = 18
    def unpack(src):
        for j in range(9):
            A("v_lshlrev_b32 v%d, 16, v%d" % (X + 2 * j, src + j))
            A("v_and_b32 v%d, 0xffff0000, v%d" % (X + 2 * j + 1, src + j))
    def sum32(r):
        row16_sum(A, r)
        A("v_mov_b32 v%d, v%d" % (S2, r))
        A("s_nop 1")
        A("v_permlane16_swap_b32 v%d, v%d" % (r, S2))
        A("s_nop 1")
        A("v_add_f32 v%d, v%d, v%d" % (r, r, S2))
    def layernorm():
        A("v_add_f32 v%d, v%d, v%d" % (S0, X, X + 1))
        A("v_add_f32 v%d, v%d, v%d" % (S2, X + 2, X + 3))
        for j in range(4, N, 2):
            A("v_add_f32 v%d, v%d, v%d" % (S0, S0, X + j))
            A("v_add_f32 v%d, v%d, v%d" % (S2, S2, X + j + 1))
        A("v_add_f32 v%d, v%d, v%d" % (S0, S0, S2))
        sum32(S0)
        A("v_mul_f32 v%d, s46, v%d" % (M, S0))
        round_bf16(A, MB, M)
        for j in range(N): A("v_sub_f32 v%d, v%d, v%d" % (TT_ + j, X + j, M))
        A("v_mul_f32 v%d, v%d, v%d" % (S0, TT_, TT_))
        A("v_mul_f32 v%d, v%d, v%d" % (S2, TT_ + 1, TT_ + 1))
        for j in range(2, N, 2):
            A("v_fmac_f32 v%d, v%d, v%d" % (S0, TT_ + j, TT_ + j))
            A("v_fmac_f32 v%d, v%d, v%d" % (S2, TT_ + j + 1, TT_ + j + 1))
        A("v_add_f32 v%d, v%d, v%d" % (S0, S0, S2))
        sum32(S0)
        A("v_mul_f32 v%d, s46, v%d" % (S0, S0))
        round_bf16(A, S0, S0)
        A("v_add_f32 v%d, s47, v%d" % (S0, S0))
        round_bf16(A, S0, S0)
        A("v_sqrt_f32 v%d, v%d" % (S0, S0))
        for j in range(N): A("v_sub_f32 v%d, v%d, v%d" % (X + j, X + j, MB))
        round_bf16(A, S0, S0)
        A("v_rcp_f32 v%d, v%d" % (RSV, S0))
        for j in range(9): A("v_cvt_pk_bf16_f32 v%d, v%d, v%d" % (RAW + j, X + 2 * j, X + 2 * j + 1))
        unpack(RAW)
        for j in range(N): A("v_mul_f32 v%d, v%d, v%d" % (X + j, X + j, RSV))
        for j in range(9): A("v_cvt_pk_bf16_f32 v%d, v%d, v%d" % (RAW + j, X + 2 * j, X + 2 * j + 1))
    def ln_compute():
        srd(A, 8, PWS, SZ_HF, WS_HF)
        srd(A, 12, PWS, SZ_ST, WS_ST)
        A("s_mov_b32 s46, 0x%x" % f2u(1.0 / 576))
        A("s_mov_b32 s47, 0x%x" % f2u(1e-5))
        A("s_lshl_b32 s51, s51, 3")
        A("s_lshr_b32 s44, s2, 3")
        A("s_mul_i32 s44, s44, %d" % (36 * 2048))
        A("s_and_b32 s45, s2, 7")
        A("s_lshl_b32 s45, s45, 8")
        A("s_add_u32 s44, s44, s45")
        A("s_mov_b32 s45, 0")
        A("s_waitcnt vmcnt(0)")
        tag_issue(A)
        A.label("ln_loop")
        unpack(RAW)
        layernorm()
        A("s_cmp_lg_u32 s45, 0")
        A("s_cbranch_scc1 ln_out")
        A("s_mov_b32 exec_lo, 1\ns_mov_b32 exec_hi, 1")
        A("buffer_store_dwordx2 v[%d:%d], v198, s[12:15], s51 offen sc1" % (MB, RSV))
        A("s_mov_b64 exec, -1")
        A("s_mov_b32 s45, 1")
        A("s_branch ln_loop")
        A.label("ln_out")
        for j in range(4):
            A("ds_write_b64 v%d, %s offset:%d" % (LA, v(RAW + 2 * j, 2), j * 256))
        A("ds_write_b32 v195, v%d offset:1024" % (RAW + 8))
        tag_check(A)
        A("s_waitcnt lgkmcnt(0)")
    def ln_store():
        sk = A.newlabel("lns")
        A("s_cmp_lg_u32 s%d, 0" % WAVE)
        A("s_cbranch_scc1 %s" % sk)
        HB = 32
        for k in range(9):
            A("ds_read_b64_tr_b16 %s, v%d offset:%d" % (v(HB + 4 * k, 2), LA + 1, k * 128))
            A("ds_read_b64_tr_b16 %s, v%d offset:%d" % (v(HB + 4 * k + 2, 2), LA + 1, k * 128 + 4 * RS))
            if k == 6: A("s_waitcnt lgkmcnt(8)")
        for k in range(9):
            A("s_waitcnt lgkmcnt(%d)" % min(15, 16 - 2 * k))
            A("buffer_store_dwordx4 %s, v199, s[8:11], s44 offen sc1" % v(HB + 4 * k, 4))
            A("s_add_u32 s44, s44, %d" % (4 * 2048))
        A("v_mov_b32 v252, 0\nv_mov_b32 v253, 0\nv_mov_b32 v249, %d" % SIG)
        A("ds_write_b128 v249, v[250:253]")
        A("s_waitcnt lgkmcnt(0)")
        A.label(sk)
    def pubH():
        sk = A.newlabel("ph")
        A("s_cmp_lg_u32 s%d, 0" % WAVE)
        A("s_cbranch_scc1 %s" % sk)
        A("s_lshl_b32 s52, s2, 3")
        A("s_waitcnt vmcnt(0)")
        publish(A, 52)
        stamp(A, cfg, 9)
        A.label(sk)
    A.label("c1_entry")
    ln_load()
    A("s_or_b32 s44, s2, s%d" % WAVE)
    A("s_cbranch_scc1 c1_notag")
    srd(A, 60, PDBG, 256)
    A("s_or_b32 s%d, s%d, 1" % (TAG, TAG))
    A("v_mov_b32 v4, s%d\nv_mov_b32 v5, s%d\nv_mov_b32 v6, 0" % (TAG, TAG + 1))
    A("s_mov_b64 exec, 1")
    A("buffer_store_dwordx2 v[4:5], v6, s[60:63], 0 offen sc1")
    A("s_mov_b64 exec, -1")
    A.label("c1_notag")
    wrwc()
    A("v_and_b32 v3, 15, v2")
    A("v_lshrrev_b32 v4, 4, v2")
    A("v_and_b32 v5, 7, v3")
    A("v_xor_b32 v5, v5, v4")
    A("v_lshlrev_b32 v5, 4, v5")
    A("v_lshl_add_u32 v5, v3, 7, v5")
    A("v_and_b32 v6, 1, v3")
    A("v_lshrrev_b32 v7, 1, v3")
    A("v_and_b32 v8, 6, v7")
    A("v_or_b32 v8, v8, v6")
    A("v_xor_b32 v8, v8, v4")
    A("v_lshlrev_b32 v8, 4, v8")
    A("v_mul_u32_u24 v6, 48, v6")
    A("v_add_u32 v6, v6, v7")
    A("v_lshl_add_u32 v8, v6, 7, v8")
    A("s_lshl_b32 s44, s%d, 13" % WR)
    A("s_mul_i32 s45, s%d, 3072" % WC)
    A("s_add_u32 s45, s45, 16384")
    A("v_add_u32 v200, s44, v5")
    A("v_xor_b32 v201, 64, v200")
    A("v_add_u32 v202, s45, v8")
    A("v_xor_b32 v203, 64, v202")
    A("v_lshlrev_b32 v218, 4, v4")
    A("v_lshl_add_u32 v218, v3, 6, v218")
    CA = 10
    for i in range(4): A("v_add_u32 v%d, s%d, v%d" % (CA + i, RING, 200 + i))
    ACC1 = 32; SETS1 = [80, 108]; RSUM = 136; CSUM = 152; ONES = 20
    A("v_lshlrev_b32 v219, 4, v3")
    for i in range(4): A("v_mov_b32 v%d, 0x3f803f80" % (ONES + i))
    ids23(); lane_c23()
    srd(A, FSRD, PWS, SZ_FL, WS_FL)
    def reads1(st, ks):
        b = SETS1[st]
        P = lambda aa: "ds_read_b128 %s, v%d offset:%d" % (v(b + 4 * aa, 4), CA + ks, aa * 2048)
        Q = lambda xb: "ds_read_b128 %s, v%d offset:%d" % (v(b + 16 + 4 * xb, 4), CA + 2 + ks, xb * 1024)
        return [P(0), Q(0), Q(1), Q(2), P(1), P(2), P(3)]
    def mfmas1(st):
        b = SETS1[st]; m = []
        for aa in range(4):
            for xb in range(3):
                d = v(ACC1 + (aa * 3 + xb) * 4, 4)
                m.append(("%s %s, %s, %s, %s" % (MFMA, d, v(b + 16 + 4 * xb, 4), v(b + 4 * aa, 4), d), max(1 + xb, 3 + aa if aa else 0)))
            if aa < 3:
                d = v(CSUM + 4 * aa, 4)
                m.append(("%s %s, %s, %s, %s" % (MFMA, d, v(b + 16 + 4 * aa, 4), v(ONES, 4), d), 0))
        return m
    def upd1():
        sa = slot_adv(1)
        return [(5, sa[0]), (6, sa[1]), (7, sa[2])] + [(8 + i, "v_add_u32 v%d, s%d, v%d" % (CA + i, RING, 200 + i)) for i in range(4)]
    def only3(fn):
        def f():
            sk = A.newlabel("w3")
            A("s_cmp_lg_u32 s%d, 3" % WAVE)
            A("s_cbranch_scc1 %s" % sk)
            fn()
            A.label(sk)
        return f
    A("s_mul_i32 s44, s%d, 6" % PT)
    A("s_mul_i32 s45, s%d, 3" % WC)
    A("s_add_u32 s44, s44, s45")
    A("s_lshl_b32 s44, s44, 16")
    A("s_lshl_b32 s45, s%d, 1" % TT)
    A("s_add_u32 s45, s45, s%d" % WR)
    A("s_lshl_b32 s49, s45, 9")
    A("s_lshl_b32 s45, s45, 11")
    A("s_add_u32 s42, s44, s45")
    A("s_add_u32 s43, s42, 65536")
    A("s_add_u32 s48, s42, 131072")
    A("s_lshl_b32 s50, s%d, 4" % PT)
    A("s_add_u32 s50, s50, s%d" % TT)
    A("s_lshl_b32 s50, s50, 2")
    A("s_add_u32 s50, s50, s%d" % WAVE)
    A("s_lshl_b32 s50, s50, 3")
    A("s_add_u32 s50, s50, %d" % FL_G)
    ln_compute()
    stamp(A, cfg, 1)
    A("s_barrier")
    ln_store()
    A("s_cmp_ge_u32 s%d, 24" % SLOTR)
    A("s_cbranch_scc1 ln_lo")
    A("s_barrier")
    stamp(A, cfg, 2)
    def statld():
        for ap in range(2):
            A("buffer_load_dwordx4 %s, v219, s[12:15], s49 offen offset:%d sc1" % (v(RSUM + 4 * ap, 4), ap * 256))
    P1 = Phase(A, "c1", reads1, mfmas1, upd1, (0, 4), 1)
    P1.first()
    P1.it(pubH)
    P1.loop("_loop", 3)
    P1.it(only3(lambda: wide_issue(A)))
    P1.it(only3(lambda: (stamp(A, cfg, 11), wide_check(A), stamp(A, cfg, 14))))
    P1.it(statld)
    P1.tail(capture(A, lambda: srd(A, 12, PWS, SZ_G, WS_G)))
    stamp(A, cfg, 3)
    A("s_barrier")
    MN = 80; RR = 88
    A("s_waitcnt vmcnt(0)")
    for aa in range(4):
        for q in range(2):
            A("v_sub_f32 v%d, 0, v%d" % (MN + 2 * aa + q, RSUM + 2 * aa))
            A("v_mov_b32 v%d, v%d" % (RR + 2 * aa + q, RSUM + 2 * aa + 1))
    for ap in range(2):
        for xb in range(3):
            O = 168 + 4 * (ap * 3 + xb)
            hq = [(h, q) for h in range(2) for q in range(2)]
            D_ = lambda h, q: ACC1 + ((2 * ap + h) * 3 + xb) * 4 + 2 * q
            for h, q in hq: A("v_pk_fma_f32 %s, %s, %s, %s" % (v(D_(h, q), 2), v(MN + 2 * (2 * ap + h), 2), v(CSUM + 4 * xb + 2 * q, 2), v(D_(h, q), 2)))
            for h, q in hq: A("v_pk_mul_f32 %s, %s, %s" % (v(D_(h, q), 2), v(D_(h, q), 2), v(RR + 2 * (2 * ap + h), 2)))
            for h, q in hq: A("v_cvt_pk_bf16_f32 v%d, v%d, v%d" % (O + 2 * h + q, D_(h, q), D_(h, q) + 1))
            A("buffer_store_dwordx4 %s, v218, s[12:15], s%d offen offset:%d sc1" % (v(O, 4), (42, 43, 48)[xb], ap * 1024))
    ACC2 = 32; SETS2 = [80, 108]; BIAS = 20
    A("s_mov_b32 s53, 1")
    A("s_mov_b32 s52, s50")
    A("s_branch c2_main")
    A.label("c2_entry")
    A("s_mov_b32 s53, 0")
    A("s_barrier")
    A.label("c2_main")
    for i in range(5): A("v_add_u32 v%d, s%d, v%d" % (CA + i, RING, 204 + i))
    A("s_barrier")
    stamp(A, cfg, 4)
    def reads2(st, ks):
        b = SETS2[st]
        P = lambda aa: ["ds_read_b64_tr_b16 %s, v%d offset:%d" % (v(b + 4 * aa, 2), CA + aa, ks * 8192),
                        "ds_read_b64_tr_b16 %s, v%d offset:%d" % (v(b + 4 * aa + 2, 2), CA + aa, ks * 8192 + 4096)]
        Q = lambda xb: ["ds_read_b128 %s, v%d offset:%d" % (v(b + 16 + 4 * xb, 4), CA + 4, xb * 2048 + ks * 1024)]
        if cfg.ord2 == 2: return P(0) + Q(0) + P(1) + P(2) + P(3) + Q(1) + Q(2)
        return P(0) + Q(0) + Q(1) + Q(2) + P(1) + P(2) + P(3)
    def mfmas2(st):
        b = SETS2[st]; m = []
        if cfg.ord2 == 2:
            order = [(aa if xb % 2 == 0 else 3 - aa, xb) for xb in range(3) for aa in range(4)]
            need = lambda aa, xb: max(2 + 2 * aa if aa else 2, 8 + xb if xb else 0)
        else:
            order = [(aa, xb if (cfg.ord2 == 0 or aa % 2 == 0) else 2 - xb) for aa in range(4) for xb in range(3)]
            need = lambda aa, xb: max(2 + xb, 4 + 2 * aa if aa else 0)
        for aa, xb in order:
            d = v(ACC2 + (aa * 3 + xb) * 4, 4)
            m.append(("%s %s, %s, %s, %s" % (MFMA, d, v(b + 4 * aa, 4), v(b + 16 + 4 * xb, 4), d), need(aa, xb)))
        return m
    def upd2():
        sa = slot_adv(2)
        U = lambda i: "v_add_u32 v%d, s%d, v%d" % (CA + i, RING, 204 + i)
        if cfg.ord2 == 2: return [(0, sa[0]), (1, sa[1]), (2, sa[2]), (4, U(0)), (5, U(1)), (7, U(2)), (9, U(3)), (11, U(4))]
        return [(0, sa[0]), (1, sa[1]), (2, sa[2]), (4, U(0)), (5, U(4)), (7, U(1)), (9, U(2)), (11, U(3))]
    def pubG():
        sk = A.newlabel("pg")
        A("s_cmp_eq_u32 s53, 0")
        A("s_cbranch_scc1 %s" % sk)
        A("s_waitcnt vmcnt(0)")
        publish(A, 52)
        A.label(sk)
    def biasld():
        srd(A, 12, PB1, 9216)
        A("s_lshl_b32 s44, s%d, 8" % FT)
        A("s_lshl_b32 s45, s%d, 7" % WR)
        A("s_add_u32 s44, s44, s45")
        for aa in range(4):
            A("buffer_load_dwordx2 %s, v217, s[12:15], s44 offen offset:%d" % (v(BIAS + 2 * aa, 2), aa * 32))
    BF = 140
    def gelu_setup():
        c1 = -2.0 * math.sqrt(2.0 / math.pi) * math.log2(math.e); c2 = c1 * 0.044715
        for (r, val) in ((28, c1), (136, c2), (138, 1.0)):
            A("v_mov_b32 v%d, 0x%x\nv_mov_b32 v%d, 0x%x" % (r, f2u(val), r + 1, f2u(val)))
        srd(A, 12, PWS, SZ_UF, WS_UF)
        A("s_lshl_b32 s44, s%d, 1" % FT)
        A("s_add_u32 s44, s44, s%d" % WR)
        A("s_lshl_b32 s45, s%d, 1" % DT)
        A("s_add_u32 s45, s45, s%d" % WC)
        A("s_mul_i32 s46, s44, 12")
        A("s_add_u32 s46, s46, s45")
        A("s_mul_i32 s46, s46, %d" % (3 * PAIR))
        A("s_add_u32 s47, s46, 4096")
        A("s_mul_i32 s48, s44, 3641")
        A("s_lshr_b32 s48, s48, 16")
        A("s_mul_i32 s49, s45, 21846")
        A("s_lshr_b32 s49, s49, 16")
        A("s_mul_i32 s50, s48, 18")
        A("s_sub_u32 s50, s44, s50")
        A("s_sub_u32 s50, s50, s49")
        A("s_mul_i32 s50, s50, 3")
        A("s_add_u32 s50, s50, s45")
        A("s_lshl_b32 s50, s50, 3")
        A("s_lshl_b32 s49, s49, 2")
        A("s_add_u32 s49, s49, s48")
        A("s_lshl_b32 s49, s49, 9")
        A("s_add_u32 s52, s50, s49")
        A("s_add_u32 s52, s52, %d" % FL_U)
        A("s_waitcnt vmcnt(0)")
        for k in range(8):
            A("v_lshlrev_b32 v%d, 16, v%d" % (BF + 2 * k, BIAS + k))
            A("v_and_b32 v%d, 0xffff0000, v%d" % (BF + 2 * k + 1, BIAS + k))

    P2 = Phase(A, "c2", reads2, mfmas2, upd2, (0, 2, 4) if cfg.ord2 == 2 else (0, 3, 6), 2)
    P2.first()
    pubG(); stamp(A, cfg, 10)
    biasld()
    P2.loop("_loop", 30)
    P2.tail(capture(A, gelu_setup))
    stamp(A, cfg, 5)
    A("s_barrier")
    T = 80
    for ap in range(2):
        for xb in range(3):
            prs = [ACC2 + ((ap * 2 + h) * 3 + xb) * 4 + 2 * q for h in range(2) for q in range(2)]
            for i, x in enumerate(prs): A("v_pk_add_f32 %s, %s, %s" % (v(x, 2), v(x, 2), v(BF + ap * 8 + 2 * i, 2)))
            for i, x in enumerate(prs): A("v_pk_mul_f32 %s, %s, %s" % (v(T + 2 * i, 2), v(x, 2), v(x, 2)))
            for i, x in enumerate(prs): A("v_pk_fma_f32 %s, %s, v[136:137], v[28:29]" % (v(T + 2 * i, 2), v(T + 2 * i, 2)))
            for i, x in enumerate(prs): A("v_pk_mul_f32 %s, %s, %s" % (v(T + 2 * i, 2), v(T + 2 * i, 2), v(x, 2)))
            for i in range(8): A("v_exp_f32 v%d, v%d" % (T + i, T + i))
            for i, x in enumerate(prs): A("v_pk_add_f32 %s, %s, v[138:139]" % (v(T + 2 * i, 2), v(T + 2 * i, 2)))
            for i in range(8): A("v_rcp_f32 v%d, v%d" % (T + i, T + i))
            for i, x in enumerate(prs): A("v_pk_mul_f32 %s, %s, %s" % (v(T + 2 * i, 2), v(T + 2 * i, 2), v(x, 2)))
            O = 220 + 4 * (ap * 3 + xb)
            for i in range(4):
                A("v_cvt_pk_bf16_f32 v%d, v%d, v%d" % (O + i, T + 2 * i, T + 2 * i + 1))
            off = xb * 2048 + ap * 1024
            A("buffer_store_dwordx4 %s, v216, s[12:15], s%d offen offset:%d sc1" % (v(O, 4), 46 + off // 4096, off % 4096))
    ACC3 = 24; SETS3 = [96, 140]
    A("s_mov_b32 s53, 1")
    A("s_branch c3_main")
    A.label("c3_entry")
    wrwc(); lane_c23()
    A("s_mov_b32 s53, 0")
    A.label("c3_main")
    A("s_barrier")
    A("s_barrier")
    stamp(A, cfg, 6)
    for i in range(4): A("v_add_u32 v%d, s%d, v%d" % (CA + i, RING, 209 + i))
    def reads3(st, ks):
        b = SETS3[st]; r = ["ds_read_b128 %s, v%d offset:0" % (v(b + 8, 4), CA + 2 + ks)]
        for aa in range(2):
            r.append("ds_read_b64_tr_b16 %s, v%d offset:%d" % (v(b + 4 * aa, 2), CA + aa, ks * 8192))
            r.append("ds_read_b64_tr_b16 %s, v%d offset:%d" % (v(b + 4 * aa + 2, 2), CA + aa, ks * 8192 + 4096))
        for xb in range(1, 9):
            if cfg.hack3 and xb % 2: continue
            r.append("ds_read_b128 %s, v%d offset:%d" % (v(b + 8 + 4 * xb, 4), CA + 2 + ks, xb * 2048))
        return r
    def mfmas3(st):
        b = SETS3[st]; m = []
        order = [(xb, aa if (cfg.ord3 == 0 or xb % 2 == 0) else 1 - aa) for xb in range(9) for aa in range(2)]
        for xb, aa in order:
            if True:
                d = v(ACC3 + (xb * 2 + aa) * 4, 4)
                m.append(("%s %s, %s, %s, %s" % (MFMA, d, v(b + 8 + 4 * (xb & ~1 if cfg.hack3 else xb), 4), v(b + 4 * aa, 4), d), max(2 + 2 * aa, (4 + xb // 2 if cfg.hack3 else 4 + xb) if xb else 0)))
        return m
    def upd3():
        sa = slot_adv(3)
        U = lambda i: "v_add_u32 v%d, s%d, v%d" % (CA + i, RING, 209 + i)
        return [(7, sa[0]), (8, sa[1]), (9, sa[2]), (11, U(0)), (13, U(1)), (14, U(2)), (15, U(3))]
    def umode():
        A("v_mov_b32 v211, v213\nv_mov_b32 v212, v214")
        A("v_add_u32 v%d, s%d, v213" % (CA + 2, RING))
        A("v_add_u32 v%d, s%d, v214" % (CA + 3, RING))
    def exsetup():
        srd(A, 12, PWS, SZ_EX, WS_EX)
        A("s_lshl_b32 s44, s%d, 2" % ST)
        A("s_add_u32 s44, s44, s%d" % D3)
        A("s_lshl_b32 s44, s44, 2")
        A("s_add_u32 s44, s44, s%d" % WAVE)
        A("s_lshl_b32 s52, s44, 7")
        A("s_lshl_b32 s45, s%d, 3" % SP)
        A("s_add_u32 s52, s52, s45")
        A("s_add_u32 s52, s52, %d" % FL_X)
        A("s_lshl_b32 s44, s44, 2")
        A("s_add_u32 s44, s44, s%d" % SP)
        A("s_mul_i32 s44, s44, 9216")

    P3 = Phase(A, "c3", reads3, mfmas3, upd3, (0, 6), 3)
    P3.first()
    pubG(); stamp(A, cfg, 12)
    P3.loop("_f", "s_sub_u32 s%d, s%d, 2" % (CNT, NF))
    P3.it(lambda: (umode(), stamp(A, cfg, 13)))
    P3.loop("_u", 17)
    P3.tail(capture(A, exsetup))
    stamp(A, cfg, 7)
    A("s_nop 3")
    A("s_cmp_eq_u32 s%d, s%d" % (WAVE, SP))
    A("s_cbranch_scc1 c3_own")
    for xb in range(9):
        o = 96 + 4 * xb
        for k in range(4):
            A("v_cvt_pk_bf16_f32 v%d, v%d, v%d" % (o + k, ACC3 + 8 * xb + 2 * k, ACC3 + 8 * xb + 2 * k + 1))
        A("buffer_store_dwordx4 %s, v216, s[12:15], s44 offen offset:%d sc1" % (v(o, 4), (xb % 4) * 1024))
        if xb % 4 == 3: A("s_add_u32 s44, s44, 4096")
    A("s_waitcnt vmcnt(0)")
    publish(A, 52)
    if cfg.stamp:
        A("s_barrier")
        A("s_branch k_done")
    A("s_endpgm")
    A.label("c3_own")
    A("v_add_u32 v10, %d, v216" % LDS_OWN)
    for t in range(18):
        A("ds_write_b128 v10, %s offset:%d" % (v(ACC3 + 4 * t, 4), t * 1024))
    A("s_waitcnt lgkmcnt(0)")
    A("s_barrier")
    A("s_branch k_done")

    A.label("hi_entry")
    A("s_cmp_ge_u32 s%d, 24" % SLOTR)
    A("s_cbranch_scc1 ln_hi")
    LW = 23
    M0P, M0Q = 40, 41
    OP, OQ = 42, 43
    A("s_sub_u32 s%d, s%d, 4" % (LW, WAVE))
    A("v_lshrrev_b32 v3, 3, v2")
    A("v_and_b32 v4, 7, v2")
    A("v_xor_b32 v6, v4, v3")
    A("s_movk_i32 s44, 1152")
    A("v_mul_lo_u32 v5, v3, s44")
    A("v_lshlrev_b32 v8, 1, v5")
    A("v_lshl_add_u32 v10, v6, 4, v8")
    A("s_lshr_b32 s44, s%d, 1" % LW)
    A("v_and_b32 v7, 6, v3")
    A("v_or_b32 v7, s44, v7")
    A("v_xor_b32 v7, v4, v7")
    A("v_lshl_add_u32 v14, v7, 4, v5")
    for m in range(1, 4):
        A("v_add_u32 v%d, 0x%x, v10" % (10 + m, (16 * (m & 1) + (m >> 1)) * 1152 - (m & 1) * 1024))
    for m in range(1, 3):
        A("v_add_u32 v%d, 0x%x, v14" % (14 + m, m * (8 * 1152 - 1024)))
    A("s_lshl_b32 s%d, s%d, 7" % (OP, TT))
    A("s_lshl_b32 s45, s%d, 5" % LW)
    A("s_add_u32 s%d, s%d, s45" % (OP, OP))
    A("s_mul_i32 s%d, s%d, 1152" % (OP, OP))
    A("s_mul_i32 s%d, s%d, 48" % (OQ, PT))
    A("s_and_b32 s45, s%d, 1" % LW)
    A("s_mul_i32 s45, s45, 24")
    A("s_add_u32 s%d, s%d, s45" % (OQ, OQ))
    A("s_mul_i32 s%d, s%d, 1152" % (OQ, OQ))
    A("s_lshl_b32 s%d, s%d, 12" % (M0P, LW))
    A("s_mul_i32 s%d, s%d, 3072" % (M0Q, LW))
    A("s_add_u32 s%d, s%d, 16384" % (M0Q, M0Q))
    if cfg.rot1:
        A("s_lshl_b32 s46, s%d, 2" % TT)
        A("s_add_u32 s46, s46, s%d" % PT)
        A("s_mul_i32 s47, s46, 7282")
        A("s_lshr_b32 s47, s47, 16")
        A("s_mul_i32 s47, s47, 9")
        A("s_sub_u32 s46, s46, s47")
        A("s_lshl_b32 s47, s46, 7")
        A("s_add_u32 s%d, s%d, s47" % (OP, OP))
        A("s_add_u32 s%d, s%d, s47" % (OQ, OQ))
    A("s_waitcnt lgkmcnt(0)")
    srd(A, 4, PX, SZ_X)
    A("s_cmp_ge_u32 s%d, 2" % LW)
    A("s_cselect_b32 s8, s%d, s%d" % (PBIM, PBRE))
    A("s_cselect_b32 s9, s%d, s%d" % (PBIM + 1, PBRE + 1))
    A("s_mov_b32 s10, %d" % SZ_C)
    A("s_mov_b32 s11, 0x00020000")
    def issue1():
        A("s_add_u32 m0, s%d, s%d" % (RING, M0P))
        A("s_add_u32 s45, s%d, s%d" % (RING, M0Q))
        for m in range(4):
            if m == 2:
                A("s_add_u32 m0, m0, 2048")
                A("s_nop 0")
            A("buffer_load_dwordx4 v%d, s[4:7], s%d offen offset:%d lds" % (10 + m, OP, (m & 1) * 1024))
        A("s_mov_b32 m0, s45")
        A("s_add_u32 s%d, s%d, 128" % (OP, OP))
        for m in range(3):
            A("buffer_load_dwordx4 v%d, s[8:11], s%d offen offset:%d lds" % (14 + m, OQ, m * 1024))
        A("s_add_u32 s%d, s%d, 128" % (OQ, OQ))
        if cfg.rot1:
            A("s_add_u32 s46, s46, 1")
            A("s_cmp_eq_u32 s46, 9")
            A("s_cselect_b32 s47, 1152, 0")
            A("s_sub_u32 s%d, s%d, s47" % (OP, OP))
            A("s_sub_u32 s%d, s%d, s47" % (OQ, OQ))
        for t in slot_adv(1): A(t)
    def lane23():
        A("v_lshrrev_b32 v3, 4, v2")
        A("v_and_b32 v4, 15, v2")
        A("v_lshlrev_b32 v6, 1, v3")
        A("v_xor_b32 v7, v4, v6")
        A("v_xor_b32 v8, 8, v7")
        for (b, stride) in ((20, 9216), (24, 4096)):
            A("s_movk_i32 s44, %d" % stride)
            A("v_mul_lo_u32 v5, v3, s44")
            A("v_lshl_add_u32 v%d, v7, 4, v5" % b)
            A("v_lshl_add_u32 v%d, v8, 4, v5" % (b + 1))
            D = 4 * stride - 1024
            A("v_add_u32 v%d, 0x%x, v%d" % (b + 2, 2 * D, b))
            A("v_add_u32 v%d, 0x%x, v%d" % (b + 3, 3 * D, b + 1))
            A("v_add_u32 v%d, 0x%x, v%d" % (b + 1, D, b + 1))
        A("v_lshlrev_b32 v28, 4, v2")
        A("v_lshrrev_b32 v3, 3, v2")
        A("v_and_b32 v4, 7, v2")
        A("v_xor_b32 v4, v4, v3")
        A("s_movk_i32 s44, 1152")
        A("v_mul_lo_u32 v5, v3, s44")
        A("v_lshl_add_u32 v30, v4, 4, v5")
        for m in range(1, 4):
            A("v_add_u32 v%d, 0x%x, v30" % (30 + m, m * (8 * 1152 - 1024)))
    B2P, B2Q, N2, M6 = 48, 49, 50, 51
    def setup2():
        A("s_mul_i32 s%d, s%d, %d" % (B2P, LW, 16 * 9216))
        A("s_lshl_b32 s44, s%d, 8" % FT)
        A("s_add_u32 s%d, s%d, s44" % (B2P, B2P))
        A("s_mul_i32 s%d, s%d, 12" % (B2Q, DT))
        A("s_mul_i32 s44, s%d, 3" % LW)
        A("s_add_u32 s%d, s%d, s44" % (B2Q, B2Q))
        A("s_lshl_b32 s%d, s%d, 10" % (B2Q, B2Q))
        A("s_mov_b32 s%d, 0\ns_mov_b32 s%d, 0" % (N2, M6))
    def srd2():
        srd(A, 4, PW1, SZ_W)
        srd(A, 8, PWS, SZ_HF, WS_HF)
    par2 = [0]
    def issue2():
        odd = par2[0] & 1; par2[0] += 1
        if cfg.pair2:
            A("s_add_u32 s44, s%d, 12" % N2)
            A("s_lshl_b32 s45, s%d, 1" % M6)
            if odd: A("s_add_u32 s45, s45, 1")
            A("s_cmp_lt_u32 s44, 32")
            A("s_cselect_b32 s44, s44, s45")
            A("s_cmp_eq_u32 s%d, s%d" % (M6, DT))
            A("s_cselect_b32 s44, s44, s%d" % N2)
        elif cfg.rot2:
            A("s_add_u32 s44, s%d, 6" % N2)
            A("s_cmp_lt_u32 s44, 32")
            A("s_cselect_b32 s44, s44, s%d" % M6)
            A("s_cmp_eq_u32 s%d, s%d" % (M6, DT))
            A("s_cselect_b32 s44, s44, s%d" % N2)
        else:
            A("s_mov_b32 s44, s%d" % N2)
        A("s_mul_i32 s%d, s44, %d" % (OP, 64 * 9216))
        A("s_add_u32 s%d, s%d, s%d" % (OP, OP, B2P))
        A("s_mul_i32 s%d, s44, %d" % (OQ, 36 * PAIR))
        A("s_add_u32 s%d, s%d, s%d" % (OQ, OQ, B2Q))
        def W():
            A("s_add_u32 m0, s%d, s%d" % (RING, M0P))
            A("s_nop 0")
            for m in range(4):
                A("buffer_load_dwordx4 v%d, s[4:7], s%d offen offset:%d lds" % (20 + m, OP, m * 1024))
        def X():
            A("s_add_u32 m0, s%d, s%d" % (RING, M0Q))
            A("s_nop 0")
            for m in range(3):
                A("buffer_load_dwordx4 v28, s[8:11], s%d offen offset:%d %s lds" % (OQ, m * 1024, HL))
        if cfg.pair2 and not odd: X(); W()
        else: W(); X()
        A("s_add_u32 s%d, s%d, 1" % (N2, N2))
        if odd or not cfg.pair2:
            A("s_add_u32 s%d, s%d, 1" % (M6, M6))
            A("s_cmp_eq_u32 s%d, 6" % M6)
            A("s_cselect_b32 s%d, 0, s%d" % (M6, M6))
        for t in slot_adv(2): A(t)
    B3P, B3C, B3U, N3, PH3, M0X, M0Q3 = 52, 53, 54, 55, 46, 47, 29
    def setup3():
        A("s_lshl_b32 s%d, s%d, 16" % (B3P, LW))
        A("s_lshl_b32 s44, s%d, 8" % ST)
        A("s_add_u32 s%d, s%d, s44" % (B3P, B3P))
        A("s_mul_i32 s%d, s%d, %d" % (B3C, D3, 144 * 1152))
        A("s_mul_i32 s%d, s%d, %d" % (B3U, D3, 9 * PAIR))
        A("s_mul_i32 s44, s%d, %d" % (SP, 18 * 36 * PAIR))
        A("s_add_u32 s%d, s%d, s44" % (B3U, B3U))
        A("s_mov_b32 s%d, s%d" % (N3, F0))
        A("s_add_u32 s%d, s%d, s%d" % (PH3, D3, ST))
        A("s_and_b32 s%d, s%d, 3" % (PH3, PH3))
        A("s_lshl_b32 s%d, s%d, 10" % (M0X, LW))
        A("s_add_u32 s%d, s%d, %d" % (M0X, M0X, 32768))
        A("s_add_u32 s%d, s%d, 16384" % (M0Q3, M0P))
    def issue3f(extra):
        srd(A, 4, PWS, SZ_HT, WS_HT)
        A("s_cmp_ge_u32 s%d, 9" % N3)
        A("s_cselect_b32 s8, s%d, s%d" % (PCIM, PCRE))
        A("s_cselect_b32 s9, s%d, s%d" % (PCIM + 1, PCRE + 1))
        A("s_cselect_b32 s44, 9, 0")
        A("s_mov_b32 s10, %d" % SZ_C)
        A("s_mov_b32 s11, 0x00020000")
        A("s_lshl_b32 s%d, s%d, 18" % (OP, N3))
        A("s_add_u32 s%d, s%d, s%d" % (OP, OP, B3P))
        A("s_add_u32 m0, s%d, s%d" % (RING, M0P))
        A("s_sub_u32 s44, s%d, s44" % N3)
        for m in range(4):
            A("buffer_load_dwordx4 v%d, s[4:7], s%d offen offset:%d %s lds" % (24 + m, OP, m * 1024, HL))
        A("s_lshl_b32 s44, s44, 7")
        A("s_add_u32 s44, s44, s%d" % B3C)
        A("s_mul_i32 s%d, s%d, %d" % (OQ, LW, 32 * 1152))
        A("s_add_u32 m0, s%d, s%d" % (RING, M0Q3))
        A("s_add_u32 s%d, s%d, s44" % (OQ, OQ))
        for m in range(4):
            A("buffer_load_dwordx4 v%d, s[8:11], s%d offen offset:%d lds" % (30 + m, OQ, m * 1024))
        if extra:
            A("s_mul_i32 s%d, s%d, %d" % (OQ, LW, 8 * 1152))
            A("s_add_u32 s44, s44, %d" % (128 * 1152))
            A("s_add_u32 m0, s%d, s%d" % (RING, M0X))
            A("s_add_u32 s%d, s%d, s44" % (OQ, OQ))
            A("buffer_load_dwordx4 v30, s[8:11], s%d offen lds" % OQ)
        A("s_add_u32 s%d, s%d, 1" % (N3, N3))
        for t in slot_adv(3): A(t)
    def switch3u():
        srd(A, 4, PW2, SZ_W)
        srd(A, 8, PWS, SZ_UF, WS_UF)
        A("s_mul_i32 s44, s%d, %d" % (SP, 18 * 262144))
        A("s_add_u32 s%d, s%d, s44" % (B3P, B3P))
        A("s_mov_b32 s%d, 0" % N3)
    par3 = [0]
    def issue3u(extra, which="WX"):
        odd = par3[0] & 1; par3[0] += 1
        if cfg.pair3:
            A("s_bfe_u32 s45, s%d, 0x20001" % N3)
            A("s_add_u32 s44, s%d, 8" % N3)
            A("s_and_b32 s%d, s%d, 7" % (OP, N3))
            A("s_cmp_lt_u32 s44, 18")
            A("s_cselect_b32 s44, s44, s%d" % OP)
            A("s_cmp_eq_u32 s45, s%d" % PH3)
            A("s_cselect_b32 s44, s44, s%d" % N3)
        elif cfg.rot3:
            A("s_and_b32 s45, s%d, 3" % N3)
            A("s_add_u32 s44, s%d, 4" % N3)
            A("s_cmp_lt_u32 s44, 18")
            A("s_cselect_b32 s44, s44, s45")
            A("s_cmp_eq_u32 s45, s%d" % PH3)
            A("s_cselect_b32 s44, s44, s%d" % N3)
        else:
            A("s_mov_b32 s44, s%d" % N3)
        A("s_lshl_b32 s%d, s44, 18" % OP)
        A("s_add_u32 s%d, s%d, s%d" % (OP, OP, B3P))
        A("s_mul_i32 s45, s44, %d" % (36 * PAIR))
        A("s_add_u32 s45, s45, s%d" % B3U)
        A("s_add_u32 s%d, s45, s%d" % (OQ, M0P))
        if extra:
            A("s_add_u32 s45, s45, s%d" % M0X)
            A("s_sub_u32 s45, s45, 16384")
        def W():
            A("s_add_u32 m0, s%d, s%d" % (RING, M0P))
            A("s_nop 0")
            for m in range(4):
                A("buffer_load_dwordx4 v%d, s[4:7], s%d offen offset:%d lds" % (24 + m, OP, m * 1024))
        def X():
            A("s_add_u32 m0, s%d, s%d" % (RING, M0Q3))
            A("s_nop 0")
            for m in range(4):
                A("buffer_load_dwordx4 v28, s[8:11], s%d offen offset:%d %s lds" % (OQ, m * 1024, HL))
            if extra:
                A("s_add_u32 m0, s%d, s%d" % (RING, M0X))
                A("s_nop 0")
                A("buffer_load_dwordx4 v28, s[8:11], s45 offen %s lds" % HL)
        if which == "W": W()
        elif which == "X": X()
        elif cfg.pair3 and not odd: X(); W()
        else: W(); X()
        A("s_add_u32 s%d, s%d, 1" % (N3, N3))
        for t in slot_adv(3): A(t)
    def step(wait, issue):
        if issue and cfg.hoist:
            mark = len(A.lines)
            issue()
            body = A.lines[mark:]; del A.lines[mark:]
            k = 0
            while k < len(body) and body[k].strip().startswith("s_") and not body[k].strip().startswith(("s_cbranch", "s_branch")): k += 1
            A.lines += body[:k]
            A("s_waitcnt vmcnt(%d)" % wait)
            A("s_barrier")
            A.lines += body[k:]
            return
        A("s_waitcnt vmcnt(%d)" % wait)
        A("s_barrier")
        if issue: issue()
    def lloop(label, count, wait, issue, unroll=1):
        if isinstance(count, int): A("s_mov_b32 s%d, %d" % (CNT, count))
        else: A(count)
        A.label(label)
        for _ in range(unroll): step(wait, issue)
        A("s_sub_u32 s%d, s%d, 1" % (CNT, CNT))
        A("s_cmp_lg_u32 s%d, 0" % CNT)
        A("s_cbranch_scc1 %s" % label)
    def fast_loop(label, count, wait, sel, ph, vW, nX, strideW, bW, bQ, m0q, extra):
        QA = (OQ, 63); XA = (45, 3); MQ = (56, 57); MX = (58, 59)
        def prep(k):
            sel()
            if strideW == 262144: A("s_lshl_b32 s%d, s44, 18" % OP)
            else: A("s_mul_i32 s%d, s44, %d" % (OP, strideW))
            A("s_add_u32 s%d, s%d, s%d" % (OP, OP, bW))
            A("s_mul_i32 s44, s44, %d" % (36 * PAIR))
            A("s_add_u32 s%d, s44, s%d" % (QA[k], bQ))
            if extra:
                A("s_add_u32 s%d, s44, s%d" % (XA[k], extra))
                A("s_add_u32 s%d, s%d, s%d" % (MX[k], RING, M0X))
            A("s_add_u32 s%d, s%d, s%d" % (MQ[k], RING, m0q))
            A("s_add_u32 s62, s%d, s%d" % (RING, M0P))
            for t in slot_adv(ph): A(t)
        def body(k, last):
            A("s_mov_b32 m0, s62")
            A("s_waitcnt vmcnt(%d)" % wait)
            A("s_barrier")
            for m in range(4):
                A("buffer_load_dwordx4 v%d, s[4:7], s%d offen offset:%d lds" % (vW + m, OP, m * 1024))
            A("s_mov_b32 m0, s%d" % MQ[k])
            if not last: prep(1 - k)
            else: A("s_nop 0")
            if k == 1 and not last:
                A("s_sub_u32 s%d, s%d, 1" % (CNT, CNT))
                A("s_cmp_lg_u32 s%d, 0" % CNT)
            for m in range(nX):
                A("buffer_load_dwordx4 v28, s[8:11], s%d offen offset:%d %s lds" % (QA[k], m * 1024, HL))
            if extra:
                A("s_mov_b32 m0, s%d" % MX[k])
                A("s_nop 0")
                A("buffer_load_dwordx4 v28, s[8:11], s%d offen %s lds" % (XA[k], HL))
        prep(0)
        A("s_mov_b32 s%d, %d" % (CNT, count - 1))
        A.label(label)
        body(0, False); body(1, False)
        A("s_cbranch_scc1 %s" % label)
        body(0, False); body(1, True)
    def sel2():
        A("s_add_u32 s44, s%d, 6" % N2)
        A("s_cmp_lt_u32 s44, 32")
        A("s_cselect_b32 s44, s44, s%d" % M6)
        A("s_cmp_eq_u32 s%d, s%d" % (M6, DT))
        A("s_cselect_b32 s44, s44, s%d" % N2)
        A("s_add_u32 s%d, s%d, 1" % (N2, N2))
        A("s_add_u32 s%d, s%d, 1" % (M6, M6))
        A("s_cmp_eq_u32 s%d, 6" % M6)
        A("s_cselect_b32 s%d, 0, s%d" % (M6, M6))
    def sel3():
        A("s_and_b32 s%d, s%d, 3" % (OP, N3))
        A("s_add_u32 s44, s%d, 4" % N3)
        A("s_cmp_lt_u32 s44, 18")
        A("s_cselect_b32 s44, s44, s%d" % OP)
        A("s_cmp_eq_u32 s%d, s%d" % (OP, PH3))
        A("s_cselect_b32 s44, s44, s%d" % N3)
        A("s_add_u32 s%d, s%d, 1" % (N3, N3))
    issue1(); issue1()
    ids23(); lane23(); setup2()
    if cfg.pro == 5:
        issue1(); issue1(); issue1()
        step(28, None); step(21, None)
    elif cfg.pro == 4:
        issue1(); issue1()
        step(21, issue1); step(21, None)
    else:
        issue1()
        step(14, issue1); step(14, issue1)
    lloop("l1_loop", 4, 14, issue1)
    srd2()
    step(14, None)
    step(7, lambda: (issue2(), issue2()))
    step(14, issue2)
    A("s_branch l2_main")
    A.label("l2_entry")
    A("s_sub_u32 s%d, s%d, 4" % (LW, WAVE))
    A("s_lshl_b32 s%d, s%d, 12" % (M0P, LW))
    A("s_mul_i32 s%d, s%d, 3072" % (M0Q, LW))
    A("s_add_u32 s%d, s%d, 16384" % (M0Q, M0Q))
    lane23(); setup2(); srd2()
    par2[0] = 0
    issue2(); issue2(); issue2()
    A.label("l2_main")
    setup3()
    step(14, issue2)
    if cfg.fast: fast_loop("l2_loop", 13, 14, sel2, 2, 20, 3, 64 * 9216, B2P, B2Q, M0Q, None)
    else: lloop("l2_loop", 13, 14, issue2, 2)
    def lgate_issue(off):
        sk = A.newlabel("lg")
        A("s_cmp_lg_u32 s%d, 0" % LW)
        A("s_cbranch_scc1 %s" % sk)
        gate_issue(A, off)
        A.label(sk)
    def lgate_wait(off, mask, word, younger):
        ot = A.newlabel("lg"); dn = A.newlabel("lg"); lp = A.newlabel("lg")
        A("s_cmp_lg_u32 s%d, 0" % LW)
        A("s_cbranch_scc1 %s" % ot)
        gate_check(A, off, mask, first_wait=younger)
        A("v_mov_b32 v40, 1")
        A("ds_write_b32 v41, v40 offset:%d" % (8 + 4 * word))
        A("s_branch %s" % dn)
        A.label(ot)
        A("s_mov_b32 s59, 0")
        A.label(lp)
        A("ds_read_b32 v40, v41 offset:%d" % (8 + 4 * word))
        A("s_add_u32 s59, s59, 1")
        A("s_waitcnt lgkmcnt(0)")
        A("v_readfirstlane_b32 s58, v40")
        A("s_cmp_gt_u32 s59, %d" % (SPIN * 64))
        A("s_cbranch_scc1 %s" % dn)
        A("s_cmp_eq_u32 s58, 0")
        A("s_cbranch_scc1 %s" % lp)
        A.label(dn)
    XR = 150; DS = 162; STT = 168; B2 = 172; BASE = 48; PR = 80; OWN = 120
    def base_ld():
        A("v_and_b32 v42, 15, v2")
        A("v_lshrrev_b32 v43, 4, v2")
        A("v_mul_u32_u24 v46, 1152, v42")
        A("v_lshl_add_u32 v46, v43, 3, v46")
        A("v_lshlrev_b32 v47, 1, v46")
        A("v_lshlrev_b32 v43, 3, v43")
        A("v_lshlrev_b32 v45, 3, v42")
        A("v_lshlrev_b32 v42, 1, v42")
        A("s_lshl_b32 s44, s%d, 3" % ST)
        A("s_lshl_b32 s45, s%d, 1" % SP)
        A("s_add_u32 s44, s44, s45")
        A("s_mul_i32 s45, s%d, 9" % D3)
        A("s_add_u32 s45, s45, s%d" % LW)
        A("s_lshl_b32 s45, s45, 5")
        A("s_mul_i32 s50, s44, %d" % (16 * 1152))
        A("s_add_u32 s50, s50, s45")
        A("s_add_u32 s51, s50, %d" % (16 * 1152))
        A("s_lshl_b32 s48, s44, 7")
        A("s_lshl_b32 s49, s44, 5")
        srd(A, 12, PWS, SZ_ST, WS_ST)
        for aa in range(2):
            A("buffer_load_dwordx2 %s, v45, s[12:15], s48 offen offset:%d %s" % (v(STT + 2 * aa, 2), aa * 128, HL))
        srd(A, 12, PB2, 4096)
        for aa in range(2):
            A("buffer_load_ushort v%d, v42, s[12:15], s49 offen offset:%d" % (B2 + 2 * aa, aa * 32))
        srd(A, 12, PDSK, 1152)
        for n in range(3):
            A("buffer_load_dwordx2 %s, v43, s[12:15], s45 offen offset:%d" % (v(DS + 2 * n, 2), n * 128))
        srd(A, 12, PX, SZ_X)
        sk = A.newlabel("bl")
        for n in range(3):
            if n == 2:
                A("s_cmp_lg_u32 s%d, 0" % LW)
                A("s_cbranch_scc1 %s" % sk)
            for aa in range(2):
                A("buffer_load_dwordx2 %s, v46, s[12:15], s%d offen offset:%d" % (v(XR + 4 * n + 2 * aa, 2), (50, 51)[aa], n * 128))
        A.label(sk)
        A("s_lshl_b32 s50, s50, 1")
        A("s_lshl_b32 s51, s51, 1")
    def base_calc():
        for aa in range(2): A("v_lshlrev_b32 v%d, 16, v%d" % (B2 + 2 * aa, B2 + 2 * aa))
        for n in range(3):
            dd = 76; xx = 116; tt = 144
            for h in range(2):
                A("v_lshlrev_b32 v%d, 16, v%d" % (dd + 2 * h, DS + 2 * n + h))
                A("v_and_b32 v%d, 0xffff0000, v%d" % (dd + 2 * h + 1, DS + 2 * n + h))
            for aa in range(2):
                b = BASE + 8 * n + 4 * aa
                for h in range(2):
                    A("v_lshlrev_b32 v%d, 16, v%d" % (xx + 2 * h, XR + 4 * n + 2 * aa + h))
                    A("v_and_b32 v%d, 0xffff0000, v%d" % (xx + 2 * h + 1, XR + 4 * n + 2 * aa + h))
                for r in range(4): A("v_mul_f32 v%d, v%d, v%d" % (tt + r, dd + r, STT + 2 * aa + 1))
                for r in range(4): A("v_add_f32 v%d, v%d, v%d" % (b + r, xx + r, B2 + 2 * aa))
                for r in range(4): A("v_sub_f32 v%d, v%d, v%d" % (xx + r, xx + r, STT + 2 * aa))
                for r in range(4): A("v_fmac_f32 v%d, v%d, v%d" % (b + r, xx + r, tt + r))
    GT, GU = 60, 61
    def gates3():
        A("v_mov_b32 v41, %d" % SIG)
        A("ds_read_b64 v[%d:%d], v41" % (VT, VT + 1))
        srd(A, FSRD, PWS, SZ_FL, WS_FL)
        A("s_lshr_b32 s%d, s%d, 1" % (GT, ST))
        A("s_lshl_b32 s%d, s%d, 9" % (GT, GT))
        A("s_add_u32 s%d, s%d, %d" % (GT, GT, FL_T))
        A("s_lshl_b32 s%d, s%d, 2" % (GU, D3))
        A("s_add_u32 s%d, s%d, s%d" % (GU, GU, SP))
        A("s_lshl_b32 s%d, s%d, 9" % (GU, GU))
        A("s_add_u32 s%d, s%d, %d" % (GU, GU, FL_U))
        A("s_waitcnt lgkmcnt(0)")
    gates3()
    step(14, issue2)
    lgate_issue(GT)
    step(14, issue2)
    base_ld()
    step(14 + 11, None)
    A("s_cmp_lg_u32 s%d, 0" % LW)
    A("s_cbranch_scc1 l2_e1")
    A("s_waitcnt vmcnt(%d)" % (7 + 11))
    A("v_cmp_ne_u64 vcc, v[%d:%d], v[%d:%d]" % (VP, VP + 1, VT, VT + 1))
    A("s_and_b32 vcc_hi, vcc_hi, 15")
    A("s_cmp_lg_u64 vcc, 0")
    A("s_cbranch_scc1 l2_e1")
    A("v_mov_b32 v40, 1")
    A("ds_write_b32 v41, v40 offset:8")
    A("s_waitcnt lgkmcnt(0)")
    A.label("l2_e1")
    step(7 + 11, None)
    A("ds_read_b32 v40, v41 offset:8")
    A("s_waitcnt lgkmcnt(0)")
    A("v_readfirstlane_b32 s58, v40")
    A("s_cmp_lg_u32 s58, 0")
    A("s_cbranch_scc1 l3_early")
    step(0, lambda: lgate_issue(GT))
    A("s_barrier")
    A.label("l3_main")
    stamp(A, cfg, 10)
    lgate_wait(GT, (1 << 36) - 1, 0, 0)
    A.label("l3_main2")
    stamp(A, cfg, 11)
    A("s_cmp_ge_u32 s%d, 2" % LW)
    A("s_cbranch_scc1 l3b")
    A("s_branch l3a")
    A.label("l3_early")
    A("s_cmp_ge_u32 s%d, 2" % LW)
    A("s_cbranch_scc1 l3b_early")
    for (sfx, extra, per) in (("a", True, 9), ("b", False, 8)):
        A.label("l3%s_early" % sfx)
        issue3f(extra)
        step(per, lambda: issue3f(extra))
        A("s_barrier")
        A("s_branch l3%s_j" % sfx)
        A.label("l3%s" % sfx)
        issue3f(extra); issue3f(extra)
        A.label("l3%s_j" % sfx)
        issue3f(extra); issue3f(extra)
        A("s_waitcnt vmcnt(%d)" % (4 * per))
        base_calc()
        step(3 * per, None); step(2 * per, None)
        sk = A.newlabel("nf")
        A("s_cmp_eq_u32 s%d, 4" % NF)
        A("s_cbranch_scc1 %s" % sk)
        step(per, lambda: issue3f(extra))
        A.label(sk)
        switch3u()
        A("s_mov_b32 s62, s%d" % RING)
        step(per, lambda: issue3u(extra, "W"))
        step(4, lambda: (lgate_issue(GU), issue3u(extra, "W")))
        stamp(A, cfg, 12)
        lgate_wait(GU, (1 << 54) - 1, 1, 4)
        stamp(A, cfg, 13)
        A("s_mov_b32 s%d, s62" % RING)
        A("s_mov_b32 s%d, 0" % N3)
        issue3u(extra, "X"); issue3u(extra, "X")
        step(per - 4, lambda: issue3u(extra))
        step(per, lambda: issue3u(extra))
        if cfg.fast:
            A("s_add_u32 s60, s%d, s%d" % (B3U, M0P))
            A("s_add_u32 s61, s%d, s%d" % (B3U, M0X))
            A("s_sub_u32 s61, s61, 16384")
            fast_loop("l3%s_u" % sfx, 7, per, sel3, 3, 24, 4, 262144, B3P, 60, M0Q3, 61 if extra else None)
        else: lloop("l3%s_u" % sfx, 7, per, lambda: issue3u(extra), 2)
        step(per, None); step(0, None)
        A("s_branch fin")
    A.label("l3_entry")
    A("s_sub_u32 s%d, s%d, 4" % (LW, WAVE))
    A("s_lshl_b32 s%d, s%d, 12" % (M0P, LW))
    lane23(); setup3(); gates3()
    lgate_issue(GT)
    lgate_wait(GT, (1 << 36) - 1, 0, 0)
    base_ld()
    A("s_branch l3_main2")

    A.label("fin")
    stamp(A, cfg, 7)
    A("v_lshlrev_b32 v9, 4, v2")
    A("s_lshl_b32 s44, s%d, 2" % ST)
    A("s_add_u32 s44, s44, s%d" % D3)
    A("s_lshl_b32 s44, s44, 2")
    A("s_add_u32 s44, s44, s%d" % SP)
    A("s_lshl_b32 s43, s44, 7")
    A("s_add_u32 s43, s43, %d" % FL_X)
    A("s_mul_i32 s47, s44, %d" % (4 * 9216))
    A("s_lshl_b32 s46, s%d, 10" % LW)
    A("s_add_u32 s47, s47, s46")
    for j in range(3):
        A("s_add_u32 s48, s%d, %d" % (SP, 1 + j))
        A("s_and_b32 s48, s48, 3")
        A("s_mul_i32 s48, s48, 9216")
        A("s_add_u32 s%d, s47, s48" % (40 + j))
    A("v_add_u32 v15, 4096, v9")
    A("v_add_u32 v18, 8192, v9")
    A("s_lshl_b32 s46, s%d, 11" % LW)
    A("s_add_u32 s46, s46, %d" % LDS_OWN)
    A("v_add_u32 v10, s46, v9")
    A("s_lshl_b32 s52, 1, s%d" % SP)
    A("s_xor_b32 s52, s52, 15")
    A("s_mov_b32 s53, 0")
    srd(A, 12, PWS, SZ_EX, WS_EX)
    srd(A, 8, POUT, 2048 * 576 * 4)
    A("s_barrier")
    stamp(A, cfg, 8)
    gate_issue(A, 43)
    for n in range(3):
        for aa in range(2):
            A("ds_read_b128 %s, v10 offset:%d" % (v(OWN + 8 * n + 4 * aa, 4), n * 8192 + aa * 1024))
    A("s_waitcnt lgkmcnt(0)")
    for k in range(12):
        A("v_pk_add_f32 %s, %s, %s" % (v(BASE + 2 * k, 2), v(BASE + 2 * k, 2), v(OWN + 2 * k, 2)))
    gate_check(A, 43, "s[52:53]")
    stamp(A, cfg, 9)
    def ld(n):
        for j in range(3):
            A("buffer_load_dwordx4 %s, v%d, s[12:15], s%d offen sc1" % (v(PR + (n * 3 + j) * 4, 4), (9, 15, 18)[n], 40 + j))
    def fin(n):
        b = BASE + 8 * n
        for j in range(3):
            p = PR + (n * 3 + j) * 4
            for k in range(4):
                A("v_lshlrev_b32 v%d, 16, v%d" % (28 + 2 * (k % 2), p + k))
                A("v_and_b32 v%d, 0xffff0000, v%d" % (29 + 2 * (k % 2), p + k))
                A("v_pk_add_f32 %s, %s, %s" % (v(b + 2 * k, 2), v(b + 2 * k, 2), v(28 + 2 * (k % 2), 2)))
    def st(n):
        for aa in range(2):
            A("buffer_store_dwordx4 %s, v47, s[8:11], s%d offen offset:%d" % (v(BASE + 8 * n + 4 * aa, 4), (50, 51)[aa], n * 256))
    A("s_cmp_lg_u32 s%d, 0" % LW)
    A("s_cbranch_scc1 fin_b")
    ld(2); ld(0); ld(1)
    A("s_waitcnt vmcnt(6)"); fin(2)
    A("s_waitcnt vmcnt(3)"); fin(0)
    A("s_waitcnt vmcnt(0)"); st(2); st(0); fin(1); st(1)
    A("s_branch k_done")
    A.label("fin_b")
    ld(0); ld(1)
    A("s_waitcnt vmcnt(3)"); fin(0)
    A("s_waitcnt vmcnt(0)"); st(0); fin(1); st(1)
    A.label("k_done")
    stamp_end(A, cfg)
    A.label("k_end")
    A("s_endpgm")

    KB = 29
    PFI = 23
    def kbcalc():
        A("s_sub_u32 s%d, s%d, 24" % (KB, SLOTR))
        A("s_lshl_b32 s%d, s%d, 3" % (KB, KB))
        A("s_add_u32 s%d, s%d, s%d" % (KB, KB, XCD))
    A.label("ln_lo")
    kbcalc()
    pubH()
    A("s_barrier")
    stamp(A, cfg, 2)
    A("s_branch ln_join")
    A.label("ln_hi")
    kbcalc()
    A("v_mov_b32 v216, 0\nv_mov_b32 v217, 0")
    ids23()
    A("v_lshlrev_b32 v120, 7, v2")
    A("s_waitcnt lgkmcnt(0)")
    srd(A, FSRD, PWS, SZ_FL, WS_FL)
    srd(A, 12, PWS, SZ_ST, WS_ST)
    A("s_lshl_b32 s44, s%d, 2" % KB)
    A("s_add_u32 s44, s44, s%d" % WAVE)
    A("s_sub_u32 s44, s44, 4")
    A("s_mov_b32 s4, s%d\ns_mov_b32 s5, s%d\ns_mov_b32 s6, 0\ns_mov_b32 s45, 0" % (PB1, PB1 + 1))
    for (w, ptr, sz) in ((32, PB1, 9216), (33, PB1, 9216), (34, PB2, 4096), (35, PDSK, 1152), (36, PLRE, 1152), (37, PLIM, 1152), (38, PLOGDT, 1152)):
        A("s_cmp_eq_u32 s44, %d" % w)
        A("s_cselect_b32 s4, s%d, s4" % ptr)
        A("s_cselect_b32 s5, s%d, s5" % (ptr + 1))
        A("s_cselect_b32 s6, %d, s6" % sz)
        if w == 33: A("s_cselect_b32 s45, 8192, s45")
    A("s_mov_b32 s7, 0x00020000")
    A("s_cmp_eq_u32 s6, 0")
    A("s_cbranch_scc1 ln_nt")
    A("buffer_load_dword v121, v120, s[4:7], s45 offen")
    A.label("ln_nt")
    if cfg.codepf:
        A("s_cmp_ge_u32 s44, 32")
        A("s_cbranch_scc1 ln_nc")
        A("s_getpc_b64 s[46:47]")
        A.label("ln_pc")
        A("s_sub_u32 s46, s46, ln_pc-%s" % KN)
        A("s_subb_u32 s47, s47, 0")
        A("s_and_b32 s45, s44, 3")
        A("s_lshl_b32 s45, s45, 13")
        A("v_add_u32 v122, s45, v120")
        A("s_mov_b32 s45, text_end-%s" % KN)
        for r in range(2):
            A("v_cmp_gt_u32 vcc, s45, v122")
            A("s_and_saveexec_b64 s[48:49], vcc")
            A("s_cbranch_execz ln_nc2")
            A("global_load_dword v%d, v122, s[46:47]" % (123 + r))
            A("v_add_u32 v122, 32768, v122")
        A.label("ln_nc2")
        A("s_mov_b64 exec, -1")
        A.label("ln_nc")
    if cfg.tlbw:
        A("s_cmp_lg_u32 s%d, 27" % SLOTR)
        A("s_cbranch_scc1 ln_ntl")
        A("s_mov_b32 s4, s%d\ns_mov_b32 s5, s%d\ns_mov_b32 s6, %d\ns_mov_b32 s45, 19" % (PW1, PW1 + 1, SZ_W))
        for (w, ptr, sz, sh) in ((5, PW2, SZ_W, 19), (6, PWS, WS_EX + SZ_EX, 20), (7, POUT, 2048 * 576 * 4, 17)):
            A("s_cmp_eq_u32 s%d, %d" % (WAVE, w))
            A("s_cselect_b32 s4, s%d, s4" % ptr)
            A("s_cselect_b32 s5, s%d, s5" % (ptr + 1))
            A("s_cselect_b32 s6, %d, s6" % sz)
            A("s_cselect_b32 s45, %d, s45" % sh)
        A("s_mov_b32 s7, 0x00020000")
        A("v_lshlrev_b32 v122, s45, v2")
        A("buffer_load_dword v121, v122, s[4:7], 0 offen sc1")
        A("s_cmp_ge_u32 s%d, 6" % WAVE)
        A("s_cselect_b32 s4, s%d, s%d" % (PCIM, PCRE))
        A("s_cselect_b32 s5, s%d, s%d" % (PCIM + 1, PCRE + 1))
        A("s_mov_b32 s6, %d" % SZ_C)
        A("v_lshlrev_b32 v122, 16, v2")
        A("buffer_load_dword v121, v122, s[4:7], 0 offen")
        A.label("ln_ntl")
    srd(A, 4, PW1, SZ_W)
    A("s_sub_u32 s45, s44, 40")
    A("s_cbranch_scc1 ln_nw")
    A("s_lshl_b32 s45, s45, 13")
    for r in range(cfg.lnpf):
        A("buffer_load_dword v121, v120, s[4:7], s45 offen")
        A("s_add_u32 s45, s45, %d" % (216 * 8192))
    A.label("ln_nw")
    A("s_barrier")
    tag_issue(A)
    A("s_barrier")
    tag_check(A)
    A.label("ln_join")
    A("s_cmp_ge_u32 s%d, 27" % SLOTR)
    A("s_cbranch_scc1 scan_entry")
    A("s_cmp_lg_u32 s%d, 0" % WAVE)
    A("s_cbranch_scc1 ln_g")
    A("s_sleep %d" % cfg.bsleep)
    wide_issue(A)
    wide_check(A)
    A.label("ln_g")
    A("s_waitcnt vmcnt(0)")
    A("s_barrier")
    stamp(A, cfg, 3)
    A("s_cmp_lt_u32 s%d, 4" % WAVE)
    A("s_cbranch_scc1 c2_entry")
    A("s_branch l2_entry")

    A.label("scan_entry")
    CB = 29
    A("s_sub_u32 s%d, s%d, 24" % (CB, KB))
    A("v_lshlrev_b32 v56, 7, v2")
    A("s_lshl_b32 s%d, s%d, 3" % (PFI, CB))
    A("s_add_u32 s%d, s%d, s%d" % (PFI, PFI, WAVE))
    A("s_add_u32 s%d, s%d, %d" % (PFI, PFI, 216 * cfg.lnpf))
    def scpf(lo=0):
        pf_decode(A, PFI, 60, 58, 54, lo=lo)
        A("buffer_load_dword v57, v56, s[60:63], s58 offen")
        A("s_add_u32 s%d, s%d, 320" % (PFI, PFI))
    for _ in range(cfg.pf_a): scpf()
    A("s_add_u32 s%d, s%d, %d" % (PFI, PFI, L_C - 320 * cfg.pf_a - 216 * cfg.lnpf))
    for _ in range(cfg.pf_a2): scpf(L_C)
    A("s_cmp_lt_u32 s%d, 36" % CB)
    A("s_cbranch_scc1 scan2")
    for _ in range(sum(cfg.scm) + cfg.pf_b): scpf(L_C)
    A("s_branch scan_done")
    A.label("scan2")
    A("v_and_b32 v3, 7, v0")
    A("v_lshrrev_b32 v4, 3, v0")
    A("v_lshlrev_b32 v5, 10, v4")
    A("v_and_b32 v6, 3, v3")
    A("v_lshl_add_u32 v5, v6, 4, v5")
    A("v_lshrrev_b32 v6, 2, v3")
    A("v_lshl_add_u32 v5, v6, 16, v5")
    A("s_lshl_b32 s40, s%d, 17" % CB)
    A("v_lshlrev_b32 v9, 2, v3")
    A("s_lshl_b32 s41, s%d, 5" % CB)
    for (r, ptr) in ((10, PLRE), (11, PLIM), (12, PLOGDT)):
        srd(A, 4, ptr, 1152)
        A("buffer_load_dword v%d, v9, s[4:7], s41 offen" % r)
    L = [18, 20]; L32 = [22, 24]; L256 = [26, 28]; C2 = [30, 32]
    A("s_mov_b32 s44, 0x%x" % f2u(math.log2(math.e)))
    A("s_mov_b32 s45, 0x%x" % f2u(1.0 / (2 * math.pi)))
    A("s_waitcnt vmcnt(0)")
    def sq(d, s_):
        A("v_mul_f32 v40, v%d, v%d" % (s_ + 1, s_ + 1))
        A("v_mul_f32 v41, v%d, v%d" % (s_, s_ + 1))
        A("v_fma_f32 v%d, v%d, v%d, -v40" % (d, s_, s_))
        A("v_add_f32 v%d, v41, v41" % (d + 1))
    for c in range(2):
        for (d, s_) in ((34, 10), (35, 11), (36, 12)):
            if c == 0: A("v_lshlrev_b32 v%d, 16, v%d" % (d, s_))
            else: A("v_and_b32 v%d, 0xffff0000, v%d" % (d, s_))
        A("v_mul_f32 v36, s44, v36")
        A("v_exp_f32 v36, v36")
        A("s_nop 0")
        round_bf16(A, 36, 36)
        A("v_mul_f32 v37, v36, v34")
        A("v_mul_f32 v38, v36, v35")
        A("v_mul_f32 v37, s44, v37")
        A("v_mul_f32 v38, s45, v38")
        A("v_exp_f32 v37, v37")
        A("v_fract_f32 v38, v38")
        A("v_cos_f32 v39, v38")
        A("v_sin_f32 v38, v38")
        A("s_nop 0")
        A("v_mul_f32 v%d, v37, v39" % L[c])
        A("v_mul_f32 v%d, v37, v38" % (L[c] + 1))
        sq(L32[c], L[c])
        for _ in range(4): sq(L32[c], L32[c])
        sq(L256[c], L32[c])
        for _ in range(2): sq(L256[c], L256[c])
        A("v_add_f32 v37, -1.0, v%d" % L[c])
        A("v_mul_f32 v38, v34, v34")
        A("v_fmac_f32 v38, v35, v35")
        A("v_rcp_f32 v38, v38")
        A("v_mul_f32 v39, v37, v34")
        A("v_fmac_f32 v39, v%d, v35" % (L[c] + 1))
        A("v_mul_f32 v40, v%d, v34" % (L[c] + 1))
        A("v_fma_f32 v40, -v37, v35, v40")
        A("v_add_f32 v38, v38, v38")
        A("v_mul_f32 v%d, v39, v38" % C2[c])
        A("v_mul_f32 v%d, v40, v38" % (C2[c] + 1))
    A("s_mul_i32 s43, s%d, 21846" % CB)
    A("s_lshr_b32 s43, s43, 16")
    A("s_lshl_b32 s43, s43, 9")
    A("s_add_u32 s43, s43, %d" % FL_G)
    A("s_cmp_lg_u32 s%d, 0" % WAVE)
    A("s_cbranch_scc1 scan_g")
    gate_issue(A, 43)
    gate_check(A, 43, (1 << 64) - 1)
    A.label("scan_g")
    A("s_barrier")
    stamp(A, cfg, 3)
    srd(A, 4, PWS, SZ_G, WS_G)
    srd(A, 12, PWS, SZ_HT, WS_HT)
    G0 = 56; RW = 184
    for j in range(16):
        A("buffer_load_dwordx4 %s, v5, s[4:7], s40 offen offset:%d %s" % (v(RW + 4 * j, 4), j * 64, cfg.gl))
    LDS_AGG = 9216; LDS_WAGG = LDS_AGG + 8192
    H = 10; T2 = 34
    def stepf(Lr, src):
        for c in range(2):
            A("v_pk_fma_f32 %s, %s, %s, %s op_sel_hi:[0,1,1]" % (v(T2 + 2 * c, 2), v(Lr[c], 2), v(H + 2 * c, 2), v(src + 2 * c, 2)))
        for c in range(2):
            A("v_pk_fma_f32 %s, %s, %s, %s op_sel:[1,1,0] op_sel_hi:[1,0,1] neg_lo:[1,0,0]" % (v(H + 2 * c, 2), v(Lr[c], 2), v(H + 2 * c, 2), v(T2 + 2 * c, 2)))
    for i in range(4): A("v_mov_b32 v%d, 0" % (H + i))
    for j in range(16):
        A("s_waitcnt vmcnt(%d)" % (15 - j))
        for e in range(2):
            g = G0 + 4 * (2 * j + e)
            for c in range(2):
                A("v_lshlrev_b32 v%d, 16, v%d" % (g + 2 * c, RW + 4 * j + 2 * e + c))
                A("v_and_b32 v%d, 0xffff0000, v%d" % (g + 2 * c + 1, RW + 4 * j + 2 * e + c))
        for e in range(2): stepf(L, G0 + 4 * (2 * j + e))
    A("v_lshlrev_b32 v8, 7, v2")
    def scpf2():
        pf_decode(A, PFI, 60, 58, 54, lo=L_C)
        A("buffer_load_dword v9, v8, s[60:63], s58 offen")
        A("s_add_u32 s%d, s%d, 320" % (PFI, PFI))
    for _ in range(cfg.scm[0] + cfg.scm[1]): scpf2()
    stamp(A, cfg, 4)
    A("v_lshlrev_b32 v15, 4, v3")
    A("v_lshlrev_b32 v17, 4, v0")
    A("ds_write_b128 v17, %s offset:%d" % (v(H, 4), LDS_AGG))
    A("s_lshl_b32 s44, s%d, 10" % WAVE)
    A("v_add_u32 v17, s44, v15")
    A("s_waitcnt lgkmcnt(0)")
    AG = 184; WG_ = 216
    for j in range(8): A("ds_read_b128 %s, v17 offset:%d" % (v(AG + 4 * j, 4), LDS_AGG + j * 128))
    A("s_waitcnt lgkmcnt(7)")
    for i in range(4): A("v_mov_b32 v%d, v%d" % (H + i, AG + i))
    for j in range(1, 8):
        A("s_waitcnt lgkmcnt(%d)" % (7 - j))
        stepf(L32, AG + 4 * j)
    A("s_lshl_b32 s44, s%d, 7" % WAVE)
    A("v_add_u32 v17, s44, v15")
    A("ds_write_b128 v17, %s offset:%d" % (v(H, 4), LDS_WAGG))
    A("s_waitcnt lgkmcnt(0)")
    A("s_barrier")
    for j in range(7): A("ds_read_b128 %s, v15 offset:%d" % (v(WG_ + 4 * j, 4), LDS_WAGG + j * 128))
    for i in range(4): A("v_mov_b32 v%d, 0" % (H + i))
    A("v_lshrrev_b32 v17, 3, v2")
    A("s_waitcnt lgkmcnt(0)")
    for j in range(7):
        A("s_cmp_le_u32 s%d, %d" % (WAVE, j))
        A("s_cbranch_scc1 scan_w")
        stepf(L256, WG_ + 4 * j)
    A.label("scan_w")
    for j in range(7):
        A("v_cmpx_lt_u32 vcc, %d, v17" % j)
        stepf(L32, AG + 4 * j)
    A("s_mov_b64 exec, -1")
    A("s_barrier")
    stamp(A, cfg, 10)
    for _ in range(cfg.scm[2]): scpf2()
    A("s_mul_i32 s44, s%d, %d" % (WAVE, 32 * 528))
    A("v_mul_u32_u24 v48, 528, v3")
    A("v_lshl_add_u32 v48, v17, 6, v48")
    A("v_add_u32 v48, s44, v48")
    A("v_lshrrev_b32 v49, 5, v2")
    A("v_and_b32 v50, 31, v2")
    A("v_lshlrev_b32 v50, 4, v50")
    A("v_mul_u32_u24 v51, 528, v49")
    A("v_add3_u32 v51, v51, v50, s44")
    A("v_lshl_add_u32 v50, v49, 13, v50")
    A("s_lshr_b32 s45, s%d, 1" % CB)
    A("s_lshl_b32 s45, s45, 5")
    A("s_and_b32 s46, s%d, 1" % CB)
    A("s_lshl_b32 s46, s46, 3")
    A("s_add_u32 s45, s45, s46")
    A("s_lshl_b32 s45, s45, 12")
    A("s_lshl_b32 s46, s%d, 9" % WAVE)
    A("s_add_u32 s45, s45, s46")
    PK = 184
    for blk in range(4):
        for k in range(8):
            g = G0 + 4 * (blk * 8 + k)
            stepf(L, g)
            for c in range(2):
                A("v_pk_mul_f32 %s, %s, %s op_sel_hi:[0,1] neg_hi:[1,0]" % (v(g + 2 * c, 2), v(C2[c], 2), v(H + 2 * c, 2)))
            for c in range(2):
                A("v_pk_fma_f32 %s, %s, %s, %s op_sel:[1,1,0] op_sel_hi:[1,0,1] neg_lo:[1,0,0] neg_hi:[1,0,0]" % (v(g + 2 * c, 2), v(C2[c], 2), v(H + 2 * c, 2), v(g + 2 * c, 2)))
        pkb = PK + blk * 16
        for q in range(4):
            for k in range(4):
                g = G0 + 4 * (blk * 8 + 2 * k)
                A("v_cvt_pk_bf16_f32 v%d, v%d, v%d" % (pkb + 4 * q + k, g + q, g + 4 + q))
        for q in range(4):
            A("ds_write_b128 v48, %s offset:%d" % (v(pkb + 4 * q, 4), q * 8 * 528 + blk * 16))
    A("s_waitcnt lgkmcnt(0)")
    stamp(A, cfg, 11)
    for n in range(16):
        A("ds_read_b128 %s, v51 offset:%d" % (v(G0 + 4 * n, 4), n * 2 * 528))
        if n == 7: A("s_waitcnt lgkmcnt(0)")
    for n in range(16):
        q = n >> 2; k = n & 3; c = q >> 1; part = q & 1
        row = 16 * (k & 1) + 4 * (k >> 1) + c + 576 * part
        if n >= 8: A("s_waitcnt lgkmcnt(%d)" % (15 - n))
        A("s_add_u32 s46, s45, %d" % (row * 4096))
        A("buffer_store_dwordx4 %s, v50, s[12:15], s46 offen sc1" % v(G0 + 4 * n, 4))
    A("s_lshl_b32 s52, s%d, 9" % WAVE)
    A("s_lshl_b32 s44, s%d, 3" % CB)
    A("s_add_u32 s52, s52, s44")
    A("s_add_u32 s52, s52, %d" % FL_T)
    A("s_waitcnt vmcnt(0)")
    publish(A, 52)
    stamp(A, cfg, 5)
    A("s_barrier")
    for _ in range(cfg.pf_b): scpf2()
    A.label("scan_done")
    A("s_waitcnt vmcnt(0)")
    A("s_barrier")
    A("s_cmp_lt_u32 s%d, 4" % WAVE)
    A("s_cbranch_scc1 c3_entry")
    A("s_branch l3_entry")
    A.label("text_end")
    A("s_endpgm")

    HEADER = open("cdna_kernels/%s.s.ref" % NAME).read().split("; @launch")[0]
    out = HEADER + "; @launch grid=(256,1,1) block=(512,1,1) lds=163840\n"
    out += '.amdgcn_target "amdgcn-amd-amdhsa--gfx950"\n.text\n' + A.text()
    out += '.section .rodata,"a"\n.p2align 6\n' + kd(KN, 256, 102)
    return out

if __name__ == "__main__":
    kw = {}
    for a_ in sys.argv[2:]:
        k, val = a_.split("=")
        kw[k] = ast.literal_eval(val)
    open(sys.argv[1], "w").write(gen(**kw))
```

```python
import sys, math, ast
from asmlib import *

NAME = "parallel_sum__ssm_conv_s5__mixer_token_mlp__prompt"
PAIR = 2048
SIDE = 0x3000000
WS_HF = 0x0;        SZ_HF = 32 * 36 * PAIR
WS_UF = 0x400000;   SZ_UF = 72 * 36 * PAIR
WS_G = 0xC00000;    SZ_G = 4718592
WS_HT = 0x1400000;  SZ_HT = 4718592
WS_ST = 0x1900000;  SZ_ST = 16384 + 8192
WS_FL = 0x1910000;  SZ_FL = 65536
WS_EX = 0x2000000;  SZ_EX = 64 * 16 * 9216
WS_STAMP = 0xC000000
SZ_W = 2048 * 9216; SZ_C = 576 * 1152; SZ_X = 2359296
FL_H = 0
FL_G = 2048
FL_U = FL_G + 12 * 512
FL_T = FL_U + 16 * 512
FL_X = FL_T + 8 * 512
assert FL_X + 256 * 128 <= SZ_FL

PX, PLRE, PLIM, PBRE, PBIM, PCRE, PCIM, PLOGDT, PDSK, PBX, PW1, PB1, PW2, PB2, POUT, PDBG, PWS = [64 + 2 * i for i in range(17)]
WAVE, SLOTR, XCD = 20, 21, 22
TAG = 24
RING = 26
CNT = 27
EVT = 28
NS = 4; SLOT = 34816; LDS_OWN = NS * SLOT
MFMA = "v_mfma_f32_16x16x32_bf16"
SPIN = 1 << 14
SIG = 163776
NS2 = 5; SLOT2 = 28672; LDS_LN = NS2 * SLOT2

class Cfg:
    stamp = False
    pf_a = 1
    scm = (0, 0, 0)
    pf_b = 1
    lnpf = 1
    rot1 = 1; rot2 = 1; rot3 = 1
    hl = "sc1"
    codepf = 1
    gl = ""
    pf_a2 = 0
    dbgst = 0
    upub = 1
    xpos = 2
    binit = 1
    nt3 = 0
    nt3s = 0
    al = 0
    alp = 0
    csb = 1
    xpoll = 1
    pollat = 29
    adv2 = 4
    gpub = 1
    side = 1
    sto = ""
    tlbw = 0
    fast = 0
    hoist = 1
    hack3 = 0
    ord2 = 0
    ord3 = 0
    pair2 = 0
    pair3 = 0
    bsleep = 10
    gsleep = 4
    csleep = 0
    pro = 3
    e1 = (7,)

class G:
    pass

def stamp(A, cfg, idx):
    if cfg.stamp:
        A("s_memrealtime s[98:99]")
        A("s_memtime s[100:101]")
        A("s_waitcnt lgkmcnt(0)")
        A("v_writelane_b32 v255, s98, %d" % idx)
        A("v_writelane_b32 v255, s100, %d" % (idx + 16))

def stamp_end(A, cfg):
    if not cfg.stamp: return
    A("s_waitcnt vmcnt(0)")
    stamp(A, cfg, 15)
    srd(A, 4, PWS, 262144, WS_STAMP)
    A("s_lshl_b32 s30, s2, 3")
    A("s_add_u32 s30, s30, s%d" % WAVE)
    A("s_lshl_b32 s30, s30, 7")
    A("v_lshlrev_b32 v3, 2, v2")
    A("s_mov_b32 exec_lo, -1\ns_mov_b32 exec_hi, 0")
    A("buffer_store_dword v255, v3, s[4:7], s30 offen")
    if cfg.dbgst:
        A("s_cmp_lg_u32 s2, %d" % cfg.dbgst)
        A("s_cbranch_scc1 dbg_skip")
        srd(A, 4, PDBG, 256)
        A("v_readlane_b32 s31, v255, 0")
        A("s_nop 3")
        A("v_subrev_u32 v255, s31, v255")
        A("s_cmp_eq_u32 s%d, 3" % WAVE)
        A("s_cbranch_scc0 dbg_l")
        A("s_mov_b64 exec, 0x3ffc")
        A("buffer_store_dword v255, v3, s[4:7], 0 offen")
        A.label("dbg_l")
        A("s_cmp_eq_u32 s%d, 4" % WAVE)
        A("s_cbranch_scc0 dbg_skip")
        A("s_mov_b64 exec, 0x8000")
        A("buffer_store_dword v255, v3, s[4:7], 0 offen")
        A("s_mov_b64 exec, 0x200")
        A("buffer_store_dword v255, v3, s[4:7], 0 offen offset:20")
        A.label("dbg_skip")

def slot_adv(ph, sreg=RING):
    sl, n = (SLOT, NS) if ph == 3 else (SLOT2, NS2)
    return ["s_add_u32 s%d, s%d, %d" % (sreg, sreg, sl), "s_cmp_eq_u32 s%d, %d" % (sreg, n * sl), "s_cselect_b32 s%d, 0, s%d" % (sreg, sreg)]

def row16_sum(A, r):
    for sh in (8, 4, 2, 1):
        A("s_nop 1")
        A("v_add_f32_dpp v%d, v%d, v%d row_ror:%d row_mask:0xf bank_mask:0xf" % (r, r, r, sh))

def round_bf16(A, dst, src):
    A("v_cvt_pk_bf16_f32 v%d, v%d, v%d" % (dst, src, src))
    A("v_lshlrev_b32 v%d, 16, v%d" % (dst, dst))

L_C = 2304; L_W2 = 2304 + 162; L_END = L_W2 + 72 * 32
def pf_decode(A, idx, d, off, t, lo=0):
    A("s_sub_u32 s%d, s%d, %d" % (off, idx, L_W2))
    A("s_bfe_u32 s%d, s%d, 0x20005" % (t, off))
    A("s_mul_i32 s%d, s%d, %d" % (t, t, 18 * 32))
    A("s_lshr_b32 s%d, s%d, 7" % (t + 1, off))
    A("s_lshl_b32 s%d, s%d, 5" % (t + 1, t + 1))
    A("s_add_u32 s%d, s%d, s%d" % (t, t, t + 1))
    A("s_and_b32 s%d, s%d, 31" % (off, off))
    A("s_add_u32 s%d, s%d, s%d" % (off, off, t))
    A("s_cmp_ge_u32 s%d, %d" % (idx, L_END))
    A("s_cselect_b32 s%d, 4096, s%d" % (off, off))
    A("s_mov_b32 s%d, s%d\ns_mov_b32 s%d, s%d\ns_mov_b32 s%d, %d" % (d, PW2, d + 1, PW2 + 1, d + 2, SZ_W))
    for (hi, sub, base, sz) in ((L_W2, L_C + 81, PCIM, SZ_C), (L_C + 81, L_C, PCRE, SZ_C), (L_C, 0, PW1, SZ_W)):
        if hi <= lo: continue
        A("s_sub_u32 s%d, s%d, %d" % (t, idx, sub))
        A("s_cmp_lt_u32 s%d, %d" % (idx, hi))
        A("s_cselect_b32 s%d, s%d, s%d" % (off, t, off))
        A("s_cselect_b32 s%d, s%d, s%d" % (d, base, d))
        A("s_cselect_b32 s%d, s%d, s%d" % (d + 1, base + 1, d + 1))
        A("s_cselect_b32 s%d, %d, s%d" % (d + 2, sz, d + 2))
    A("s_mov_b32 s%d, 0x00020000" % (d + 3))
    A("s_lshl_b32 s%d, s%d, 13" % (off, off))

GSLEEP = [8]
FSRD = 16; VL8 = 248; VT = 250; VP = 252
def tag_issue(A):
    srd(A, 60, PDBG, 256)
    A("v_mov_b32 v249, 0")
    A("buffer_load_dwordx2 v[%d:%d], v249, s[60:63], 0 offen sc1" % (VT, VT + 1))
def tag_check(A):
    lp = A.newlabel("tg"); ok = A.newlabel("tg"); rt = A.newlabel("tg")
    A("s_mov_b32 s59, 0")
    A.label(lp)
    A("s_waitcnt vmcnt(0)")
    A("v_readfirstlane_b32 s58, v%d" % VT)
    A("s_add_u32 s59, s59, 1")
    A("s_cmp_eq_u32 s58, 0")
    A("s_cbranch_scc1 %s" % rt)
    A("s_sub_u32 s58, s%d, s58" % TAG)
    A("s_cmp_lt_i32 s58, 1500")
    A("s_cbranch_scc1 %s" % ok)
    A("s_cmp_gt_u32 s59, 64")
    A("s_cbranch_scc1 %s" % ok)
    A.label(rt)
    A("s_cmp_gt_u32 s59, %d" % SPIN)
    A("s_cbranch_scc1 %s" % ok)
    A("s_sleep 2")
    tag_issue(A)
    A("s_branch %s" % lp)
    A.label(ok)
def publish(A, offreg):
    A("s_mov_b64 exec, 1")
    A("buffer_store_dwordx2 v[%d:%d], v%d, s[%d:%d], s%d offen sc1" % (VT, VT + 1, VL8, FSRD, FSRD + 3, offreg))
    A("s_mov_b64 exec, -1")
def gate_issue(A, offreg):
    A("buffer_load_dwordx2 v[%d:%d], v%d, s[%d:%d], s%d offen sc1" % (VP, VP + 1, VL8, FSRD, FSRD + 3, offreg))
def gate_check(A, offreg, mask, first_wait=0):
    lp = A.newlabel("gt"); ok = A.newlabel("gt")
    A("s_mov_b32 s59, 0")
    if isinstance(mask, int):
        A("s_mov_b32 s56, 0x%x" % (mask & 0xffffffff))
        A("s_mov_b32 s57, 0x%x" % (mask >> 32))
        mask = "s[56:57]"
    A("s_waitcnt vmcnt(%d)" % first_wait)
    A.label(lp)
    A("v_cmp_ne_u64 vcc, v[%d:%d], v[%d:%d]" % (VP, VP + 1, VT, VT + 1))
    A("s_add_u32 s59, s59, 1")
    A("s_and_b64 vcc, vcc, %s" % mask)
    A("s_cbranch_scc0 %s" % ok)
    A("s_cmp_gt_u32 s59, %d" % SPIN)
    A("s_cbranch_scc1 %s" % ok)
    A("s_sleep %d" % GSLEEP[0])
    gate_issue(A, offreg)
    A("s_waitcnt vmcnt(0)")
    A("s_branch %s" % lp)
    A.label(ok)

VW = 240
def wide_issue(A):
    A("v_lshlrev_b32 v249, 4, v2")
    A("buffer_load_dwordx4 v[%d:%d], v249, s[%d:%d], 0 offen sc1" % (VW, VW + 3, FSRD, FSRD + 3))
    A("buffer_load_dwordx4 v[%d:%d], v249, s[%d:%d], 0 offen offset:1024 sc1" % (VW + 4, VW + 7, FSRD, FSRD + 3))
def wide_check(A):
    lp = A.newlabel("gw"); ok = A.newlabel("gw")
    A("s_mov_b32 s59, 0")
    A.label(lp)
    A("s_waitcnt vmcnt(0)")
    A("v_cmp_ne_u64 vcc, v[%d:%d], v[%d:%d]" % (VW, VW + 1, VT, VT + 1))
    for q in range(1, 4):
        A("v_cmp_ne_u64 s[56:57], v[%d:%d], v[%d:%d]" % (VW + 2 * q, VW + 2 * q + 1, VT, VT + 1))
        A("s_or_b64 vcc, vcc, s[56:57]")
    A("s_cbranch_scc0 %s" % ok)
    A("s_add_u32 s59, s59, 1")
    A("s_cmp_gt_u32 s59, %d" % SPIN)
    A("s_cbranch_scc1 %s" % ok)
    A("s_sleep %d" % GSLEEP[0])
    wide_issue(A)
    A("s_branch %s" % lp)
    A.label(ok)

def group(A, ms, rs, nprev, extra=(), pts=None):
    rs = list(rs); issued = 0; waited = -1
    for i, (m, need) in enumerate(ms):
        if pts is not None:
            if i in pts:
                nxt = min([p for p in pts if p > i] + [len(ms)])
                need = max(n for _, n in ms[i:nxt])
            else:
                assert need <= waited
        if need > waited:
            A("s_waitcnt lgkmcnt(%d)" % min(15, nprev - 1 - need + issued))
            waited = need
        A(m)
        if rs:
            A(rs.pop(0)); issued += 1
        for pos, t in extra:
            if pos == i: A(t)
    for r in rs: A(r)

ALN = [0, 0]
def align(A):
    if ALN[0]:
        A.raw(".p2alignl %d, 0xbf800000" % ALN[0])
        for _ in range(ALN[1]): A("s_nop 0")

def capture(A, fn):
    mark = len(A.lines); fn()
    body = [l.strip() for l in A.lines[mark:]]; del A.lines[mark:]
    return body

def spread(instrs, n, start=0, per=2):
    out = []
    for k, t in enumerate(instrs):
        out.append((min(n - 1, start + k // per), t))
    return out

class Phase:
    def __init__(self, A, pfx, reads, mfmas, upd, pts, ph):
        self.A, self.pfx, self.reads, self.mfmas, self.upd, self.pts, self.ph = A, pfx, reads, mfmas, upd, pts, ph
        self.n = len(reads(0, 0)); self.nm = len(mfmas(1))
    def first(self, xb=(), cinit=None):
        A = self.A
        for r in self.reads(0, 0): A(r)
        m0 = [(m[:m.rindex(",")] + ", " + (cinit(i) if cinit else "0"), need) for i, (m, need) in enumerate(self.mfmas(0))]
        group(A, m0, self.reads(1, 1), self.n, self.upd(), self.pts)
        group(A, self.mfmas(1), self.reads(0, 0), self.n, xb, self.pts)
    def it(self, pre=None, xb=()):
        A = self.A
        group(A, self.mfmas(0), self.reads(1, 1), self.n, self.upd(), self.pts)
        if pre: pre()
        A("s_barrier")
        group(A, self.mfmas(1), self.reads(0, 0), self.n, xb, self.pts)
    def loop(self, tag, count):
        A = self.A
        if isinstance(count, int): A("s_mov_b32 s%d, %d" % (CNT, count))
        else: A(count)
        align(A)
        A.label(self.pfx + tag)
        self.it(None, [(self.nm - 3, "s_sub_u32 s%d, s%d, 1" % (CNT, CNT)), (self.nm - 2, "s_cmp_lg_u32 s%d, 0" % CNT)])
        A("s_cbranch_scc1 %s%s" % (self.pfx, tag))
    def tail(self, work=()):
        A = self.A
        work = list(work)
        na = self.nm - 3
        group(A, self.mfmas(0), self.reads(1, 1), self.n, list(enumerate(slot_adv(self.ph))) + spread(work[:na], self.nm, 3, 1), self.pts)
        group(A, self.mfmas(1), [], self.n, spread(work[na:], self.nm, 0, 2), self.pts)

def gen(**kw):
    cfg = Cfg()
    for k, val in kw.items():
        assert hasattr(Cfg, k), k
        setattr(cfg, k, val)
    A = Asm()
    HL = cfg.hl
    ALN[0] = cfg.al; ALN[1] = cfg.alp
    NLP = 72 if cfg.csb else 216
    GSLEEP[0] = cfg.gsleep
    late = []
    KN = NAME + "_kernel"
    A.raw(".globl %s\n.p2align 8\n.type %s,@function" % (KN, KN))
    A.label(KN)
    A("s_cmp_ge_u32 s2, 256")
    A("s_cbranch_scc1 k_end")
    A("s_load_dwordx16 s[64:79], s[0:1], 0")
    A("s_load_dwordx16 s[80:95], s[0:1], 64")
    A("s_load_dwordx2 s[96:97], s[0:1], 128")
    A("s_memrealtime s[%d:%d]" % (TAG, TAG + 1))
    A("v_lshrrev_b32 v1, 6, v0")
    A("v_and_b32 v2, 63, v0")
    A("v_readfirstlane_b32 s%d, v1" % WAVE)
    A("s_and_b32 s%d, s2, 7" % XCD)
    A("s_lshr_b32 s%d, s2, 3" % SLOTR)
    A("s_sub_u32 s3, s%d, 19" % SLOTR)
    A("s_cmp_lt_u32 s3, 8")
    A("s_cselect_b32 s%d, %d, %d" % (RING, 3, 4))
    A("s_mul_i32 s%d, s%d, %d" % (RING, RING, SLOT2))
    A("v_lshlrev_b32 v%d, 3, v2" % VL8)
    if cfg.stamp:
        A("v_mov_b32 v255, 0")
        A("s_waitcnt lgkmcnt(0)")
        A("v_writelane_b32 v255, s%d, 0" % TAG)
    TT, PT, FT, DT, SP, ST, D3, KT3, NF, F0 = 30, 31, 32, 33, 34, 35, 36, 37, 38, 39
    A("s_cmp_ge_u32 s%d, 12" % SLOTR)
    A("s_cselect_b32 s%d, 1, 0" % TT)
    A("s_cselect_b32 s%d, 12, 0" % PT)
    A("s_cmp_ge_u32 s%d, 27" % SLOTR)
    A("s_cselect_b32 s%d, 20, s%d" % (PT, PT))
    A("s_sub_u32 s%d, s%d, s%d" % (PT, SLOTR, PT))
    A("s_lshl_b32 s3, s%d, 1" % XCD)
    A("s_add_u32 s%d, s%d, s3" % (TT, TT))
    A("s_cmp_ge_u32 s%d, 4" % WAVE)
    A("s_cbranch_scc1 hi_entry")

    def ids23():
        A("s_lshl_b32 s3, s%d, 3" % XCD)
        A("s_mov_b32 s%d, 0x%x\ns_mov_b32 s%d, 0x%x" % (FT, 0x0206090c, FT + 1, 0x0f121518))
        A("s_lshr_b64 s[%d:%d], s[%d:%d], s3" % (FT, FT + 1, FT, FT + 1))
        A("s_and_b32 s%d, s%d, 0xff" % (FT, FT))
        A("s_add_u32 s%d, s%d, s%d" % (FT, FT, SLOTR))
        A("s_cmp_ge_u32 s%d, 27" % FT)
        A("s_cselect_b32 s3, 27, 0")
        A("s_sub_u32 s%d, s%d, s3" % (FT, FT))
        A("s_mul_i32 s3, s%d, 27" % XCD)
        A("s_add_u32 s3, s3, s%d" % FT)
        A("s_mul_i32 s%d, s3, 43691" % FT)
        A("s_lshr_b32 s%d, s%d, 18" % (FT, FT))
        A("s_mul_i32 s%d, s%d, 6" % (DT, FT))
        A("s_sub_u32 s%d, s3, s%d" % (DT, DT))
        A("s_lshr_b32 s%d, s%d, 1" % (SP, XCD))
        A("s_and_b32 s3, s%d, 1" % XCD)
        A("s_lshl_b32 s3, s3, 3")
        A("s_lshr_b32 s%d, s%d, 2" % (ST, SLOTR))
        A("s_add_u32 s%d, s%d, s3" % (ST, ST))
        A("s_and_b32 s%d, s%d, 3" % (D3, SLOTR))
        A("s_cmp_ge_u32 s%d, 2" % SP)
        A("s_cselect_b32 s%d, 4, 5" % NF)
        A("s_add_u32 s%d, s%d, 18" % (KT3, NF))
        A("s_mul_i32 s%d, s%d, 5" % (F0, SP))
        A("s_cmp_eq_u32 s%d, 3" % SP)
        A("s_cselect_b32 s%d, 14, s%d" % (F0, F0))

    WR, WC = 40, 41
    KEY3 = 42
    def lane_c23():
        A("v_lshrrev_b32 v5, 2, v2")
        A("v_and_b32 v6, 7, v5")
        A("v_and_b32 v7, 3, v2")
        A("v_lshlrev_b32 v7, 3, v7")
        A("v_lshl_add_u32 v7, v5, 8, v7")
        A("s_lshl_b32 s44, s%d, 2" % WR)
        for aa in range(4):
            A("s_add_u32 s45, s44, %d" % aa)
            A("v_xor_b32 v8, s45, v6")
            A("v_lshl_add_u32 v%d, v8, 5, v7" % (204 + aa))
        A("s_mul_i32 s45, s%d, 6144" % WC)
        A("s_add_u32 s45, s45, 16384")
        A("v_lshlrev_b32 v216, 4, v2")
        A("v_add_u32 v208, s45, v216")
        A("s_lshl_b32 s44, s%d, 1" % WAVE)
        for aa in range(2):
            A("s_add_u32 s45, s44, %d" % aa)
            A("v_xor_b32 v8, s45, v6")
            A("v_lshl_add_u32 v%d, v8, 5, v7" % (209 + aa))
        A("v_and_b32 v3, 15, v2")
        A("v_lshrrev_b32 v4, 4, v2")
        A("v_and_b32 v5, 7, v3")
        A("v_xor_b32 v5, v5, v4")
        A("v_lshlrev_b32 v5, 4, v5")
        A("v_lshl_add_u32 v5, v3, 7, v5")
        A("v_add_u32 v211, 16384, v5")
        A("v_xor_b32 v212, 64, v211")
        A("v_add_u32 v213, 16384, v216")
        A("v_add_u32 v214, 17408, v216")
        A("v_lshlrev_b32 v217, 3, v4")
        A("v_mov_b32 v215, v216")
        if cfg.side:
            A("v_lshrrev_b32 v5, 3, v2")
            A("v_cmp_eq_u32 vcc, 3, v5")
            A("v_add_u32 v5, 0x%x, v215" % (SIDE + 128))
            A("s_nop 0")
            A("v_cndmask_b32 v215, v215, v5, vcc")
    def wrwc():
        A("s_and_b32 s%d, s%d, 1" % (WR, WAVE))
        A("s_lshr_b32 s%d, s%d, 1" % (WC, WAVE))
    RAW = 164; X = 174; TT_ = 220; RS = 1344
    S0, S2, M, MB, RSV = 192, 193, 194, 196, 197
    LA = 238
    def ln_load():
        A("s_lshr_b32 s44, s2, 2")
        A("s_lshl_b32 s44, s44, 5")
        A("s_and_b32 s45, s2, 3")
        A("s_lshl_b32 s45, s45, 2")
        A("s_add_u32 s44, s44, s45")
        A("s_lshr_b32 s45, s%d, 1" % WAVE)
        A("s_lshl_b32 s45, s45, 4")
        A("s_add_u32 s44, s44, s45")
        A("s_and_b32 s45, s%d, 1" % WAVE)
        A("s_lshl_b32 s45, s45, 1")
        A("s_add_u32 s51, s44, s45")
        A("s_mul_i32 s44, s51, 1152")
        A("v_lshrrev_b32 v3, 5, v2")
        A("v_and_b32 v4, 31, v2")
        A("v_mul_u32_u24 v5, 1152, v3")
        A("v_lshl_add_u32 v6, v4, 2, v5")
        A("v_lshl_add_u32 v5, v4, 3, v5")
        A("s_waitcnt lgkmcnt(0)")
        srd(A, 4, PX, SZ_X)
        for j in range(4):
            A("buffer_load_dwordx2 %s, v5, s[4:7], s44 offen offset:%d" % (v(RAW + 2 * j, 2), j * 256))
        A("buffer_load_dword v%d, v6, s[4:7], s44 offen offset:1024" % (RAW + 8))
        A("s_mul_i32 s45, s%d, %d" % (WAVE, 2 * RS))
        A("s_add_u32 s45, s45, %d" % LDS_LN)
        A("v_mul_u32_u24 v%d, %d, v3" % (LA, RS))
        A("v_add_u32 v%d, s45, v%d" % (LA, LA))
        A("v_lshl_add_u32 v195, v4, 2, v%d" % LA)
        A("v_lshl_add_u32 v%d, v4, 3, v%d" % (LA, LA))
        A("v_lshlrev_b32 v198, 3, v3")
        A("v_bfe_u32 v5, v2, 2, 2")
        A("v_mul_u32_u24 v5, %d, v5" % RS)
        A("v_and_b32 v6, 3, v2")
        A("v_lshl_add_u32 v5, v6, 3, v5")
        A("v_lshrrev_b32 v6, 4, v2")
        A("v_lshl_add_u32 v5, v6, 5, v5")
        A("v_add_u32 v%d, %d, v5" % (LA + 1, LDS_LN))
        A("v_and_b32 v5, 15, v2")
        A("v_lshlrev_b32 v5, 4, v5")
        A("v_lshl_add_u32 v199, v6, 11, v5")
        if cfg.side:
            A("s_and_b32 s45, s2, 3")
            A("s_cmp_eq_u32 s45, 1")
            A("s_cselect_b32 s45, 0x%x, 0" % (SIDE + 128))
            A("v_cmp_le_u32 vcc, 128, v5")
            A("v_add_u32 v5, s45, v199")
            A("s_nop 0")
            A("v_cndmask_b32 v199, v199, v5, vcc")
    N = 18
    def unpack(src):
        for j in range(9):
            A("v_lshlrev_b32 v%d, 16, v%d" % (X + 2 * j, src + j))
            A("v_and_b32 v%d, 0xffff0000, v%d" % (X + 2 * j + 1, src + j))
    def sum32(r):
        row16_sum(A, r)
        A("v_mov_b32 v%d, v%d" % (S2, r))
        A("s_nop 1")
        A("v_permlane16_swap_b32 v%d, v%d" % (r, S2))
        A("s_nop 1")
        A("v_add_f32 v%d, v%d, v%d" % (r, r, S2))
    def pk(op, d, a, b, mods=""):
        A("v_pk_%s_f32 %s, %s, %s %s" % (op, v(d, 2), v(a, 2), v(b, 2), mods))
    NEG = "neg_lo:[0,1] neg_hi:[0,1]"
    P0, P2, PM, PB, PR_ = 100, 102, 104, 106, 108
    def layernorm():
        pk("add", P0, X, X + 2); pk("add", P2, X + 4, X + 6)
        for j in range(8, 16, 4):
            pk("add", P0, P0, X + j); pk("add", P2, P2, X + j + 2)
        pk("add", P0, P0, X + 16)
        pk("add", P0, P0, P2)
        A("v_add_f32 v%d, v%d, v%d" % (S0, P0, P0 + 1))
        sum32(S0)
        A("v_mul_f32 v%d, s46, v%d" % (PM, S0))
        A("v_mul_f32 v%d, s46, v%d" % (PM + 1, S0))
        round_bf16(A, MB, PM)
        for j in range(0, N, 2): pk("add", TT_ + j, X + j, PM, NEG)
        A("v_mov_b32 v%d, v%d\nv_mov_b32 v%d, v%d" % (PB, MB, PB + 1, MB))
        pk("mul", P0, TT_, TT_); pk("mul", P2, TT_ + 2, TT_ + 2)
        for j in range(4, N, 2):
            d = P0 if j % 4 == 0 else P2
            A("v_pk_fma_f32 %s, %s, %s, %s" % (v(d, 2), v(TT_ + j, 2), v(TT_ + j, 2), v(d, 2)))
        pk("add", P0, P0, P2)
        A("v_add_f32 v%d, v%d, v%d" % (S0, P0, P0 + 1))
        fill = [("v_pk_add_f32 %s, %s, %s %s" % (v(X + j, 2), v(X + j, 2), v(PB, 2), NEG)) for j in range(0, N, 2)]
        fill += [("v_cvt_pk_bf16_f32 v%d, v%d, v%d" % (RAW + j, X + 2 * j, X + 2 * j + 1)) for j in range(9)]
        def F(n):
            for _ in range(n): A(fill.pop(0))
        for sh in (8, 4, 2, 1):
            F(2)
            A("v_add_f32_dpp v%d, v%d, v%d row_ror:%d row_mask:0xf bank_mask:0xf" % (S0, S0, S0, sh))
        A("v_mov_b32 v%d, v%d" % (S2, S0))
        F(2)
        A("v_permlane16_swap_b32 v%d, v%d" % (S0, S2))
        F(2)
        A("v_add_f32 v%d, v%d, v%d" % (S0, S0, S2))
        A("v_mul_f32 v%d, s46, v%d" % (S0, S0))
        round_bf16(A, S0, S0)
        A("v_add_f32 v%d, s47, v%d" % (S0, S0))
        round_bf16(A, S0, S0)
        A("v_sqrt_f32 v%d, v%d" % (S0, S0))
        F(3)
        round_bf16(A, S0, S0)
        A("v_rcp_f32 v%d, v%d" % (RSV, S0))
        F(len(fill))
        unpack(RAW)
        A("v_mov_b32 v%d, v%d\nv_mov_b32 v%d, v%d" % (PR_, RSV, PR_ + 1, RSV))
        for j in range(0, N, 2): pk("mul", X + j, X + j, PR_)
        for j in range(9): A("v_cvt_pk_bf16_f32 v%d, v%d, v%d" % (RAW + j, X + 2 * j, X + 2 * j + 1))
    def ln_compute():
        srd(A, 8, PWS, SZ_HF + SIDE + 128, WS_HF)
        srd(A, 12, PWS, SZ_ST, WS_ST)
        A("s_mov_b32 s46, 0x%x" % f2u(1.0 / 576))
        A("s_mov_b32 s47, 0x%x" % f2u(1e-5))
        A("s_lshl_b32 s51, s51, 3")
        A("s_lshr_b32 s44, s2, 3")
        A("s_mul_i32 s44, s44, %d" % (36 * 2048))
        A("s_and_b32 s45, s2, 7")
        A("s_lshl_b32 s45, s45, 8")
        A("s_add_u32 s44, s44, s45")
        A("s_mov_b32 s45, 0")
        A("s_waitcnt vmcnt(0)")
        tag_issue(A)
        A.label("ln_loop")
        unpack(RAW)
        layernorm()
        A("s_cmp_lg_u32 s45, 0")
        A("s_cbranch_scc1 ln_out")
        A("s_mov_b32 exec_lo, 1\ns_mov_b32 exec_hi, 1")
        A("buffer_store_dwordx2 v[%d:%d], v198, s[12:15], s51 offen sc1" % (MB, RSV))
        A("s_mov_b64 exec, -1")
        A("s_mov_b32 s45, 1")
        A("s_branch ln_loop")
        A.label("ln_out")
        for j in range(4):
            A("ds_write_b64 v%d, %s offset:%d" % (LA, v(RAW + 2 * j, 2), j * 256))
        A("ds_write_b32 v195, v%d offset:1024" % (RAW + 8))
        tag_check(A)
        A("s_waitcnt lgkmcnt(0)")
    def ln_store():
        sk = A.newlabel("lns")
        A("s_cmp_lg_u32 s%d, 0" % WAVE)
        A("s_cbranch_scc1 %s" % sk)
        HB = 32
        for k in range(9):
            A("ds_read_b64_tr_b16 %s, v%d offset:%d" % (v(HB + 4 * k, 2), LA + 1, k * 128))
            A("ds_read_b64_tr_b16 %s, v%d offset:%d" % (v(HB + 4 * k + 2, 2), LA + 1, k * 128 + 4 * RS))
            if k == 6: A("s_waitcnt lgkmcnt(8)")
        for k in range(9):
            A("s_waitcnt lgkmcnt(%d)" % min(15, 16 - 2 * k))
            A("buffer_store_dwordx4 %s, v199, s[8:11], s44 offen sc1" % v(HB + 4 * k, 4))
            A("s_add_u32 s44, s44, %d" % (4 * 2048))
        A("v_mov_b32 v252, 0\nv_mov_b32 v253, 0\nv_mov_b32 v249, %d" % SIG)
        A("ds_write_b128 v249, v[250:253]")
        A("s_waitcnt lgkmcnt(0)")
        A.label(sk)
    def pubH():
        sk = A.newlabel("ph")
        A("s_cmp_lg_u32 s%d, 0" % WAVE)
        A("s_cbranch_scc1 %s" % sk)
        A("s_lshl_b32 s52, s2, 3")
        A("s_waitcnt vmcnt(0)")
        publish(A, 52)
        stamp(A, cfg, 9)
        A.label(sk)
    A.label("c1_entry")
    ln_load()
    A("s_or_b32 s44, s2, s%d" % WAVE)
    A("s_cbranch_scc1 c1_notag")
    srd(A, 60, PDBG, 256)
    A("s_or_b32 s%d, s%d, 1" % (TAG, TAG))
    A("v_mov_b32 v4, s%d\nv_mov_b32 v5, s%d\nv_mov_b32 v6, 0" % (TAG, TAG + 1))
    A("s_mov_b64 exec, 1")
    A("buffer_store_dwordx2 v[4:5], v6, s[60:63], 0 offen sc1")
    A("s_mov_b64 exec, -1")
    A.label("c1_notag")
    wrwc()
    A("v_and_b32 v3, 15, v2")
    A("v_lshrrev_b32 v4, 4, v2")
    A("v_and_b32 v5, 7, v3")
    A("v_xor_b32 v5, v5, v4")
    A("v_lshlrev_b32 v5, 4, v5")
    A("v_lshl_add_u32 v5, v3, 7, v5")
    A("v_and_b32 v6, 1, v3")
    A("v_lshrrev_b32 v7, 1, v3")
    A("v_and_b32 v8, 6, v7")
    A("v_or_b32 v8, v8, v6")
    A("v_xor_b32 v8, v8, v4")
    A("v_lshlrev_b32 v8, 4, v8")
    A("v_mul_u32_u24 v6, 48, v6")
    A("v_add_u32 v6, v6, v7")
    A("v_lshl_add_u32 v8, v6, 7, v8")
    A("s_lshl_b32 s44, s%d, 13" % WR)
    A("s_mul_i32 s45, s%d, 3072" % WC)
    A("s_add_u32 s45, s45, 16384")
    A("v_add_u32 v200, s44, v5")
    A("v_xor_b32 v201, 64, v200")
    A("v_add_u32 v202, s45, v8")
    A("v_xor_b32 v203, 64, v202")
    A("v_lshlrev_b32 v218, 4, v4")
    A("v_lshl_add_u32 v218, v3, 6, v218")
    CA = 10
    for i in range(4): A("v_add_u32 v%d, s%d, v%d" % (CA + i, RING, 200 + i))
    ACC1 = 32; SETS1 = [80, 108]; RSUM = 136; CSUM = 152; ONES = 20
    A("v_lshlrev_b32 v219, 4, v3")
    if cfg.csb: A("v_lshlrev_b32 v20, 4, v4")
    else:
        for i in range(4): A("v_mov_b32 v%d, 0x3f803f80" % (ONES + i))
    ids23(); lane_c23()
    srd(A, FSRD, PWS, SZ_FL, WS_FL)
    def reads1(st, ks):
        b = SETS1[st]
        P = lambda aa: "ds_read_b128 %s, v%d offset:%d" % (v(b + 4 * aa, 4), CA + ks, aa * 2048)
        Q = lambda xb: "ds_read_b128 %s, v%d offset:%d" % (v(b + 16 + 4 * xb, 4), CA + 2 + ks, xb * 1024)
        return [P(0), Q(0), Q(1), Q(2), P(1), P(2), P(3)]
    def mfmas1(st):
        b = SETS1[st]; m = []
        for aa in range(4):
            for xb in range(3):
                d = v(ACC1 + (aa * 3 + xb) * 4, 4)
                m.append(("%s %s, %s, %s, %s" % (MFMA, d, v(b + 16 + 4 * xb, 4), v(b + 4 * aa, 4), d), max(1 + xb, 3 + aa if aa else 0)))
            if aa < 3 and not cfg.csb:
                d = v(CSUM + 4 * aa, 4)
                m.append(("%s %s, %s, %s, %s" % (MFMA, d, v(b + 16 + 4 * aa, 4), v(ONES, 4), d), 0))
        return m
    def upd1():
        sa = slot_adv(1)
        return [(5, sa[0]), (6, sa[1]), (7, sa[2])] + [(8 + i, "v_add_u32 v%d, s%d, v%d" % (CA + i, RING, 200 + i)) for i in range(4)]
    def only3(fn):
        def f():
            sk = A.newlabel("w3")
            A("s_cmp_lg_u32 s%d, 3" % WAVE)
            A("s_cbranch_scc1 %s" % sk)
            fn()
            A.label(sk)
        return f
    A("s_mul_i32 s44, s%d, 6" % PT)
    A("s_mul_i32 s45, s%d, 3" % WC)
    A("s_add_u32 s44, s44, s45")
    A("s_lshl_b32 s54, s44, 6")
    A("s_add_u32 s54, s54, 16384")
    A("s_lshl_b32 s44, s44, 16")
    A("s_lshl_b32 s45, s%d, 1" % TT)
    A("s_add_u32 s45, s45, s%d" % WR)
    A("s_lshl_b32 s49, s45, 9")
    A("s_lshl_b32 s45, s45, 11")
    A("s_add_u32 s42, s44, s45")
    A("s_add_u32 s43, s42, 65536")
    A("s_add_u32 s48, s42, 131072")
    A("s_lshl_b32 s50, s%d, 4" % PT)
    A("s_add_u32 s50, s50, s%d" % TT)
    A("s_lshl_b32 s50, s50, 2")
    A("s_add_u32 s50, s50, s%d" % WAVE)
    A("s_lshl_b32 s50, s50, 3")
    A("s_add_u32 s50, s50, %d" % FL_G)
    ln_compute()
    stamp(A, cfg, 1)
    A("s_barrier")
    ln_store()
    A("s_sub_u32 s3, s%d, 19" % SLOTR)
    A("s_cmp_lt_u32 s3, 8")
    A("s_cbranch_scc1 ln_lo")
    A("s_barrier")
    stamp(A, cfg, 2)
    BIAS = 24; BF = 224
    def biasld():
        srd(A, 4, PB1, 9216)
        A("s_lshl_b32 s44, s%d, 8" % FT)
        A("s_lshl_b32 s45, s%d, 7" % WR)
        A("s_add_u32 s44, s44, s45")
        for aa in range(4):
            A("buffer_load_dwordx2 %s, v217, s[4:7], s44 offen offset:%d" % (v(BIAS + 2 * aa, 2), aa * 32))
    def biasup():
        for k in range(8):
            A("v_lshlrev_b32 v%d, 16, v%d" % (BF + 2 * k, BIAS + k))
            A("v_and_b32 v%d, 0xffff0000, v%d" % (BF + 2 * k + 1, BIAS + k))
    def statld():
        for ap in range(2):
            A("buffer_load_dwordx4 %s, v219, s[12:15], s49 offen offset:%d sc1" % (v(RSUM + 4 * ap, 4), ap * 256))
        if cfg.csb:
            for xb in range(3):
                A("buffer_load_dwordx4 %s, v20, s[12:15], s54 offen offset:%d sc1" % (v(CSUM + 4 * xb, 4), xb * 64))
    P1 = Phase(A, "c1", reads1, mfmas1, upd1, (0, 3) if cfg.csb else (0, 4), 1)
    P1.first()
    P1.it(pubH)
    P1.loop("_loop", 3)
    P1.it(lambda: (only3(lambda: wide_issue(A))(), biasld()))
    P1.it(only3(lambda: (stamp(A, cfg, 11), wide_check(A), stamp(A, cfg, 14))))
    P1.it(statld)
    P1.tail(capture(A, lambda: srd(A, 12, PWS, SZ_G, WS_G)))
    stamp(A, cfg, 3)
    MN = 80; RR = 88
    A("s_waitcnt vmcnt(0)")
    for aa in range(4):
        for q in range(2):
            A("v_sub_f32 v%d, 0, v%d" % (MN + 2 * aa + q, RSUM + 2 * aa))
            A("v_mov_b32 v%d, v%d" % (RR + 2 * aa + q, RSUM + 2 * aa + 1))
    for ap in range(2):
        for xb in range(3):
            O = 168 + 4 * (ap * 3 + xb)
            hq = [(h, q) for h in range(2) for q in range(2)]
            D_ = lambda h, q: ACC1 + ((2 * ap + h) * 3 + xb) * 4 + 2 * q
            for h, q in hq: A("v_pk_fma_f32 %s, %s, %s, %s" % (v(D_(h, q), 2), v(MN + 2 * (2 * ap + h), 2), v(CSUM + 4 * xb + 2 * q, 2), v(D_(h, q), 2)))
            for h, q in hq: A("v_pk_mul_f32 %s, %s, %s" % (v(D_(h, q), 2), v(D_(h, q), 2), v(RR + 2 * (2 * ap + h), 2)))
            for h, q in hq: A("v_cvt_pk_bf16_f32 v%d, v%d, v%d" % (O + 2 * h + q, D_(h, q), D_(h, q) + 1))
            A("buffer_store_dwordx4 %s, v218, s[12:15], s%d offen offset:%d sc1" % (v(O, 4), (42, 43, 48)[xb], ap * 1024))
    ACC2 = 32; SETS2 = [80, 108]
    biasup()
    A("s_mov_b32 s53, 1")
    A("s_mov_b32 s52, s50")
    A("s_barrier")
    if cfg.gpub:
        A("s_waitcnt vmcnt(0)")
        publish(A, 52)
        A("s_mov_b32 s53, 0")
        A("s_cmp_lt_u32 s%d, 27" % SLOTR)
        A("s_cbranch_scc1 c2_main")
    else:
        A("s_cmp_lt_u32 s%d, 27" % SLOTR)
        A("s_cbranch_scc1 c2_main")
        A("s_waitcnt vmcnt(0)")
        publish(A, 52)
    A("s_branch scan_entry")
    A.label("c2_entry")
    biasup()
    A("s_mov_b32 s53, 0")
    A("s_barrier")
    A.label("c2_main")
    for i in range(5): A("v_add_u32 v%d, s%d, v%d" % (CA + i, RING, 204 + i))
    A("s_barrier")
    stamp(A, cfg, 4)
    def reads2(st, ks):
        b = SETS2[st]
        P = lambda aa: ["ds_read_b64_tr_b16 %s, v%d offset:%d" % (v(b + 4 * aa, 2), CA + aa, ks * 8192),
                        "ds_read_b64_tr_b16 %s, v%d offset:%d" % (v(b + 4 * aa + 2, 2), CA + aa, ks * 8192 + 4096)]
        Q = lambda xb: ["ds_read_b128 %s, v%d offset:%d" % (v(b + 16 + 4 * xb, 4), CA + 4, xb * 2048 + ks * 1024)]
        if cfg.ord2 == 2: return P(0) + Q(0) + P(1) + P(2) + P(3) + Q(1) + Q(2)
        return P(0) + Q(0) + Q(1) + Q(2) + P(1) + P(2) + P(3)
    def mfmas2(st):
        b = SETS2[st]; m = []
        if cfg.ord2 == 2:
            order = [(aa if xb % 2 == 0 else 3 - aa, xb) for xb in range(3) for aa in range(4)]
            need = lambda aa, xb: max(2 + 2 * aa if aa else 2, 8 + xb if xb else 0)
        else:
            order = [(aa, xb if (cfg.ord2 == 0 or aa % 2 == 0) else 2 - xb) for aa in range(4) for xb in range(3)]
            need = lambda aa, xb: max(2 + xb, 4 + 2 * aa if aa else 0)
        for aa, xb in order:
            d = v(ACC2 + (aa * 3 + xb) * 4, 4)
            m.append(("%s %s, %s, %s, %s" % (MFMA, d, v(b + 4 * aa, 4), v(b + 16 + 4 * xb, 4), d), need(aa, xb)))
        return m
    def upd2():
        sa = slot_adv(2)
        U = lambda i: "v_add_u32 v%d, s%d, v%d" % (CA + i, RING, 204 + i)
        if cfg.ord2 == 2: return [(0, sa[0]), (1, sa[1]), (2, sa[2]), (4, U(0)), (5, U(1)), (7, U(2)), (9, U(3)), (11, U(4))]
        return [(0, sa[0]), (1, sa[1]), (2, sa[2]), (4, U(0)), (5, U(4)), (7, U(1)), (9, U(2)), (11, U(3))]
    def pubG():
        sk = A.newlabel("pg")
        A("s_cmp_eq_u32 s53, 0")
        A("s_cbranch_scc1 %s" % sk)
        A("s_waitcnt vmcnt(0)")
        publish(A, 52)
        A.label(sk)
    def gelu_setup():
        c1 = -2.0 * math.sqrt(2.0 / math.pi) * math.log2(math.e); c2 = c1 * 0.044715
        for (r, val) in ((28, c1), (136, c2), (138, 1.0)):
            A("v_mov_b32 v%d, 0x%x\nv_mov_b32 v%d, 0x%x" % (r, f2u(val), r + 1, f2u(val)))
        srd(A, 12, PWS, SZ_UF + SIDE + 128, WS_UF)
        A("s_lshl_b32 s44, s%d, 1" % FT)
        A("s_add_u32 s44, s44, s%d" % WR)
        A("s_lshl_b32 s45, s%d, 1" % DT)
        A("s_add_u32 s45, s45, s%d" % WC)
        A("s_mul_i32 s46, s44, 12")
        A("s_add_u32 s46, s46, s45")
        A("s_mul_i32 s46, s46, %d" % (3 * PAIR))
        A("s_add_u32 s47, s46, 4096")
        A("s_mul_i32 s48, s44, 3641")
        A("s_lshr_b32 s48, s48, 16")
        A("s_mul_i32 s49, s45, 21846")
        A("s_lshr_b32 s49, s49, 16")
        A("s_mul_i32 s50, s48, 18")
        A("s_sub_u32 s50, s44, s50")
        A("s_sub_u32 s50, s50, s49")
        A("s_mul_i32 s50, s50, 3")
        A("s_add_u32 s50, s50, s45")
        A("s_lshl_b32 s50, s50, 3")
        A("s_lshl_b32 s49, s49, 2")
        A("s_add_u32 s49, s49, s48")
        A("s_lshl_b32 s49, s49, 9")
        A("s_add_u32 s52, s50, s49")
        A("s_add_u32 s52, s52, %d" % FL_U)

    P2 = Phase(A, "c2", reads2, mfmas2, upd2, (0, 2, 4) if cfg.ord2 == 2 else (0, 3, 6), 2)
    assert cfg.ord2 == 0
    P2.first(cinit=(lambda i: v(BF + 4 * (i // 3), 4)) if cfg.binit else None)
    pubG(); stamp(A, cfg, 10)
    P2.loop("_loop", 30)
    P2.tail(capture(A, gelu_setup))
    stamp(A, cfg, 5)
    if not cfg.upub:
        A("v_mov_b32 v16, %d" % SIG)
        A("ds_read_b32 v16, v16 offset:8")
        A("s_waitcnt lgkmcnt(0)")
    if cfg.xpos == 0: A("s_barrier")
    else: A("s_nop 7")
    T = 80
    for ap in range(2):
        for xb in range(3):
            if cfg.xpos and ap * 3 + xb == cfg.xpos: A("s_barrier")
            prs = [ACC2 + ((ap * 2 + h) * 3 + xb) * 4 + 2 * q for h in range(2) for q in range(2)]
            if not cfg.binit:
                for i, x in enumerate(prs): A("v_pk_add_f32 %s, %s, %s" % (v(x, 2), v(x, 2), v(BF + ap * 8 + 2 * i, 2)))
            for i, x in enumerate(prs): A("v_pk_mul_f32 %s, %s, %s" % (v(T + 2 * i, 2), v(x, 2), v(x, 2)))
            for i, x in enumerate(prs): A("v_pk_fma_f32 %s, %s, v[136:137], v[28:29]" % (v(T + 2 * i, 2), v(T + 2 * i, 2)))
            for i, x in enumerate(prs): A("v_pk_mul_f32 %s, %s, %s" % (v(T + 2 * i, 2), v(T + 2 * i, 2), v(x, 2)))
            for i in range(8): A("v_exp_f32 v%d, v%d" % (T + i, T + i))
            for i, x in enumerate(prs): A("v_pk_add_f32 %s, %s, v[138:139]" % (v(T + 2 * i, 2), v(T + 2 * i, 2)))
            for i in range(8): A("v_rcp_f32 v%d, v%d" % (T + i, T + i))
            for i, x in enumerate(prs): A("v_pk_mul_f32 %s, %s, %s" % (v(T + 2 * i, 2), v(T + 2 * i, 2), v(x, 2)))
            O = 140 + 4 * (ap * 3 + xb)
            for i in range(4):
                A("v_cvt_pk_bf16_f32 v%d, v%d, v%d" % (O + i, T + 2 * i, T + 2 * i + 1))
            off = xb * 2048 + ap * 1024
            A("buffer_store_dwordx4 %s, v215, s[12:15], s%d offen offset:%d sc1" % (v(O, 4), 46 + off // 4096, off % 4096))
    ACC3 = 24; SETS3 = [96, 140]
    A("s_mov_b32 s53, 1")
    if not cfg.upub:
        A("v_readfirstlane_b32 s44, v16")
        A("s_cmp_lg_u32 s44, 0")
        A("s_cbranch_scc1 c3_main")
    pubG()
    A("s_mov_b32 s53, 0")
    A("s_branch c3_main")
    A.label("c3_entry")
    wrwc(); lane_c23()
    A("s_mov_b32 s53, 0")
    A.label("c3_main")
    A("s_barrier")
    A("s_barrier")
    stamp(A, cfg, 6)
    for i in range(4): A("v_add_u32 v%d, s%d, v%d" % (CA + i, RING, 209 + i))
    def reads3(st, ks):
        b = SETS3[st]; r = ["ds_read_b128 %s, v%d offset:0" % (v(b + 8, 4), CA + 2 + ks)]
        for aa in range(2):
            r.append("ds_read_b64_tr_b16 %s, v%d offset:%d" % (v(b + 4 * aa, 2), CA + aa, ks * 8192))
            r.append("ds_read_b64_tr_b16 %s, v%d offset:%d" % (v(b + 4 * aa + 2, 2), CA + aa, ks * 8192 + 4096))
        for xb in range(1, 9):
            if cfg.hack3 and xb % 2: continue
            r.append("ds_read_b128 %s, v%d offset:%d" % (v(b + 8 + 4 * xb, 4), CA + 2 + ks, xb * 2048))
        return r
    def mfmas3(st):
        b = SETS3[st]; m = []
        order = [(xb, aa if (cfg.ord3 == 0 or xb % 2 == 0) else 1 - aa) for xb in range(9) for aa in range(2)]
        for xb, aa in order:
            if True:
                d = v(ACC3 + (xb * 2 + aa) * 4, 4)
                m.append(("%s %s, %s, %s, %s" % (MFMA, d, v(b + 8 + 4 * (xb & ~1 if cfg.hack3 else xb), 4), v(b + 4 * aa, 4), d), max(2 + 2 * aa, (4 + xb // 2 if cfg.hack3 else 4 + xb) if xb else 0)))
        return m
    def upd3():
        sa = slot_adv(3)
        U = lambda i: "v_add_u32 v%d, s%d, v%d" % (CA + i, RING, 209 + i)
        return [(7, sa[0]), (8, sa[1]), (9, sa[2]), (11, U(0)), (13, U(1)), (14, U(2)), (15, U(3))]
    def umode():
        A("v_mov_b32 v211, v213\nv_mov_b32 v212, v214")
        A("v_add_u32 v%d, s%d, v213" % (CA + 2, RING))
        A("v_add_u32 v%d, s%d, v214" % (CA + 3, RING))
    def exsetup():
        srd(A, 12, PWS, SZ_EX, WS_EX)
        A("s_lshl_b32 s44, s%d, 2" % ST)
        A("s_add_u32 s44, s44, s%d" % D3)
        A("s_lshl_b32 s44, s44, 2")
        A("s_add_u32 s44, s44, s%d" % WAVE)
        A("s_lshl_b32 s52, s44, 7")
        A("s_lshl_b32 s45, s%d, 3" % SP)
        A("s_add_u32 s52, s52, s45")
        A("s_add_u32 s52, s52, %d" % FL_X)
        A("s_lshl_b32 s44, s44, 2")
        A("s_add_u32 s44, s44, s%d" % SP)
        A("s_mul_i32 s44, s44, 9216")

    P3 = Phase(A, "c3", reads3, mfmas3, upd3, (0, 6), 3)
    P3.first()
    pubG(); stamp(A, cfg, 12)
    P3.loop("_f", "s_sub_u32 s%d, s%d, 2" % (CNT, NF))
    P3.it(lambda: (umode(), stamp(A, cfg, 13)))
    P3.loop("_u", 17)
    P3.tail(capture(A, exsetup))
    stamp(A, cfg, 7)
    A("s_nop 3")
    A("s_cmp_eq_u32 s%d, s%d" % (WAVE, SP))
    A("s_cbranch_scc1 c3_own")
    for xb in range(9):
        o = 96 + 4 * xb
        for k in range(4):
            A("v_cvt_pk_bf16_f32 v%d, v%d, v%d" % (o + k, ACC3 + 8 * xb + 2 * k, ACC3 + 8 * xb + 2 * k + 1))
        A("buffer_store_dwordx4 %s, v216, s[12:15], s44 offen offset:%d sc1" % (v(o, 4), (xb % 4) * 1024))
        if xb % 4 == 3: A("s_add_u32 s44, s44, 4096")
    A("s_waitcnt vmcnt(0)")
    publish(A, 52)
    if cfg.stamp:
        A("s_barrier")
        A("s_branch k_done")
    A("s_endpgm")
    A.label("c3_own")
    A("v_add_u32 v10, %d, v216" % LDS_OWN)
    for t in range(18):
        A("ds_write_b128 v10, %s offset:%d" % (v(ACC3 + 4 * t, 4), t * 1024))
    A("s_waitcnt lgkmcnt(0)")
    A("s_barrier")
    A("s_branch k_done")

    A.label("hi_entry")
    A("s_sub_u32 s3, s%d, 19" % SLOTR)
    A("s_cmp_lt_u32 s3, 8")
    A("s_cbranch_scc1 ln_hi")
    LW = 23
    M0P, M0Q = 40, 41
    OP, OQ = 42, 43
    A("s_sub_u32 s%d, s%d, 4" % (LW, WAVE))
    A("v_lshrrev_b32 v3, 3, v2")
    A("v_and_b32 v4, 7, v2")
    A("v_xor_b32 v6, v4, v3")
    A("s_movk_i32 s44, 1152")
    A("v_mul_lo_u32 v5, v3, s44")
    A("v_lshlrev_b32 v8, 1, v5")
    A("v_lshl_add_u32 v10, v6, 4, v8")
    A("s_lshr_b32 s44, s%d, 1" % LW)
    A("v_and_b32 v7, 6, v3")
    A("v_or_b32 v7, s44, v7")
    A("v_xor_b32 v7, v4, v7")
    A("v_lshl_add_u32 v14, v7, 4, v5")
    for m in range(1, 4):
        A("v_add_u32 v%d, 0x%x, v10" % (10 + m, (16 * (m & 1) + (m >> 1)) * 1152 - (m & 1) * 1024))
    for m in range(1, 3):
        A("v_add_u32 v%d, 0x%x, v14" % (14 + m, m * (8 * 1152 - 1024)))
    A("s_lshl_b32 s%d, s%d, 7" % (OP, TT))
    A("s_lshl_b32 s45, s%d, 5" % LW)
    A("s_add_u32 s%d, s%d, s45" % (OP, OP))
    A("s_mul_i32 s%d, s%d, 1152" % (OP, OP))
    A("s_mul_i32 s%d, s%d, 48" % (OQ, PT))
    A("s_and_b32 s45, s%d, 1" % LW)
    A("s_mul_i32 s45, s45, 24")
    A("s_add_u32 s%d, s%d, s45" % (OQ, OQ))
    A("s_mul_i32 s%d, s%d, 1152" % (OQ, OQ))
    A("s_lshl_b32 s%d, s%d, 12" % (M0P, LW))
    A("s_mul_i32 s%d, s%d, 3072" % (M0Q, LW))
    A("s_add_u32 s%d, s%d, 16384" % (M0Q, M0Q))
    if cfg.rot1:
        A("s_lshl_b32 s46, s%d, 2" % TT)
        A("s_add_u32 s46, s46, s%d" % PT)
        A("s_mul_i32 s47, s46, 7282")
        A("s_lshr_b32 s47, s47, 16")
        A("s_mul_i32 s47, s47, 9")
        A("s_sub_u32 s46, s46, s47")
        A("s_lshl_b32 s47, s46, 7")
        A("s_add_u32 s%d, s%d, s47" % (OP, OP))
        A("s_add_u32 s%d, s%d, s47" % (OQ, OQ))
    A("s_waitcnt lgkmcnt(0)")
    srd(A, 4, PX, SZ_X)
    A("s_cmp_ge_u32 s%d, 2" % LW)
    A("s_cselect_b32 s8, s%d, s%d" % (PBIM, PBRE))
    A("s_cselect_b32 s9, s%d, s%d" % (PBIM + 1, PBRE + 1))
    A("s_mov_b32 s10, %d" % SZ_C)
    A("s_mov_b32 s11, 0x00020000")
    def issue1():
        A("s_add_u32 m0, s%d, s%d" % (RING, M0P))
        A("s_add_u32 s45, s%d, s%d" % (RING, M0Q))
        for m in range(4):
            if m == 2:
                A("s_add_u32 m0, m0, 2048")
                A("s_nop 0")
            A("buffer_load_dwordx4 v%d, s[4:7], s%d offen offset:%d lds" % (10 + m, OP, (m & 1) * 1024))
        A("s_mov_b32 m0, s45")
        A("s_add_u32 s%d, s%d, 128" % (OP, OP))
        for m in range(3):
            A("buffer_load_dwordx4 v%d, s[8:11], s%d offen offset:%d lds" % (14 + m, OQ, m * 1024))
        A("s_add_u32 s%d, s%d, 128" % (OQ, OQ))
        if cfg.rot1:
            A("s_add_u32 s46, s46, 1")
            A("s_cmp_eq_u32 s46, 9")
            A("s_cselect_b32 s47, 1152, 0")
            A("s_sub_u32 s%d, s%d, s47" % (OP, OP))
            A("s_sub_u32 s%d, s%d, s47" % (OQ, OQ))
        for t in slot_adv(1): A(t)
    def lane23():
        A("v_lshrrev_b32 v3, 4, v2")
        A("v_and_b32 v4, 15, v2")
        A("v_lshlrev_b32 v6, 1, v3")
        A("v_xor_b32 v7, v4, v6")
        A("v_xor_b32 v8, 8, v7")
        for (b, stride) in ((20, 9216), (24, 4096)):
            A("s_movk_i32 s44, %d" % stride)
            A("v_mul_lo_u32 v5, v3, s44")
            A("v_lshl_add_u32 v%d, v7, 4, v5" % b)
            A("v_lshl_add_u32 v%d, v8, 4, v5" % (b + 1))
            D = 4 * stride - 1024
            A("v_add_u32 v%d, 0x%x, v%d" % (b + 2, 2 * D, b))
            A("v_add_u32 v%d, 0x%x, v%d" % (b + 3, 3 * D, b + 1))
            A("v_add_u32 v%d, 0x%x, v%d" % (b + 1, D, b + 1))
        A("v_lshlrev_b32 v28, 4, v2")
        if cfg.side:
            A("v_lshrrev_b32 v5, 3, v2")
            A("v_cmp_eq_u32 vcc, 3, v5")
            A("v_add_u32 v5, 0x%x, v28" % (SIDE + 128))
            A("s_nop 0")
            A("v_cndmask_b32 v28, v28, v5, vcc")
        A("v_lshrrev_b32 v3, 3, v2")
        A("v_and_b32 v4, 7, v2")
        A("v_xor_b32 v4, v4, v3")
        A("s_movk_i32 s44, 1152")
        A("v_mul_lo_u32 v5, v3, s44")
        A("v_lshl_add_u32 v30, v4, 4, v5")
        for m in range(1, 4):
            A("v_add_u32 v%d, 0x%x, v30" % (30 + m, m * (8 * 1152 - 1024)))
    B2P, B2Q, N2, M6 = 48, 49, 50, 51
    def setup2():
        A("s_mul_i32 s%d, s%d, %d" % (B2P, LW, 16 * 9216))
        A("s_lshl_b32 s44, s%d, 8" % FT)
        A("s_add_u32 s%d, s%d, s44" % (B2P, B2P))
        A("s_mul_i32 s%d, s%d, 12" % (B2Q, DT))
        A("s_mul_i32 s44, s%d, 3" % LW)
        A("s_add_u32 s%d, s%d, s44" % (B2Q, B2Q))
        A("s_lshl_b32 s%d, s%d, 10" % (B2Q, B2Q))
        A("s_mov_b32 s%d, 0\ns_mov_b32 s%d, 0" % (N2, M6))
    def srd2():
        srd(A, 4, PW1, SZ_W)
        srd(A, 8, PWS, SZ_HF + SIDE + 128, WS_HF)
    par2 = [0]
    def issue2(which="WX", adv=True):
        odd = par2[0] & 1; par2[0] += 1
        if cfg.pair2:
            A("s_add_u32 s44, s%d, 12" % N2)
            A("s_lshl_b32 s45, s%d, 1" % M6)
            if odd: A("s_add_u32 s45, s45, 1")
            A("s_cmp_lt_u32 s44, 32")
            A("s_cselect_b32 s44, s44, s45")
            A("s_cmp_eq_u32 s%d, s%d" % (M6, DT))
            A("s_cselect_b32 s44, s44, s%d" % N2)
        elif cfg.rot2 in (2, 4):
            R = cfg.rot2; ADV = cfg.adv2
            A("s_add_u32 s45, s%d, s%d" % (FT, DT))
            A("s_add_u32 s45, s45, s%d" % N2)
            A("s_and_b32 s45, s45, %d" % (R - 1))
            A("s_cselect_b32 s44, 0, %d" % ADV)
            A("s_add_u32 s44, s44, s%d" % N2)
            A("s_and_b32 s44, s44, 31")
        elif cfg.rot2:
            A("s_add_u32 s44, s%d, 6" % N2)
            A("s_cmp_lt_u32 s44, 32")
            A("s_cselect_b32 s44, s44, s%d" % M6)
            A("s_cmp_eq_u32 s%d, s%d" % (M6, DT))
            A("s_cselect_b32 s44, s44, s%d" % N2)
        else:
            A("s_mov_b32 s44, s%d" % N2)
        A("s_mul_i32 s%d, s44, %d" % (OP, 64 * 9216))
        A("s_add_u32 s%d, s%d, s%d" % (OP, OP, B2P))
        A("s_mul_i32 s%d, s44, %d" % (OQ, 36 * PAIR))
        A("s_add_u32 s%d, s%d, s%d" % (OQ, OQ, B2Q))
        def W():
            A("s_add_u32 m0, s%d, s%d" % (RING, M0P))
            A("s_nop 0")
            for m in range(4):
                A("buffer_load_dwordx4 v%d, s[4:7], s%d offen offset:%d lds" % (20 + m, OP, m * 1024))
        def X():
            A("s_add_u32 m0, s%d, s%d" % (RING, M0Q))
            A("s_nop 0")
            for m in range(3):
                A("buffer_load_dwordx4 v28, s[8:11], s%d offen offset:%d %s lds" % (OQ, m * 1024, HL))
        if which == "W": W()
        elif which == "X": X()
        elif cfg.pair2 and not odd: X(); W()
        else: W(); X()
        if not adv: return
        A("s_add_u32 s%d, s%d, 1" % (N2, N2))
        if odd or not cfg.pair2:
            A("s_add_u32 s%d, s%d, 1" % (M6, M6))
            A("s_cmp_eq_u32 s%d, 6" % M6)
            A("s_cselect_b32 s%d, 0, s%d" % (M6, M6))
        for t in slot_adv(2): A(t)
    B3P, B3C, B3U, N3, PH3, M0X, M0Q3 = 52, 53, 54, 55, 46, 47, 29
    def setup3():
        A("s_lshl_b32 s%d, s%d, 16" % (B3P, LW))
        A("s_lshl_b32 s44, s%d, 8" % ST)
        A("s_add_u32 s%d, s%d, s44" % (B3P, B3P))
        A("s_mul_i32 s%d, s%d, %d" % (B3C, D3, 144 * 1152))
        A("s_mul_i32 s%d, s%d, %d" % (B3U, D3, 9 * PAIR))
        A("s_mul_i32 s44, s%d, %d" % (SP, 18 * 36 * PAIR))
        A("s_add_u32 s%d, s%d, s44" % (B3U, B3U))
        A("s_mov_b32 s%d, s%d" % (N3, F0))
        A("s_add_u32 s%d, s%d, s%d" % (PH3, D3, ST))
        A("s_and_b32 s%d, s%d, 3" % (PH3, PH3))
        A("s_lshl_b32 s%d, s%d, 10" % (M0X, LW))
        A("s_add_u32 s%d, s%d, %d" % (M0X, M0X, 32768))
        A("s_add_u32 s%d, s%d, 16384" % (M0Q3, M0P))
    def issue3f(extra):
        srd(A, 4, PWS, SZ_HT, WS_HT)
        A("s_cmp_ge_u32 s%d, 9" % N3)
        A("s_cselect_b32 s8, s%d, s%d" % (PCIM, PCRE))
        A("s_cselect_b32 s9, s%d, s%d" % (PCIM + 1, PCRE + 1))
        A("s_cselect_b32 s44, 9, 0")
        A("s_mov_b32 s10, %d" % SZ_C)
        A("s_mov_b32 s11, 0x00020000")
        A("s_lshl_b32 s%d, s%d, 18" % (OP, N3))
        A("s_add_u32 s%d, s%d, s%d" % (OP, OP, B3P))
        A("s_add_u32 m0, s%d, s%d" % (RING, M0P))
        A("s_sub_u32 s44, s%d, s44" % N3)
        for m in range(4):
            A("buffer_load_dwordx4 v%d, s[4:7], s%d offen offset:%d %s lds" % (24 + m, OP, m * 1024, HL))
        A("s_lshl_b32 s44, s44, 7")
        A("s_add_u32 s44, s44, s%d" % B3C)
        A("s_mul_i32 s%d, s%d, %d" % (OQ, LW, 32 * 1152))
        A("s_add_u32 m0, s%d, s%d" % (RING, M0Q3))
        A("s_add_u32 s%d, s%d, s44" % (OQ, OQ))
        for m in range(4):
            A("buffer_load_dwordx4 v%d, s[8:11], s%d offen offset:%d lds" % (30 + m, OQ, m * 1024))
        if extra:
            A("s_mul_i32 s%d, s%d, %d" % (OQ, LW, 8 * 1152))
            A("s_add_u32 s44, s44, %d" % (128 * 1152))
            A("s_add_u32 m0, s%d, s%d" % (RING, M0X))
            A("s_add_u32 s%d, s%d, s44" % (OQ, OQ))
            A("buffer_load_dwordx4 v30, s[8:11], s%d offen lds" % OQ)
        A("s_add_u32 s%d, s%d, 1" % (N3, N3))
        for t in slot_adv(3): A(t)
    def switch3u():
        srd(A, 4, PW2, SZ_W)
        srd(A, 8, PWS, SZ_UF + SIDE + 128, WS_UF)
        A("s_mul_i32 s44, s%d, %d" % (SP, 18 * 262144))
        A("s_add_u32 s%d, s%d, s44" % (B3P, B3P))
        A("s_mov_b32 s%d, 0" % N3)
    par3 = [0]
    def issue3u(extra, which="WX"):
        odd = par3[0] & 1; par3[0] += 1
        if cfg.pair3:
            A("s_bfe_u32 s45, s%d, 0x20001" % N3)
            A("s_add_u32 s44, s%d, 8" % N3)
            A("s_and_b32 s%d, s%d, 7" % (OP, N3))
            A("s_cmp_lt_u32 s44, 18")
            A("s_cselect_b32 s44, s44, s%d" % OP)
            A("s_cmp_eq_u32 s45, s%d" % PH3)
            A("s_cselect_b32 s44, s44, s%d" % N3)
        elif cfg.rot3:
            A("s_and_b32 s45, s%d, 3" % N3)
            A("s_add_u32 s44, s%d, 4" % N3)
            A("s_cmp_lt_u32 s44, 18")
            A("s_cselect_b32 s44, s44, s45")
            A("s_cmp_eq_u32 s45, s%d" % PH3)
            A("s_cselect_b32 s44, s44, s%d" % N3)
        else:
            A("s_mov_b32 s44, s%d" % N3)
        A("s_lshl_b32 s%d, s44, 18" % OP)
        A("s_add_u32 s%d, s%d, s%d" % (OP, OP, B3P))
        A("s_mul_i32 s45, s44, %d" % (36 * PAIR))
        A("s_add_u32 s45, s45, s%d" % B3U)
        A("s_add_u32 s%d, s45, s%d" % (OQ, M0P))
        if extra:
            A("s_add_u32 s45, s45, s%d" % M0X)
            A("s_sub_u32 s45, s45, 16384")
        def W():
            A("s_add_u32 m0, s%d, s%d" % (RING, M0P))
            A("s_nop 0")
            for m in range(4):
                A("buffer_load_dwordx4 v%d, s[4:7], s%d offen offset:%d lds" % (24 + m, OP, m * 1024))
        def X():
            A("s_add_u32 m0, s%d, s%d" % (RING, M0Q3))
            A("s_nop 0")
            for m in range(4):
                A("buffer_load_dwordx4 v28, s[8:11], s%d offen offset:%d %s lds" % (OQ, m * 1024, HL))
            if extra:
                A("s_add_u32 m0, s%d, s%d" % (RING, M0X))
                A("s_nop 0")
                A("buffer_load_dwordx4 v28, s[8:11], s45 offen %s lds" % HL)
        if which == "W": W()
        elif which == "X": X()
        elif cfg.pair3 and not odd: X(); W()
        else: W(); X()
        A("s_add_u32 s%d, s%d, 1" % (N3, N3))
        for t in slot_adv(3): A(t)
    def step(wait, issue):
        if issue and cfg.hoist:
            mark = len(A.lines)
            issue()
            body = A.lines[mark:]; del A.lines[mark:]
            k = 0
            while k < len(body) and body[k].strip().startswith("s_") and not body[k].strip().startswith(("s_cbranch", "s_branch")): k += 1
            A.lines += body[:k]
            A("s_waitcnt vmcnt(%d)" % wait)
            A("s_barrier")
            A.lines += body[k:]
            return
        A("s_waitcnt vmcnt(%d)" % wait)
        A("s_barrier")
        if issue: issue()
    def lloop(label, count, wait, issue, unroll=1):
        if isinstance(count, int): A("s_mov_b32 s%d, %d" % (CNT, count))
        else: A(count)
        align(A)
        A.label(label)
        for _ in range(unroll): step(wait, issue)
        A("s_sub_u32 s%d, s%d, 1" % (CNT, CNT))
        A("s_cmp_lg_u32 s%d, 0" % CNT)
        A("s_cbranch_scc1 %s" % label)
    def fast_loop(label, count, wait, sel, ph, vW, nX, strideW, bW, bQ, m0q, extra):
        QA = (OQ, 63); XA = (45, 3); MQ = (56, 57); MX = (58, 59)
        def prep(k):
            sel()
            if strideW == 262144: A("s_lshl_b32 s%d, s44, 18" % OP)
            else: A("s_mul_i32 s%d, s44, %d" % (OP, strideW))
            A("s_add_u32 s%d, s%d, s%d" % (OP, OP, bW))
            A("s_mul_i32 s44, s44, %d" % (36 * PAIR))
            A("s_add_u32 s%d, s44, s%d" % (QA[k], bQ))
            if extra:
                A("s_add_u32 s%d, s44, s%d" % (XA[k], extra))
                A("s_add_u32 s%d, s%d, s%d" % (MX[k], RING, M0X))
            A("s_add_u32 s%d, s%d, s%d" % (MQ[k], RING, m0q))
            A("s_add_u32 s62, s%d, s%d" % (RING, M0P))
            for t in slot_adv(ph): A(t)
        def body(k, last):
            A("s_mov_b32 m0, s62")
            A("s_waitcnt vmcnt(%d)" % wait)
            A("s_barrier")
            for m in range(4):
                A("buffer_load_dwordx4 v%d, s[4:7], s%d offen offset:%d lds" % (vW + m, OP, m * 1024))
            A("s_mov_b32 m0, s%d" % MQ[k])
            if not last: prep(1 - k)
            else: A("s_nop 0")
            if k == 1 and not last:
                A("s_sub_u32 s%d, s%d, 1" % (CNT, CNT))
                A("s_cmp_lg_u32 s%d, 0" % CNT)
            for m in range(nX):
                A("buffer_load_dwordx4 v28, s[8:11], s%d offen offset:%d %s lds" % (QA[k], m * 1024, HL))
            if extra:
                A("s_mov_b32 m0, s%d" % MX[k])
                A("s_nop 0")
                A("buffer_load_dwordx4 v28, s[8:11], s%d offen %s lds" % (XA[k], HL))
        prep(0)
        A("s_mov_b32 s%d, %d" % (CNT, count - 1))
        A.label(label)
        body(0, False); body(1, False)
        A("s_cbranch_scc1 %s" % label)
        body(0, False); body(1, True)
    def sel2():
        A("s_add_u32 s44, s%d, 6" % N2)
        A("s_cmp_lt_u32 s44, 32")
        A("s_cselect_b32 s44, s44, s%d" % M6)
        A("s_cmp_eq_u32 s%d, s%d" % (M6, DT))
        A("s_cselect_b32 s44, s44, s%d" % N2)
        A("s_add_u32 s%d, s%d, 1" % (N2, N2))
        A("s_add_u32 s%d, s%d, 1" % (M6, M6))
        A("s_cmp_eq_u32 s%d, 6" % M6)
        A("s_cselect_b32 s%d, 0, s%d" % (M6, M6))
    def sel3():
        A("s_and_b32 s%d, s%d, 3" % (OP, N3))
        A("s_add_u32 s44, s%d, 4" % N3)
        A("s_cmp_lt_u32 s44, 18")
        A("s_cselect_b32 s44, s44, s%d" % OP)
        A("s_cmp_eq_u32 s%d, s%d" % (OP, PH3))
        A("s_cselect_b32 s44, s44, s%d" % N3)
        A("s_add_u32 s%d, s%d, 1" % (N3, N3))
    issue1(); issue1()
    ids23(); lane23(); setup2()
    if cfg.pro == 5:
        issue1(); issue1(); issue1()
        step(28, None); step(21, None)
    elif cfg.pro == 4:
        issue1(); issue1()
        step(21, issue1); step(21, None)
    else:
        issue1()
        step(14, issue1); step(14, issue1)
    lloop("l1_loop", 4, 14, issue1)
    A("s_cmp_ge_u32 s%d, 27" % SLOTR)
    A("s_cbranch_scc1 l1_c")
    srd2()
    step(14, lambda: issue2("W", False))
    step(11, lambda: issue2("X"))
    step(7, lambda: (issue2(), issue2()))
    setup3()
    step(14, issue2); step(14, issue2)
    A("s_branch l2_main")
    A.label("l1_c")
    step(14, None); step(7, None); step(0, None)
    A("v_mov_b32 v41, %d" % SIG)
    A("ds_read_b64 v[%d:%d], v41" % (VT, VT + 1))
    srd(A, FSRD, PWS, SZ_FL, WS_FL)
    srd(A, 12, PWS, SZ_ST, WS_ST)
    A("s_waitcnt lgkmcnt(0)")
    A("s_barrier")
    A("s_branch scan_entry")
    A.label("l2_entry")
    A("s_sub_u32 s%d, s%d, 4" % (LW, WAVE))
    A("s_lshl_b32 s%d, s%d, 12" % (M0P, LW))
    A("s_mul_i32 s%d, s%d, 3072" % (M0Q, LW))
    A("s_add_u32 s%d, s%d, 16384" % (M0Q, M0Q))
    lane23(); setup2(); srd2()
    A("s_mov_b32 s62, s%d" % RING)
    A("s_waitcnt vmcnt(0)")
    issue2("W"); issue2("W"); issue2("W")
    A("s_mov_b32 s%d, s62" % RING)
    A("s_mov_b32 s%d, 0\ns_mov_b32 s%d, 0" % (N2, M6))
    setup3()
    A("s_barrier")
    issue2("X"); issue2("X"); issue2("X")
    step(6, issue2); step(10, issue2)
    A.label("l2_main")
    step(14, issue2)
    if cfg.fast: fast_loop("l2_loop", 12, 14, sel2, 2, 20, 3, 64 * 9216, B2P, B2Q, M0Q, None)
    else: lloop("l2_loop", 12, 14, issue2, 2)
    def lgate_issue(off):
        sk = A.newlabel("lg")
        A("s_cmp_lg_u32 s%d, 0" % LW)
        A("s_cbranch_scc1 %s" % sk)
        gate_issue(A, off)
        A.label(sk)
    def lgate_wait(off, mask, word, younger):
        ot = A.newlabel("lg"); dn = A.newlabel("lg"); lp = A.newlabel("lg")
        A("s_cmp_lg_u32 s%d, 0" % LW)
        A("s_cbranch_scc1 %s" % ot)
        gate_check(A, off, mask, first_wait=younger)
        A("v_mov_b32 v40, 1")
        A("ds_write_b32 v41, v40 offset:%d" % (8 + 4 * word))
        A("s_branch %s" % dn)
        A.label(ot)
        A("s_mov_b32 s59, 0")
        A.label(lp)
        A("ds_read_b32 v40, v41 offset:%d" % (8 + 4 * word))
        A("s_add_u32 s59, s59, 1")
        A("s_waitcnt lgkmcnt(0)")
        A("v_readfirstlane_b32 s58, v40")
        A("s_cmp_gt_u32 s59, %d" % (SPIN * 64))
        A("s_cbranch_scc1 %s" % dn)
        A("s_cmp_eq_u32 s58, 0")
        A("s_cbranch_scc1 %s" % lp)
        A.label(dn)
    XR = 150; DS = 162; STT = 168; B2 = 172; BASE = 48; PR = 80; OWN = 120
    def base_ld():
        A("v_and_b32 v42, 15, v2")
        A("v_lshrrev_b32 v43, 4, v2")
        A("v_mul_u32_u24 v46, 1152, v42")
        A("v_lshl_add_u32 v46, v43, 3, v46")
        A("v_lshlrev_b32 v47, 1, v46")
        A("v_lshlrev_b32 v43, 3, v43")
        A("v_lshlrev_b32 v45, 3, v42")
        A("v_lshlrev_b32 v42, 1, v42")
        A("s_lshl_b32 s44, s%d, 3" % ST)
        A("s_lshl_b32 s45, s%d, 1" % SP)
        A("s_add_u32 s44, s44, s45")
        A("s_mul_i32 s45, s%d, 9" % D3)
        A("s_add_u32 s45, s45, s%d" % LW)
        A("s_lshl_b32 s45, s45, 5")
        A("s_mul_i32 s50, s44, %d" % (16 * 1152))
        A("s_add_u32 s50, s50, s45")
        A("s_add_u32 s51, s50, %d" % (16 * 1152))
        A("s_lshl_b32 s48, s44, 7")
        A("s_lshl_b32 s49, s44, 5")
        srd(A, 12, PWS, SZ_ST, WS_ST)
        for aa in range(2):
            A("buffer_load_dwordx2 %s, v45, s[12:15], s48 offen offset:%d %s" % (v(STT + 2 * aa, 2), aa * 128, HL))
        srd(A, 12, PB2, 4096)
        for aa in range(2):
            A("buffer_load_ushort v%d, v42, s[12:15], s49 offen offset:%d" % (B2 + 2 * aa, aa * 32))
        srd(A, 12, PDSK, 1152)
        for n in range(3):
            A("buffer_load_dwordx2 %s, v43, s[12:15], s45 offen offset:%d" % (v(DS + 2 * n, 2), n * 128))
        srd(A, 12, PX, SZ_X)
        sk = A.newlabel("bl")
        for n in range(3):
            if n == 2:
                A("s_cmp_lg_u32 s%d, 0" % LW)
                A("s_cbranch_scc1 %s" % sk)
            for aa in range(2):
                A("buffer_load_dwordx2 %s, v46, s[12:15], s%d offen offset:%d" % (v(XR + 4 * n + 2 * aa, 2), (50, 51)[aa], n * 128))
        A.label(sk)
        A("s_lshl_b32 s50, s50, 1")
        A("s_lshl_b32 s51, s51, 1")
    def base_calc():
        for aa in range(2): A("v_lshlrev_b32 v%d, 16, v%d" % (B2 + 2 * aa, B2 + 2 * aa))
        for n in range(3):
            dd = 76; xx = 116; tt = 144
            for h in range(2):
                A("v_lshlrev_b32 v%d, 16, v%d" % (dd + 2 * h, DS + 2 * n + h))
                A("v_and_b32 v%d, 0xffff0000, v%d" % (dd + 2 * h + 1, DS + 2 * n + h))
            for aa in range(2):
                b = BASE + 8 * n + 4 * aa
                for h in range(2):
                    A("v_lshlrev_b32 v%d, 16, v%d" % (xx + 2 * h, XR + 4 * n + 2 * aa + h))
                    A("v_and_b32 v%d, 0xffff0000, v%d" % (xx + 2 * h + 1, XR + 4 * n + 2 * aa + h))
                for r in range(4): A("v_mul_f32 v%d, v%d, v%d" % (tt + r, dd + r, STT + 2 * aa + 1))
                for r in range(4): A("v_add_f32 v%d, v%d, v%d" % (b + r, xx + r, B2 + 2 * aa))
                for r in range(4): A("v_sub_f32 v%d, v%d, v%d" % (xx + r, xx + r, STT + 2 * aa))
                for r in range(4): A("v_fmac_f32 v%d, v%d, v%d" % (b + r, xx + r, tt + r))
    GT, GU = 60, 61
    def gates3():
        A("v_mov_b32 v41, %d" % SIG)
        A("ds_read_b64 v[%d:%d], v41" % (VT, VT + 1))
        srd(A, FSRD, PWS, SZ_FL, WS_FL)
        A("s_lshr_b32 s%d, s%d, 1" % (GT, ST))
        A("s_lshl_b32 s%d, s%d, 9" % (GT, GT))
        A("s_add_u32 s%d, s%d, %d" % (GT, GT, FL_T))
        A("s_lshl_b32 s%d, s%d, 2" % (GU, D3))
        A("s_add_u32 s%d, s%d, s%d" % (GU, GU, SP))
        A("s_lshl_b32 s%d, s%d, 9" % (GU, GU))
        A("s_add_u32 s%d, s%d, %d" % (GU, GU, FL_U))
        A("s_waitcnt lgkmcnt(0)")
    gates3()
    step(14, issue2)
    step(14, issue2)
    base_ld()
    step(14 + 11, (lambda: lgate_issue(GT)) if cfg.pollat == 29 else None)
    step(7 + 11, (lambda: lgate_issue(GT)) if cfg.pollat == 30 else None)
    A("s_cmp_lg_u32 s%d, 0" % LW)
    A("s_cbranch_scc1 l2_e1")
    A("s_waitcnt vmcnt(0)")
    A("v_cmp_ne_u64 vcc, v[%d:%d], v[%d:%d]" % (VP, VP + 1, VT, VT + 1))
    A("s_and_b32 vcc_hi, vcc_hi, 15")
    A("s_cmp_lg_u64 vcc, 0")
    A("s_cbranch_scc1 l2_e1")
    A("v_mov_b32 v40, 1")
    A("ds_write_b32 v41, v40 offset:8")
    A("s_waitcnt lgkmcnt(0)")
    A.label("l2_e1")
    step(11, None)
    A("ds_read_b32 v40, v41 offset:8")
    A("s_waitcnt lgkmcnt(0)")
    A("v_readfirstlane_b32 s58, v40")
    A("s_cmp_lg_u32 s58, 0")
    A("s_cbranch_scc1 l3_early")
    lgate_issue(GT)
    A("s_barrier")
    A.label("l3_main")
    stamp(A, cfg, 10)
    lgate_wait(GT, (1 << 36) - 1, 0, 0)
    A.label("l3_main2")
    stamp(A, cfg, 11)
    A("s_cmp_ge_u32 s%d, 2" % LW)
    A("s_cbranch_scc1 l3b")
    A("s_branch l3a")
    A.label("l3_early")
    A("s_cmp_ge_u32 s%d, 2" % LW)
    A("s_cbranch_scc1 l3b_early")
    for (sfx, extra, per) in (("a", True, 9), ("b", False, 8)):
        A.label("l3%s_early" % sfx)
        issue3f(extra)
        if cfg.xpos: issue3f(extra)
        A("s_barrier")
        A("s_branch l3%s_j" % sfx)
        A.label("l3%s" % sfx)
        issue3f(extra)
        if cfg.xpos: issue3f(extra)
        A.label("l3%s_j" % sfx)
        NT = cfg.nt3
        if NT:
            issue3f(extra); issue3f(extra)
            if not cfg.xpos: issue3f(extra)
            srd(A, 12, PW2, SZ_W)
            A("s_mul_i32 s44, s%d, 18" % SP)
            A("s_add_u32 s44, s44, s%d" % PH3)
            A("s_lshl_b32 s44, s44, 1")
            A("s_and_b32 s45, s%d, 1" % LW)
            A("s_add_u32 s44, s44, s45")
            A("s_lshr_b32 s45, s%d, 1" % LW)
            A("s_lshl_b32 s45, s45, 3")
            A("s_add_u32 s44, s44, s45")
            A("s_add_u32 s44, s44, %d" % (8 * cfg.nt3s))
            A("s_lshl_b32 s44, s44, 17")
            A("s_lshl_b32 s45, s%d, 8" % ST)
            A("s_add_u32 s44, s44, s45")
            A("v_lshrrev_b32 v42, 1, v2")
            A("v_lshlrev_b32 v42, 12, v42")
            A("v_and_b32 v43, 1, v2")
            A("v_lshl_add_u32 v42, v43, 7, v42")
            for k in range(NT):
                A("buffer_load_dword v43, v42, s[12:15], s44 offen")
                A("s_add_u32 s44, s44, %d" % (16 << 17))
            A("s_waitcnt vmcnt(%d)" % (4 * per + NT))
            base_calc()
            step(3 * per + NT, None); step(2 * per + NT, None)
            sk = A.newlabel("nf"); sk2 = A.newlabel("nf")
            A("s_cmp_eq_u32 s%d, 4" % NF)
            A("s_cbranch_scc1 %s" % sk)
            step(per + NT, lambda: issue3f(extra))
            switch3u()
            A("s_mov_b32 s62, s%d" % RING)
            step(per + NT, lambda: issue3u(extra, "W"))
            A("s_waitcnt vmcnt(4)")
            A("s_branch %s" % sk2)
            A.label(sk)
            switch3u()
            A("s_mov_b32 s62, s%d" % RING)
            par3[0] -= 1
            step(per + NT, lambda: issue3u(extra, "W"))
            A.label(sk2)
            step(4 + NT, lambda: (lgate_issue(GU), issue3u(extra, "W")))
        else:
            issue3f(extra)
            if not cfg.xpos: issue3f(extra)
            A("s_waitcnt vmcnt(%d)" % (3 * per))
            base_calc()
            step(2 * per, lambda: issue3f(extra)); step(2 * per, None)
            sk = A.newlabel("nf")
            A("s_cmp_eq_u32 s%d, 4" % NF)
            A("s_cbranch_scc1 %s" % sk)
            step(per, lambda: issue3f(extra))
            A.label(sk)
            switch3u()
            A("s_mov_b32 s62, s%d" % RING)
            step(per, lambda: issue3u(extra, "W"))
            step(4, lambda: (lgate_issue(GU), issue3u(extra, "W")))
        stamp(A, cfg, 12)
        lgate_wait(GU, (1 << 54) - 1, 1, 4)
        stamp(A, cfg, 13)
        A("s_mov_b32 s%d, s62" % RING)
        A("s_mov_b32 s%d, 0" % N3)
        issue3u(extra, "X"); issue3u(extra, "X")
        step(per - 4, lambda: issue3u(extra))
        step(per, lambda: issue3u(extra))
        if cfg.fast:
            A("s_add_u32 s60, s%d, s%d" % (B3U, M0P))
            A("s_add_u32 s61, s%d, s%d" % (B3U, M0X))
            A("s_sub_u32 s61, s61, 16384")
            fast_loop("l3%s_u" % sfx, 7, per, sel3, 3, 24, 4, 262144, B3P, 60, M0Q3, 61 if extra else None)
        else: lloop("l3%s_u" % sfx, 7, per, lambda: issue3u(extra), 2)
        step(per, None); step(0, None)
        A("s_branch fin")
    A.label("l3_entry")
    A("s_sub_u32 s%d, s%d, 4" % (LW, WAVE))
    A("s_lshl_b32 s%d, s%d, 12" % (M0P, LW))
    lane23(); setup3(); gates3()
    lgate_issue(GT)
    lgate_wait(GT, (1 << 36) - 1, 0, 0)
    base_ld()
    A("s_branch l3_main2")

    A.label("fin")
    stamp(A, cfg, 7)
    A("v_lshlrev_b32 v9, 4, v2")
    A("s_lshl_b32 s44, s%d, 2" % ST)
    A("s_add_u32 s44, s44, s%d" % D3)
    A("s_lshl_b32 s44, s44, 2")
    A("s_add_u32 s44, s44, s%d" % SP)
    A("s_lshl_b32 s43, s44, 7")
    A("s_add_u32 s43, s43, %d" % FL_X)
    A("s_mul_i32 s47, s44, %d" % (4 * 9216))
    A("s_lshl_b32 s46, s%d, 10" % LW)
    A("s_add_u32 s47, s47, s46")
    for j in range(3):
        A("s_add_u32 s48, s%d, %d" % (SP, 1 + j))
        A("s_and_b32 s48, s48, 3")
        A("s_mul_i32 s48, s48, 9216")
        A("s_add_u32 s%d, s47, s48" % (40 + j))
    A("v_add_u32 v15, 4096, v9")
    A("v_add_u32 v18, 8192, v9")
    A("s_lshl_b32 s46, s%d, 11" % LW)
    A("s_add_u32 s46, s46, %d" % LDS_OWN)
    A("v_add_u32 v10, s46, v9")
    A("s_lshl_b32 s52, 1, s%d" % SP)
    A("s_xor_b32 s52, s52, 15")
    A("s_mov_b32 s53, 0")
    srd(A, 12, PWS, SZ_EX, WS_EX)
    srd(A, 8, POUT, 2048 * 576 * 4)
    A("v_cmp_gt_u32 vcc, 4, v2")
    A("s_nop 1")
    A("v_cndmask_b32 v%d, 0, v%d, vcc" % (VL8, VL8))
    def own():
        for n in range(3):
            for aa in range(2):
                A("ds_read_b128 %s, v10 offset:%d" % (v(OWN + 8 * n + 4 * aa, 4), n * 8192 + aa * 1024))
        A("s_waitcnt lgkmcnt(0)")
        for k in range(12):
            A("v_pk_add_f32 %s, %s, %s" % (v(BASE + 2 * k, 2), v(BASE + 2 * k, 2), v(OWN + 2 * k, 2)))
    A("s_barrier")
    stamp(A, cfg, 8)
    if cfg.xpoll == 0:
        gate_issue(A, 43)
        own()
        gate_check(A, 43, "s[52:53]")
    else:
        lgate_issue(43)
        own()
        A("s_cmp_lg_u32 s%d, 0" % LW)
        A("s_cbranch_scc1 fin_w")
        gate_check(A, 43, "s[52:53]")
        A.label("fin_w")
        A("s_barrier")
    stamp(A, cfg, 9)
    def ld(n):
        for j in range(3):
            A("buffer_load_dwordx4 %s, v%d, s[12:15], s%d offen sc1" % (v(PR + (n * 3 + j) * 4, 4), (9, 15, 18)[n], 40 + j))
    def fin(n):
        b = BASE + 8 * n
        for j in range(3):
            p = PR + (n * 3 + j) * 4
            for k in range(4):
                A("v_lshlrev_b32 v%d, 16, v%d" % (28 + 2 * (k % 2), p + k))
                A("v_and_b32 v%d, 0xffff0000, v%d" % (29 + 2 * (k % 2), p + k))
                A("v_pk_add_f32 %s, %s, %s" % (v(b + 2 * k, 2), v(b + 2 * k, 2), v(28 + 2 * (k % 2), 2)))
    def st(n):
        for aa in range(2):
            A("buffer_store_dwordx4 %s, v47, s[8:11], s%d offen offset:%d %s" % (v(BASE + 8 * n + 4 * aa, 4), (50, 51)[aa], n * 256, cfg.sto))
    A("s_cmp_lg_u32 s%d, 0" % LW)
    A("s_cbranch_scc1 fin_b")
    ld(2); ld(0); ld(1)
    A("s_waitcnt vmcnt(6)"); fin(2)
    A("s_waitcnt vmcnt(3)"); fin(0)
    A("s_waitcnt vmcnt(0)"); st(2); st(0); fin(1); st(1)
    A("s_branch k_done")
    A.label("fin_b")
    ld(0); ld(1)
    A("s_waitcnt vmcnt(3)"); fin(0)
    A("s_waitcnt vmcnt(0)"); st(0); fin(1); st(1)
    A.label("k_done")
    stamp_end(A, cfg)
    A.label("k_end")
    A("s_endpgm")

    KB = 29
    PFI = 23
    def kbcalc():
        A("s_sub_u32 s%d, s%d, 19" % (KB, SLOTR))
        A("s_lshl_b32 s%d, s%d, 3" % (KB, KB))
        A("s_add_u32 s%d, s%d, s%d" % (KB, KB, XCD))
    A.label("ln_lo")
    kbcalc()
    pubH()
    biasld()
    A("s_barrier")
    stamp(A, cfg, 2)
    A("s_branch ln_join")
    A.label("ln_hi")
    kbcalc()
    A("v_mov_b32 v216, 0\nv_mov_b32 v217, 0\nv_mov_b32 v215, 0")
    ids23()
    A("v_lshlrev_b32 v120, 7, v2")
    A("s_waitcnt lgkmcnt(0)")
    srd(A, FSRD, PWS, SZ_FL, WS_FL)
    srd(A, 12, PWS, SZ_ST, WS_ST)
    A("s_lshl_b32 s44, s%d, 2" % KB)
    A("s_add_u32 s44, s44, s%d" % WAVE)
    A("s_sub_u32 s44, s44, 4")
    if cfg.csb:
        A("s_sub_u32 s45, s44, 112")
        A("s_cbranch_scc1 ln_ncs")
        A("s_cmp_ge_u32 s45, 72")
        A("s_cselect_b32 s4, s%d, s%d" % (PBIM, PBRE))
        A("s_cselect_b32 s5, s%d, s%d" % (PBIM + 1, PBRE + 1))
        A("s_cselect_b32 s46, 72, 0")
        A("s_cselect_b32 s47, 4, 0")
        A("s_mov_b32 s6, %d\ns_mov_b32 s7, 0x00020000" % SZ_C)
        A("s_sub_u32 s45, s45, s46")
        A("s_mul_i32 s46, s45, %d" % (8 * 1152))
        A("v_lshrrev_b32 v3, 3, v2")
        A("v_and_b32 v4, 7, v2")
        A("v_mul_u32_u24 v5, 1152, v3")
        A("v_lshl_add_u32 v5, v4, 4, v5")
        for j in range(9):
            A("buffer_load_dwordx4 %s, v5, s[4:7], s46 offen offset:%d" % (v(16 + 4 * j, 4), j * 128))
        A("s_lshl_b32 s45, s45, 6")
        A("s_add_u32 s45, s45, s47")
        A("s_add_u32 s45, s45, 16384")
        A("v_lshlrev_b32 v3, 3, v3")
        A("s_mov_b32 s46, 0x3f803f80")
        for q in range(4): A("v_mov_b32 v%d, 0" % (8 + q))
        for j in range(9):
            A("s_waitcnt vmcnt(%d)" % (8 - j))
            for q in range(4): A("v_dot2_f32_bf16 v%d, v%d, s46, v%d" % (8 + q, 16 + 4 * j + q, 8 + q))
        A("s_nop 2")
        A("v_add_f32 v8, v8, v9\nv_add_f32 v10, v10, v11\nv_add_f32 v8, v8, v10")
        for dpp in ("quad_perm:[1,0,3,2]", "quad_perm:[2,3,0,1]", "row_half_mirror"):
            A("s_nop 1")
            A("v_add_f32_dpp v8, v8, v8 %s row_mask:0xf bank_mask:0xf" % dpp)
        A("s_mov_b32 exec_lo, 0x01010101\ns_mov_b32 exec_hi, 0x01010101")
        A("buffer_store_dword v8, v3, s[12:15], s45 offen sc1")
        A("s_mov_b64 exec, -1")
        A("s_waitcnt vmcnt(0)")
        A("s_branch ln_nw")
        A.label("ln_ncs")
    A("s_mov_b32 s4, s%d\ns_mov_b32 s5, s%d\ns_mov_b32 s6, 0\ns_mov_b32 s45, 0" % (PB1, PB1 + 1))
    for (w, ptr, sz) in ((32, PB1, 9216), (33, PB1, 9216), (34, PB2, 4096), (35, PDSK, 1152), (36, PLRE, 1152), (37, PLIM, 1152), (38, PLOGDT, 1152)):
        A("s_cmp_eq_u32 s44, %d" % w)
        A("s_cselect_b32 s4, s%d, s4" % ptr)
        A("s_cselect_b32 s5, s%d, s5" % (ptr + 1))
        A("s_cselect_b32 s6, %d, s6" % sz)
        if w == 33: A("s_cselect_b32 s45, 8192, s45")
    A("s_mov_b32 s7, 0x00020000")
    A("s_cmp_eq_u32 s6, 0")
    A("s_cbranch_scc1 ln_nt")
    A("buffer_load_dword v121, v120, s[4:7], s45 offen")
    A.label("ln_nt")
    if cfg.codepf:
        A("s_cmp_ge_u32 s44, 32")
        A("s_cbranch_scc1 ln_nc")
        A("s_getpc_b64 s[46:47]")
        A.label("ln_pc")
        A("s_sub_u32 s46, s46, ln_pc-%s" % KN)
        A("s_subb_u32 s47, s47, 0")
        A("s_and_b32 s45, s44, 3")
        A("s_lshl_b32 s45, s45, 13")
        A("v_add_u32 v122, s45, v120")
        A("s_mov_b32 s45, text_end-%s" % KN)
        for r in range(2):
            A("v_cmp_gt_u32 vcc, s45, v122")
            A("s_and_saveexec_b64 s[48:49], vcc")
            A("s_cbranch_execz ln_nc2")
            A("global_load_dword v%d, v122, s[46:47]" % (123 + r))
            A("v_add_u32 v122, 32768, v122")
        A.label("ln_nc2")
        A("s_mov_b64 exec, -1")
        A.label("ln_nc")
    if cfg.tlbw:
        A("s_cmp_lg_u32 s%d, 27" % SLOTR)
        A("s_cbranch_scc1 ln_ntl")
        A("s_mov_b32 s4, s%d\ns_mov_b32 s5, s%d\ns_mov_b32 s6, %d\ns_mov_b32 s45, 19" % (PW1, PW1 + 1, SZ_W))
        for (w, ptr, sz, sh) in ((5, PW2, SZ_W, 19), (6, PWS, WS_EX + SZ_EX, 20), (7, POUT, 2048 * 576 * 4, 17)):
            A("s_cmp_eq_u32 s%d, %d" % (WAVE, w))
            A("s_cselect_b32 s4, s%d, s4" % ptr)
            A("s_cselect_b32 s5, s%d, s5" % (ptr + 1))
            A("s_cselect_b32 s6, %d, s6" % sz)
            A("s_cselect_b32 s45, %d, s45" % sh)
        A("s_mov_b32 s7, 0x00020000")
        A("v_lshlrev_b32 v122, s45, v2")
        A("buffer_load_dword v121, v122, s[4:7], 0 offen sc1")
        A("s_cmp_ge_u32 s%d, 6" % WAVE)
        A("s_cselect_b32 s4, s%d, s%d" % (PCIM, PCRE))
        A("s_cselect_b32 s5, s%d, s%d" % (PCIM + 1, PCRE + 1))
        A("s_mov_b32 s6, %d" % SZ_C)
        A("v_lshlrev_b32 v122, 16, v2")
        A("buffer_load_dword v121, v122, s[4:7], 0 offen")
        A.label("ln_ntl")
    srd(A, 4, PW1, SZ_W)
    A("s_sub_u32 s45, s44, 40")
    A("s_cbranch_scc1 ln_nw")
    A("s_lshl_b32 s45, s45, 13")
    for r in range(cfg.lnpf):
        A("buffer_load_dword v121, v120, s[4:7], s45 offen")
        A("s_add_u32 s45, s45, %d" % (NLP * 8192))
    A.label("ln_nw")
    A("s_barrier")
    tag_issue(A)
    A("s_barrier")
    tag_check(A)
    A.label("ln_join")
    A("v_lshlrev_b32 v120, 7, v2")
    A("s_lshl_b32 s%d, s%d, 3" % (PFI, KB))
    A("s_add_u32 s%d, s%d, s%d" % (PFI, PFI, WAVE))
    for r in range(cfg.pf_a):
        if r == 0:
            A("s_add_u32 s55, s%d, %d" % (PFI, L_C))
            A("s_add_u32 s3, s%d, %d" % (PFI, (NLP * cfg.lnpf - 162) & 0xffffffff))
            A("s_cmp_lt_u32 s%d, 162" % PFI)
            A("s_cselect_b32 s3, s55, s3")
        else:
            A("s_add_u32 s3, s%d, %d" % (PFI, NLP * cfg.lnpf - 162 + 512 * r))
        pf_decode(A, 3, 60, 58, 54)
        A("buffer_load_dword v121, v120, s[60:63], s58 offen")
    A("s_cmp_ge_u32 s%d, 4" % WAVE)
    A("s_cbranch_scc1 l2_entry")
    A("s_cmp_lg_u32 s%d, 0" % WAVE)
    A("s_cbranch_scc1 ln_g")
    A("s_sleep %d" % cfg.bsleep)
    wide_issue(A)
    wide_check(A)
    A.label("ln_g")
    A("s_waitcnt vmcnt(0)")
    A("s_barrier")
    stamp(A, cfg, 3)
    A("s_branch c2_entry")

    A.label("scan_entry")
    CB = 29
    A("s_sub_u32 s%d, s%d, 27" % (CB, SLOTR))
    A("s_lshl_b32 s%d, s%d, 3" % (CB, CB))
    A("s_add_u32 s%d, s%d, s%d" % (CB, CB, XCD))
    A("s_mov_b32 s%d, 0" % RING)
    A("v_lshlrev_b32 v56, 7, v2")
    A("s_lshl_b32 s%d, s%d, 3" % (PFI, CB))
    A("s_add_u32 s%d, s%d, s%d" % (PFI, PFI, WAVE))
    A("s_add_u32 s%d, s%d, %d" % (PFI, PFI, L_W2 if cfg.pf_a else L_C))
    def scpf(lo=0):
        pf_decode(A, PFI, 60, 58, 54, lo=lo)
        A("buffer_load_dword v57, v56, s[60:63], s58 offen")
        A("s_add_u32 s%d, s%d, 320" % (PFI, PFI))
    for _ in range(cfg.pf_a2): scpf(L_C)
    A("s_cmp_lt_u32 s%d, 36" % CB)
    A("s_cbranch_scc1 scan2")
    for _ in range(sum(cfg.scm) + cfg.pf_b): scpf(L_C)
    A("s_branch scan_done")
    A.label("scan2")
    A("v_and_b32 v3, 7, v0")
    A("v_lshrrev_b32 v4, 3, v0")
    A("v_lshlrev_b32 v5, 10, v4")
    A("v_and_b32 v6, 3, v3")
    A("v_lshl_add_u32 v5, v6, 4, v5")
    A("v_lshrrev_b32 v6, 2, v3")
    A("v_lshl_add_u32 v5, v6, 16, v5")
    A("s_lshl_b32 s40, s%d, 17" % CB)
    A("v_lshlrev_b32 v9, 2, v3")
    A("s_lshl_b32 s41, s%d, 5" % CB)
    for (r, ptr) in ((10, PLRE), (11, PLIM), (12, PLOGDT)):
        srd(A, 4, ptr, 1152)
        A("buffer_load_dword v%d, v9, s[4:7], s41 offen" % r)
    L = [18, 20]; L32 = [22, 24]; L256 = [26, 28]; C2 = [30, 32]
    A("s_mov_b32 s44, 0x%x" % f2u(math.log2(math.e)))
    A("s_mov_b32 s45, 0x%x" % f2u(1.0 / (2 * math.pi)))
    A("s_waitcnt vmcnt(0)")
    def sq(d, s_):
        A("v_mul_f32 v40, v%d, v%d" % (s_ + 1, s_ + 1))
        A("v_mul_f32 v41, v%d, v%d" % (s_, s_ + 1))
        A("v_fma_f32 v%d, v%d, v%d, -v40" % (d, s_, s_))
        A("v_add_f32 v%d, v41, v41" % (d + 1))
    for c in range(2):
        for (d, s_) in ((34, 10), (35, 11), (36, 12)):
            if c == 0: A("v_lshlrev_b32 v%d, 16, v%d" % (d, s_))
            else: A("v_and_b32 v%d, 0xffff0000, v%d" % (d, s_))
        A("v_mul_f32 v36, s44, v36")
        A("v_exp_f32 v36, v36")
        A("s_nop 0")
        round_bf16(A, 36, 36)
        A("v_mul_f32 v37, v36, v34")
        A("v_mul_f32 v38, v36, v35")
        A("v_mul_f32 v37, s44, v37")
        A("v_mul_f32 v38, s45, v38")
        A("v_exp_f32 v37, v37")
        A("v_fract_f32 v38, v38")
        A("v_cos_f32 v39, v38")
        A("v_sin_f32 v38, v38")
        A("s_nop 0")
        A("v_mul_f32 v%d, v37, v39" % L[c])
        A("v_mul_f32 v%d, v37, v38" % (L[c] + 1))
        sq(L32[c], L[c])
        for _ in range(4): sq(L32[c], L32[c])
        sq(L256[c], L32[c])
        for _ in range(2): sq(L256[c], L256[c])
        A("v_add_f32 v37, -1.0, v%d" % L[c])
        A("v_mul_f32 v38, v34, v34")
        A("v_fmac_f32 v38, v35, v35")
        A("v_rcp_f32 v38, v38")
        A("v_mul_f32 v39, v37, v34")
        A("v_fmac_f32 v39, v%d, v35" % (L[c] + 1))
        A("v_mul_f32 v40, v%d, v34" % (L[c] + 1))
        A("v_fma_f32 v40, -v37, v35, v40")
        A("v_add_f32 v38, v38, v38")
        A("v_mul_f32 v%d, v39, v38" % C2[c])
        A("v_mul_f32 v%d, v40, v38" % (C2[c] + 1))
    A("s_mul_i32 s43, s%d, 21846" % CB)
    A("s_lshr_b32 s43, s43, 16")
    A("s_lshl_b32 s43, s43, 9")
    A("s_add_u32 s43, s43, %d" % FL_G)
    A("s_cmp_lg_u32 s%d, 0" % WAVE)
    A("s_cbranch_scc1 scan_g")
    gate_issue(A, 43)
    gate_check(A, 43, (1 << 64) - 1)
    A.label("scan_g")
    A("s_barrier")
    stamp(A, cfg, 3)
    srd(A, 4, PWS, SZ_G, WS_G)
    srd(A, 12, PWS, SZ_HT, WS_HT)
    G0 = 56; RW = 184
    for j in range(16):
        A("buffer_load_dwordx4 %s, v5, s[4:7], s40 offen offset:%d %s" % (v(RW + 4 * j, 4), j * 64, cfg.gl))
    LDS_AGG = 9216; LDS_WAGG = LDS_AGG + 8192
    H = 10; T2 = 34
    def stepf(Lr, src):
        for c in range(2):
            A("v_pk_fma_f32 %s, %s, %s, %s op_sel_hi:[0,1,1]" % (v(T2 + 2 * c, 2), v(Lr[c], 2), v(H + 2 * c, 2), v(src + 2 * c, 2)))
        for c in range(2):
            A("v_pk_fma_f32 %s, %s, %s, %s op_sel:[1,1,0] op_sel_hi:[1,0,1] neg_lo:[1,0,0]" % (v(H + 2 * c, 2), v(Lr[c], 2), v(H + 2 * c, 2), v(T2 + 2 * c, 2)))
    for i in range(4): A("v_mov_b32 v%d, 0" % (H + i))
    for j in range(16):
        A("s_waitcnt vmcnt(%d)" % (15 - j))
        for e in range(2):
            g = G0 + 4 * (2 * j + e)
            for c in range(2):
                A("v_lshlrev_b32 v%d, 16, v%d" % (g + 2 * c, RW + 4 * j + 2 * e + c))
                A("v_and_b32 v%d, 0xffff0000, v%d" % (g + 2 * c + 1, RW + 4 * j + 2 * e + c))
        for e in range(2):
            g = G0 + 4 * (2 * j + e)
            for c in range(2):
                A("v_pk_mul_f32 %s, %s, %s op_sel_hi:[0,1]" % (v(40 + 4 * e + 2 * c, 2), v(C2[c], 2), v(g + 2 * c, 2)))
        for e in range(2):
            g = G0 + 4 * (2 * j + e)
            for c in range(2):
                A("v_pk_fma_f32 %s, %s, %s, %s op_sel:[1,1,0] op_sel_hi:[1,0,1] neg_lo:[1,0,0]" % (v(g + 2 * c, 2), v(C2[c], 2), v(g + 2 * c, 2), v(40 + 4 * e + 2 * c, 2)))
        for e in range(2): stepf(L, G0 + 4 * (2 * j + e))
    A("v_lshlrev_b32 v8, 7, v2")
    def scpf2():
        pf_decode(A, PFI, 60, 58, 54, lo=L_C)
        A("buffer_load_dword v9, v8, s[60:63], s58 offen")
        A("s_add_u32 s%d, s%d, 320" % (PFI, PFI))
    for _ in range(cfg.scm[0] + cfg.scm[1]): scpf2()
    stamp(A, cfg, 4)
    A("v_lshlrev_b32 v15, 4, v3")
    A("v_lshlrev_b32 v17, 4, v0")
    A("ds_write_b128 v17, %s offset:%d" % (v(H, 4), LDS_AGG))
    A("s_lshl_b32 s44, s%d, 10" % WAVE)
    A("v_add_u32 v17, s44, v15")
    A("s_waitcnt lgkmcnt(0)")
    AG = 184; WG_ = 216
    for j in range(8): A("ds_read_b128 %s, v17 offset:%d" % (v(AG + 4 * j, 4), LDS_AGG + j * 128))
    A("s_waitcnt lgkmcnt(7)")
    for i in range(4): A("v_mov_b32 v%d, v%d" % (H + i, AG + i))
    for j in range(1, 8):
        A("s_waitcnt lgkmcnt(%d)" % (7 - j))
        stepf(L32, AG + 4 * j)
    A("s_lshl_b32 s44, s%d, 7" % WAVE)
    A("v_add_u32 v17, s44, v15")
    A("ds_write_b128 v17, %s offset:%d" % (v(H, 4), LDS_WAGG))
    A("s_waitcnt lgkmcnt(0)")
    A("s_barrier")
    for j in range(7): A("ds_read_b128 %s, v15 offset:%d" % (v(WG_ + 4 * j, 4), LDS_WAGG + j * 128))
    for i in range(4): A("v_mov_b32 v%d, 0" % (H + i))
    A("v_lshrrev_b32 v17, 3, v2")
    A("s_waitcnt lgkmcnt(0)")
    for j in range(7):
        A("s_cmp_le_u32 s%d, %d" % (WAVE, j))
        A("s_cbranch_scc1 scan_w")
        stepf(L256, WG_ + 4 * j)
    A.label("scan_w")
    for j in range(7):
        A("v_cmpx_lt_u32 vcc, %d, v17" % j)
        stepf(L32, AG + 4 * j)
    A("s_mov_b64 exec, -1")
    A("s_barrier")
    stamp(A, cfg, 10)
    for _ in range(cfg.scm[2]): scpf2()
    A("s_mul_i32 s44, s%d, %d" % (WAVE, 32 * 528))
    A("v_mul_u32_u24 v48, 528, v3")
    A("v_lshl_add_u32 v48, v17, 6, v48")
    A("v_add_u32 v48, s44, v48")
    A("v_lshrrev_b32 v49, 5, v2")
    A("v_and_b32 v50, 31, v2")
    A("v_lshlrev_b32 v50, 4, v50")
    A("v_mul_u32_u24 v51, 528, v49")
    A("v_add3_u32 v51, v51, v50, s44")
    A("v_lshl_add_u32 v50, v49, 13, v50")
    A("s_lshr_b32 s45, s%d, 1" % CB)
    A("s_lshl_b32 s45, s45, 5")
    A("s_and_b32 s46, s%d, 1" % CB)
    A("s_lshl_b32 s46, s46, 3")
    A("s_add_u32 s45, s45, s46")
    A("s_lshl_b32 s45, s45, 12")
    A("s_lshl_b32 s46, s%d, 9" % WAVE)
    A("s_add_u32 s45, s45, s46")
    PK = 184
    for blk in range(4):
        for k in range(8):
            g = G0 + 4 * (blk * 8 + k)
            hp = H if (blk == 0 and k == 0) else g - 4
            for c in range(2):
                A("v_pk_fma_f32 %s, %s, %s, %s op_sel_hi:[0,1,1]" % (v(g + 2 * c, 2), v(L[c], 2), v(hp + 2 * c, 2), v(g + 2 * c, 2)))
            for c in range(2):
                A("v_pk_fma_f32 %s, %s, %s, %s op_sel:[1,1,0] op_sel_hi:[1,0,1] neg_lo:[1,0,0]" % (v(g + 2 * c, 2), v(L[c], 2), v(hp + 2 * c, 2), v(g + 2 * c, 2)))
        pkb = PK + blk * 16
        for q in range(4):
            for k in range(4):
                g = G0 + 4 * (blk * 8 + 2 * k)
                sg = "-" if q & 1 else ""
                A("v_cvt_pk_bf16_f32 v%d, %sv%d, %sv%d" % (pkb + 4 * q + k, sg, g + q, sg, g + 4 + q))
        for q in range(4):
            A("ds_write_b128 v48, %s offset:%d" % (v(pkb + 4 * q, 4), q * 8 * 528 + blk * 16))
    A("s_waitcnt lgkmcnt(0)")
    stamp(A, cfg, 11)
    for n in range(16):
        A("ds_read_b128 %s, v51 offset:%d" % (v(G0 + 4 * n, 4), n * 2 * 528))
        if n == 7: A("s_waitcnt lgkmcnt(0)")
    for n in range(16):
        q = n >> 2; k = n & 3; c = q >> 1; part = q & 1
        row = 16 * (k & 1) + 4 * (k >> 1) + c + 576 * part
        if n >= 8: A("s_waitcnt lgkmcnt(%d)" % (15 - n))
        A("s_add_u32 s46, s45, %d" % (row * 4096))
        A("buffer_store_dwordx4 %s, v50, s[12:15], s46 offen sc1" % v(G0 + 4 * n, 4))
    A("s_lshl_b32 s52, s%d, 9" % WAVE)
    A("s_lshl_b32 s44, s%d, 3" % CB)
    A("s_add_u32 s52, s52, s44")
    A("s_add_u32 s52, s52, %d" % FL_T)
    A("s_waitcnt vmcnt(0)")
    publish(A, 52)
    stamp(A, cfg, 5)
    A("s_barrier")
    for _ in range(cfg.pf_b): scpf2()
    A.label("scan_done")
    A("s_waitcnt vmcnt(0)")
    A("s_barrier")
    A("s_cmp_lt_u32 s%d, 4" % WAVE)
    A("s_cbranch_scc1 c3_entry")
    A("s_branch l3_entry")
    A.label("text_end")
    A("s_endpgm")

    HEADER = open("ref_header.txt").read().split("; @launch")[0]
    out = HEADER + "; @launch grid=(256,1,1) block=(512,1,1) lds=163840\n"
    out += '.amdgcn_target "amdgcn-amd-amdhsa--gfx950"\n.text\n' + A.text()
    out += '.section .rodata,"a"\n.p2align 6\n' + kd(KN, 256, 102)
    return out

if __name__ == "__main__":
    kw = {}
    for a_ in sys.argv[2:]:
        k, val = a_.split("=")
        kw[k] = ast.literal_eval(val)
    open(sys.argv[1], "w").write(gen(**kw))
```

```python
import sys, math, ast
from asmlib import *

NAME = "parallel_sum__ssm_conv_s5__mixer_token_mlp__prompt"
PAIR = 2048
SIDE = 0x3000000
WS_HF = 0x0;        SZ_HF = 32 * 36 * PAIR
WS_UF = 0x400000;   SZ_UF = 72 * 36 * PAIR
WS_G = 0xC00000;    SZ_G = 4718592
WS_HT = 0x1400000;  SZ_HT = 4718592
WS_ST = 0x1900000;  SZ_ST = 16384 + 8192
WS_FL = 0x1910000;  SZ_FL = 65536
WS_EX = 0x2000000;  SZ_EX = 64 * 16 * 9216
WS_STAMP = 0xC000000
SZ_W = 2048 * 9216; SZ_C = 576 * 1152; SZ_X = 2359296
FL_H = 0
FL_G = 2048
FL_U = FL_G + 12 * 512
FL_T = FL_U + 16 * 512
FL_X = FL_T + 8 * 512
assert FL_X + 256 * 128 <= SZ_FL

PX, PLRE, PLIM, PBRE, PBIM, PCRE, PCIM, PLOGDT, PDSK, PBX, PW1, PB1, PW2, PB2, POUT, PDBG, PWS = [64 + 2 * i for i in range(17)]
WAVE, SLOTR, XCD = 20, 21, 22
TAG = 24
RING = 26
CNT = 27
EVT = 28
NS = 4; SLOT = 34816; LDS_OWN = NS * SLOT
MFMA = "v_mfma_f32_16x16x32_bf16"
SPIN = 1 << 14
SIG = 163776
NS2 = 5; SLOT2 = 28672; LDS_LN = NS2 * SLOT2

class Cfg:
    stamp = False
    pf_a = 1
    scm = (0, 0, 0)
    pf_b = 1
    lnpf = 1
    rot1 = 1; rot2 = 1; rot3 = 1
    hl = "sc1"
    codepf = 1
    gl = ""
    pf_a2 = 0
    dbgst = 0
    upub = 1
    xpos = 2
    binit = 1
    nt3 = 0
    nt3s = 0
    al = 0
    alp = 0
    csb = 1
    xpoll = 1
    pollat = 29
    adv2 = 4
    gpub = 1
    side = 1
    sto = ""
    tlbw = 0
    fast = 0
    hoist = 1
    hack3 = 0
    ord2 = 0
    ord3 = 0
    pair2 = 0
    pair3 = 0
    bsleep = 10
    gsleep = 4
    csleep = 0
    pro = 3
    e1 = (7,)

class G:
    pass

def stamp(A, cfg, idx):
    if cfg.stamp:
        A("s_memrealtime s[98:99]")
        A("s_memtime s[100:101]")
        A("s_waitcnt lgkmcnt(0)")
        A("v_writelane_b32 v255, s98, %d" % idx)
        A("v_writelane_b32 v255, s100, %d" % (idx + 16))

def stamp_end(A, cfg):
    if not cfg.stamp: return
    A("s_waitcnt vmcnt(0)")
    stamp(A, cfg, 15)
    srd(A, 4, PWS, 262144, WS_STAMP)
    A("s_lshl_b32 s30, s2, 3")
    A("s_add_u32 s30, s30, s%d" % WAVE)
    A("s_lshl_b32 s30, s30, 7")
    A("v_lshlrev_b32 v3, 2, v2")
    A("s_mov_b32 exec_lo, -1\ns_mov_b32 exec_hi, 0")
    A("buffer_store_dword v255, v3, s[4:7], s30 offen")
    if cfg.dbgst:
        A("s_cmp_lg_u32 s2, %d" % cfg.dbgst)
        A("s_cbranch_scc1 dbg_skip")
        srd(A, 4, PDBG, 256)
        A("v_readlane_b32 s31, v255, 0")
        A("s_nop 3")
        A("v_subrev_u32 v255, s31, v255")
        A("s_cmp_eq_u32 s%d, 3" % WAVE)
        A("s_cbranch_scc0 dbg_l")
        A("s_mov_b64 exec, 0x3ffc")
        A("buffer_store_dword v255, v3, s[4:7], 0 offen")
        A.label("dbg_l")
        A("s_cmp_eq_u32 s%d, 4" % WAVE)
        A("s_cbranch_scc0 dbg_skip")
        A("s_mov_b64 exec, 0x8000")
        A("buffer_store_dword v255, v3, s[4:7], 0 offen")
        A("s_mov_b64 exec, 0x200")
        A("buffer_store_dword v255, v3, s[4:7], 0 offen offset:20")
        A.label("dbg_skip")

def slot_adv(ph, sreg=RING):
    sl, n = (SLOT, NS) if ph == 3 else (SLOT2, NS2)
    return ["s_add_u32 s%d, s%d, %d" % (sreg, sreg, sl), "s_cmp_eq_u32 s%d, %d" % (sreg, n * sl), "s_cselect_b32 s%d, 0, s%d" % (sreg, sreg)]

def row16_sum(A, r):
    for sh in (8, 4, 2, 1):
        A("s_nop 1")
        A("v_add_f32_dpp v%d, v%d, v%d row_ror:%d row_mask:0xf bank_mask:0xf" % (r, r, r, sh))

def round_bf16(A, dst, src):
    A("v_cvt_pk_bf16_f32 v%d, v%d, v%d" % (dst, src, src))
    A("v_lshlrev_b32 v%d, 16, v%d" % (dst, dst))

L_C = 2304; L_W2 = 2304 + 162; L_END = L_W2 + 72 * 32
def pf_decode(A, idx, d, off, t, lo=0):
    A("s_sub_u32 s%d, s%d, %d" % (off, idx, L_W2))
    A("s_bfe_u32 s%d, s%d, 0x20005" % (t, off))
    A("s_mul_i32 s%d, s%d, %d" % (t, t, 18 * 32))
    A("s_lshr_b32 s%d, s%d, 7" % (t + 1, off))
    A("s_lshl_b32 s%d, s%d, 5" % (t + 1, t + 1))
    A("s_add_u32 s%d, s%d, s%d" % (t, t, t + 1))
    A("s_and_b32 s%d, s%d, 31" % (off, off))
    A("s_add_u32 s%d, s%d, s%d" % (off, off, t))
    A("s_cmp_ge_u32 s%d, %d" % (idx, L_END))
    A("s_cselect_b32 s%d, 4096, s%d" % (off, off))
    A("s_mov_b32 s%d, s%d\ns_mov_b32 s%d, s%d\ns_mov_b32 s%d, %d" % (d, PW2, d + 1, PW2 + 1, d + 2, SZ_W))
    for (hi, sub, base, sz) in ((L_W2, L_C + 81, PCIM, SZ_C), (L_C + 81, L_C, PCRE, SZ_C), (L_C, 0, PW1, SZ_W)):
        if hi <= lo: continue
        A("s_sub_u32 s%d, s%d, %d" % (t, idx, sub))
        A("s_cmp_lt_u32 s%d, %d" % (idx, hi))
        A("s_cselect_b32 s%d, s%d, s%d" % (off, t, off))
        A("s_cselect_b32 s%d, s%d, s%d" % (d, base, d))
        A("s_cselect_b32 s%d, s%d, s%d" % (d + 1, base + 1, d + 1))
        A("s_cselect_b32 s%d, %d, s%d" % (d + 2, sz, d + 2))
    A("s_mov_b32 s%d, 0x00020000" % (d + 3))
    A("s_lshl_b32 s%d, s%d, 13" % (off, off))

GSLEEP = [8]
FSRD = 16; VL8 = 248; VT = 250; VP = 252
def tag_issue(A):
    srd(A, 60, PDBG, 256)
    A("v_mov_b32 v249, 0")
    A("buffer_load_dwordx2 v[%d:%d], v249, s[60:63], 0 offen sc1" % (VT, VT + 1))
def tag_check(A):
    lp = A.newlabel("tg"); ok = A.newlabel("tg"); rt = A.newlabel("tg")
    A("s_mov_b32 s59, 0")
    A.label(lp)
    A("s_waitcnt vmcnt(0)")
    A("v_readfirstlane_b32 s58, v%d" % VT)
    A("s_add_u32 s59, s59, 1")
    A("s_cmp_eq_u32 s58, 0")
    A("s_cbranch_scc1 %s" % rt)
    A("s_sub_u32 s58, s%d, s58" % TAG)
    A("s_cmp_lt_i32 s58, 1500")
    A("s_cbranch_scc1 %s" % ok)
    A("s_cmp_gt_u32 s59, 64")
    A("s_cbranch_scc1 %s" % ok)
    A.label(rt)
    A("s_cmp_gt_u32 s59, %d" % SPIN)
    A("s_cbranch_scc1 %s" % ok)
    A("s_sleep 2")
    tag_issue(A)
    A("s_branch %s" % lp)
    A.label(ok)
def publish(A, offreg):
    A("s_mov_b64 exec, 1")
    A("buffer_store_dwordx2 v[%d:%d], v%d, s[%d:%d], s%d offen sc1" % (VT, VT + 1, VL8, FSRD, FSRD + 3, offreg))
    A("s_mov_b64 exec, -1")
def gate_issue(A, offreg):
    A("buffer_load_dwordx2 v[%d:%d], v%d, s[%d:%d], s%d offen sc1" % (VP, VP + 1, VL8, FSRD, FSRD + 3, offreg))
def gate_check(A, offreg, mask, first_wait=0):
    lp = A.newlabel("gt"); ok = A.newlabel("gt")
    A("s_mov_b32 s59, 0")
    if isinstance(mask, int):
        A("s_mov_b32 s56, 0x%x" % (mask & 0xffffffff))
        A("s_mov_b32 s57, 0x%x" % (mask >> 32))
        mask = "s[56:57]"
    A("s_waitcnt vmcnt(%d)" % first_wait)
    A.label(lp)
    A("v_cmp_ne_u64 vcc, v[%d:%d], v[%d:%d]" % (VP, VP + 1, VT, VT + 1))
    A("s_add_u32 s59, s59, 1")
    A("s_and_b64 vcc, vcc, %s" % mask)
    A("s_cbranch_scc0 %s" % ok)
    A("s_cmp_gt_u32 s59, %d" % SPIN)
    A("s_cbranch_scc1 %s" % ok)
    A("s_sleep %d" % GSLEEP[0])
    gate_issue(A, offreg)
    A("s_waitcnt vmcnt(0)")
    A("s_branch %s" % lp)
    A.label(ok)

VW = 240
def wide_issue(A):
    A("v_lshlrev_b32 v249, 4, v2")
    A("buffer_load_dwordx4 v[%d:%d], v249, s[%d:%d], 0 offen sc1" % (VW, VW + 3, FSRD, FSRD + 3))
    A("buffer_load_dwordx4 v[%d:%d], v249, s[%d:%d], 0 offen offset:1024 sc1" % (VW + 4, VW + 7, FSRD, FSRD + 3))
def wide_check(A):
    lp = A.newlabel("gw"); ok = A.newlabel("gw")
    A("s_mov_b32 s59, 0")
    A.label(lp)
    A("s_waitcnt vmcnt(0)")
    A("v_cmp_ne_u64 vcc, v[%d:%d], v[%d:%d]" % (VW, VW + 1, VT, VT + 1))
    for q in range(1, 4):
        A("v_cmp_ne_u64 s[56:57], v[%d:%d], v[%d:%d]" % (VW + 2 * q, VW + 2 * q + 1, VT, VT + 1))
        A("s_or_b64 vcc, vcc, s[56:57]")
    A("s_cbranch_scc0 %s" % ok)
    A("s_add_u32 s59, s59, 1")
    A("s_cmp_gt_u32 s59, %d" % SPIN)
    A("s_cbranch_scc1 %s" % ok)
    A("s_sleep %d" % GSLEEP[0])
    wide_issue(A)
    A("s_branch %s" % lp)
    A.label(ok)

def group(A, ms, rs, nprev, extra=(), pts=None):
    rs = list(rs); issued = 0; waited = -1
    for i, (m, need) in enumerate(ms):
        if pts is not None:
            if i in pts:
                nxt = min([p for p in pts if p > i] + [len(ms)])
                need = max(n for _, n in ms[i:nxt])
            else:
                assert need <= waited
        if need > waited:
            A("s_waitcnt lgkmcnt(%d)" % min(15, nprev - 1 - need + issued))
            waited = need
        A(m)
        if rs:
            A(rs.pop(0)); issued += 1
        for pos, t in extra:
            if pos == i: A(t)
    for r in rs: A(r)

ALN = [0, 0]
def align(A):
    if ALN[0]:
        A.raw(".p2alignl %d, 0xbf800000" % ALN[0])
        for _ in range(ALN[1]): A("s_nop 0")

def capture(A, fn):
    mark = len(A.lines); fn()
    body = [l.strip() for l in A.lines[mark:]]; del A.lines[mark:]
    return body

def spread(instrs, n, start=0, per=2):
    out = []
    for k, t in enumerate(instrs):
        out.append((min(n - 1, start + k // per), t))
    return out

class Phase:
    def __init__(self, A, pfx, reads, mfmas, upd, pts, ph):
        self.A, self.pfx, self.reads, self.mfmas, self.upd, self.pts, self.ph = A, pfx, reads, mfmas, upd, pts, ph
        self.n = len(reads(0, 0)); self.nm = len(mfmas(1))
    def first(self, xb=(), cinit=None):
        A = self.A
        for r in self.reads(0, 0): A(r)
        m0 = [(m[:m.rindex(",")] + ", " + (cinit(i) if cinit else "0"), need) for i, (m, need) in enumerate(self.mfmas(0))]
        group(A, m0, self.reads(1, 1), self.n, self.upd(), self.pts)
        group(A, self.mfmas(1), self.reads(0, 0), self.n, xb, self.pts)
    def it(self, pre=None, xb=()):
        A = self.A
        group(A, self.mfmas(0), self.reads(1, 1), self.n, self.upd(), self.pts)
        if pre: pre()
        A("s_barrier")
        group(A, self.mfmas(1), self.reads(0, 0), self.n, xb, self.pts)
    def loop(self, tag, count):
        A = self.A
        if isinstance(count, int): A("s_mov_b32 s%d, %d" % (CNT, count))
        else: A(count)
        align(A)
        A.label(self.pfx + tag)
        self.it(None, [(self.nm - 3, "s_sub_u32 s%d, s%d, 1" % (CNT, CNT)), (self.nm - 2, "s_cmp_lg_u32 s%d, 0" % CNT)])
        A("s_cbranch_scc1 %s%s" % (self.pfx, tag))
    def tail(self, work=()):
        A = self.A
        work = list(work)
        na = self.nm - 3
        group(A, self.mfmas(0), self.reads(1, 1), self.n, list(enumerate(slot_adv(self.ph))) + spread(work[:na], self.nm, 3, 1), self.pts)
        group(A, self.mfmas(1), [], self.n, spread(work[na:], self.nm, 0, 2), self.pts)

def gen(**kw):
    cfg = Cfg()
    for k, val in kw.items():
        assert hasattr(Cfg, k), k
        setattr(cfg, k, val)
    A = Asm()
    HL = cfg.hl
    ALN[0] = cfg.al; ALN[1] = cfg.alp
    NLP = 72 if cfg.csb else 216
    GSLEEP[0] = cfg.gsleep
    late = []
    KN = NAME + "_kernel"
    A.raw(".globl %s\n.p2align 8\n.type %s,@function" % (KN, KN))
    A.label(KN)
    A("s_cmp_ge_u32 s2, 256")
    A("s_cbranch_scc1 k_end")
    A("s_load_dwordx16 s[64:79], s[0:1], 0")
    A("s_load_dwordx16 s[80:95], s[0:1], 64")
    A("s_load_dwordx2 s[96:97], s[0:1], 128")
    A("s_memrealtime s[%d:%d]" % (TAG, TAG + 1))
    A("v_lshrrev_b32 v1, 6, v0")
    A("v_and_b32 v2, 63, v0")
    A("v_readfirstlane_b32 s%d, v1" % WAVE)
    A("s_and_b32 s%d, s2, 7" % XCD)
    A("s_lshr_b32 s%d, s2, 3" % SLOTR)
    A("s_sub_u32 s3, s%d, 19" % SLOTR)
    A("s_cmp_lt_u32 s3, 8")
    A("s_cselect_b32 s%d, %d, %d" % (RING, 3, 4))
    A("s_mul_i32 s%d, s%d, %d" % (RING, RING, SLOT2))
    A("v_lshlrev_b32 v%d, 3, v2" % VL8)
    if cfg.stamp:
        A("v_mov_b32 v255, 0")
        A("s_waitcnt lgkmcnt(0)")
        A("v_writelane_b32 v255, s%d, 0" % TAG)
    TT, PT, FT, DT, SP, ST, D3, KT3, NF, F0 = 30, 31, 32, 33, 34, 35, 36, 37, 38, 39
    A("s_cmp_ge_u32 s%d, 12" % SLOTR)
    A("s_cselect_b32 s%d, 1, 0" % TT)
    A("s_cselect_b32 s%d, 12, 0" % PT)
    A("s_cmp_ge_u32 s%d, 27" % SLOTR)
    A("s_cselect_b32 s%d, 20, s%d" % (PT, PT))
    A("s_sub_u32 s%d, s%d, s%d" % (PT, SLOTR, PT))
    A("s_lshl_b32 s3, s%d, 1" % XCD)
    A("s_add_u32 s%d, s%d, s3" % (TT, TT))
    A("s_cmp_ge_u32 s%d, 4" % WAVE)
    A("s_cbranch_scc1 hi_entry")

    def ids23():
        A("s_lshl_b32 s3, s%d, 3" % XCD)
        A("s_mov_b32 s%d, 0x%x\ns_mov_b32 s%d, 0x%x" % (FT, 0x0206090c, FT + 1, 0x0f121518))
        A("s_lshr_b64 s[%d:%d], s[%d:%d], s3" % (FT, FT + 1, FT, FT + 1))
        A("s_and_b32 s%d, s%d, 0xff" % (FT, FT))
        A("s_add_u32 s%d, s%d, s%d" % (FT, FT, SLOTR))
        A("s_cmp_ge_u32 s%d, 27" % FT)
        A("s_cselect_b32 s3, 27, 0")
        A("s_sub_u32 s%d, s%d, s3" % (FT, FT))
        A("s_mul_i32 s3, s%d, 27" % XCD)
        A("s_add_u32 s3, s3, s%d" % FT)
        A("s_mul_i32 s%d, s3, 43691" % FT)
        A("s_lshr_b32 s%d, s%d, 18" % (FT, FT))
        A("s_mul_i32 s%d, s%d, 6" % (DT, FT))
        A("s_sub_u32 s%d, s3, s%d" % (DT, DT))
        A("s_lshr_b32 s%d, s%d, 1" % (SP, XCD))
        A("s_and_b32 s3, s%d, 1" % XCD)
        A("s_lshl_b32 s3, s3, 3")
        A("s_lshr_b32 s%d, s%d, 2" % (ST, SLOTR))
        A("s_add_u32 s%d, s%d, s3" % (ST, ST))
        A("s_and_b32 s%d, s%d, 3" % (D3, SLOTR))
        A("s_cmp_ge_u32 s%d, 2" % SP)
        A("s_cselect_b32 s%d, 4, 5" % NF)
        A("s_add_u32 s%d, s%d, 18" % (KT3, NF))
        A("s_mul_i32 s%d, s%d, 5" % (F0, SP))
        A("s_cmp_eq_u32 s%d, 3" % SP)
        A("s_cselect_b32 s%d, 14, s%d" % (F0, F0))

    WR, WC = 40, 41
    KEY3 = 42
    def lane_c23():
        A("v_lshrrev_b32 v5, 2, v2")
        A("v_and_b32 v6, 7, v5")
        A("v_and_b32 v7, 3, v2")
        A("v_lshlrev_b32 v7, 3, v7")
        A("v_lshl_add_u32 v7, v5, 8, v7")
        A("s_lshl_b32 s44, s%d, 2" % WR)
        for aa in range(4):
            A("s_add_u32 s45, s44, %d" % aa)
            A("v_xor_b32 v8, s45, v6")
            A("v_lshl_add_u32 v%d, v8, 5, v7" % (204 + aa))
        A("s_mul_i32 s45, s%d, 6144" % WC)
        A("s_add_u32 s45, s45, 16384")
        A("v_lshlrev_b32 v216, 4, v2")
        A("v_add_u32 v208, s45, v216")
        A("s_lshl_b32 s44, s%d, 1" % WAVE)
        for aa in range(2):
            A("s_add_u32 s45, s44, %d" % aa)
            A("v_xor_b32 v8, s45, v6")
            A("v_lshl_add_u32 v%d, v8, 5, v7" % (209 + aa))
        A("v_and_b32 v3, 15, v2")
        A("v_lshrrev_b32 v4, 4, v2")
        A("v_and_b32 v5, 7, v3")
        A("v_xor_b32 v5, v5, v4")
        A("v_lshlrev_b32 v5, 4, v5")
        A("v_lshl_add_u32 v5, v3, 7, v5")
        A("v_add_u32 v211, 16384, v5")
        A("v_xor_b32 v212, 64, v211")
        A("v_add_u32 v213, 16384, v216")
        A("v_add_u32 v214, 17408, v216")
        A("v_lshlrev_b32 v217, 3, v4")
        A("v_mov_b32 v215, v216")
        if cfg.side:
            A("v_lshrrev_b32 v5, 3, v2")
            A("v_cmp_eq_u32 vcc, 3, v5")
            A("v_add_u32 v5, 0x%x, v215" % (SIDE + 128))
            A("s_nop 0")
            A("v_cndmask_b32 v215, v215, v5, vcc")
    def wrwc():
        A("s_and_b32 s%d, s%d, 1" % (WR, WAVE))
        A("s_lshr_b32 s%d, s%d, 1" % (WC, WAVE))
    RAW = 164; X = 174; TT_ = 220; RS = 1344
    S0, S2, M, MB, RSV = 192, 193, 194, 196, 197
    LA = 238
    def ln_load():
        A("s_lshr_b32 s44, s2, 2")
        A("s_lshl_b32 s44, s44, 5")
        A("s_and_b32 s45, s2, 3")
        A("s_lshl_b32 s45, s45, 2")
        A("s_add_u32 s44, s44, s45")
        A("s_lshr_b32 s45, s%d, 1" % WAVE)
        A("s_lshl_b32 s45, s45, 4")
        A("s_add_u32 s44, s44, s45")
        A("s_and_b32 s45, s%d, 1" % WAVE)
        A("s_lshl_b32 s45, s45, 1")
        A("s_add_u32 s51, s44, s45")
        A("s_mul_i32 s44, s51, 1152")
        A("v_lshrrev_b32 v3, 5, v2")
        A("v_and_b32 v4, 31, v2")
        A("v_mul_u32_u24 v5, 1152, v3")
        A("v_lshl_add_u32 v6, v4, 2, v5")
        A("v_lshl_add_u32 v5, v4, 3, v5")
        A("s_waitcnt lgkmcnt(0)")
        srd(A, 4, PX, SZ_X)
        for j in range(4):
            A("buffer_load_dwordx2 %s, v5, s[4:7], s44 offen offset:%d" % (v(RAW + 2 * j, 2), j * 256))
        A("buffer_load_dword v%d, v6, s[4:7], s44 offen offset:1024" % (RAW + 8))
        A("s_mul_i32 s45, s%d, %d" % (WAVE, 2 * RS))
        A("s_add_u32 s45, s45, %d" % LDS_LN)
        A("v_mul_u32_u24 v%d, %d, v3" % (LA, RS))
        A("v_add_u32 v%d, s45, v%d" % (LA, LA))
        A("v_lshl_add_u32 v195, v4, 2, v%d" % LA)
        A("v_lshl_add_u32 v%d, v4, 3, v%d" % (LA, LA))
        A("v_lshlrev_b32 v198, 3, v3")
        A("v_bfe_u32 v5, v2, 2, 2")
        A("v_mul_u32_u24 v5, %d, v5" % RS)
        A("v_and_b32 v6, 3, v2")
        A("v_lshl_add_u32 v5, v6, 3, v5")
        A("v_lshrrev_b32 v6, 4, v2")
        A("v_lshl_add_u32 v5, v6, 5, v5")
        A("v_add_u32 v%d, %d, v5" % (LA + 1, LDS_LN))
        A("v_and_b32 v5, 15, v2")
        A("v_lshlrev_b32 v5, 4, v5")
        A("v_lshl_add_u32 v199, v6, 11, v5")
        if cfg.side:
            A("s_and_b32 s45, s2, 3")
            A("s_cmp_eq_u32 s45, 1")
            A("s_cselect_b32 s45, 0x%x, 0" % (SIDE + 128))
            A("v_cmp_le_u32 vcc, 128, v5")
            A("v_add_u32 v5, s45, v199")
            A("s_nop 0")
            A("v_cndmask_b32 v199, v199, v5, vcc")
    N = 18
    def unpack(src):
        for j in range(9):
            A("v_lshlrev_b32 v%d, 16, v%d" % (X + 2 * j, src + j))
            A("v_and_b32 v%d, 0xffff0000, v%d" % (X + 2 * j + 1, src + j))
    def sum32(r):
        row16_sum(A, r)
        A("v_mov_b32 v%d, v%d" % (S2, r))
        A("s_nop 1")
        A("v_permlane16_swap_b32 v%d, v%d" % (r, S2))
        A("s_nop 1")
        A("v_add_f32 v%d, v%d, v%d" % (r, r, S2))
    def pk(op, d, a, b, mods=""):
        A("v_pk_%s_f32 %s, %s, %s %s" % (op, v(d, 2), v(a, 2), v(b, 2), mods))
    NEG = "neg_lo:[0,1] neg_hi:[0,1]"
    P0, P2, PM, PB, PR_ = 100, 102, 104, 106, 108
    def layernorm():
        pk("add", P0, X, X + 2); pk("add", P2, X + 4, X + 6)
        for j in range(8, 16, 4):
            pk("add", P0, P0, X + j); pk("add", P2, P2, X + j + 2)
        pk("add", P0, P0, X + 16)
        pk("add", P0, P0, P2)
        A("v_add_f32 v%d, v%d, v%d" % (S0, P0, P0 + 1))
        sum32(S0)
        A("v_mul_f32 v%d, s46, v%d" % (PM, S0))
        A("v_mul_f32 v%d, s46, v%d" % (PM + 1, S0))
        round_bf16(A, MB, PM)
        for j in range(0, N, 2): pk("add", TT_ + j, X + j, PM, NEG)
        A("v_mov_b32 v%d, v%d\nv_mov_b32 v%d, v%d" % (PB, MB, PB + 1, MB))
        pk("mul", P0, TT_, TT_); pk("mul", P2, TT_ + 2, TT_ + 2)
        for j in range(4, N, 2):
            d = P0 if j % 4 == 0 else P2
            A("v_pk_fma_f32 %s, %s, %s, %s" % (v(d, 2), v(TT_ + j, 2), v(TT_ + j, 2), v(d, 2)))
        pk("add", P0, P0, P2)
        A("v_add_f32 v%d, v%d, v%d" % (S0, P0, P0 + 1))
        fill = [("v_pk_add_f32 %s, %s, %s %s" % (v(X + j, 2), v(X + j, 2), v(PB, 2), NEG)) for j in range(0, N, 2)]
        fill += [("v_cvt_pk_bf16_f32 v%d, v%d, v%d" % (RAW + j, X + 2 * j, X + 2 * j + 1)) for j in range(9)]
        def F(n):
            for _ in range(n): A(fill.pop(0))
        for sh in (8, 4, 2, 1):
            F(2)
            A("v_add_f32_dpp v%d, v%d, v%d row_ror:%d row_mask:0xf bank_mask:0xf" % (S0, S0, S0, sh))
        A("v_mov_b32 v%d, v%d" % (S2, S0))
        F(2)
        A("v_permlane16_swap_b32 v%d, v%d" % (S0, S2))
        F(2)
        A("v_add_f32 v%d, v%d, v%d" % (S0, S0, S2))
        A("v_mul_f32 v%d, s46, v%d" % (S0, S0))
        round_bf16(A, S0, S0)
        A("v_add_f32 v%d, s47, v%d" % (S0, S0))
        round_bf16(A, S0, S0)
        A("v_sqrt_f32 v%d, v%d" % (S0, S0))
        F(3)
        round_bf16(A, S0, S0)
        A("v_rcp_f32 v%d, v%d" % (RSV, S0))
        F(len(fill))
        unpack(RAW)
        A("v_mov_b32 v%d, v%d\nv_mov_b32 v%d, v%d" % (PR_, RSV, PR_ + 1, RSV))
        for j in range(0, N, 2): pk("mul", X + j, X + j, PR_)
        for j in range(9): A("v_cvt_pk_bf16_f32 v%d, v%d, v%d" % (RAW + j, X + 2 * j, X + 2 * j + 1))
    def ln_compute():
        srd(A, 8, PWS, SZ_HF + SIDE + 128, WS_HF)
        srd(A, 12, PWS, SZ_ST, WS_ST)
        A("s_mov_b32 s46, 0x%x" % f2u(1.0 / 576))
        A("s_mov_b32 s47, 0x%x" % f2u(1e-5))
        A("s_lshl_b32 s51, s51, 3")
        A("s_lshr_b32 s44, s2, 3")
        A("s_mul_i32 s44, s44, %d" % (36 * 2048))
        A("s_and_b32 s45, s2, 7")
        A("s_lshl_b32 s45, s45, 8")
        A("s_add_u32 s44, s44, s45")
        A("s_mov_b32 s45, 0")
        A("s_waitcnt vmcnt(0)")
        tag_issue(A)
        A.label("ln_loop")
        unpack(RAW)
        layernorm()
        A("s_cmp_lg_u32 s45, 0")
        A("s_cbranch_scc1 ln_out")
        A("s_mov_b32 exec_lo, 1\ns_mov_b32 exec_hi, 1")
        A("buffer_store_dwordx2 v[%d:%d], v198, s[12:15], s51 offen sc1" % (MB, RSV))
        A("s_mov_b64 exec, -1")
        A("s_mov_b32 s45, 1")
        A("s_branch ln_loop")
        A.label("ln_out")
        for j in range(4):
            A("ds_write_b64 v%d, %s offset:%d" % (LA, v(RAW + 2 * j, 2), j * 256))
        A("ds_write_b32 v195, v%d offset:1024" % (RAW + 8))
        tag_check(A)
        A("s_waitcnt lgkmcnt(0)")
    def ln_store():
        sk = A.newlabel("lns")
        A("s_cmp_lg_u32 s%d, 0" % WAVE)
        A("s_cbranch_scc1 %s" % sk)
        HB = 32
        for k in range(9):
            A("ds_read_b64_tr_b16 %s, v%d offset:%d" % (v(HB + 4 * k, 2), LA + 1, k * 128))
            A("ds_read_b64_tr_b16 %s, v%d offset:%d" % (v(HB + 4 * k + 2, 2), LA + 1, k * 128 + 4 * RS))
            if k == 6: A("s_waitcnt lgkmcnt(8)")
        for k in range(9):
            A("s_waitcnt lgkmcnt(%d)" % min(15, 16 - 2 * k))
            A("buffer_store_dwordx4 %s, v199, s[8:11], s44 offen sc1" % v(HB + 4 * k, 4))
            A("s_add_u32 s44, s44, %d" % (4 * 2048))
        A("v_mov_b32 v252, 0\nv_mov_b32 v253, 0\nv_mov_b32 v249, %d" % SIG)
        A("ds_write_b128 v249, v[250:253]")
        A("s_waitcnt lgkmcnt(0)")
        A.label(sk)
    def pubH():
        sk = A.newlabel("ph")
        A("s_cmp_lg_u32 s%d, 0" % WAVE)
        A("s_cbranch_scc1 %s" % sk)
        A("s_lshl_b32 s52, s2, 3")
        A("s_waitcnt vmcnt(0)")
        publish(A, 52)
        stamp(A, cfg, 9)
        A.label(sk)
    A.label("c1_entry")
    ln_load()
    A("s_or_b32 s44, s2, s%d" % WAVE)
    A("s_cbranch_scc1 c1_notag")
    srd(A, 60, PDBG, 256)
    A("s_or_b32 s%d, s%d, 1" % (TAG, TAG))
    A("v_mov_b32 v4, s%d\nv_mov_b32 v5, s%d\nv_mov_b32 v6, 0" % (TAG, TAG + 1))
    A("s_mov_b64 exec, 1")
    A("buffer_store_dwordx2 v[4:5], v6, s[60:63], 0 offen sc1")
    A("s_mov_b64 exec, -1")
    A.label("c1_notag")
    wrwc()
    A("v_and_b32 v3, 15, v2")
    A("v_lshrrev_b32 v4, 4, v2")
    A("v_and_b32 v5, 7, v3")
    A("v_xor_b32 v5, v5, v4")
    A("v_lshlrev_b32 v5, 4, v5")
    A("v_lshl_add_u32 v5, v3, 7, v5")
    A("v_and_b32 v6, 1, v3")
    A("v_lshrrev_b32 v7, 1, v3")
    A("v_and_b32 v8, 6, v7")
    A("v_or_b32 v8, v8, v6")
    A("v_xor_b32 v8, v8, v4")
    A("v_lshlrev_b32 v8, 4, v8")
    A("v_mul_u32_u24 v6, 48, v6")
    A("v_add_u32 v6, v6, v7")
    A("v_lshl_add_u32 v8, v6, 7, v8")
    A("s_lshl_b32 s44, s%d, 13" % WR)
    A("s_mul_i32 s45, s%d, 3072" % WC)
    A("s_add_u32 s45, s45, 16384")
    A("v_add_u32 v200, s44, v5")
    A("v_xor_b32 v201, 64, v200")
    A("v_add_u32 v202, s45, v8")
    A("v_xor_b32 v203, 64, v202")
    A("v_lshlrev_b32 v218, 4, v4")
    A("v_lshl_add_u32 v218, v3, 6, v218")
    CA = 10
    for i in range(4): A("v_add_u32 v%d, s%d, v%d" % (CA + i, RING, 200 + i))
    ACC1 = 32; SETS1 = [80, 108]; RSUM = 136; CSUM = 152; ONES = 20
    A("v_lshlrev_b32 v219, 4, v3")
    if cfg.csb: A("v_lshlrev_b32 v20, 4, v4")
    else:
        for i in range(4): A("v_mov_b32 v%d, 0x3f803f80" % (ONES + i))
    ids23(); lane_c23()
    srd(A, FSRD, PWS, SZ_FL, WS_FL)
    def reads1(st, ks):
        b = SETS1[st]
        P = lambda aa: "ds_read_b128 %s, v%d offset:%d" % (v(b + 4 * aa, 4), CA + ks, aa * 2048)
        Q = lambda xb: "ds_read_b128 %s, v%d offset:%d" % (v(b + 16 + 4 * xb, 4), CA + 2 + ks, xb * 1024)
        return [P(0), Q(0), Q(1), Q(2), P(1), P(2), P(3)]
    def mfmas1(st):
        b = SETS1[st]; m = []
        for aa in range(4):
            for xb in range(3):
                d = v(ACC1 + (aa * 3 + xb) * 4, 4)
                m.append(("%s %s, %s, %s, %s" % (MFMA, d, v(b + 16 + 4 * xb, 4), v(b + 4 * aa, 4), d), max(1 + xb, 3 + aa if aa else 0)))
            if aa < 3 and not cfg.csb:
                d = v(CSUM + 4 * aa, 4)
                m.append(("%s %s, %s, %s, %s" % (MFMA, d, v(b + 16 + 4 * aa, 4), v(ONES, 4), d), 0))
        return m
    def upd1():
        sa = slot_adv(1)
        return [(5, sa[0]), (6, sa[1]), (7, sa[2])] + [(8 + i, "v_add_u32 v%d, s%d, v%d" % (CA + i, RING, 200 + i)) for i in range(4)]
    def only3(fn):
        def f():
            sk = A.newlabel("w3")
            A("s_cmp_lg_u32 s%d, 3" % WAVE)
            A("s_cbranch_scc1 %s" % sk)
            fn()
            A.label(sk)
        return f
    A("s_mul_i32 s44, s%d, 6" % PT)
    A("s_mul_i32 s45, s%d, 3" % WC)
    A("s_add_u32 s44, s44, s45")
    A("s_lshl_b32 s54, s44, 6")
    A("s_add_u32 s54, s54, 16384")
    A("s_lshl_b32 s44, s44, 16")
    A("s_lshl_b32 s45, s%d, 1" % TT)
    A("s_add_u32 s45, s45, s%d" % WR)
    A("s_lshl_b32 s49, s45, 9")
    A("s_lshl_b32 s45, s45, 11")
    A("s_add_u32 s42, s44, s45")
    A("s_add_u32 s43, s42, 65536")
    A("s_add_u32 s48, s42, 131072")
    A("s_lshl_b32 s50, s%d, 4" % PT)
    A("s_add_u32 s50, s50, s%d" % TT)
    A("s_lshl_b32 s50, s50, 2")
    A("s_add_u32 s50, s50, s%d" % WAVE)
    A("s_lshl_b32 s50, s50, 3")
    A("s_add_u32 s50, s50, %d" % FL_G)
    ln_compute()
    stamp(A, cfg, 1)
    A("s_barrier")
    ln_store()
    A("s_sub_u32 s3, s%d, 19" % SLOTR)
    A("s_cmp_lt_u32 s3, 8")
    A("s_cbranch_scc1 ln_lo")
    A("s_barrier")
    stamp(A, cfg, 2)
    BIAS = 24; BF = 224
    def biasld():
        srd(A, 4, PB1, 9216)
        A("s_lshl_b32 s44, s%d, 8" % FT)
        A("s_lshl_b32 s45, s%d, 7" % WR)
        A("s_add_u32 s44, s44, s45")
        for aa in range(4):
            A("buffer_load_dwordx2 %s, v217, s[4:7], s44 offen offset:%d" % (v(BIAS + 2 * aa, 2), aa * 32))
    def biasup():
        for k in range(8):
            A("v_lshlrev_b32 v%d, 16, v%d" % (BF + 2 * k, BIAS + k))
            A("v_and_b32 v%d, 0xffff0000, v%d" % (BF + 2 * k + 1, BIAS + k))
    def statld():
        for ap in range(2):
            A("buffer_load_dwordx4 %s, v219, s[12:15], s49 offen offset:%d sc1" % (v(RSUM + 4 * ap, 4), ap * 256))
        if cfg.csb:
            for xb in range(3):
                A("buffer_load_dwordx4 %s, v20, s[12:15], s54 offen offset:%d sc1" % (v(CSUM + 4 * xb, 4), xb * 64))
    P1 = Phase(A, "c1", reads1, mfmas1, upd1, (0, 3) if cfg.csb else (0, 4), 1)
    P1.first()
    P1.it(pubH)
    P1.loop("_loop", 3)
    P1.it(lambda: (only3(lambda: wide_issue(A))(), biasld()))
    P1.it(only3(lambda: (stamp(A, cfg, 11), wide_check(A), stamp(A, cfg, 14))))
    P1.it(statld)
    P1.tail(capture(A, lambda: srd(A, 12, PWS, SZ_G, WS_G)))
    stamp(A, cfg, 3)
    MN = 80; RR = 88
    A("s_waitcnt vmcnt(0)")
    for aa in range(4):
        for q in range(2):
            A("v_sub_f32 v%d, 0, v%d" % (MN + 2 * aa + q, RSUM + 2 * aa))
            A("v_mov_b32 v%d, v%d" % (RR + 2 * aa + q, RSUM + 2 * aa + 1))
    for ap in range(2):
        for xb in range(3):
            O = 168 + 4 * (ap * 3 + xb)
            hq = [(h, q) for h in range(2) for q in range(2)]
            D_ = lambda h, q: ACC1 + ((2 * ap + h) * 3 + xb) * 4 + 2 * q
            for h, q in hq: A("v_pk_fma_f32 %s, %s, %s, %s" % (v(D_(h, q), 2), v(MN + 2 * (2 * ap + h), 2), v(CSUM + 4 * xb + 2 * q, 2), v(D_(h, q), 2)))
            for h, q in hq: A("v_pk_mul_f32 %s, %s, %s" % (v(D_(h, q), 2), v(D_(h, q), 2), v(RR + 2 * (2 * ap + h), 2)))
            for h, q in hq: A("v_cvt_pk_bf16_f32 v%d, v%d, v%d" % (O + 2 * h + q, D_(h, q), D_(h, q) + 1))
            A("buffer_store_dwordx4 %s, v218, s[12:15], s%d offen offset:%d sc1" % (v(O, 4), (42, 43, 48)[xb], ap * 1024))
    ACC2 = 32; SETS2 = [80, 108]
    biasup()
    A("s_mov_b32 s53, 1")
    A("s_mov_b32 s52, s50")
    A("s_barrier")
    if cfg.gpub:
        A("s_waitcnt vmcnt(0)")
        publish(A, 52)
        A("s_mov_b32 s53, 0")
        A("s_cmp_lt_u32 s%d, 27" % SLOTR)
        A("s_cbranch_scc1 c2_main")
    else:
        A("s_cmp_lt_u32 s%d, 27" % SLOTR)
        A("s_cbranch_scc1 c2_main")
        A("s_waitcnt vmcnt(0)")
        publish(A, 52)
    A("s_branch scan_entry")
    A.label("c2_entry")
    biasup()
    A("s_mov_b32 s53, 0")
    A("s_barrier")
    A.label("c2_main")
    for i in range(5): A("v_add_u32 v%d, s%d, v%d" % (CA + i, RING, 204 + i))
    A("s_barrier")
    stamp(A, cfg, 4)
    def reads2(st, ks):
        b = SETS2[st]
        P = lambda aa: ["ds_read_b64_tr_b16 %s, v%d offset:%d" % (v(b + 4 * aa, 2), CA + aa, ks * 8192),
                        "ds_read_b64_tr_b16 %s, v%d offset:%d" % (v(b + 4 * aa + 2, 2), CA + aa, ks * 8192 + 4096)]
        Q = lambda xb: ["ds_read_b128 %s, v%d offset:%d" % (v(b + 16 + 4 * xb, 4), CA + 4, xb * 2048 + ks * 1024)]
        if cfg.ord2 == 2: return P(0) + Q(0) + P(1) + P(2) + P(3) + Q(1) + Q(2)
        return P(0) + Q(0) + Q(1) + Q(2) + P(1) + P(2) + P(3)
    def mfmas2(st):
        b = SETS2[st]; m = []
        if cfg.ord2 == 2:
            order = [(aa if xb % 2 == 0 else 3 - aa, xb) for xb in range(3) for aa in range(4)]
            need = lambda aa, xb: max(2 + 2 * aa if aa else 2, 8 + xb if xb else 0)
        else:
            order = [(aa, xb if (cfg.ord2 == 0 or aa % 2 == 0) else 2 - xb) for aa in range(4) for xb in range(3)]
            need = lambda aa, xb: max(2 + xb, 4 + 2 * aa if aa else 0)
        for aa, xb in order:
            d = v(ACC2 + (aa * 3 + xb) * 4, 4)
            m.append(("%s %s, %s, %s, %s" % (MFMA, d, v(b + 4 * aa, 4), v(b + 16 + 4 * xb, 4), d), need(aa, xb)))
        return m
    def upd2():
        sa = slot_adv(2)
        U = lambda i: "v_add_u32 v%d, s%d, v%d" % (CA + i, RING, 204 + i)
        if cfg.ord2 == 2: return [(0, sa[0]), (1, sa[1]), (2, sa[2]), (4, U(0)), (5, U(1)), (7, U(2)), (9, U(3)), (11, U(4))]
        return [(0, sa[0]), (1, sa[1]), (2, sa[2]), (4, U(0)), (5, U(4)), (7, U(1)), (9, U(2)), (11, U(3))]
    def pubG():
        sk = A.newlabel("pg")
        A("s_cmp_eq_u32 s53, 0")
        A("s_cbranch_scc1 %s" % sk)
        A("s_waitcnt vmcnt(0)")
        publish(A, 52)
        A.label(sk)
    def gelu_setup():
        c1 = -2.0 * math.sqrt(2.0 / math.pi) * math.log2(math.e); c2 = c1 * 0.044715
        for (r, val) in ((28, c1), (136, c2), (138, 1.0)):
            A("v_mov_b32 v%d, 0x%x\nv_mov_b32 v%d, 0x%x" % (r, f2u(val), r + 1, f2u(val)))
        srd(A, 12, PWS, SZ_UF + SIDE + 128, WS_UF)
        A("s_lshl_b32 s44, s%d, 1" % FT)
        A("s_add_u32 s44, s44, s%d" % WR)
        A("s_lshl_b32 s45, s%d, 1" % DT)
        A("s_add_u32 s45, s45, s%d" % WC)
        A("s_mul_i32 s46, s44, 12")
        A("s_add_u32 s46, s46, s45")
        A("s_mul_i32 s46, s46, %d" % (3 * PAIR))
        A("s_add_u32 s47, s46, 4096")
        A("s_mul_i32 s48, s44, 3641")
        A("s_lshr_b32 s48, s48, 16")
        A("s_mul_i32 s49, s45, 21846")
        A("s_lshr_b32 s49, s49, 16")
        A("s_mul_i32 s50, s48, 18")
        A("s_sub_u32 s50, s44, s50")
        A("s_sub_u32 s50, s50, s49")
        A("s_mul_i32 s50, s50, 3")
        A("s_add_u32 s50, s50, s45")
        A("s_lshl_b32 s50, s50, 3")
        A("s_lshl_b32 s49, s49, 2")
        A("s_add_u32 s49, s49, s48")
        A("s_lshl_b32 s49, s49, 9")
        A("s_add_u32 s52, s50, s49")
        A("s_add_u32 s52, s52, %d" % FL_U)

    P2 = Phase(A, "c2", reads2, mfmas2, upd2, (0, 2, 4) if cfg.ord2 == 2 else (0, 3, 6), 2)
    assert cfg.ord2 == 0
    P2.first(cinit=(lambda i: v(BF + 4 * (i // 3), 4)) if cfg.binit else None)
    pubG(); stamp(A, cfg, 10)
    P2.loop("_loop", 30)
    P2.tail(capture(A, gelu_setup))
    stamp(A, cfg, 5)
    if not cfg.upub:
        A("v_mov_b32 v16, %d" % SIG)
        A("ds_read_b32 v16, v16 offset:8")
        A("s_waitcnt lgkmcnt(0)")
    if cfg.xpos == 0: A("s_barrier")
    else: A("s_nop 7")
    T = 80
    for ap in range(2):
        for xb in range(3):
            if cfg.xpos and ap * 3 + xb == cfg.xpos: A("s_barrier")
            prs = [ACC2 + ((ap * 2 + h) * 3 + xb) * 4 + 2 * q for h in range(2) for q in range(2)]
            if not cfg.binit:
                for i, x in enumerate(prs): A("v_pk_add_f32 %s, %s, %s" % (v(x, 2), v(x, 2), v(BF + ap * 8 + 2 * i, 2)))
            for i, x in enumerate(prs): A("v_pk_mul_f32 %s, %s, %s" % (v(T + 2 * i, 2), v(x, 2), v(x, 2)))
            for i, x in enumerate(prs): A("v_pk_fma_f32 %s, %s, v[136:137], v[28:29]" % (v(T + 2 * i, 2), v(T + 2 * i, 2)))
            for i, x in enumerate(prs): A("v_pk_mul_f32 %s, %s, %s" % (v(T + 2 * i, 2), v(T + 2 * i, 2), v(x, 2)))
            for i in range(8): A("v_exp_f32 v%d, v%d" % (T + i, T + i))
            for i, x in enumerate(prs): A("v_pk_add_f32 %s, %s, v[138:139]" % (v(T + 2 * i, 2), v(T + 2 * i, 2)))
            for i in range(8): A("v_rcp_f32 v%d, v%d" % (T + i, T + i))
            for i, x in enumerate(prs): A("v_pk_mul_f32 %s, %s, %s" % (v(T + 2 * i, 2), v(T + 2 * i, 2), v(x, 2)))
            O = 140 + 4 * (ap * 3 + xb)
            for i in range(4):
                A("v_cvt_pk_bf16_f32 v%d, v%d, v%d" % (O + i, T + 2 * i, T + 2 * i + 1))
            off = xb * 2048 + ap * 1024
            A("buffer_store_dwordx4 %s, v215, s[12:15], s%d offen offset:%d sc1" % (v(O, 4), 46 + off // 4096, off % 4096))
    ACC3 = 24; SETS3 = [96, 140]
    A("s_mov_b32 s53, 1")
    if not cfg.upub:
        A("v_readfirstlane_b32 s44, v16")
        A("s_cmp_lg_u32 s44, 0")
        A("s_cbranch_scc1 c3_main")
    pubG()
    A("s_mov_b32 s53, 0")
    A("s_branch c3_main")
    A.label("c3_entry")
    wrwc(); lane_c23()
    A("s_mov_b32 s53, 0")
    A.label("c3_main")
    A("s_barrier")
    A("s_barrier")
    stamp(A, cfg, 6)
    for i in range(4): A("v_add_u32 v%d, s%d, v%d" % (CA + i, RING, 209 + i))
    def reads3(st, ks):
        b = SETS3[st]; r = ["ds_read_b128 %s, v%d offset:0" % (v(b + 8, 4), CA + 2 + ks)]
        for aa in range(2):
            r.append("ds_read_b64_tr_b16 %s, v%d offset:%d" % (v(b + 4 * aa, 2), CA + aa, ks * 8192))
            r.append("ds_read_b64_tr_b16 %s, v%d offset:%d" % (v(b + 4 * aa + 2, 2), CA + aa, ks * 8192 + 4096))
        for xb in range(1, 9):
            if cfg.hack3 and xb % 2: continue
            r.append("ds_read_b128 %s, v%d offset:%d" % (v(b + 8 + 4 * xb, 4), CA + 2 + ks, xb * 2048))
        return r
    def mfmas3(st):
        b = SETS3[st]; m = []
        order = [(xb, aa if (cfg.ord3 == 0 or xb % 2 == 0) else 1 - aa) for xb in range(9) for aa in range(2)]
        for xb, aa in order:
            if True:
                d = v(ACC3 + (xb * 2 + aa) * 4, 4)
                m.append(("%s %s, %s, %s, %s" % (MFMA, d, v(b + 8 + 4 * (xb & ~1 if cfg.hack3 else xb), 4), v(b + 4 * aa, 4), d), max(2 + 2 * aa, (4 + xb // 2 if cfg.hack3 else 4 + xb) if xb else 0)))
        return m
    def upd3():
        sa = slot_adv(3)
        U = lambda i: "v_add_u32 v%d, s%d, v%d" % (CA + i, RING, 209 + i)
        return [(7, sa[0]), (8, sa[1]), (9, sa[2]), (11, U(0)), (13, U(1)), (14, U(2)), (15, U(3))]
    def umode():
        A("v_mov_b32 v211, v213\nv_mov_b32 v212, v214")
        A("v_add_u32 v%d, s%d, v213" % (CA + 2, RING))
        A("v_add_u32 v%d, s%d, v214" % (CA + 3, RING))
    def exsetup():
        srd(A, 12, PWS, SZ_EX, WS_EX)
        A("s_lshl_b32 s44, s%d, 2" % ST)
        A("s_add_u32 s44, s44, s%d" % D3)
        A("s_lshl_b32 s44, s44, 2")
        A("s_add_u32 s44, s44, s%d" % WAVE)
        A("s_lshl_b32 s52, s44, 7")
        A("s_lshl_b32 s45, s%d, 3" % SP)
        A("s_add_u32 s52, s52, s45")
        A("s_add_u32 s52, s52, %d" % FL_X)
        A("s_lshl_b32 s44, s44, 2")
        A("s_add_u32 s44, s44, s%d" % SP)
        A("s_mul_i32 s44, s44, 9216")

    P3 = Phase(A, "c3", reads3, mfmas3, upd3, (0, 6), 3)
    P3.first()
    pubG(); stamp(A, cfg, 12)
    P3.loop("_f", "s_sub_u32 s%d, s%d, 2" % (CNT, NF))
    P3.it(lambda: (umode(), stamp(A, cfg, 13)))
    P3.loop("_u", 17)
    P3.tail(capture(A, exsetup))
    stamp(A, cfg, 7)
    A("s_nop 3")
    A("s_cmp_eq_u32 s%d, s%d" % (WAVE, SP))
    A("s_cbranch_scc1 c3_own")
    for xb in range(9):
        o = 96 + 4 * xb
        for k in range(4):
            A("v_cvt_pk_bf16_f32 v%d, v%d, v%d" % (o + k, ACC3 + 8 * xb + 2 * k, ACC3 + 8 * xb + 2 * k + 1))
        A("buffer_store_dwordx4 %s, v216, s[12:15], s44 offen offset:%d sc1" % (v(o, 4), (xb % 4) * 1024))
        if xb % 4 == 3: A("s_add_u32 s44, s44, 4096")
    A("s_waitcnt vmcnt(0)")
    publish(A, 52)
    if cfg.stamp:
        A("s_barrier")
        A("s_branch k_done")
    A("s_endpgm")
    A.label("c3_own")
    A("v_add_u32 v10, %d, v216" % LDS_OWN)
    for t in range(18):
        A("ds_write_b128 v10, %s offset:%d" % (v(ACC3 + 4 * t, 4), t * 1024))
    A("s_waitcnt lgkmcnt(0)")
    A("s_barrier")
    A("s_branch k_done")

    A.label("hi_entry")
    A("s_sub_u32 s3, s%d, 19" % SLOTR)
    A("s_cmp_lt_u32 s3, 8")
    A("s_cbranch_scc1 ln_hi")
    LW = 23
    M0P, M0Q = 40, 41
    OP, OQ = 42, 43
    A("s_sub_u32 s%d, s%d, 4" % (LW, WAVE))
    A("v_lshrrev_b32 v3, 3, v2")
    A("v_and_b32 v4, 7, v2")
    A("v_xor_b32 v6, v4, v3")
    A("s_movk_i32 s44, 1152")
    A("v_mul_lo_u32 v5, v3, s44")
    A("v_lshlrev_b32 v8, 1, v5")
    A("v_lshl_add_u32 v10, v6, 4, v8")
    A("s_lshr_b32 s44, s%d, 1" % LW)
    A("v_and_b32 v7, 6, v3")
    A("v_or_b32 v7, s44, v7")
    A("v_xor_b32 v7, v4, v7")
    A("v_lshl_add_u32 v14, v7, 4, v5")
    for m in range(1, 4):
        A("v_add_u32 v%d, 0x%x, v10" % (10 + m, (16 * (m & 1) + (m >> 1)) * 1152 - (m & 1) * 1024))
    for m in range(1, 3):
        A("v_add_u32 v%d, 0x%x, v14" % (14 + m, m * (8 * 1152 - 1024)))
    A("s_lshl_b32 s%d, s%d, 7" % (OP, TT))
    A("s_lshl_b32 s45, s%d, 5" % LW)
    A("s_add_u32 s%d, s%d, s45" % (OP, OP))
    A("s_mul_i32 s%d, s%d, 1152" % (OP, OP))
    A("s_mul_i32 s%d, s%d, 48" % (OQ, PT))
    A("s_and_b32 s45, s%d, 1" % LW)
    A("s_mul_i32 s45, s45, 24")
    A("s_add_u32 s%d, s%d, s45" % (OQ, OQ))
    A("s_mul_i32 s%d, s%d, 1152" % (OQ, OQ))
    A("s_lshl_b32 s%d, s%d, 12" % (M0P, LW))
    A("s_mul_i32 s%d, s%d, 3072" % (M0Q, LW))
    A("s_add_u32 s%d, s%d, 16384" % (M0Q, M0Q))
    if cfg.rot1:
        A("s_lshl_b32 s46, s%d, 2" % TT)
        A("s_add_u32 s46, s46, s%d" % PT)
        A("s_mul_i32 s47, s46, 7282")
        A("s_lshr_b32 s47, s47, 16")
        A("s_mul_i32 s47, s47, 9")
        A("s_sub_u32 s46, s46, s47")
        A("s_lshl_b32 s47, s46, 7")
        A("s_add_u32 s%d, s%d, s47" % (OP, OP))
        A("s_add_u32 s%d, s%d, s47" % (OQ, OQ))
    A("s_waitcnt lgkmcnt(0)")
    srd(A, 4, PX, SZ_X)
    A("s_cmp_ge_u32 s%d, 2" % LW)
    A("s_cselect_b32 s8, s%d, s%d" % (PBIM, PBRE))
    A("s_cselect_b32 s9, s%d, s%d" % (PBIM + 1, PBRE + 1))
    A("s_mov_b32 s10, %d" % SZ_C)
    A("s_mov_b32 s11, 0x00020000")
    def issue1():
        A("s_add_u32 m0, s%d, s%d" % (RING, M0P))
        A("s_add_u32 s45, s%d, s%d" % (RING, M0Q))
        for m in range(4):
            if m == 2:
                A("s_add_u32 m0, m0, 2048")
                A("s_nop 0")
            A("buffer_load_dwordx4 v%d, s[4:7], s%d offen offset:%d lds" % (10 + m, OP, (m & 1) * 1024))
        A("s_mov_b32 m0, s45")
        A("s_add_u32 s%d, s%d, 128" % (OP, OP))
        for m in range(3):
            A("buffer_load_dwordx4 v%d, s[8:11], s%d offen offset:%d lds" % (14 + m, OQ, m * 1024))
        A("s_add_u32 s%d, s%d, 128" % (OQ, OQ))
        if cfg.rot1:
            A("s_add_u32 s46, s46, 1")
            A("s_cmp_eq_u32 s46, 9")
            A("s_cselect_b32 s47, 1152, 0")
            A("s_sub_u32 s%d, s%d, s47" % (OP, OP))
            A("s_sub_u32 s%d, s%d, s47" % (OQ, OQ))
        for t in slot_adv(1): A(t)
    def lane23():
        A("v_lshrrev_b32 v3, 4, v2")
        A("v_and_b32 v4, 15, v2")
        A("v_lshlrev_b32 v6, 1, v3")
        A("v_xor_b32 v7, v4, v6")
        A("v_xor_b32 v8, 8, v7")
        for (b, stride) in ((20, 9216), (24, 4096)):
            A("s_movk_i32 s44, %d" % stride)
            A("v_mul_lo_u32 v5, v3, s44")
            A("v_lshl_add_u32 v%d, v7, 4, v5" % b)
            A("v_lshl_add_u32 v%d, v8, 4, v5" % (b + 1))
            D = 4 * stride - 1024
            A("v_add_u32 v%d, 0x%x, v%d" % (b + 2, 2 * D, b))
            A("v_add_u32 v%d, 0x%x, v%d" % (b + 3, 3 * D, b + 1))
            A("v_add_u32 v%d, 0x%x, v%d" % (b + 1, D, b + 1))
        A("v_lshlrev_b32 v28, 4, v2")
        if cfg.side:
            A("v_lshrrev_b32 v5, 3, v2")
            A("v_cmp_eq_u32 vcc, 3, v5")
            A("v_add_u32 v5, 0x%x, v28" % (SIDE + 128))
            A("s_nop 0")
            A("v_cndmask_b32 v28, v28, v5, vcc")
        A("v_lshrrev_b32 v3, 3, v2")
        A("v_and_b32 v4, 7, v2")
        A("v_xor_b32 v4, v4, v3")
        A("s_movk_i32 s44, 1152")
        A("v_mul_lo_u32 v5, v3, s44")
        A("v_lshl_add_u32 v30, v4, 4, v5")
        for m in range(1, 4):
            A("v_add_u32 v%d, 0x%x, v30" % (30 + m, m * (8 * 1152 - 1024)))
    B2P, B2Q, N2, M6 = 48, 49, 50, 51
    def setup2():
        A("s_mul_i32 s%d, s%d, %d" % (B2P, LW, 16 * 9216))
        A("s_lshl_b32 s44, s%d, 8" % FT)
        A("s_add_u32 s%d, s%d, s44" % (B2P, B2P))
        A("s_mul_i32 s%d, s%d, 12" % (B2Q, DT))
        A("s_mul_i32 s44, s%d, 3" % LW)
        A("s_add_u32 s%d, s%d, s44" % (B2Q, B2Q))
        A("s_lshl_b32 s%d, s%d, 10" % (B2Q, B2Q))
        A("s_mov_b32 s%d, 0\ns_mov_b32 s%d, 0" % (N2, M6))
    def srd2():
        srd(A, 4, PW1, SZ_W)
        srd(A, 8, PWS, SZ_HF + SIDE + 128, WS_HF)
    par2 = [0]
    def issue2(which="WX", adv=True):
        odd = par2[0] & 1; par2[0] += 1
        if cfg.pair2:
            A("s_add_u32 s44, s%d, 12" % N2)
            A("s_lshl_b32 s45, s%d, 1" % M6)
            if odd: A("s_add_u32 s45, s45, 1")
            A("s_cmp_lt_u32 s44, 32")
            A("s_cselect_b32 s44, s44, s45")
            A("s_cmp_eq_u32 s%d, s%d" % (M6, DT))
            A("s_cselect_b32 s44, s44, s%d" % N2)
        elif cfg.rot2 in (2, 4):
            R = cfg.rot2; ADV = cfg.adv2
            A("s_add_u32 s45, s%d, s%d" % (FT, DT))
            A("s_add_u32 s45, s45, s%d" % N2)
            A("s_and_b32 s45, s45, %d" % (R - 1))
            A("s_cselect_b32 s44, 0, %d" % ADV)
            A("s_add_u32 s44, s44, s%d" % N2)
            A("s_and_b32 s44, s44, 31")
        elif cfg.rot2:
            A("s_add_u32 s44, s%d, 6" % N2)
            A("s_cmp_lt_u32 s44, 32")
            A("s_cselect_b32 s44, s44, s%d" % M6)
            A("s_cmp_eq_u32 s%d, s%d" % (M6, DT))
            A("s_cselect_b32 s44, s44, s%d" % N2)
        else:
            A("s_mov_b32 s44, s%d" % N2)
        A("s_mul_i32 s%d, s44, %d" % (OP, 64 * 9216))
        A("s_add_u32 s%d, s%d, s%d" % (OP, OP, B2P))
        A("s_mul_i32 s%d, s44, %d" % (OQ, 36 * PAIR))
        A("s_add_u32 s%d, s%d, s%d" % (OQ, OQ, B2Q))
        def W():
            A("s_add_u32 m0, s%d, s%d" % (RING, M0P))
            A("s_nop 0")
            for m in range(4):
                A("buffer_load_dwordx4 v%d, s[4:7], s%d offen offset:%d lds" % (20 + m, OP, m * 1024))
        def X():
            A("s_add_u32 m0, s%d, s%d" % (RING, M0Q))
            A("s_nop 0")
            for m in range(3):
                A("buffer_load_dwordx4 v28, s[8:11], s%d offen offset:%d %s lds" % (OQ, m * 1024, HL))
        if which == "W": W()
        elif which == "X": X()
        elif cfg.pair2 and not odd: X(); W()
        else: W(); X()
        if not adv: return
        A("s_add_u32 s%d, s%d, 1" % (N2, N2))
        if odd or not cfg.pair2:
            A("s_add_u32 s%d, s%d, 1" % (M6, M6))
            A("s_cmp_eq_u32 s%d, 6" % M6)
            A("s_cselect_b32 s%d, 0, s%d" % (M6, M6))
        for t in slot_adv(2): A(t)
    B3P, B3C, B3U, N3, PH3, M0X, M0Q3 = 52, 53, 54, 55, 46, 47, 29
    def setup3():
        A("s_lshl_b32 s%d, s%d, 16" % (B3P, LW))
        A("s_lshl_b32 s44, s%d, 8" % ST)
        A("s_add_u32 s%d, s%d, s44" % (B3P, B3P))
        A("s_mul_i32 s%d, s%d, %d" % (B3C, D3, 144 * 1152))
        A("s_mul_i32 s%d, s%d, %d" % (B3U, D3, 9 * PAIR))
        A("s_mul_i32 s44, s%d, %d" % (SP, 18 * 36 * PAIR))
        A("s_add_u32 s%d, s%d, s44" % (B3U, B3U))
        A("s_mov_b32 s%d, s%d" % (N3, F0))
        A("s_add_u32 s%d, s%d, s%d" % (PH3, D3, ST))
        A("s_and_b32 s%d, s%d, 3" % (PH3, PH3))
        A("s_lshl_b32 s%d, s%d, 10" % (M0X, LW))
        A("s_add_u32 s%d, s%d, %d" % (M0X, M0X, 32768))
        A("s_add_u32 s%d, s%d, 16384" % (M0Q3, M0P))
    def issue3f(extra):
        srd(A, 4, PWS, SZ_HT, WS_HT)
        A("s_cmp_ge_u32 s%d, 9" % N3)
        A("s_cselect_b32 s8, s%d, s%d" % (PCIM, PCRE))
        A("s_cselect_b32 s9, s%d, s%d" % (PCIM + 1, PCRE + 1))
        A("s_cselect_b32 s44, 9, 0")
        A("s_mov_b32 s10, %d" % SZ_C)
        A("s_mov_b32 s11, 0x00020000")
        A("s_lshl_b32 s%d, s%d, 18" % (OP, N3))
        A("s_add_u32 s%d, s%d, s%d" % (OP, OP, B3P))
        A("s_add_u32 m0, s%d, s%d" % (RING, M0P))
        A("s_sub_u32 s44, s%d, s44" % N3)
        for m in range(4):
            A("buffer_load_dwordx4 v%d, s[4:7], s%d offen offset:%d %s lds" % (24 + m, OP, m * 1024, HL))
        A("s_lshl_b32 s44, s44, 7")
        A("s_add_u32 s44, s44, s%d" % B3C)
        A("s_mul_i32 s%d, s%d, %d" % (OQ, LW, 32 * 1152))
        A("s_add_u32 m0, s%d, s%d" % (RING, M0Q3))
        A("s_add_u32 s%d, s%d, s44" % (OQ, OQ))
        for m in range(4):
            A("buffer_load_dwordx4 v%d, s[8:11], s%d offen offset:%d lds" % (30 + m, OQ, m * 1024))
        if extra:
            A("s_mul_i32 s%d, s%d, %d" % (OQ, LW, 8 * 1152))
            A("s_add_u32 s44, s44, %d" % (128 * 1152))
            A("s_add_u32 m0, s%d, s%d" % (RING, M0X))
            A("s_add_u32 s%d, s%d, s44" % (OQ, OQ))
            A("buffer_load_dwordx4 v30, s[8:11], s%d offen lds" % OQ)
        A("s_add_u32 s%d, s%d, 1" % (N3, N3))
        for t in slot_adv(3): A(t)
    def switch3u():
        srd(A, 4, PW2, SZ_W)
        srd(A, 8, PWS, SZ_UF + SIDE + 128, WS_UF)
        A("s_mul_i32 s44, s%d, %d" % (SP, 18 * 262144))
        A("s_add_u32 s%d, s%d, s44" % (B3P, B3P))
        A("s_mov_b32 s%d, 0" % N3)
    par3 = [0]
    def issue3u(extra, which="WX"):
        odd = par3[0] & 1; par3[0] += 1
        if cfg.pair3:
            A("s_bfe_u32 s45, s%d, 0x20001" % N3)
            A("s_add_u32 s44, s%d, 8" % N3)
            A("s_and_b32 s%d, s%d, 7" % (OP, N3))
            A("s_cmp_lt_u32 s44, 18")
            A("s_cselect_b32 s44, s44, s%d" % OP)
            A("s_cmp_eq_u32 s45, s%d" % PH3)
            A("s_cselect_b32 s44, s44, s%d" % N3)
        elif cfg.rot3:
            A("s_and_b32 s45, s%d, 3" % N3)
            A("s_add_u32 s44, s%d, 4" % N3)
            A("s_cmp_lt_u32 s44, 18")
            A("s_cselect_b32 s44, s44, s45")
            A("s_cmp_eq_u32 s45, s%d" % PH3)
            A("s_cselect_b32 s44, s44, s%d" % N3)
        else:
            A("s_mov_b32 s44, s%d" % N3)
        A("s_lshl_b32 s%d, s44, 18" % OP)
        A("s_add_u32 s%d, s%d, s%d" % (OP, OP, B3P))
        A("s_mul_i32 s45, s44, %d" % (36 * PAIR))
        A("s_add_u32 s45, s45, s%d" % B3U)
        A("s_add_u32 s%d, s45, s%d" % (OQ, M0P))
        if extra:
            A("s_add_u32 s45, s45, s%d" % M0X)
            A("s_sub_u32 s45, s45, 16384")
        def W():
            A("s_add_u32 m0, s%d, s%d" % (RING, M0P))
            A("s_nop 0")
            for m in range(4):
                A("buffer_load_dwordx4 v%d, s[4:7], s%d offen offset:%d lds" % (24 + m, OP, m * 1024))
        def X():
            A("s_add_u32 m0, s%d, s%d" % (RING, M0Q3))
            A("s_nop 0")
            for m in range(4):
                A("buffer_load_dwordx4 v28, s[8:11], s%d offen offset:%d %s lds" % (OQ, m * 1024, HL))
            if extra:
                A("s_add_u32 m0, s%d, s%d" % (RING, M0X))
                A("s_nop 0")
                A("buffer_load_dwordx4 v28, s[8:11], s45 offen %s lds" % HL)
        if which == "W": W()
        elif which == "X": X()
        elif cfg.pair3 and not odd: X(); W()
        else: W(); X()
        A("s_add_u32 s%d, s%d, 1" % (N3, N3))
        for t in slot_adv(3): A(t)
    def step(wait, issue):
        if issue and cfg.hoist:
            mark = len(A.lines)
            issue()
            body = A.lines[mark:]; del A.lines[mark:]
            k = 0
            while k < len(body) and body[k].strip().startswith("s_") and not body[k].strip().startswith(("s_cbranch", "s_branch")): k += 1
            A.lines += body[:k]
            A("s_waitcnt vmcnt(%d)" % wait)
            A("s_barrier")
            A.lines += body[k:]
            return
        A("s_waitcnt vmcnt(%d)" % wait)
        A("s_barrier")
        if issue: issue()
    def lloop(label, count, wait, issue, unroll=1):
        if isinstance(count, int): A("s_mov_b32 s%d, %d" % (CNT, count))
        else: A(count)
        align(A)
        A.label(label)
        for _ in range(unroll): step(wait, issue)
        A("s_sub_u32 s%d, s%d, 1" % (CNT, CNT))
        A("s_cmp_lg_u32 s%d, 0" % CNT)
        A("s_cbranch_scc1 %s" % label)
    def fast_loop(label, count, wait, sel, ph, vW, nX, strideW, bW, bQ, m0q, extra):
        QA = (OQ, 63); XA = (45, 3); MQ = (56, 57); MX = (58, 59)
        def prep(k):
            sel()
            if strideW == 262144: A("s_lshl_b32 s%d, s44, 18" % OP)
            else: A("s_mul_i32 s%d, s44, %d" % (OP, strideW))
            A("s_add_u32 s%d, s%d, s%d" % (OP, OP, bW))
            A("s_mul_i32 s44, s44, %d" % (36 * PAIR))
            A("s_add_u32 s%d, s44, s%d" % (QA[k], bQ))
            if extra:
                A("s_add_u32 s%d, s44, s%d" % (XA[k], extra))
                A("s_add_u32 s%d, s%d, s%d" % (MX[k], RING, M0X))
            A("s_add_u32 s%d, s%d, s%d" % (MQ[k], RING, m0q))
            A("s_add_u32 s62, s%d, s%d" % (RING, M0P))
            for t in slot_adv(ph): A(t)
        def body(k, last):
            A("s_mov_b32 m0, s62")
            A("s_waitcnt vmcnt(%d)" % wait)
            A("s_barrier")
            for m in range(4):
                A("buffer_load_dwordx4 v%d, s[4:7], s%d offen offset:%d lds" % (vW + m, OP, m * 1024))
            A("s_mov_b32 m0, s%d" % MQ[k])
            if not last: prep(1 - k)
            else: A("s_nop 0")
            if k == 1 and not last:
                A("s_sub_u32 s%d, s%d, 1" % (CNT, CNT))
                A("s_cmp_lg_u32 s%d, 0" % CNT)
            for m in range(nX):
                A("buffer_load_dwordx4 v28, s[8:11], s%d offen offset:%d %s lds" % (QA[k], m * 1024, HL))
            if extra:
                A("s_mov_b32 m0, s%d" % MX[k])
                A("s_nop 0")
                A("buffer_load_dwordx4 v28, s[8:11], s%d offen %s lds" % (XA[k], HL))
        prep(0)
        A("s_mov_b32 s%d, %d" % (CNT, count - 1))
        A.label(label)
        body(0, False); body(1, False)
        A("s_cbranch_scc1 %s" % label)
        body(0, False); body(1, True)
    def sel2():
        A("s_add_u32 s44, s%d, 6" % N2)
        A("s_cmp_lt_u32 s44, 32")
        A("s_cselect_b32 s44, s44, s%d" % M6)
        A("s_cmp_eq_u32 s%d, s%d" % (M6, DT))
        A("s_cselect_b32 s44, s44, s%d" % N2)
        A("s_add_u32 s%d, s%d, 1" % (N2, N2))
        A("s_add_u32 s%d, s%d, 1" % (M6, M6))
        A("s_cmp_eq_u32 s%d, 6" % M6)
        A("s_cselect_b32 s%d, 0, s%d" % (M6, M6))
    def sel3():
        A("s_and_b32 s%d, s%d, 3" % (OP, N3))
        A("s_add_u32 s44, s%d, 4" % N3)
        A("s_cmp_lt_u32 s44, 18")
        A("s_cselect_b32 s44, s44, s%d" % OP)
        A("s_cmp_eq_u32 s%d, s%d" % (OP, PH3))
        A("s_cselect_b32 s44, s44, s%d" % N3)
        A("s_add_u32 s%d, s%d, 1" % (N3, N3))
    issue1(); issue1()
    ids23(); lane23(); setup2()
    if cfg.pro == 5:
        issue1(); issue1(); issue1()
        step(28, None); step(21, None)
    elif cfg.pro == 4:
        issue1(); issue1()
        step(21, issue1); step(21, None)
    else:
        issue1()
        step(14, issue1); step(14, issue1)
    lloop("l1_loop", 4, 14, issue1)
    A("s_cmp_ge_u32 s%d, 27" % SLOTR)
    A("s_cbranch_scc1 l1_c")
    srd2()
    step(14, lambda: issue2("W", False))
    step(11, lambda: issue2("X"))
    step(7, lambda: (issue2(), issue2()))
    setup3()
    step(14, issue2); step(14, issue2)
    A("s_branch l2_main")
    A.label("l1_c")
    step(14, None); step(7, None); step(0, None)
    A("v_mov_b32 v41, %d" % SIG)
    A("ds_read_b64 v[%d:%d], v41" % (VT, VT + 1))
    srd(A, FSRD, PWS, SZ_FL, WS_FL)
    srd(A, 12, PWS, SZ_ST, WS_ST)
    A("s_waitcnt lgkmcnt(0)")
    A("s_barrier")
    A("s_branch scan_entry")
    A.label("l2_entry")
    A("s_sub_u32 s%d, s%d, 4" % (LW, WAVE))
    A("s_lshl_b32 s%d, s%d, 12" % (M0P, LW))
    A("s_mul_i32 s%d, s%d, 3072" % (M0Q, LW))
    A("s_add_u32 s%d, s%d, 16384" % (M0Q, M0Q))
    lane23(); setup2(); srd2()
    A("s_mov_b32 s62, s%d" % RING)
    A("s_waitcnt vmcnt(0)")
    issue2("W"); issue2("W"); issue2("W")
    A("s_mov_b32 s%d, s62" % RING)
    A("s_mov_b32 s%d, 0\ns_mov_b32 s%d, 0" % (N2, M6))
    setup3()
    A("s_barrier")
    issue2("X"); issue2("X"); issue2("X")
    step(6, issue2); step(10, issue2)
    A.label("l2_main")
    step(14, issue2)
    if cfg.fast: fast_loop("l2_loop", 12, 14, sel2, 2, 20, 3, 64 * 9216, B2P, B2Q, M0Q, None)
    else: lloop("l2_loop", 12, 14, issue2, 2)
    def lgate_issue(off):
        sk = A.newlabel("lg")
        A("s_cmp_lg_u32 s%d, 0" % LW)
        A("s_cbranch_scc1 %s" % sk)
        gate_issue(A, off)
        A.label(sk)
    def lgate_wait(off, mask, word, younger):
        ot = A.newlabel("lg"); dn = A.newlabel("lg"); lp = A.newlabel("lg")
        A("s_cmp_lg_u32 s%d, 0" % LW)
        A("s_cbranch_scc1 %s" % ot)
        gate_check(A, off, mask, first_wait=younger)
        A("v_mov_b32 v40, 1")
        A("ds_write_b32 v41, v40 offset:%d" % (8 + 4 * word))
        A("s_branch %s" % dn)
        A.label(ot)
        A("s_mov_b32 s59, 0")
        A.label(lp)
        A("ds_read_b32 v40, v41 offset:%d" % (8 + 4 * word))
        A("s_add_u32 s59, s59, 1")
        A("s_waitcnt lgkmcnt(0)")
        A("v_readfirstlane_b32 s58, v40")
        A("s_cmp_gt_u32 s59, %d" % (SPIN * 64))
        A("s_cbranch_scc1 %s" % dn)
        A("s_cmp_eq_u32 s58, 0")
        A("s_cbranch_scc1 %s" % lp)
        A.label(dn)
    XR = 150; DS = 162; STT = 168; B2 = 172; BASE = 48; PR = 80; OWN = 120
    def base_ld():
        A("v_and_b32 v42, 15, v2")
        A("v_lshrrev_b32 v43, 4, v2")
        A("v_mul_u32_u24 v46, 1152, v42")
        A("v_lshl_add_u32 v46, v43, 3, v46")
        A("v_lshlrev_b32 v47, 1, v46")
        A("v_lshlrev_b32 v43, 3, v43")
        A("v_lshlrev_b32 v45, 3, v42")
        A("v_lshlrev_b32 v42, 1, v42")
        A("s_lshl_b32 s44, s%d, 3" % ST)
        A("s_lshl_b32 s45, s%d, 1" % SP)
        A("s_add_u32 s44, s44, s45")
        A("s_mul_i32 s45, s%d, 9" % D3)
        A("s_add_u32 s45, s45, s%d" % LW)
        A("s_lshl_b32 s45, s45, 5")
        A("s_mul_i32 s50, s44, %d" % (16 * 1152))
        A("s_add_u32 s50, s50, s45")
        A("s_add_u32 s51, s50, %d" % (16 * 1152))
        A("s_lshl_b32 s48, s44, 7")
        A("s_lshl_b32 s49, s44, 5")
        srd(A, 12, PWS, SZ_ST, WS_ST)
        for aa in range(2):
            A("buffer_load_dwordx2 %s, v45, s[12:15], s48 offen offset:%d %s" % (v(STT + 2 * aa, 2), aa * 128, HL))
        srd(A, 12, PB2, 4096)
        for aa in range(2):
            A("buffer_load_ushort v%d, v42, s[12:15], s49 offen offset:%d" % (B2 + 2 * aa, aa * 32))
        srd(A, 12, PDSK, 1152)
        for n in range(3):
            A("buffer_load_dwordx2 %s, v43, s[12:15], s45 offen offset:%d" % (v(DS + 2 * n, 2), n * 128))
        srd(A, 12, PX, SZ_X)
        sk = A.newlabel("bl")
        for n in range(3):
            if n == 2:
                A("s_cmp_lg_u32 s%d, 0" % LW)
                A("s_cbranch_scc1 %s" % sk)
            for aa in range(2):
                A("buffer_load_dwordx2 %s, v46, s[12:15], s%d offen offset:%d" % (v(XR + 4 * n + 2 * aa, 2), (50, 51)[aa], n * 128))
        A.label(sk)
        A("s_lshl_b32 s50, s50, 1")
        A("s_lshl_b32 s51, s51, 1")
    def base_calc():
        for aa in range(2): A("v_lshlrev_b32 v%d, 16, v%d" % (B2 + 2 * aa, B2 + 2 * aa))
        for n in range(3):
            dd = 76; xx = 116; tt = 144
            for h in range(2):
                A("v_lshlrev_b32 v%d, 16, v%d" % (dd + 2 * h, DS + 2 * n + h))
                A("v_and_b32 v%d, 0xffff0000, v%d" % (dd + 2 * h + 1, DS + 2 * n + h))
            for aa in range(2):
                b = BASE + 8 * n + 4 * aa
                for h in range(2):
                    A("v_lshlrev_b32 v%d, 16, v%d" % (xx + 2 * h, XR + 4 * n + 2 * aa + h))
                    A("v_and_b32 v%d, 0xffff0000, v%d" % (xx + 2 * h + 1, XR + 4 * n + 2 * aa + h))
                for r in range(4): A("v_mul_f32 v%d, v%d, v%d" % (tt + r, dd + r, STT + 2 * aa + 1))
                for r in range(4): A("v_add_f32 v%d, v%d, v%d" % (b + r, xx + r, B2 + 2 * aa))
                for r in range(4): A("v_sub_f32 v%d, v%d, v%d" % (xx + r, xx + r, STT + 2 * aa))
                for r in range(4): A("v_fmac_f32 v%d, v%d, v%d" % (b + r, xx + r, tt + r))
    GT, GU = 60, 61
    def gates3():
        A("v_mov_b32 v41, %d" % SIG)
        A("ds_read_b64 v[%d:%d], v41" % (VT, VT + 1))
        srd(A, FSRD, PWS, SZ_FL, WS_FL)
        A("s_lshr_b32 s%d, s%d, 1" % (GT, ST))
        A("s_lshl_b32 s%d, s%d, 9" % (GT, GT))
        A("s_add_u32 s%d, s%d, %d" % (GT, GT, FL_T))
        A("s_lshl_b32 s%d, s%d, 2" % (GU, D3))
        A("s_add_u32 s%d, s%d, s%d" % (GU, GU, SP))
        A("s_lshl_b32 s%d, s%d, 9" % (GU, GU))
        A("s_add_u32 s%d, s%d, %d" % (GU, GU, FL_U))
        A("s_waitcnt lgkmcnt(0)")
    gates3()
    step(14, issue2)
    step(14, issue2)
    base_ld()
    step(14 + 11, (lambda: lgate_issue(GT)) if cfg.pollat == 29 else None)
    step(7 + 11, (lambda: lgate_issue(GT)) if cfg.pollat == 30 else None)
    A("s_cmp_lg_u32 s%d, 0" % LW)
    A("s_cbranch_scc1 l2_e1")
    A("s_waitcnt vmcnt(0)")
    A("v_cmp_ne_u64 vcc, v[%d:%d], v[%d:%d]" % (VP, VP + 1, VT, VT + 1))
    A("s_and_b32 vcc_hi, vcc_hi, 15")
    A("s_cmp_lg_u64 vcc, 0")
    A("s_cbranch_scc1 l2_e1")
    A("v_mov_b32 v40, 1")
    A("ds_write_b32 v41, v40 offset:8")
    A("s_waitcnt lgkmcnt(0)")
    A.label("l2_e1")
    step(11, None)
    A("ds_read_b32 v40, v41 offset:8")
    A("s_waitcnt lgkmcnt(0)")
    A("v_readfirstlane_b32 s58, v40")
    A("s_cmp_lg_u32 s58, 0")
    A("s_cbranch_scc1 l3_early")
    lgate_issue(GT)
    A("s_barrier")
    A.label("l3_main")
    stamp(A, cfg, 10)
    lgate_wait(GT, (1 << 36) - 1, 0, 0)
    A.label("l3_main2")
    stamp(A, cfg, 11)
    A("s_cmp_ge_u32 s%d, 2" % LW)
    A("s_cbranch_scc1 l3b")
    A("s_branch l3a")
    A.label("l3_early")
    A("s_cmp_ge_u32 s%d, 2" % LW)
    A("s_cbranch_scc1 l3b_early")
    for (sfx, extra, per) in (("a", True, 9), ("b", False, 8)):
        A.label("l3%s_early" % sfx)
        issue3f(extra)
        if cfg.xpos: issue3f(extra)
        A("s_barrier")
        A("s_branch l3%s_j" % sfx)
        A.label("l3%s" % sfx)
        issue3f(extra)
        if cfg.xpos: issue3f(extra)
        A.label("l3%s_j" % sfx)
        NT = cfg.nt3
        if NT:
            issue3f(extra); issue3f(extra)
            if not cfg.xpos: issue3f(extra)
            srd(A, 12, PW2, SZ_W)
            A("s_mul_i32 s44, s%d, 18" % SP)
            A("s_add_u32 s44, s44, s%d" % PH3)
            A("s_lshl_b32 s44, s44, 1")
            A("s_and_b32 s45, s%d, 1" % LW)
            A("s_add_u32 s44, s44, s45")
            A("s_lshr_b32 s45, s%d, 1" % LW)
            A("s_lshl_b32 s45, s45, 3")
            A("s_add_u32 s44, s44, s45")
            A("s_add_u32 s44, s44, %d" % (8 * cfg.nt3s))
            A("s_lshl_b32 s44, s44, 17")
            A("s_lshl_b32 s45, s%d, 8" % ST)
            A("s_add_u32 s44, s44, s45")
            A("v_lshrrev_b32 v42, 1, v2")
            A("v_lshlrev_b32 v42, 12, v42")
            A("v_and_b32 v43, 1, v2")
            A("v_lshl_add_u32 v42, v43, 7, v42")
            for k in range(NT):
                A("buffer_load_dword v43, v42, s[12:15], s44 offen")
                A("s_add_u32 s44, s44, %d" % (16 << 17))
            A("s_waitcnt vmcnt(%d)" % (4 * per + NT))
            base_calc()
            step(3 * per + NT, None); step(2 * per + NT, None)
            sk = A.newlabel("nf"); sk2 = A.newlabel("nf")
            A("s_cmp_eq_u32 s%d, 4" % NF)
            A("s_cbranch_scc1 %s" % sk)
            step(per + NT, lambda: issue3f(extra))
            switch3u()
            A("s_mov_b32 s62, s%d" % RING)
            step(per + NT, lambda: issue3u(extra, "W"))
            A("s_waitcnt vmcnt(4)")
            A("s_branch %s" % sk2)
            A.label(sk)
            switch3u()
            A("s_mov_b32 s62, s%d" % RING)
            par3[0] -= 1
            step(per + NT, lambda: issue3u(extra, "W"))
            A.label(sk2)
            step(4 + NT, lambda: (lgate_issue(GU), issue3u(extra, "W")))
        else:
            issue3f(extra)
            if not cfg.xpos: issue3f(extra)
            A("s_waitcnt vmcnt(%d)" % (3 * per))
            base_calc()
            step(2 * per, lambda: issue3f(extra)); step(2 * per, None)
            sk = A.newlabel("nf")
            A("s_cmp_eq_u32 s%d, 4" % NF)
            A("s_cbranch_scc1 %s" % sk)
            step(per, lambda: issue3f(extra))
            A.label(sk)
            switch3u()
            A("s_mov_b32 s62, s%d" % RING)
            step(per, lambda: issue3u(extra, "W"))
            step(4, lambda: (lgate_issue(GU), issue3u(extra, "W")))
        stamp(A, cfg, 12)
        lgate_wait(GU, (1 << 54) - 1, 1, 4)
        stamp(A, cfg, 13)
        A("s_mov_b32 s%d, s62" % RING)
        A("s_mov_b32 s%d, 0" % N3)
        issue3u(extra, "X"); issue3u(extra, "X")
        step(per - 4, lambda: issue3u(extra))
        step(per, lambda: issue3u(extra))
        if cfg.fast:
            A("s_add_u32 s60, s%d, s%d" % (B3U, M0P))
            A("s_add_u32 s61, s%d, s%d" % (B3U, M0X))
            A("s_sub_u32 s61, s61, 16384")
            fast_loop("l3%s_u" % sfx, 7, per, sel3, 3, 24, 4, 262144, B3P, 60, M0Q3, 61 if extra else None)
        else: lloop("l3%s_u" % sfx, 7, per, lambda: issue3u(extra), 2)
        step(per, None); step(0, None)
        A("s_branch fin")
    A.label("l3_entry")
    A("s_sub_u32 s%d, s%d, 4" % (LW, WAVE))
    A("s_lshl_b32 s%d, s%d, 12" % (M0P, LW))
    lane23(); setup3(); gates3()
    lgate_issue(GT)
    lgate_wait(GT, (1 << 36) - 1, 0, 0)
    base_ld()
    A("s_branch l3_main2")

    A.label("fin")
    stamp(A, cfg, 7)
    A("v_lshlrev_b32 v9, 4, v2")
    A("s_lshl_b32 s44, s%d, 2" % ST)
    A("s_add_u32 s44, s44, s%d" % D3)
    A("s_lshl_b32 s44, s44, 2")
    A("s_add_u32 s44, s44, s%d" % SP)
    A("s_lshl_b32 s43, s44, 7")
    A("s_add_u32 s43, s43, %d" % FL_X)
    A("s_mul_i32 s47, s44, %d" % (4 * 9216))
    A("s_lshl_b32 s46, s%d, 10" % LW)
    A("s_add_u32 s47, s47, s46")
    for j in range(3):
        A("s_add_u32 s48, s%d, %d" % (SP, 1 + j))
        A("s_and_b32 s48, s48, 3")
        A("s_mul_i32 s48, s48, 9216")
        A("s_add_u32 s%d, s47, s48" % (40 + j))
    A("v_add_u32 v15, 4096, v9")
    A("v_add_u32 v18, 8192, v9")
    A("s_lshl_b32 s46, s%d, 11" % LW)
    A("s_add_u32 s46, s46, %d" % LDS_OWN)
    A("v_add_u32 v10, s46, v9")
    A("s_lshl_b32 s52, 1, s%d" % SP)
    A("s_xor_b32 s52, s52, 15")
    A("s_mov_b32 s53, 0")
    srd(A, 12, PWS, SZ_EX, WS_EX)
    srd(A, 8, POUT, 2048 * 576 * 4)
    A("v_cmp_gt_u32 vcc, 4, v2")
    A("s_nop 1")
    A("v_cndmask_b32 v%d, 0, v%d, vcc" % (VL8, VL8))
    def own():
        for n in range(3):
            for aa in range(2):
                A("ds_read_b128 %s, v10 offset:%d" % (v(OWN + 8 * n + 4 * aa, 4), n * 8192 + aa * 1024))
        A("s_waitcnt lgkmcnt(0)")
        for k in range(12):
            A("v_pk_add_f32 %s, %s, %s" % (v(BASE + 2 * k, 2), v(BASE + 2 * k, 2), v(OWN + 2 * k, 2)))
    A("s_barrier")
    stamp(A, cfg, 8)
    if cfg.xpoll == 0:
        gate_issue(A, 43)
        own()
        gate_check(A, 43, "s[52:53]")
    else:
        lgate_issue(43)
        own()
        A("s_cmp_lg_u32 s%d, 0" % LW)
        A("s_cbranch_scc1 fin_w")
        gate_check(A, 43, "s[52:53]")
        A.label("fin_w")
        A("s_barrier")
    stamp(A, cfg, 9)
    def ld(n):
        for j in range(3):
            A("buffer_load_dwordx4 %s, v%d, s[12:15], s%d offen sc1" % (v(PR + (n * 3 + j) * 4, 4), (9, 15, 18)[n], 40 + j))
    def fin(n):
        b = BASE + 8 * n
        for j in range(3):
            p = PR + (n * 3 + j) * 4
            for k in range(4):
                A("v_lshlrev_b32 v%d, 16, v%d" % (28 + 2 * (k % 2), p + k))
                A("v_and_b32 v%d, 0xffff0000, v%d" % (29 + 2 * (k % 2), p + k))
                A("v_pk_add_f32 %s, %s, %s" % (v(b + 2 * k, 2), v(b + 2 * k, 2), v(28 + 2 * (k % 2), 2)))
    def st(n):
        for aa in range(2):
            A("buffer_store_dwordx4 %s, v47, s[8:11], s%d offen offset:%d %s" % (v(BASE + 8 * n + 4 * aa, 4), (50, 51)[aa], n * 256, cfg.sto))
    A("s_cmp_lg_u32 s%d, 0" % LW)
    A("s_cbranch_scc1 fin_b")
    ld(2); ld(0); ld(1)
    A("s_waitcnt vmcnt(6)"); fin(2)
    A("s_waitcnt vmcnt(3)"); fin(0)
    A("s_waitcnt vmcnt(0)"); st(2); st(0); fin(1); st(1)
    A("s_branch k_done")
    A.label("fin_b")
    ld(0); ld(1)
    A("s_waitcnt vmcnt(3)"); fin(0)
    A("s_waitcnt vmcnt(0)"); st(0); fin(1); st(1)
    A.label("k_done")
    stamp_end(A, cfg)
    A.label("k_end")
    A("s_endpgm")

    KB = 29
    PFI = 23
    def kbcalc():
        A("s_sub_u32 s%d, s%d, 19" % (KB, SLOTR))
        A("s_lshl_b32 s%d, s%d, 3" % (KB, KB))
        A("s_add_u32 s%d, s%d, s%d" % (KB, KB, XCD))
    A.label("ln_lo")
    kbcalc()
    pubH()
    biasld()
    A("s_barrier")
    stamp(A, cfg, 2)
    A("s_branch ln_join")
    A.label("ln_hi")
    kbcalc()
    A("v_mov_b32 v216, 0\nv_mov_b32 v217, 0\nv_mov_b32 v215, 0")
    ids23()
    A("v_lshlrev_b32 v120, 7, v2")
    A("s_waitcnt lgkmcnt(0)")
    srd(A, FSRD, PWS, SZ_FL, WS_FL)
    srd(A, 12, PWS, SZ_ST, WS_ST)
    A("s_lshl_b32 s44, s%d, 2" % KB)
    A("s_add_u32 s44, s44, s%d" % WAVE)
    A("s_sub_u32 s44, s44, 4")
    if cfg.csb:
        A("s_sub_u32 s45, s44, 112")
        A("s_cbranch_scc1 ln_ncs")
        A("s_cmp_ge_u32 s45, 72")
        A("s_cselect_b32 s4, s%d, s%d" % (PBIM, PBRE))
        A("s_cselect_b32 s5, s%d, s%d" % (PBIM + 1, PBRE + 1))
        A("s_cselect_b32 s46, 72, 0")
        A("s_cselect_b32 s47, 4, 0")
        A("s_mov_b32 s6, %d\ns_mov_b32 s7, 0x00020000" % SZ_C)
        A("s_sub_u32 s45, s45, s46")
        A("s_mul_i32 s46, s45, %d" % (8 * 1152))
        A("v_lshrrev_b32 v3, 3, v2")
        A("v_and_b32 v4, 7, v2")
        A("v_mul_u32_u24 v5, 1152, v3")
        A("v_lshl_add_u32 v5, v4, 4, v5")
        for j in range(9):
            A("buffer_load_dwordx4 %s, v5, s[4:7], s46 offen offset:%d" % (v(16 + 4 * j, 4), j * 128))
        A("s_lshl_b32 s45, s45, 6")
        A("s_add_u32 s45, s45, s47")
        A("s_add_u32 s45, s45, 16384")
        A("v_lshlrev_b32 v3, 3, v3")
        A("s_mov_b32 s46, 0x3f803f80")
        for q in range(4): A("v_mov_b32 v%d, 0" % (8 + q))
        for j in range(9):
            A("s_waitcnt vmcnt(%d)" % (8 - j))
            for q in range(4): A("v_dot2_f32_bf16 v%d, v%d, s46, v%d" % (8 + q, 16 + 4 * j + q, 8 + q))
        A("s_nop 2")
        A("v_add_f32 v8, v8, v9\nv_add_f32 v10, v10, v11\nv_add_f32 v8, v8, v10")
        for dpp in ("quad_perm:[1,0,3,2]", "quad_perm:[2,3,0,1]", "row_half_mirror"):
            A("s_nop 1")
            A("v_add_f32_dpp v8, v8, v8 %s row_mask:0xf bank_mask:0xf" % dpp)
        A("s_mov_b32 exec_lo, 0x01010101\ns_mov_b32 exec_hi, 0x01010101")
        A("buffer_store_dword v8, v3, s[12:15], s45 offen sc1")
        A("s_mov_b64 exec, -1")
        A("s_waitcnt vmcnt(0)")
        A("s_branch ln_nw")
        A.label("ln_ncs")
    A("s_mov_b32 s4, s%d\ns_mov_b32 s5, s%d\ns_mov_b32 s6, 0\ns_mov_b32 s45, 0" % (PB1, PB1 + 1))
    for (w, ptr, sz) in ((32, PB1, 9216), (33, PB1, 9216), (34, PB2, 4096), (35, PDSK, 1152), (36, PLRE, 1152), (37, PLIM, 1152), (38, PLOGDT, 1152)):
        A("s_cmp_eq_u32 s44, %d" % w)
        A("s_cselect_b32 s4, s%d, s4" % ptr)
        A("s_cselect_b32 s5, s%d, s5" % (ptr + 1))
        A("s_cselect_b32 s6, %d, s6" % sz)
        if w == 33: A("s_cselect_b32 s45, 8192, s45")
    A("s_mov_b32 s7, 0x00020000")
    A("s_cmp_eq_u32 s6, 0")
    A("s_cbranch_scc1 ln_nt")
    A("buffer_load_dword v121, v120, s[4:7], s45 offen")
    A.label("ln_nt")
    if cfg.codepf:
        A("s_cmp_ge_u32 s44, 32")
        A("s_cbranch_scc1 ln_nc")
        A("s_getpc_b64 s[46:47]")
        A.label("ln_pc")
        A("s_sub_u32 s46, s46, ln_pc-%s" % KN)
        A("s_subb_u32 s47, s47, 0")
        A("s_and_b32 s45, s44, 3")
        A("s_lshl_b32 s45, s45, 13")
        A("v_add_u32 v122, s45, v120")
        A("s_mov_b32 s45, text_end-%s" % KN)
        for r in range(2):
            A("v_cmp_gt_u32 vcc, s45, v122")
            A("s_and_saveexec_b64 s[48:49], vcc")
            A("s_cbranch_execz ln_nc2")
            A("global_load_dword v%d, v122, s[46:47]" % (123 + r))
            A("v_add_u32 v122, 32768, v122")
        A.label("ln_nc2")
        A("s_mov_b64 exec, -1")
        A.label("ln_nc")
    srd(A, 4, PW1, SZ_W)
    A("s_sub_u32 s45, s44, 40")
    A("s_cbranch_scc1 ln_nw")
    A("s_lshl_b32 s45, s45, 13")
    for r in range(cfg.lnpf):
        A("buffer_load_dword v121, v120, s[4:7], s45 offen")
        A("s_add_u32 s45, s45, %d" % (NLP * 8192))
    A.label("ln_nw")
    A("s_barrier")
    tag_issue(A)
    A("s_barrier")
    tag_check(A)
    A.label("ln_join")
    A("v_lshlrev_b32 v120, 7, v2")
    A("s_lshl_b32 s%d, s%d, 3" % (PFI, KB))
    A("s_add_u32 s%d, s%d, s%d" % (PFI, PFI, WAVE))
    if cfg.tlbw:
        A("s_cmp_lg_u32 s%d, %d" % (SLOTR, cfg.tlbw))
        A("s_cbranch_scc1 ln_ntl")
        A("s_mov_b32 s60, s%d\ns_mov_b32 s61, s%d\ns_mov_b32 s62, 0" % (PW1, PW1 + 1))
        for (w, ptr, sz) in ((1, PW1, SZ_W), (2, PW2, SZ_W), (3, PWS, 0x4000000 if cfg.side else WS_EX + SZ_EX), (4, POUT, 2048 * 576 * 4), (5, PCRE, SZ_C), (6, PCIM, SZ_C), (7, PLOGDT, 1152)):
            A("s_cmp_eq_u32 s%d, %d" % (WAVE, w))
            A("s_cselect_b32 s60, s%d, s60" % ptr)
            A("s_cselect_b32 s61, s%d, s61" % (ptr + 1))
            A("s_cselect_b32 s62, %d, s62" % sz)
        A("s_mov_b32 s63, 0x00020000")
        A("v_lshlrev_b32 v122, 20, v2")
        A("buffer_load_dword v121, v122, s[60:63], 0 offen offset:512 sc1")
        A.label("ln_ntl")
    for r in range(cfg.pf_a):
        if r == 0:
            A("s_add_u32 s55, s%d, %d" % (PFI, L_C))
            A("s_add_u32 s3, s%d, %d" % (PFI, (NLP * cfg.lnpf - 162) & 0xffffffff))
            A("s_cmp_lt_u32 s%d, 162" % PFI)
            A("s_cselect_b32 s3, s55, s3")
        else:
            A("s_add_u32 s3, s%d, %d" % (PFI, NLP * cfg.lnpf - 162 + 512 * r))
        pf_decode(A, 3, 60, 58, 54)
        A("buffer_load_dword v121, v120, s[60:63], s58 offen")
    A("s_cmp_ge_u32 s%d, 4" % WAVE)
    A("s_cbranch_scc1 l2_entry")
    A("s_cmp_lg_u32 s%d, 0" % WAVE)
    A("s_cbranch_scc1 ln_g")
    A("s_sleep %d" % cfg.bsleep)
    wide_issue(A)
    wide_check(A)
    A.label("ln_g")
    A("s_waitcnt vmcnt(0)")
    A("s_barrier")
    stamp(A, cfg, 3)
    A("s_branch c2_entry")

    A.label("scan_entry")
    CB = 29
    A("s_sub_u32 s%d, s%d, 27" % (CB, SLOTR))
    A("s_lshl_b32 s%d, s%d, 3" % (CB, CB))
    A("s_add_u32 s%d, s%d, s%d" % (CB, CB, XCD))
    A("s_mov_b32 s%d, 0" % RING)
    A("v_lshlrev_b32 v56, 7, v2")
    A("s_lshl_b32 s%d, s%d, 3" % (PFI, CB))
    A("s_add_u32 s%d, s%d, s%d" % (PFI, PFI, WAVE))
    A("s_add_u32 s%d, s%d, %d" % (PFI, PFI, L_W2 if cfg.pf_a else L_C))
    def scpf(lo=0):
        pf_decode(A, PFI, 60, 58, 54, lo=lo)
        A("buffer_load_dword v57, v56, s[60:63], s58 offen")
        A("s_add_u32 s%d, s%d, 320" % (PFI, PFI))
    for _ in range(cfg.pf_a2): scpf(L_C)
    A("s_cmp_lt_u32 s%d, 36" % CB)
    A("s_cbranch_scc1 scan2")
    for _ in range(sum(cfg.scm) + cfg.pf_b): scpf(L_C)
    A("s_branch scan_done")
    A.label("scan2")
    A("v_and_b32 v3, 7, v0")
    A("v_lshrrev_b32 v4, 3, v0")
    A("v_lshlrev_b32 v5, 10, v4")
    A("v_and_b32 v6, 3, v3")
    A("v_lshl_add_u32 v5, v6, 4, v5")
    A("v_lshrrev_b32 v6, 2, v3")
    A("v_lshl_add_u32 v5, v6, 16, v5")
    A("s_lshl_b32 s40, s%d, 17" % CB)
    A("v_lshlrev_b32 v9, 2, v3")
    A("s_lshl_b32 s41, s%d, 5" % CB)
    for (r, ptr) in ((10, PLRE), (11, PLIM), (12, PLOGDT)):
        srd(A, 4, ptr, 1152)
        A("buffer_load_dword v%d, v9, s[4:7], s41 offen" % r)
    L = [18, 20]; L32 = [22, 24]; L256 = [26, 28]; C2 = [30, 32]
    A("s_mov_b32 s44, 0x%x" % f2u(math.log2(math.e)))
    A("s_mov_b32 s45, 0x%x" % f2u(1.0 / (2 * math.pi)))
    A("s_waitcnt vmcnt(0)")
    def sq(d, s_):
        A("v_mul_f32 v40, v%d, v%d" % (s_ + 1, s_ + 1))
        A("v_mul_f32 v41, v%d, v%d" % (s_, s_ + 1))
        A("v_fma_f32 v%d, v%d, v%d, -v40" % (d, s_, s_))
        A("v_add_f32 v%d, v41, v41" % (d + 1))
    for c in range(2):
        for (d, s_) in ((34, 10), (35, 11), (36, 12)):
            if c == 0: A("v_lshlrev_b32 v%d, 16, v%d" % (d, s_))
            else: A("v_and_b32 v%d, 0xffff0000, v%d" % (d, s_))
        A("v_mul_f32 v36, s44, v36")
        A("v_exp_f32 v36, v36")
        A("s_nop 0")
        round_bf16(A, 36, 36)
        A("v_mul_f32 v37, v36, v34")
        A("v_mul_f32 v38, v36, v35")
        A("v_mul_f32 v37, s44, v37")
        A("v_mul_f32 v38, s45, v38")
        A("v_exp_f32 v37, v37")
        A("v_fract_f32 v38, v38")
        A("v_cos_f32 v39, v38")
        A("v_sin_f32 v38, v38")
        A("s_nop 0")
        A("v_mul_f32 v%d, v37, v39" % L[c])
        A("v_mul_f32 v%d, v37, v38" % (L[c] + 1))
        sq(L32[c], L[c])
        for _ in range(4): sq(L32[c], L32[c])
        sq(L256[c], L32[c])
        for _ in range(2): sq(L256[c], L256[c])
        A("v_add_f32 v37, -1.0, v%d" % L[c])
        A("v_mul_f32 v38, v34, v34")
        A("v_fmac_f32 v38, v35, v35")
        A("v_rcp_f32 v38, v38")
        A("v_mul_f32 v39, v37, v34")
        A("v_fmac_f32 v39, v%d, v35" % (L[c] + 1))
        A("v_mul_f32 v40, v%d, v34" % (L[c] + 1))
        A("v_fma_f32 v40, -v37, v35, v40")
        A("v_add_f32 v38, v38, v38")
        A("v_mul_f32 v%d, v39, v38" % C2[c])
        A("v_mul_f32 v%d, v40, v38" % (C2[c] + 1))
    A("s_mul_i32 s43, s%d, 21846" % CB)
    A("s_lshr_b32 s43, s43, 16")
    A("s_lshl_b32 s43, s43, 9")
    A("s_add_u32 s43, s43, %d" % FL_G)
    A("s_cmp_lg_u32 s%d, 0" % WAVE)
    A("s_cbranch_scc1 scan_g")
    gate_issue(A, 43)
    gate_check(A, 43, (1 << 64) - 1)
    A.label("scan_g")
    A("s_barrier")
    stamp(A, cfg, 3)
    srd(A, 4, PWS, SZ_G, WS_G)
    srd(A, 12, PWS, SZ_HT, WS_HT)
    G0 = 56; RW = 184
    for j in range(16):
        A("buffer_load_dwordx4 %s, v5, s[4:7], s40 offen offset:%d %s" % (v(RW + 4 * j, 4), j * 64, cfg.gl))
    LDS_AGG = 9216; LDS_WAGG = LDS_AGG + 8192
    H = 10; T2 = 34
    def stepf(Lr, src):
        for c in range(2):
            A("v_pk_fma_f32 %s, %s, %s, %s op_sel_hi:[0,1,1]" % (v(T2 + 2 * c, 2), v(Lr[c], 2), v(H + 2 * c, 2), v(src + 2 * c, 2)))
        for c in range(2):
            A("v_pk_fma_f32 %s, %s, %s, %s op_sel:[1,1,0] op_sel_hi:[1,0,1] neg_lo:[1,0,0]" % (v(H + 2 * c, 2), v(Lr[c], 2), v(H + 2 * c, 2), v(T2 + 2 * c, 2)))
    for i in range(4): A("v_mov_b32 v%d, 0" % (H + i))
    for j in range(16):
        A("s_waitcnt vmcnt(%d)" % (15 - j))
        for e in range(2):
            g = G0 + 4 * (2 * j + e)
            for c in range(2):
                A("v_lshlrev_b32 v%d, 16, v%d" % (g + 2 * c, RW + 4 * j + 2 * e + c))
                A("v_and_b32 v%d, 0xffff0000, v%d" % (g + 2 * c + 1, RW + 4 * j + 2 * e + c))
        for e in range(2):
            g = G0 + 4 * (2 * j + e)
            for c in range(2):
                A("v_pk_mul_f32 %s, %s, %s op_sel_hi:[0,1]" % (v(40 + 4 * e + 2 * c, 2), v(C2[c], 2), v(g + 2 * c, 2)))
        for e in range(2):
            g = G0 + 4 * (2 * j + e)
            for c in range(2):
                A("v_pk_fma_f32 %s, %s, %s, %s op_sel:[1,1,0] op_sel_hi:[1,0,1] neg_lo:[1,0,0]" % (v(g + 2 * c, 2), v(C2[c], 2), v(g + 2 * c, 2), v(40 + 4 * e + 2 * c, 2)))
        for e in range(2): stepf(L, G0 + 4 * (2 * j + e))
    A("v_lshlrev_b32 v8, 7, v2")
    def scpf2():
        pf_decode(A, PFI, 60, 58, 54, lo=L_C)
        A("buffer_load_dword v9, v8, s[60:63], s58 offen")
        A("s_add_u32 s%d, s%d, 320" % (PFI, PFI))
    for _ in range(cfg.scm[0] + cfg.scm[1]): scpf2()
    stamp(A, cfg, 4)
    A("v_lshlrev_b32 v15, 4, v3")
    A("v_lshlrev_b32 v17, 4, v0")
    A("ds_write_b128 v17, %s offset:%d" % (v(H, 4), LDS_AGG))
    A("s_lshl_b32 s44, s%d, 10" % WAVE)
    A("v_add_u32 v17, s44, v15")
    A("s_waitcnt lgkmcnt(0)")
    AG = 184; WG_ = 216
    for j in range(8): A("ds_read_b128 %s, v17 offset:%d" % (v(AG + 4 * j, 4), LDS_AGG + j * 128))
    A("s_waitcnt lgkmcnt(7)")
    for i in range(4): A("v_mov_b32 v%d, v%d" % (H + i, AG + i))
    for j in range(1, 8):
        A("s_waitcnt lgkmcnt(%d)" % (7 - j))
        stepf(L32, AG + 4 * j)
    A("s_lshl_b32 s44, s%d, 7" % WAVE)
    A("v_add_u32 v17, s44, v15")
    A("ds_write_b128 v17, %s offset:%d" % (v(H, 4), LDS_WAGG))
    A("s_waitcnt lgkmcnt(0)")
    A("s_barrier")
    for j in range(7): A("ds_read_b128 %s, v15 offset:%d" % (v(WG_ + 4 * j, 4), LDS_WAGG + j * 128))
    for i in range(4): A("v_mov_b32 v%d, 0" % (H + i))
    A("v_lshrrev_b32 v17, 3, v2")
    A("s_waitcnt lgkmcnt(0)")
    for j in range(7):
        A("s_cmp_le_u32 s%d, %d" % (WAVE, j))
        A("s_cbranch_scc1 scan_w")
        stepf(L256, WG_ + 4 * j)
    A.label("scan_w")
    for j in range(7):
        A("v_cmpx_lt_u32 vcc, %d, v17" % j)
        stepf(L32, AG + 4 * j)
    A("s_mov_b64 exec, -1")
    A("s_barrier")
    stamp(A, cfg, 10)
    for _ in range(cfg.scm[2]): scpf2()
    A("s_mul_i32 s44, s%d, %d" % (WAVE, 32 * 528))
    A("v_mul_u32_u24 v48, 528, v3")
    A("v_lshl_add_u32 v48, v17, 6, v48")
    A("v_add_u32 v48, s44, v48")
    A("v_lshrrev_b32 v49, 5, v2")
    A("v_and_b32 v50, 31, v2")
    A("v_lshlrev_b32 v50, 4, v50")
    A("v_mul_u32_u24 v51, 528, v49")
    A("v_add3_u32 v51, v51, v50, s44")
    A("v_lshl_add_u32 v50, v49, 13, v50")
    A("s_lshr_b32 s45, s%d, 1" % CB)
    A("s_lshl_b32 s45, s45, 5")
    A("s_and_b32 s46, s%d, 1" % CB)
    A("s_lshl_b32 s46, s46, 3")
    A("s_add_u32 s45, s45, s46")
    A("s_lshl_b32 s45, s45, 12")
    A("s_lshl_b32 s46, s%d, 9" % WAVE)
    A("s_add_u32 s45, s45, s46")
    PK = 184
    for blk in range(4):
        for k in range(8):
            g = G0 + 4 * (blk * 8 + k)
            hp = H if (blk == 0 and k == 0) else g - 4
            for c in range(2):
                A("v_pk_fma_f32 %s, %s, %s, %s op_sel_hi:[0,1,1]" % (v(g + 2 * c, 2), v(L[c], 2), v(hp + 2 * c, 2), v(g + 2 * c, 2)))
            for c in range(2):
                A("v_pk_fma_f32 %s, %s, %s, %s op_sel:[1,1,0] op_sel_hi:[1,0,1] neg_lo:[1,0,0]" % (v(g + 2 * c, 2), v(L[c], 2), v(hp + 2 * c, 2), v(g + 2 * c, 2)))
        pkb = PK + blk * 16
        for q in range(4):
            for k in range(4):
                g = G0 + 4 * (blk * 8 + 2 * k)
                sg = "-" if q & 1 else ""
                A("v_cvt_pk_bf16_f32 v%d, %sv%d, %sv%d" % (pkb + 4 * q + k, sg, g + q, sg, g + 4 + q))
        for q in range(4):
            A("ds_write_b128 v48, %s offset:%d" % (v(pkb + 4 * q, 4), q * 8 * 528 + blk * 16))
    A("s_waitcnt lgkmcnt(0)")
    stamp(A, cfg, 11)
    for n in range(16):
        A("ds_read_b128 %s, v51 offset:%d" % (v(G0 + 4 * n, 4), n * 2 * 528))
        if n == 7: A("s_waitcnt lgkmcnt(0)")
    for n in range(16):
        q = n >> 2; k = n & 3; c = q >> 1; part = q & 1
        row = 16 * (k & 1) + 4 * (k >> 1) + c + 576 * part
        if n >= 8: A("s_waitcnt lgkmcnt(%d)" % (15 - n))
        A("s_add_u32 s46, s45, %d" % (row * 4096))
        A("buffer_store_dwordx4 %s, v50, s[12:15], s46 offen sc1" % v(G0 + 4 * n, 4))
    A("s_lshl_b32 s52, s%d, 9" % WAVE)
    A("s_lshl_b32 s44, s%d, 3" % CB)
    A("s_add_u32 s52, s52, s44")
    A("s_add_u32 s52, s52, %d" % FL_T)
    A("s_waitcnt vmcnt(0)")
    publish(A, 52)
    stamp(A, cfg, 5)
    A("s_barrier")
    for _ in range(cfg.pf_b): scpf2()
    A.label("scan_done")
    A("s_waitcnt vmcnt(0)")
    A("s_barrier")
    A("s_cmp_lt_u32 s%d, 4" % WAVE)
    A("s_cbranch_scc1 c3_entry")
    A("s_branch l3_entry")
    A.label("text_end")
    A("s_endpgm")

    HEADER = open("ref_header.txt").read().split("; @launch")[0]
    out = HEADER + "; @launch grid=(256,1,1) block=(512,1,1) lds=163840\n"
    out += '.amdgcn_target "amdgcn-amd-amdhsa--gfx950"\n.text\n' + A.text()
    out += '.section .rodata,"a"\n.p2align 6\n' + kd(KN, 256, 102)
    return out

if __name__ == "__main__":
    kw = {}
    for a_ in sys.argv[2:]:
        k, val = a_.split("=")
        kw[k] = ast.literal_eval(val)
    open(sys.argv[1], "w").write(gen(**kw))
```

```python
import sys, math, ast
from asmlib import *

NAME = "parallel_sum__ssm_conv_s5__mixer_token_mlp__prompt"
PAIR = 2048
SIDE = 0x3000000
WS_HF = 0x0;        SZ_HF = 32 * 36 * PAIR
WS_UF = 0x400000;   SZ_UF = 72 * 36 * PAIR
WS_G = 0xC00000;    SZ_G = 4718592
WS_HT = 0x1400000;  SZ_HT = 4718592
WS_ST = 0x1900000;  SZ_ST = 16384 + 8192
WS_FL = 0x1910000;  SZ_FL = 65536
WS_EX = 0x2000000;  SZ_EX = 64 * 16 * 9216
WS_STAMP = 0xC000000
SZ_W = 2048 * 9216; SZ_C = 576 * 1152; SZ_X = 2359296
FL_H = 0
FL_G = 2048
FL_U = FL_G + 12 * 512
FL_T = FL_U + 16 * 512
FL_X = FL_T + 8 * 512
assert FL_X + 256 * 128 <= SZ_FL

PX, PLRE, PLIM, PBRE, PBIM, PCRE, PCIM, PLOGDT, PDSK, PBX, PW1, PB1, PW2, PB2, POUT, PDBG, PWS = [64 + 2 * i for i in range(17)]
WAVE, SLOTR, XCD = 20, 21, 22
TAG = 24
RING = 26
CNT = 27
EVT = 28
NS = 4; SLOT = 34816; LDS_OWN = NS * SLOT
MFMA = "v_mfma_f32_16x16x32_bf16"
SPIN = 1 << 14
SIG = 163776
NS2 = 5; SLOT2 = 28672; LDS_LN = NS2 * SLOT2

DOC = """;
"""

class Cfg:
    stamp = False
    pf_a = 1
    scm = (0, 0, 0)
    pf_b = 1
    lnpf = 1
    rot1 = 1; rot2 = 1; rot3 = 1
    hl = "sc1"
    codepf = 1
    gl = ""
    pf_a2 = 0
    dbgst = 0
    xint = 1
    upub = 1
    xpos = 2
    binit = 1
    nt3 = 0
    nt3s = 0
    al = 0
    alp = 0
    csb = 1
    xpoll = 1
    pollat = 29
    adv2 = 4
    gpub = 1
    side = 1
    sto = ""
    tlbw = 0
    fast = 0
    hoist = 1
    hack3 = 0
    ord2 = 0
    ord3 = 0
    pair2 = 0
    pair3 = 0
    bsleep = 10
    gsleep = 4
    csleep = 0
    pro = 3
    e1 = (7,)

class G:
    pass

def stamp(A, cfg, idx):
    if cfg.stamp:
        A("s_memrealtime s[98:99]")
        A("s_memtime s[100:101]")
        A("s_waitcnt lgkmcnt(0)")
        A("v_writelane_b32 v255, s98, %d" % idx)
        A("v_writelane_b32 v255, s100, %d" % (idx + 16))

def stamp_end(A, cfg):
    if not cfg.stamp: return
    A("s_waitcnt vmcnt(0)")
    stamp(A, cfg, 15)
    srd(A, 4, PWS, 262144, WS_STAMP)
    A("s_lshl_b32 s30, s2, 3")
    A("s_add_u32 s30, s30, s%d" % WAVE)
    A("s_lshl_b32 s30, s30, 7")
    A("v_lshlrev_b32 v3, 2, v2")
    A("s_mov_b32 exec_lo, -1\ns_mov_b32 exec_hi, 0")
    A("buffer_store_dword v255, v3, s[4:7], s30 offen")
    if cfg.dbgst:
        A("s_cmp_lg_u32 s2, %d" % cfg.dbgst)
        A("s_cbranch_scc1 dbg_skip")
        srd(A, 4, PDBG, 256)
        A("v_readlane_b32 s31, v255, 0")
        A("s_nop 3")
        A("v_subrev_u32 v255, s31, v255")
        A("s_cmp_eq_u32 s%d, 3" % WAVE)
        A("s_cbranch_scc0 dbg_l")
        A("s_mov_b64 exec, 0x3ffc")
        A("buffer_store_dword v255, v3, s[4:7], 0 offen")
        A.label("dbg_l")
        A("s_cmp_eq_u32 s%d, 4" % WAVE)
        A("s_cbranch_scc0 dbg_skip")
        A("s_mov_b64 exec, 0x8000")
        A("buffer_store_dword v255, v3, s[4:7], 0 offen")
        A("s_mov_b64 exec, 0x200")
        A("buffer_store_dword v255, v3, s[4:7], 0 offen offset:20")
        A.label("dbg_skip")

def slot_adv(ph, sreg=RING):
    sl, n = (SLOT, NS) if ph == 3 else (SLOT2, NS2)
    return ["s_add_u32 s%d, s%d, %d" % (sreg, sreg, sl), "s_cmp_eq_u32 s%d, %d" % (sreg, n * sl), "s_cselect_b32 s%d, 0, s%d" % (sreg, sreg)]

def row16_sum(A, r):
    for sh in (8, 4, 2, 1):
        A("s_nop 1")
        A("v_add_f32_dpp v%d, v%d, v%d row_ror:%d row_mask:0xf bank_mask:0xf" % (r, r, r, sh))

def round_bf16(A, dst, src):
    A("v_cvt_pk_bf16_f32 v%d, v%d, v%d" % (dst, src, src))
    A("v_lshlrev_b32 v%d, 16, v%d" % (dst, dst))

L_C = 2304; L_W2 = 2304 + 162; L_END = L_W2 + 72 * 32
def pf_decode(A, idx, d, off, t, lo=0):
    A("s_sub_u32 s%d, s%d, %d" % (off, idx, L_W2))
    A("s_bfe_u32 s%d, s%d, 0x20005" % (t, off))
    A("s_mul_i32 s%d, s%d, %d" % (t, t, 18 * 32))
    A("s_lshr_b32 s%d, s%d, 7" % (t + 1, off))
    A("s_lshl_b32 s%d, s%d, 5" % (t + 1, t + 1))
    A("s_add_u32 s%d, s%d, s%d" % (t, t, t + 1))
    A("s_and_b32 s%d, s%d, 31" % (off, off))
    A("s_add_u32 s%d, s%d, s%d" % (off, off, t))
    A("s_cmp_ge_u32 s%d, %d" % (idx, L_END))
    A("s_cselect_b32 s%d, 4096, s%d" % (off, off))
    A("s_mov_b32 s%d, s%d\ns_mov_b32 s%d, s%d\ns_mov_b32 s%d, %d" % (d, PW2, d + 1, PW2 + 1, d + 2, SZ_W))
    for (hi, sub, base, sz) in ((L_W2, L_C + 81, PCIM, SZ_C), (L_C + 81, L_C, PCRE, SZ_C), (L_C, 0, PW1, SZ_W)):
        if hi <= lo: continue
        A("s_sub_u32 s%d, s%d, %d" % (t, idx, sub))
        A("s_cmp_lt_u32 s%d, %d" % (idx, hi))
        A("s_cselect_b32 s%d, s%d, s%d" % (off, t, off))
        A("s_cselect_b32 s%d, s%d, s%d" % (d, base, d))
        A("s_cselect_b32 s%d, s%d, s%d" % (d + 1, base + 1, d + 1))
        A("s_cselect_b32 s%d, %d, s%d" % (d + 2, sz, d + 2))
    A("s_mov_b32 s%d, 0x00020000" % (d + 3))
    A("s_lshl_b32 s%d, s%d, 13" % (off, off))

GSLEEP = [8]
FSRD = 16; VL8 = 248; VT = 250; VP = 252
def tag_issue(A):
    srd(A, 60, PDBG, 256)
    A("v_mov_b32 v249, 0")
    A("buffer_load_dwordx2 v[%d:%d], v249, s[60:63], 0 offen sc1" % (VT, VT + 1))
def tag_check(A):
    lp = A.newlabel("tg"); ok = A.newlabel("tg"); rt = A.newlabel("tg")
    A("s_mov_b32 s59, 0")
    A.label(lp)
    A("s_waitcnt vmcnt(0)")
    A("v_readfirstlane_b32 s58, v%d" % VT)
    A("s_add_u32 s59, s59, 1")
    A("s_cmp_eq_u32 s58, 0")
    A("s_cbranch_scc1 %s" % rt)
    A("s_sub_u32 s58, s%d, s58" % TAG)
    A("s_cmp_lt_i32 s58, 1500")
    A("s_cbranch_scc1 %s" % ok)
    A("s_cmp_gt_u32 s59, 64")
    A("s_cbranch_scc1 %s" % ok)
    A.label(rt)
    A("s_cmp_gt_u32 s59, %d" % SPIN)
    A("s_cbranch_scc1 %s" % ok)
    A("s_sleep 2")
    tag_issue(A)
    A("s_branch %s" % lp)
    A.label(ok)
def publish(A, offreg):
    A("s_mov_b64 exec, 1")
    A("buffer_store_dwordx2 v[%d:%d], v%d, s[%d:%d], s%d offen sc1" % (VT, VT + 1, VL8, FSRD, FSRD + 3, offreg))
    A("s_mov_b64 exec, -1")
def gate_issue(A, offreg):
    A("buffer_load_dwordx2 v[%d:%d], v%d, s[%d:%d], s%d offen sc1" % (VP, VP + 1, VL8, FSRD, FSRD + 3, offreg))
def gate_check(A, offreg, mask, first_wait=0):
    lp = A.newlabel("gt"); ok = A.newlabel("gt")
    A("s_mov_b32 s59, 0")
    if isinstance(mask, int):
        A("s_mov_b32 s56, 0x%x" % (mask & 0xffffffff))
        A("s_mov_b32 s57, 0x%x" % (mask >> 32))
        mask = "s[56:57]"
    A("s_waitcnt vmcnt(%d)" % first_wait)
    A.label(lp)
    A("v_cmp_ne_u64 vcc, v[%d:%d], v[%d:%d]" % (VP, VP + 1, VT, VT + 1))
    A("s_add_u32 s59, s59, 1")
    A("s_and_b64 vcc, vcc, %s" % mask)
    A("s_cbranch_scc0 %s" % ok)
    A("s_cmp_gt_u32 s59, %d" % SPIN)
    A("s_cbranch_scc1 %s" % ok)
    A("s_sleep %d" % GSLEEP[0])
    gate_issue(A, offreg)
    A("s_waitcnt vmcnt(0)")
    A("s_branch %s" % lp)
    A.label(ok)

VW = 240
def wide_issue(A):
    A("v_lshlrev_b32 v249, 4, v2")
    A("buffer_load_dwordx4 v[%d:%d], v249, s[%d:%d], 0 offen sc1" % (VW, VW + 3, FSRD, FSRD + 3))
    A("buffer_load_dwordx4 v[%d:%d], v249, s[%d:%d], 0 offen offset:1024 sc1" % (VW + 4, VW + 7, FSRD, FSRD + 3))
def wide_check(A):
    lp = A.newlabel("gw"); ok = A.newlabel("gw")
    A("s_mov_b32 s59, 0")
    A.label(lp)
    A("s_waitcnt vmcnt(0)")
    A("v_cmp_ne_u64 vcc, v[%d:%d], v[%d:%d]" % (VW, VW + 1, VT, VT + 1))
    for q in range(1, 4):
        A("v_cmp_ne_u64 s[56:57], v[%d:%d], v[%d:%d]" % (VW + 2 * q, VW + 2 * q + 1, VT, VT + 1))
        A("s_or_b64 vcc, vcc, s[56:57]")
    A("s_cbranch_scc0 %s" % ok)
    A("s_add_u32 s59, s59, 1")
    A("s_cmp_gt_u32 s59, %d" % SPIN)
    A("s_cbranch_scc1 %s" % ok)
    A("s_sleep %d" % GSLEEP[0])
    wide_issue(A)
    A("s_branch %s" % lp)
    A.label(ok)

def group(A, ms, rs, nprev, extra=(), pts=None):
    rs = list(rs); issued = 0; waited = -1
    for i, (m, need) in enumerate(ms):
        if pts is not None:
            if i in pts:
                nxt = min([p for p in pts if p > i] + [len(ms)])
                need = max(n for _, n in ms[i:nxt])
            else:
                assert need <= waited
        if need > waited:
            A("s_waitcnt lgkmcnt(%d)" % min(15, nprev - 1 - need + issued))
            waited = need
        A(m)
        if rs:
            A(rs.pop(0)); issued += 1
        for pos, t in extra:
            if pos == i: A(t)
    for r in rs: A(r)

ALN = [0, 0]
def align(A):
    if ALN[0]:
        A.raw(".p2alignl %d, 0xbf800000" % ALN[0])
        for _ in range(ALN[1]): A("s_nop 0")

def capture(A, fn):
    mark = len(A.lines); fn()
    body = [l.strip() for l in A.lines[mark:]]; del A.lines[mark:]
    return body

def spread(instrs, n, start=0, per=2):
    out = []
    for k, t in enumerate(instrs):
        out.append((min(n - 1, start + k // per), t))
    return out

class Phase:
    def __init__(self, A, pfx, reads, mfmas, upd, pts, ph):
        self.A, self.pfx, self.reads, self.mfmas, self.upd, self.pts, self.ph = A, pfx, reads, mfmas, upd, pts, ph
        self.n = len(reads(0, 0)); self.nm = len(mfmas(1))
    def first(self, xb=(), cinit=None):
        A = self.A
        for r in self.reads(0, 0): A(r)
        m0 = [(m[:m.rindex(",")] + ", " + (cinit(i) if cinit else "0"), need) for i, (m, need) in enumerate(self.mfmas(0))]
        group(A, m0, self.reads(1, 1), self.n, self.upd(), self.pts)
        group(A, self.mfmas(1), self.reads(0, 0), self.n, xb, self.pts)
    def it(self, pre=None, xb=()):
        A = self.A
        group(A, self.mfmas(0), self.reads(1, 1), self.n, self.upd(), self.pts)
        if pre: pre()
        A("s_barrier")
        group(A, self.mfmas(1), self.reads(0, 0), self.n, xb, self.pts)
    def loop(self, tag, count):
        A = self.A
        if isinstance(count, int): A("s_mov_b32 s%d, %d" % (CNT, count))
        else: A(count)
        align(A)
        A.label(self.pfx + tag)
        self.it(None, [(self.nm - 3, "s_sub_u32 s%d, s%d, 1" % (CNT, CNT)), (self.nm - 2, "s_cmp_lg_u32 s%d, 0" % CNT)])
        A("s_cbranch_scc1 %s%s" % (self.pfx, tag))
    def tail(self, work=()):
        A = self.A
        work = list(work)
        na = self.nm - 3
        group(A, self.mfmas(0), self.reads(1, 1), self.n, list(enumerate(slot_adv(self.ph))) + spread(work[:na], self.nm, 3, 1), self.pts)
        group(A, self.mfmas(1), [], self.n, spread(work[na:], self.nm, 0, 2), self.pts)

def gen(**kw):
    cfg = Cfg()
    for k, val in kw.items():
        assert hasattr(Cfg, k), k
        setattr(cfg, k, val)
    A = Asm()
    HL = cfg.hl
    ALN[0] = cfg.al; ALN[1] = cfg.alp
    NLP = 72 if cfg.csb else 216
    GSLEEP[0] = cfg.gsleep
    late = []
    KN = NAME + "_kernel"
    A.raw(".globl %s\n.p2align 8\n.type %s,@function" % (KN, KN))
    A.label(KN)
    A("s_cmp_ge_u32 s2, 256")
    A("s_cbranch_scc1 k_end")
    A("s_load_dwordx16 s[64:79], s[0:1], 0")
    A("s_load_dwordx16 s[80:95], s[0:1], 64")
    A("s_load_dwordx2 s[96:97], s[0:1], 128")
    A("s_memrealtime s[%d:%d]" % (TAG, TAG + 1))
    A("v_lshrrev_b32 v1, 6, v0")
    A("v_and_b32 v2, 63, v0")
    A("v_readfirstlane_b32 s%d, v1" % WAVE)
    A("s_and_b32 s%d, s2, 7" % XCD)
    A("s_lshr_b32 s%d, s2, 3" % SLOTR)
    A("s_sub_u32 s3, s%d, 19" % SLOTR)
    A("s_cmp_lt_u32 s3, 8")
    A("s_cselect_b32 s%d, %d, %d" % (RING, 3, 4))
    A("s_mul_i32 s%d, s%d, %d" % (RING, RING, SLOT2))
    A("v_lshlrev_b32 v%d, 3, v2" % VL8)
    if cfg.stamp:
        A("v_mov_b32 v255, 0")
        A("s_waitcnt lgkmcnt(0)")
        A("v_writelane_b32 v255, s%d, 0" % TAG)
    TT, PT, FT, DT, SP, ST, D3, KT3, NF, F0 = 30, 31, 32, 33, 34, 35, 36, 37, 38, 39
    A("s_cmp_ge_u32 s%d, 12" % SLOTR)
    A("s_cselect_b32 s%d, 1, 0" % TT)
    A("s_cselect_b32 s%d, 12, 0" % PT)
    A("s_cmp_ge_u32 s%d, 27" % SLOTR)
    A("s_cselect_b32 s%d, 20, s%d" % (PT, PT))
    A("s_sub_u32 s%d, s%d, s%d" % (PT, SLOTR, PT))
    A("s_lshl_b32 s3, s%d, 1" % XCD)
    A("s_add_u32 s%d, s%d, s3" % (TT, TT))
    A("s_cmp_ge_u32 s%d, 4" % WAVE)
    A("s_cbranch_scc1 hi_entry")

    def ids23():
        A("s_lshl_b32 s3, s%d, 3" % XCD)
        A("s_mov_b32 s%d, 0x%x\ns_mov_b32 s%d, 0x%x" % (FT, 0x0206090c, FT + 1, 0x0f121518))
        A("s_lshr_b64 s[%d:%d], s[%d:%d], s3" % (FT, FT + 1, FT, FT + 1))
        A("s_and_b32 s%d, s%d, 0xff" % (FT, FT))
        A("s_add_u32 s%d, s%d, s%d" % (FT, FT, SLOTR))
        A("s_cmp_ge_u32 s%d, 27" % FT)
        A("s_cselect_b32 s3, 27, 0")
        A("s_sub_u32 s%d, s%d, s3" % (FT, FT))
        A("s_mul_i32 s3, s%d, 27" % XCD)
        A("s_add_u32 s3, s3, s%d" % FT)
        A("s_mul_i32 s%d, s3, 43691" % FT)
        A("s_lshr_b32 s%d, s%d, 18" % (FT, FT))
        A("s_mul_i32 s%d, s%d, 6" % (DT, FT))
        A("s_sub_u32 s%d, s3, s%d" % (DT, DT))
        A("s_lshr_b32 s%d, s%d, 1" % (SP, XCD))
        A("s_and_b32 s3, s%d, 1" % XCD)
        A("s_lshl_b32 s3, s3, 3")
        A("s_lshr_b32 s%d, s%d, 2" % (ST, SLOTR))
        A("s_add_u32 s%d, s%d, s3" % (ST, ST))
        A("s_and_b32 s%d, s%d, 3" % (D3, SLOTR))
        A("s_cmp_ge_u32 s%d, 2" % SP)
        A("s_cselect_b32 s%d, 4, 5" % NF)
        A("s_add_u32 s%d, s%d, 18" % (KT3, NF))
        A("s_mul_i32 s%d, s%d, 5" % (F0, SP))
        A("s_cmp_eq_u32 s%d, 3" % SP)
        A("s_cselect_b32 s%d, 14, s%d" % (F0, F0))

    WR, WC = 40, 41
    KEY3 = 42
    def lane_c23():
        A("v_lshrrev_b32 v5, 2, v2")
        A("v_and_b32 v6, 7, v5")
        A("v_and_b32 v7, 3, v2")
        A("v_lshlrev_b32 v7, 3, v7")
        A("v_lshl_add_u32 v7, v5, 8, v7")
        A("s_lshl_b32 s44, s%d, 2" % WR)
        for aa in range(4):
            A("s_add_u32 s45, s44, %d" % aa)
            A("v_xor_b32 v8, s45, v6")
            A("v_lshl_add_u32 v%d, v8, 5, v7" % (204 + aa))
        A("s_mul_i32 s45, s%d, 6144" % WC)
        A("s_add_u32 s45, s45, 16384")
        A("v_lshlrev_b32 v216, 4, v2")
        A("v_add_u32 v208, s45, v216")
        A("s_lshl_b32 s44, s%d, 1" % WAVE)
        for aa in range(2):
            A("s_add_u32 s45, s44, %d" % aa)
            A("v_xor_b32 v8, s45, v6")
            A("v_lshl_add_u32 v%d, v8, 5, v7" % (209 + aa))
        A("v_and_b32 v3, 15, v2")
        A("v_lshrrev_b32 v4, 4, v2")
        A("v_and_b32 v5, 7, v3")
        A("v_xor_b32 v5, v5, v4")
        A("v_lshlrev_b32 v5, 4, v5")
        A("v_lshl_add_u32 v5, v3, 7, v5")
        A("v_add_u32 v211, 16384, v5")
        A("v_xor_b32 v212, 64, v211")
        A("v_add_u32 v213, 16384, v216")
        A("v_add_u32 v214, 17408, v216")
        A("v_lshlrev_b32 v217, 3, v4")
        A("v_mov_b32 v215, v216")
        if cfg.side:
            A("v_lshrrev_b32 v5, 3, v2")
            A("v_cmp_eq_u32 vcc, 3, v5")
            A("v_add_u32 v5, 0x%x, v215" % (SIDE + 128))
            A("s_nop 0")
            A("v_cndmask_b32 v215, v215, v5, vcc")
    def wrwc():
        A("s_and_b32 s%d, s%d, 1" % (WR, WAVE))
        A("s_lshr_b32 s%d, s%d, 1" % (WC, WAVE))
    RAW = 164; X = 174; TT_ = 220; RS = 1344
    S0, S2, M, MB, RSV = 192, 193, 194, 196, 197
    LA = 238
    def ln_load():
        A("s_lshr_b32 s44, s2, 2")
        A("s_lshl_b32 s44, s44, 5")
        A("s_and_b32 s45, s2, 3")
        A("s_lshl_b32 s45, s45, 2")
        A("s_add_u32 s44, s44, s45")
        A("s_lshr_b32 s45, s%d, 1" % WAVE)
        A("s_lshl_b32 s45, s45, 4")
        A("s_add_u32 s44, s44, s45")
        A("s_and_b32 s45, s%d, 1" % WAVE)
        A("s_lshl_b32 s45, s45, 1")
        A("s_add_u32 s51, s44, s45")
        A("s_mul_i32 s44, s51, 1152")
        A("v_lshrrev_b32 v3, 5, v2")
        A("v_and_b32 v4, 31, v2")
        A("v_mul_u32_u24 v5, 1152, v3")
        A("v_lshl_add_u32 v6, v4, 2, v5")
        A("v_lshl_add_u32 v5, v4, 3, v5")
        A("s_waitcnt lgkmcnt(0)")
        srd(A, 4, PX, SZ_X)
        for j in range(4):
            A("buffer_load_dwordx2 %s, v5, s[4:7], s44 offen offset:%d" % (v(RAW + 2 * j, 2), j * 256))
        A("buffer_load_dword v%d, v6, s[4:7], s44 offen offset:1024" % (RAW + 8))
        A("s_mul_i32 s45, s%d, %d" % (WAVE, 2 * RS))
        A("s_add_u32 s45, s45, %d" % LDS_LN)
        A("v_mul_u32_u24 v%d, %d, v3" % (LA, RS))
        A("v_add_u32 v%d, s45, v%d" % (LA, LA))
        A("v_lshl_add_u32 v195, v4, 2, v%d" % LA)
        A("v_lshl_add_u32 v%d, v4, 3, v%d" % (LA, LA))
        A("v_lshlrev_b32 v198, 3, v3")
        A("v_bfe_u32 v5, v2, 2, 2")
        A("v_mul_u32_u24 v5, %d, v5" % RS)
        A("v_and_b32 v6, 3, v2")
        A("v_lshl_add_u32 v5, v6, 3, v5")
        A("v_lshrrev_b32 v6, 4, v2")
        A("v_lshl_add_u32 v5, v6, 5, v5")
        A("v_add_u32 v%d, %d, v5" % (LA + 1, LDS_LN))
        A("v_and_b32 v5, 15, v2")
        A("v_lshlrev_b32 v5, 4, v5")
        A("v_lshl_add_u32 v199, v6, 11, v5")
        if cfg.side:
            A("s_and_b32 s45, s2, 3")
            A("s_cmp_eq_u32 s45, 1")
            A("s_cselect_b32 s45, 0x%x, 0" % (SIDE + 128))
            A("v_cmp_le_u32 vcc, 128, v5")
            A("v_add_u32 v5, s45, v199")
            A("s_nop 0")
            A("v_cndmask_b32 v199, v199, v5, vcc")
    N = 18
    def unpack(src):
        for j in range(9):
            A("v_lshlrev_b32 v%d, 16, v%d" % (X + 2 * j, src + j))
            A("v_and_b32 v%d, 0xffff0000, v%d" % (X + 2 * j + 1, src + j))
    def sum32(r):
        row16_sum(A, r)
        A("v_mov_b32 v%d, v%d" % (S2, r))
        A("s_nop 1")
        A("v_permlane16_swap_b32 v%d, v%d" % (r, S2))
        A("s_nop 1")
        A("v_add_f32 v%d, v%d, v%d" % (r, r, S2))
    def pk(op, d, a, b, mods=""):
        A("v_pk_%s_f32 %s, %s, %s %s" % (op, v(d, 2), v(a, 2), v(b, 2), mods))
    NEG = "neg_lo:[0,1] neg_hi:[0,1]"
    P0, P2, PM, PB, PR_ = 100, 102, 104, 106, 108
    def layernorm():
        pk("add", P0, X, X + 2); pk("add", P2, X + 4, X + 6)
        for j in range(8, 16, 4):
            pk("add", P0, P0, X + j); pk("add", P2, P2, X + j + 2)
        pk("add", P0, P0, X + 16)
        pk("add", P0, P0, P2)
        A("v_add_f32 v%d, v%d, v%d" % (S0, P0, P0 + 1))
        sum32(S0)
        A("v_mul_f32 v%d, s46, v%d" % (PM, S0))
        A("v_mul_f32 v%d, s46, v%d" % (PM + 1, S0))
        round_bf16(A, MB, PM)
        for j in range(0, N, 2): pk("add", TT_ + j, X + j, PM, NEG)
        A("v_mov_b32 v%d, v%d\nv_mov_b32 v%d, v%d" % (PB, MB, PB + 1, MB))
        pk("mul", P0, TT_, TT_); pk("mul", P2, TT_ + 2, TT_ + 2)
        for j in range(4, N, 2):
            d = P0 if j % 4 == 0 else P2
            A("v_pk_fma_f32 %s, %s, %s, %s" % (v(d, 2), v(TT_ + j, 2), v(TT_ + j, 2), v(d, 2)))
        pk("add", P0, P0, P2)
        A("v_add_f32 v%d, v%d, v%d" % (S0, P0, P0 + 1))
        fill = [("v_pk_add_f32 %s, %s, %s %s" % (v(X + j, 2), v(X + j, 2), v(PB, 2), NEG)) for j in range(0, N, 2)]
        fill += [("v_cvt_pk_bf16_f32 v%d, v%d, v%d" % (RAW + j, X + 2 * j, X + 2 * j + 1)) for j in range(9)]
        def F(n):
            for _ in range(n): A(fill.pop(0))
        for sh in (8, 4, 2, 1):
            F(2)
            A("v_add_f32_dpp v%d, v%d, v%d row_ror:%d row_mask:0xf bank_mask:0xf" % (S0, S0, S0, sh))
        A("v_mov_b32 v%d, v%d" % (S2, S0))
        F(2)
        A("v_permlane16_swap_b32 v%d, v%d" % (S0, S2))
        F(2)
        A("v_add_f32 v%d, v%d, v%d" % (S0, S0, S2))
        A("v_mul_f32 v%d, s46, v%d" % (S0, S0))
        round_bf16(A, S0, S0)
        A("v_add_f32 v%d, s47, v%d" % (S0, S0))
        round_bf16(A, S0, S0)
        A("v_sqrt_f32 v%d, v%d" % (S0, S0))
        F(3)
        round_bf16(A, S0, S0)
        A("v_rcp_f32 v%d, v%d" % (RSV, S0))
        F(len(fill))
        unpack(RAW)
        A("v_mov_b32 v%d, v%d\nv_mov_b32 v%d, v%d" % (PR_, RSV, PR_ + 1, RSV))
        for j in range(0, N, 2): pk("mul", X + j, X + j, PR_)
        for j in range(9): A("v_cvt_pk_bf16_f32 v%d, v%d, v%d" % (RAW + j, X + 2 * j, X + 2 * j + 1))
    def ln_compute():
        srd(A, 8, PWS, SZ_HF + SIDE + 128, WS_HF)
        srd(A, 12, PWS, SZ_ST, WS_ST)
        A("s_mov_b32 s46, 0x%x" % f2u(1.0 / 576))
        A("s_mov_b32 s47, 0x%x" % f2u(1e-5))
        A("s_lshl_b32 s51, s51, 3")
        A("s_lshr_b32 s44, s2, 3")
        A("s_mul_i32 s44, s44, %d" % (36 * 2048))
        A("s_and_b32 s45, s2, 7")
        A("s_lshl_b32 s45, s45, 8")
        A("s_add_u32 s44, s44, s45")
        A("s_mov_b32 s45, 0")
        A("s_waitcnt vmcnt(0)")
        tag_issue(A)
        A.label("ln_loop")
        unpack(RAW)
        layernorm()
        A("s_cmp_lg_u32 s45, 0")
        A("s_cbranch_scc1 ln_out")
        A("s_mov_b32 exec_lo, 1\ns_mov_b32 exec_hi, 1")
        A("buffer_store_dwordx2 v[%d:%d], v198, s[12:15], s51 offen sc1" % (MB, RSV))
        A("s_mov_b64 exec, -1")
        A("s_mov_b32 s45, 1")
        A("s_branch ln_loop")
        A.label("ln_out")
        for j in range(4):
            A("ds_write_b64 v%d, %s offset:%d" % (LA, v(RAW + 2 * j, 2), j * 256))
        A("ds_write_b32 v195, v%d offset:1024" % (RAW + 8))
        tag_check(A)
        A("s_waitcnt lgkmcnt(0)")
    def ln_store():
        sk = A.newlabel("lns")
        A("s_cmp_lg_u32 s%d, 0" % WAVE)
        A("s_cbranch_scc1 %s" % sk)
        HB = 32
        for k in range(9):
            A("ds_read_b64_tr_b16 %s, v%d offset:%d" % (v(HB + 4 * k, 2), LA + 1, k * 128))
            A("ds_read_b64_tr_b16 %s, v%d offset:%d" % (v(HB + 4 * k + 2, 2), LA + 1, k * 128 + 4 * RS))
            if k == 6: A("s_waitcnt lgkmcnt(8)")
        for k in range(9):
            A("s_waitcnt lgkmcnt(%d)" % min(15, 16 - 2 * k))
            A("buffer_store_dwordx4 %s, v199, s[8:11], s44 offen sc1" % v(HB + 4 * k, 4))
            A("s_add_u32 s44, s44, %d" % (4 * 2048))
        A("v_mov_b32 v252, 0\nv_mov_b32 v253, 0\nv_mov_b32 v249, %d" % SIG)
        A("ds_write_b128 v249, v[250:253]")
        A("s_waitcnt lgkmcnt(0)")
        A.label(sk)
    def pubH():
        sk = A.newlabel("ph")
        A("s_cmp_lg_u32 s%d, 0" % WAVE)
        A("s_cbranch_scc1 %s" % sk)
        A("s_lshl_b32 s52, s2, 3")
        A("s_waitcnt vmcnt(0)")
        publish(A, 52)
        stamp(A, cfg, 9)
        A.label(sk)
    A.label("c1_entry")
    ln_load()
    A("s_or_b32 s44, s2, s%d" % WAVE)
    A("s_cbranch_scc1 c1_notag")
    srd(A, 60, PDBG, 256)
    A("s_or_b32 s%d, s%d, 1" % (TAG, TAG))
    A("v_mov_b32 v4, s%d\nv_mov_b32 v5, s%d\nv_mov_b32 v6, 0" % (TAG, TAG + 1))
    A("s_mov_b64 exec, 1")
    A("buffer_store_dwordx2 v[4:5], v6, s[60:63], 0 offen sc1")
    A("s_mov_b64 exec, -1")
    A.label("c1_notag")
    wrwc()
    A("v_and_b32 v3, 15, v2")
    A("v_lshrrev_b32 v4, 4, v2")
    A("v_and_b32 v5, 7, v3")
    A("v_xor_b32 v5, v5, v4")
    A("v_lshlrev_b32 v5, 4, v5")
    A("v_lshl_add_u32 v5, v3, 7, v5")
    A("v_and_b32 v6, 1, v3")
    A("v_lshrrev_b32 v7, 1, v3")
    A("v_and_b32 v8, 6, v7")
    A("v_or_b32 v8, v8, v6")
    A("v_xor_b32 v8, v8, v4")
    A("v_lshlrev_b32 v8, 4, v8")
    A("v_mul_u32_u24 v6, 48, v6")
    A("v_add_u32 v6, v6, v7")
    A("v_lshl_add_u32 v8, v6, 7, v8")
    A("s_lshl_b32 s44, s%d, 13" % WR)
    A("s_mul_i32 s45, s%d, 3072" % WC)
    A("s_add_u32 s45, s45, 16384")
    A("v_add_u32 v200, s44, v5")
    A("v_xor_b32 v201, 64, v200")
    A("v_add_u32 v202, s45, v8")
    A("v_xor_b32 v203, 64, v202")
    A("v_lshlrev_b32 v218, 4, v4")
    A("v_lshl_add_u32 v218, v3, 6, v218")
    CA = 10
    for i in range(4): A("v_add_u32 v%d, s%d, v%d" % (CA + i, RING, 200 + i))
    ACC1 = 32; SETS1 = [80, 108]; RSUM = 136; CSUM = 152; ONES = 20
    A("v_lshlrev_b32 v219, 4, v3")
    if cfg.csb: A("v_lshlrev_b32 v20, 4, v4")
    else:
        for i in range(4): A("v_mov_b32 v%d, 0x3f803f80" % (ONES + i))
    ids23(); lane_c23()
    srd(A, FSRD, PWS, SZ_FL, WS_FL)
    def reads1(st, ks):
        b = SETS1[st]
        P = lambda aa: "ds_read_b128 %s, v%d offset:%d" % (v(b + 4 * aa, 4), CA + ks, aa * 2048)
        Q = lambda xb: "ds_read_b128 %s, v%d offset:%d" % (v(b + 16 + 4 * xb, 4), CA + 2 + ks, xb * 1024)
        return [P(0), Q(0), Q(1), Q(2), P(1), P(2), P(3)]
    def mfmas1(st):
        b = SETS1[st]; m = []
        for aa in range(4):
            for xb in range(3):
                d = v(ACC1 + (aa * 3 + xb) * 4, 4)
                m.append(("%s %s, %s, %s, %s" % (MFMA, d, v(b + 16 + 4 * xb, 4), v(b + 4 * aa, 4), d), max(1 + xb, 3 + aa if aa else 0)))
            if aa < 3 and not cfg.csb:
                d = v(CSUM + 4 * aa, 4)
                m.append(("%s %s, %s, %s, %s" % (MFMA, d, v(b + 16 + 4 * aa, 4), v(ONES, 4), d), 0))
        return m
    def upd1():
        sa = slot_adv(1)
        return [(5, sa[0]), (6, sa[1]), (7, sa[2])] + [(8 + i, "v_add_u32 v%d, s%d, v%d" % (CA + i, RING, 200 + i)) for i in range(4)]
    def only3(fn):
        def f():
            sk = A.newlabel("w3")
            A("s_cmp_lg_u32 s%d, 3" % WAVE)
            A("s_cbranch_scc1 %s" % sk)
            fn()
            A.label(sk)
        return f
    A("s_mul_i32 s44, s%d, 6" % PT)
    A("s_mul_i32 s45, s%d, 3" % WC)
    A("s_add_u32 s44, s44, s45")
    A("s_lshl_b32 s54, s44, 6")
    A("s_add_u32 s54, s54, 16384")
    A("s_lshl_b32 s44, s44, 16")
    A("s_lshl_b32 s45, s%d, 1" % TT)
    A("s_add_u32 s45, s45, s%d" % WR)
    A("s_lshl_b32 s49, s45, 9")
    A("s_lshl_b32 s45, s45, 11")
    A("s_add_u32 s42, s44, s45")
    A("s_add_u32 s43, s42, 65536")
    A("s_add_u32 s48, s42, 131072")
    A("s_lshl_b32 s50, s%d, 4" % PT)
    A("s_add_u32 s50, s50, s%d" % TT)
    A("s_lshl_b32 s50, s50, 2")
    A("s_add_u32 s50, s50, s%d" % WAVE)
    A("s_lshl_b32 s50, s50, 3")
    A("s_add_u32 s50, s50, %d" % FL_G)
    ln_compute()
    stamp(A, cfg, 1)
    A("s_barrier")
    ln_store()
    A("s_sub_u32 s3, s%d, 19" % SLOTR)
    A("s_cmp_lt_u32 s3, 8")
    A("s_cbranch_scc1 ln_lo")
    A("s_barrier")
    stamp(A, cfg, 2)
    BIAS = 24; BF = 224
    def biasld():
        srd(A, 4, PB1, 9216)
        A("s_lshl_b32 s44, s%d, 8" % FT)
        A("s_lshl_b32 s45, s%d, 7" % WR)
        A("s_add_u32 s44, s44, s45")
        for aa in range(4):
            A("buffer_load_dwordx2 %s, v217, s[4:7], s44 offen offset:%d" % (v(BIAS + 2 * aa, 2), aa * 32))
    def biasup():
        for k in range(8):
            A("v_lshlrev_b32 v%d, 16, v%d" % (BF + 2 * k, BIAS + k))
            A("v_and_b32 v%d, 0xffff0000, v%d" % (BF + 2 * k + 1, BIAS + k))
    def statld():
        for ap in range(2):
            A("buffer_load_dwordx4 %s, v219, s[12:15], s49 offen offset:%d sc1" % (v(RSUM + 4 * ap, 4), ap * 256))
        if cfg.csb:
            for xb in range(3):
                A("buffer_load_dwordx4 %s, v20, s[12:15], s54 offen offset:%d sc1" % (v(CSUM + 4 * xb, 4), xb * 64))
    P1 = Phase(A, "c1", reads1, mfmas1, upd1, (0, 3) if cfg.csb else (0, 4), 1)
    P1.first()
    P1.it(pubH)
    P1.loop("_loop", 3)
    P1.it(lambda: (only3(lambda: wide_issue(A))(), biasld()))
    P1.it(only3(lambda: (stamp(A, cfg, 11), wide_check(A), stamp(A, cfg, 14))))
    P1.it(statld)
    P1.tail(capture(A, lambda: srd(A, 12, PWS, SZ_G, WS_G)))
    stamp(A, cfg, 3)
    MN = 80; RR = 88
    A("s_waitcnt vmcnt(0)")
    for aa in range(4):
        for q in range(2):
            A("v_sub_f32 v%d, 0, v%d" % (MN + 2 * aa + q, RSUM + 2 * aa))
            A("v_mov_b32 v%d, v%d" % (RR + 2 * aa + q, RSUM + 2 * aa + 1))
    for ap in range(2):
        for xb in range(3):
            O = 168 + 4 * (ap * 3 + xb)
            hq = [(h, q) for h in range(2) for q in range(2)]
            D_ = lambda h, q: ACC1 + ((2 * ap + h) * 3 + xb) * 4 + 2 * q
            for h, q in hq: A("v_pk_fma_f32 %s, %s, %s, %s" % (v(D_(h, q), 2), v(MN + 2 * (2 * ap + h), 2), v(CSUM + 4 * xb + 2 * q, 2), v(D_(h, q), 2)))
            for h, q in hq: A("v_pk_mul_f32 %s, %s, %s" % (v(D_(h, q), 2), v(D_(h, q), 2), v(RR + 2 * (2 * ap + h), 2)))
            for h, q in hq: A("v_cvt_pk_bf16_f32 v%d, v%d, v%d" % (O + 2 * h + q, D_(h, q), D_(h, q) + 1))
            A("buffer_store_dwordx4 %s, v218, s[12:15], s%d offen offset:%d sc1" % (v(O, 4), (42, 43, 48)[xb], ap * 1024))
    ACC2 = 32; SETS2 = [80, 108]
    biasup()
    A("s_mov_b32 s53, 1")
    A("s_mov_b32 s52, s50")
    A("s_barrier")
    if cfg.gpub:
        A("s_waitcnt vmcnt(0)")
        publish(A, 52)
        A("s_mov_b32 s53, 0")
        A("s_cmp_lt_u32 s%d, 27" % SLOTR)
        A("s_cbranch_scc1 c2_main")
    else:
        A("s_cmp_lt_u32 s%d, 27" % SLOTR)
        A("s_cbranch_scc1 c2_main")
        A("s_waitcnt vmcnt(0)")
        publish(A, 52)
    A("s_branch scan_entry")
    A.label("c2_entry")
    biasup()
    A("s_mov_b32 s53, 0")
    A("s_barrier")
    A.label("c2_main")
    for i in range(5): A("v_add_u32 v%d, s%d, v%d" % (CA + i, RING, 204 + i))
    A("s_barrier")
    stamp(A, cfg, 4)
    def reads2(st, ks):
        b = SETS2[st]
        P = lambda aa: ["ds_read_b64_tr_b16 %s, v%d offset:%d" % (v(b + 4 * aa, 2), CA + aa, ks * 8192),
                        "ds_read_b64_tr_b16 %s, v%d offset:%d" % (v(b + 4 * aa + 2, 2), CA + aa, ks * 8192 + 4096)]
        Q = lambda xb: ["ds_read_b128 %s, v%d offset:%d" % (v(b + 16 + 4 * xb, 4), CA + 4, xb * 2048 + ks * 1024)]
        if cfg.ord2 == 2: return P(0) + Q(0) + P(1) + P(2) + P(3) + Q(1) + Q(2)
        return P(0) + Q(0) + Q(1) + Q(2) + P(1) + P(2) + P(3)
    def mfmas2(st):
        b = SETS2[st]; m = []
        if cfg.ord2 == 2:
            order = [(aa if xb % 2 == 0 else 3 - aa, xb) for xb in range(3) for aa in range(4)]
            need = lambda aa, xb: max(2 + 2 * aa if aa else 2, 8 + xb if xb else 0)
        else:
            order = [(aa, xb if (cfg.ord2 == 0 or aa % 2 == 0) else 2 - xb) for aa in range(4) for xb in range(3)]
            need = lambda aa, xb: max(2 + xb, 4 + 2 * aa if aa else 0)
        for aa, xb in order:
            d = v(ACC2 + (aa * 3 + xb) * 4, 4)
            m.append(("%s %s, %s, %s, %s" % (MFMA, d, v(b + 4 * aa, 4), v(b + 16 + 4 * xb, 4), d), need(aa, xb)))
        return m
    def upd2():
        sa = slot_adv(2)
        U = lambda i: "v_add_u32 v%d, s%d, v%d" % (CA + i, RING, 204 + i)
        if cfg.ord2 == 2: return [(0, sa[0]), (1, sa[1]), (2, sa[2]), (4, U(0)), (5, U(1)), (7, U(2)), (9, U(3)), (11, U(4))]
        return [(0, sa[0]), (1, sa[1]), (2, sa[2]), (4, U(0)), (5, U(4)), (7, U(1)), (9, U(2)), (11, U(3))]
    def pubG():
        sk = A.newlabel("pg")
        A("s_cmp_eq_u32 s53, 0")
        A("s_cbranch_scc1 %s" % sk)
        A("s_waitcnt vmcnt(0)")
        publish(A, 52)
        A.label(sk)
    def gelu_setup():
        c1 = -2.0 * math.sqrt(2.0 / math.pi) * math.log2(math.e); c2 = c1 * 0.044715
        for (r, val) in ((28, c1), (136, c2), (138, 1.0)):
            A("v_mov_b32 v%d, 0x%x\nv_mov_b32 v%d, 0x%x" % (r, f2u(val), r + 1, f2u(val)))
        srd(A, 12, PWS, SZ_UF + SIDE + 128, WS_UF)
        A("s_lshl_b32 s44, s%d, 1" % FT)
        A("s_add_u32 s44, s44, s%d" % WR)
        A("s_lshl_b32 s45, s%d, 1" % DT)
        A("s_add_u32 s45, s45, s%d" % WC)
        A("s_mul_i32 s46, s44, 12")
        A("s_add_u32 s46, s46, s45")
        A("s_mul_i32 s46, s46, %d" % (3 * PAIR))
        A("s_add_u32 s47, s46, 4096")
        A("s_mul_i32 s48, s44, 3641")
        A("s_lshr_b32 s48, s48, 16")
        A("s_mul_i32 s49, s45, 21846")
        A("s_lshr_b32 s49, s49, 16")
        A("s_mul_i32 s50, s48, 18")
        A("s_sub_u32 s50, s44, s50")
        A("s_sub_u32 s50, s50, s49")
        A("s_mul_i32 s50, s50, 3")
        A("s_add_u32 s50, s50, s45")
        A("s_lshl_b32 s50, s50, 3")
        A("s_lshl_b32 s49, s49, 2")
        A("s_add_u32 s49, s49, s48")
        A("s_lshl_b32 s49, s49, 9")
        A("s_add_u32 s52, s50, s49")
        A("s_add_u32 s52, s52, %d" % FL_U)

    P2 = Phase(A, "c2", reads2, mfmas2, upd2, (0, 2, 4) if cfg.ord2 == 2 else (0, 3, 6), 2)
    assert cfg.ord2 == 0
    P2.first(cinit=(lambda i: v(BF + 4 * (i // 3), 4)) if cfg.binit else None)
    pubG(); stamp(A, cfg, 10)
    P2.loop("_loop", 30)
    P2.tail(capture(A, gelu_setup))
    stamp(A, cfg, 5)
    if not cfg.upub:
        A("v_mov_b32 v16, %d" % SIG)
        A("ds_read_b32 v16, v16 offset:8")
        A("s_waitcnt lgkmcnt(0)")
    if cfg.xpos == 0: A("s_barrier")
    else: A("s_nop 7")
    T = 80
    for ap in range(2):
        for xb in range(3):
            if cfg.xpos and ap * 3 + xb == cfg.xpos: A("s_barrier")
            prs = [ACC2 + ((ap * 2 + h) * 3 + xb) * 4 + 2 * q for h in range(2) for q in range(2)]
            if not cfg.binit:
                for i, x in enumerate(prs): A("v_pk_add_f32 %s, %s, %s" % (v(x, 2), v(x, 2), v(BF + ap * 8 + 2 * i, 2)))
            for i, x in enumerate(prs): A("v_pk_mul_f32 %s, %s, %s" % (v(T + 2 * i, 2), v(x, 2), v(x, 2)))
            for i, x in enumerate(prs): A("v_pk_fma_f32 %s, %s, v[136:137], v[28:29]" % (v(T + 2 * i, 2), v(T + 2 * i, 2)))
            for i, x in enumerate(prs): A("v_pk_mul_f32 %s, %s, %s" % (v(T + 2 * i, 2), v(T + 2 * i, 2), v(x, 2)))
            for i in range(8): A("v_exp_f32 v%d, v%d" % (T + i, T + i))
            for i, x in enumerate(prs): A("v_pk_add_f32 %s, %s, v[138:139]" % (v(T + 2 * i, 2), v(T + 2 * i, 2)))
            for i in range(8): A("v_rcp_f32 v%d, v%d" % (T + i, T + i))
            for i, x in enumerate(prs): A("v_pk_mul_f32 %s, %s, %s" % (v(T + 2 * i, 2), v(T + 2 * i, 2), v(x, 2)))
            O = 140 + 4 * (ap * 3 + xb)
            for i in range(4):
                A("v_cvt_pk_bf16_f32 v%d, v%d, v%d" % (O + i, T + 2 * i, T + 2 * i + 1))
            off = xb * 2048 + ap * 1024
            A("buffer_store_dwordx4 %s, v215, s[12:15], s%d offen offset:%d sc1" % (v(O, 4), 46 + off // 4096, off % 4096))
    ACC3 = 24; SETS3 = [96, 140]
    A("s_mov_b32 s53, 1")
    if not cfg.upub:
        A("v_readfirstlane_b32 s44, v16")
        A("s_cmp_lg_u32 s44, 0")
        A("s_cbranch_scc1 c3_main")
    pubG()
    A("s_mov_b32 s53, 0")
    A("s_branch c3_main")
    A.label("c3_entry")
    wrwc(); lane_c23()
    A("s_mov_b32 s53, 0")
    A.label("c3_main")
    A("s_barrier")
    A("s_barrier")
    stamp(A, cfg, 6)
    for i in range(4): A("v_add_u32 v%d, s%d, v%d" % (CA + i, RING, 209 + i))
    def reads3(st, ks):
        b = SETS3[st]; r = ["ds_read_b128 %s, v%d offset:0" % (v(b + 8, 4), CA + 2 + ks)]
        for aa in range(2):
            r.append("ds_read_b64_tr_b16 %s, v%d offset:%d" % (v(b + 4 * aa, 2), CA + aa, ks * 8192))
            r.append("ds_read_b64_tr_b16 %s, v%d offset:%d" % (v(b + 4 * aa + 2, 2), CA + aa, ks * 8192 + 4096))
        for xb in range(1, 9):
            if cfg.hack3 and xb % 2: continue
            r.append("ds_read_b128 %s, v%d offset:%d" % (v(b + 8 + 4 * xb, 4), CA + 2 + ks, xb * 2048))
        return r
    def mfmas3(st):
        b = SETS3[st]; m = []
        order = [(xb, aa if (cfg.ord3 == 0 or xb % 2 == 0) else 1 - aa) for xb in range(9) for aa in range(2)]
        for xb, aa in order:
            if True:
                d = v(ACC3 + (xb * 2 + aa) * 4, 4)
                m.append(("%s %s, %s, %s, %s" % (MFMA, d, v(b + 8 + 4 * (xb & ~1 if cfg.hack3 else xb), 4), v(b + 4 * aa, 4), d), max(2 + 2 * aa, (4 + xb // 2 if cfg.hack3 else 4 + xb) if xb else 0)))
        return m
    def upd3():
        sa = slot_adv(3)
        U = lambda i: "v_add_u32 v%d, s%d, v%d" % (CA + i, RING, 209 + i)
        return [(7, sa[0]), (8, sa[1]), (9, sa[2]), (11, U(0)), (13, U(1)), (14, U(2)), (15, U(3))]
    def umode():
        A("v_mov_b32 v211, v213\nv_mov_b32 v212, v214")
        A("v_add_u32 v%d, s%d, v213" % (CA + 2, RING))
        A("v_add_u32 v%d, s%d, v214" % (CA + 3, RING))
    def exsetup():
        srd(A, 12, PWS, SZ_EX, WS_EX)
        A("s_lshl_b32 s44, s%d, 2" % ST)
        A("s_add_u32 s44, s44, s%d" % D3)
        A("s_lshl_b32 s44, s44, 2")
        A("s_add_u32 s44, s44, s%d" % WAVE)
        A("s_lshl_b32 s52, s44, 7")
        A("s_lshl_b32 s45, s%d, 3" % SP)
        A("s_add_u32 s52, s52, s45")
        A("s_add_u32 s52, s52, %d" % FL_X)
        A("s_lshl_b32 s44, s44, 2")
        A("s_add_u32 s44, s44, s%d" % SP)
        A("s_mul_i32 s44, s44, 9216")

    P3 = Phase(A, "c3", reads3, mfmas3, upd3, (0, 6), 3)
    P3.first()
    pubG(); stamp(A, cfg, 12)
    P3.loop("_f", "s_sub_u32 s%d, s%d, 2" % (CNT, NF))
    P3.it(lambda: (umode(), stamp(A, cfg, 13)))
    P3.loop("_u", 17)
    def xst(xb):
        o = 96 + 4 * xb
        r = ["v_cvt_pk_bf16_f32 v%d, v%d, v%d" % (o + k, ACC3 + 8 * xb + 2 * k, ACC3 + 8 * xb + 2 * k + 1) for k in range(4)]
        r.append("buffer_store_dwordx4 %s, v216, s[12:15], s44 offen offset:%d sc1" % (v(o, 4), (xb % 4) * 1024))
        if xb % 4 == 3: r.append("s_add_u32 s44, s44, 4096")
        return r
    def xow(xb):
        return ["ds_write_b128 v16, %s offset:%d" % (v(ACC3 + 4 * t, 4), t * 1024) for t in (2 * xb, 2 * xb + 1)]
    if cfg.xint:
        work = capture(A, exsetup) + ["v_add_u32 v16, %d, v216" % LDS_OWN, "s_cmp_eq_u32 s%d, s%d" % (WAVE, SP)]
        group(A, mfmas3(0), reads3(1, 1), 13, spread(work, 18, 0, 1), (0, 6))
        A("s_cbranch_scc1 c3_own")
        def last(fn):
            ex = []
            for xb in range(9):
                ex += [(2 * xb + 9, t) for t in fn(xb)] if 2 * xb + 9 <= 17 else []
            group(A, mfmas3(1), [], 13, ex, (0, 6))
            for xb in range(5, 9):
                if xb == 8 or (xb == 7 and fn is xow): A("s_nop 3")
                for t in fn(xb): A(t)
        last(xst)
        stamp(A, cfg, 7)
    else:
        P3.tail(capture(A, exsetup))
        stamp(A, cfg, 7)
        A("s_nop 3")
        A("s_cmp_eq_u32 s%d, s%d" % (WAVE, SP))
        A("s_cbranch_scc1 c3_own")
        for xb in range(9):
            for t in xst(xb): A(t)
    A("s_waitcnt vmcnt(0)")
    publish(A, 52)
    if cfg.stamp:
        A("s_barrier")
        A("s_branch k_done")
    A("s_endpgm")
    A.label("c3_own")
    if cfg.xint:
        last(xow)
        stamp(A, cfg, 7)
    else:
        A("v_add_u32 v16, %d, v216" % LDS_OWN)
        for xb in range(9):
            for t in xow(xb): A(t)
    A("s_waitcnt lgkmcnt(0)")
    A("s_barrier")
    A("s_branch k_done")

    A.label("hi_entry")
    A("s_sub_u32 s3, s%d, 19" % SLOTR)
    A("s_cmp_lt_u32 s3, 8")
    A("s_cbranch_scc1 ln_hi")
    LW = 23
    M0P, M0Q = 40, 41
    OP, OQ = 42, 43
    A("s_sub_u32 s%d, s%d, 4" % (LW, WAVE))
    A("v_lshrrev_b32 v3, 3, v2")
    A("v_and_b32 v4, 7, v2")
    A("v_xor_b32 v6, v4, v3")
    A("s_movk_i32 s44, 1152")
    A("v_mul_lo_u32 v5, v3, s44")
    A("v_lshlrev_b32 v8, 1, v5")
    A("v_lshl_add_u32 v10, v6, 4, v8")
    A("s_lshr_b32 s44, s%d, 1" % LW)
    A("v_and_b32 v7, 6, v3")
    A("v_or_b32 v7, s44, v7")
    A("v_xor_b32 v7, v4, v7")
    A("v_lshl_add_u32 v14, v7, 4, v5")
    for m in range(1, 4):
        A("v_add_u32 v%d, 0x%x, v10" % (10 + m, (16 * (m & 1) + (m >> 1)) * 1152 - (m & 1) * 1024))
    for m in range(1, 3):
        A("v_add_u32 v%d, 0x%x, v14" % (14 + m, m * (8 * 1152 - 1024)))
    A("s_lshl_b32 s%d, s%d, 7" % (OP, TT))
    A("s_lshl_b32 s45, s%d, 5" % LW)
    A("s_add_u32 s%d, s%d, s45" % (OP, OP))
    A("s_mul_i32 s%d, s%d, 1152" % (OP, OP))
    A("s_mul_i32 s%d, s%d, 48" % (OQ, PT))
    A("s_and_b32 s45, s%d, 1" % LW)
    A("s_mul_i32 s45, s45, 24")
    A("s_add_u32 s%d, s%d, s45" % (OQ, OQ))
    A("s_mul_i32 s%d, s%d, 1152" % (OQ, OQ))
    A("s_lshl_b32 s%d, s%d, 12" % (M0P, LW))
    A("s_mul_i32 s%d, s%d, 3072" % (M0Q, LW))
    A("s_add_u32 s%d, s%d, 16384" % (M0Q, M0Q))
    if cfg.rot1:
        A("s_lshl_b32 s46, s%d, 2" % TT)
        A("s_add_u32 s46, s46, s%d" % PT)
        A("s_mul_i32 s47, s46, 7282")
        A("s_lshr_b32 s47, s47, 16")
        A("s_mul_i32 s47, s47, 9")
        A("s_sub_u32 s46, s46, s47")
        A("s_lshl_b32 s47, s46, 7")
        A("s_add_u32 s%d, s%d, s47" % (OP, OP))
        A("s_add_u32 s%d, s%d, s47" % (OQ, OQ))
    A("s_waitcnt lgkmcnt(0)")
    srd(A, 4, PX, SZ_X)
    A("s_cmp_ge_u32 s%d, 2" % LW)
    A("s_cselect_b32 s8, s%d, s%d" % (PBIM, PBRE))
    A("s_cselect_b32 s9, s%d, s%d" % (PBIM + 1, PBRE + 1))
    A("s_mov_b32 s10, %d" % SZ_C)
    A("s_mov_b32 s11, 0x00020000")
    def issue1():
        A("s_add_u32 m0, s%d, s%d" % (RING, M0P))
        A("s_add_u32 s45, s%d, s%d" % (RING, M0Q))
        for m in range(4):
            if m == 2:
                A("s_add_u32 m0, m0, 2048")
                A("s_nop 0")
            A("buffer_load_dwordx4 v%d, s[4:7], s%d offen offset:%d lds" % (10 + m, OP, (m & 1) * 1024))
        A("s_mov_b32 m0, s45")
        A("s_add_u32 s%d, s%d, 128" % (OP, OP))
        for m in range(3):
            A("buffer_load_dwordx4 v%d, s[8:11], s%d offen offset:%d lds" % (14 + m, OQ, m * 1024))
        A("s_add_u32 s%d, s%d, 128" % (OQ, OQ))
        if cfg.rot1:
            A("s_add_u32 s46, s46, 1")
            A("s_cmp_eq_u32 s46, 9")
            A("s_cselect_b32 s47, 1152, 0")
            A("s_sub_u32 s%d, s%d, s47" % (OP, OP))
            A("s_sub_u32 s%d, s%d, s47" % (OQ, OQ))
        for t in slot_adv(1): A(t)
    def lane23():
        A("v_lshrrev_b32 v3, 4, v2")
        A("v_and_b32 v4, 15, v2")
        A("v_lshlrev_b32 v6, 1, v3")
        A("v_xor_b32 v7, v4, v6")
        A("v_xor_b32 v8, 8, v7")
        for (b, stride) in ((20, 9216), (24, 4096)):
            A("s_movk_i32 s44, %d" % stride)
            A("v_mul_lo_u32 v5, v3, s44")
            A("v_lshl_add_u32 v%d, v7, 4, v5" % b)
            A("v_lshl_add_u32 v%d, v8, 4, v5" % (b + 1))
            D = 4 * stride - 1024
            A("v_add_u32 v%d, 0x%x, v%d" % (b + 2, 2 * D, b))
            A("v_add_u32 v%d, 0x%x, v%d" % (b + 3, 3 * D, b + 1))
            A("v_add_u32 v%d, 0x%x, v%d" % (b + 1, D, b + 1))
        A("v_lshlrev_b32 v28, 4, v2")
        if cfg.side:
            A("v_lshrrev_b32 v5, 3, v2")
            A("v_cmp_eq_u32 vcc, 3, v5")
            A("v_add_u32 v5, 0x%x, v28" % (SIDE + 128))
            A("s_nop 0")
            A("v_cndmask_b32 v28, v28, v5, vcc")
        A("v_lshrrev_b32 v3, 3, v2")
        A("v_and_b32 v4, 7, v2")
        A("v_xor_b32 v4, v4, v3")
        A("s_movk_i32 s44, 1152")
        A("v_mul_lo_u32 v5, v3, s44")
        A("v_lshl_add_u32 v30, v4, 4, v5")
        for m in range(1, 4):
            A("v_add_u32 v%d, 0x%x, v30" % (30 + m, m * (8 * 1152 - 1024)))
    B2P, B2Q, N2, M6 = 48, 49, 50, 51
    def setup2():
        A("s_mul_i32 s%d, s%d, %d" % (B2P, LW, 16 * 9216))
        A("s_lshl_b32 s44, s%d, 8" % FT)
        A("s_add_u32 s%d, s%d, s44" % (B2P, B2P))
        A("s_mul_i32 s%d, s%d, 12" % (B2Q, DT))
        A("s_mul_i32 s44, s%d, 3" % LW)
        A("s_add_u32 s%d, s%d, s44" % (B2Q, B2Q))
        A("s_lshl_b32 s%d, s%d, 10" % (B2Q, B2Q))
        A("s_mov_b32 s%d, 0\ns_mov_b32 s%d, 0" % (N2, M6))
    def srd2():
        srd(A, 4, PW1, SZ_W)
        srd(A, 8, PWS, SZ_HF + SIDE + 128, WS_HF)
    par2 = [0]
    def issue2(which="WX", adv=True):
        odd = par2[0] & 1; par2[0] += 1
        if cfg.pair2:
            A("s_add_u32 s44, s%d, 12" % N2)
            A("s_lshl_b32 s45, s%d, 1" % M6)
            if odd: A("s_add_u32 s45, s45, 1")
            A("s_cmp_lt_u32 s44, 32")
            A("s_cselect_b32 s44, s44, s45")
            A("s_cmp_eq_u32 s%d, s%d" % (M6, DT))
            A("s_cselect_b32 s44, s44, s%d" % N2)
        elif cfg.rot2 in (2, 4):
            R = cfg.rot2; ADV = cfg.adv2
            A("s_add_u32 s45, s%d, s%d" % (FT, DT))
            A("s_add_u32 s45, s45, s%d" % N2)
            A("s_and_b32 s45, s45, %d" % (R - 1))
            A("s_cselect_b32 s44, 0, %d" % ADV)
            A("s_add_u32 s44, s44, s%d" % N2)
            A("s_and_b32 s44, s44, 31")
        elif cfg.rot2:
            A("s_add_u32 s44, s%d, 6" % N2)
            A("s_cmp_lt_u32 s44, 32")
            A("s_cselect_b32 s44, s44, s%d" % M6)
            A("s_cmp_eq_u32 s%d, s%d" % (M6, DT))
            A("s_cselect_b32 s44, s44, s%d" % N2)
        else:
            A("s_mov_b32 s44, s%d" % N2)
        A("s_mul_i32 s%d, s44, %d" % (OP, 64 * 9216))
        A("s_add_u32 s%d, s%d, s%d" % (OP, OP, B2P))
        A("s_mul_i32 s%d, s44, %d" % (OQ, 36 * PAIR))
        A("s_add_u32 s%d, s%d, s%d" % (OQ, OQ, B2Q))
        def W():
            A("s_add_u32 m0, s%d, s%d" % (RING, M0P))
            A("s_nop 0")
            for m in range(4):
                A("buffer_load_dwordx4 v%d, s[4:7], s%d offen offset:%d lds" % (20 + m, OP, m * 1024))
        def X():
            A("s_add_u32 m0, s%d, s%d" % (RING, M0Q))
            A("s_nop 0")
            for m in range(3):
                A("buffer_load_dwordx4 v28, s[8:11], s%d offen offset:%d %s lds" % (OQ, m * 1024, HL))
        if which == "W": W()
        elif which == "X": X()
        elif cfg.pair2 and not odd: X(); W()
        else: W(); X()
        if not adv: return
        A("s_add_u32 s%d, s%d, 1" % (N2, N2))
        if odd or not cfg.pair2:
            A("s_add_u32 s%d, s%d, 1" % (M6, M6))
            A("s_cmp_eq_u32 s%d, 6" % M6)
            A("s_cselect_b32 s%d, 0, s%d" % (M6, M6))
        for t in slot_adv(2): A(t)
    B3P, B3C, B3U, N3, PH3, M0X, M0Q3 = 52, 53, 54, 55, 46, 47, 29
    def setup3():
        A("s_lshl_b32 s%d, s%d, 16" % (B3P, LW))
        A("s_lshl_b32 s44, s%d, 8" % ST)
        A("s_add_u32 s%d, s%d, s44" % (B3P, B3P))
        A("s_mul_i32 s%d, s%d, %d" % (B3C, D3, 144 * 1152))
        A("s_mul_i32 s%d, s%d, %d" % (B3U, D3, 9 * PAIR))
        A("s_mul_i32 s44, s%d, %d" % (SP, 18 * 36 * PAIR))
        A("s_add_u32 s%d, s%d, s44" % (B3U, B3U))
        A("s_mov_b32 s%d, s%d" % (N3, F0))
        A("s_add_u32 s%d, s%d, s%d" % (PH3, D3, ST))
        A("s_and_b32 s%d, s%d, 3" % (PH3, PH3))
        A("s_lshl_b32 s%d, s%d, 10" % (M0X, LW))
        A("s_add_u32 s%d, s%d, %d" % (M0X, M0X, 32768))
        A("s_add_u32 s%d, s%d, 16384" % (M0Q3, M0P))
    def issue3f(extra):
        srd(A, 4, PWS, SZ_HT, WS_HT)
        A("s_cmp_ge_u32 s%d, 9" % N3)
        A("s_cselect_b32 s8, s%d, s%d" % (PCIM, PCRE))
        A("s_cselect_b32 s9, s%d, s%d" % (PCIM + 1, PCRE + 1))
        A("s_cselect_b32 s44, 9, 0")
        A("s_mov_b32 s10, %d" % SZ_C)
        A("s_mov_b32 s11, 0x00020000")
        A("s_lshl_b32 s%d, s%d, 18" % (OP, N3))
        A("s_add_u32 s%d, s%d, s%d" % (OP, OP, B3P))
        A("s_add_u32 m0, s%d, s%d" % (RING, M0P))
        A("s_sub_u32 s44, s%d, s44" % N3)
        for m in range(4):
            A("buffer_load_dwordx4 v%d, s[4:7], s%d offen offset:%d %s lds" % (24 + m, OP, m * 1024, HL))
        A("s_lshl_b32 s44, s44, 7")
        A("s_add_u32 s44, s44, s%d" % B3C)
        A("s_mul_i32 s%d, s%d, %d" % (OQ, LW, 32 * 1152))
        A("s_add_u32 m0, s%d, s%d" % (RING, M0Q3))
        A("s_add_u32 s%d, s%d, s44" % (OQ, OQ))
        for m in range(4):
            A("buffer_load_dwordx4 v%d, s[8:11], s%d offen offset:%d lds" % (30 + m, OQ, m * 1024))
        if extra:
            A("s_mul_i32 s%d, s%d, %d" % (OQ, LW, 8 * 1152))
            A("s_add_u32 s44, s44, %d" % (128 * 1152))
            A("s_add_u32 m0, s%d, s%d" % (RING, M0X))
            A("s_add_u32 s%d, s%d, s44" % (OQ, OQ))
            A("buffer_load_dwordx4 v30, s[8:11], s%d offen lds" % OQ)
        A("s_add_u32 s%d, s%d, 1" % (N3, N3))
        for t in slot_adv(3): A(t)
    def switch3u():
        srd(A, 4, PW2, SZ_W)
        srd(A, 8, PWS, SZ_UF + SIDE + 128, WS_UF)
        A("s_mul_i32 s44, s%d, %d" % (SP, 18 * 262144))
        A("s_add_u32 s%d, s%d, s44" % (B3P, B3P))
        A("s_mov_b32 s%d, 0" % N3)
    par3 = [0]
    def issue3u(extra, which="WX"):
        odd = par3[0] & 1; par3[0] += 1
        if cfg.pair3:
            A("s_bfe_u32 s45, s%d, 0x20001" % N3)
            A("s_add_u32 s44, s%d, 8" % N3)
            A("s_and_b32 s%d, s%d, 7" % (OP, N3))
            A("s_cmp_lt_u32 s44, 18")
            A("s_cselect_b32 s44, s44, s%d" % OP)
            A("s_cmp_eq_u32 s45, s%d" % PH3)
            A("s_cselect_b32 s44, s44, s%d" % N3)
        elif cfg.rot3:
            A("s_and_b32 s45, s%d, 3" % N3)
            A("s_add_u32 s44, s%d, 4" % N3)
            A("s_cmp_lt_u32 s44, 18")
            A("s_cselect_b32 s44, s44, s45")
            A("s_cmp_eq_u32 s45, s%d" % PH3)
            A("s_cselect_b32 s44, s44, s%d" % N3)
        else:
            A("s_mov_b32 s44, s%d" % N3)
        A("s_lshl_b32 s%d, s44, 18" % OP)
        A("s_add_u32 s%d, s%d, s%d" % (OP, OP, B3P))
        A("s_mul_i32 s45, s44, %d" % (36 * PAIR))
        A("s_add_u32 s45, s45, s%d" % B3U)
        A("s_add_u32 s%d, s45, s%d" % (OQ, M0P))
        if extra:
            A("s_add_u32 s45, s45, s%d" % M0X)
            A("s_sub_u32 s45, s45, 16384")
        def W():
            A("s_add_u32 m0, s%d, s%d" % (RING, M0P))
            A("s_nop 0")
            for m in range(4):
                A("buffer_load_dwordx4 v%d, s[4:7], s%d offen offset:%d lds" % (24 + m, OP, m * 1024))
        def X():
            A("s_add_u32 m0, s%d, s%d" % (RING, M0Q3))
            A("s_nop 0")
            for m in range(4):
                A("buffer_load_dwordx4 v28, s[8:11], s%d offen offset:%d %s lds" % (OQ, m * 1024, HL))
            if extra:
                A("s_add_u32 m0, s%d, s%d" % (RING, M0X))
                A("s_nop 0")
                A("buffer_load_dwordx4 v28, s[8:11], s45 offen %s lds" % HL)
        if which == "W": W()
        elif which == "X": X()
        elif cfg.pair3 and not odd: X(); W()
        else: W(); X()
        A("s_add_u32 s%d, s%d, 1" % (N3, N3))
        for t in slot_adv(3): A(t)
    def step(wait, issue):
        if issue and cfg.hoist:
            mark = len(A.lines)
            issue()
            body = A.lines[mark:]; del A.lines[mark:]
            k = 0
            while k < len(body) and body[k].strip().startswith("s_") and not body[k].strip().startswith(("s_cbranch", "s_branch")): k += 1
            A.lines += body[:k]
            A("s_waitcnt vmcnt(%d)" % wait)
            A("s_barrier")
            A.lines += body[k:]
            return
        A("s_waitcnt vmcnt(%d)" % wait)
        A("s_barrier")
        if issue: issue()
    def lloop(label, count, wait, issue, unroll=1):
        if isinstance(count, int): A("s_mov_b32 s%d, %d" % (CNT, count))
        else: A(count)
        align(A)
        A.label(label)
        for _ in range(unroll): step(wait, issue)
        A("s_sub_u32 s%d, s%d, 1" % (CNT, CNT))
        A("s_cmp_lg_u32 s%d, 0" % CNT)
        A("s_cbranch_scc1 %s" % label)
    def fast_loop(label, count, wait, sel, ph, vW, nX, strideW, bW, bQ, m0q, extra):
        QA = (OQ, 63); XA = (45, 3); MQ = (56, 57); MX = (58, 59)
        def prep(k):
            sel()
            if strideW == 262144: A("s_lshl_b32 s%d, s44, 18" % OP)
            else: A("s_mul_i32 s%d, s44, %d" % (OP, strideW))
            A("s_add_u32 s%d, s%d, s%d" % (OP, OP, bW))
            A("s_mul_i32 s44, s44, %d" % (36 * PAIR))
            A("s_add_u32 s%d, s44, s%d" % (QA[k], bQ))
            if extra:
                A("s_add_u32 s%d, s44, s%d" % (XA[k], extra))
                A("s_add_u32 s%d, s%d, s%d" % (MX[k], RING, M0X))
            A("s_add_u32 s%d, s%d, s%d" % (MQ[k], RING, m0q))
            A("s_add_u32 s62, s%d, s%d" % (RING, M0P))
            for t in slot_adv(ph): A(t)
        def body(k, last):
            A("s_mov_b32 m0, s62")
            A("s_waitcnt vmcnt(%d)" % wait)
            A("s_barrier")
            for m in range(4):
                A("buffer_load_dwordx4 v%d, s[4:7], s%d offen offset:%d lds" % (vW + m, OP, m * 1024))
            A("s_mov_b32 m0, s%d" % MQ[k])
            if not last: prep(1 - k)
            else: A("s_nop 0")
            if k == 1 and not last:
                A("s_sub_u32 s%d, s%d, 1" % (CNT, CNT))
                A("s_cmp_lg_u32 s%d, 0" % CNT)
            for m in range(nX):
                A("buffer_load_dwordx4 v28, s[8:11], s%d offen offset:%d %s lds" % (QA[k], m * 1024, HL))
            if extra:
                A("s_mov_b32 m0, s%d" % MX[k])
                A("s_nop 0")
                A("buffer_load_dwordx4 v28, s[8:11], s%d offen %s lds" % (XA[k], HL))
        prep(0)
        A("s_mov_b32 s%d, %d" % (CNT, count - 1))
        A.label(label)
        body(0, False); body(1, False)
        A("s_cbranch_scc1 %s" % label)
        body(0, False); body(1, True)
    def sel2():
        A("s_add_u32 s44, s%d, 6" % N2)
        A("s_cmp_lt_u32 s44, 32")
        A("s_cselect_b32 s44, s44, s%d" % M6)
        A("s_cmp_eq_u32 s%d, s%d" % (M6, DT))
        A("s_cselect_b32 s44, s44, s%d" % N2)
        A("s_add_u32 s%d, s%d, 1" % (N2, N2))
        A("s_add_u32 s%d, s%d, 1" % (M6, M6))
        A("s_cmp_eq_u32 s%d, 6" % M6)
        A("s_cselect_b32 s%d, 0, s%d" % (M6, M6))
    def sel3():
        A("s_and_b32 s%d, s%d, 3" % (OP, N3))
        A("s_add_u32 s44, s%d, 4" % N3)
        A("s_cmp_lt_u32 s44, 18")
        A("s_cselect_b32 s44, s44, s%d" % OP)
        A("s_cmp_eq_u32 s%d, s%d" % (OP, PH3))
        A("s_cselect_b32 s44, s44, s%d" % N3)
        A("s_add_u32 s%d, s%d, 1" % (N3, N3))
    issue1(); issue1()
    ids23(); lane23(); setup2()
    if cfg.pro == 5:
        issue1(); issue1(); issue1()
        step(28, None); step(21, None)
    elif cfg.pro == 4:
        issue1(); issue1()
        step(21, issue1); step(21, None)
    else:
        issue1()
        step(14, issue1); step(14, issue1)
    lloop("l1_loop", 4, 14, issue1)
    A("s_cmp_ge_u32 s%d, 27" % SLOTR)
    A("s_cbranch_scc1 l1_c")
    srd2()
    step(14, lambda: issue2("W", False))
    step(11, lambda: issue2("X"))
    step(7, lambda: (issue2(), issue2()))
    setup3()
    step(14, issue2); step(14, issue2)
    A("s_branch l2_main")
    A.label("l1_c")
    step(14, None); step(7, None); step(0, None)
    A("v_mov_b32 v41, %d" % SIG)
    A("ds_read_b64 v[%d:%d], v41" % (VT, VT + 1))
    srd(A, FSRD, PWS, SZ_FL, WS_FL)
    srd(A, 12, PWS, SZ_ST, WS_ST)
    A("s_waitcnt lgkmcnt(0)")
    A("s_barrier")
    A("s_branch scan_entry")
    A.label("l2_entry")
    A("s_sub_u32 s%d, s%d, 4" % (LW, WAVE))
    A("s_lshl_b32 s%d, s%d, 12" % (M0P, LW))
    A("s_mul_i32 s%d, s%d, 3072" % (M0Q, LW))
    A("s_add_u32 s%d, s%d, 16384" % (M0Q, M0Q))
    lane23(); setup2(); srd2()
    A("s_mov_b32 s62, s%d" % RING)
    A("s_waitcnt vmcnt(0)")
    issue2("W"); issue2("W"); issue2("W")
    A("s_mov_b32 s%d, s62" % RING)
    A("s_mov_b32 s%d, 0\ns_mov_b32 s%d, 0" % (N2, M6))
    setup3()
    A("s_barrier")
    issue2("X"); issue2("X"); issue2("X")
    step(6, issue2); step(10, issue2)
    A.label("l2_main")
    step(14, issue2)
    if cfg.fast: fast_loop("l2_loop", 12, 14, sel2, 2, 20, 3, 64 * 9216, B2P, B2Q, M0Q, None)
    else: lloop("l2_loop", 12, 14, issue2, 2)
    def lgate_issue(off):
        sk = A.newlabel("lg")
        A("s_cmp_lg_u32 s%d, 0" % LW)
        A("s_cbranch_scc1 %s" % sk)
        gate_issue(A, off)
        A.label(sk)
    def lgate_wait(off, mask, word, younger):
        ot = A.newlabel("lg"); dn = A.newlabel("lg"); lp = A.newlabel("lg")
        A("s_cmp_lg_u32 s%d, 0" % LW)
        A("s_cbranch_scc1 %s" % ot)
        gate_check(A, off, mask, first_wait=younger)
        A("v_mov_b32 v40, 1")
        A("ds_write_b32 v41, v40 offset:%d" % (8 + 4 * word))
        A("s_branch %s" % dn)
        A.label(ot)
        A("s_mov_b32 s59, 0")
        A.label(lp)
        A("ds_read_b32 v40, v41 offset:%d" % (8 + 4 * word))
        A("s_add_u32 s59, s59, 1")
        A("s_waitcnt lgkmcnt(0)")
        A("v_readfirstlane_b32 s58, v40")
        A("s_cmp_gt_u32 s59, %d" % (SPIN * 64))
        A("s_cbranch_scc1 %s" % dn)
        A("s_cmp_eq_u32 s58, 0")
        A("s_cbranch_scc1 %s" % lp)
        A.label(dn)
    XR = 150; DS = 162; STT = 168; B2 = 172; BASE = 48; PR = 80; OWN = 120
    def base_ld():
        A("v_and_b32 v42, 15, v2")
        A("v_lshrrev_b32 v43, 4, v2")
        A("v_mul_u32_u24 v46, 1152, v42")
        A("v_lshl_add_u32 v46, v43, 3, v46")
        A("v_lshlrev_b32 v47, 1, v46")
        A("v_lshlrev_b32 v43, 3, v43")
        A("v_lshlrev_b32 v45, 3, v42")
        A("v_lshlrev_b32 v42, 1, v42")
        A("s_lshl_b32 s44, s%d, 3" % ST)
        A("s_lshl_b32 s45, s%d, 1" % SP)
        A("s_add_u32 s44, s44, s45")
        A("s_mul_i32 s45, s%d, 9" % D3)
        A("s_add_u32 s45, s45, s%d" % LW)
        A("s_lshl_b32 s45, s45, 5")
        A("s_mul_i32 s50, s44, %d" % (16 * 1152))
        A("s_add_u32 s50, s50, s45")
        A("s_add_u32 s51, s50, %d" % (16 * 1152))
        A("s_lshl_b32 s48, s44, 7")
        A("s_lshl_b32 s49, s44, 5")
        srd(A, 12, PWS, SZ_ST, WS_ST)
        for aa in range(2):
            A("buffer_load_dwordx2 %s, v45, s[12:15], s48 offen offset:%d %s" % (v(STT + 2 * aa, 2), aa * 128, HL))
        srd(A, 12, PB2, 4096)
        for aa in range(2):
            A("buffer_load_ushort v%d, v42, s[12:15], s49 offen offset:%d" % (B2 + 2 * aa, aa * 32))
        srd(A, 12, PDSK, 1152)
        for n in range(3):
            A("buffer_load_dwordx2 %s, v43, s[12:15], s45 offen offset:%d" % (v(DS + 2 * n, 2), n * 128))
        srd(A, 12, PX, SZ_X)
        sk = A.newlabel("bl")
        for n in range(3):
            if n == 2:
                A("s_cmp_lg_u32 s%d, 0" % LW)
                A("s_cbranch_scc1 %s" % sk)
            for aa in range(2):
                A("buffer_load_dwordx2 %s, v46, s[12:15], s%d offen offset:%d" % (v(XR + 4 * n + 2 * aa, 2), (50, 51)[aa], n * 128))
        A.label(sk)
        A("s_lshl_b32 s50, s50, 1")
        A("s_lshl_b32 s51, s51, 1")
    def base_calc():
        for aa in range(2): A("v_lshlrev_b32 v%d, 16, v%d" % (B2 + 2 * aa, B2 + 2 * aa))
        for n in range(3):
            dd = 76; xx = 116; tt = 144
            for h in range(2):
                A("v_lshlrev_b32 v%d, 16, v%d" % (dd + 2 * h, DS + 2 * n + h))
                A("v_and_b32 v%d, 0xffff0000, v%d" % (dd + 2 * h + 1, DS + 2 * n + h))
            for aa in range(2):
                b = BASE + 8 * n + 4 * aa
                for h in range(2):
                    A("v_lshlrev_b32 v%d, 16, v%d" % (xx + 2 * h, XR + 4 * n + 2 * aa + h))
                    A("v_and_b32 v%d, 0xffff0000, v%d" % (xx + 2 * h + 1, XR + 4 * n + 2 * aa + h))
                for r in range(4): A("v_mul_f32 v%d, v%d, v%d" % (tt + r, dd + r, STT + 2 * aa + 1))
                for r in range(4): A("v_add_f32 v%d, v%d, v%d" % (b + r, xx + r, B2 + 2 * aa))
                for r in range(4): A("v_sub_f32 v%d, v%d, v%d" % (xx + r, xx + r, STT + 2 * aa))
                for r in range(4): A("v_fmac_f32 v%d, v%d, v%d" % (b + r, xx + r, tt + r))
    GT, GU = 60, 61
    def gates3():
        A("v_mov_b32 v41, %d" % SIG)
        A("ds_read_b64 v[%d:%d], v41" % (VT, VT + 1))
        srd(A, FSRD, PWS, SZ_FL, WS_FL)
        A("s_lshr_b32 s%d, s%d, 1" % (GT, ST))
        A("s_lshl_b32 s%d, s%d, 9" % (GT, GT))
        A("s_add_u32 s%d, s%d, %d" % (GT, GT, FL_T))
        A("s_lshl_b32 s%d, s%d, 2" % (GU, D3))
        A("s_add_u32 s%d, s%d, s%d" % (GU, GU, SP))
        A("s_lshl_b32 s%d, s%d, 9" % (GU, GU))
        A("s_add_u32 s%d, s%d, %d" % (GU, GU, FL_U))
        A("s_waitcnt lgkmcnt(0)")
    gates3()
    step(14, issue2)
    step(14, issue2)
    base_ld()
    step(14 + 11, (lambda: lgate_issue(GT)) if cfg.pollat == 29 else None)
    step(7 + 11, (lambda: lgate_issue(GT)) if cfg.pollat == 30 else None)
    A("s_cmp_lg_u32 s%d, 0" % LW)
    A("s_cbranch_scc1 l2_e1")
    A("s_waitcnt vmcnt(0)")
    A("v_cmp_ne_u64 vcc, v[%d:%d], v[%d:%d]" % (VP, VP + 1, VT, VT + 1))
    A("s_and_b32 vcc_hi, vcc_hi, 15")
    A("s_cmp_lg_u64 vcc, 0")
    A("s_cbranch_scc1 l2_e1")
    A("v_mov_b32 v40, 1")
    A("ds_write_b32 v41, v40 offset:8")
    A("s_waitcnt lgkmcnt(0)")
    A.label("l2_e1")
    step(11, None)
    A("ds_read_b32 v40, v41 offset:8")
    A("s_waitcnt lgkmcnt(0)")
    A("v_readfirstlane_b32 s58, v40")
    A("s_cmp_lg_u32 s58, 0")
    A("s_cbranch_scc1 l3_early")
    lgate_issue(GT)
    A("s_barrier")
    A.label("l3_main")
    stamp(A, cfg, 10)
    lgate_wait(GT, (1 << 36) - 1, 0, 0)
    A.label("l3_main2")
    stamp(A, cfg, 11)
    A("s_cmp_ge_u32 s%d, 2" % LW)
    A("s_cbranch_scc1 l3b")
    A("s_branch l3a")
    A.label("l3_early")
    A("s_cmp_ge_u32 s%d, 2" % LW)
    A("s_cbranch_scc1 l3b_early")
    for (sfx, extra, per) in (("a", True, 9), ("b", False, 8)):
        A.label("l3%s_early" % sfx)
        issue3f(extra)
        if cfg.xpos: issue3f(extra)
        A("s_barrier")
        A("s_branch l3%s_j" % sfx)
        A.label("l3%s" % sfx)
        issue3f(extra)
        if cfg.xpos: issue3f(extra)
        A.label("l3%s_j" % sfx)
        NT = cfg.nt3
        if NT:
            issue3f(extra); issue3f(extra)
            if not cfg.xpos: issue3f(extra)
            srd(A, 12, PW2, SZ_W)
            A("s_mul_i32 s44, s%d, 18" % SP)
            A("s_add_u32 s44, s44, s%d" % PH3)
            A("s_lshl_b32 s44, s44, 1")
            A("s_and_b32 s45, s%d, 1" % LW)
            A("s_add_u32 s44, s44, s45")
            A("s_lshr_b32 s45, s%d, 1" % LW)
            A("s_lshl_b32 s45, s45, 3")
            A("s_add_u32 s44, s44, s45")
            A("s_add_u32 s44, s44, %d" % (8 * cfg.nt3s))
            A("s_lshl_b32 s44, s44, 17")
            A("s_lshl_b32 s45, s%d, 8" % ST)
            A("s_add_u32 s44, s44, s45")
            A("v_lshrrev_b32 v42, 1, v2")
            A("v_lshlrev_b32 v42, 12, v42")
            A("v_and_b32 v43, 1, v2")
            A("v_lshl_add_u32 v42, v43, 7, v42")
            for k in range(NT):
                A("buffer_load_dword v43, v42, s[12:15], s44 offen")
                A("s_add_u32 s44, s44, %d" % (16 << 17))
            A("s_waitcnt vmcnt(%d)" % (4 * per + NT))
            base_calc()
            step(3 * per + NT, None); step(2 * per + NT, None)
            sk = A.newlabel("nf"); sk2 = A.newlabel("nf")
            A("s_cmp_eq_u32 s%d, 4" % NF)
            A("s_cbranch_scc1 %s" % sk)
            step(per + NT, lambda: issue3f(extra))
            switch3u()
            A("s_mov_b32 s62, s%d" % RING)
            step(per + NT, lambda: issue3u(extra, "W"))
            A("s_waitcnt vmcnt(4)")
            A("s_branch %s" % sk2)
            A.label(sk)
            switch3u()
            A("s_mov_b32 s62, s%d" % RING)
            par3[0] -= 1
            step(per + NT, lambda: issue3u(extra, "W"))
            A.label(sk2)
            step(4 + NT, lambda: (lgate_issue(GU), issue3u(extra, "W")))
        else:
            issue3f(extra)
            if not cfg.xpos: issue3f(extra)
            A("s_waitcnt vmcnt(%d)" % (3 * per))
            base_calc()
            step(2 * per, lambda: issue3f(extra)); step(2 * per, None)
            sk = A.newlabel("nf")
            A("s_cmp_eq_u32 s%d, 4" % NF)
            A("s_cbranch_scc1 %s" % sk)
            step(per, lambda: issue3f(extra))
            A.label(sk)
            switch3u()
            A("s_mov_b32 s62, s%d" % RING)
            step(per, lambda: issue3u(extra, "W"))
            step(4, lambda: (lgate_issue(GU), issue3u(extra, "W")))
        stamp(A, cfg, 12)
        lgate_wait(GU, (1 << 54) - 1, 1, 4)
        stamp(A, cfg, 13)
        A("s_mov_b32 s%d, s62" % RING)
        A("s_mov_b32 s%d, 0" % N3)
        issue3u(extra, "X"); issue3u(extra, "X")
        step(per - 4, lambda: issue3u(extra))
        step(per, lambda: issue3u(extra))
        if cfg.fast:
            A("s_add_u32 s60, s%d, s%d" % (B3U, M0P))
            A("s_add_u32 s61, s%d, s%d" % (B3U, M0X))
            A("s_sub_u32 s61, s61, 16384")
            fast_loop("l3%s_u" % sfx, 7, per, sel3, 3, 24, 4, 262144, B3P, 60, M0Q3, 61 if extra else None)
        else: lloop("l3%s_u" % sfx, 7, per, lambda: issue3u(extra), 2)
        step(per, None); step(0, None)
        A("s_branch fin")
    A.label("l3_entry")
    A("s_sub_u32 s%d, s%d, 4" % (LW, WAVE))
    A("s_lshl_b32 s%d, s%d, 12" % (M0P, LW))
    lane23(); setup3(); gates3()
    lgate_issue(GT)
    lgate_wait(GT, (1 << 36) - 1, 0, 0)
    base_ld()
    A("s_branch l3_main2")

    A.label("fin")
    stamp(A, cfg, 7)
    A("v_lshlrev_b32 v9, 4, v2")
    A("s_lshl_b32 s44, s%d, 2" % ST)
    A("s_add_u32 s44, s44, s%d" % D3)
    A("s_lshl_b32 s44, s44, 2")
    A("s_add_u32 s44, s44, s%d" % SP)
    A("s_lshl_b32 s43, s44, 7")
    A("s_add_u32 s43, s43, %d" % FL_X)
    A("s_mul_i32 s47, s44, %d" % (4 * 9216))
    A("s_lshl_b32 s46, s%d, 10" % LW)
    A("s_add_u32 s47, s47, s46")
    for j in range(3):
        A("s_add_u32 s48, s%d, %d" % (SP, 1 + j))
        A("s_and_b32 s48, s48, 3")
        A("s_mul_i32 s48, s48, 9216")
        A("s_add_u32 s%d, s47, s48" % (40 + j))
    A("v_add_u32 v15, 4096, v9")
    A("v_add_u32 v18, 8192, v9")
    A("s_lshl_b32 s46, s%d, 11" % LW)
    A("s_add_u32 s46, s46, %d" % LDS_OWN)
    A("v_add_u32 v10, s46, v9")
    A("s_lshl_b32 s52, 1, s%d" % SP)
    A("s_xor_b32 s52, s52, 15")
    A("s_mov_b32 s53, 0")
    srd(A, 12, PWS, SZ_EX, WS_EX)
    srd(A, 8, POUT, 2048 * 576 * 4)
    A("v_cmp_gt_u32 vcc, 4, v2")
    A("s_nop 1")
    A("v_cndmask_b32 v%d, 0, v%d, vcc" % (VL8, VL8))
    def own():
        for n in range(3):
            for aa in range(2):
                A("ds_read_b128 %s, v10 offset:%d" % (v(OWN + 8 * n + 4 * aa, 4), n * 8192 + aa * 1024))
        A("s_waitcnt lgkmcnt(0)")
        for k in range(12):
            A("v_pk_add_f32 %s, %s, %s" % (v(BASE + 2 * k, 2), v(BASE + 2 * k, 2), v(OWN + 2 * k, 2)))
    A("s_barrier")
    stamp(A, cfg, 8)
    if cfg.xpoll == 0:
        gate_issue(A, 43)
        own()
        gate_check(A, 43, "s[52:53]")
    else:
        lgate_issue(43)
        own()
        A("s_cmp_lg_u32 s%d, 0" % LW)
        A("s_cbranch_scc1 fin_w")
        gate_check(A, 43, "s[52:53]")
        A.label("fin_w")
        A("s_barrier")
    stamp(A, cfg, 9)
    def ld(n):
        for j in range(3):
            A("buffer_load_dwordx4 %s, v%d, s[12:15], s%d offen sc1" % (v(PR + (n * 3 + j) * 4, 4), (9, 15, 18)[n], 40 + j))
    def fin(n):
        b = BASE + 8 * n
        for j in range(3):
            p = PR + (n * 3 + j) * 4
            for k in range(4):
                A("v_lshlrev_b32 v%d, 16, v%d" % (28 + 2 * (k % 2), p + k))
                A("v_and_b32 v%d, 0xffff0000, v%d" % (29 + 2 * (k % 2), p + k))
                A("v_pk_add_f32 %s, %s, %s" % (v(b + 2 * k, 2), v(b + 2 * k, 2), v(28 + 2 * (k % 2), 2)))
    def st(n):
        for aa in range(2):
            A("buffer_store_dwordx4 %s, v47, s[8:11], s%d offen offset:%d %s" % (v(BASE + 8 * n + 4 * aa, 4), (50, 51)[aa], n * 256, cfg.sto))
    A("s_cmp_lg_u32 s%d, 0" % LW)
    A("s_cbranch_scc1 fin_b")
    ld(2); ld(0); ld(1)
    A("s_waitcnt vmcnt(6)"); fin(2)
    A("s_waitcnt vmcnt(3)"); fin(0)
    A("s_waitcnt vmcnt(0)"); st(2); st(0); fin(1); st(1)
    A("s_branch k_done")
    A.label("fin_b")
    ld(0); ld(1)
    A("s_waitcnt vmcnt(3)"); fin(0)
    A("s_waitcnt vmcnt(0)"); st(0); fin(1); st(1)
    A.label("k_done")
    stamp_end(A, cfg)
    A.label("k_end")
    A("s_endpgm")

    KB = 29
    PFI = 23
    def kbcalc():
        A("s_sub_u32 s%d, s%d, 19" % (KB, SLOTR))
        A("s_lshl_b32 s%d, s%d, 3" % (KB, KB))
        A("s_add_u32 s%d, s%d, s%d" % (KB, KB, XCD))
    A.label("ln_lo")
    kbcalc()
    pubH()
    biasld()
    A("s_barrier")
    stamp(A, cfg, 2)
    A("s_branch ln_join")
    A.label("ln_hi")
    kbcalc()
    A("v_mov_b32 v216, 0\nv_mov_b32 v217, 0\nv_mov_b32 v215, 0")
    ids23()
    A("v_lshlrev_b32 v120, 7, v2")
    A("s_waitcnt lgkmcnt(0)")
    srd(A, FSRD, PWS, SZ_FL, WS_FL)
    srd(A, 12, PWS, SZ_ST, WS_ST)
    A("s_lshl_b32 s44, s%d, 2" % KB)
    A("s_add_u32 s44, s44, s%d" % WAVE)
    A("s_sub_u32 s44, s44, 4")
    if cfg.csb:
        A("s_sub_u32 s45, s44, 112")
        A("s_cbranch_scc1 ln_ncs")
        A("s_cmp_ge_u32 s45, 72")
        A("s_cselect_b32 s4, s%d, s%d" % (PBIM, PBRE))
        A("s_cselect_b32 s5, s%d, s%d" % (PBIM + 1, PBRE + 1))
        A("s_cselect_b32 s46, 72, 0")
        A("s_cselect_b32 s47, 4, 0")
        A("s_mov_b32 s6, %d\ns_mov_b32 s7, 0x00020000" % SZ_C)
        A("s_sub_u32 s45, s45, s46")
        A("s_mul_i32 s46, s45, %d" % (8 * 1152))
        A("v_lshrrev_b32 v3, 3, v2")
        A("v_and_b32 v4, 7, v2")
        A("v_mul_u32_u24 v5, 1152, v3")
        A("v_lshl_add_u32 v5, v4, 4, v5")
        for j in range(9):
            A("buffer_load_dwordx4 %s, v5, s[4:7], s46 offen offset:%d" % (v(16 + 4 * j, 4), j * 128))
        A("s_lshl_b32 s45, s45, 6")
        A("s_add_u32 s45, s45, s47")
        A("s_add_u32 s45, s45, 16384")
        A("v_lshlrev_b32 v3, 3, v3")
        A("s_mov_b32 s46, 0x3f803f80")
        for q in range(4): A("v_mov_b32 v%d, 0" % (8 + q))
        for j in range(9):
            A("s_waitcnt vmcnt(%d)" % (8 - j))
            for q in range(4): A("v_dot2_f32_bf16 v%d, v%d, s46, v%d" % (8 + q, 16 + 4 * j + q, 8 + q))
        A("s_nop 2")
        A("v_add_f32 v8, v8, v9\nv_add_f32 v10, v10, v11\nv_add_f32 v8, v8, v10")
        for dpp in ("quad_perm:[1,0,3,2]", "quad_perm:[2,3,0,1]", "row_half_mirror"):
            A("s_nop 1")
            A("v_add_f32_dpp v8, v8, v8 %s row_mask:0xf bank_mask:0xf" % dpp)
        A("s_mov_b32 exec_lo, 0x01010101\ns_mov_b32 exec_hi, 0x01010101")
        A("buffer_store_dword v8, v3, s[12:15], s45 offen sc1")
        A("s_mov_b64 exec, -1")
        A("s_waitcnt vmcnt(0)")
        A("s_branch ln_nw")
        A.label("ln_ncs")
    A("s_mov_b32 s4, s%d\ns_mov_b32 s5, s%d\ns_mov_b32 s6, 0\ns_mov_b32 s45, 0" % (PB1, PB1 + 1))
    for (w, ptr, sz) in ((32, PB1, 9216), (33, PB1, 9216), (34, PB2, 4096), (35, PDSK, 1152), (36, PLRE, 1152), (37, PLIM, 1152), (38, PLOGDT, 1152)):
        A("s_cmp_eq_u32 s44, %d" % w)
        A("s_cselect_b32 s4, s%d, s4" % ptr)
        A("s_cselect_b32 s5, s%d, s5" % (ptr + 1))
        A("s_cselect_b32 s6, %d, s6" % sz)
        if w == 33: A("s_cselect_b32 s45, 8192, s45")
    A("s_mov_b32 s7, 0x00020000")
    A("s_cmp_eq_u32 s6, 0")
    A("s_cbranch_scc1 ln_nt")
    A("buffer_load_dword v121, v120, s[4:7], s45 offen")
    A.label("ln_nt")
    if cfg.codepf:
        A("s_cmp_ge_u32 s44, 32")
        A("s_cbranch_scc1 ln_nc")
        A("s_getpc_b64 s[46:47]")
        A.label("ln_pc")
        A("s_sub_u32 s46, s46, ln_pc-%s" % KN)
        A("s_subb_u32 s47, s47, 0")
        A("s_and_b32 s45, s44, 3")
        A("s_lshl_b32 s45, s45, 13")
        A("v_add_u32 v122, s45, v120")
        A("s_mov_b32 s45, text_end-%s" % KN)
        for r in range(2):
            A("v_cmp_gt_u32 vcc, s45, v122")
            A("s_and_saveexec_b64 s[48:49], vcc")
            A("s_cbranch_execz ln_nc2")
            A("global_load_dword v%d, v122, s[46:47]" % (123 + r))
            A("v_add_u32 v122, 32768, v122")
        A.label("ln_nc2")
        A("s_mov_b64 exec, -1")
        A.label("ln_nc")
    srd(A, 4, PW1, SZ_W)
    A("s_sub_u32 s45, s44, 40")
    A("s_cbranch_scc1 ln_nw")
    A("s_lshl_b32 s45, s45, 13")
    for r in range(cfg.lnpf):
        A("buffer_load_dword v121, v120, s[4:7], s45 offen")
        A("s_add_u32 s45, s45, %d" % (NLP * 8192))
    A.label("ln_nw")
    A("s_barrier")
    tag_issue(A)
    A("s_barrier")
    tag_check(A)
    A.label("ln_join")
    A("v_lshlrev_b32 v120, 7, v2")
    A("s_lshl_b32 s%d, s%d, 3" % (PFI, KB))
    A("s_add_u32 s%d, s%d, s%d" % (PFI, PFI, WAVE))
    if cfg.tlbw:
        A("s_cmp_lg_u32 s%d, %d" % (SLOTR, cfg.tlbw))
        A("s_cbranch_scc1 ln_ntl")
        A("s_mov_b32 s60, s%d\ns_mov_b32 s61, s%d\ns_mov_b32 s62, 0" % (PW1, PW1 + 1))
        for (w, ptr, sz) in ((1, PW1, SZ_W), (2, PW2, SZ_W), (3, PWS, 0x4000000 if cfg.side else WS_EX + SZ_EX), (4, POUT, 2048 * 576 * 4), (5, PCRE, SZ_C), (6, PCIM, SZ_C), (7, PLOGDT, 1152)):
            A("s_cmp_eq_u32 s%d, %d" % (WAVE, w))
            A("s_cselect_b32 s60, s%d, s60" % ptr)
            A("s_cselect_b32 s61, s%d, s61" % (ptr + 1))
            A("s_cselect_b32 s62, %d, s62" % sz)
        A("s_mov_b32 s63, 0x00020000")
        A("v_lshlrev_b32 v122, 20, v2")
        A("buffer_load_dword v121, v122, s[60:63], 0 offen offset:512 sc1")
        A.label("ln_ntl")
    for r in range(cfg.pf_a):
        if r == 0:
            A("s_add_u32 s55, s%d, %d" % (PFI, L_C))
            A("s_add_u32 s3, s%d, %d" % (PFI, (NLP * cfg.lnpf - 162) & 0xffffffff))
            A("s_cmp_lt_u32 s%d, 162" % PFI)
            A("s_cselect_b32 s3, s55, s3")
        else:
            A("s_add_u32 s3, s%d, %d" % (PFI, NLP * cfg.lnpf - 162 + 512 * r))
        pf_decode(A, 3, 60, 58, 54)
        A("buffer_load_dword v121, v120, s[60:63], s58 offen")
    A("s_cmp_ge_u32 s%d, 4" % WAVE)
    A("s_cbranch_scc1 l2_entry")
    A("s_cmp_lg_u32 s%d, 0" % WAVE)
    A("s_cbranch_scc1 ln_g")
    A("s_sleep %d" % cfg.bsleep)
    wide_issue(A)
    wide_check(A)
    A.label("ln_g")
    A("s_waitcnt vmcnt(0)")
    A("s_barrier")
    stamp(A, cfg, 3)
    A("s_branch c2_entry")

    A.label("scan_entry")
    CB = 29
    A("s_sub_u32 s%d, s%d, 27" % (CB, SLOTR))
    A("s_lshl_b32 s%d, s%d, 3" % (CB, CB))
    A("s_add_u32 s%d, s%d, s%d" % (CB, CB, XCD))
    A("s_mov_b32 s%d, 0" % RING)
    A("v_lshlrev_b32 v56, 7, v2")
    A("s_lshl_b32 s%d, s%d, 3" % (PFI, CB))
    A("s_add_u32 s%d, s%d, s%d" % (PFI, PFI, WAVE))
    A("s_add_u32 s%d, s%d, %d" % (PFI, PFI, L_W2 if cfg.pf_a else L_C))
    def scpf(lo=0):
        pf_decode(A, PFI, 60, 58, 54, lo=lo)
        A("buffer_load_dword v57, v56, s[60:63], s58 offen")
        A("s_add_u32 s%d, s%d, 320" % (PFI, PFI))
    for _ in range(cfg.pf_a2): scpf(L_C)
    A("s_cmp_lt_u32 s%d, 36" % CB)
    A("s_cbranch_scc1 scan2")
    for _ in range(sum(cfg.scm) + cfg.pf_b): scpf(L_C)
    A("s_branch scan_done")
    A.label("scan2")
    A("v_and_b32 v3, 7, v0")
    A("v_lshrrev_b32 v4, 3, v0")
    A("v_lshlrev_b32 v5, 10, v4")
    A("v_and_b32 v6, 3, v3")
    A("v_lshl_add_u32 v5, v6, 4, v5")
    A("v_lshrrev_b32 v6, 2, v3")
    A("v_lshl_add_u32 v5, v6, 16, v5")
    A("s_lshl_b32 s40, s%d, 17" % CB)
    A("v_lshlrev_b32 v9, 2, v3")
    A("s_lshl_b32 s41, s%d, 5" % CB)
    for (r, ptr) in ((10, PLRE), (11, PLIM), (12, PLOGDT)):
        srd(A, 4, ptr, 1152)
        A("buffer_load_dword v%d, v9, s[4:7], s41 offen" % r)
    L = [18, 20]; L32 = [22, 24]; L256 = [26, 28]; C2 = [30, 32]
    A("s_mov_b32 s44, 0x%x" % f2u(math.log2(math.e)))
    A("s_mov_b32 s45, 0x%x" % f2u(1.0 / (2 * math.pi)))
    A("s_waitcnt vmcnt(0)")
    def sq(d, s_):
        A("v_mul_f32 v40, v%d, v%d" % (s_ + 1, s_ + 1))
        A("v_mul_f32 v41, v%d, v%d" % (s_, s_ + 1))
        A("v_fma_f32 v%d, v%d, v%d, -v40" % (d, s_, s_))
        A("v_add_f32 v%d, v41, v41" % (d + 1))
    for c in range(2):
        for (d, s_) in ((34, 10), (35, 11), (36, 12)):
            if c == 0: A("v_lshlrev_b32 v%d, 16, v%d" % (d, s_))
            else: A("v_and_b32 v%d, 0xffff0000, v%d" % (d, s_))
        A("v_mul_f32 v36, s44, v36")
        A("v_exp_f32 v36, v36")
        A("s_nop 0")
        round_bf16(A, 36, 36)
        A("v_mul_f32 v37, v36, v34")
        A("v_mul_f32 v38, v36, v35")
        A("v_mul_f32 v37, s44, v37")
        A("v_mul_f32 v38, s45, v38")
        A("v_exp_f32 v37, v37")
        A("v_fract_f32 v38, v38")
        A("v_cos_f32 v39, v38")
        A("v_sin_f32 v38, v38")
        A("s_nop 0")
        A("v_mul_f32 v%d, v37, v39" % L[c])
        A("v_mul_f32 v%d, v37, v38" % (L[c] + 1))
        sq(L32[c], L[c])
        for _ in range(4): sq(L32[c], L32[c])
        sq(L256[c], L32[c])
        for _ in range(2): sq(L256[c], L256[c])
        A("v_add_f32 v37, -1.0, v%d" % L[c])
        A("v_mul_f32 v38, v34, v34")
        A("v_fmac_f32 v38, v35, v35")
        A("v_rcp_f32 v38, v38")
        A("v_mul_f32 v39, v37, v34")
        A("v_fmac_f32 v39, v%d, v35" % (L[c] + 1))
        A("v_mul_f32 v40, v%d, v34" % (L[c] + 1))
        A("v_fma_f32 v40, -v37, v35, v40")
        A("v_add_f32 v38, v38, v38")
        A("v_mul_f32 v%d, v39, v38" % C2[c])
        A("v_mul_f32 v%d, v40, v38" % (C2[c] + 1))
    A("s_mul_i32 s43, s%d, 21846" % CB)
    A("s_lshr_b32 s43, s43, 16")
    A("s_lshl_b32 s43, s43, 9")
    A("s_add_u32 s43, s43, %d" % FL_G)
    A("s_cmp_lg_u32 s%d, 0" % WAVE)
    A("s_cbranch_scc1 scan_g")
    gate_issue(A, 43)
    gate_check(A, 43, (1 << 64) - 1)
    A.label("scan_g")
    A("s_barrier")
    stamp(A, cfg, 3)
    srd(A, 4, PWS, SZ_G, WS_G)
    srd(A, 12, PWS, SZ_HT, WS_HT)
    G0 = 56; RW = 184
    for j in range(16):
        A("buffer_load_dwordx4 %s, v5, s[4:7], s40 offen offset:%d %s" % (v(RW + 4 * j, 4), j * 64, cfg.gl))
    LDS_AGG = 9216; LDS_WAGG = LDS_AGG + 8192
    H = 10; T2 = 34
    def stepf(Lr, src):
        for c in range(2):
            A("v_pk_fma_f32 %s, %s, %s, %s op_sel_hi:[0,1,1]" % (v(T2 + 2 * c, 2), v(Lr[c], 2), v(H + 2 * c, 2), v(src + 2 * c, 2)))
        for c in range(2):
            A("v_pk_fma_f32 %s, %s, %s, %s op_sel:[1,1,0] op_sel_hi:[1,0,1] neg_lo:[1,0,0]" % (v(H + 2 * c, 2), v(Lr[c], 2), v(H + 2 * c, 2), v(T2 + 2 * c, 2)))
    for i in range(4): A("v_mov_b32 v%d, 0" % (H + i))
    for j in range(16):
        A("s_waitcnt vmcnt(%d)" % (15 - j))
        for e in range(2):
            g = G0 + 4 * (2 * j + e)
            for c in range(2):
                A("v_lshlrev_b32 v%d, 16, v%d" % (g + 2 * c, RW + 4 * j + 2 * e + c))
                A("v_and_b32 v%d, 0xffff0000, v%d" % (g + 2 * c + 1, RW + 4 * j + 2 * e + c))
        for e in range(2):
            g = G0 + 4 * (2 * j + e)
            for c in range(2):
                A("v_pk_mul_f32 %s, %s, %s op_sel_hi:[0,1]" % (v(40 + 4 * e + 2 * c, 2), v(C2[c], 2), v(g + 2 * c, 2)))
        for e in range(2):
            g = G0 + 4 * (2 * j + e)
            for c in range(2):
                A("v_pk_fma_f32 %s, %s, %s, %s op_sel:[1,1,0] op_sel_hi:[1,0,1] neg_lo:[1,0,0]" % (v(g + 2 * c, 2), v(C2[c], 2), v(g + 2 * c, 2), v(40 + 4 * e + 2 * c, 2)))
        for e in range(2): stepf(L, G0 + 4 * (2 * j + e))
    A("v_lshlrev_b32 v8, 7, v2")
    def scpf2():
        pf_decode(A, PFI, 60, 58, 54, lo=L_C)
        A("buffer_load_dword v9, v8, s[60:63], s58 offen")
        A("s_add_u32 s%d, s%d, 320" % (PFI, PFI))
    for _ in range(cfg.scm[0] + cfg.scm[1]): scpf2()
    stamp(A, cfg, 4)
    A("v_lshlrev_b32 v15, 4, v3")
    A("v_lshlrev_b32 v17, 4, v0")
    A("ds_write_b128 v17, %s offset:%d" % (v(H, 4), LDS_AGG))
    A("s_lshl_b32 s44, s%d, 10" % WAVE)
    A("v_add_u32 v17, s44, v15")
    A("s_waitcnt lgkmcnt(0)")
    AG = 184; WG_ = 216
    for j in range(8): A("ds_read_b128 %s, v17 offset:%d" % (v(AG + 4 * j, 4), LDS_AGG + j * 128))
    A("s_waitcnt lgkmcnt(7)")
    for i in range(4): A("v_mov_b32 v%d, v%d" % (H + i, AG + i))
    for j in range(1, 8):
        A("s_waitcnt lgkmcnt(%d)" % (7 - j))
        stepf(L32, AG + 4 * j)
    A("s_lshl_b32 s44, s%d, 7" % WAVE)
    A("v_add_u32 v17, s44, v15")
    A("ds_write_b128 v17, %s offset:%d" % (v(H, 4), LDS_WAGG))
    A("s_waitcnt lgkmcnt(0)")
    A("s_barrier")
    for j in range(7): A("ds_read_b128 %s, v15 offset:%d" % (v(WG_ + 4 * j, 4), LDS_WAGG + j * 128))
    for i in range(4): A("v_mov_b32 v%d, 0" % (H + i))
    A("v_lshrrev_b32 v17, 3, v2")
    A("s_waitcnt lgkmcnt(0)")
    for j in range(7):
        A("s_cmp_le_u32 s%d, %d" % (WAVE, j))
        A("s_cbranch_scc1 scan_w")
        stepf(L256, WG_ + 4 * j)
    A.label("scan_w")
    for j in range(7):
        A("v_cmpx_lt_u32 vcc, %d, v17" % j)
        stepf(L32, AG + 4 * j)
    A("s_mov_b64 exec, -1")
    A("s_barrier")
    stamp(A, cfg, 10)
    for _ in range(cfg.scm[2]): scpf2()
    A("s_mul_i32 s44, s%d, %d" % (WAVE, 32 * 528))
    A("v_mul_u32_u24 v48, 528, v3")
    A("v_lshl_add_u32 v48, v17, 6, v48")
    A("v_add_u32 v48, s44, v48")
    A("v_lshrrev_b32 v49, 5, v2")
    A("v_and_b32 v50, 31, v2")
    A("v_lshlrev_b32 v50, 4, v50")
    A("v_mul_u32_u24 v51, 528, v49")
    A("v_add3_u32 v51, v51, v50, s44")
    A("v_lshl_add_u32 v50, v49, 13, v50")
    A("s_lshr_b32 s45, s%d, 1" % CB)
    A("s_lshl_b32 s45, s45, 5")
    A("s_and_b32 s46, s%d, 1" % CB)
    A("s_lshl_b32 s46, s46, 3")
    A("s_add_u32 s45, s45, s46")
    A("s_lshl_b32 s45, s45, 12")
    A("s_lshl_b32 s46, s%d, 9" % WAVE)
    A("s_add_u32 s45, s45, s46")
    PK = 184
    for blk in range(4):
        for k in range(8):
            g = G0 + 4 * (blk * 8 + k)
            hp = H if (blk == 0 and k == 0) else g - 4
            for c in range(2):
                A("v_pk_fma_f32 %s, %s, %s, %s op_sel_hi:[0,1,1]" % (v(g + 2 * c, 2), v(L[c], 2), v(hp + 2 * c, 2), v(g + 2 * c, 2)))
            for c in range(2):
                A("v_pk_fma_f32 %s, %s, %s, %s op_sel:[1,1,0] op_sel_hi:[1,0,1] neg_lo:[1,0,0]" % (v(g + 2 * c, 2), v(L[c], 2), v(hp + 2 * c, 2), v(g + 2 * c, 2)))
        pkb = PK + blk * 16
        for q in range(4):
            for k in range(4):
                g = G0 + 4 * (blk * 8 + 2 * k)
                sg = "-" if q & 1 else ""
                A("v_cvt_pk_bf16_f32 v%d, %sv%d, %sv%d" % (pkb + 4 * q + k, sg, g + q, sg, g + 4 + q))
        for q in range(4):
            A("ds_write_b128 v48, %s offset:%d" % (v(pkb + 4 * q, 4), q * 8 * 528 + blk * 16))
    A("s_waitcnt lgkmcnt(0)")
    stamp(A, cfg, 11)
    for n in range(16):
        A("ds_read_b128 %s, v51 offset:%d" % (v(G0 + 4 * n, 4), n * 2 * 528))
        if n == 7: A("s_waitcnt lgkmcnt(0)")
    for n in range(16):
        q = n >> 2; k = n & 3; c = q >> 1; part = q & 1
        row = 16 * (k & 1) + 4 * (k >> 1) + c + 576 * part
        if n >= 8: A("s_waitcnt lgkmcnt(%d)" % (15 - n))
        A("s_add_u32 s46, s45, %d" % (row * 4096))
        A("buffer_store_dwordx4 %s, v50, s[12:15], s46 offen sc1" % v(G0 + 4 * n, 4))
    A("s_lshl_b32 s52, s%d, 9" % WAVE)
    A("s_lshl_b32 s44, s%d, 3" % CB)
    A("s_add_u32 s52, s52, s44")
    A("s_add_u32 s52, s52, %d" % FL_T)
    A("s_waitcnt vmcnt(0)")
    publish(A, 52)
    stamp(A, cfg, 5)
    A("s_barrier")
    for _ in range(cfg.pf_b): scpf2()
    A.label("scan_done")
    A("s_waitcnt vmcnt(0)")
    A("s_barrier")
    A("s_cmp_lt_u32 s%d, 4" % WAVE)
    A("s_cbranch_scc1 c3_entry")
    A("s_branch l3_entry")
    A.label("text_end")
    A("s_endpgm")

    HEADER = open("ref_header.txt").read().split("; @launch")[0]
    out = HEADER + "; @launch grid=(256,1,1) block=(512,1,1) lds=163840\n"
    out += DOC + '.amdgcn_target "amdgcn-amd-amdhsa--gfx950"\n.text\n' + A.text()
    out += '.section .rodata,"a"\n.p2align 6\n' + kd(KN, 256, 102)
    return out

if __name__ == "__main__":
    kw = {}
    for a_ in sys.argv[2:]:
        k, val = a_.split("=")
        kw[k] = ast.literal_eval(val)
    open(sys.argv[1], "w").write(gen(**kw))
```

```python
import sys, math, ast
from asmlib import *

NAME = "parallel_sum__ssm_conv_s5__mixer_token_mlp__prompt"
PAIR = 2048
SIDE = 0x3000000
WS_HF = 0x0;        SZ_HF = 32 * 36 * PAIR
WS_UF = 0x400000;   SZ_UF = 72 * 36 * PAIR
WS_G = 0xC00000;    SZ_G = 4718592
WS_HT = 0x1400000;  SZ_HT = 4718592
WS_ST = 0x1900000;  SZ_ST = 16384 + 8192
WS_FL = 0x1910000;  SZ_FL = 65536
WS_EX = 0x2000000;  SZ_EX = 64 * 16 * 9216
WS_STAMP = 0xC000000
SZ_W = 2048 * 9216; SZ_C = 576 * 1152; SZ_X = 2359296
FL_H = 0
FL_G = 2048
FL_U = FL_G + 12 * 512
FL_T = FL_U + 16 * 512
FL_X = FL_T + 8 * 512
assert FL_X + 256 * 128 <= SZ_FL

PX, PLRE, PLIM, PBRE, PBIM, PCRE, PCIM, PLOGDT, PDSK, PBX, PW1, PB1, PW2, PB2, POUT, PDBG, PWS = [64 + 2 * i for i in range(17)]
WAVE, SLOTR, XCD = 20, 21, 22
TAG = 24
RING = 26
CNT = 27
EVT = 28
NS = 4; SLOT = 34816; LDS_OWN = NS * SLOT
MFMA = "v_mfma_f32_16x16x32_bf16"
SPIN = 1 << 14
SIG = 163776
NS2 = 5; SLOT2 = 28672; LDS_LN = NS2 * SLOT2

DOC = """;
"""

class Cfg:
    stamp = False
    pf_a = 1
    scm = (0, 0, 0)
    pf_b = 1
    lnpf = 1
    rot1 = 1; rot2 = 1; rot3 = 1
    hl = "sc1"
    codepf = 1
    gl = ""
    pf_a2 = 0
    dbgst = 0
    tab2 = 0
    xint = 1
    upub = 1
    xpos = 2
    binit = 1
    nt3 = 0
    nt3s = 0
    al = 0
    alp = 0
    csb = 1
    xpoll = 1
    pollat = 29
    adv2 = 4
    gpub = 1
    side = 1
    sto = ""
    tlbw = 0
    fast = 0
    hoist = 1
    hack3 = 0
    ord2 = 0
    ord3 = 0
    pair2 = 0
    pair3 = 0
    bsleep = 10
    gsleep = 4
    csleep = 0
    pro = 3
    e1 = (7,)

class G:
    pass

def stamp(A, cfg, idx):
    if cfg.stamp:
        A("s_memrealtime s[98:99]")
        A("s_memtime s[100:101]")
        A("s_waitcnt lgkmcnt(0)")
        A("v_writelane_b32 v255, s98, %d" % idx)
        A("v_writelane_b32 v255, s100, %d" % (idx + 16))

def stamp_end(A, cfg):
    if not cfg.stamp: return
    A("s_waitcnt vmcnt(0)")
    stamp(A, cfg, 15)
    srd(A, 4, PWS, 262144, WS_STAMP)
    A("s_lshl_b32 s30, s2, 3")
    A("s_add_u32 s30, s30, s%d" % WAVE)
    A("s_lshl_b32 s30, s30, 7")
    A("v_lshlrev_b32 v3, 2, v2")
    A("s_mov_b32 exec_lo, -1\ns_mov_b32 exec_hi, 0")
    A("buffer_store_dword v255, v3, s[4:7], s30 offen")
    if cfg.dbgst:
        A("s_cmp_lg_u32 s2, %d" % cfg.dbgst)
        A("s_cbranch_scc1 dbg_skip")
        srd(A, 4, PDBG, 256)
        A("v_readlane_b32 s31, v255, 0")
        A("s_nop 3")
        A("v_subrev_u32 v255, s31, v255")
        A("s_cmp_eq_u32 s%d, 3" % WAVE)
        A("s_cbranch_scc0 dbg_l")
        A("s_mov_b64 exec, 0x3ffc")
        A("buffer_store_dword v255, v3, s[4:7], 0 offen")
        A.label("dbg_l")
        A("s_cmp_eq_u32 s%d, 4" % WAVE)
        A("s_cbranch_scc0 dbg_skip")
        A("s_mov_b64 exec, 0x8000")
        A("buffer_store_dword v255, v3, s[4:7], 0 offen")
        A("s_mov_b64 exec, 0x200")
        A("buffer_store_dword v255, v3, s[4:7], 0 offen offset:20")
        A.label("dbg_skip")

def slot_adv(ph, sreg=RING):
    sl, n = (SLOT, NS) if ph == 3 else (SLOT2, NS2)
    return ["s_add_u32 s%d, s%d, %d" % (sreg, sreg, sl), "s_cmp_eq_u32 s%d, %d" % (sreg, n * sl), "s_cselect_b32 s%d, 0, s%d" % (sreg, sreg)]

def row16_sum(A, r):
    for sh in (8, 4, 2, 1):
        A("s_nop 1")
        A("v_add_f32_dpp v%d, v%d, v%d row_ror:%d row_mask:0xf bank_mask:0xf" % (r, r, r, sh))

def round_bf16(A, dst, src):
    A("v_cvt_pk_bf16_f32 v%d, v%d, v%d" % (dst, src, src))
    A("v_lshlrev_b32 v%d, 16, v%d" % (dst, dst))

L_C = 2304; L_W2 = 2304 + 162; L_END = L_W2 + 72 * 32
def pf_decode(A, idx, d, off, t, lo=0):
    A("s_sub_u32 s%d, s%d, %d" % (off, idx, L_W2))
    A("s_bfe_u32 s%d, s%d, 0x20005" % (t, off))
    A("s_mul_i32 s%d, s%d, %d" % (t, t, 18 * 32))
    A("s_lshr_b32 s%d, s%d, 7" % (t + 1, off))
    A("s_lshl_b32 s%d, s%d, 5" % (t + 1, t + 1))
    A("s_add_u32 s%d, s%d, s%d" % (t, t, t + 1))
    A("s_and_b32 s%d, s%d, 31" % (off, off))
    A("s_add_u32 s%d, s%d, s%d" % (off, off, t))
    A("s_cmp_ge_u32 s%d, %d" % (idx, L_END))
    A("s_cselect_b32 s%d, 4096, s%d" % (off, off))
    A("s_mov_b32 s%d, s%d\ns_mov_b32 s%d, s%d\ns_mov_b32 s%d, %d" % (d, PW2, d + 1, PW2 + 1, d + 2, SZ_W))
    for (hi, sub, base, sz) in ((L_W2, L_C + 81, PCIM, SZ_C), (L_C + 81, L_C, PCRE, SZ_C), (L_C, 0, PW1, SZ_W)):
        if hi <= lo: continue
        A("s_sub_u32 s%d, s%d, %d" % (t, idx, sub))
        A("s_cmp_lt_u32 s%d, %d" % (idx, hi))
        A("s_cselect_b32 s%d, s%d, s%d" % (off, t, off))
        A("s_cselect_b32 s%d, s%d, s%d" % (d, base, d))
        A("s_cselect_b32 s%d, s%d, s%d" % (d + 1, base + 1, d + 1))
        A("s_cselect_b32 s%d, %d, s%d" % (d + 2, sz, d + 2))
    A("s_mov_b32 s%d, 0x00020000" % (d + 3))
    A("s_lshl_b32 s%d, s%d, 13" % (off, off))

GSLEEP = [8]
FSRD = 16; VL8 = 248; VT = 250; VP = 252
def tag_issue(A):
    srd(A, 60, PDBG, 256)
    A("v_mov_b32 v249, 0")
    A("buffer_load_dwordx2 v[%d:%d], v249, s[60:63], 0 offen sc1" % (VT, VT + 1))
def tag_check(A):
    lp = A.newlabel("tg"); ok = A.newlabel("tg"); rt = A.newlabel("tg")
    A("s_mov_b32 s59, 0")
    A.label(lp)
    A("s_waitcnt vmcnt(0)")
    A("v_readfirstlane_b32 s58, v%d" % VT)
    A("s_add_u32 s59, s59, 1")
    A("s_cmp_eq_u32 s58, 0")
    A("s_cbranch_scc1 %s" % rt)
    A("s_sub_u32 s58, s%d, s58" % TAG)
    A("s_cmp_lt_i32 s58, 1500")
    A("s_cbranch_scc1 %s" % ok)
    A("s_cmp_gt_u32 s59, 64")
    A("s_cbranch_scc1 %s" % ok)
    A.label(rt)
    A("s_cmp_gt_u32 s59, %d" % SPIN)
    A("s_cbranch_scc1 %s" % ok)
    A("s_sleep 2")
    tag_issue(A)
    A("s_branch %s" % lp)
    A.label(ok)
def publish(A, offreg):
    A("s_mov_b64 exec, 1")
    A("buffer_store_dwordx2 v[%d:%d], v%d, s[%d:%d], s%d offen sc1" % (VT, VT + 1, VL8, FSRD, FSRD + 3, offreg))
    A("s_mov_b64 exec, -1")
def gate_issue(A, offreg):
    A("buffer_load_dwordx2 v[%d:%d], v%d, s[%d:%d], s%d offen sc1" % (VP, VP + 1, VL8, FSRD, FSRD + 3, offreg))
def gate_check(A, offreg, mask, first_wait=0):
    lp = A.newlabel("gt"); ok = A.newlabel("gt")
    A("s_mov_b32 s59, 0")
    if isinstance(mask, int):
        A("s_mov_b32 s56, 0x%x" % (mask & 0xffffffff))
        A("s_mov_b32 s57, 0x%x" % (mask >> 32))
        mask = "s[56:57]"
    A("s_waitcnt vmcnt(%d)" % first_wait)
    A.label(lp)
    A("v_cmp_ne_u64 vcc, v[%d:%d], v[%d:%d]" % (VP, VP + 1, VT, VT + 1))
    A("s_add_u32 s59, s59, 1")
    A("s_and_b64 vcc, vcc, %s" % mask)
    A("s_cbranch_scc0 %s" % ok)
    A("s_cmp_gt_u32 s59, %d" % SPIN)
    A("s_cbranch_scc1 %s" % ok)
    A("s_sleep %d" % GSLEEP[0])
    gate_issue(A, offreg)
    A("s_waitcnt vmcnt(0)")
    A("s_branch %s" % lp)
    A.label(ok)

VW = 240
def wide_issue(A):
    A("v_lshlrev_b32 v249, 4, v2")
    A("buffer_load_dwordx4 v[%d:%d], v249, s[%d:%d], 0 offen sc1" % (VW, VW + 3, FSRD, FSRD + 3))
    A("buffer_load_dwordx4 v[%d:%d], v249, s[%d:%d], 0 offen offset:1024 sc1" % (VW + 4, VW + 7, FSRD, FSRD + 3))
def wide_check(A):
    lp = A.newlabel("gw"); ok = A.newlabel("gw")
    A("s_mov_b32 s59, 0")
    A.label(lp)
    A("s_waitcnt vmcnt(0)")
    A("v_cmp_ne_u64 vcc, v[%d:%d], v[%d:%d]" % (VW, VW + 1, VT, VT + 1))
    for q in range(1, 4):
        A("v_cmp_ne_u64 s[56:57], v[%d:%d], v[%d:%d]" % (VW + 2 * q, VW + 2 * q + 1, VT, VT + 1))
        A("s_or_b64 vcc, vcc, s[56:57]")
    A("s_cbranch_scc0 %s" % ok)
    A("s_add_u32 s59, s59, 1")
    A("s_cmp_gt_u32 s59, %d" % SPIN)
    A("s_cbranch_scc1 %s" % ok)
    A("s_sleep %d" % GSLEEP[0])
    wide_issue(A)
    A("s_branch %s" % lp)
    A.label(ok)

def group(A, ms, rs, nprev, extra=(), pts=None):
    rs = list(rs); issued = 0; waited = -1
    for i, (m, need) in enumerate(ms):
        if pts is not None:
            if i in pts:
                nxt = min([p for p in pts if p > i] + [len(ms)])
                need = max(n for _, n in ms[i:nxt])
            else:
                assert need <= waited
        if need > waited:
            A("s_waitcnt lgkmcnt(%d)" % min(15, nprev - 1 - need + issued))
            waited = need
        A(m)
        if rs:
            A(rs.pop(0)); issued += 1
        for pos, t in extra:
            if pos == i: A(t)
    for r in rs: A(r)

ALN = [0, 0]
def align(A):
    if ALN[0]:
        A.raw(".p2alignl %d, 0xbf800000" % ALN[0])
        for _ in range(ALN[1]): A("s_nop 0")

def capture(A, fn):
    mark = len(A.lines); fn()
    body = [l.strip() for l in A.lines[mark:]]; del A.lines[mark:]
    return body

def spread(instrs, n, start=0, per=2):
    out = []
    for k, t in enumerate(instrs):
        out.append((min(n - 1, start + k // per), t))
    return out

class Phase:
    def __init__(self, A, pfx, reads, mfmas, upd, pts, ph):
        self.A, self.pfx, self.reads, self.mfmas, self.upd, self.pts, self.ph = A, pfx, reads, mfmas, upd, pts, ph
        self.n = len(reads(0, 0)); self.nm = len(mfmas(1))
    def first(self, xb=(), cinit=None):
        A = self.A
        for r in self.reads(0, 0): A(r)
        m0 = [(m[:m.rindex(",")] + ", " + (cinit(i) if cinit else "0"), need) for i, (m, need) in enumerate(self.mfmas(0))]
        group(A, m0, self.reads(1, 1), self.n, self.upd(), self.pts)
        group(A, self.mfmas(1), self.reads(0, 0), self.n, xb, self.pts)
    def it(self, pre=None, xb=()):
        A = self.A
        group(A, self.mfmas(0), self.reads(1, 1), self.n, self.upd(), self.pts)
        if pre: pre()
        A("s_barrier")
        group(A, self.mfmas(1), self.reads(0, 0), self.n, xb, self.pts)
    def loop(self, tag, count):
        A = self.A
        if isinstance(count, int): A("s_mov_b32 s%d, %d" % (CNT, count))
        else: A(count)
        align(A)
        A.label(self.pfx + tag)
        self.it(None, [(self.nm - 3, "s_sub_u32 s%d, s%d, 1" % (CNT, CNT)), (self.nm - 2, "s_cmp_lg_u32 s%d, 0" % CNT)])
        A("s_cbranch_scc1 %s%s" % (self.pfx, tag))
    def tail(self, work=()):
        A = self.A
        work = list(work)
        na = self.nm - 3
        group(A, self.mfmas(0), self.reads(1, 1), self.n, list(enumerate(slot_adv(self.ph))) + spread(work[:na], self.nm, 3, 1), self.pts)
        group(A, self.mfmas(1), [], self.n, spread(work[na:], self.nm, 0, 2), self.pts)

def gen(**kw):
    cfg = Cfg()
    for k, val in kw.items():
        assert hasattr(Cfg, k), k
        setattr(cfg, k, val)
    A = Asm()
    HL = cfg.hl
    ALN[0] = cfg.al; ALN[1] = cfg.alp
    NLP = 72 if cfg.csb else 216
    GSLEEP[0] = cfg.gsleep
    late = []
    KN = NAME + "_kernel"
    A.raw(".globl %s\n.p2align 8\n.type %s,@function" % (KN, KN))
    A.label(KN)
    A("s_cmp_ge_u32 s2, 256")
    A("s_cbranch_scc1 k_end")
    A("s_load_dwordx16 s[64:79], s[0:1], 0")
    A("s_load_dwordx16 s[80:95], s[0:1], 64")
    A("s_load_dwordx2 s[96:97], s[0:1], 128")
    A("s_memrealtime s[%d:%d]" % (TAG, TAG + 1))
    A("v_lshrrev_b32 v1, 6, v0")
    A("v_and_b32 v2, 63, v0")
    A("v_readfirstlane_b32 s%d, v1" % WAVE)
    A("s_and_b32 s%d, s2, 7" % XCD)
    A("s_lshr_b32 s%d, s2, 3" % SLOTR)
    A("s_sub_u32 s3, s%d, 19" % SLOTR)
    A("s_cmp_lt_u32 s3, 8")
    A("s_cselect_b32 s%d, %d, %d" % (RING, 3, 4))
    A("s_mul_i32 s%d, s%d, %d" % (RING, RING, SLOT2))
    A("v_lshlrev_b32 v%d, 3, v2" % VL8)
    if cfg.stamp:
        A("v_mov_b32 v255, 0")
        A("s_waitcnt lgkmcnt(0)")
        A("v_writelane_b32 v255, s%d, 0" % TAG)
    TT, PT, FT, DT, SP, ST, D3, KT3, NF, F0 = 30, 31, 32, 33, 34, 35, 36, 37, 38, 39
    A("s_cmp_ge_u32 s%d, 12" % SLOTR)
    A("s_cselect_b32 s%d, 1, 0" % TT)
    A("s_cselect_b32 s%d, 12, 0" % PT)
    A("s_cmp_ge_u32 s%d, 27" % SLOTR)
    A("s_cselect_b32 s%d, 20, s%d" % (PT, PT))
    A("s_sub_u32 s%d, s%d, s%d" % (PT, SLOTR, PT))
    A("s_lshl_b32 s3, s%d, 1" % XCD)
    A("s_add_u32 s%d, s%d, s3" % (TT, TT))
    A("s_cmp_ge_u32 s%d, 4" % WAVE)
    A("s_cbranch_scc1 hi_entry")

    def ids23():
        A("s_lshl_b32 s3, s%d, 3" % XCD)
        A("s_mov_b32 s%d, 0x%x\ns_mov_b32 s%d, 0x%x" % (FT, 0x0206090c, FT + 1, 0x0f121518))
        A("s_lshr_b64 s[%d:%d], s[%d:%d], s3" % (FT, FT + 1, FT, FT + 1))
        A("s_and_b32 s%d, s%d, 0xff" % (FT, FT))
        A("s_add_u32 s%d, s%d, s%d" % (FT, FT, SLOTR))
        A("s_cmp_ge_u32 s%d, 27" % FT)
        A("s_cselect_b32 s3, 27, 0")
        A("s_sub_u32 s%d, s%d, s3" % (FT, FT))
        A("s_mul_i32 s3, s%d, 27" % XCD)
        A("s_add_u32 s3, s3, s%d" % FT)
        A("s_mul_i32 s%d, s3, 43691" % FT)
        A("s_lshr_b32 s%d, s%d, 18" % (FT, FT))
        A("s_mul_i32 s%d, s%d, 6" % (DT, FT))
        A("s_sub_u32 s%d, s3, s%d" % (DT, DT))
        A("s_lshr_b32 s%d, s%d, 1" % (SP, XCD))
        A("s_and_b32 s3, s%d, 1" % XCD)
        A("s_lshl_b32 s3, s3, 3")
        A("s_lshr_b32 s%d, s%d, 2" % (ST, SLOTR))
        A("s_add_u32 s%d, s%d, s3" % (ST, ST))
        A("s_and_b32 s%d, s%d, 3" % (D3, SLOTR))
        A("s_cmp_ge_u32 s%d, 2" % SP)
        A("s_cselect_b32 s%d, 4, 5" % NF)
        A("s_add_u32 s%d, s%d, 18" % (KT3, NF))
        A("s_mul_i32 s%d, s%d, 5" % (F0, SP))
        A("s_cmp_eq_u32 s%d, 3" % SP)
        A("s_cselect_b32 s%d, 14, s%d" % (F0, F0))

    WR, WC = 40, 41
    KEY3 = 42
    def lane_c23():
        A("v_lshrrev_b32 v5, 2, v2")
        A("v_and_b32 v6, 7, v5")
        A("v_and_b32 v7, 3, v2")
        A("v_lshlrev_b32 v7, 3, v7")
        A("v_lshl_add_u32 v7, v5, 8, v7")
        A("s_lshl_b32 s44, s%d, 2" % WR)
        for aa in range(4):
            A("s_add_u32 s45, s44, %d" % aa)
            A("v_xor_b32 v8, s45, v6")
            A("v_lshl_add_u32 v%d, v8, 5, v7" % (204 + aa))
        A("s_mul_i32 s45, s%d, 6144" % WC)
        A("s_add_u32 s45, s45, 16384")
        A("v_lshlrev_b32 v216, 4, v2")
        A("v_add_u32 v208, s45, v216")
        A("s_lshl_b32 s44, s%d, 1" % WAVE)
        for aa in range(2):
            A("s_add_u32 s45, s44, %d" % aa)
            A("v_xor_b32 v8, s45, v6")
            A("v_lshl_add_u32 v%d, v8, 5, v7" % (209 + aa))
        A("v_and_b32 v3, 15, v2")
        A("v_lshrrev_b32 v4, 4, v2")
        A("v_and_b32 v5, 7, v3")
        A("v_xor_b32 v5, v5, v4")
        A("v_lshlrev_b32 v5, 4, v5")
        A("v_lshl_add_u32 v5, v3, 7, v5")
        A("v_add_u32 v211, 16384, v5")
        A("v_xor_b32 v212, 64, v211")
        A("v_add_u32 v213, 16384, v216")
        A("v_add_u32 v214, 17408, v216")
        A("v_lshlrev_b32 v217, 3, v4")
        A("v_mov_b32 v215, v216")
        if cfg.side:
            A("v_lshrrev_b32 v5, 3, v2")
            A("v_cmp_eq_u32 vcc, 3, v5")
            A("v_add_u32 v5, 0x%x, v215" % (SIDE + 128))
            A("s_nop 0")
            A("v_cndmask_b32 v215, v215, v5, vcc")
    def wrwc():
        A("s_and_b32 s%d, s%d, 1" % (WR, WAVE))
        A("s_lshr_b32 s%d, s%d, 1" % (WC, WAVE))
    RAW = 164; X = 174; TT_ = 220; RS = 1344
    S0, S2, M, MB, RSV = 192, 193, 194, 196, 197
    LA = 238
    def ln_load():
        A("s_lshr_b32 s44, s2, 2")
        A("s_lshl_b32 s44, s44, 5")
        A("s_and_b32 s45, s2, 3")
        A("s_lshl_b32 s45, s45, 2")
        A("s_add_u32 s44, s44, s45")
        A("s_lshr_b32 s45, s%d, 1" % WAVE)
        A("s_lshl_b32 s45, s45, 4")
        A("s_add_u32 s44, s44, s45")
        A("s_and_b32 s45, s%d, 1" % WAVE)
        A("s_lshl_b32 s45, s45, 1")
        A("s_add_u32 s51, s44, s45")
        A("s_mul_i32 s44, s51, 1152")
        A("v_lshrrev_b32 v3, 5, v2")
        A("v_and_b32 v4, 31, v2")
        A("v_mul_u32_u24 v5, 1152, v3")
        A("v_lshl_add_u32 v6, v4, 2, v5")
        A("v_lshl_add_u32 v5, v4, 3, v5")
        A("s_waitcnt lgkmcnt(0)")
        srd(A, 4, PX, SZ_X)
        for j in range(4):
            A("buffer_load_dwordx2 %s, v5, s[4:7], s44 offen offset:%d" % (v(RAW + 2 * j, 2), j * 256))
        A("buffer_load_dword v%d, v6, s[4:7], s44 offen offset:1024" % (RAW + 8))
        A("s_mul_i32 s45, s%d, %d" % (WAVE, 2 * RS))
        A("s_add_u32 s45, s45, %d" % LDS_LN)
        A("v_mul_u32_u24 v%d, %d, v3" % (LA, RS))
        A("v_add_u32 v%d, s45, v%d" % (LA, LA))
        A("v_lshl_add_u32 v195, v4, 2, v%d" % LA)
        A("v_lshl_add_u32 v%d, v4, 3, v%d" % (LA, LA))
        A("v_lshlrev_b32 v198, 3, v3")
        A("v_bfe_u32 v5, v2, 2, 2")
        A("v_mul_u32_u24 v5, %d, v5" % RS)
        A("v_and_b32 v6, 3, v2")
        A("v_lshl_add_u32 v5, v6, 3, v5")
        A("v_lshrrev_b32 v6, 4, v2")
        A("v_lshl_add_u32 v5, v6, 5, v5")
        A("v_add_u32 v%d, %d, v5" % (LA + 1, LDS_LN))
        A("v_and_b32 v5, 15, v2")
        A("v_lshlrev_b32 v5, 4, v5")
        A("v_lshl_add_u32 v199, v6, 11, v5")
        if cfg.side:
            A("s_and_b32 s45, s2, 3")
            A("s_cmp_eq_u32 s45, 1")
            A("s_cselect_b32 s45, 0x%x, 0" % (SIDE + 128))
            A("v_cmp_le_u32 vcc, 128, v5")
            A("v_add_u32 v5, s45, v199")
            A("s_nop 0")
            A("v_cndmask_b32 v199, v199, v5, vcc")
    N = 18
    def unpack(src):
        for j in range(9):
            A("v_lshlrev_b32 v%d, 16, v%d" % (X + 2 * j, src + j))
            A("v_and_b32 v%d, 0xffff0000, v%d" % (X + 2 * j + 1, src + j))
    def sum32(r):
        row16_sum(A, r)
        A("v_mov_b32 v%d, v%d" % (S2, r))
        A("s_nop 1")
        A("v_permlane16_swap_b32 v%d, v%d" % (r, S2))
        A("s_nop 1")
        A("v_add_f32 v%d, v%d, v%d" % (r, r, S2))
    def pk(op, d, a, b, mods=""):
        A("v_pk_%s_f32 %s, %s, %s %s" % (op, v(d, 2), v(a, 2), v(b, 2), mods))
    NEG = "neg_lo:[0,1] neg_hi:[0,1]"
    P0, P2, PM, PB, PR_ = 100, 102, 104, 106, 108
    def layernorm():
        pk("add", P0, X, X + 2); pk("add", P2, X + 4, X + 6)
        for j in range(8, 16, 4):
            pk("add", P0, P0, X + j); pk("add", P2, P2, X + j + 2)
        pk("add", P0, P0, X + 16)
        pk("add", P0, P0, P2)
        A("v_add_f32 v%d, v%d, v%d" % (S0, P0, P0 + 1))
        sum32(S0)
        A("v_mul_f32 v%d, s46, v%d" % (PM, S0))
        A("v_mul_f32 v%d, s46, v%d" % (PM + 1, S0))
        round_bf16(A, MB, PM)
        for j in range(0, N, 2): pk("add", TT_ + j, X + j, PM, NEG)
        A("v_mov_b32 v%d, v%d\nv_mov_b32 v%d, v%d" % (PB, MB, PB + 1, MB))
        pk("mul", P0, TT_, TT_); pk("mul", P2, TT_ + 2, TT_ + 2)
        for j in range(4, N, 2):
            d = P0 if j % 4 == 0 else P2
            A("v_pk_fma_f32 %s, %s, %s, %s" % (v(d, 2), v(TT_ + j, 2), v(TT_ + j, 2), v(d, 2)))
        pk("add", P0, P0, P2)
        A("v_add_f32 v%d, v%d, v%d" % (S0, P0, P0 + 1))
        fill = [("v_pk_add_f32 %s, %s, %s %s" % (v(X + j, 2), v(X + j, 2), v(PB, 2), NEG)) for j in range(0, N, 2)]
        fill += [("v_cvt_pk_bf16_f32 v%d, v%d, v%d" % (RAW + j, X + 2 * j, X + 2 * j + 1)) for j in range(9)]
        def F(n):
            for _ in range(n): A(fill.pop(0))
        for sh in (8, 4, 2, 1):
            F(2)
            A("v_add_f32_dpp v%d, v%d, v%d row_ror:%d row_mask:0xf bank_mask:0xf" % (S0, S0, S0, sh))
        A("v_mov_b32 v%d, v%d" % (S2, S0))
        F(2)
        A("v_permlane16_swap_b32 v%d, v%d" % (S0, S2))
        F(2)
        A("v_add_f32 v%d, v%d, v%d" % (S0, S0, S2))
        A("v_mul_f32 v%d, s46, v%d" % (S0, S0))
        round_bf16(A, S0, S0)
        A("v_add_f32 v%d, s47, v%d" % (S0, S0))
        round_bf16(A, S0, S0)
        A("v_sqrt_f32 v%d, v%d" % (S0, S0))
        F(3)
        round_bf16(A, S0, S0)
        A("v_rcp_f32 v%d, v%d" % (RSV, S0))
        F(len(fill))
        unpack(RAW)
        A("v_mov_b32 v%d, v%d\nv_mov_b32 v%d, v%d" % (PR_, RSV, PR_ + 1, RSV))
        for j in range(0, N, 2): pk("mul", X + j, X + j, PR_)
        for j in range(9): A("v_cvt_pk_bf16_f32 v%d, v%d, v%d" % (RAW + j, X + 2 * j, X + 2 * j + 1))
    def ln_compute():
        srd(A, 8, PWS, SZ_HF + SIDE + 128, WS_HF)
        srd(A, 12, PWS, SZ_ST, WS_ST)
        A("s_mov_b32 s46, 0x%x" % f2u(1.0 / 576))
        A("s_mov_b32 s47, 0x%x" % f2u(1e-5))
        A("s_lshl_b32 s51, s51, 3")
        A("s_lshr_b32 s44, s2, 3")
        A("s_mul_i32 s44, s44, %d" % (36 * 2048))
        A("s_and_b32 s45, s2, 7")
        A("s_lshl_b32 s45, s45, 8")
        A("s_add_u32 s44, s44, s45")
        A("s_mov_b32 s45, 0")
        A("s_waitcnt vmcnt(0)")
        tag_issue(A)
        A.label("ln_loop")
        unpack(RAW)
        layernorm()
        A("s_cmp_lg_u32 s45, 0")
        A("s_cbranch_scc1 ln_out")
        A("s_mov_b32 exec_lo, 1\ns_mov_b32 exec_hi, 1")
        A("buffer_store_dwordx2 v[%d:%d], v198, s[12:15], s51 offen sc1" % (MB, RSV))
        A("s_mov_b64 exec, -1")
        A("s_mov_b32 s45, 1")
        A("s_branch ln_loop")
        A.label("ln_out")
        for j in range(4):
            A("ds_write_b64 v%d, %s offset:%d" % (LA, v(RAW + 2 * j, 2), j * 256))
        A("ds_write_b32 v195, v%d offset:1024" % (RAW + 8))
        tag_check(A)
        A("s_waitcnt lgkmcnt(0)")
    def ln_store():
        sk = A.newlabel("lns")
        A("s_cmp_lg_u32 s%d, 0" % WAVE)
        A("s_cbranch_scc1 %s" % sk)
        HB = 32
        for k in range(9):
            A("ds_read_b64_tr_b16 %s, v%d offset:%d" % (v(HB + 4 * k, 2), LA + 1, k * 128))
            A("ds_read_b64_tr_b16 %s, v%d offset:%d" % (v(HB + 4 * k + 2, 2), LA + 1, k * 128 + 4 * RS))
            if k == 6: A("s_waitcnt lgkmcnt(8)")
        for k in range(9):
            A("s_waitcnt lgkmcnt(%d)" % min(15, 16 - 2 * k))
            A("buffer_store_dwordx4 %s, v199, s[8:11], s44 offen sc1" % v(HB + 4 * k, 4))
            A("s_add_u32 s44, s44, %d" % (4 * 2048))
        A("v_mov_b32 v252, 0\nv_mov_b32 v253, 0\nv_mov_b32 v249, %d" % SIG)
        A("ds_write_b128 v249, v[250:253]")
        A("s_waitcnt lgkmcnt(0)")
        A.label(sk)
    def pubH():
        sk = A.newlabel("ph")
        A("s_cmp_lg_u32 s%d, 0" % WAVE)
        A("s_cbranch_scc1 %s" % sk)
        A("s_lshl_b32 s52, s2, 3")
        A("s_waitcnt vmcnt(0)")
        publish(A, 52)
        stamp(A, cfg, 9)
        A.label(sk)
    A.label("c1_entry")
    ln_load()
    A("s_or_b32 s44, s2, s%d" % WAVE)
    A("s_cbranch_scc1 c1_notag")
    srd(A, 60, PDBG, 256)
    A("s_or_b32 s%d, s%d, 1" % (TAG, TAG))
    A("v_mov_b32 v4, s%d\nv_mov_b32 v5, s%d\nv_mov_b32 v6, 0" % (TAG, TAG + 1))
    A("s_mov_b64 exec, 1")
    A("buffer_store_dwordx2 v[4:5], v6, s[60:63], 0 offen sc1")
    A("s_mov_b64 exec, -1")
    A.label("c1_notag")
    wrwc()
    A("v_and_b32 v3, 15, v2")
    A("v_lshrrev_b32 v4, 4, v2")
    A("v_and_b32 v5, 7, v3")
    A("v_xor_b32 v5, v5, v4")
    A("v_lshlrev_b32 v5, 4, v5")
    A("v_lshl_add_u32 v5, v3, 7, v5")
    A("v_and_b32 v6, 1, v3")
    A("v_lshrrev_b32 v7, 1, v3")
    A("v_and_b32 v8, 6, v7")
    A("v_or_b32 v8, v8, v6")
    A("v_xor_b32 v8, v8, v4")
    A("v_lshlrev_b32 v8, 4, v8")
    A("v_mul_u32_u24 v6, 48, v6")
    A("v_add_u32 v6, v6, v7")
    A("v_lshl_add_u32 v8, v6, 7, v8")
    A("s_lshl_b32 s44, s%d, 13" % WR)
    A("s_mul_i32 s45, s%d, 3072" % WC)
    A("s_add_u32 s45, s45, 16384")
    A("v_add_u32 v200, s44, v5")
    A("v_xor_b32 v201, 64, v200")
    A("v_add_u32 v202, s45, v8")
    A("v_xor_b32 v203, 64, v202")
    A("v_lshlrev_b32 v218, 4, v4")
    A("v_lshl_add_u32 v218, v3, 6, v218")
    CA = 10
    for i in range(4): A("v_add_u32 v%d, s%d, v%d" % (CA + i, RING, 200 + i))
    ACC1 = 32; SETS1 = [80, 108]; RSUM = 136; CSUM = 152; ONES = 20
    A("v_lshlrev_b32 v219, 4, v3")
    if cfg.csb: A("v_lshlrev_b32 v20, 4, v4")
    else:
        for i in range(4): A("v_mov_b32 v%d, 0x3f803f80" % (ONES + i))
    ids23(); lane_c23()
    srd(A, FSRD, PWS, SZ_FL, WS_FL)
    def reads1(st, ks):
        b = SETS1[st]
        P = lambda aa: "ds_read_b128 %s, v%d offset:%d" % (v(b + 4 * aa, 4), CA + ks, aa * 2048)
        Q = lambda xb: "ds_read_b128 %s, v%d offset:%d" % (v(b + 16 + 4 * xb, 4), CA + 2 + ks, xb * 1024)
        return [P(0), Q(0), Q(1), Q(2), P(1), P(2), P(3)]
    def mfmas1(st):
        b = SETS1[st]; m = []
        for aa in range(4):
            for xb in range(3):
                d = v(ACC1 + (aa * 3 + xb) * 4, 4)
                m.append(("%s %s, %s, %s, %s" % (MFMA, d, v(b + 16 + 4 * xb, 4), v(b + 4 * aa, 4), d), max(1 + xb, 3 + aa if aa else 0)))
            if aa < 3 and not cfg.csb:
                d = v(CSUM + 4 * aa, 4)
                m.append(("%s %s, %s, %s, %s" % (MFMA, d, v(b + 16 + 4 * aa, 4), v(ONES, 4), d), 0))
        return m
    def upd1():
        sa = slot_adv(1)
        return [(5, sa[0]), (6, sa[1]), (7, sa[2])] + [(8 + i, "v_add_u32 v%d, s%d, v%d" % (CA + i, RING, 200 + i)) for i in range(4)]
    def only3(fn):
        def f():
            sk = A.newlabel("w3")
            A("s_cmp_lg_u32 s%d, 3" % WAVE)
            A("s_cbranch_scc1 %s" % sk)
            fn()
            A.label(sk)
        return f
    A("s_mul_i32 s44, s%d, 6" % PT)
    A("s_mul_i32 s45, s%d, 3" % WC)
    A("s_add_u32 s44, s44, s45")
    A("s_lshl_b32 s54, s44, 6")
    A("s_add_u32 s54, s54, 16384")
    A("s_lshl_b32 s44, s44, 16")
    A("s_lshl_b32 s45, s%d, 1" % TT)
    A("s_add_u32 s45, s45, s%d" % WR)
    A("s_lshl_b32 s49, s45, 9")
    A("s_lshl_b32 s45, s45, 11")
    A("s_add_u32 s42, s44, s45")
    A("s_add_u32 s43, s42, 65536")
    A("s_add_u32 s48, s42, 131072")
    A("s_lshl_b32 s50, s%d, 4" % PT)
    A("s_add_u32 s50, s50, s%d" % TT)
    A("s_lshl_b32 s50, s50, 2")
    A("s_add_u32 s50, s50, s%d" % WAVE)
    A("s_lshl_b32 s50, s50, 3")
    A("s_add_u32 s50, s50, %d" % FL_G)
    ln_compute()
    stamp(A, cfg, 1)
    A("s_barrier")
    ln_store()
    A("s_sub_u32 s3, s%d, 19" % SLOTR)
    A("s_cmp_lt_u32 s3, 8")
    A("s_cbranch_scc1 ln_lo")
    A("s_barrier")
    stamp(A, cfg, 2)
    BIAS = 24; BF = 224
    def biasld():
        srd(A, 4, PB1, 9216)
        A("s_lshl_b32 s44, s%d, 8" % FT)
        A("s_lshl_b32 s45, s%d, 7" % WR)
        A("s_add_u32 s44, s44, s45")
        for aa in range(4):
            A("buffer_load_dwordx2 %s, v217, s[4:7], s44 offen offset:%d" % (v(BIAS + 2 * aa, 2), aa * 32))
    def biasup():
        for k in range(8):
            A("v_lshlrev_b32 v%d, 16, v%d" % (BF + 2 * k, BIAS + k))
            A("v_and_b32 v%d, 0xffff0000, v%d" % (BF + 2 * k + 1, BIAS + k))
    def statld():
        for ap in range(2):
            A("buffer_load_dwordx4 %s, v219, s[12:15], s49 offen offset:%d sc1" % (v(RSUM + 4 * ap, 4), ap * 256))
        if cfg.csb:
            for xb in range(3):
                A("buffer_load_dwordx4 %s, v20, s[12:15], s54 offen offset:%d sc1" % (v(CSUM + 4 * xb, 4), xb * 64))
    P1 = Phase(A, "c1", reads1, mfmas1, upd1, (0, 3) if cfg.csb else (0, 4), 1)
    P1.first()
    P1.it(pubH)
    P1.loop("_loop", 3)
    P1.it(lambda: (only3(lambda: wide_issue(A))(), biasld()))
    P1.it(only3(lambda: (stamp(A, cfg, 11), wide_check(A), stamp(A, cfg, 14))))
    P1.it(statld)
    P1.tail(capture(A, lambda: srd(A, 12, PWS, SZ_G, WS_G)))
    stamp(A, cfg, 3)
    MN = 80; RR = 88
    A("s_waitcnt vmcnt(0)")
    for aa in range(4):
        for q in range(2):
            A("v_sub_f32 v%d, 0, v%d" % (MN + 2 * aa + q, RSUM + 2 * aa))
            A("v_mov_b32 v%d, v%d" % (RR + 2 * aa + q, RSUM + 2 * aa + 1))
    for ap in range(2):
        for xb in range(3):
            O = 168 + 4 * (ap * 3 + xb)
            hq = [(h, q) for h in range(2) for q in range(2)]
            D_ = lambda h, q: ACC1 + ((2 * ap + h) * 3 + xb) * 4 + 2 * q
            for h, q in hq: A("v_pk_fma_f32 %s, %s, %s, %s" % (v(D_(h, q), 2), v(MN + 2 * (2 * ap + h), 2), v(CSUM + 4 * xb + 2 * q, 2), v(D_(h, q), 2)))
            for h, q in hq: A("v_pk_mul_f32 %s, %s, %s" % (v(D_(h, q), 2), v(D_(h, q), 2), v(RR + 2 * (2 * ap + h), 2)))
            for h, q in hq: A("v_cvt_pk_bf16_f32 v%d, v%d, v%d" % (O + 2 * h + q, D_(h, q), D_(h, q) + 1))
            A("buffer_store_dwordx4 %s, v218, s[12:15], s%d offen offset:%d sc1" % (v(O, 4), (42, 43, 48)[xb], ap * 1024))
    ACC2 = 32; SETS2 = [80, 108]
    biasup()
    A("s_mov_b32 s53, 1")
    A("s_mov_b32 s52, s50")
    A("s_barrier")
    if cfg.gpub:
        A("s_waitcnt vmcnt(0)")
        publish(A, 52)
        A("s_mov_b32 s53, 0")
        A("s_cmp_lt_u32 s%d, 27" % SLOTR)
        A("s_cbranch_scc1 c2_main")
    else:
        A("s_cmp_lt_u32 s%d, 27" % SLOTR)
        A("s_cbranch_scc1 c2_main")
        A("s_waitcnt vmcnt(0)")
        publish(A, 52)
    A("s_branch scan_entry")
    A.label("c2_entry")
    biasup()
    A("s_mov_b32 s53, 0")
    A("s_barrier")
    A.label("c2_main")
    for i in range(5): A("v_add_u32 v%d, s%d, v%d" % (CA + i, RING, 204 + i))
    A("s_barrier")
    stamp(A, cfg, 4)
    def reads2(st, ks):
        b = SETS2[st]
        P = lambda aa: ["ds_read_b64_tr_b16 %s, v%d offset:%d" % (v(b + 4 * aa, 2), CA + aa, ks * 8192),
                        "ds_read_b64_tr_b16 %s, v%d offset:%d" % (v(b + 4 * aa + 2, 2), CA + aa, ks * 8192 + 4096)]
        Q = lambda xb: ["ds_read_b128 %s, v%d offset:%d" % (v(b + 16 + 4 * xb, 4), CA + 4, xb * 2048 + ks * 1024)]
        if cfg.ord2 == 2: return P(0) + Q(0) + P(1) + P(2) + P(3) + Q(1) + Q(2)
        return P(0) + Q(0) + Q(1) + Q(2) + P(1) + P(2) + P(3)
    def mfmas2(st):
        b = SETS2[st]; m = []
        if cfg.ord2 == 2:
            order = [(aa if xb % 2 == 0 else 3 - aa, xb) for xb in range(3) for aa in range(4)]
            need = lambda aa, xb: max(2 + 2 * aa if aa else 2, 8 + xb if xb else 0)
        else:
            order = [(aa, xb if (cfg.ord2 == 0 or aa % 2 == 0) else 2 - xb) for aa in range(4) for xb in range(3)]
            need = lambda aa, xb: max(2 + xb, 4 + 2 * aa if aa else 0)
        for aa, xb in order:
            d = v(ACC2 + (aa * 3 + xb) * 4, 4)
            m.append(("%s %s, %s, %s, %s" % (MFMA, d, v(b + 4 * aa, 4), v(b + 16 + 4 * xb, 4), d), need(aa, xb)))
        return m
    def upd2():
        sa = slot_adv(2)
        U = lambda i: "v_add_u32 v%d, s%d, v%d" % (CA + i, RING, 204 + i)
        if cfg.ord2 == 2: return [(0, sa[0]), (1, sa[1]), (2, sa[2]), (4, U(0)), (5, U(1)), (7, U(2)), (9, U(3)), (11, U(4))]
        return [(0, sa[0]), (1, sa[1]), (2, sa[2]), (4, U(0)), (5, U(4)), (7, U(1)), (9, U(2)), (11, U(3))]
    def pubG():
        sk = A.newlabel("pg")
        A("s_cmp_eq_u32 s53, 0")
        A("s_cbranch_scc1 %s" % sk)
        A("s_waitcnt vmcnt(0)")
        publish(A, 52)
        A.label(sk)
    def gelu_setup():
        c1 = -2.0 * math.sqrt(2.0 / math.pi) * math.log2(math.e); c2 = c1 * 0.044715
        for (r, val) in ((28, c1), (136, c2), (138, 1.0)):
            A("v_mov_b32 v%d, 0x%x\nv_mov_b32 v%d, 0x%x" % (r, f2u(val), r + 1, f2u(val)))
        srd(A, 12, PWS, SZ_UF + SIDE + 128, WS_UF)
        A("s_lshl_b32 s44, s%d, 1" % FT)
        A("s_add_u32 s44, s44, s%d" % WR)
        A("s_lshl_b32 s45, s%d, 1" % DT)
        A("s_add_u32 s45, s45, s%d" % WC)
        A("s_mul_i32 s46, s44, 12")
        A("s_add_u32 s46, s46, s45")
        A("s_mul_i32 s46, s46, %d" % (3 * PAIR))
        A("s_add_u32 s47, s46, 4096")
        A("s_mul_i32 s48, s44, 3641")
        A("s_lshr_b32 s48, s48, 16")
        A("s_mul_i32 s49, s45, 21846")
        A("s_lshr_b32 s49, s49, 16")
        A("s_mul_i32 s50, s48, 18")
        A("s_sub_u32 s50, s44, s50")
        A("s_sub_u32 s50, s50, s49")
        A("s_mul_i32 s50, s50, 3")
        A("s_add_u32 s50, s50, s45")
        A("s_lshl_b32 s50, s50, 3")
        A("s_lshl_b32 s49, s49, 2")
        A("s_add_u32 s49, s49, s48")
        A("s_lshl_b32 s49, s49, 9")
        A("s_add_u32 s52, s50, s49")
        A("s_add_u32 s52, s52, %d" % FL_U)

    P2 = Phase(A, "c2", reads2, mfmas2, upd2, (0, 2, 4) if cfg.ord2 == 2 else (0, 3, 6), 2)
    assert cfg.ord2 == 0
    P2.first(cinit=(lambda i: v(BF + 4 * (i // 3), 4)) if cfg.binit else None)
    pubG(); stamp(A, cfg, 10)
    P2.loop("_loop", 30)
    P2.tail(capture(A, gelu_setup))
    stamp(A, cfg, 5)
    if not cfg.upub:
        A("v_mov_b32 v16, %d" % SIG)
        A("ds_read_b32 v16, v16 offset:8")
        A("s_waitcnt lgkmcnt(0)")
    if cfg.xpos == 0: A("s_barrier")
    else: A("s_nop 7")
    T = 80
    for ap in range(2):
        for xb in range(3):
            if cfg.xpos and ap * 3 + xb == cfg.xpos: A("s_barrier")
            prs = [ACC2 + ((ap * 2 + h) * 3 + xb) * 4 + 2 * q for h in range(2) for q in range(2)]
            if not cfg.binit:
                for i, x in enumerate(prs): A("v_pk_add_f32 %s, %s, %s" % (v(x, 2), v(x, 2), v(BF + ap * 8 + 2 * i, 2)))
            for i, x in enumerate(prs): A("v_pk_mul_f32 %s, %s, %s" % (v(T + 2 * i, 2), v(x, 2), v(x, 2)))
            for i, x in enumerate(prs): A("v_pk_fma_f32 %s, %s, v[136:137], v[28:29]" % (v(T + 2 * i, 2), v(T + 2 * i, 2)))
            for i, x in enumerate(prs): A("v_pk_mul_f32 %s, %s, %s" % (v(T + 2 * i, 2), v(T + 2 * i, 2), v(x, 2)))
            for i in range(8): A("v_exp_f32 v%d, v%d" % (T + i, T + i))
            for i, x in enumerate(prs): A("v_pk_add_f32 %s, %s, v[138:139]" % (v(T + 2 * i, 2), v(T + 2 * i, 2)))
            for i in range(8): A("v_rcp_f32 v%d, v%d" % (T + i, T + i))
            for i, x in enumerate(prs): A("v_pk_mul_f32 %s, %s, %s" % (v(T + 2 * i, 2), v(T + 2 * i, 2), v(x, 2)))
            O = 140 + 4 * (ap * 3 + xb)
            for i in range(4):
                A("v_cvt_pk_bf16_f32 v%d, v%d, v%d" % (O + i, T + 2 * i, T + 2 * i + 1))
            off = xb * 2048 + ap * 1024
            A("buffer_store_dwordx4 %s, v215, s[12:15], s%d offen offset:%d sc1" % (v(O, 4), 46 + off // 4096, off % 4096))
    ACC3 = 24; SETS3 = [96, 140]
    A("s_mov_b32 s53, 1")
    if not cfg.upub:
        A("v_readfirstlane_b32 s44, v16")
        A("s_cmp_lg_u32 s44, 0")
        A("s_cbranch_scc1 c3_main")
    pubG()
    A("s_mov_b32 s53, 0")
    A("s_branch c3_main")
    A.label("c3_entry")
    wrwc(); lane_c23()
    A("s_mov_b32 s53, 0")
    A.label("c3_main")
    A("s_barrier")
    A("s_barrier")
    stamp(A, cfg, 6)
    for i in range(4): A("v_add_u32 v%d, s%d, v%d" % (CA + i, RING, 209 + i))
    def reads3(st, ks):
        b = SETS3[st]; r = ["ds_read_b128 %s, v%d offset:0" % (v(b + 8, 4), CA + 2 + ks)]
        for aa in range(2):
            r.append("ds_read_b64_tr_b16 %s, v%d offset:%d" % (v(b + 4 * aa, 2), CA + aa, ks * 8192))
            r.append("ds_read_b64_tr_b16 %s, v%d offset:%d" % (v(b + 4 * aa + 2, 2), CA + aa, ks * 8192 + 4096))
        for xb in range(1, 9):
            if cfg.hack3 and xb % 2: continue
            r.append("ds_read_b128 %s, v%d offset:%d" % (v(b + 8 + 4 * xb, 4), CA + 2 + ks, xb * 2048))
        return r
    def mfmas3(st):
        b = SETS3[st]; m = []
        order = [(xb, aa if (cfg.ord3 == 0 or xb % 2 == 0) else 1 - aa) for xb in range(9) for aa in range(2)]
        for xb, aa in order:
            if True:
                d = v(ACC3 + (xb * 2 + aa) * 4, 4)
                m.append(("%s %s, %s, %s, %s" % (MFMA, d, v(b + 8 + 4 * (xb & ~1 if cfg.hack3 else xb), 4), v(b + 4 * aa, 4), d), max(2 + 2 * aa, (4 + xb // 2 if cfg.hack3 else 4 + xb) if xb else 0)))
        return m
    def upd3():
        sa = slot_adv(3)
        U = lambda i: "v_add_u32 v%d, s%d, v%d" % (CA + i, RING, 209 + i)
        return [(7, sa[0]), (8, sa[1]), (9, sa[2]), (11, U(0)), (13, U(1)), (14, U(2)), (15, U(3))]
    def umode():
        A("v_mov_b32 v211, v213\nv_mov_b32 v212, v214")
        A("v_add_u32 v%d, s%d, v213" % (CA + 2, RING))
        A("v_add_u32 v%d, s%d, v214" % (CA + 3, RING))
    def exsetup():
        srd(A, 12, PWS, SZ_EX, WS_EX)
        A("s_lshl_b32 s44, s%d, 2" % ST)
        A("s_add_u32 s44, s44, s%d" % D3)
        A("s_lshl_b32 s44, s44, 2")
        A("s_add_u32 s44, s44, s%d" % WAVE)
        A("s_lshl_b32 s52, s44, 7")
        A("s_lshl_b32 s45, s%d, 3" % SP)
        A("s_add_u32 s52, s52, s45")
        A("s_add_u32 s52, s52, %d" % FL_X)
        A("s_lshl_b32 s44, s44, 2")
        A("s_add_u32 s44, s44, s%d" % SP)
        A("s_mul_i32 s44, s44, 9216")

    P3 = Phase(A, "c3", reads3, mfmas3, upd3, (0, 6), 3)
    P3.first()
    pubG(); stamp(A, cfg, 12)
    P3.loop("_f", "s_sub_u32 s%d, s%d, 2" % (CNT, NF))
    P3.it(lambda: (umode(), stamp(A, cfg, 13)))
    P3.loop("_u", 17)
    def xst(xb):
        o = 96 + 4 * xb
        r = ["v_cvt_pk_bf16_f32 v%d, v%d, v%d" % (o + k, ACC3 + 8 * xb + 2 * k, ACC3 + 8 * xb + 2 * k + 1) for k in range(4)]
        r.append("buffer_store_dwordx4 %s, v216, s[12:15], s44 offen offset:%d sc1" % (v(o, 4), (xb % 4) * 1024))
        if xb % 4 == 3: r.append("s_add_u32 s44, s44, 4096")
        return r
    def xow(xb):
        return ["ds_write_b128 v16, %s offset:%d" % (v(ACC3 + 4 * t, 4), t * 1024) for t in (2 * xb, 2 * xb + 1)]
    if cfg.xint:
        work = capture(A, exsetup) + ["v_add_u32 v16, %d, v216" % LDS_OWN, "s_cmp_eq_u32 s%d, s%d" % (WAVE, SP)]
        group(A, mfmas3(0), reads3(1, 1), 13, spread(work, 18, 0, 1), (0, 6))
        A("s_cbranch_scc1 c3_own")
        def last(fn):
            ex = []
            for xb in range(9):
                ex += [(2 * xb + 9, t) for t in fn(xb)] if 2 * xb + 9 <= 17 else []
            group(A, mfmas3(1), [], 13, ex, (0, 6))
            for xb in range(5, 9):
                if xb == 8 or (xb == 7 and fn is xow): A("s_nop 3")
                for t in fn(xb): A(t)
        last(xst)
        stamp(A, cfg, 7)
    else:
        P3.tail(capture(A, exsetup))
        stamp(A, cfg, 7)
        A("s_nop 3")
        A("s_cmp_eq_u32 s%d, s%d" % (WAVE, SP))
        A("s_cbranch_scc1 c3_own")
        for xb in range(9):
            for t in xst(xb): A(t)
    A("s_waitcnt vmcnt(0)")
    publish(A, 52)
    if cfg.stamp:
        A("s_barrier")
        A("s_branch k_done")
    A("s_endpgm")
    A.label("c3_own")
    if cfg.xint:
        last(xow)
        stamp(A, cfg, 7)
    else:
        A("v_add_u32 v16, %d, v216" % LDS_OWN)
        for xb in range(9):
            for t in xow(xb): A(t)
    A("s_waitcnt lgkmcnt(0)")
    A("s_barrier")
    A("s_branch k_done")

    A.label("hi_entry")
    A("s_sub_u32 s3, s%d, 19" % SLOTR)
    A("s_cmp_lt_u32 s3, 8")
    A("s_cbranch_scc1 ln_hi")
    LW = 23
    M0P, M0Q = 40, 41
    OP, OQ = 42, 43
    A("s_sub_u32 s%d, s%d, 4" % (LW, WAVE))
    A("v_lshrrev_b32 v3, 3, v2")
    A("v_and_b32 v4, 7, v2")
    A("v_xor_b32 v6, v4, v3")
    A("s_movk_i32 s44, 1152")
    A("v_mul_lo_u32 v5, v3, s44")
    A("v_lshlrev_b32 v8, 1, v5")
    A("v_lshl_add_u32 v10, v6, 4, v8")
    A("s_lshr_b32 s44, s%d, 1" % LW)
    A("v_and_b32 v7, 6, v3")
    A("v_or_b32 v7, s44, v7")
    A("v_xor_b32 v7, v4, v7")
    A("v_lshl_add_u32 v14, v7, 4, v5")
    for m in range(1, 4):
        A("v_add_u32 v%d, 0x%x, v10" % (10 + m, (16 * (m & 1) + (m >> 1)) * 1152 - (m & 1) * 1024))
    for m in range(1, 3):
        A("v_add_u32 v%d, 0x%x, v14" % (14 + m, m * (8 * 1152 - 1024)))
    A("s_lshl_b32 s%d, s%d, 7" % (OP, TT))
    A("s_lshl_b32 s45, s%d, 5" % LW)
    A("s_add_u32 s%d, s%d, s45" % (OP, OP))
    A("s_mul_i32 s%d, s%d, 1152" % (OP, OP))
    A("s_mul_i32 s%d, s%d, 48" % (OQ, PT))
    A("s_and_b32 s45, s%d, 1" % LW)
    A("s_mul_i32 s45, s45, 24")
    A("s_add_u32 s%d, s%d, s45" % (OQ, OQ))
    A("s_mul_i32 s%d, s%d, 1152" % (OQ, OQ))
    A("s_lshl_b32 s%d, s%d, 12" % (M0P, LW))
    A("s_mul_i32 s%d, s%d, 3072" % (M0Q, LW))
    A("s_add_u32 s%d, s%d, 16384" % (M0Q, M0Q))
    if cfg.rot1:
        A("s_lshl_b32 s46, s%d, 2" % TT)
        A("s_add_u32 s46, s46, s%d" % PT)
        A("s_mul_i32 s47, s46, 7282")
        A("s_lshr_b32 s47, s47, 16")
        A("s_mul_i32 s47, s47, 9")
        A("s_sub_u32 s46, s46, s47")
        A("s_lshl_b32 s47, s46, 7")
        A("s_add_u32 s%d, s%d, s47" % (OP, OP))
        A("s_add_u32 s%d, s%d, s47" % (OQ, OQ))
    A("s_waitcnt lgkmcnt(0)")
    srd(A, 4, PX, SZ_X)
    A("s_cmp_ge_u32 s%d, 2" % LW)
    A("s_cselect_b32 s8, s%d, s%d" % (PBIM, PBRE))
    A("s_cselect_b32 s9, s%d, s%d" % (PBIM + 1, PBRE + 1))
    A("s_mov_b32 s10, %d" % SZ_C)
    A("s_mov_b32 s11, 0x00020000")
    def issue1():
        A("s_add_u32 m0, s%d, s%d" % (RING, M0P))
        A("s_add_u32 s45, s%d, s%d" % (RING, M0Q))
        for m in range(4):
            if m == 2:
                A("s_add_u32 m0, m0, 2048")
                A("s_nop 0")
            A("buffer_load_dwordx4 v%d, s[4:7], s%d offen offset:%d lds" % (10 + m, OP, (m & 1) * 1024))
        A("s_mov_b32 m0, s45")
        A("s_add_u32 s%d, s%d, 128" % (OP, OP))
        for m in range(3):
            A("buffer_load_dwordx4 v%d, s[8:11], s%d offen offset:%d lds" % (14 + m, OQ, m * 1024))
        A("s_add_u32 s%d, s%d, 128" % (OQ, OQ))
        if cfg.rot1:
            A("s_add_u32 s46, s46, 1")
            A("s_cmp_eq_u32 s46, 9")
            A("s_cselect_b32 s47, 1152, 0")
            A("s_sub_u32 s%d, s%d, s47" % (OP, OP))
            A("s_sub_u32 s%d, s%d, s47" % (OQ, OQ))
        for t in slot_adv(1): A(t)
    def lane23():
        A("v_lshrrev_b32 v3, 4, v2")
        A("v_and_b32 v4, 15, v2")
        A("v_lshlrev_b32 v6, 1, v3")
        A("v_xor_b32 v7, v4, v6")
        A("v_xor_b32 v8, 8, v7")
        for (b, stride) in ((20, 9216), (24, 4096)):
            A("s_movk_i32 s44, %d" % stride)
            A("v_mul_lo_u32 v5, v3, s44")
            A("v_lshl_add_u32 v%d, v7, 4, v5" % b)
            A("v_lshl_add_u32 v%d, v8, 4, v5" % (b + 1))
            D = 4 * stride - 1024
            A("v_add_u32 v%d, 0x%x, v%d" % (b + 2, 2 * D, b))
            A("v_add_u32 v%d, 0x%x, v%d" % (b + 3, 3 * D, b + 1))
            A("v_add_u32 v%d, 0x%x, v%d" % (b + 1, D, b + 1))
        A("v_lshlrev_b32 v28, 4, v2")
        if cfg.side:
            A("v_lshrrev_b32 v5, 3, v2")
            A("v_cmp_eq_u32 vcc, 3, v5")
            A("v_add_u32 v5, 0x%x, v28" % (SIDE + 128))
            A("s_nop 0")
            A("v_cndmask_b32 v28, v28, v5, vcc")
        A("v_lshrrev_b32 v3, 3, v2")
        A("v_and_b32 v4, 7, v2")
        A("v_xor_b32 v4, v4, v3")
        A("s_movk_i32 s44, 1152")
        A("v_mul_lo_u32 v5, v3, s44")
        A("v_lshl_add_u32 v30, v4, 4, v5")
        for m in range(1, 4):
            A("v_add_u32 v%d, 0x%x, v30" % (30 + m, m * (8 * 1152 - 1024)))
    B2P, B2Q, N2, M6 = 48, 49, 50, 51
    def setup2():
        A("s_mul_i32 s%d, s%d, %d" % (B2P, LW, 16 * 9216))
        A("s_lshl_b32 s44, s%d, 8" % FT)
        A("s_add_u32 s%d, s%d, s44" % (B2P, B2P))
        A("s_mul_i32 s%d, s%d, 12" % (B2Q, DT))
        A("s_mul_i32 s44, s%d, 3" % LW)
        A("s_add_u32 s%d, s%d, s44" % (B2Q, B2Q))
        A("s_lshl_b32 s%d, s%d, 10" % (B2Q, B2Q))
        A("s_mov_b32 s%d, 0\ns_mov_b32 s%d, 0" % (N2, M6))
        tabset()
    def tabset():
        if not cfg.tab2: return
        for dt in range(6):
            order = sorted(range(16), key=lambda p: (p - cfg.tab2 - 0.5) if (p % 6 == dt and p >= cfg.tab2) else p)
            val = sum(p << (4 * i) for i, p in enumerate(order))
            if dt == 0:
                A("s_mov_b32 s56, 0x%x\ns_mov_b32 s57, 0x%x" % (val & 0xffffffff, val >> 32))
            else:
                A("s_cmp_eq_u32 s%d, %d" % (DT, dt))
                A("s_cselect_b32 s56, 0x%x, s56" % (val & 0xffffffff))
                A("s_cselect_b32 s57, 0x%x, s57" % (val >> 32))
    def srd2():
        srd(A, 4, PW1, SZ_W)
        srd(A, 8, PWS, SZ_HF + SIDE + 128, WS_HF)
    par2 = [0]
    def issue2(which="WX", adv=True):
        odd = par2[0] & 1
        if adv: par2[0] += 1
        if cfg.tab2:
            A("s_and_b32 s44, s56, 15")
            A("s_lshl_b32 s44, s44, 1")
            if odd: A("s_add_u32 s44, s44, 1")
        elif cfg.pair2:
            A("s_add_u32 s44, s%d, 12" % N2)
            A("s_lshl_b32 s45, s%d, 1" % M6)
            if odd: A("s_add_u32 s45, s45, 1")
            A("s_cmp_lt_u32 s44, 32")
            A("s_cselect_b32 s44, s44, s45")
            A("s_cmp_eq_u32 s%d, s%d" % (M6, DT))
            A("s_cselect_b32 s44, s44, s%d" % N2)
        elif cfg.rot2 in (2, 4):
            R = cfg.rot2; ADV = cfg.adv2
            A("s_add_u32 s45, s%d, s%d" % (FT, DT))
            A("s_add_u32 s45, s45, s%d" % N2)
            A("s_and_b32 s45, s45, %d" % (R - 1))
            A("s_cselect_b32 s44, 0, %d" % ADV)
            A("s_add_u32 s44, s44, s%d" % N2)
            A("s_and_b32 s44, s44, 31")
        elif cfg.rot2:
            A("s_add_u32 s44, s%d, 6" % N2)
            A("s_cmp_lt_u32 s44, 32")
            A("s_cselect_b32 s44, s44, s%d" % M6)
            A("s_cmp_eq_u32 s%d, s%d" % (M6, DT))
            A("s_cselect_b32 s44, s44, s%d" % N2)
        else:
            A("s_mov_b32 s44, s%d" % N2)
        A("s_mul_i32 s%d, s44, %d" % (OP, 64 * 9216))
        A("s_add_u32 s%d, s%d, s%d" % (OP, OP, B2P))
        A("s_mul_i32 s%d, s44, %d" % (OQ, 36 * PAIR))
        A("s_add_u32 s%d, s%d, s%d" % (OQ, OQ, B2Q))
        def W():
            A("s_add_u32 m0, s%d, s%d" % (RING, M0P))
            A("s_nop 0")
            for m in range(4):
                A("buffer_load_dwordx4 v%d, s[4:7], s%d offen offset:%d lds" % (20 + m, OP, m * 1024))
        def X():
            A("s_add_u32 m0, s%d, s%d" % (RING, M0Q))
            A("s_nop 0")
            for m in range(3):
                A("buffer_load_dwordx4 v28, s[8:11], s%d offen offset:%d %s lds" % (OQ, m * 1024, HL))
        if which == "W": W()
        elif which == "X": X()
        elif (cfg.pair2 or cfg.tab2) and not odd: X(); W()
        else: W(); X()
        if not adv: return
        if cfg.tab2 and odd: A("s_lshr_b64 s[56:57], s[56:57], 4")
        A("s_add_u32 s%d, s%d, 1" % (N2, N2))
        if odd or not cfg.pair2:
            A("s_add_u32 s%d, s%d, 1" % (M6, M6))
            A("s_cmp_eq_u32 s%d, 6" % M6)
            A("s_cselect_b32 s%d, 0, s%d" % (M6, M6))
        for t in slot_adv(2): A(t)
    B3P, B3C, B3U, N3, PH3, M0X, M0Q3 = 52, 53, 54, 55, 46, 47, 29
    def setup3():
        A("s_lshl_b32 s%d, s%d, 16" % (B3P, LW))
        A("s_lshl_b32 s44, s%d, 8" % ST)
        A("s_add_u32 s%d, s%d, s44" % (B3P, B3P))
        A("s_mul_i32 s%d, s%d, %d" % (B3C, D3, 144 * 1152))
        A("s_mul_i32 s%d, s%d, %d" % (B3U, D3, 9 * PAIR))
        A("s_mul_i32 s44, s%d, %d" % (SP, 18 * 36 * PAIR))
        A("s_add_u32 s%d, s%d, s44" % (B3U, B3U))
        A("s_mov_b32 s%d, s%d" % (N3, F0))
        A("s_add_u32 s%d, s%d, s%d" % (PH3, D3, ST))
        A("s_and_b32 s%d, s%d, 3" % (PH3, PH3))
        A("s_lshl_b32 s%d, s%d, 10" % (M0X, LW))
        A("s_add_u32 s%d, s%d, %d" % (M0X, M0X, 32768))
        A("s_add_u32 s%d, s%d, 16384" % (M0Q3, M0P))
    def issue3f(extra):
        srd(A, 4, PWS, SZ_HT, WS_HT)
        A("s_cmp_ge_u32 s%d, 9" % N3)
        A("s_cselect_b32 s8, s%d, s%d" % (PCIM, PCRE))
        A("s_cselect_b32 s9, s%d, s%d" % (PCIM + 1, PCRE + 1))
        A("s_cselect_b32 s44, 9, 0")
        A("s_mov_b32 s10, %d" % SZ_C)
        A("s_mov_b32 s11, 0x00020000")
        A("s_lshl_b32 s%d, s%d, 18" % (OP, N3))
        A("s_add_u32 s%d, s%d, s%d" % (OP, OP, B3P))
        A("s_add_u32 m0, s%d, s%d" % (RING, M0P))
        A("s_sub_u32 s44, s%d, s44" % N3)
        for m in range(4):
            A("buffer_load_dwordx4 v%d, s[4:7], s%d offen offset:%d %s lds" % (24 + m, OP, m * 1024, HL))
        A("s_lshl_b32 s44, s44, 7")
        A("s_add_u32 s44, s44, s%d" % B3C)
        A("s_mul_i32 s%d, s%d, %d" % (OQ, LW, 32 * 1152))
        A("s_add_u32 m0, s%d, s%d" % (RING, M0Q3))
        A("s_add_u32 s%d, s%d, s44" % (OQ, OQ))
        for m in range(4):
            A("buffer_load_dwordx4 v%d, s[8:11], s%d offen offset:%d lds" % (30 + m, OQ, m * 1024))
        if extra:
            A("s_mul_i32 s%d, s%d, %d" % (OQ, LW, 8 * 1152))
            A("s_add_u32 s44, s44, %d" % (128 * 1152))
            A("s_add_u32 m0, s%d, s%d" % (RING, M0X))
            A("s_add_u32 s%d, s%d, s44" % (OQ, OQ))
            A("buffer_load_dwordx4 v30, s[8:11], s%d offen lds" % OQ)
        A("s_add_u32 s%d, s%d, 1" % (N3, N3))
        for t in slot_adv(3): A(t)
    def switch3u():
        srd(A, 4, PW2, SZ_W)
        srd(A, 8, PWS, SZ_UF + SIDE + 128, WS_UF)
        A("s_mul_i32 s44, s%d, %d" % (SP, 18 * 262144))
        A("s_add_u32 s%d, s%d, s44" % (B3P, B3P))
        A("s_mov_b32 s%d, 0" % N3)
    par3 = [0]
    def issue3u(extra, which="WX"):
        odd = par3[0] & 1; par3[0] += 1
        if cfg.pair3:
            A("s_bfe_u32 s45, s%d, 0x20001" % N3)
            A("s_add_u32 s44, s%d, 8" % N3)
            A("s_and_b32 s%d, s%d, 7" % (OP, N3))
            A("s_cmp_lt_u32 s44, 18")
            A("s_cselect_b32 s44, s44, s%d" % OP)
            A("s_cmp_eq_u32 s45, s%d" % PH3)
            A("s_cselect_b32 s44, s44, s%d" % N3)
        elif cfg.rot3:
            A("s_and_b32 s45, s%d, 3" % N3)
            A("s_add_u32 s44, s%d, 4" % N3)
            A("s_cmp_lt_u32 s44, 18")
            A("s_cselect_b32 s44, s44, s45")
            A("s_cmp_eq_u32 s45, s%d" % PH3)
            A("s_cselect_b32 s44, s44, s%d" % N3)
        else:
            A("s_mov_b32 s44, s%d" % N3)
        A("s_lshl_b32 s%d, s44, 18" % OP)
        A("s_add_u32 s%d, s%d, s%d" % (OP, OP, B3P))
        A("s_mul_i32 s45, s44, %d" % (36 * PAIR))
        A("s_add_u32 s45, s45, s%d" % B3U)
        A("s_add_u32 s%d, s45, s%d" % (OQ, M0P))
        if extra:
            A("s_add_u32 s45, s45, s%d" % M0X)
            A("s_sub_u32 s45, s45, 16384")
        def W():
            A("s_add_u32 m0, s%d, s%d" % (RING, M0P))
            A("s_nop 0")
            for m in range(4):
                A("buffer_load_dwordx4 v%d, s[4:7], s%d offen offset:%d lds" % (24 + m, OP, m * 1024))
        def X():
            A("s_add_u32 m0, s%d, s%d" % (RING, M0Q3))
            A("s_nop 0")
            for m in range(4):
                A("buffer_load_dwordx4 v28, s[8:11], s%d offen offset:%d %s lds" % (OQ, m * 1024, HL))
            if extra:
                A("s_add_u32 m0, s%d, s%d" % (RING, M0X))
                A("s_nop 0")
                A("buffer_load_dwordx4 v28, s[8:11], s45 offen %s lds" % HL)
        if which == "W": W()
        elif which == "X": X()
        elif cfg.pair3 and not odd: X(); W()
        else: W(); X()
        A("s_add_u32 s%d, s%d, 1" % (N3, N3))
        for t in slot_adv(3): A(t)
    def step(wait, issue):
        if issue and cfg.hoist:
            mark = len(A.lines)
            issue()
            body = A.lines[mark:]; del A.lines[mark:]
            k = 0
            while k < len(body) and body[k].strip().startswith("s_") and not body[k].strip().startswith(("s_cbranch", "s_branch")): k += 1
            A.lines += body[:k]
            A("s_waitcnt vmcnt(%d)" % wait)
            A("s_barrier")
            A.lines += body[k:]
            return
        A("s_waitcnt vmcnt(%d)" % wait)
        A("s_barrier")
        if issue: issue()
    def lloop(label, count, wait, issue, unroll=1):
        if isinstance(count, int): A("s_mov_b32 s%d, %d" % (CNT, count))
        else: A(count)
        align(A)
        A.label(label)
        for _ in range(unroll): step(wait, issue)
        A("s_sub_u32 s%d, s%d, 1" % (CNT, CNT))
        A("s_cmp_lg_u32 s%d, 0" % CNT)
        A("s_cbranch_scc1 %s" % label)
    def fast_loop(label, count, wait, sel, ph, vW, nX, strideW, bW, bQ, m0q, extra):
        QA = (OQ, 63); XA = (45, 3); MQ = (56, 57); MX = (58, 59)
        def prep(k):
            sel()
            if strideW == 262144: A("s_lshl_b32 s%d, s44, 18" % OP)
            else: A("s_mul_i32 s%d, s44, %d" % (OP, strideW))
            A("s_add_u32 s%d, s%d, s%d" % (OP, OP, bW))
            A("s_mul_i32 s44, s44, %d" % (36 * PAIR))
            A("s_add_u32 s%d, s44, s%d" % (QA[k], bQ))
            if extra:
                A("s_add_u32 s%d, s44, s%d" % (XA[k], extra))
                A("s_add_u32 s%d, s%d, s%d" % (MX[k], RING, M0X))
            A("s_add_u32 s%d, s%d, s%d" % (MQ[k], RING, m0q))
            A("s_add_u32 s62, s%d, s%d" % (RING, M0P))
            for t in slot_adv(ph): A(t)
        def body(k, last):
            A("s_mov_b32 m0, s62")
            A("s_waitcnt vmcnt(%d)" % wait)
            A("s_barrier")
            for m in range(4):
                A("buffer_load_dwordx4 v%d, s[4:7], s%d offen offset:%d lds" % (vW + m, OP, m * 1024))
            A("s_mov_b32 m0, s%d" % MQ[k])
            if not last: prep(1 - k)
            else: A("s_nop 0")
            if k == 1 and not last:
                A("s_sub_u32 s%d, s%d, 1" % (CNT, CNT))
                A("s_cmp_lg_u32 s%d, 0" % CNT)
            for m in range(nX):
                A("buffer_load_dwordx4 v28, s[8:11], s%d offen offset:%d %s lds" % (QA[k], m * 1024, HL))
            if extra:
                A("s_mov_b32 m0, s%d" % MX[k])
                A("s_nop 0")
                A("buffer_load_dwordx4 v28, s[8:11], s%d offen %s lds" % (XA[k], HL))
        prep(0)
        A("s_mov_b32 s%d, %d" % (CNT, count - 1))
        A.label(label)
        body(0, False); body(1, False)
        A("s_cbranch_scc1 %s" % label)
        body(0, False); body(1, True)
    def sel2():
        A("s_add_u32 s44, s%d, 6" % N2)
        A("s_cmp_lt_u32 s44, 32")
        A("s_cselect_b32 s44, s44, s%d" % M6)
        A("s_cmp_eq_u32 s%d, s%d" % (M6, DT))
        A("s_cselect_b32 s44, s44, s%d" % N2)
        A("s_add_u32 s%d, s%d, 1" % (N2, N2))
        A("s_add_u32 s%d, s%d, 1" % (M6, M6))
        A("s_cmp_eq_u32 s%d, 6" % M6)
        A("s_cselect_b32 s%d, 0, s%d" % (M6, M6))
    def sel3():
        A("s_and_b32 s%d, s%d, 3" % (OP, N3))
        A("s_add_u32 s44, s%d, 4" % N3)
        A("s_cmp_lt_u32 s44, 18")
        A("s_cselect_b32 s44, s44, s%d" % OP)
        A("s_cmp_eq_u32 s%d, s%d" % (OP, PH3))
        A("s_cselect_b32 s44, s44, s%d" % N3)
        A("s_add_u32 s%d, s%d, 1" % (N3, N3))
    issue1(); issue1()
    ids23(); lane23(); setup2()
    if cfg.pro == 5:
        issue1(); issue1(); issue1()
        step(28, None); step(21, None)
    elif cfg.pro == 4:
        issue1(); issue1()
        step(21, issue1); step(21, None)
    else:
        issue1()
        step(14, issue1); step(14, issue1)
    lloop("l1_loop", 4, 14, issue1)
    A("s_cmp_ge_u32 s%d, 27" % SLOTR)
    A("s_cbranch_scc1 l1_c")
    srd2()
    step(14, lambda: issue2("W", False))
    step(11, lambda: issue2("X"))
    step(7, lambda: (issue2(), issue2()))
    setup3()
    step(14, issue2); step(14, issue2)
    A("s_branch l2_main")
    A.label("l1_c")
    step(14, None); step(7, None); step(0, None)
    A("v_mov_b32 v41, %d" % SIG)
    A("ds_read_b64 v[%d:%d], v41" % (VT, VT + 1))
    srd(A, FSRD, PWS, SZ_FL, WS_FL)
    srd(A, 12, PWS, SZ_ST, WS_ST)
    A("s_waitcnt lgkmcnt(0)")
    A("s_barrier")
    A("s_branch scan_entry")
    A.label("l2_entry")
    A("s_sub_u32 s%d, s%d, 4" % (LW, WAVE))
    A("s_lshl_b32 s%d, s%d, 12" % (M0P, LW))
    A("s_mul_i32 s%d, s%d, 3072" % (M0Q, LW))
    A("s_add_u32 s%d, s%d, 16384" % (M0Q, M0Q))
    lane23(); setup2(); srd2()
    A("s_mov_b32 s62, s%d" % RING)
    A("s_waitcnt vmcnt(0)")
    par2[0] = 0
    issue2("W"); issue2("W"); issue2("W")
    A("s_mov_b32 s%d, s62" % RING)
    A("s_mov_b32 s%d, 0\ns_mov_b32 s%d, 0" % (N2, M6))
    tabset()
    par2[0] = 0
    setup3()
    A("s_barrier")
    issue2("X"); issue2("X"); issue2("X")
    step(6, issue2); step(10, issue2)
    A.label("l2_main")
    step(14, issue2)
    if cfg.fast: fast_loop("l2_loop", 12, 14, sel2, 2, 20, 3, 64 * 9216, B2P, B2Q, M0Q, None)
    else: lloop("l2_loop", 12, 14, issue2, 2)
    def lgate_issue(off):
        sk = A.newlabel("lg")
        A("s_cmp_lg_u32 s%d, 0" % LW)
        A("s_cbranch_scc1 %s" % sk)
        gate_issue(A, off)
        A.label(sk)
    def lgate_wait(off, mask, word, younger):
        ot = A.newlabel("lg"); dn = A.newlabel("lg"); lp = A.newlabel("lg")
        A("s_cmp_lg_u32 s%d, 0" % LW)
        A("s_cbranch_scc1 %s" % ot)
        gate_check(A, off, mask, first_wait=younger)
        A("v_mov_b32 v40, 1")
        A("ds_write_b32 v41, v40 offset:%d" % (8 + 4 * word))
        A("s_branch %s" % dn)
        A.label(ot)
        A("s_mov_b32 s59, 0")
        A.label(lp)
        A("ds_read_b32 v40, v41 offset:%d" % (8 + 4 * word))
        A("s_add_u32 s59, s59, 1")
        A("s_waitcnt lgkmcnt(0)")
        A("v_readfirstlane_b32 s58, v40")
        A("s_cmp_gt_u32 s59, %d" % (SPIN * 64))
        A("s_cbranch_scc1 %s" % dn)
        A("s_cmp_eq_u32 s58, 0")
        A("s_cbranch_scc1 %s" % lp)
        A.label(dn)
    XR = 150; DS = 162; STT = 168; B2 = 172; BASE = 48; PR = 80; OWN = 120
    def base_ld():
        A("v_and_b32 v42, 15, v2")
        A("v_lshrrev_b32 v43, 4, v2")
        A("v_mul_u32_u24 v46, 1152, v42")
        A("v_lshl_add_u32 v46, v43, 3, v46")
        A("v_lshlrev_b32 v47, 1, v46")
        A("v_lshlrev_b32 v43, 3, v43")
        A("v_lshlrev_b32 v45, 3, v42")
        A("v_lshlrev_b32 v42, 1, v42")
        A("s_lshl_b32 s44, s%d, 3" % ST)
        A("s_lshl_b32 s45, s%d, 1" % SP)
        A("s_add_u32 s44, s44, s45")
        A("s_mul_i32 s45, s%d, 9" % D3)
        A("s_add_u32 s45, s45, s%d" % LW)
        A("s_lshl_b32 s45, s45, 5")
        A("s_mul_i32 s50, s44, %d" % (16 * 1152))
        A("s_add_u32 s50, s50, s45")
        A("s_add_u32 s51, s50, %d" % (16 * 1152))
        A("s_lshl_b32 s48, s44, 7")
        A("s_lshl_b32 s49, s44, 5")
        srd(A, 12, PWS, SZ_ST, WS_ST)
        for aa in range(2):
            A("buffer_load_dwordx2 %s, v45, s[12:15], s48 offen offset:%d %s" % (v(STT + 2 * aa, 2), aa * 128, HL))
        srd(A, 12, PB2, 4096)
        for aa in range(2):
            A("buffer_load_ushort v%d, v42, s[12:15], s49 offen offset:%d" % (B2 + 2 * aa, aa * 32))
        srd(A, 12, PDSK, 1152)
        for n in range(3):
            A("buffer_load_dwordx2 %s, v43, s[12:15], s45 offen offset:%d" % (v(DS + 2 * n, 2), n * 128))
        srd(A, 12, PX, SZ_X)
        sk = A.newlabel("bl")
        for n in range(3):
            if n == 2:
                A("s_cmp_lg_u32 s%d, 0" % LW)
                A("s_cbranch_scc1 %s" % sk)
            for aa in range(2):
                A("buffer_load_dwordx2 %s, v46, s[12:15], s%d offen offset:%d" % (v(XR + 4 * n + 2 * aa, 2), (50, 51)[aa], n * 128))
        A.label(sk)
        A("s_lshl_b32 s50, s50, 1")
        A("s_lshl_b32 s51, s51, 1")
    def base_calc():
        for aa in range(2): A("v_lshlrev_b32 v%d, 16, v%d" % (B2 + 2 * aa, B2 + 2 * aa))
        for n in range(3):
            dd = 76; xx = 116; tt = 144
            for h in range(2):
                A("v_lshlrev_b32 v%d, 16, v%d" % (dd + 2 * h, DS + 2 * n + h))
                A("v_and_b32 v%d, 0xffff0000, v%d" % (dd + 2 * h + 1, DS + 2 * n + h))
            for aa in range(2):
                b = BASE + 8 * n + 4 * aa
                for h in range(2):
                    A("v_lshlrev_b32 v%d, 16, v%d" % (xx + 2 * h, XR + 4 * n + 2 * aa + h))
                    A("v_and_b32 v%d, 0xffff0000, v%d" % (xx + 2 * h + 1, XR + 4 * n + 2 * aa + h))
                for r in range(4): A("v_mul_f32 v%d, v%d, v%d" % (tt + r, dd + r, STT + 2 * aa + 1))
                for r in range(4): A("v_add_f32 v%d, v%d, v%d" % (b + r, xx + r, B2 + 2 * aa))
                for r in range(4): A("v_sub_f32 v%d, v%d, v%d" % (xx + r, xx + r, STT + 2 * aa))
                for r in range(4): A("v_fmac_f32 v%d, v%d, v%d" % (b + r, xx + r, tt + r))
    GT, GU = 60, 61
    def gates3():
        A("v_mov_b32 v41, %d" % SIG)
        A("ds_read_b64 v[%d:%d], v41" % (VT, VT + 1))
        srd(A, FSRD, PWS, SZ_FL, WS_FL)
        A("s_lshr_b32 s%d, s%d, 1" % (GT, ST))
        A("s_lshl_b32 s%d, s%d, 9" % (GT, GT))
        A("s_add_u32 s%d, s%d, %d" % (GT, GT, FL_T))
        A("s_lshl_b32 s%d, s%d, 2" % (GU, D3))
        A("s_add_u32 s%d, s%d, s%d" % (GU, GU, SP))
        A("s_lshl_b32 s%d, s%d, 9" % (GU, GU))
        A("s_add_u32 s%d, s%d, %d" % (GU, GU, FL_U))
        A("s_waitcnt lgkmcnt(0)")
    gates3()
    step(14, issue2)
    step(14, issue2)
    base_ld()
    step(14 + 11, (lambda: lgate_issue(GT)) if cfg.pollat == 29 else None)
    step(7 + 11, (lambda: lgate_issue(GT)) if cfg.pollat == 30 else None)
    A("s_cmp_lg_u32 s%d, 0" % LW)
    A("s_cbranch_scc1 l2_e1")
    A("s_waitcnt vmcnt(0)")
    A("v_cmp_ne_u64 vcc, v[%d:%d], v[%d:%d]" % (VP, VP + 1, VT, VT + 1))
    A("s_and_b32 vcc_hi, vcc_hi, 15")
    A("s_cmp_lg_u64 vcc, 0")
    A("s_cbranch_scc1 l2_e1")
    A("v_mov_b32 v40, 1")
    A("ds_write_b32 v41, v40 offset:8")
    A("s_waitcnt lgkmcnt(0)")
    A.label("l2_e1")
    step(11, None)
    A("ds_read_b32 v40, v41 offset:8")
    A("s_waitcnt lgkmcnt(0)")
    A("v_readfirstlane_b32 s58, v40")
    A("s_cmp_lg_u32 s58, 0")
    A("s_cbranch_scc1 l3_early")
    lgate_issue(GT)
    A("s_barrier")
    A.label("l3_main")
    stamp(A, cfg, 10)
    lgate_wait(GT, (1 << 36) - 1, 0, 0)
    A.label("l3_main2")
    stamp(A, cfg, 11)
    A("s_cmp_ge_u32 s%d, 2" % LW)
    A("s_cbranch_scc1 l3b")
    A("s_branch l3a")
    A.label("l3_early")
    A("s_cmp_ge_u32 s%d, 2" % LW)
    A("s_cbranch_scc1 l3b_early")
    for (sfx, extra, per) in (("a", True, 9), ("b", False, 8)):
        A.label("l3%s_early" % sfx)
        issue3f(extra)
        if cfg.xpos: issue3f(extra)
        A("s_barrier")
        A("s_branch l3%s_j" % sfx)
        A.label("l3%s" % sfx)
        issue3f(extra)
        if cfg.xpos: issue3f(extra)
        A.label("l3%s_j" % sfx)
        NT = cfg.nt3
        if NT:
            issue3f(extra); issue3f(extra)
            if not cfg.xpos: issue3f(extra)
            srd(A, 12, PW2, SZ_W)
            A("s_mul_i32 s44, s%d, 18" % SP)
            A("s_add_u32 s44, s44, s%d" % PH3)
            A("s_lshl_b32 s44, s44, 1")
            A("s_and_b32 s45, s%d, 1" % LW)
            A("s_add_u32 s44, s44, s45")
            A("s_lshr_b32 s45, s%d, 1" % LW)
            A("s_lshl_b32 s45, s45, 3")
            A("s_add_u32 s44, s44, s45")
            A("s_add_u32 s44, s44, %d" % (8 * cfg.nt3s))
            A("s_lshl_b32 s44, s44, 17")
            A("s_lshl_b32 s45, s%d, 8" % ST)
            A("s_add_u32 s44, s44, s45")
            A("v_lshrrev_b32 v42, 1, v2")
            A("v_lshlrev_b32 v42, 12, v42")
            A("v_and_b32 v43, 1, v2")
            A("v_lshl_add_u32 v42, v43, 7, v42")
            for k in range(NT):
                A("buffer_load_dword v43, v42, s[12:15], s44 offen")
                A("s_add_u32 s44, s44, %d" % (16 << 17))
            A("s_waitcnt vmcnt(%d)" % (4 * per + NT))
            base_calc()
            step(3 * per + NT, None); step(2 * per + NT, None)
            sk = A.newlabel("nf"); sk2 = A.newlabel("nf")
            A("s_cmp_eq_u32 s%d, 4" % NF)
            A("s_cbranch_scc1 %s" % sk)
            step(per + NT, lambda: issue3f(extra))
            switch3u()
            A("s_mov_b32 s62, s%d" % RING)
            step(per + NT, lambda: issue3u(extra, "W"))
            A("s_waitcnt vmcnt(4)")
            A("s_branch %s" % sk2)
            A.label(sk)
            switch3u()
            A("s_mov_b32 s62, s%d" % RING)
            par3[0] -= 1
            step(per + NT, lambda: issue3u(extra, "W"))
            A.label(sk2)
            step(4 + NT, lambda: (lgate_issue(GU), issue3u(extra, "W")))
        else:
            issue3f(extra)
            if not cfg.xpos: issue3f(extra)
            A("s_waitcnt vmcnt(%d)" % (3 * per))
            base_calc()
            step(2 * per, lambda: issue3f(extra)); step(2 * per, None)
            sk = A.newlabel("nf")
            A("s_cmp_eq_u32 s%d, 4" % NF)
            A("s_cbranch_scc1 %s" % sk)
            step(per, lambda: issue3f(extra))
            A.label(sk)
            switch3u()
            A("s_mov_b32 s62, s%d" % RING)
            step(per, lambda: issue3u(extra, "W"))
            step(4, lambda: (lgate_issue(GU), issue3u(extra, "W")))
        stamp(A, cfg, 12)
        lgate_wait(GU, (1 << 54) - 1, 1, 4)
        stamp(A, cfg, 13)
        A("s_mov_b32 s%d, s62" % RING)
        A("s_mov_b32 s%d, 0" % N3)
        issue3u(extra, "X"); issue3u(extra, "X")
        step(per - 4, lambda: issue3u(extra))
        step(per, lambda: issue3u(extra))
        if cfg.fast:
            A("s_add_u32 s60, s%d, s%d" % (B3U, M0P))
            A("s_add_u32 s61, s%d, s%d" % (B3U, M0X))
            A("s_sub_u32 s61, s61, 16384")
            fast_loop("l3%s_u" % sfx, 7, per, sel3, 3, 24, 4, 262144, B3P, 60, M0Q3, 61 if extra else None)
        else: lloop("l3%s_u" % sfx, 7, per, lambda: issue3u(extra), 2)
        step(per, None); step(0, None)
        A("s_branch fin")
    A.label("l3_entry")
    A("s_sub_u32 s%d, s%d, 4" % (LW, WAVE))
    A("s_lshl_b32 s%d, s%d, 12" % (M0P, LW))
    lane23(); setup3(); gates3()
    lgate_issue(GT)
    lgate_wait(GT, (1 << 36) - 1, 0, 0)
    base_ld()
    A("s_branch l3_main2")

    A.label("fin")
    stamp(A, cfg, 7)
    A("v_lshlrev_b32 v9, 4, v2")
    A("s_lshl_b32 s44, s%d, 2" % ST)
    A("s_add_u32 s44, s44, s%d" % D3)
    A("s_lshl_b32 s44, s44, 2")
    A("s_add_u32 s44, s44, s%d" % SP)
    A("s_lshl_b32 s43, s44, 7")
    A("s_add_u32 s43, s43, %d" % FL_X)
    A("s_mul_i32 s47, s44, %d" % (4 * 9216))
    A("s_lshl_b32 s46, s%d, 10" % LW)
    A("s_add_u32 s47, s47, s46")
    for j in range(3):
        A("s_add_u32 s48, s%d, %d" % (SP, 1 + j))
        A("s_and_b32 s48, s48, 3")
        A("s_mul_i32 s48, s48, 9216")
        A("s_add_u32 s%d, s47, s48" % (40 + j))
    A("v_add_u32 v15, 4096, v9")
    A("v_add_u32 v18, 8192, v9")
    A("s_lshl_b32 s46, s%d, 11" % LW)
    A("s_add_u32 s46, s46, %d" % LDS_OWN)
    A("v_add_u32 v10, s46, v9")
    A("s_lshl_b32 s52, 1, s%d" % SP)
    A("s_xor_b32 s52, s52, 15")
    A("s_mov_b32 s53, 0")
    srd(A, 12, PWS, SZ_EX, WS_EX)
    srd(A, 8, POUT, 2048 * 576 * 4)
    A("v_cmp_gt_u32 vcc, 4, v2")
    A("s_nop 1")
    A("v_cndmask_b32 v%d, 0, v%d, vcc" % (VL8, VL8))
    def own():
        for n in range(3):
            for aa in range(2):
                A("ds_read_b128 %s, v10 offset:%d" % (v(OWN + 8 * n + 4 * aa, 4), n * 8192 + aa * 1024))
        A("s_waitcnt lgkmcnt(0)")
        for k in range(12):
            A("v_pk_add_f32 %s, %s, %s" % (v(BASE + 2 * k, 2), v(BASE + 2 * k, 2), v(OWN + 2 * k, 2)))
    A("s_barrier")
    stamp(A, cfg, 8)
    if cfg.xpoll == 0:
        gate_issue(A, 43)
        own()
        gate_check(A, 43, "s[52:53]")
    else:
        lgate_issue(43)
        own()
        A("s_cmp_lg_u32 s%d, 0" % LW)
        A("s_cbranch_scc1 fin_w")
        gate_check(A, 43, "s[52:53]")
        A.label("fin_w")
        A("s_barrier")
    stamp(A, cfg, 9)
    def ld(n):
        for j in range(3):
            A("buffer_load_dwordx4 %s, v%d, s[12:15], s%d offen sc1" % (v(PR + (n * 3 + j) * 4, 4), (9, 15, 18)[n], 40 + j))
    def fin(n):
        b = BASE + 8 * n
        for j in range(3):
            p = PR + (n * 3 + j) * 4
            for k in range(4):
                A("v_lshlrev_b32 v%d, 16, v%d" % (28 + 2 * (k % 2), p + k))
                A("v_and_b32 v%d, 0xffff0000, v%d" % (29 + 2 * (k % 2), p + k))
                A("v_pk_add_f32 %s, %s, %s" % (v(b + 2 * k, 2), v(b + 2 * k, 2), v(28 + 2 * (k % 2), 2)))
    def st(n):
        for aa in range(2):
            A("buffer_store_dwordx4 %s, v47, s[8:11], s%d offen offset:%d %s" % (v(BASE + 8 * n + 4 * aa, 4), (50, 51)[aa], n * 256, cfg.sto))
    A("s_cmp_lg_u32 s%d, 0" % LW)
    A("s_cbranch_scc1 fin_b")
    ld(2); ld(0); ld(1)
    A("s_waitcnt vmcnt(6)"); fin(2)
    A("s_waitcnt vmcnt(3)"); fin(0)
    A("s_waitcnt vmcnt(0)"); st(2); st(0); fin(1); st(1)
    A("s_branch k_done")
    A.label("fin_b")
    ld(0); ld(1)
    A("s_waitcnt vmcnt(3)"); fin(0)
    A("s_waitcnt vmcnt(0)"); st(0); fin(1); st(1)
    A.label("k_done")
    stamp_end(A, cfg)
    A.label("k_end")
    A("s_endpgm")

    KB = 29
    PFI = 23
    def kbcalc():
        A("s_sub_u32 s%d, s%d, 19" % (KB, SLOTR))
        A("s_lshl_b32 s%d, s%d, 3" % (KB, KB))
        A("s_add_u32 s%d, s%d, s%d" % (KB, KB, XCD))
    A.label("ln_lo")
    kbcalc()
    pubH()
    biasld()
    A("s_barrier")
    stamp(A, cfg, 2)
    A("s_branch ln_join")
    A.label("ln_hi")
    kbcalc()
    A("v_mov_b32 v216, 0\nv_mov_b32 v217, 0\nv_mov_b32 v215, 0")
    ids23()
    A("v_lshlrev_b32 v120, 7, v2")
    A("s_waitcnt lgkmcnt(0)")
    srd(A, FSRD, PWS, SZ_FL, WS_FL)
    srd(A, 12, PWS, SZ_ST, WS_ST)
    A("s_lshl_b32 s44, s%d, 2" % KB)
    A("s_add_u32 s44, s44, s%d" % WAVE)
    A("s_sub_u32 s44, s44, 4")
    if cfg.csb:
        A("s_sub_u32 s45, s44, 112")
        A("s_cbranch_scc1 ln_ncs")
        A("s_cmp_ge_u32 s45, 72")
        A("s_cselect_b32 s4, s%d, s%d" % (PBIM, PBRE))
        A("s_cselect_b32 s5, s%d, s%d" % (PBIM + 1, PBRE + 1))
        A("s_cselect_b32 s46, 72, 0")
        A("s_cselect_b32 s47, 4, 0")
        A("s_mov_b32 s6, %d\ns_mov_b32 s7, 0x00020000" % SZ_C)
        A("s_sub_u32 s45, s45, s46")
        A("s_mul_i32 s46, s45, %d" % (8 * 1152))
        A("v_lshrrev_b32 v3, 3, v2")
        A("v_and_b32 v4, 7, v2")
        A("v_mul_u32_u24 v5, 1152, v3")
        A("v_lshl_add_u32 v5, v4, 4, v5")
        for j in range(9):
            A("buffer_load_dwordx4 %s, v5, s[4:7], s46 offen offset:%d" % (v(16 + 4 * j, 4), j * 128))
        A("s_lshl_b32 s45, s45, 6")
        A("s_add_u32 s45, s45, s47")
        A("s_add_u32 s45, s45, 16384")
        A("v_lshlrev_b32 v3, 3, v3")
        A("s_mov_b32 s46, 0x3f803f80")
        for q in range(4): A("v_mov_b32 v%d, 0" % (8 + q))
        for j in range(9):
            A("s_waitcnt vmcnt(%d)" % (8 - j))
            for q in range(4): A("v_dot2_f32_bf16 v%d, v%d, s46, v%d" % (8 + q, 16 + 4 * j + q, 8 + q))
        A("s_nop 2")
        A("v_add_f32 v8, v8, v9\nv_add_f32 v10, v10, v11\nv_add_f32 v8, v8, v10")
        for dpp in ("quad_perm:[1,0,3,2]", "quad_perm:[2,3,0,1]", "row_half_mirror"):
            A("s_nop 1")
            A("v_add_f32_dpp v8, v8, v8 %s row_mask:0xf bank_mask:0xf" % dpp)
        A("s_mov_b32 exec_lo, 0x01010101\ns_mov_b32 exec_hi, 0x01010101")
        A("buffer_store_dword v8, v3, s[12:15], s45 offen sc1")
        A("s_mov_b64 exec, -1")
        A("s_waitcnt vmcnt(0)")
        A("s_branch ln_nw")
        A.label("ln_ncs")
    A("s_mov_b32 s4, s%d\ns_mov_b32 s5, s%d\ns_mov_b32 s6, 0\ns_mov_b32 s45, 0" % (PB1, PB1 + 1))
    for (w, ptr, sz) in ((32, PB1, 9216), (33, PB1, 9216), (34, PB2, 4096), (35, PDSK, 1152), (36, PLRE, 1152), (37, PLIM, 1152), (38, PLOGDT, 1152)):
        A("s_cmp_eq_u32 s44, %d" % w)
        A("s_cselect_b32 s4, s%d, s4" % ptr)
        A("s_cselect_b32 s5, s%d, s5" % (ptr + 1))
        A("s_cselect_b32 s6, %d, s6" % sz)
        if w == 33: A("s_cselect_b32 s45, 8192, s45")
    A("s_mov_b32 s7, 0x00020000")
    A("s_cmp_eq_u32 s6, 0")
    A("s_cbranch_scc1 ln_nt")
    A("buffer_load_dword v121, v120, s[4:7], s45 offen")
    A.label("ln_nt")
    if cfg.codepf:
        A("s_cmp_ge_u32 s44, 32")
        A("s_cbranch_scc1 ln_nc")
        A("s_getpc_b64 s[46:47]")
        A.label("ln_pc")
        A("s_sub_u32 s46, s46, ln_pc-%s" % KN)
        A("s_subb_u32 s47, s47, 0")
        A("s_and_b32 s45, s44, 3")
        A("s_lshl_b32 s45, s45, 13")
        A("v_add_u32 v122, s45, v120")
        A("s_mov_b32 s45, text_end-%s" % KN)
        for r in range(2):
            A("v_cmp_gt_u32 vcc, s45, v122")
            A("s_and_saveexec_b64 s[48:49], vcc")
            A("s_cbranch_execz ln_nc2")
            A("global_load_dword v%d, v122, s[46:47]" % (123 + r))
            A("v_add_u32 v122, 32768, v122")
        A.label("ln_nc2")
        A("s_mov_b64 exec, -1")
        A.label("ln_nc")
    srd(A, 4, PW1, SZ_W)
    A("s_sub_u32 s45, s44, 40")
    A("s_cbranch_scc1 ln_nw")
    A("s_lshl_b32 s45, s45, 13")
    for r in range(cfg.lnpf):
        A("buffer_load_dword v121, v120, s[4:7], s45 offen")
        A("s_add_u32 s45, s45, %d" % (NLP * 8192))
    A.label("ln_nw")
    A("s_barrier")
    tag_issue(A)
    A("s_barrier")
    tag_check(A)
    A.label("ln_join")
    A("v_lshlrev_b32 v120, 7, v2")
    A("s_lshl_b32 s%d, s%d, 3" % (PFI, KB))
    A("s_add_u32 s%d, s%d, s%d" % (PFI, PFI, WAVE))
    if cfg.tlbw:
        A("s_cmp_lg_u32 s%d, %d" % (SLOTR, cfg.tlbw))
        A("s_cbranch_scc1 ln_ntl")
        A("s_mov_b32 s60, s%d\ns_mov_b32 s61, s%d\ns_mov_b32 s62, 0" % (PW1, PW1 + 1))
        for (w, ptr, sz) in ((1, PW1, SZ_W), (2, PW2, SZ_W), (3, PWS, 0x4000000 if cfg.side else WS_EX + SZ_EX), (4, POUT, 2048 * 576 * 4), (5, PCRE, SZ_C), (6, PCIM, SZ_C), (7, PLOGDT, 1152)):
            A("s_cmp_eq_u32 s%d, %d" % (WAVE, w))
            A("s_cselect_b32 s60, s%d, s60" % ptr)
            A("s_cselect_b32 s61, s%d, s61" % (ptr + 1))
            A("s_cselect_b32 s62, %d, s62" % sz)
        A("s_mov_b32 s63, 0x00020000")
        A("v_lshlrev_b32 v122, 20, v2")
        A("buffer_load_dword v121, v122, s[60:63], 0 offen offset:512 sc1")
        A.label("ln_ntl")
    for r in range(cfg.pf_a):
        if r == 0:
            A("s_add_u32 s55, s%d, %d" % (PFI, L_C))
            A("s_add_u32 s3, s%d, %d" % (PFI, (NLP * cfg.lnpf - 162) & 0xffffffff))
            A("s_cmp_lt_u32 s%d, 162" % PFI)
            A("s_cselect_b32 s3, s55, s3")
        else:
            A("s_add_u32 s3, s%d, %d" % (PFI, NLP * cfg.lnpf - 162 + 512 * r))
        pf_decode(A, 3, 60, 58, 54)
        A("buffer_load_dword v121, v120, s[60:63], s58 offen")
    A("s_cmp_ge_u32 s%d, 4" % WAVE)
    A("s_cbranch_scc1 l2_entry")
    A("s_cmp_lg_u32 s%d, 0" % WAVE)
    A("s_cbranch_scc1 ln_g")
    A("s_sleep %d" % cfg.bsleep)
    wide_issue(A)
    wide_check(A)
    A.label("ln_g")
    A("s_waitcnt vmcnt(0)")
    A("s_barrier")
    stamp(A, cfg, 3)
    A("s_branch c2_entry")

    A.label("scan_entry")
    CB = 29
    A("s_sub_u32 s%d, s%d, 27" % (CB, SLOTR))
    A("s_lshl_b32 s%d, s%d, 3" % (CB, CB))
    A("s_add_u32 s%d, s%d, s%d" % (CB, CB, XCD))
    A("s_mov_b32 s%d, 0" % RING)
    A("v_lshlrev_b32 v56, 7, v2")
    A("s_lshl_b32 s%d, s%d, 3" % (PFI, CB))
    A("s_add_u32 s%d, s%d, s%d" % (PFI, PFI, WAVE))
    A("s_add_u32 s%d, s%d, %d" % (PFI, PFI, L_W2 if cfg.pf_a else L_C))
    def scpf(lo=0):
        pf_decode(A, PFI, 60, 58, 54, lo=lo)
        A("buffer_load_dword v57, v56, s[60:63], s58 offen")
        A("s_add_u32 s%d, s%d, 320" % (PFI, PFI))
    for _ in range(cfg.pf_a2): scpf(L_C)
    A("s_cmp_lt_u32 s%d, 36" % CB)
    A("s_cbranch_scc1 scan2")
    for _ in range(sum(cfg.scm) + cfg.pf_b): scpf(L_C)
    A("s_branch scan_done")
    A.label("scan2")
    A("v_and_b32 v3, 7, v0")
    A("v_lshrrev_b32 v4, 3, v0")
    A("v_lshlrev_b32 v5, 10, v4")
    A("v_and_b32 v6, 3, v3")
    A("v_lshl_add_u32 v5, v6, 4, v5")
    A("v_lshrrev_b32 v6, 2, v3")
    A("v_lshl_add_u32 v5, v6, 16, v5")
    A("s_lshl_b32 s40, s%d, 17" % CB)
    A("v_lshlrev_b32 v9, 2, v3")
    A("s_lshl_b32 s41, s%d, 5" % CB)
    for (r, ptr) in ((10, PLRE), (11, PLIM), (12, PLOGDT)):
        srd(A, 4, ptr, 1152)
        A("buffer_load_dword v%d, v9, s[4:7], s41 offen" % r)
    L = [18, 20]; L32 = [22, 24]; L256 = [26, 28]; C2 = [30, 32]
    A("s_mov_b32 s44, 0x%x" % f2u(math.log2(math.e)))
    A("s_mov_b32 s45, 0x%x" % f2u(1.0 / (2 * math.pi)))
    A("s_waitcnt vmcnt(0)")
    def sq(d, s_):
        A("v_mul_f32 v40, v%d, v%d" % (s_ + 1, s_ + 1))
        A("v_mul_f32 v41, v%d, v%d" % (s_, s_ + 1))
        A("v_fma_f32 v%d, v%d, v%d, -v40" % (d, s_, s_))
        A("v_add_f32 v%d, v41, v41" % (d + 1))
    for c in range(2):
        for (d, s_) in ((34, 10), (35, 11), (36, 12)):
            if c == 0: A("v_lshlrev_b32 v%d, 16, v%d" % (d, s_))
            else: A("v_and_b32 v%d, 0xffff0000, v%d" % (d, s_))
        A("v_mul_f32 v36, s44, v36")
        A("v_exp_f32 v36, v36")
        A("s_nop 0")
        round_bf16(A, 36, 36)
        A("v_mul_f32 v37, v36, v34")
        A("v_mul_f32 v38, v36, v35")
        A("v_mul_f32 v37, s44, v37")
        A("v_mul_f32 v38, s45, v38")
        A("v_exp_f32 v37, v37")
        A("v_fract_f32 v38, v38")
        A("v_cos_f32 v39, v38")
        A("v_sin_f32 v38, v38")
        A("s_nop 0")
        A("v_mul_f32 v%d, v37, v39" % L[c])
        A("v_mul_f32 v%d, v37, v38" % (L[c] + 1))
        sq(L32[c], L[c])
        for _ in range(4): sq(L32[c], L32[c])
        sq(L256[c], L32[c])
        for _ in range(2): sq(L256[c], L256[c])
        A("v_add_f32 v37, -1.0, v%d" % L[c])
        A("v_mul_f32 v38, v34, v34")
        A("v_fmac_f32 v38, v35, v35")
        A("v_rcp_f32 v38, v38")
        A("v_mul_f32 v39, v37, v34")
        A("v_fmac_f32 v39, v%d, v35" % (L[c] + 1))
        A("v_mul_f32 v40, v%d, v34" % (L[c] + 1))
        A("v_fma_f32 v40, -v37, v35, v40")
        A("v_add_f32 v38, v38, v38")
        A("v_mul_f32 v%d, v39, v38" % C2[c])
        A("v_mul_f32 v%d, v40, v38" % (C2[c] + 1))
    A("s_mul_i32 s43, s%d, 21846" % CB)
    A("s_lshr_b32 s43, s43, 16")
    A("s_lshl_b32 s43, s43, 9")
    A("s_add_u32 s43, s43, %d" % FL_G)
    A("s_cmp_lg_u32 s%d, 0" % WAVE)
    A("s_cbranch_scc1 scan_g")
    gate_issue(A, 43)
    gate_check(A, 43, (1 << 64) - 1)
    A.label("scan_g")
    A("s_barrier")
    stamp(A, cfg, 3)
    srd(A, 4, PWS, SZ_G, WS_G)
    srd(A, 12, PWS, SZ_HT, WS_HT)
    G0 = 56; RW = 184
    for j in range(16):
        A("buffer_load_dwordx4 %s, v5, s[4:7], s40 offen offset:%d %s" % (v(RW + 4 * j, 4), j * 64, cfg.gl))
    LDS_AGG = 9216; LDS_WAGG = LDS_AGG + 8192
    H = 10; T2 = 34
    def stepf(Lr, src):
        for c in range(2):
            A("v_pk_fma_f32 %s, %s, %s, %s op_sel_hi:[0,1,1]" % (v(T2 + 2 * c, 2), v(Lr[c], 2), v(H + 2 * c, 2), v(src + 2 * c, 2)))
        for c in range(2):
            A("v_pk_fma_f32 %s, %s, %s, %s op_sel:[1,1,0] op_sel_hi:[1,0,1] neg_lo:[1,0,0]" % (v(H + 2 * c, 2), v(Lr[c], 2), v(H + 2 * c, 2), v(T2 + 2 * c, 2)))
    for i in range(4): A("v_mov_b32 v%d, 0" % (H + i))
    for j in range(16):
        A("s_waitcnt vmcnt(%d)" % (15 - j))
        for e in range(2):
            g = G0 + 4 * (2 * j + e)
            for c in range(2):
                A("v_lshlrev_b32 v%d, 16, v%d" % (g + 2 * c, RW + 4 * j + 2 * e + c))
                A("v_and_b32 v%d, 0xffff0000, v%d" % (g + 2 * c + 1, RW + 4 * j + 2 * e + c))
        for e in range(2):
            g = G0 + 4 * (2 * j + e)
            for c in range(2):
                A("v_pk_mul_f32 %s, %s, %s op_sel_hi:[0,1]" % (v(40 + 4 * e + 2 * c, 2), v(C2[c], 2), v(g + 2 * c, 2)))
        for e in range(2):
            g = G0 + 4 * (2 * j + e)
            for c in range(2):
                A("v_pk_fma_f32 %s, %s, %s, %s op_sel:[1,1,0] op_sel_hi:[1,0,1] neg_lo:[1,0,0]" % (v(g + 2 * c, 2), v(C2[c], 2), v(g + 2 * c, 2), v(40 + 4 * e + 2 * c, 2)))
        for e in range(2): stepf(L, G0 + 4 * (2 * j + e))
    A("v_lshlrev_b32 v8, 7, v2")
    def scpf2():
        pf_decode(A, PFI, 60, 58, 54, lo=L_C)
        A("buffer_load_dword v9, v8, s[60:63], s58 offen")
        A("s_add_u32 s%d, s%d, 320" % (PFI, PFI))
    for _ in range(cfg.scm[0] + cfg.scm[1]): scpf2()
    stamp(A, cfg, 4)
    A("v_lshlrev_b32 v15, 4, v3")
    A("v_lshlrev_b32 v17, 4, v0")
    A("ds_write_b128 v17, %s offset:%d" % (v(H, 4), LDS_AGG))
    A("s_lshl_b32 s44, s%d, 10" % WAVE)
    A("v_add_u32 v17, s44, v15")
    A("s_waitcnt lgkmcnt(0)")
    AG = 184; WG_ = 216
    for j in range(8): A("ds_read_b128 %s, v17 offset:%d" % (v(AG + 4 * j, 4), LDS_AGG + j * 128))
    A("s_waitcnt lgkmcnt(7)")
    for i in range(4): A("v_mov_b32 v%d, v%d" % (H + i, AG + i))
    for j in range(1, 8):
        A("s_waitcnt lgkmcnt(%d)" % (7 - j))
        stepf(L32, AG + 4 * j)
    A("s_lshl_b32 s44, s%d, 7" % WAVE)
    A("v_add_u32 v17, s44, v15")
    A("ds_write_b128 v17, %s offset:%d" % (v(H, 4), LDS_WAGG))
    A("s_waitcnt lgkmcnt(0)")
    A("s_barrier")
    for j in range(7): A("ds_read_b128 %s, v15 offset:%d" % (v(WG_ + 4 * j, 4), LDS_WAGG + j * 128))
    for i in range(4): A("v_mov_b32 v%d, 0" % (H + i))
    A("v_lshrrev_b32 v17, 3, v2")
    A("s_waitcnt lgkmcnt(0)")
    for j in range(7):
        A("s_cmp_le_u32 s%d, %d" % (WAVE, j))
        A("s_cbranch_scc1 scan_w")
        stepf(L256, WG_ + 4 * j)
    A.label("scan_w")
    for j in range(7):
        A("v_cmpx_lt_u32 vcc, %d, v17" % j)
        stepf(L32, AG + 4 * j)
    A("s_mov_b64 exec, -1")
    A("s_barrier")
    stamp(A, cfg, 10)
    for _ in range(cfg.scm[2]): scpf2()
    A("s_mul_i32 s44, s%d, %d" % (WAVE, 32 * 528))
    A("v_mul_u32_u24 v48, 528, v3")
    A("v_lshl_add_u32 v48, v17, 6, v48")
    A("v_add_u32 v48, s44, v48")
    A("v_lshrrev_b32 v49, 5, v2")
    A("v_and_b32 v50, 31, v2")
    A("v_lshlrev_b32 v50, 4, v50")
    A("v_mul_u32_u24 v51, 528, v49")
    A("v_add3_u32 v51, v51, v50, s44")
    A("v_lshl_add_u32 v50, v49, 13, v50")
    A("s_lshr_b32 s45, s%d, 1" % CB)
    A("s_lshl_b32 s45, s45, 5")
    A("s_and_b32 s46, s%d, 1" % CB)
    A("s_lshl_b32 s46, s46, 3")
    A("s_add_u32 s45, s45, s46")
    A("s_lshl_b32 s45, s45, 12")
    A("s_lshl_b32 s46, s%d, 9" % WAVE)
    A("s_add_u32 s45, s45, s46")
    PK = 184
    for blk in range(4):
        for k in range(8):
            g = G0 + 4 * (blk * 8 + k)
            hp = H if (blk == 0 and k == 0) else g - 4
            for c in range(2):
                A("v_pk_fma_f32 %s, %s, %s, %s op_sel_hi:[0,1,1]" % (v(g + 2 * c, 2), v(L[c], 2), v(hp + 2 * c, 2), v(g + 2 * c, 2)))
            for c in range(2):
                A("v_pk_fma_f32 %s, %s, %s, %s op_sel:[1,1,0] op_sel_hi:[1,0,1] neg_lo:[1,0,0]" % (v(g + 2 * c, 2), v(L[c], 2), v(hp + 2 * c, 2), v(g + 2 * c, 2)))
        pkb = PK + blk * 16
        for q in range(4):
            for k in range(4):
                g = G0 + 4 * (blk * 8 + 2 * k)
                sg = "-" if q & 1 else ""
                A("v_cvt_pk_bf16_f32 v%d, %sv%d, %sv%d" % (pkb + 4 * q + k, sg, g + q, sg, g + 4 + q))
        for q in range(4):
            A("ds_write_b128 v48, %s offset:%d" % (v(pkb + 4 * q, 4), q * 8 * 528 + blk * 16))
    A("s_waitcnt lgkmcnt(0)")
    stamp(A, cfg, 11)
    for n in range(16):
        A("ds_read_b128 %s, v51 offset:%d" % (v(G0 + 4 * n, 4), n * 2 * 528))
        if n == 7: A("s_waitcnt lgkmcnt(0)")
    for n in range(16):
        q = n >> 2; k = n & 3; c = q >> 1; part = q & 1
        row = 16 * (k & 1) + 4 * (k >> 1) + c + 576 * part
        if n >= 8: A("s_waitcnt lgkmcnt(%d)" % (15 - n))
        A("s_add_u32 s46, s45, %d" % (row * 4096))
        A("buffer_store_dwordx4 %s, v50, s[12:15], s46 offen sc1" % v(G0 + 4 * n, 4))
    A("s_lshl_b32 s52, s%d, 9" % WAVE)
    A("s_lshl_b32 s44, s%d, 3" % CB)
    A("s_add_u32 s52, s52, s44")
    A("s_add_u32 s52, s52, %d" % FL_T)
    A("s_waitcnt vmcnt(0)")
    publish(A, 52)
    stamp(A, cfg, 5)
    A("s_barrier")
    for _ in range(cfg.pf_b): scpf2()
    A.label("scan_done")
    A("s_waitcnt vmcnt(0)")
    A("s_barrier")
    A("s_cmp_lt_u32 s%d, 4" % WAVE)
    A("s_cbranch_scc1 c3_entry")
    A("s_branch l3_entry")
    A.label("text_end")
    A("s_endpgm")

    HEADER = open("ref_header.txt").read().split("; @launch")[0]
    out = HEADER + "; @launch grid=(256,1,1) block=(512,1,1) lds=163840\n"
    out += DOC + '.amdgcn_target "amdgcn-amd-amdhsa--gfx950"\n.text\n' + A.text()
    out += '.section .rodata,"a"\n.p2align 6\n' + kd(KN, 256, 102)
    return out

if __name__ == "__main__":
    kw = {}
    for a_ in sys.argv[2:]:
        k, val = a_.split("=")
        kw[k] = ast.literal_eval(val)
    open(sys.argv[1], "w").write(gen(**kw))
```

```python
import sys, math, ast
from asmlib import *

NAME = "parallel_sum__ssm_conv_s5__mixer_token_mlp__prompt"
PAIR = 2048
SIDE = 0x3000000
WS_HF = 0x0;        SZ_HF = 32 * 36 * PAIR
WS_UF = 0x400000;   SZ_UF = 72 * 36 * PAIR
WS_G = 0xC00000;    SZ_G = 4718592
WS_HT = 0x1400000;  SZ_HT = 4718592
WS_ST = 0x1900000;  SZ_ST = 16384 + 8192
WS_FL = 0x1910000;  SZ_FL = 65536
WS_EX = 0x2000000;  SZ_EX = 64 * 16 * 9216
WS_STAMP = 0xC000000
SZ_W = 2048 * 9216; SZ_C = 576 * 1152; SZ_X = 2359296
FL_H = 0
FL_G = 2048
FL_U = FL_G + 12 * 512
FL_T = FL_U + 16 * 512
FL_X = FL_T + 8 * 512
assert FL_X + 256 * 128 <= SZ_FL

PX, PLRE, PLIM, PBRE, PBIM, PCRE, PCIM, PLOGDT, PDSK, PBX, PW1, PB1, PW2, PB2, POUT, PDBG, PWS = [64 + 2 * i for i in range(17)]
WAVE, SLOTR, XCD = 20, 21, 22
TAG = 24
RING = 26
CNT = 27
EVT = 28
NS = 4; SLOT = 34816; LDS_OWN = NS * SLOT
MFMA = "v_mfma_f32_16x16x32_bf16"
SPIN = 1 << 14
SIG = 163776
NS2 = 5; SLOT2 = 28672; LDS_LN = NS2 * SLOT2

DOC = """;
"""

class Cfg:
    stamp = False
    pf_a = 1
    scm = (0, 0, 0)
    pf_b = 1
    lnpf = 1
    rot1 = 1; rot2 = 1; rot3 = 1
    hl = "sc1"
    codepf = 1
    gl = ""
    pf_a2 = 0
    dbgst = 0
    ginv = 2
    pfh = 0
    tab2 = 3
    xint = 1
    upub = 1
    xpos = 2
    binit = 1
    nt3 = 0
    nt3s = 0
    al = 0
    alp = 0
    csb = 1
    xpoll = 1
    pollat = 29
    adv2 = 4
    gpub = 1
    side = 1
    sto = ""
    tlbw = 0
    fast = 0
    hoist = 1
    hack3 = 0
    ord2 = 0
    ord3 = 0
    pair2 = 0
    pair3 = 0
    bsleep = 10
    gsleep = 4
    csleep = 0
    pro = 3
    e1 = (7,)

class G:
    pass

def stamp(A, cfg, idx):
    if cfg.stamp:
        A("s_memrealtime s[98:99]")
        A("s_memtime s[100:101]")
        A("s_waitcnt lgkmcnt(0)")
        A("v_writelane_b32 v255, s98, %d" % idx)
        A("v_writelane_b32 v255, s100, %d" % (idx + 16))

def stamp_end(A, cfg):
    if not cfg.stamp: return
    A("s_waitcnt vmcnt(0)")
    stamp(A, cfg, 15)
    srd(A, 4, PWS, 262144, WS_STAMP)
    A("s_lshl_b32 s30, s2, 3")
    A("s_add_u32 s30, s30, s%d" % WAVE)
    A("s_lshl_b32 s30, s30, 7")
    A("v_lshlrev_b32 v3, 2, v2")
    A("s_mov_b32 exec_lo, -1\ns_mov_b32 exec_hi, 0")
    A("buffer_store_dword v255, v3, s[4:7], s30 offen")
    if cfg.dbgst:
        A("s_cmp_lg_u32 s2, %d" % cfg.dbgst)
        A("s_cbranch_scc1 dbg_skip")
        srd(A, 4, PDBG, 256)
        A("v_readlane_b32 s31, v255, 0")
        A("s_nop 3")
        A("v_subrev_u32 v255, s31, v255")
        A("s_cmp_eq_u32 s%d, 3" % WAVE)
        A("s_cbranch_scc0 dbg_l")
        A("s_mov_b64 exec, 0x3ffc")
        A("buffer_store_dword v255, v3, s[4:7], 0 offen")
        A.label("dbg_l")
        A("s_cmp_eq_u32 s%d, 4" % WAVE)
        A("s_cbranch_scc0 dbg_skip")
        A("s_mov_b64 exec, 0x8000")
        A("buffer_store_dword v255, v3, s[4:7], 0 offen")
        A("s_mov_b64 exec, 0x200")
        A("buffer_store_dword v255, v3, s[4:7], 0 offen offset:20")
        A.label("dbg_skip")

def slot_adv(ph, sreg=RING):
    sl, n = (SLOT, NS) if ph == 3 else (SLOT2, NS2)
    return ["s_add_u32 s%d, s%d, %d" % (sreg, sreg, sl), "s_cmp_eq_u32 s%d, %d" % (sreg, n * sl), "s_cselect_b32 s%d, 0, s%d" % (sreg, sreg)]

def row16_sum(A, r):
    for sh in (8, 4, 2, 1):
        A("s_nop 1")
        A("v_add_f32_dpp v%d, v%d, v%d row_ror:%d row_mask:0xf bank_mask:0xf" % (r, r, r, sh))

def round_bf16(A, dst, src):
    A("v_cvt_pk_bf16_f32 v%d, v%d, v%d" % (dst, src, src))
    A("v_lshlrev_b32 v%d, 16, v%d" % (dst, dst))

L_C = 2304; L_W2 = 2304 + 162; L_END = L_W2 + 72 * 32
def pf_decode(A, idx, d, off, t, lo=0):
    A("s_sub_u32 s%d, s%d, %d" % (off, idx, L_W2))
    A("s_bfe_u32 s%d, s%d, 0x20005" % (t, off))
    A("s_mul_i32 s%d, s%d, %d" % (t, t, 18 * 32))
    A("s_lshr_b32 s%d, s%d, 7" % (t + 1, off))
    A("s_lshl_b32 s%d, s%d, 5" % (t + 1, t + 1))
    A("s_add_u32 s%d, s%d, s%d" % (t, t, t + 1))
    A("s_and_b32 s%d, s%d, 31" % (off, off))
    A("s_add_u32 s%d, s%d, s%d" % (off, off, t))
    A("s_cmp_ge_u32 s%d, %d" % (idx, L_END))
    A("s_cselect_b32 s%d, 4096, s%d" % (off, off))
    A("s_mov_b32 s%d, s%d\ns_mov_b32 s%d, s%d\ns_mov_b32 s%d, %d" % (d, PW2, d + 1, PW2 + 1, d + 2, SZ_W))
    for (hi, sub, base, sz) in ((L_W2, L_C + 81, PCIM, SZ_C), (L_C + 81, L_C, PCRE, SZ_C), (L_C, 0, PW1, SZ_W)):
        if hi <= lo: continue
        A("s_sub_u32 s%d, s%d, %d" % (t, idx, sub))
        A("s_cmp_lt_u32 s%d, %d" % (idx, hi))
        A("s_cselect_b32 s%d, s%d, s%d" % (off, t, off))
        A("s_cselect_b32 s%d, s%d, s%d" % (d, base, d))
        A("s_cselect_b32 s%d, s%d, s%d" % (d + 1, base + 1, d + 1))
        A("s_cselect_b32 s%d, %d, s%d" % (d + 2, sz, d + 2))
    A("s_mov_b32 s%d, 0x00020000" % (d + 3))
    A("s_lshl_b32 s%d, s%d, 13" % (off, off))

GSLEEP = [8]
FSRD = 16; VL8 = 248; VT = 250; VP = 252
def tag_issue(A):
    srd(A, 60, PDBG, 256)
    A("v_mov_b32 v249, 0")
    A("buffer_load_dwordx2 v[%d:%d], v249, s[60:63], 0 offen sc1" % (VT, VT + 1))
def tag_check(A):
    lp = A.newlabel("tg"); ok = A.newlabel("tg"); rt = A.newlabel("tg")
    A("s_mov_b32 s59, 0")
    A.label(lp)
    A("s_waitcnt vmcnt(0)")
    A("v_readfirstlane_b32 s58, v%d" % VT)
    A("s_add_u32 s59, s59, 1")
    A("s_cmp_eq_u32 s58, 0")
    A("s_cbranch_scc1 %s" % rt)
    A("s_sub_u32 s58, s%d, s58" % TAG)
    A("s_cmp_lt_i32 s58, 1500")
    A("s_cbranch_scc1 %s" % ok)
    A("s_cmp_gt_u32 s59, 64")
    A("s_cbranch_scc1 %s" % ok)
    A.label(rt)
    A("s_cmp_gt_u32 s59, %d" % SPIN)
    A("s_cbranch_scc1 %s" % ok)
    A("s_sleep 2")
    tag_issue(A)
    A("s_branch %s" % lp)
    A.label(ok)
def publish(A, offreg):
    A("s_mov_b64 exec, 1")
    A("buffer_store_dwordx2 v[%d:%d], v%d, s[%d:%d], s%d offen sc1" % (VT, VT + 1, VL8, FSRD, FSRD + 3, offreg))
    A("s_mov_b64 exec, -1")
def gate_issue(A, offreg):
    A("buffer_load_dwordx2 v[%d:%d], v%d, s[%d:%d], s%d offen sc1" % (VP, VP + 1, VL8, FSRD, FSRD + 3, offreg))
def gate_check(A, offreg, mask, first_wait=0):
    lp = A.newlabel("gt"); ok = A.newlabel("gt")
    A("s_mov_b32 s59, 0")
    if isinstance(mask, int):
        A("s_mov_b32 s56, 0x%x" % (mask & 0xffffffff))
        A("s_mov_b32 s57, 0x%x" % (mask >> 32))
        mask = "s[56:57]"
    A("s_waitcnt vmcnt(%d)" % first_wait)
    A.label(lp)
    A("v_cmp_ne_u64 vcc, v[%d:%d], v[%d:%d]" % (VP, VP + 1, VT, VT + 1))
    A("s_add_u32 s59, s59, 1")
    A("s_and_b64 vcc, vcc, %s" % mask)
    A("s_cbranch_scc0 %s" % ok)
    A("s_cmp_gt_u32 s59, %d" % SPIN)
    A("s_cbranch_scc1 %s" % ok)
    A("s_sleep %d" % GSLEEP[0])
    gate_issue(A, offreg)
    A("s_waitcnt vmcnt(0)")
    A("s_branch %s" % lp)
    A.label(ok)

VW = 240
def wide_issue(A):
    A("v_lshlrev_b32 v249, 4, v2")
    A("buffer_load_dwordx4 v[%d:%d], v249, s[%d:%d], 0 offen sc1" % (VW, VW + 3, FSRD, FSRD + 3))
    A("buffer_load_dwordx4 v[%d:%d], v249, s[%d:%d], 0 offen offset:1024 sc1" % (VW + 4, VW + 7, FSRD, FSRD + 3))
def wide_check(A):
    lp = A.newlabel("gw"); ok = A.newlabel("gw")
    A("s_mov_b32 s59, 0")
    A.label(lp)
    A("s_waitcnt vmcnt(0)")
    A("v_cmp_ne_u64 vcc, v[%d:%d], v[%d:%d]" % (VW, VW + 1, VT, VT + 1))
    for q in range(1, 4):
        A("v_cmp_ne_u64 s[56:57], v[%d:%d], v[%d:%d]" % (VW + 2 * q, VW + 2 * q + 1, VT, VT + 1))
        A("s_or_b64 vcc, vcc, s[56:57]")
    A("s_cbranch_scc0 %s" % ok)
    A("s_add_u32 s59, s59, 1")
    A("s_cmp_gt_u32 s59, %d" % SPIN)
    A("s_cbranch_scc1 %s" % ok)
    A("s_sleep %d" % GSLEEP[0])
    wide_issue(A)
    A("s_branch %s" % lp)
    A.label(ok)

def group(A, ms, rs, nprev, extra=(), pts=None):
    rs = list(rs); issued = 0; waited = -1
    for i, (m, need) in enumerate(ms):
        if pts is not None:
            if i in pts:
                nxt = min([p for p in pts if p > i] + [len(ms)])
                need = max(n for _, n in ms[i:nxt])
            else:
                assert need <= waited
        if need > waited:
            A("s_waitcnt lgkmcnt(%d)" % min(15, nprev - 1 - need + issued))
            waited = need
        A(m)
        if rs:
            A(rs.pop(0)); issued += 1
        for pos, t in extra:
            if pos == i: A(t)
    for r in rs: A(r)

ALN = [0, 0]
def align(A):
    if ALN[0]:
        A.raw(".p2alignl %d, 0xbf800000" % ALN[0])
        for _ in range(ALN[1]): A("s_nop 0")

def capture(A, fn):
    mark = len(A.lines); fn()
    body = [l.strip() for l in A.lines[mark:]]; del A.lines[mark:]
    return body

def spread(instrs, n, start=0, per=2):
    out = []
    for k, t in enumerate(instrs):
        out.append((min(n - 1, start + k // per), t))
    return out

class Phase:
    def __init__(self, A, pfx, reads, mfmas, upd, pts, ph):
        self.A, self.pfx, self.reads, self.mfmas, self.upd, self.pts, self.ph = A, pfx, reads, mfmas, upd, pts, ph
        self.n = len(reads(0, 0)); self.nm = len(mfmas(1))
    def first(self, xb=(), cinit=None):
        A = self.A
        for r in self.reads(0, 0): A(r)
        m0 = [(m[:m.rindex(",")] + ", " + (cinit(i) if cinit else "0"), need) for i, (m, need) in enumerate(self.mfmas(0))]
        group(A, m0, self.reads(1, 1), self.n, self.upd(), self.pts)
        group(A, self.mfmas(1), self.reads(0, 0), self.n, xb, self.pts)
    def it(self, pre=None, xb=()):
        A = self.A
        group(A, self.mfmas(0), self.reads(1, 1), self.n, self.upd(), self.pts)
        if pre: pre()
        A("s_barrier")
        group(A, self.mfmas(1), self.reads(0, 0), self.n, xb, self.pts)
    def loop(self, tag, count):
        A = self.A
        if isinstance(count, int): A("s_mov_b32 s%d, %d" % (CNT, count))
        else: A(count)
        align(A)
        A.label(self.pfx + tag)
        self.it(None, [(self.nm - 3, "s_sub_u32 s%d, s%d, 1" % (CNT, CNT)), (self.nm - 2, "s_cmp_lg_u32 s%d, 0" % CNT)])
        A("s_cbranch_scc1 %s%s" % (self.pfx, tag))
    def tail(self, work=()):
        A = self.A
        work = list(work)
        na = self.nm - 3
        group(A, self.mfmas(0), self.reads(1, 1), self.n, list(enumerate(slot_adv(self.ph))) + spread(work[:na], self.nm, 3, 1), self.pts)
        group(A, self.mfmas(1), [], self.n, spread(work[na:], self.nm, 0, 2), self.pts)

def gen(**kw):
    cfg = Cfg()
    for k, val in kw.items():
        assert hasattr(Cfg, k), k
        setattr(cfg, k, val)
    A = Asm()
    HL = cfg.hl
    ALN[0] = cfg.al; ALN[1] = cfg.alp
    NLP = 72 if cfg.csb else 216
    GSLEEP[0] = cfg.gsleep
    late = []
    KN = NAME + "_kernel"
    A.raw(".globl %s\n.p2align 8\n.type %s,@function" % (KN, KN))
    A.label(KN)
    A("s_cmp_ge_u32 s2, 256")
    A("s_cbranch_scc1 k_end")
    A("s_load_dwordx16 s[64:79], s[0:1], 0")
    A("s_load_dwordx16 s[80:95], s[0:1], 64")
    A("s_load_dwordx2 s[96:97], s[0:1], 128")
    A("s_memrealtime s[%d:%d]" % (TAG, TAG + 1))
    A("v_lshrrev_b32 v1, 6, v0")
    A("v_and_b32 v2, 63, v0")
    A("v_readfirstlane_b32 s%d, v1" % WAVE)
    A("s_and_b32 s%d, s2, 7" % XCD)
    A("s_lshr_b32 s%d, s2, 3" % SLOTR)
    A("s_sub_u32 s3, s%d, 19" % SLOTR)
    A("s_cmp_lt_u32 s3, 8")
    A("s_cselect_b32 s%d, %d, %d" % (RING, 3, 4))
    A("s_mul_i32 s%d, s%d, %d" % (RING, RING, SLOT2))
    A("v_lshlrev_b32 v%d, 3, v2" % VL8)
    if cfg.stamp:
        A("v_mov_b32 v255, 0")
        A("s_waitcnt lgkmcnt(0)")
        A("v_writelane_b32 v255, s%d, 0" % TAG)
    TT, PT, FT, DT, SP, ST, D3, KT3, NF, F0 = 30, 31, 32, 33, 34, 35, 36, 37, 38, 39
    A("s_cmp_ge_u32 s%d, 12" % SLOTR)
    A("s_cselect_b32 s%d, 1, 0" % TT)
    A("s_cselect_b32 s%d, 12, 0" % PT)
    A("s_cmp_ge_u32 s%d, 27" % SLOTR)
    A("s_cselect_b32 s%d, 20, s%d" % (PT, PT))
    A("s_sub_u32 s%d, s%d, s%d" % (PT, SLOTR, PT))
    A("s_lshl_b32 s3, s%d, 1" % XCD)
    A("s_add_u32 s%d, s%d, s3" % (TT, TT))
    A("s_cmp_ge_u32 s%d, 4" % WAVE)
    A("s_cbranch_scc1 hi_entry")

    def ids23():
        A("s_lshl_b32 s3, s%d, 3" % XCD)
        A("s_mov_b32 s%d, 0x%x\ns_mov_b32 s%d, 0x%x" % (FT, 0x0206090c, FT + 1, 0x0f121518))
        A("s_lshr_b64 s[%d:%d], s[%d:%d], s3" % (FT, FT + 1, FT, FT + 1))
        A("s_and_b32 s%d, s%d, 0xff" % (FT, FT))
        A("s_add_u32 s%d, s%d, s%d" % (FT, FT, SLOTR))
        A("s_cmp_ge_u32 s%d, 27" % FT)
        A("s_cselect_b32 s3, 27, 0")
        A("s_sub_u32 s%d, s%d, s3" % (FT, FT))
        A("s_mul_i32 s3, s%d, 27" % XCD)
        A("s_add_u32 s3, s3, s%d" % FT)
        A("s_mul_i32 s%d, s3, 43691" % FT)
        A("s_lshr_b32 s%d, s%d, 18" % (FT, FT))
        A("s_mul_i32 s%d, s%d, 6" % (DT, FT))
        A("s_sub_u32 s%d, s3, s%d" % (DT, DT))
        A("s_lshr_b32 s%d, s%d, 1" % (SP, XCD))
        A("s_and_b32 s3, s%d, 1" % XCD)
        A("s_lshl_b32 s3, s3, 3")
        A("s_lshr_b32 s%d, s%d, 2" % (ST, SLOTR))
        A("s_add_u32 s%d, s%d, s3" % (ST, ST))
        A("s_and_b32 s%d, s%d, 3" % (D3, SLOTR))
        A("s_cmp_ge_u32 s%d, 2" % SP)
        A("s_cselect_b32 s%d, 4, 5" % NF)
        A("s_add_u32 s%d, s%d, 18" % (KT3, NF))
        A("s_mul_i32 s%d, s%d, 5" % (F0, SP))
        A("s_cmp_eq_u32 s%d, 3" % SP)
        A("s_cselect_b32 s%d, 14, s%d" % (F0, F0))

    WR, WC = 40, 41
    KEY3 = 42
    def lane_c23():
        A("v_lshrrev_b32 v5, 2, v2")
        A("v_and_b32 v6, 7, v5")
        A("v_and_b32 v7, 3, v2")
        A("v_lshlrev_b32 v7, 3, v7")
        A("v_lshl_add_u32 v7, v5, 8, v7")
        A("s_lshl_b32 s44, s%d, 2" % WR)
        for aa in range(4):
            A("s_add_u32 s45, s44, %d" % aa)
            A("v_xor_b32 v8, s45, v6")
            A("v_lshl_add_u32 v%d, v8, 5, v7" % (204 + aa))
        A("s_mul_i32 s45, s%d, 6144" % WC)
        A("s_add_u32 s45, s45, 16384")
        A("v_lshlrev_b32 v216, 4, v2")
        A("v_add_u32 v208, s45, v216")
        A("s_lshl_b32 s44, s%d, 1" % WAVE)
        for aa in range(2):
            A("s_add_u32 s45, s44, %d" % aa)
            A("v_xor_b32 v8, s45, v6")
            A("v_lshl_add_u32 v%d, v8, 5, v7" % (209 + aa))
        A("v_and_b32 v3, 15, v2")
        A("v_lshrrev_b32 v4, 4, v2")
        A("v_and_b32 v5, 7, v3")
        A("v_xor_b32 v5, v5, v4")
        A("v_lshlrev_b32 v5, 4, v5")
        A("v_lshl_add_u32 v5, v3, 7, v5")
        A("v_add_u32 v211, 16384, v5")
        A("v_xor_b32 v212, 64, v211")
        A("v_add_u32 v213, 16384, v216")
        A("v_add_u32 v214, 17408, v216")
        A("v_lshlrev_b32 v217, 3, v4")
        A("v_mov_b32 v215, v216")
        if cfg.side:
            A("v_lshrrev_b32 v5, 3, v2")
            A("v_cmp_eq_u32 vcc, 3, v5")
            A("v_add_u32 v5, 0x%x, v215" % (SIDE + 128))
            A("s_nop 0")
            A("v_cndmask_b32 v215, v215, v5, vcc")
    def wrwc():
        A("s_and_b32 s%d, s%d, 1" % (WR, WAVE))
        A("s_lshr_b32 s%d, s%d, 1" % (WC, WAVE))
    RAW = 164; X = 174; TT_ = 220; RS = 1344
    S0, S2, M, MB, RSV = 192, 193, 194, 196, 197
    LA = 238
    def ln_load():
        A("s_lshr_b32 s44, s2, 2")
        A("s_lshl_b32 s44, s44, 5")
        A("s_and_b32 s45, s2, 3")
        A("s_lshl_b32 s45, s45, 2")
        A("s_add_u32 s44, s44, s45")
        A("s_lshr_b32 s45, s%d, 1" % WAVE)
        A("s_lshl_b32 s45, s45, 4")
        A("s_add_u32 s44, s44, s45")
        A("s_and_b32 s45, s%d, 1" % WAVE)
        A("s_lshl_b32 s45, s45, 1")
        A("s_add_u32 s51, s44, s45")
        A("s_mul_i32 s44, s51, 1152")
        A("v_lshrrev_b32 v3, 5, v2")
        A("v_and_b32 v4, 31, v2")
        A("v_mul_u32_u24 v5, 1152, v3")
        A("v_lshl_add_u32 v6, v4, 2, v5")
        A("v_lshl_add_u32 v5, v4, 3, v5")
        A("s_waitcnt lgkmcnt(0)")
        srd(A, 4, PX, SZ_X)
        for j in range(4):
            A("buffer_load_dwordx2 %s, v5, s[4:7], s44 offen offset:%d" % (v(RAW + 2 * j, 2), j * 256))
        A("buffer_load_dword v%d, v6, s[4:7], s44 offen offset:1024" % (RAW + 8))
        A("s_mul_i32 s45, s%d, %d" % (WAVE, 2 * RS))
        A("s_add_u32 s45, s45, %d" % LDS_LN)
        A("v_mul_u32_u24 v%d, %d, v3" % (LA, RS))
        A("v_add_u32 v%d, s45, v%d" % (LA, LA))
        A("v_lshl_add_u32 v195, v4, 2, v%d" % LA)
        A("v_lshl_add_u32 v%d, v4, 3, v%d" % (LA, LA))
        A("v_lshlrev_b32 v198, 3, v3")
        A("v_bfe_u32 v5, v2, 2, 2")
        A("v_mul_u32_u24 v5, %d, v5" % RS)
        A("v_and_b32 v6, 3, v2")
        A("v_lshl_add_u32 v5, v6, 3, v5")
        A("v_lshrrev_b32 v6, 4, v2")
        A("v_lshl_add_u32 v5, v6, 5, v5")
        A("v_add_u32 v%d, %d, v5" % (LA + 1, LDS_LN))
        A("v_and_b32 v5, 15, v2")
        A("v_lshlrev_b32 v5, 4, v5")
        A("v_lshl_add_u32 v199, v6, 11, v5")
        if cfg.side:
            A("s_and_b32 s45, s2, 3")
            A("s_cmp_eq_u32 s45, 1")
            A("s_cselect_b32 s45, 0x%x, 0" % (SIDE + 128))
            A("v_cmp_le_u32 vcc, 128, v5")
            A("v_add_u32 v5, s45, v199")
            A("s_nop 0")
            A("v_cndmask_b32 v199, v199, v5, vcc")
    N = 18
    def unpack(src):
        for j in range(9):
            A("v_lshlrev_b32 v%d, 16, v%d" % (X + 2 * j, src + j))
            A("v_and_b32 v%d, 0xffff0000, v%d" % (X + 2 * j + 1, src + j))
    def sum32(r):
        row16_sum(A, r)
        A("v_mov_b32 v%d, v%d" % (S2, r))
        A("s_nop 1")
        A("v_permlane16_swap_b32 v%d, v%d" % (r, S2))
        A("s_nop 1")
        A("v_add_f32 v%d, v%d, v%d" % (r, r, S2))
    def pk(op, d, a, b, mods=""):
        A("v_pk_%s_f32 %s, %s, %s %s" % (op, v(d, 2), v(a, 2), v(b, 2), mods))
    NEG = "neg_lo:[0,1] neg_hi:[0,1]"
    P0, P2, PM, PB, PR_ = 100, 102, 104, 106, 108
    def layernorm():
        pk("add", P0, X, X + 2); pk("add", P2, X + 4, X + 6)
        for j in range(8, 16, 4):
            pk("add", P0, P0, X + j); pk("add", P2, P2, X + j + 2)
        pk("add", P0, P0, X + 16)
        pk("add", P0, P0, P2)
        A("v_add_f32 v%d, v%d, v%d" % (S0, P0, P0 + 1))
        sum32(S0)
        A("v_mul_f32 v%d, s46, v%d" % (PM, S0))
        A("v_mul_f32 v%d, s46, v%d" % (PM + 1, S0))
        round_bf16(A, MB, PM)
        for j in range(0, N, 2): pk("add", TT_ + j, X + j, PM, NEG)
        A("v_mov_b32 v%d, v%d\nv_mov_b32 v%d, v%d" % (PB, MB, PB + 1, MB))
        pk("mul", P0, TT_, TT_); pk("mul", P2, TT_ + 2, TT_ + 2)
        for j in range(4, N, 2):
            d = P0 if j % 4 == 0 else P2
            A("v_pk_fma_f32 %s, %s, %s, %s" % (v(d, 2), v(TT_ + j, 2), v(TT_ + j, 2), v(d, 2)))
        pk("add", P0, P0, P2)
        A("v_add_f32 v%d, v%d, v%d" % (S0, P0, P0 + 1))
        fill = [("v_pk_add_f32 %s, %s, %s %s" % (v(X + j, 2), v(X + j, 2), v(PB, 2), NEG)) for j in range(0, N, 2)]
        fill += [("v_cvt_pk_bf16_f32 v%d, v%d, v%d" % (RAW + j, X + 2 * j, X + 2 * j + 1)) for j in range(9)]
        def F(n):
            for _ in range(n): A(fill.pop(0))
        for sh in (8, 4, 2, 1):
            F(2)
            A("v_add_f32_dpp v%d, v%d, v%d row_ror:%d row_mask:0xf bank_mask:0xf" % (S0, S0, S0, sh))
        A("v_mov_b32 v%d, v%d" % (S2, S0))
        F(2)
        A("v_permlane16_swap_b32 v%d, v%d" % (S0, S2))
        F(2)
        A("v_add_f32 v%d, v%d, v%d" % (S0, S0, S2))
        A("v_mul_f32 v%d, s46, v%d" % (S0, S0))
        round_bf16(A, S0, S0)
        A("v_add_f32 v%d, s47, v%d" % (S0, S0))
        round_bf16(A, S0, S0)
        A("v_sqrt_f32 v%d, v%d" % (S0, S0))
        F(3)
        round_bf16(A, S0, S0)
        A("v_rcp_f32 v%d, v%d" % (RSV, S0))
        F(len(fill))
        unpack(RAW)
        A("v_mov_b32 v%d, v%d\nv_mov_b32 v%d, v%d" % (PR_, RSV, PR_ + 1, RSV))
        for j in range(0, N, 2): pk("mul", X + j, X + j, PR_)
        for j in range(9): A("v_cvt_pk_bf16_f32 v%d, v%d, v%d" % (RAW + j, X + 2 * j, X + 2 * j + 1))
    def ln_compute():
        srd(A, 8, PWS, SZ_HF + SIDE + 128, WS_HF)
        srd(A, 12, PWS, SZ_ST, WS_ST)
        A("s_mov_b32 s46, 0x%x" % f2u(1.0 / 576))
        A("s_mov_b32 s47, 0x%x" % f2u(1e-5))
        A("s_lshl_b32 s51, s51, 3")
        A("s_lshr_b32 s44, s2, 3")
        A("s_mul_i32 s44, s44, %d" % (36 * 2048))
        A("s_and_b32 s45, s2, 7")
        A("s_lshl_b32 s45, s45, 8")
        A("s_add_u32 s44, s44, s45")
        A("s_mov_b32 s45, 0")
        A("s_waitcnt vmcnt(0)")
        tag_issue(A)
        A.label("ln_loop")
        unpack(RAW)
        layernorm()
        A("s_cmp_lg_u32 s45, 0")
        A("s_cbranch_scc1 ln_out")
        A("s_mov_b32 exec_lo, 1\ns_mov_b32 exec_hi, 1")
        A("buffer_store_dwordx2 v[%d:%d], v198, s[12:15], s51 offen sc1" % (MB, RSV))
        A("s_mov_b64 exec, -1")
        A("s_mov_b32 s45, 1")
        A("s_branch ln_loop")
        A.label("ln_out")
        for j in range(4):
            A("ds_write_b64 v%d, %s offset:%d" % (LA, v(RAW + 2 * j, 2), j * 256))
        A("ds_write_b32 v195, v%d offset:1024" % (RAW + 8))
        tag_check(A)
        A("s_waitcnt lgkmcnt(0)")
    def ln_store():
        sk = A.newlabel("lns")
        A("s_cmp_lg_u32 s%d, 0" % WAVE)
        A("s_cbranch_scc1 %s" % sk)
        HB = 32
        for k in range(9):
            A("ds_read_b64_tr_b16 %s, v%d offset:%d" % (v(HB + 4 * k, 2), LA + 1, k * 128))
            A("ds_read_b64_tr_b16 %s, v%d offset:%d" % (v(HB + 4 * k + 2, 2), LA + 1, k * 128 + 4 * RS))
            if k == 6: A("s_waitcnt lgkmcnt(8)")
        for k in range(9):
            A("s_waitcnt lgkmcnt(%d)" % min(15, 16 - 2 * k))
            A("buffer_store_dwordx4 %s, v199, s[8:11], s44 offen sc1" % v(HB + 4 * k, 4))
            A("s_add_u32 s44, s44, %d" % (4 * 2048))
        A("v_mov_b32 v252, 0\nv_mov_b32 v253, 0\nv_mov_b32 v249, %d" % SIG)
        A("ds_write_b128 v249, v[250:253]")
        A("s_waitcnt lgkmcnt(0)")
        A.label(sk)
    def pubH():
        sk = A.newlabel("ph")
        A("s_cmp_lg_u32 s%d, 0" % WAVE)
        A("s_cbranch_scc1 %s" % sk)
        A("s_lshl_b32 s52, s2, 3")
        A("s_waitcnt vmcnt(0)")
        publish(A, 52)
        stamp(A, cfg, 9)
        A.label(sk)
    A.label("c1_entry")
    ln_load()
    A("s_or_b32 s44, s2, s%d" % WAVE)
    A("s_cbranch_scc1 c1_notag")
    srd(A, 60, PDBG, 256)
    A("s_or_b32 s%d, s%d, 1" % (TAG, TAG))
    A("v_mov_b32 v4, s%d\nv_mov_b32 v5, s%d\nv_mov_b32 v6, 0" % (TAG, TAG + 1))
    A("s_mov_b64 exec, 1")
    A("buffer_store_dwordx2 v[4:5], v6, s[60:63], 0 offen sc1")
    A("s_mov_b64 exec, -1")
    A.label("c1_notag")
    wrwc()
    A("v_and_b32 v3, 15, v2")
    A("v_lshrrev_b32 v4, 4, v2")
    A("v_and_b32 v5, 7, v3")
    A("v_xor_b32 v5, v5, v4")
    A("v_lshlrev_b32 v5, 4, v5")
    A("v_lshl_add_u32 v5, v3, 7, v5")
    A("v_and_b32 v6, 1, v3")
    A("v_lshrrev_b32 v7, 1, v3")
    A("v_and_b32 v8, 6, v7")
    A("v_or_b32 v8, v8, v6")
    A("v_xor_b32 v8, v8, v4")
    A("v_lshlrev_b32 v8, 4, v8")
    A("v_mul_u32_u24 v6, 48, v6")
    A("v_add_u32 v6, v6, v7")
    A("v_lshl_add_u32 v8, v6, 7, v8")
    A("s_lshl_b32 s44, s%d, 13" % WR)
    A("s_mul_i32 s45, s%d, 3072" % WC)
    A("s_add_u32 s45, s45, 16384")
    A("v_add_u32 v200, s44, v5")
    A("v_xor_b32 v201, 64, v200")
    A("v_add_u32 v202, s45, v8")
    A("v_xor_b32 v203, 64, v202")
    A("v_lshlrev_b32 v218, 4, v4")
    A("v_lshl_add_u32 v218, v3, 6, v218")
    CA = 10
    for i in range(4): A("v_add_u32 v%d, s%d, v%d" % (CA + i, RING, 200 + i))
    ACC1 = 32; SETS1 = [80, 108]; RSUM = 136; CSUM = 152; ONES = 20
    A("v_lshlrev_b32 v219, 4, v3")
    if cfg.csb: A("v_lshlrev_b32 v20, 4, v4")
    else:
        for i in range(4): A("v_mov_b32 v%d, 0x3f803f80" % (ONES + i))
    ids23(); lane_c23()
    srd(A, FSRD, PWS, SZ_FL, WS_FL)
    def reads1(st, ks):
        b = SETS1[st]
        P = lambda aa: "ds_read_b128 %s, v%d offset:%d" % (v(b + 4 * aa, 4), CA + ks, aa * 2048)
        Q = lambda xb: "ds_read_b128 %s, v%d offset:%d" % (v(b + 16 + 4 * xb, 4), CA + 2 + ks, xb * 1024)
        return [P(0), Q(0), Q(1), Q(2), P(1), P(2), P(3)]
    def mfmas1(st):
        b = SETS1[st]; m = []
        for aa in range(4):
            for xb in range(3):
                d = v(ACC1 + (aa * 3 + xb) * 4, 4)
                m.append(("%s %s, %s, %s, %s" % (MFMA, d, v(b + 16 + 4 * xb, 4), v(b + 4 * aa, 4), d), max(1 + xb, 3 + aa if aa else 0)))
            if aa < 3 and not cfg.csb:
                d = v(CSUM + 4 * aa, 4)
                m.append(("%s %s, %s, %s, %s" % (MFMA, d, v(b + 16 + 4 * aa, 4), v(ONES, 4), d), 0))
        return m
    def upd1():
        sa = slot_adv(1)
        return [(5, sa[0]), (6, sa[1]), (7, sa[2])] + [(8 + i, "v_add_u32 v%d, s%d, v%d" % (CA + i, RING, 200 + i)) for i in range(4)]
    def only3(fn):
        def f():
            sk = A.newlabel("w3")
            A("s_cmp_lg_u32 s%d, 3" % WAVE)
            A("s_cbranch_scc1 %s" % sk)
            fn()
            A.label(sk)
        return f
    A("s_mul_i32 s44, s%d, 6" % PT)
    A("s_mul_i32 s45, s%d, 3" % WC)
    A("s_add_u32 s44, s44, s45")
    A("s_lshl_b32 s54, s44, 6")
    A("s_add_u32 s54, s54, 16384")
    A("s_lshl_b32 s44, s44, 16")
    A("s_lshl_b32 s45, s%d, 1" % TT)
    A("s_add_u32 s45, s45, s%d" % WR)
    A("s_lshl_b32 s49, s45, 9")
    A("s_lshl_b32 s45, s45, 11")
    A("s_add_u32 s42, s44, s45")
    A("s_add_u32 s43, s42, 65536")
    A("s_add_u32 s48, s42, 131072")
    A("s_lshl_b32 s50, s%d, 4" % PT)
    A("s_add_u32 s50, s50, s%d" % TT)
    A("s_lshl_b32 s50, s50, 2")
    A("s_add_u32 s50, s50, s%d" % WAVE)
    A("s_lshl_b32 s50, s50, 3")
    A("s_add_u32 s50, s50, %d" % FL_G)
    ln_compute()
    stamp(A, cfg, 1)
    A("s_barrier")
    ln_store()
    A("s_sub_u32 s3, s%d, 19" % SLOTR)
    A("s_cmp_lt_u32 s3, 8")
    A("s_cbranch_scc1 ln_lo")
    A("s_barrier")
    stamp(A, cfg, 2)
    BIAS = 24; BF = 224
    def biasld():
        srd(A, 4, PB1, 9216)
        A("s_lshl_b32 s44, s%d, 8" % FT)
        A("s_lshl_b32 s45, s%d, 7" % WR)
        A("s_add_u32 s44, s44, s45")
        for aa in range(4):
            A("buffer_load_dwordx2 %s, v217, s[4:7], s44 offen offset:%d" % (v(BIAS + 2 * aa, 2), aa * 32))
    def biasup():
        for k in range(8):
            A("v_lshlrev_b32 v%d, 16, v%d" % (BF + 2 * k, BIAS + k))
            A("v_and_b32 v%d, 0xffff0000, v%d" % (BF + 2 * k + 1, BIAS + k))
    def statld():
        for ap in range(2):
            A("buffer_load_dwordx4 %s, v219, s[12:15], s49 offen offset:%d sc1" % (v(RSUM + 4 * ap, 4), ap * 256))
        if cfg.csb:
            for xb in range(3):
                A("buffer_load_dwordx4 %s, v20, s[12:15], s54 offen offset:%d sc1" % (v(CSUM + 4 * xb, 4), xb * 64))
    P1 = Phase(A, "c1", reads1, mfmas1, upd1, (0, 3) if cfg.csb else (0, 4), 1)
    P1.first()
    P1.it(pubH)
    P1.loop("_loop", 3)
    P1.it(lambda: (only3(lambda: wide_issue(A))(), biasld()))
    P1.it(only3(lambda: (stamp(A, cfg, 11), wide_check(A), stamp(A, cfg, 14))))
    P1.it(statld)
    P1.tail(capture(A, lambda: srd(A, 12, PWS, SZ_G, WS_G)))
    stamp(A, cfg, 3)
    MN = 80; RR = 88
    A("s_waitcnt vmcnt(0)")
    for aa in range(4):
        for q in range(2):
            A("v_sub_f32 v%d, 0, v%d" % (MN + 2 * aa + q, RSUM + 2 * aa))
            A("v_mov_b32 v%d, v%d" % (RR + 2 * aa + q, RSUM + 2 * aa + 1))
    for ap in range(2):
        for xb in range(3):
            O = 168 + 4 * (ap * 3 + xb)
            hq = [(h, q) for h in range(2) for q in range(2)]
            D_ = lambda h, q: ACC1 + ((2 * ap + h) * 3 + xb) * 4 + 2 * q
            for h, q in hq: A("v_pk_fma_f32 %s, %s, %s, %s" % (v(D_(h, q), 2), v(MN + 2 * (2 * ap + h), 2), v(CSUM + 4 * xb + 2 * q, 2), v(D_(h, q), 2)))
            for h, q in hq: A("v_pk_mul_f32 %s, %s, %s" % (v(D_(h, q), 2), v(D_(h, q), 2), v(RR + 2 * (2 * ap + h), 2)))
            for h, q in hq: A("v_cvt_pk_bf16_f32 v%d, v%d, v%d" % (O + 2 * h + q, D_(h, q), D_(h, q) + 1))
            A("buffer_store_dwordx4 %s, v218, s[12:15], s%d offen offset:%d sc1" % (v(O, 4), (42, 43, 48)[xb], ap * 1024))
    ACC2 = 32; SETS2 = [80, 108]
    biasup()
    A("s_mov_b32 s53, 1")
    A("s_mov_b32 s52, s50")
    A("s_barrier")
    if cfg.gpub:
        A("s_waitcnt vmcnt(0)")
        publish(A, 52)
        A("s_mov_b32 s53, 0")
        A("s_cmp_lt_u32 s%d, 27" % SLOTR)
        A("s_cbranch_scc1 c2_main")
    else:
        A("s_cmp_lt_u32 s%d, 27" % SLOTR)
        A("s_cbranch_scc1 c2_main")
        A("s_waitcnt vmcnt(0)")
        publish(A, 52)
    A("s_branch scan_entry")
    A.label("c2_entry")
    biasup()
    A("s_mov_b32 s53, 0")
    A("s_barrier")
    A.label("c2_main")
    for i in range(5): A("v_add_u32 v%d, s%d, v%d" % (CA + i, RING, 204 + i))
    A("s_barrier")
    stamp(A, cfg, 4)
    def reads2(st, ks):
        b = SETS2[st]
        P = lambda aa: ["ds_read_b64_tr_b16 %s, v%d offset:%d" % (v(b + 4 * aa, 2), CA + aa, ks * 8192),
                        "ds_read_b64_tr_b16 %s, v%d offset:%d" % (v(b + 4 * aa + 2, 2), CA + aa, ks * 8192 + 4096)]
        Q = lambda xb: ["ds_read_b128 %s, v%d offset:%d" % (v(b + 16 + 4 * xb, 4), CA + 4, xb * 2048 + ks * 1024)]
        if cfg.ord2 == 2: return P(0) + Q(0) + P(1) + P(2) + P(3) + Q(1) + Q(2)
        return P(0) + Q(0) + Q(1) + Q(2) + P(1) + P(2) + P(3)
    def mfmas2(st):
        b = SETS2[st]; m = []
        if cfg.ord2 == 2:
            order = [(aa if xb % 2 == 0 else 3 - aa, xb) for xb in range(3) for aa in range(4)]
            need = lambda aa, xb: max(2 + 2 * aa if aa else 2, 8 + xb if xb else 0)
        else:
            order = [(aa, xb if (cfg.ord2 == 0 or aa % 2 == 0) else 2 - xb) for aa in range(4) for xb in range(3)]
            need = lambda aa, xb: max(2 + xb, 4 + 2 * aa if aa else 0)
        for aa, xb in order:
            d = v(ACC2 + (aa * 3 + xb) * 4, 4)
            m.append(("%s %s, %s, %s, %s" % (MFMA, d, v(b + 4 * aa, 4), v(b + 16 + 4 * xb, 4), d), need(aa, xb)))
        return m
    def upd2():
        sa = slot_adv(2)
        U = lambda i: "v_add_u32 v%d, s%d, v%d" % (CA + i, RING, 204 + i)
        if cfg.ord2 == 2: return [(0, sa[0]), (1, sa[1]), (2, sa[2]), (4, U(0)), (5, U(1)), (7, U(2)), (9, U(3)), (11, U(4))]
        return [(0, sa[0]), (1, sa[1]), (2, sa[2]), (4, U(0)), (5, U(4)), (7, U(1)), (9, U(2)), (11, U(3))]
    def pubG():
        sk = A.newlabel("pg")
        A("s_cmp_eq_u32 s53, 0")
        A("s_cbranch_scc1 %s" % sk)
        A("s_waitcnt vmcnt(0)")
        publish(A, 52)
        A.label(sk)
    def gelu_setup():
        c1 = -2.0 * math.sqrt(2.0 / math.pi) * math.log2(math.e); c2 = c1 * 0.044715
        for (r, val) in ((28, c1), (136, c2), (138, 1.0)):
            A("v_mov_b32 v%d, 0x%x\nv_mov_b32 v%d, 0x%x" % (r, f2u(val), r + 1, f2u(val)))
        srd(A, 12, PWS, SZ_UF + SIDE + 128, WS_UF)
        A("s_lshl_b32 s44, s%d, 1" % FT)
        A("s_add_u32 s44, s44, s%d" % WR)
        A("s_lshl_b32 s45, s%d, 1" % DT)
        A("s_add_u32 s45, s45, s%d" % WC)
        A("s_mul_i32 s46, s44, 12")
        A("s_add_u32 s46, s46, s45")
        A("s_mul_i32 s46, s46, %d" % (3 * PAIR))
        A("s_add_u32 s47, s46, 4096")
        A("s_mul_i32 s48, s44, 3641")
        A("s_lshr_b32 s48, s48, 16")
        A("s_mul_i32 s49, s45, 21846")
        A("s_lshr_b32 s49, s49, 16")
        A("s_mul_i32 s50, s48, 18")
        A("s_sub_u32 s50, s44, s50")
        A("s_sub_u32 s50, s50, s49")
        A("s_mul_i32 s50, s50, 3")
        A("s_add_u32 s50, s50, s45")
        A("s_lshl_b32 s50, s50, 3")
        A("s_lshl_b32 s49, s49, 2")
        A("s_add_u32 s49, s49, s48")
        A("s_lshl_b32 s49, s49, 9")
        A("s_add_u32 s52, s50, s49")
        A("s_add_u32 s52, s52, %d" % FL_U)

    P2 = Phase(A, "c2", reads2, mfmas2, upd2, (0, 2, 4) if cfg.ord2 == 2 else (0, 3, 6), 2)
    assert cfg.ord2 == 0
    P2.first(cinit=(lambda i: v(BF + 4 * (i // 3), 4)) if cfg.binit else None)
    pubG(); stamp(A, cfg, 10)
    P2.loop("_loop", 30)
    P2.tail(capture(A, gelu_setup))
    stamp(A, cfg, 5)
    if not cfg.upub:
        A("v_mov_b32 v16, %d" % SIG)
        A("ds_read_b32 v16, v16 offset:8")
        A("s_waitcnt lgkmcnt(0)")
    if cfg.xpos == 0: A("s_barrier")
    else: A("s_nop 7")
    T = 80
    for ap in range(2):
        for xb in range(3):
            if cfg.xpos and ap * 3 + xb == cfg.xpos: A("s_barrier")
            prs = [ACC2 + ((ap * 2 + h) * 3 + xb) * 4 + 2 * q for h in range(2) for q in range(2)]
            if not cfg.binit:
                for i, x in enumerate(prs): A("v_pk_add_f32 %s, %s, %s" % (v(x, 2), v(x, 2), v(BF + ap * 8 + 2 * i, 2)))
            for i, x in enumerate(prs): A("v_pk_mul_f32 %s, %s, %s" % (v(T + 2 * i, 2), v(x, 2), v(x, 2)))
            for i, x in enumerate(prs): A("v_pk_fma_f32 %s, %s, v[136:137], v[28:29]" % (v(T + 2 * i, 2), v(T + 2 * i, 2)))
            for i, x in enumerate(prs): A("v_pk_mul_f32 %s, %s, %s" % (v(T + 2 * i, 2), v(T + 2 * i, 2), v(x, 2)))
            for i in range(8): A("v_exp_f32 v%d, v%d" % (T + i, T + i))
            for i, x in enumerate(prs): A("v_pk_add_f32 %s, %s, v[138:139]" % (v(T + 2 * i, 2), v(T + 2 * i, 2)))
            for i in range(8): A("v_rcp_f32 v%d, v%d" % (T + i, T + i))
            for i, x in enumerate(prs): A("v_pk_mul_f32 %s, %s, %s" % (v(T + 2 * i, 2), v(T + 2 * i, 2), v(x, 2)))
            O = 140 + 4 * (ap * 3 + xb)
            for i in range(4):
                A("v_cvt_pk_bf16_f32 v%d, v%d, v%d" % (O + i, T + 2 * i, T + 2 * i + 1))
            off = xb * 2048 + ap * 1024
            A("buffer_store_dwordx4 %s, v215, s[12:15], s%d offen offset:%d sc1" % (v(O, 4), 46 + off // 4096, off % 4096))
    ACC3 = 24; SETS3 = [96, 140]
    A("s_mov_b32 s53, 1")
    if not cfg.upub:
        A("v_readfirstlane_b32 s44, v16")
        A("s_cmp_lg_u32 s44, 0")
        A("s_cbranch_scc1 c3_main")
    pubG()
    A("s_mov_b32 s53, 0")
    A("s_branch c3_main")
    A.label("c3_entry")
    wrwc(); lane_c23()
    A("s_mov_b32 s53, 0")
    A.label("c3_main")
    A("s_barrier")
    A("s_barrier")
    stamp(A, cfg, 6)
    for i in range(4): A("v_add_u32 v%d, s%d, v%d" % (CA + i, RING, 209 + i))
    def reads3(st, ks):
        b = SETS3[st]; r = ["ds_read_b128 %s, v%d offset:0" % (v(b + 8, 4), CA + 2 + ks)]
        for aa in range(2):
            r.append("ds_read_b64_tr_b16 %s, v%d offset:%d" % (v(b + 4 * aa, 2), CA + aa, ks * 8192))
            r.append("ds_read_b64_tr_b16 %s, v%d offset:%d" % (v(b + 4 * aa + 2, 2), CA + aa, ks * 8192 + 4096))
        for xb in range(1, 9):
            if cfg.hack3 and xb % 2: continue
            r.append("ds_read_b128 %s, v%d offset:%d" % (v(b + 8 + 4 * xb, 4), CA + 2 + ks, xb * 2048))
        return r
    def mfmas3(st):
        b = SETS3[st]; m = []
        order = [(xb, aa if (cfg.ord3 == 0 or xb % 2 == 0) else 1 - aa) for xb in range(9) for aa in range(2)]
        for xb, aa in order:
            if True:
                d = v(ACC3 + (xb * 2 + aa) * 4, 4)
                m.append(("%s %s, %s, %s, %s" % (MFMA, d, v(b + 8 + 4 * (xb & ~1 if cfg.hack3 else xb), 4), v(b + 4 * aa, 4), d), max(2 + 2 * aa, (4 + xb // 2 if cfg.hack3 else 4 + xb) if xb else 0)))
        return m
    def upd3():
        sa = slot_adv(3)
        U = lambda i: "v_add_u32 v%d, s%d, v%d" % (CA + i, RING, 209 + i)
        return [(7, sa[0]), (8, sa[1]), (9, sa[2]), (11, U(0)), (13, U(1)), (14, U(2)), (15, U(3))]
    def umode():
        A("v_mov_b32 v211, v213\nv_mov_b32 v212, v214")
        A("v_add_u32 v%d, s%d, v213" % (CA + 2, RING))
        A("v_add_u32 v%d, s%d, v214" % (CA + 3, RING))
    def exsetup():
        srd(A, 12, PWS, SZ_EX, WS_EX)
        A("s_lshl_b32 s44, s%d, 2" % ST)
        A("s_add_u32 s44, s44, s%d" % D3)
        A("s_lshl_b32 s44, s44, 2")
        A("s_add_u32 s44, s44, s%d" % WAVE)
        A("s_lshl_b32 s52, s44, 7")
        A("s_lshl_b32 s45, s%d, 3" % SP)
        A("s_add_u32 s52, s52, s45")
        A("s_add_u32 s52, s52, %d" % FL_X)
        A("s_lshl_b32 s44, s44, 2")
        A("s_add_u32 s44, s44, s%d" % SP)
        A("s_mul_i32 s44, s44, 9216")

    P3 = Phase(A, "c3", reads3, mfmas3, upd3, (0, 6), 3)
    P3.first()
    pubG(); stamp(A, cfg, 12)
    P3.loop("_f", "s_sub_u32 s%d, s%d, 2" % (CNT, NF))
    P3.it(lambda: (umode(), stamp(A, cfg, 13)))
    P3.loop("_u", 17)
    def xst(xb):
        o = 96 + 4 * xb
        r = ["v_cvt_pk_bf16_f32 v%d, v%d, v%d" % (o + k, ACC3 + 8 * xb + 2 * k, ACC3 + 8 * xb + 2 * k + 1) for k in range(4)]
        r.append("buffer_store_dwordx4 %s, v216, s[12:15], s44 offen offset:%d sc1" % (v(o, 4), (xb % 4) * 1024))
        if xb % 4 == 3: r.append("s_add_u32 s44, s44, 4096")
        return r
    def xow(xb):
        return ["ds_write_b128 v16, %s offset:%d" % (v(ACC3 + 4 * t, 4), t * 1024) for t in (2 * xb, 2 * xb + 1)]
    if cfg.xint:
        work = capture(A, exsetup) + ["v_add_u32 v16, %d, v216" % LDS_OWN, "s_cmp_eq_u32 s%d, s%d" % (WAVE, SP)]
        group(A, mfmas3(0), reads3(1, 1), 13, spread(work, 18, 0, 1), (0, 6))
        A("s_cbranch_scc1 c3_own")
        def last(fn):
            ex = []
            for xb in range(9):
                ex += [(2 * xb + 9, t) for t in fn(xb)] if 2 * xb + 9 <= 17 else []
            group(A, mfmas3(1), [], 13, ex, (0, 6))
            for xb in range(5, 9):
                if xb == 8 or (xb == 7 and fn is xow): A("s_nop 3")
                for t in fn(xb): A(t)
        last(xst)
        stamp(A, cfg, 7)
    else:
        P3.tail(capture(A, exsetup))
        stamp(A, cfg, 7)
        A("s_nop 3")
        A("s_cmp_eq_u32 s%d, s%d" % (WAVE, SP))
        A("s_cbranch_scc1 c3_own")
        for xb in range(9):
            for t in xst(xb): A(t)
    A("s_waitcnt vmcnt(0)")
    publish(A, 52)
    if cfg.stamp:
        A("s_barrier")
        A("s_branch k_done")
    A("s_endpgm")
    A.label("c3_own")
    if cfg.xint:
        last(xow)
        stamp(A, cfg, 7)
    else:
        A("v_add_u32 v16, %d, v216" % LDS_OWN)
        for xb in range(9):
            for t in xow(xb): A(t)
    A("s_waitcnt lgkmcnt(0)")
    A("s_barrier")
    A("s_branch k_done")

    A.label("hi_entry")
    A("s_sub_u32 s3, s%d, 19" % SLOTR)
    A("s_cmp_lt_u32 s3, 8")
    A("s_cbranch_scc1 ln_hi")
    LW = 23
    M0P, M0Q = 40, 41
    OP, OQ = 42, 43
    A("s_sub_u32 s%d, s%d, 4" % (LW, WAVE))
    A("v_lshrrev_b32 v3, 3, v2")
    A("v_and_b32 v4, 7, v2")
    A("v_xor_b32 v6, v4, v3")
    A("s_movk_i32 s44, 1152")
    A("v_mul_lo_u32 v5, v3, s44")
    A("v_lshlrev_b32 v8, 1, v5")
    A("v_lshl_add_u32 v10, v6, 4, v8")
    A("s_lshr_b32 s44, s%d, 1" % LW)
    A("v_and_b32 v7, 6, v3")
    A("v_or_b32 v7, s44, v7")
    A("v_xor_b32 v7, v4, v7")
    A("v_lshl_add_u32 v14, v7, 4, v5")
    for m in range(1, 4):
        A("v_add_u32 v%d, 0x%x, v10" % (10 + m, (16 * (m & 1) + (m >> 1)) * 1152 - (m & 1) * 1024))
    for m in range(1, 3):
        A("v_add_u32 v%d, 0x%x, v14" % (14 + m, m * (8 * 1152 - 1024)))
    A("s_lshl_b32 s%d, s%d, 7" % (OP, TT))
    A("s_lshl_b32 s45, s%d, 5" % LW)
    A("s_add_u32 s%d, s%d, s45" % (OP, OP))
    A("s_mul_i32 s%d, s%d, 1152" % (OP, OP))
    A("s_mul_i32 s%d, s%d, 48" % (OQ, PT))
    A("s_and_b32 s45, s%d, 1" % LW)
    A("s_mul_i32 s45, s45, 24")
    A("s_add_u32 s%d, s%d, s45" % (OQ, OQ))
    A("s_mul_i32 s%d, s%d, 1152" % (OQ, OQ))
    A("s_lshl_b32 s%d, s%d, 12" % (M0P, LW))
    A("s_mul_i32 s%d, s%d, 3072" % (M0Q, LW))
    A("s_add_u32 s%d, s%d, 16384" % (M0Q, M0Q))
    if cfg.rot1:
        A("s_lshl_b32 s46, s%d, 2" % TT)
        A("s_add_u32 s46, s46, s%d" % PT)
        A("s_mul_i32 s47, s46, 7282")
        A("s_lshr_b32 s47, s47, 16")
        A("s_mul_i32 s47, s47, 9")
        A("s_sub_u32 s46, s46, s47")
        A("s_lshl_b32 s47, s46, 7")
        A("s_add_u32 s%d, s%d, s47" % (OP, OP))
        A("s_add_u32 s%d, s%d, s47" % (OQ, OQ))
    A("s_waitcnt lgkmcnt(0)")
    srd(A, 4, PX, SZ_X)
    A("s_cmp_ge_u32 s%d, 2" % LW)
    A("s_cselect_b32 s8, s%d, s%d" % (PBIM, PBRE))
    A("s_cselect_b32 s9, s%d, s%d" % (PBIM + 1, PBRE + 1))
    A("s_mov_b32 s10, %d" % SZ_C)
    A("s_mov_b32 s11, 0x00020000")
    def issue1():
        A("s_add_u32 m0, s%d, s%d" % (RING, M0P))
        A("s_add_u32 s45, s%d, s%d" % (RING, M0Q))
        for m in range(4):
            if m == 2:
                A("s_add_u32 m0, m0, 2048")
                A("s_nop 0")
            A("buffer_load_dwordx4 v%d, s[4:7], s%d offen offset:%d lds" % (10 + m, OP, (m & 1) * 1024))
        A("s_mov_b32 m0, s45")
        A("s_add_u32 s%d, s%d, 128" % (OP, OP))
        for m in range(3):
            A("buffer_load_dwordx4 v%d, s[8:11], s%d offen offset:%d lds" % (14 + m, OQ, m * 1024))
        A("s_add_u32 s%d, s%d, 128" % (OQ, OQ))
        if cfg.rot1:
            A("s_add_u32 s46, s46, 1")
            A("s_cmp_eq_u32 s46, 9")
            A("s_cselect_b32 s47, 1152, 0")
            A("s_sub_u32 s%d, s%d, s47" % (OP, OP))
            A("s_sub_u32 s%d, s%d, s47" % (OQ, OQ))
        for t in slot_adv(1): A(t)
    def lane23():
        A("v_lshrrev_b32 v3, 4, v2")
        A("v_and_b32 v4, 15, v2")
        A("v_lshlrev_b32 v6, 1, v3")
        A("v_xor_b32 v7, v4, v6")
        A("v_xor_b32 v8, 8, v7")
        for (b, stride) in ((20, 9216), (24, 4096)):
            A("s_movk_i32 s44, %d" % stride)
            A("v_mul_lo_u32 v5, v3, s44")
            A("v_lshl_add_u32 v%d, v7, 4, v5" % b)
            A("v_lshl_add_u32 v%d, v8, 4, v5" % (b + 1))
            D = 4 * stride - 1024
            A("v_add_u32 v%d, 0x%x, v%d" % (b + 2, 2 * D, b))
            A("v_add_u32 v%d, 0x%x, v%d" % (b + 3, 3 * D, b + 1))
            A("v_add_u32 v%d, 0x%x, v%d" % (b + 1, D, b + 1))
        A("v_lshlrev_b32 v28, 4, v2")
        if cfg.side:
            A("v_lshrrev_b32 v5, 3, v2")
            A("v_cmp_eq_u32 vcc, 3, v5")
            A("v_add_u32 v5, 0x%x, v28" % (SIDE + 128))
            A("s_nop 0")
            A("v_cndmask_b32 v28, v28, v5, vcc")
        A("v_lshrrev_b32 v3, 3, v2")
        A("v_and_b32 v4, 7, v2")
        A("v_xor_b32 v4, v4, v3")
        A("s_movk_i32 s44, 1152")
        A("v_mul_lo_u32 v5, v3, s44")
        A("v_lshl_add_u32 v30, v4, 4, v5")
        for m in range(1, 4):
            A("v_add_u32 v%d, 0x%x, v30" % (30 + m, m * (8 * 1152 - 1024)))
    B2P, B2Q, N2, M6 = 48, 49, 50, 51
    def setup2():
        A("s_mul_i32 s%d, s%d, %d" % (B2P, LW, 16 * 9216))
        A("s_lshl_b32 s44, s%d, 8" % FT)
        A("s_add_u32 s%d, s%d, s44" % (B2P, B2P))
        A("s_mul_i32 s%d, s%d, 12" % (B2Q, DT))
        A("s_mul_i32 s44, s%d, 3" % LW)
        A("s_add_u32 s%d, s%d, s44" % (B2Q, B2Q))
        A("s_lshl_b32 s%d, s%d, 10" % (B2Q, B2Q))
        A("s_mov_b32 s%d, 0\ns_mov_b32 s%d, 0" % (N2, M6))
        tabset()
    def tabset():
        if not cfg.tab2: return
        for dt in range(6):
            order = sorted(range(16), key=lambda p: (p - cfg.tab2 - 0.5) if (p % 6 == dt and p >= cfg.tab2) else p)
            val = sum(p << (4 * i) for i, p in enumerate(order))
            if dt == 0:
                A("s_mov_b32 s56, 0x%x\ns_mov_b32 s57, 0x%x" % (val & 0xffffffff, val >> 32))
            else:
                A("s_cmp_eq_u32 s%d, %d" % (DT, dt))
                A("s_cselect_b32 s56, 0x%x, s56" % (val & 0xffffffff))
                A("s_cselect_b32 s57, 0x%x, s57" % (val >> 32))
    def srd2():
        srd(A, 4, PW1, SZ_W)
        srd(A, 8, PWS, SZ_HF + SIDE + 128, WS_HF)
    par2 = [0]
    def issue2(which="WX", adv=True):
        odd = par2[0] & 1
        if adv: par2[0] += 1
        if cfg.tab2:
            A("s_and_b32 s44, s56, 15")
            A("s_lshl_b32 s44, s44, 1")
            if odd: A("s_add_u32 s44, s44, 1")
        elif cfg.pair2:
            A("s_add_u32 s44, s%d, 12" % N2)
            A("s_lshl_b32 s45, s%d, 1" % M6)
            if odd: A("s_add_u32 s45, s45, 1")
            A("s_cmp_lt_u32 s44, 32")
            A("s_cselect_b32 s44, s44, s45")
            A("s_cmp_eq_u32 s%d, s%d" % (M6, DT))
            A("s_cselect_b32 s44, s44, s%d" % N2)
        elif cfg.rot2 in (2, 4):
            R = cfg.rot2; ADV = cfg.adv2
            A("s_add_u32 s45, s%d, s%d" % (FT, DT))
            A("s_add_u32 s45, s45, s%d" % N2)
            A("s_and_b32 s45, s45, %d" % (R - 1))
            A("s_cselect_b32 s44, 0, %d" % ADV)
            A("s_add_u32 s44, s44, s%d" % N2)
            A("s_and_b32 s44, s44, 31")
        elif cfg.rot2:
            A("s_add_u32 s44, s%d, 6" % N2)
            A("s_cmp_lt_u32 s44, 32")
            A("s_cselect_b32 s44, s44, s%d" % M6)
            A("s_cmp_eq_u32 s%d, s%d" % (M6, DT))
            A("s_cselect_b32 s44, s44, s%d" % N2)
        else:
            A("s_mov_b32 s44, s%d" % N2)
        A("s_mul_i32 s%d, s44, %d" % (OP, 64 * 9216))
        A("s_add_u32 s%d, s%d, s%d" % (OP, OP, B2P))
        A("s_mul_i32 s%d, s44, %d" % (OQ, 36 * PAIR))
        A("s_add_u32 s%d, s%d, s%d" % (OQ, OQ, B2Q))
        def W():
            A("s_add_u32 m0, s%d, s%d" % (RING, M0P))
            A("s_nop 0")
            for m in range(4):
                A("buffer_load_dwordx4 v%d, s[4:7], s%d offen offset:%d lds" % (20 + m, OP, m * 1024))
        def X():
            A("s_add_u32 m0, s%d, s%d" % (RING, M0Q))
            A("s_nop 0")
            for m in range(3):
                A("buffer_load_dwordx4 v28, s[8:11], s%d offen offset:%d %s lds" % (OQ, m * 1024, HL))
        if which == "W": W()
        elif which == "X": X()
        elif (cfg.pair2 or cfg.tab2) and not odd: X(); W()
        else: W(); X()
        if not adv: return
        if cfg.tab2 and odd: A("s_lshr_b64 s[56:57], s[56:57], 4")
        A("s_add_u32 s%d, s%d, 1" % (N2, N2))
        if odd or not cfg.pair2:
            A("s_add_u32 s%d, s%d, 1" % (M6, M6))
            A("s_cmp_eq_u32 s%d, 6" % M6)
            A("s_cselect_b32 s%d, 0, s%d" % (M6, M6))
        for t in slot_adv(2): A(t)
    B3P, B3C, B3U, N3, PH3, M0X, M0Q3 = 52, 53, 54, 55, 46, 47, 29
    def setup3():
        A("s_lshl_b32 s%d, s%d, 16" % (B3P, LW))
        A("s_lshl_b32 s44, s%d, 8" % ST)
        A("s_add_u32 s%d, s%d, s44" % (B3P, B3P))
        A("s_mul_i32 s%d, s%d, %d" % (B3C, D3, 144 * 1152))
        A("s_mul_i32 s%d, s%d, %d" % (B3U, D3, 9 * PAIR))
        A("s_mul_i32 s44, s%d, %d" % (SP, 18 * 36 * PAIR))
        A("s_add_u32 s%d, s%d, s44" % (B3U, B3U))
        A("s_mov_b32 s%d, s%d" % (N3, F0))
        A("s_add_u32 s%d, s%d, s%d" % (PH3, D3, ST))
        A("s_and_b32 s%d, s%d, 3" % (PH3, PH3))
        A("s_lshl_b32 s%d, s%d, 10" % (M0X, LW))
        A("s_add_u32 s%d, s%d, %d" % (M0X, M0X, 32768))
        A("s_add_u32 s%d, s%d, 16384" % (M0Q3, M0P))
    def issue3f(extra):
        srd(A, 4, PWS, SZ_HT, WS_HT)
        A("s_cmp_ge_u32 s%d, 9" % N3)
        A("s_cselect_b32 s8, s%d, s%d" % (PCIM, PCRE))
        A("s_cselect_b32 s9, s%d, s%d" % (PCIM + 1, PCRE + 1))
        A("s_cselect_b32 s44, 9, 0")
        A("s_mov_b32 s10, %d" % SZ_C)
        A("s_mov_b32 s11, 0x00020000")
        A("s_lshl_b32 s%d, s%d, 18" % (OP, N3))
        A("s_add_u32 s%d, s%d, s%d" % (OP, OP, B3P))
        A("s_add_u32 m0, s%d, s%d" % (RING, M0P))
        A("s_sub_u32 s44, s%d, s44" % N3)
        for m in range(4):
            A("buffer_load_dwordx4 v%d, s[4:7], s%d offen offset:%d %s lds" % (24 + m, OP, m * 1024, HL))
        A("s_lshl_b32 s44, s44, 7")
        A("s_add_u32 s44, s44, s%d" % B3C)
        A("s_mul_i32 s%d, s%d, %d" % (OQ, LW, 32 * 1152))
        A("s_add_u32 m0, s%d, s%d" % (RING, M0Q3))
        A("s_add_u32 s%d, s%d, s44" % (OQ, OQ))
        for m in range(4):
            A("buffer_load_dwordx4 v%d, s[8:11], s%d offen offset:%d lds" % (30 + m, OQ, m * 1024))
        if extra:
            A("s_mul_i32 s%d, s%d, %d" % (OQ, LW, 8 * 1152))
            A("s_add_u32 s44, s44, %d" % (128 * 1152))
            A("s_add_u32 m0, s%d, s%d" % (RING, M0X))
            A("s_add_u32 s%d, s%d, s44" % (OQ, OQ))
            A("buffer_load_dwordx4 v30, s[8:11], s%d offen lds" % OQ)
        A("s_add_u32 s%d, s%d, 1" % (N3, N3))
        for t in slot_adv(3): A(t)
    def switch3u():
        srd(A, 4, PW2, SZ_W)
        srd(A, 8, PWS, SZ_UF + SIDE + 128, WS_UF)
        A("s_mul_i32 s44, s%d, %d" % (SP, 18 * 262144))
        A("s_add_u32 s%d, s%d, s44" % (B3P, B3P))
        A("s_mov_b32 s%d, 0" % N3)
    par3 = [0]
    def issue3u(extra, which="WX"):
        odd = par3[0] & 1; par3[0] += 1
        if cfg.pair3:
            A("s_bfe_u32 s45, s%d, 0x20001" % N3)
            A("s_add_u32 s44, s%d, 8" % N3)
            A("s_and_b32 s%d, s%d, 7" % (OP, N3))
            A("s_cmp_lt_u32 s44, 18")
            A("s_cselect_b32 s44, s44, s%d" % OP)
            A("s_cmp_eq_u32 s45, s%d" % PH3)
            A("s_cselect_b32 s44, s44, s%d" % N3)
        elif cfg.rot3:
            A("s_and_b32 s45, s%d, 3" % N3)
            A("s_add_u32 s44, s%d, 4" % N3)
            A("s_cmp_lt_u32 s44, 18")
            A("s_cselect_b32 s44, s44, s45")
            A("s_cmp_eq_u32 s45, s%d" % PH3)
            A("s_cselect_b32 s44, s44, s%d" % N3)
        else:
            A("s_mov_b32 s44, s%d" % N3)
        A("s_lshl_b32 s%d, s44, 18" % OP)
        A("s_add_u32 s%d, s%d, s%d" % (OP, OP, B3P))
        A("s_mul_i32 s45, s44, %d" % (36 * PAIR))
        A("s_add_u32 s45, s45, s%d" % B3U)
        A("s_add_u32 s%d, s45, s%d" % (OQ, M0P))
        if extra:
            A("s_add_u32 s45, s45, s%d" % M0X)
            A("s_sub_u32 s45, s45, 16384")
        def W():
            A("s_add_u32 m0, s%d, s%d" % (RING, M0P))
            A("s_nop 0")
            for m in range(4):
                A("buffer_load_dwordx4 v%d, s[4:7], s%d offen offset:%d lds" % (24 + m, OP, m * 1024))
        def X():
            A("s_add_u32 m0, s%d, s%d" % (RING, M0Q3))
            A("s_nop 0")
            for m in range(4):
                A("buffer_load_dwordx4 v28, s[8:11], s%d offen offset:%d %s lds" % (OQ, m * 1024, HL))
            if extra:
                A("s_add_u32 m0, s%d, s%d" % (RING, M0X))
                A("s_nop 0")
                A("buffer_load_dwordx4 v28, s[8:11], s45 offen %s lds" % HL)
        if which == "W": W()
        elif which == "X": X()
        elif cfg.pair3 and not odd: X(); W()
        else: W(); X()
        A("s_add_u32 s%d, s%d, 1" % (N3, N3))
        for t in slot_adv(3): A(t)
    def step(wait, issue):
        if issue and cfg.hoist:
            mark = len(A.lines)
            issue()
            body = A.lines[mark:]; del A.lines[mark:]
            k = 0
            while k < len(body) and body[k].strip().startswith("s_") and not body[k].strip().startswith(("s_cbranch", "s_branch")): k += 1
            A.lines += body[:k]
            A("s_waitcnt vmcnt(%d)" % wait)
            A("s_barrier")
            A.lines += body[k:]
            return
        A("s_waitcnt vmcnt(%d)" % wait)
        A("s_barrier")
        if issue: issue()
    def lloop(label, count, wait, issue, unroll=1):
        if isinstance(count, int): A("s_mov_b32 s%d, %d" % (CNT, count))
        else: A(count)
        align(A)
        A.label(label)
        for _ in range(unroll): step(wait, issue)
        A("s_sub_u32 s%d, s%d, 1" % (CNT, CNT))
        A("s_cmp_lg_u32 s%d, 0" % CNT)
        A("s_cbranch_scc1 %s" % label)
    def fast_loop(label, count, wait, sel, ph, vW, nX, strideW, bW, bQ, m0q, extra):
        QA = (OQ, 63); XA = (45, 3); MQ = (56, 57); MX = (58, 59)
        def prep(k):
            sel()
            if strideW == 262144: A("s_lshl_b32 s%d, s44, 18" % OP)
            else: A("s_mul_i32 s%d, s44, %d" % (OP, strideW))
            A("s_add_u32 s%d, s%d, s%d" % (OP, OP, bW))
            A("s_mul_i32 s44, s44, %d" % (36 * PAIR))
            A("s_add_u32 s%d, s44, s%d" % (QA[k], bQ))
            if extra:
                A("s_add_u32 s%d, s44, s%d" % (XA[k], extra))
                A("s_add_u32 s%d, s%d, s%d" % (MX[k], RING, M0X))
            A("s_add_u32 s%d, s%d, s%d" % (MQ[k], RING, m0q))
            A("s_add_u32 s62, s%d, s%d" % (RING, M0P))
            for t in slot_adv(ph): A(t)
        def body(k, last):
            A("s_mov_b32 m0, s62")
            A("s_waitcnt vmcnt(%d)" % wait)
            A("s_barrier")
            for m in range(4):
                A("buffer_load_dwordx4 v%d, s[4:7], s%d offen offset:%d lds" % (vW + m, OP, m * 1024))
            A("s_mov_b32 m0, s%d" % MQ[k])
            if not last: prep(1 - k)
            else: A("s_nop 0")
            if k == 1 and not last:
                A("s_sub_u32 s%d, s%d, 1" % (CNT, CNT))
                A("s_cmp_lg_u32 s%d, 0" % CNT)
            for m in range(nX):
                A("buffer_load_dwordx4 v28, s[8:11], s%d offen offset:%d %s lds" % (QA[k], m * 1024, HL))
            if extra:
                A("s_mov_b32 m0, s%d" % MX[k])
                A("s_nop 0")
                A("buffer_load_dwordx4 v28, s[8:11], s%d offen %s lds" % (XA[k], HL))
        prep(0)
        A("s_mov_b32 s%d, %d" % (CNT, count - 1))
        A.label(label)
        body(0, False); body(1, False)
        A("s_cbranch_scc1 %s" % label)
        body(0, False); body(1, True)
    def sel2():
        A("s_add_u32 s44, s%d, 6" % N2)
        A("s_cmp_lt_u32 s44, 32")
        A("s_cselect_b32 s44, s44, s%d" % M6)
        A("s_cmp_eq_u32 s%d, s%d" % (M6, DT))
        A("s_cselect_b32 s44, s44, s%d" % N2)
        A("s_add_u32 s%d, s%d, 1" % (N2, N2))
        A("s_add_u32 s%d, s%d, 1" % (M6, M6))
        A("s_cmp_eq_u32 s%d, 6" % M6)
        A("s_cselect_b32 s%d, 0, s%d" % (M6, M6))
    def sel3():
        A("s_and_b32 s%d, s%d, 3" % (OP, N3))
        A("s_add_u32 s44, s%d, 4" % N3)
        A("s_cmp_lt_u32 s44, 18")
        A("s_cselect_b32 s44, s44, s%d" % OP)
        A("s_cmp_eq_u32 s%d, s%d" % (OP, PH3))
        A("s_cselect_b32 s44, s44, s%d" % N3)
        A("s_add_u32 s%d, s%d, 1" % (N3, N3))
    issue1(); issue1()
    ids23(); lane23(); setup2()
    if cfg.pro == 5:
        issue1(); issue1(); issue1()
        step(28, None); step(21, None)
    elif cfg.pro == 4:
        issue1(); issue1()
        step(21, issue1); step(21, None)
    else:
        issue1()
        step(14, issue1); step(14, issue1)
    lloop("l1_loop", 4, 14, issue1)
    A("s_cmp_ge_u32 s%d, 27" % SLOTR)
    A("s_cbranch_scc1 l1_c")
    srd2()
    step(14, lambda: issue2("W", False))
    step(11, lambda: issue2("X"))
    step(7, lambda: (issue2(), issue2()))
    setup3()
    step(14, issue2); step(14, issue2)
    A("s_branch l2_main")
    A.label("l1_c")
    step(14, None); step(7, None); step(0, None)
    A("v_mov_b32 v41, %d" % SIG)
    A("ds_read_b64 v[%d:%d], v41" % (VT, VT + 1))
    srd(A, FSRD, PWS, SZ_FL, WS_FL)
    srd(A, 12, PWS, SZ_ST, WS_ST)
    A("s_waitcnt lgkmcnt(0)")
    A("s_barrier")
    A("s_branch scan_entry")
    A.label("l2_entry")
    A("s_sub_u32 s%d, s%d, 4" % (LW, WAVE))
    A("s_lshl_b32 s%d, s%d, 12" % (M0P, LW))
    A("s_mul_i32 s%d, s%d, 3072" % (M0Q, LW))
    A("s_add_u32 s%d, s%d, 16384" % (M0Q, M0Q))
    lane23(); setup2(); srd2()
    A("s_mov_b32 s62, s%d" % RING)
    A("s_waitcnt vmcnt(0)")
    par2[0] = 0
    issue2("W"); issue2("W"); issue2("W")
    A("s_mov_b32 s%d, s62" % RING)
    A("s_mov_b32 s%d, 0\ns_mov_b32 s%d, 0" % (N2, M6))
    tabset()
    par2[0] = 0
    setup3()
    A("s_barrier")
    issue2("X"); issue2("X"); issue2("X")
    step(6, issue2); step(10, issue2)
    A.label("l2_main")
    step(14, issue2)
    if cfg.fast: fast_loop("l2_loop", 12, 14, sel2, 2, 20, 3, 64 * 9216, B2P, B2Q, M0Q, None)
    else: lloop("l2_loop", 12, 14, issue2, 2)
    def lgate_issue(off):
        sk = A.newlabel("lg")
        A("s_cmp_lg_u32 s%d, 0" % LW)
        A("s_cbranch_scc1 %s" % sk)
        gate_issue(A, off)
        A.label(sk)
    def lgate_wait(off, mask, word, younger):
        ot = A.newlabel("lg"); dn = A.newlabel("lg"); lp = A.newlabel("lg")
        A("s_cmp_lg_u32 s%d, 0" % LW)
        A("s_cbranch_scc1 %s" % ot)
        gate_check(A, off, mask, first_wait=younger)
        A("v_mov_b32 v40, 1")
        A("ds_write_b32 v41, v40 offset:%d" % (8 + 4 * word))
        A("s_branch %s" % dn)
        A.label(ot)
        A("s_mov_b32 s59, 0")
        A.label(lp)
        A("ds_read_b32 v40, v41 offset:%d" % (8 + 4 * word))
        A("s_add_u32 s59, s59, 1")
        A("s_waitcnt lgkmcnt(0)")
        A("v_readfirstlane_b32 s58, v40")
        A("s_cmp_gt_u32 s59, %d" % (SPIN * 64))
        A("s_cbranch_scc1 %s" % dn)
        A("s_cmp_eq_u32 s58, 0")
        A("s_cbranch_scc1 %s" % lp)
        A.label(dn)
    XR = 150; DS = 162; STT = 168; B2 = 172; BASE = 48; PR = 80; OWN = 120
    def base_ld():
        A("v_and_b32 v42, 15, v2")
        A("v_lshrrev_b32 v43, 4, v2")
        A("v_mul_u32_u24 v46, 1152, v42")
        A("v_lshl_add_u32 v46, v43, 3, v46")
        A("v_lshlrev_b32 v47, 1, v46")
        A("v_lshlrev_b32 v43, 3, v43")
        A("v_lshlrev_b32 v45, 3, v42")
        A("v_lshlrev_b32 v42, 1, v42")
        A("s_lshl_b32 s44, s%d, 3" % ST)
        A("s_lshl_b32 s45, s%d, 1" % SP)
        A("s_add_u32 s44, s44, s45")
        A("s_mul_i32 s45, s%d, 9" % D3)
        A("s_add_u32 s45, s45, s%d" % LW)
        A("s_lshl_b32 s45, s45, 5")
        A("s_mul_i32 s50, s44, %d" % (16 * 1152))
        A("s_add_u32 s50, s50, s45")
        A("s_add_u32 s51, s50, %d" % (16 * 1152))
        A("s_lshl_b32 s48, s44, 7")
        A("s_lshl_b32 s49, s44, 5")
        srd(A, 12, PWS, SZ_ST, WS_ST)
        for aa in range(2):
            A("buffer_load_dwordx2 %s, v45, s[12:15], s48 offen offset:%d %s" % (v(STT + 2 * aa, 2), aa * 128, HL))
        srd(A, 12, PB2, 4096)
        for aa in range(2):
            A("buffer_load_ushort v%d, v42, s[12:15], s49 offen offset:%d" % (B2 + 2 * aa, aa * 32))
        srd(A, 12, PDSK, 1152)
        for n in range(3):
            A("buffer_load_dwordx2 %s, v43, s[12:15], s45 offen offset:%d" % (v(DS + 2 * n, 2), n * 128))
        srd(A, 12, PX, SZ_X)
        sk = A.newlabel("bl")
        for n in range(3):
            if n == 2:
                A("s_cmp_lg_u32 s%d, 0" % LW)
                A("s_cbranch_scc1 %s" % sk)
            for aa in range(2):
                A("buffer_load_dwordx2 %s, v46, s[12:15], s%d offen offset:%d" % (v(XR + 4 * n + 2 * aa, 2), (50, 51)[aa], n * 128))
        A.label(sk)
        A("s_lshl_b32 s50, s50, 1")
        A("s_lshl_b32 s51, s51, 1")
    def base_calc():
        for aa in range(2): A("v_lshlrev_b32 v%d, 16, v%d" % (B2 + 2 * aa, B2 + 2 * aa))
        for n in range(3):
            dd = 76; xx = 116; tt = 144
            for h in range(2):
                A("v_lshlrev_b32 v%d, 16, v%d" % (dd + 2 * h, DS + 2 * n + h))
                A("v_and_b32 v%d, 0xffff0000, v%d" % (dd + 2 * h + 1, DS + 2 * n + h))
            for aa in range(2):
                b = BASE + 8 * n + 4 * aa
                for h in range(2):
                    A("v_lshlrev_b32 v%d, 16, v%d" % (xx + 2 * h, XR + 4 * n + 2 * aa + h))
                    A("v_and_b32 v%d, 0xffff0000, v%d" % (xx + 2 * h + 1, XR + 4 * n + 2 * aa + h))
                for r in range(4): A("v_mul_f32 v%d, v%d, v%d" % (tt + r, dd + r, STT + 2 * aa + 1))
                for r in range(4): A("v_add_f32 v%d, v%d, v%d" % (b + r, xx + r, B2 + 2 * aa))
                for r in range(4): A("v_sub_f32 v%d, v%d, v%d" % (xx + r, xx + r, STT + 2 * aa))
                for r in range(4): A("v_fmac_f32 v%d, v%d, v%d" % (b + r, xx + r, tt + r))
    GT, GU = 60, 61
    def gates3():
        A("v_mov_b32 v41, %d" % SIG)
        A("ds_read_b64 v[%d:%d], v41" % (VT, VT + 1))
        srd(A, FSRD, PWS, SZ_FL, WS_FL)
        A("s_lshr_b32 s%d, s%d, 1" % (GT, ST))
        A("s_lshl_b32 s%d, s%d, 9" % (GT, GT))
        A("s_add_u32 s%d, s%d, %d" % (GT, GT, FL_T))
        A("s_lshl_b32 s%d, s%d, 2" % (GU, D3))
        A("s_add_u32 s%d, s%d, s%d" % (GU, GU, SP))
        A("s_lshl_b32 s%d, s%d, 9" % (GU, GU))
        A("s_add_u32 s%d, s%d, %d" % (GU, GU, FL_U))
        A("s_waitcnt lgkmcnt(0)")
    gates3()
    step(14, issue2)
    step(14, issue2)
    base_ld()
    step(14 + 11, (lambda: lgate_issue(GT)) if cfg.pollat == 29 else None)
    step(7 + 11, (lambda: lgate_issue(GT)) if cfg.pollat == 30 else None)
    A("s_cmp_lg_u32 s%d, 0" % LW)
    A("s_cbranch_scc1 l2_e1")
    A("s_waitcnt vmcnt(0)")
    A("v_cmp_ne_u64 vcc, v[%d:%d], v[%d:%d]" % (VP, VP + 1, VT, VT + 1))
    A("s_and_b32 vcc_hi, vcc_hi, 15")
    A("s_cmp_lg_u64 vcc, 0")
    A("s_cbranch_scc1 l2_e1")
    A("v_mov_b32 v40, 1")
    A("ds_write_b32 v41, v40 offset:8")
    A("s_waitcnt lgkmcnt(0)")
    A.label("l2_e1")
    step(11, None)
    A("ds_read_b32 v40, v41 offset:8")
    A("s_waitcnt lgkmcnt(0)")
    A("v_readfirstlane_b32 s58, v40")
    A("s_cmp_lg_u32 s58, 0")
    A("s_cbranch_scc1 l3_early")
    lgate_issue(GT)
    A("s_barrier")
    A.label("l3_main")
    stamp(A, cfg, 10)
    lgate_wait(GT, (1 << 36) - 1, 0, 0)
    A.label("l3_main2")
    stamp(A, cfg, 11)
    A("s_cmp_ge_u32 s%d, 2" % LW)
    A("s_cbranch_scc1 l3b")
    A("s_branch l3a")
    A.label("l3_early")
    A("s_cmp_ge_u32 s%d, 2" % LW)
    A("s_cbranch_scc1 l3b_early")
    for (sfx, extra, per) in (("a", True, 9), ("b", False, 8)):
        A.label("l3%s_early" % sfx)
        issue3f(extra)
        if cfg.xpos: issue3f(extra)
        A("s_barrier")
        A("s_branch l3%s_j" % sfx)
        A.label("l3%s" % sfx)
        issue3f(extra)
        if cfg.xpos: issue3f(extra)
        A.label("l3%s_j" % sfx)
        NT = cfg.nt3
        if NT:
            issue3f(extra); issue3f(extra)
            if not cfg.xpos: issue3f(extra)
            srd(A, 12, PW2, SZ_W)
            A("s_mul_i32 s44, s%d, 18" % SP)
            A("s_add_u32 s44, s44, s%d" % PH3)
            A("s_lshl_b32 s44, s44, 1")
            A("s_and_b32 s45, s%d, 1" % LW)
            A("s_add_u32 s44, s44, s45")
            A("s_lshr_b32 s45, s%d, 1" % LW)
            A("s_lshl_b32 s45, s45, 3")
            A("s_add_u32 s44, s44, s45")
            A("s_add_u32 s44, s44, %d" % (8 * cfg.nt3s))
            A("s_lshl_b32 s44, s44, 17")
            A("s_lshl_b32 s45, s%d, 8" % ST)
            A("s_add_u32 s44, s44, s45")
            A("v_lshrrev_b32 v42, 1, v2")
            A("v_lshlrev_b32 v42, 12, v42")
            A("v_and_b32 v43, 1, v2")
            A("v_lshl_add_u32 v42, v43, 7, v42")
            for k in range(NT):
                A("buffer_load_dword v43, v42, s[12:15], s44 offen")
                A("s_add_u32 s44, s44, %d" % (16 << 17))
            A("s_waitcnt vmcnt(%d)" % (4 * per + NT))
            base_calc()
            step(3 * per + NT, None); step(2 * per + NT, None)
            sk = A.newlabel("nf"); sk2 = A.newlabel("nf")
            A("s_cmp_eq_u32 s%d, 4" % NF)
            A("s_cbranch_scc1 %s" % sk)
            step(per + NT, lambda: issue3f(extra))
            switch3u()
            A("s_mov_b32 s62, s%d" % RING)
            step(per + NT, lambda: issue3u(extra, "W"))
            A("s_waitcnt vmcnt(4)")
            A("s_branch %s" % sk2)
            A.label(sk)
            switch3u()
            A("s_mov_b32 s62, s%d" % RING)
            par3[0] -= 1
            step(per + NT, lambda: issue3u(extra, "W"))
            A.label(sk2)
            step(4 + NT, lambda: (lgate_issue(GU), issue3u(extra, "W")))
        else:
            issue3f(extra)
            if not cfg.xpos: issue3f(extra)
            A("s_waitcnt vmcnt(%d)" % (3 * per))
            base_calc()
            step(2 * per, lambda: issue3f(extra)); step(2 * per, None)
            sk = A.newlabel("nf")
            A("s_cmp_eq_u32 s%d, 4" % NF)
            A("s_cbranch_scc1 %s" % sk)
            step(per, lambda: issue3f(extra))
            A.label(sk)
            switch3u()
            A("s_mov_b32 s62, s%d" % RING)
            step(per, lambda: issue3u(extra, "W"))
            step(4, lambda: (lgate_issue(GU), issue3u(extra, "W")))
        stamp(A, cfg, 12)
        lgate_wait(GU, (1 << 54) - 1, 1, 4)
        stamp(A, cfg, 13)
        A("s_mov_b32 s%d, s62" % RING)
        A("s_mov_b32 s%d, 0" % N3)
        issue3u(extra, "X"); issue3u(extra, "X")
        step(per - 4, lambda: issue3u(extra))
        step(per, lambda: issue3u(extra))
        if cfg.fast:
            A("s_add_u32 s60, s%d, s%d" % (B3U, M0P))
            A("s_add_u32 s61, s%d, s%d" % (B3U, M0X))
            A("s_sub_u32 s61, s61, 16384")
            fast_loop("l3%s_u" % sfx, 7, per, sel3, 3, 24, 4, 262144, B3P, 60, M0Q3, 61 if extra else None)
        else: lloop("l3%s_u" % sfx, 7, per, lambda: issue3u(extra), 2)
        step(per, None); step(0, None)
        A("s_branch fin")
    A.label("l3_entry")
    A("s_sub_u32 s%d, s%d, 4" % (LW, WAVE))
    A("s_lshl_b32 s%d, s%d, 12" % (M0P, LW))
    lane23(); setup3(); gates3()
    lgate_issue(GT)
    lgate_wait(GT, (1 << 36) - 1, 0, 0)
    base_ld()
    A("s_branch l3_main2")

    A.label("fin")
    stamp(A, cfg, 7)
    A("v_lshlrev_b32 v9, 4, v2")
    A("s_lshl_b32 s44, s%d, 2" % ST)
    A("s_add_u32 s44, s44, s%d" % D3)
    A("s_lshl_b32 s44, s44, 2")
    A("s_add_u32 s44, s44, s%d" % SP)
    A("s_lshl_b32 s43, s44, 7")
    A("s_add_u32 s43, s43, %d" % FL_X)
    A("s_mul_i32 s47, s44, %d" % (4 * 9216))
    A("s_lshl_b32 s46, s%d, 10" % LW)
    A("s_add_u32 s47, s47, s46")
    for j in range(3):
        A("s_add_u32 s48, s%d, %d" % (SP, 1 + j))
        A("s_and_b32 s48, s48, 3")
        A("s_mul_i32 s48, s48, 9216")
        A("s_add_u32 s%d, s47, s48" % (40 + j))
    A("v_add_u32 v15, 4096, v9")
    A("v_add_u32 v18, 8192, v9")
    A("s_lshl_b32 s46, s%d, 11" % LW)
    A("s_add_u32 s46, s46, %d" % LDS_OWN)
    A("v_add_u32 v10, s46, v9")
    A("s_lshl_b32 s52, 1, s%d" % SP)
    A("s_xor_b32 s52, s52, 15")
    A("s_mov_b32 s53, 0")
    srd(A, 12, PWS, SZ_EX, WS_EX)
    srd(A, 8, POUT, 2048 * 576 * 4)
    A("v_cmp_gt_u32 vcc, 4, v2")
    A("s_nop 1")
    A("v_cndmask_b32 v%d, 0, v%d, vcc" % (VL8, VL8))
    def own():
        for n in range(3):
            for aa in range(2):
                A("ds_read_b128 %s, v10 offset:%d" % (v(OWN + 8 * n + 4 * aa, 4), n * 8192 + aa * 1024))
        A("s_waitcnt lgkmcnt(0)")
        for k in range(12):
            A("v_pk_add_f32 %s, %s, %s" % (v(BASE + 2 * k, 2), v(BASE + 2 * k, 2), v(OWN + 2 * k, 2)))
    A("s_barrier")
    stamp(A, cfg, 8)
    if cfg.xpoll == 0:
        gate_issue(A, 43)
        own()
        gate_check(A, 43, "s[52:53]")
    else:
        lgate_issue(43)
        own()
        A("s_cmp_lg_u32 s%d, 0" % LW)
        A("s_cbranch_scc1 fin_w")
        gate_check(A, 43, "s[52:53]")
        A.label("fin_w")
        A("s_barrier")
    stamp(A, cfg, 9)
    def ld(n):
        for j in range(3):
            A("buffer_load_dwordx4 %s, v%d, s[12:15], s%d offen sc1" % (v(PR + (n * 3 + j) * 4, 4), (9, 15, 18)[n], 40 + j))
    def fin(n):
        b = BASE + 8 * n
        for j in range(3):
            p = PR + (n * 3 + j) * 4
            for k in range(4):
                A("v_lshlrev_b32 v%d, 16, v%d" % (28 + 2 * (k % 2), p + k))
                A("v_and_b32 v%d, 0xffff0000, v%d" % (29 + 2 * (k % 2), p + k))
                A("v_pk_add_f32 %s, %s, %s" % (v(b + 2 * k, 2), v(b + 2 * k, 2), v(28 + 2 * (k % 2), 2)))
    def st(n):
        for aa in range(2):
            A("buffer_store_dwordx4 %s, v47, s[8:11], s%d offen offset:%d %s" % (v(BASE + 8 * n + 4 * aa, 4), (50, 51)[aa], n * 256, cfg.sto))
    A("s_cmp_lg_u32 s%d, 0" % LW)
    A("s_cbranch_scc1 fin_b")
    ld(2); ld(0); ld(1)
    A("s_waitcnt vmcnt(6)"); fin(2)
    A("s_waitcnt vmcnt(3)"); fin(0)
    A("s_waitcnt vmcnt(0)"); st(2); st(0); fin(1); st(1)
    A("s_branch k_done")
    A.label("fin_b")
    ld(0); ld(1)
    A("s_waitcnt vmcnt(3)"); fin(0)
    A("s_waitcnt vmcnt(0)"); st(0); fin(1); st(1)
    A.label("k_done")
    stamp_end(A, cfg)
    A.label("k_end")
    A("s_endpgm")

    KB = 29
    PFI = 23
    def kbcalc():
        A("s_sub_u32 s%d, s%d, 19" % (KB, SLOTR))
        A("s_lshl_b32 s%d, s%d, 3" % (KB, KB))
        A("s_add_u32 s%d, s%d, s%d" % (KB, KB, XCD))
    A.label("ln_lo")
    kbcalc()
    pubH()
    biasld()
    A("s_barrier")
    stamp(A, cfg, 2)
    A("s_branch ln_join")
    A.label("ln_hi")
    kbcalc()
    A("v_mov_b32 v216, 0\nv_mov_b32 v217, 0\nv_mov_b32 v215, 0")
    ids23()
    A("v_lshlrev_b32 v120, 7, v2")
    A("s_waitcnt lgkmcnt(0)")
    srd(A, FSRD, PWS, SZ_FL, WS_FL)
    srd(A, 12, PWS, SZ_ST, WS_ST)
    A("s_lshl_b32 s44, s%d, 2" % KB)
    A("s_add_u32 s44, s44, s%d" % WAVE)
    A("s_sub_u32 s44, s44, 4")
    if cfg.csb:
        A("s_sub_u32 s45, s44, 112")
        A("s_cbranch_scc1 ln_ncs")
        A("s_cmp_ge_u32 s45, 72")
        A("s_cselect_b32 s4, s%d, s%d" % (PBIM, PBRE))
        A("s_cselect_b32 s5, s%d, s%d" % (PBIM + 1, PBRE + 1))
        A("s_cselect_b32 s46, 72, 0")
        A("s_cselect_b32 s47, 4, 0")
        A("s_mov_b32 s6, %d\ns_mov_b32 s7, 0x00020000" % SZ_C)
        A("s_sub_u32 s45, s45, s46")
        A("s_mul_i32 s46, s45, %d" % (8 * 1152))
        A("v_lshrrev_b32 v3, 3, v2")
        A("v_and_b32 v4, 7, v2")
        A("v_mul_u32_u24 v5, 1152, v3")
        A("v_lshl_add_u32 v5, v4, 4, v5")
        for j in range(9):
            A("buffer_load_dwordx4 %s, v5, s[4:7], s46 offen offset:%d" % (v(16 + 4 * j, 4), j * 128))
        A("s_lshl_b32 s45, s45, 6")
        A("s_add_u32 s45, s45, s47")
        A("s_add_u32 s45, s45, 16384")
        A("v_lshlrev_b32 v3, 3, v3")
        A("s_mov_b32 s46, 0x3f803f80")
        for q in range(4): A("v_mov_b32 v%d, 0" % (8 + q))
        for j in range(9):
            A("s_waitcnt vmcnt(%d)" % (8 - j))
            for q in range(4): A("v_dot2_f32_bf16 v%d, v%d, s46, v%d" % (8 + q, 16 + 4 * j + q, 8 + q))
        A("s_nop 2")
        A("v_add_f32 v8, v8, v9\nv_add_f32 v10, v10, v11\nv_add_f32 v8, v8, v10")
        for dpp in ("quad_perm:[1,0,3,2]", "quad_perm:[2,3,0,1]", "row_half_mirror"):
            A("s_nop 1")
            A("v_add_f32_dpp v8, v8, v8 %s row_mask:0xf bank_mask:0xf" % dpp)
        A("s_mov_b32 exec_lo, 0x01010101\ns_mov_b32 exec_hi, 0x01010101")
        A("buffer_store_dword v8, v3, s[12:15], s45 offen sc1")
        A("s_mov_b64 exec, -1")
        A("s_waitcnt vmcnt(0)")
        A("s_branch ln_nw")
        A.label("ln_ncs")
    A("s_mov_b32 s4, s%d\ns_mov_b32 s5, s%d\ns_mov_b32 s6, 0\ns_mov_b32 s45, 0" % (PB1, PB1 + 1))
    for (w, ptr, sz) in ((32, PB1, 9216), (33, PB1, 9216), (34, PB2, 4096), (35, PDSK, 1152), (36, PLRE, 1152), (37, PLIM, 1152), (38, PLOGDT, 1152)):
        A("s_cmp_eq_u32 s44, %d" % w)
        A("s_cselect_b32 s4, s%d, s4" % ptr)
        A("s_cselect_b32 s5, s%d, s5" % (ptr + 1))
        A("s_cselect_b32 s6, %d, s6" % sz)
        if w == 33: A("s_cselect_b32 s45, 8192, s45")
    A("s_mov_b32 s7, 0x00020000")
    A("s_cmp_eq_u32 s6, 0")
    A("s_cbranch_scc1 ln_nt")
    A("buffer_load_dword v121, v120, s[4:7], s45 offen")
    A.label("ln_nt")
    if cfg.codepf:
        A("s_cmp_ge_u32 s44, 32")
        A("s_cbranch_scc1 ln_nc")
        A("s_getpc_b64 s[46:47]")
        A.label("ln_pc")
        A("s_sub_u32 s46, s46, ln_pc-%s" % KN)
        A("s_subb_u32 s47, s47, 0")
        A("s_and_b32 s45, s44, 3")
        A("s_lshl_b32 s45, s45, 13")
        A("v_add_u32 v122, s45, v120")
        A("s_mov_b32 s45, text_end-%s" % KN)
        for r in range(2):
            A("v_cmp_gt_u32 vcc, s45, v122")
            A("s_and_saveexec_b64 s[48:49], vcc")
            A("s_cbranch_execz ln_nc2")
            A("global_load_dword v%d, v122, s[46:47]" % (123 + r))
            A("v_add_u32 v122, 32768, v122")
        A.label("ln_nc2")
        A("s_mov_b64 exec, -1")
        A.label("ln_nc")
    srd(A, 4, PW1, SZ_W)
    A("s_sub_u32 s45, s44, 40")
    A("s_cbranch_scc1 ln_nw")
    A("s_lshl_b32 s45, s45, 13")
    for r in range(cfg.lnpf):
        A("buffer_load_dword v121, v120, s[4:7], s45 offen")
        A("s_add_u32 s45, s45, %d" % (NLP * 8192))
    A.label("ln_nw")
    A("s_barrier")
    tag_issue(A)
    A("s_barrier")
    tag_check(A)
    A.label("ln_join")
    A("v_lshlrev_b32 v120, 7, v2")
    A("s_lshl_b32 s%d, s%d, 3" % (PFI, KB))
    A("s_add_u32 s%d, s%d, s%d" % (PFI, PFI, WAVE))
    if cfg.tlbw:
        A("s_cmp_lg_u32 s%d, %d" % (SLOTR, cfg.tlbw))
        A("s_cbranch_scc1 ln_ntl")
        A("s_mov_b32 s60, s%d\ns_mov_b32 s61, s%d\ns_mov_b32 s62, 0" % (PW1, PW1 + 1))
        for (w, ptr, sz) in ((1, PW1, SZ_W), (2, PW2, SZ_W), (3, PWS, 0x4000000 if cfg.side else WS_EX + SZ_EX), (4, POUT, 2048 * 576 * 4), (5, PCRE, SZ_C), (6, PCIM, SZ_C), (7, PLOGDT, 1152)):
            A("s_cmp_eq_u32 s%d, %d" % (WAVE, w))
            A("s_cselect_b32 s60, s%d, s60" % ptr)
            A("s_cselect_b32 s61, s%d, s61" % (ptr + 1))
            A("s_cselect_b32 s62, %d, s62" % sz)
        A("s_mov_b32 s63, 0x00020000")
        A("v_lshlrev_b32 v122, 20, v2")
        A("buffer_load_dword v121, v122, s[60:63], 0 offen offset:512 sc1")
        A.label("ln_ntl")
    for r in range(cfg.pf_a):
        if r == 0:
            A("s_add_u32 s55, s%d, %d" % (PFI, L_C))
            A("s_add_u32 s3, s%d, %d" % (PFI, (NLP * cfg.lnpf - 162) & 0xffffffff))
            A("s_cmp_lt_u32 s%d, 162" % PFI)
            A("s_cselect_b32 s3, s55, s3")
        else:
            A("s_add_u32 s3, s%d, %d" % (PFI, NLP * cfg.lnpf - 162 + 512 * r))
        pf_decode(A, 3, 60, 58, 54)
        A("buffer_load_dword v121, v120, s[60:63], s58 offen")
    A("s_cmp_ge_u32 s%d, 4" % WAVE)
    A("s_cbranch_scc1 l2_entry")
    A("s_cmp_lg_u32 s%d, 0" % WAVE)
    A("s_cbranch_scc1 ln_g")
    A("s_sleep %d" % cfg.bsleep)
    wide_issue(A)
    wide_check(A)
    A.label("ln_g")
    A("s_waitcnt vmcnt(0)")
    A("s_barrier")
    stamp(A, cfg, 3)
    A("s_branch c2_entry")

    A.label("scan_entry")
    CB = 29
    A("s_sub_u32 s%d, s%d, 27" % (CB, SLOTR))
    A("s_lshl_b32 s%d, s%d, 3" % (CB, CB))
    A("s_add_u32 s%d, s%d, s%d" % (CB, CB, XCD))
    A("s_mov_b32 s%d, 0" % RING)
    A("v_lshlrev_b32 v56, 7, v2")
    A("s_lshl_b32 s%d, s%d, 3" % (PFI, CB))
    A("s_add_u32 s%d, s%d, s%d" % (PFI, PFI, WAVE))
    A("s_add_u32 s%d, s%d, %d" % (PFI, PFI, L_W2 if cfg.pf_a else L_C))
    def scpf(lo=0):
        pf_decode(A, PFI, 60, 58, 54, lo=lo)
        A("buffer_load_dword v57, v56, s[60:63], s58 offen")
        A("s_add_u32 s%d, s%d, 320" % (PFI, PFI))
    for _ in range(cfg.pf_a2): scpf(L_C)
    A("s_cmp_lt_u32 s%d, 36" % CB)
    A("s_cbranch_scc1 scan2")
    for _ in range(sum(cfg.scm) + cfg.pf_b): scpf(L_C)
    A("s_branch scan_done")
    A.label("scan2")
    A("v_and_b32 v3, 7, v0")
    A("v_lshrrev_b32 v4, 3, v0")
    A("v_lshlrev_b32 v5, 10, v4")
    A("v_and_b32 v6, 3, v3")
    A("v_lshl_add_u32 v5, v6, 4, v5")
    A("v_lshrrev_b32 v6, 2, v3")
    A("v_lshl_add_u32 v5, v6, 16, v5")
    A("s_lshl_b32 s40, s%d, 17" % CB)
    A("v_lshlrev_b32 v9, 2, v3")
    A("s_lshl_b32 s41, s%d, 5" % CB)
    for (r, ptr) in ((10, PLRE), (11, PLIM), (12, PLOGDT)):
        srd(A, 4, ptr, 1152)
        A("buffer_load_dword v%d, v9, s[4:7], s41 offen" % r)
    L = [18, 20]; L32 = [22, 24]; L256 = [26, 28]; C2 = [30, 32]
    A("s_mov_b32 s44, 0x%x" % f2u(math.log2(math.e)))
    A("s_mov_b32 s45, 0x%x" % f2u(1.0 / (2 * math.pi)))
    A("s_waitcnt vmcnt(0)")
    def sq(d, s_):
        A("v_mul_f32 v40, v%d, v%d" % (s_ + 1, s_ + 1))
        A("v_mul_f32 v41, v%d, v%d" % (s_, s_ + 1))
        A("v_fma_f32 v%d, v%d, v%d, -v40" % (d, s_, s_))
        A("v_add_f32 v%d, v41, v41" % (d + 1))
    for c in range(2):
        for (d, s_) in ((34, 10), (35, 11), (36, 12)):
            if c == 0: A("v_lshlrev_b32 v%d, 16, v%d" % (d, s_))
            else: A("v_and_b32 v%d, 0xffff0000, v%d" % (d, s_))
        A("v_mul_f32 v36, s44, v36")
        A("v_exp_f32 v36, v36")
        A("s_nop 0")
        round_bf16(A, 36, 36)
        A("v_mul_f32 v37, v36, v34")
        A("v_mul_f32 v38, v36, v35")
        A("v_mul_f32 v37, s44, v37")
        A("v_mul_f32 v38, s45, v38")
        A("v_exp_f32 v37, v37")
        A("v_fract_f32 v38, v38")
        A("v_cos_f32 v39, v38")
        A("v_sin_f32 v38, v38")
        A("s_nop 0")
        A("v_mul_f32 v%d, v37, v39" % L[c])
        A("v_mul_f32 v%d, v37, v38" % (L[c] + 1))
        sq(L32[c], L[c])
        for _ in range(4): sq(L32[c], L32[c])
        sq(L256[c], L32[c])
        for _ in range(2): sq(L256[c], L256[c])
        A("v_add_f32 v37, -1.0, v%d" % L[c])
        A("v_mul_f32 v38, v34, v34")
        A("v_fmac_f32 v38, v35, v35")
        A("v_rcp_f32 v38, v38")
        A("v_mul_f32 v39, v37, v34")
        A("v_fmac_f32 v39, v%d, v35" % (L[c] + 1))
        A("v_mul_f32 v40, v%d, v34" % (L[c] + 1))
        A("v_fma_f32 v40, -v37, v35, v40")
        A("v_add_f32 v38, v38, v38")
        A("v_mul_f32 v%d, v39, v38" % C2[c])
        A("v_mul_f32 v%d, v40, v38" % (C2[c] + 1))
    A("s_mul_i32 s43, s%d, 21846" % CB)
    A("s_lshr_b32 s43, s43, 16")
    A("s_lshl_b32 s43, s43, 9")
    A("s_add_u32 s43, s43, %d" % FL_G)
    A("s_cmp_lg_u32 s%d, 0" % WAVE)
    A("s_cbranch_scc1 scan_g")
    gate_issue(A, 43)
    gate_check(A, 43, (1 << 64) - 1)
    if cfg.ginv == 2:
        A("buffer_inv sc1")
        A("s_waitcnt vmcnt(0)")
    A.label("scan_g")
    A("s_barrier")
    if cfg.ginv == 1: A("buffer_inv sc1")
    stamp(A, cfg, 3)
    srd(A, 4, PWS, SZ_G, WS_G)
    srd(A, 12, PWS, SZ_HT, WS_HT)
    G0 = 56; RW = 184
    for j in range(16):
        A("buffer_load_dwordx4 %s, v5, s[4:7], s40 offen offset:%d %s" % (v(RW + 4 * j, 4), j * 64, cfg.gl))
    LDS_AGG = 9216; LDS_WAGG = LDS_AGG + 8192
    H = 10; T2 = 34
    def stepf(Lr, src):
        for c in range(2):
            A("v_pk_fma_f32 %s, %s, %s, %s op_sel_hi:[0,1,1]" % (v(T2 + 2 * c, 2), v(Lr[c], 2), v(H + 2 * c, 2), v(src + 2 * c, 2)))
        for c in range(2):
            A("v_pk_fma_f32 %s, %s, %s, %s op_sel:[1,1,0] op_sel_hi:[1,0,1] neg_lo:[1,0,0]" % (v(H + 2 * c, 2), v(Lr[c], 2), v(H + 2 * c, 2), v(T2 + 2 * c, 2)))
    for i in range(4): A("v_mov_b32 v%d, 0" % (H + i))
    for j in range(16):
        A("s_waitcnt vmcnt(%d)" % (15 - j))
        for e in range(2):
            g = G0 + 4 * (2 * j + e)
            for c in range(2):
                A("v_lshlrev_b32 v%d, 16, v%d" % (g + 2 * c, RW + 4 * j + 2 * e + c))
                A("v_and_b32 v%d, 0xffff0000, v%d" % (g + 2 * c + 1, RW + 4 * j + 2 * e + c))
        for e in range(2):
            g = G0 + 4 * (2 * j + e)
            for c in range(2):
                A("v_pk_mul_f32 %s, %s, %s op_sel_hi:[0,1]" % (v(40 + 4 * e + 2 * c, 2), v(C2[c], 2), v(g + 2 * c, 2)))
        for e in range(2):
            g = G0 + 4 * (2 * j + e)
            for c in range(2):
                A("v_pk_fma_f32 %s, %s, %s, %s op_sel:[1,1,0] op_sel_hi:[1,0,1] neg_lo:[1,0,0]" % (v(g + 2 * c, 2), v(C2[c], 2), v(g + 2 * c, 2), v(40 + 4 * e + 2 * c, 2)))
        for e in range(2): stepf(L, G0 + 4 * (2 * j + e))
    A("v_lshlrev_b32 v8, 7, v2")
    def scpf2():
        pf_decode(A, PFI, 60, 58, 54, lo=L_C)
        A("buffer_load_dword v9, v8, s[60:63], s58 offen")
        A("s_add_u32 s%d, s%d, 320" % (PFI, PFI))
    for _ in range(cfg.scm[0] + cfg.scm[1]): scpf2()
    stamp(A, cfg, 4)
    A("v_lshlrev_b32 v15, 4, v3")
    A("v_lshlrev_b32 v17, 4, v0")
    A("ds_write_b128 v17, %s offset:%d" % (v(H, 4), LDS_AGG))
    A("s_lshl_b32 s44, s%d, 10" % WAVE)
    A("v_add_u32 v17, s44, v15")
    A("s_waitcnt lgkmcnt(0)")
    AG = 184; WG_ = 216
    for j in range(8): A("ds_read_b128 %s, v17 offset:%d" % (v(AG + 4 * j, 4), LDS_AGG + j * 128))
    A("s_waitcnt lgkmcnt(7)")
    for i in range(4): A("v_mov_b32 v%d, v%d" % (H + i, AG + i))
    for j in range(1, 8):
        A("s_waitcnt lgkmcnt(%d)" % (7 - j))
        stepf(L32, AG + 4 * j)
    A("s_lshl_b32 s44, s%d, 7" % WAVE)
    A("v_add_u32 v17, s44, v15")
    A("ds_write_b128 v17, %s offset:%d" % (v(H, 4), LDS_WAGG))
    A("s_waitcnt lgkmcnt(0)")
    A("s_barrier")
    for j in range(7): A("ds_read_b128 %s, v15 offset:%d" % (v(WG_ + 4 * j, 4), LDS_WAGG + j * 128))
    for i in range(4): A("v_mov_b32 v%d, 0" % (H + i))
    A("v_lshrrev_b32 v17, 3, v2")
    A("s_waitcnt lgkmcnt(0)")
    for j in range(7):
        A("s_cmp_le_u32 s%d, %d" % (WAVE, j))
        A("s_cbranch_scc1 scan_w")
        stepf(L256, WG_ + 4 * j)
    A.label("scan_w")
    for j in range(7):
        A("v_cmpx_lt_u32 vcc, %d, v17" % j)
        stepf(L32, AG + 4 * j)
    A("s_mov_b64 exec, -1")
    A("s_barrier")
    stamp(A, cfg, 10)
    for _ in range(cfg.scm[2]): scpf2()
    A("s_mul_i32 s44, s%d, %d" % (WAVE, 32 * 528))
    A("v_mul_u32_u24 v48, 528, v3")
    A("v_lshl_add_u32 v48, v17, 6, v48")
    A("v_add_u32 v48, s44, v48")
    A("v_lshrrev_b32 v49, 5, v2")
    A("v_and_b32 v50, 31, v2")
    A("v_lshlrev_b32 v50, 4, v50")
    A("v_mul_u32_u24 v51, 528, v49")
    A("v_add3_u32 v51, v51, v50, s44")
    A("v_lshl_add_u32 v50, v49, 13, v50")
    A("s_lshr_b32 s45, s%d, 1" % CB)
    A("s_lshl_b32 s45, s45, 5")
    A("s_and_b32 s46, s%d, 1" % CB)
    A("s_lshl_b32 s46, s46, 3")
    A("s_add_u32 s45, s45, s46")
    A("s_lshl_b32 s45, s45, 12")
    A("s_lshl_b32 s46, s%d, 9" % WAVE)
    A("s_add_u32 s45, s45, s46")
    PK = 184
    for blk in range(4):
        for k in range(8):
            g = G0 + 4 * (blk * 8 + k)
            hp = H if (blk == 0 and k == 0) else g - 4
            for c in range(2):
                A("v_pk_fma_f32 %s, %s, %s, %s op_sel_hi:[0,1,1]" % (v(g + 2 * c, 2), v(L[c], 2), v(hp + 2 * c, 2), v(g + 2 * c, 2)))
            for c in range(2):
                A("v_pk_fma_f32 %s, %s, %s, %s op_sel:[1,1,0] op_sel_hi:[1,0,1] neg_lo:[1,0,0]" % (v(g + 2 * c, 2), v(L[c], 2), v(hp + 2 * c, 2), v(g + 2 * c, 2)))
        pkb = PK + blk * 16
        for q in range(4):
            for k in range(4):
                g = G0 + 4 * (blk * 8 + 2 * k)
                sg = "-" if q & 1 else ""
                A("v_cvt_pk_bf16_f32 v%d, %sv%d, %sv%d" % (pkb + 4 * q + k, sg, g + q, sg, g + 4 + q))
        for q in range(4):
            A("ds_write_b128 v48, %s offset:%d" % (v(pkb + 4 * q, 4), q * 8 * 528 + blk * 16))
    A("s_waitcnt lgkmcnt(0)")
    stamp(A, cfg, 11)
    for n in range(16):
        A("ds_read_b128 %s, v51 offset:%d" % (v(G0 + 4 * n, 4), n * 2 * 528))
        if n == 7: A("s_waitcnt lgkmcnt(0)")
    for n in range(16):
        q = n >> 2; k = n & 3; c = q >> 1; part = q & 1
        row = 16 * (k & 1) + 4 * (k >> 1) + c + 576 * part
        if n >= 8: A("s_waitcnt lgkmcnt(%d)" % (15 - n))
        A("s_add_u32 s46, s45, %d" % (row * 4096))
        A("buffer_store_dwordx4 %s, v50, s[12:15], s46 offen sc1" % v(G0 + 4 * n, 4))
    A("s_lshl_b32 s52, s%d, 9" % WAVE)
    A("s_lshl_b32 s44, s%d, 3" % CB)
    A("s_add_u32 s52, s52, s44")
    A("s_add_u32 s52, s52, %d" % FL_T)
    A("s_waitcnt vmcnt(0)")
    publish(A, 52)
    stamp(A, cfg, 5)
    A("s_barrier")
    if cfg.pfh:
        A("s_cmp_ge_u32 s%d, 4" % WAVE)
        A("s_cbranch_scc1 scan_done")
        A("s_lshl_b32 s44, s%d, 2" % CB)
        A("s_sub_u32 s%d, s%d, s44" % (PFI, PFI))
    for _ in range(cfg.pf_b): scpf2()
    A.label("scan_done")
    A("s_waitcnt vmcnt(0)")
    A("s_barrier")
    A("s_cmp_lt_u32 s%d, 4" % WAVE)
    A("s_cbranch_scc1 c3_entry")
    A("s_branch l3_entry")
    A.label("text_end")
    A("s_endpgm")

    HEADER = open("ref_header.txt").read().split("; @launch")[0]
    out = HEADER + "; @launch grid=(256,1,1) block=(512,1,1) lds=163840\n"
    out += DOC + '.amdgcn_target "amdgcn-amd-amdhsa--gfx950"\n.text\n' + A.text()
    out += '.section .rodata,"a"\n.p2align 6\n' + kd(KN, 256, 102)
    return out

if __name__ == "__main__":
    kw = {}
    for a_ in sys.argv[2:]:
        k, val = a_.split("=")
        kw[k] = ast.literal_eval(val)
    open(sys.argv[1], "w").write(gen(**kw))
```

```python
import sys, math, ast
from asmlib import *

NAME = "parallel_sum__ssm_conv_s5__mixer_token_mlp__prompt"
PAIR = 2048
SIDE = 0x3000000
WS_HF = 0x0;        SZ_HF = 32 * 36 * PAIR
WS_UF = 0x400000;   SZ_UF = 72 * 36 * PAIR
WS_G = 0xC00000;    SZ_G = 4718592
WS_HT = 0x1400000;  SZ_HT = 4718592
WS_ST = 0x1900000;  SZ_ST = 16384 + 8192
WS_FL = 0x1910000;  SZ_FL = 65536
WS_EX = 0x2000000;  SZ_EX = 64 * 16 * 9216
WS_STAMP = 0xC000000
SZ_W = 2048 * 9216; SZ_C = 576 * 1152; SZ_X = 2359296
FL_H = 0
FL_G = 2048
FL_U = FL_G + 12 * 512
FL_T = FL_U + 16 * 512
FL_X = FL_T + 8 * 512
assert FL_X + 256 * 128 <= SZ_FL

PX, PLRE, PLIM, PBRE, PBIM, PCRE, PCIM, PLOGDT, PDSK, PBX, PW1, PB1, PW2, PB2, POUT, PDBG, PWS = [64 + 2 * i for i in range(17)]
WAVE, SLOTR, XCD = 20, 21, 22
TAG = 24
RING = 26
CNT = 27
EVT = 28
NS = 4; SLOT = 34816; LDS_OWN = NS * SLOT
MFMA = "v_mfma_f32_16x16x32_bf16"
SPIN = 1 << 14
SIG = 163776
NS2 = 5; SLOT2 = 28672; LDS_LN = NS2 * SLOT2

DOC = """;
"""

class Cfg:
    stamp = False
    pf_a = 1
    scm = (0, 0, 0)
    pf_b = 1
    lnpf = 1
    rot1 = 1; rot2 = 1; rot3 = 1
    hl = "sc1"
    codepf = 1
    gl = ""
    pf_a2 = 0
    dbgst = 0
    ginv = 2
    pfh = 1
    tab2 = 3
    xint = 1
    upub = 1
    xpos = 2
    binit = 1
    nt3 = 0
    nt3s = 0
    al = 0
    alp = 0
    csb = 1
    xpoll = 1
    pollat = 29
    adv2 = 4
    gpub = 1
    side = 1
    sto = ""
    tlbw = 0
    fast = 0
    hoist = 1
    hack3 = 0
    ord2 = 0
    ord3 = 0
    pair2 = 0
    pair3 = 0
    bsleep = 10
    gsleep = 4
    csleep = 0
    pro = 3
    e1 = (7,)

class G:
    pass

def stamp(A, cfg, idx):
    if cfg.stamp:
        A("s_memrealtime s[98:99]")
        A("s_memtime s[100:101]")
        A("s_waitcnt lgkmcnt(0)")
        A("v_writelane_b32 v255, s98, %d" % idx)
        A("v_writelane_b32 v255, s100, %d" % (idx + 16))

def stamp_end(A, cfg):
    if not cfg.stamp: return
    A("s_waitcnt vmcnt(0)")
    stamp(A, cfg, 15)
    srd(A, 4, PWS, 262144, WS_STAMP)
    A("s_lshl_b32 s30, s2, 3")
    A("s_add_u32 s30, s30, s%d" % WAVE)
    A("s_lshl_b32 s30, s30, 7")
    A("v_lshlrev_b32 v3, 2, v2")
    A("s_mov_b32 exec_lo, -1\ns_mov_b32 exec_hi, 0")
    A("buffer_store_dword v255, v3, s[4:7], s30 offen")
    if cfg.dbgst:
        A("s_cmp_lg_u32 s2, %d" % cfg.dbgst)
        A("s_cbranch_scc1 dbg_skip")
        srd(A, 4, PDBG, 256)
        A("v_readlane_b32 s31, v255, 0")
        A("s_nop 3")
        A("v_subrev_u32 v255, s31, v255")
        A("s_cmp_eq_u32 s%d, 3" % WAVE)
        A("s_cbranch_scc0 dbg_l")
        A("s_mov_b64 exec, 0x3ffc")
        A("buffer_store_dword v255, v3, s[4:7], 0 offen")
        A.label("dbg_l")
        A("s_cmp_eq_u32 s%d, 4" % WAVE)
        A("s_cbranch_scc0 dbg_skip")
        A("s_mov_b64 exec, 0x8000")
        A("buffer_store_dword v255, v3, s[4:7], 0 offen")
        A("s_mov_b64 exec, 0x200")
        A("buffer_store_dword v255, v3, s[4:7], 0 offen offset:20")
        A.label("dbg_skip")

def slot_adv(ph, sreg=RING):
    sl, n = (SLOT, NS) if ph == 3 else (SLOT2, NS2)
    return ["s_add_u32 s%d, s%d, %d" % (sreg, sreg, sl), "s_cmp_eq_u32 s%d, %d" % (sreg, n * sl), "s_cselect_b32 s%d, 0, s%d" % (sreg, sreg)]

def row16_sum(A, r):
    for sh in (8, 4, 2, 1):
        A("s_nop 1")
        A("v_add_f32_dpp v%d, v%d, v%d row_ror:%d row_mask:0xf bank_mask:0xf" % (r, r, r, sh))

def round_bf16(A, dst, src):
    A("v_cvt_pk_bf16_f32 v%d, v%d, v%d" % (dst, src, src))
    A("v_lshlrev_b32 v%d, 16, v%d" % (dst, dst))

L_C = 2304; L_W2 = 2304 + 162; L_END = L_W2 + 72 * 32
def pf_decode(A, idx, d, off, t, lo=0):
    A("s_sub_u32 s%d, s%d, %d" % (off, idx, L_W2))
    A("s_bfe_u32 s%d, s%d, 0x20005" % (t, off))
    A("s_mul_i32 s%d, s%d, %d" % (t, t, 18 * 32))
    A("s_lshr_b32 s%d, s%d, 7" % (t + 1, off))
    A("s_lshl_b32 s%d, s%d, 5" % (t + 1, t + 1))
    A("s_add_u32 s%d, s%d, s%d" % (t, t, t + 1))
    A("s_and_b32 s%d, s%d, 31" % (off, off))
    A("s_add_u32 s%d, s%d, s%d" % (off, off, t))
    A("s_cmp_ge_u32 s%d, %d" % (idx, L_END))
    A("s_cselect_b32 s%d, 4096, s%d" % (off, off))
    A("s_mov_b32 s%d, s%d\ns_mov_b32 s%d, s%d\ns_mov_b32 s%d, %d" % (d, PW2, d + 1, PW2 + 1, d + 2, SZ_W))
    for (hi, sub, base, sz) in ((L_W2, L_C + 81, PCIM, SZ_C), (L_C + 81, L_C, PCRE, SZ_C), (L_C, 0, PW1, SZ_W)):
        if hi <= lo: continue
        A("s_sub_u32 s%d, s%d, %d" % (t, idx, sub))
        A("s_cmp_lt_u32 s%d, %d" % (idx, hi))
        A("s_cselect_b32 s%d, s%d, s%d" % (off, t, off))
        A("s_cselect_b32 s%d, s%d, s%d" % (d, base, d))
        A("s_cselect_b32 s%d, s%d, s%d" % (d + 1, base + 1, d + 1))
        A("s_cselect_b32 s%d, %d, s%d" % (d + 2, sz, d + 2))
    A("s_mov_b32 s%d, 0x00020000" % (d + 3))
    A("s_lshl_b32 s%d, s%d, 13" % (off, off))

GSLEEP = [8]
FSRD = 16; VL8 = 248; VT = 250; VP = 252
def tag_issue(A):
    srd(A, 60, PDBG, 256)
    A("v_mov_b32 v249, 0")
    A("buffer_load_dwordx2 v[%d:%d], v249, s[60:63], 0 offen sc1" % (VT, VT + 1))
def tag_check(A):
    lp = A.newlabel("tg"); ok = A.newlabel("tg"); rt = A.newlabel("tg")
    A("s_mov_b32 s59, 0")
    A.label(lp)
    A("s_waitcnt vmcnt(0)")
    A("v_readfirstlane_b32 s58, v%d" % VT)
    A("s_add_u32 s59, s59, 1")
    A("s_cmp_eq_u32 s58, 0")
    A("s_cbranch_scc1 %s" % rt)
    A("s_sub_u32 s58, s%d, s58" % TAG)
    A("s_cmp_lt_i32 s58, 1500")
    A("s_cbranch_scc1 %s" % ok)
    A("s_cmp_gt_u32 s59, 64")
    A("s_cbranch_scc1 %s" % ok)
    A.label(rt)
    A("s_cmp_gt_u32 s59, %d" % SPIN)
    A("s_cbranch_scc1 %s" % ok)
    A("s_sleep 2")
    tag_issue(A)
    A("s_branch %s" % lp)
    A.label(ok)
def publish(A, offreg):
    A("s_mov_b64 exec, 1")
    A("buffer_store_dwordx2 v[%d:%d], v%d, s[%d:%d], s%d offen sc1" % (VT, VT + 1, VL8, FSRD, FSRD + 3, offreg))
    A("s_mov_b64 exec, -1")
def gate_issue(A, offreg):
    A("buffer_load_dwordx2 v[%d:%d], v%d, s[%d:%d], s%d offen sc1" % (VP, VP + 1, VL8, FSRD, FSRD + 3, offreg))
def gate_check(A, offreg, mask, first_wait=0):
    lp = A.newlabel("gt"); ok = A.newlabel("gt")
    A("s_mov_b32 s59, 0")
    if isinstance(mask, int):
        A("s_mov_b32 s56, 0x%x" % (mask & 0xffffffff))
        A("s_mov_b32 s57, 0x%x" % (mask >> 32))
        mask = "s[56:57]"
    A("s_waitcnt vmcnt(%d)" % first_wait)
    A.label(lp)
    A("v_cmp_ne_u64 vcc, v[%d:%d], v[%d:%d]" % (VP, VP + 1, VT, VT + 1))
    A("s_add_u32 s59, s59, 1")
    A("s_and_b64 vcc, vcc, %s" % mask)
    A("s_cbranch_scc0 %s" % ok)
    A("s_cmp_gt_u32 s59, %d" % SPIN)
    A("s_cbranch_scc1 %s" % ok)
    A("s_sleep %d" % GSLEEP[0])
    gate_issue(A, offreg)
    A("s_waitcnt vmcnt(0)")
    A("s_branch %s" % lp)
    A.label(ok)

VW = 240
def wide_issue(A):
    A("v_lshlrev_b32 v249, 4, v2")
    A("buffer_load_dwordx4 v[%d:%d], v249, s[%d:%d], 0 offen sc1" % (VW, VW + 3, FSRD, FSRD + 3))
    A("buffer_load_dwordx4 v[%d:%d], v249, s[%d:%d], 0 offen offset:1024 sc1" % (VW + 4, VW + 7, FSRD, FSRD + 3))
def wide_check(A):
    lp = A.newlabel("gw"); ok = A.newlabel("gw")
    A("s_mov_b32 s59, 0")
    A.label(lp)
    A("s_waitcnt vmcnt(0)")
    A("v_cmp_ne_u64 vcc, v[%d:%d], v[%d:%d]" % (VW, VW + 1, VT, VT + 1))
    for q in range(1, 4):
        A("v_cmp_ne_u64 s[56:57], v[%d:%d], v[%d:%d]" % (VW + 2 * q, VW + 2 * q + 1, VT, VT + 1))
        A("s_or_b64 vcc, vcc, s[56:57]")
    A("s_cbranch_scc0 %s" % ok)
    A("s_add_u32 s59, s59, 1")
    A("s_cmp_gt_u32 s59, %d" % SPIN)
    A("s_cbranch_scc1 %s" % ok)
    A("s_sleep %d" % GSLEEP[0])
    wide_issue(A)
    A("s_branch %s" % lp)
    A.label(ok)

def group(A, ms, rs, nprev, extra=(), pts=None):
    rs = list(rs); issued = 0; waited = -1
    for i, (m, need) in enumerate(ms):
        if pts is not None:
            if i in pts:
                nxt = min([p for p in pts if p > i] + [len(ms)])
                need = max(n for _, n in ms[i:nxt])
            else:
                assert need <= waited
        if need > waited:
            A("s_waitcnt lgkmcnt(%d)" % min(15, nprev - 1 - need + issued))
            waited = need
        A(m)
        if rs:
            A(rs.pop(0)); issued += 1
        for pos, t in extra:
            if pos == i: A(t)
    for r in rs: A(r)

ALN = [0, 0]
def align(A):
    if ALN[0]:
        A.raw(".p2alignl %d, 0xbf800000" % ALN[0])
        for _ in range(ALN[1]): A("s_nop 0")

def capture(A, fn):
    mark = len(A.lines); fn()
    body = [l.strip() for l in A.lines[mark:]]; del A.lines[mark:]
    return body

def spread(instrs, n, start=0, per=2):
    out = []
    for k, t in enumerate(instrs):
        out.append((min(n - 1, start + k // per), t))
    return out

class Phase:
    def __init__(self, A, pfx, reads, mfmas, upd, pts, ph):
        self.A, self.pfx, self.reads, self.mfmas, self.upd, self.pts, self.ph = A, pfx, reads, mfmas, upd, pts, ph
        self.n = len(reads(0, 0)); self.nm = len(mfmas(1))
    def first(self, xb=(), cinit=None):
        A = self.A
        for r in self.reads(0, 0): A(r)
        m0 = [(m[:m.rindex(",")] + ", " + (cinit(i) if cinit else "0"), need) for i, (m, need) in enumerate(self.mfmas(0))]
        group(A, m0, self.reads(1, 1), self.n, self.upd(), self.pts)
        group(A, self.mfmas(1), self.reads(0, 0), self.n, xb, self.pts)
    def it(self, pre=None, xb=()):
        A = self.A
        group(A, self.mfmas(0), self.reads(1, 1), self.n, self.upd(), self.pts)
        if pre: pre()
        A("s_barrier")
        group(A, self.mfmas(1), self.reads(0, 0), self.n, xb, self.pts)
    def loop(self, tag, count):
        A = self.A
        if isinstance(count, int): A("s_mov_b32 s%d, %d" % (CNT, count))
        else: A(count)
        align(A)
        A.label(self.pfx + tag)
        self.it(None, [(self.nm - 3, "s_sub_u32 s%d, s%d, 1" % (CNT, CNT)), (self.nm - 2, "s_cmp_lg_u32 s%d, 0" % CNT)])
        A("s_cbranch_scc1 %s%s" % (self.pfx, tag))
    def tail(self, work=()):
        A = self.A
        work = list(work)
        na = self.nm - 3
        group(A, self.mfmas(0), self.reads(1, 1), self.n, list(enumerate(slot_adv(self.ph))) + spread(work[:na], self.nm, 3, 1), self.pts)
        group(A, self.mfmas(1), [], self.n, spread(work[na:], self.nm, 0, 2), self.pts)

def gen(**kw):
    cfg = Cfg()
    for k, val in kw.items():
        assert hasattr(Cfg, k), k
        setattr(cfg, k, val)
    A = Asm()
    HL = cfg.hl
    ALN[0] = cfg.al; ALN[1] = cfg.alp
    NLP = 72 if cfg.csb else 216
    GSLEEP[0] = cfg.gsleep
    late = []
    KN = NAME + "_kernel"
    A.raw(".globl %s\n.p2align 8\n.type %s,@function" % (KN, KN))
    A.label(KN)
    A("s_cmp_ge_u32 s2, 256")
    A("s_cbranch_scc1 k_end")
    A("s_load_dwordx16 s[64:79], s[0:1], 0")
    A("s_load_dwordx16 s[80:95], s[0:1], 64")
    A("s_load_dwordx2 s[96:97], s[0:1], 128")
    A("s_memrealtime s[%d:%d]" % (TAG, TAG + 1))
    A("v_lshrrev_b32 v1, 6, v0")
    A("v_and_b32 v2, 63, v0")
    A("v_readfirstlane_b32 s%d, v1" % WAVE)
    A("s_and_b32 s%d, s2, 7" % XCD)
    A("s_lshr_b32 s%d, s2, 3" % SLOTR)
    A("s_sub_u32 s3, s%d, 19" % SLOTR)
    A("s_cmp_lt_u32 s3, 8")
    A("s_cselect_b32 s%d, %d, %d" % (RING, 3, 4))
    A("s_mul_i32 s%d, s%d, %d" % (RING, RING, SLOT2))
    A("v_lshlrev_b32 v%d, 3, v2" % VL8)
    if cfg.stamp:
        A("v_mov_b32 v255, 0")
        A("s_waitcnt lgkmcnt(0)")
        A("v_writelane_b32 v255, s%d, 0" % TAG)
    TT, PT, FT, DT, SP, ST, D3, KT3, NF, F0 = 30, 31, 32, 33, 34, 35, 36, 37, 38, 39
    A("s_cmp_ge_u32 s%d, 12" % SLOTR)
    A("s_cselect_b32 s%d, 1, 0" % TT)
    A("s_cselect_b32 s%d, 12, 0" % PT)
    A("s_cmp_ge_u32 s%d, 27" % SLOTR)
    A("s_cselect_b32 s%d, 20, s%d" % (PT, PT))
    A("s_sub_u32 s%d, s%d, s%d" % (PT, SLOTR, PT))
    A("s_lshl_b32 s3, s%d, 1" % XCD)
    A("s_add_u32 s%d, s%d, s3" % (TT, TT))
    A("s_cmp_ge_u32 s%d, 4" % WAVE)
    A("s_cbranch_scc1 hi_entry")

    def ids23():
        A("s_lshl_b32 s3, s%d, 3" % XCD)
        A("s_mov_b32 s%d, 0x%x\ns_mov_b32 s%d, 0x%x" % (FT, 0x0206090c, FT + 1, 0x0f121518))
        A("s_lshr_b64 s[%d:%d], s[%d:%d], s3" % (FT, FT + 1, FT, FT + 1))
        A("s_and_b32 s%d, s%d, 0xff" % (FT, FT))
        A("s_add_u32 s%d, s%d, s%d" % (FT, FT, SLOTR))
        A("s_cmp_ge_u32 s%d, 27" % FT)
        A("s_cselect_b32 s3, 27, 0")
        A("s_sub_u32 s%d, s%d, s3" % (FT, FT))
        A("s_mul_i32 s3, s%d, 27" % XCD)
        A("s_add_u32 s3, s3, s%d" % FT)
        A("s_mul_i32 s%d, s3, 43691" % FT)
        A("s_lshr_b32 s%d, s%d, 18" % (FT, FT))
        A("s_mul_i32 s%d, s%d, 6" % (DT, FT))
        A("s_sub_u32 s%d, s3, s%d" % (DT, DT))
        A("s_lshr_b32 s%d, s%d, 1" % (SP, XCD))
        A("s_and_b32 s3, s%d, 1" % XCD)
        A("s_lshl_b32 s3, s3, 3")
        A("s_lshr_b32 s%d, s%d, 2" % (ST, SLOTR))
        A("s_add_u32 s%d, s%d, s3" % (ST, ST))
        A("s_and_b32 s%d, s%d, 3" % (D3, SLOTR))
        A("s_cmp_ge_u32 s%d, 2" % SP)
        A("s_cselect_b32 s%d, 4, 5" % NF)
        A("s_add_u32 s%d, s%d, 18" % (KT3, NF))
        A("s_mul_i32 s%d, s%d, 5" % (F0, SP))
        A("s_cmp_eq_u32 s%d, 3" % SP)
        A("s_cselect_b32 s%d, 14, s%d" % (F0, F0))

    WR, WC = 40, 41
    KEY3 = 42
    def lane_c23():
        A("v_lshrrev_b32 v5, 2, v2")
        A("v_and_b32 v6, 7, v5")
        A("v_and_b32 v7, 3, v2")
        A("v_lshlrev_b32 v7, 3, v7")
        A("v_lshl_add_u32 v7, v5, 8, v7")
        A("s_lshl_b32 s44, s%d, 2" % WR)
        for aa in range(4):
            A("s_add_u32 s45, s44, %d" % aa)
            A("v_xor_b32 v8, s45, v6")
            A("v_lshl_add_u32 v%d, v8, 5, v7" % (204 + aa))
        A("s_mul_i32 s45, s%d, 6144" % WC)
        A("s_add_u32 s45, s45, 16384")
        A("v_lshlrev_b32 v216, 4, v2")
        A("v_add_u32 v208, s45, v216")
        A("s_lshl_b32 s44, s%d, 1" % WAVE)
        for aa in range(2):
            A("s_add_u32 s45, s44, %d" % aa)
            A("v_xor_b32 v8, s45, v6")
            A("v_lshl_add_u32 v%d, v8, 5, v7" % (209 + aa))
        A("v_and_b32 v3, 15, v2")
        A("v_lshrrev_b32 v4, 4, v2")
        A("v_and_b32 v5, 7, v3")
        A("v_xor_b32 v5, v5, v4")
        A("v_lshlrev_b32 v5, 4, v5")
        A("v_lshl_add_u32 v5, v3, 7, v5")
        A("v_add_u32 v211, 16384, v5")
        A("v_xor_b32 v212, 64, v211")
        A("v_add_u32 v213, 16384, v216")
        A("v_add_u32 v214, 17408, v216")
        A("v_lshlrev_b32 v217, 3, v4")
        A("v_mov_b32 v215, v216")
        if cfg.side:
            A("v_lshrrev_b32 v5, 3, v2")
            A("v_cmp_eq_u32 vcc, 3, v5")
            A("v_add_u32 v5, 0x%x, v215" % (SIDE + 128))
            A("s_nop 0")
            A("v_cndmask_b32 v215, v215, v5, vcc")
    def wrwc():
        A("s_and_b32 s%d, s%d, 1" % (WR, WAVE))
        A("s_lshr_b32 s%d, s%d, 1" % (WC, WAVE))
    RAW = 164; X = 174; TT_ = 220; RS = 1344
    S0, S2, M, MB, RSV = 192, 193, 194, 196, 197
    LA = 238
    def ln_load():
        A("s_lshr_b32 s44, s2, 2")
        A("s_lshl_b32 s44, s44, 5")
        A("s_and_b32 s45, s2, 3")
        A("s_lshl_b32 s45, s45, 2")
        A("s_add_u32 s44, s44, s45")
        A("s_lshr_b32 s45, s%d, 1" % WAVE)
        A("s_lshl_b32 s45, s45, 4")
        A("s_add_u32 s44, s44, s45")
        A("s_and_b32 s45, s%d, 1" % WAVE)
        A("s_lshl_b32 s45, s45, 1")
        A("s_add_u32 s51, s44, s45")
        A("s_mul_i32 s44, s51, 1152")
        A("v_lshrrev_b32 v3, 5, v2")
        A("v_and_b32 v4, 31, v2")
        A("v_mul_u32_u24 v5, 1152, v3")
        A("v_lshl_add_u32 v6, v4, 2, v5")
        A("v_lshl_add_u32 v5, v4, 3, v5")
        A("s_waitcnt lgkmcnt(0)")
        srd(A, 4, PX, SZ_X)
        for j in range(4):
            A("buffer_load_dwordx2 %s, v5, s[4:7], s44 offen offset:%d" % (v(RAW + 2 * j, 2), j * 256))
        A("buffer_load_dword v%d, v6, s[4:7], s44 offen offset:1024" % (RAW + 8))
        A("s_mul_i32 s45, s%d, %d" % (WAVE, 2 * RS))
        A("s_add_u32 s45, s45, %d" % LDS_LN)
        A("v_mul_u32_u24 v%d, %d, v3" % (LA, RS))
        A("v_add_u32 v%d, s45, v%d" % (LA, LA))
        A("v_lshl_add_u32 v195, v4, 2, v%d" % LA)
        A("v_lshl_add_u32 v%d, v4, 3, v%d" % (LA, LA))
        A("v_lshlrev_b32 v198, 3, v3")
        A("v_bfe_u32 v5, v2, 2, 2")
        A("v_mul_u32_u24 v5, %d, v5" % RS)
        A("v_and_b32 v6, 3, v2")
        A("v_lshl_add_u32 v5, v6, 3, v5")
        A("v_lshrrev_b32 v6, 4, v2")
        A("v_lshl_add_u32 v5, v6, 5, v5")
        A("v_add_u32 v%d, %d, v5" % (LA + 1, LDS_LN))
        A("v_and_b32 v5, 15, v2")
        A("v_lshlrev_b32 v5, 4, v5")
        A("v_lshl_add_u32 v199, v6, 11, v5")
        if cfg.side:
            A("s_and_b32 s45, s2, 3")
            A("s_cmp_eq_u32 s45, 1")
            A("s_cselect_b32 s45, 0x%x, 0" % (SIDE + 128))
            A("v_cmp_le_u32 vcc, 128, v5")
            A("v_add_u32 v5, s45, v199")
            A("s_nop 0")
            A("v_cndmask_b32 v199, v199, v5, vcc")
    N = 18
    def unpack(src):
        for j in range(9):
            A("v_lshlrev_b32 v%d, 16, v%d" % (X + 2 * j, src + j))
            A("v_and_b32 v%d, 0xffff0000, v%d" % (X + 2 * j + 1, src + j))
    def sum32(r):
        row16_sum(A, r)
        A("v_mov_b32 v%d, v%d" % (S2, r))
        A("s_nop 1")
        A("v_permlane16_swap_b32 v%d, v%d" % (r, S2))
        A("s_nop 1")
        A("v_add_f32 v%d, v%d, v%d" % (r, r, S2))
    def pk(op, d, a, b, mods=""):
        A("v_pk_%s_f32 %s, %s, %s %s" % (op, v(d, 2), v(a, 2), v(b, 2), mods))
    NEG = "neg_lo:[0,1] neg_hi:[0,1]"
    P0, P2, PM, PB, PR_ = 100, 102, 104, 106, 108
    def layernorm():
        pk("add", P0, X, X + 2); pk("add", P2, X + 4, X + 6)
        for j in range(8, 16, 4):
            pk("add", P0, P0, X + j); pk("add", P2, P2, X + j + 2)
        pk("add", P0, P0, X + 16)
        pk("add", P0, P0, P2)
        A("v_add_f32 v%d, v%d, v%d" % (S0, P0, P0 + 1))
        sum32(S0)
        A("v_mul_f32 v%d, s46, v%d" % (PM, S0))
        A("v_mul_f32 v%d, s46, v%d" % (PM + 1, S0))
        round_bf16(A, MB, PM)
        for j in range(0, N, 2): pk("add", TT_ + j, X + j, PM, NEG)
        A("v_mov_b32 v%d, v%d\nv_mov_b32 v%d, v%d" % (PB, MB, PB + 1, MB))
        pk("mul", P0, TT_, TT_); pk("mul", P2, TT_ + 2, TT_ + 2)
        for j in range(4, N, 2):
            d = P0 if j % 4 == 0 else P2
            A("v_pk_fma_f32 %s, %s, %s, %s" % (v(d, 2), v(TT_ + j, 2), v(TT_ + j, 2), v(d, 2)))
        pk("add", P0, P0, P2)
        A("v_add_f32 v%d, v%d, v%d" % (S0, P0, P0 + 1))
        fill = [("v_pk_add_f32 %s, %s, %s %s" % (v(X + j, 2), v(X + j, 2), v(PB, 2), NEG)) for j in range(0, N, 2)]
        fill += [("v_cvt_pk_bf16_f32 v%d, v%d, v%d" % (RAW + j, X + 2 * j, X + 2 * j + 1)) for j in range(9)]
        def F(n):
            for _ in range(n): A(fill.pop(0))
        for sh in (8, 4, 2, 1):
            F(2)
            A("v_add_f32_dpp v%d, v%d, v%d row_ror:%d row_mask:0xf bank_mask:0xf" % (S0, S0, S0, sh))
        A("v_mov_b32 v%d, v%d" % (S2, S0))
        F(2)
        A("v_permlane16_swap_b32 v%d, v%d" % (S0, S2))
        F(2)
        A("v_add_f32 v%d, v%d, v%d" % (S0, S0, S2))
        A("v_mul_f32 v%d, s46, v%d" % (S0, S0))
        round_bf16(A, S0, S0)
        A("v_add_f32 v%d, s47, v%d" % (S0, S0))
        round_bf16(A, S0, S0)
        A("v_sqrt_f32 v%d, v%d" % (S0, S0))
        F(3)
        round_bf16(A, S0, S0)
        A("v_rcp_f32 v%d, v%d" % (RSV, S0))
        F(len(fill))
        unpack(RAW)
        A("v_mov_b32 v%d, v%d\nv_mov_b32 v%d, v%d" % (PR_, RSV, PR_ + 1, RSV))
        for j in range(0, N, 2): pk("mul", X + j, X + j, PR_)
        for j in range(9): A("v_cvt_pk_bf16_f32 v%d, v%d, v%d" % (RAW + j, X + 2 * j, X + 2 * j + 1))
    def ln_compute():
        srd(A, 8, PWS, SZ_HF + SIDE + 128, WS_HF)
        srd(A, 12, PWS, SZ_ST, WS_ST)
        A("s_mov_b32 s46, 0x%x" % f2u(1.0 / 576))
        A("s_mov_b32 s47, 0x%x" % f2u(1e-5))
        A("s_lshl_b32 s51, s51, 3")
        A("s_lshr_b32 s44, s2, 3")
        A("s_mul_i32 s44, s44, %d" % (36 * 2048))
        A("s_and_b32 s45, s2, 7")
        A("s_lshl_b32 s45, s45, 8")
        A("s_add_u32 s44, s44, s45")
        A("s_mov_b32 s45, 0")
        A("s_waitcnt vmcnt(0)")
        tag_issue(A)
        A.label("ln_loop")
        unpack(RAW)
        layernorm()
        A("s_cmp_lg_u32 s45, 0")
        A("s_cbranch_scc1 ln_out")
        A("s_mov_b32 exec_lo, 1\ns_mov_b32 exec_hi, 1")
        A("buffer_store_dwordx2 v[%d:%d], v198, s[12:15], s51 offen sc1" % (MB, RSV))
        A("s_mov_b64 exec, -1")
        A("s_mov_b32 s45, 1")
        A("s_branch ln_loop")
        A.label("ln_out")
        for j in range(4):
            A("ds_write_b64 v%d, %s offset:%d" % (LA, v(RAW + 2 * j, 2), j * 256))
        A("ds_write_b32 v195, v%d offset:1024" % (RAW + 8))
        tag_check(A)
        A("s_waitcnt lgkmcnt(0)")
    def ln_store():
        sk = A.newlabel("lns")
        A("s_cmp_lg_u32 s%d, 0" % WAVE)
        A("s_cbranch_scc1 %s" % sk)
        HB = 32
        for k in range(9):
            A("ds_read_b64_tr_b16 %s, v%d offset:%d" % (v(HB + 4 * k, 2), LA + 1, k * 128))
            A("ds_read_b64_tr_b16 %s, v%d offset:%d" % (v(HB + 4 * k + 2, 2), LA + 1, k * 128 + 4 * RS))
            if k == 6: A("s_waitcnt lgkmcnt(8)")
        for k in range(9):
            A("s_waitcnt lgkmcnt(%d)" % min(15, 16 - 2 * k))
            A("buffer_store_dwordx4 %s, v199, s[8:11], s44 offen sc1" % v(HB + 4 * k, 4))
            A("s_add_u32 s44, s44, %d" % (4 * 2048))
        A("v_mov_b32 v252, 0\nv_mov_b32 v253, 0\nv_mov_b32 v249, %d" % SIG)
        A("ds_write_b128 v249, v[250:253]")
        A("s_waitcnt lgkmcnt(0)")
        A.label(sk)
    def pubH():
        sk = A.newlabel("ph")
        A("s_cmp_lg_u32 s%d, 0" % WAVE)
        A("s_cbranch_scc1 %s" % sk)
        A("s_lshl_b32 s52, s2, 3")
        A("s_waitcnt vmcnt(0)")
        publish(A, 52)
        stamp(A, cfg, 9)
        A.label(sk)
    A.label("c1_entry")
    ln_load()
    A("s_or_b32 s44, s2, s%d" % WAVE)
    A("s_cbranch_scc1 c1_notag")
    srd(A, 60, PDBG, 256)
    A("s_or_b32 s%d, s%d, 1" % (TAG, TAG))
    A("v_mov_b32 v4, s%d\nv_mov_b32 v5, s%d\nv_mov_b32 v6, 0" % (TAG, TAG + 1))
    A("s_mov_b64 exec, 1")
    A("buffer_store_dwordx2 v[4:5], v6, s[60:63], 0 offen sc1")
    A("s_mov_b64 exec, -1")
    A.label("c1_notag")
    wrwc()
    A("v_and_b32 v3, 15, v2")
    A("v_lshrrev_b32 v4, 4, v2")
    A("v_and_b32 v5, 7, v3")
    A("v_xor_b32 v5, v5, v4")
    A("v_lshlrev_b32 v5, 4, v5")
    A("v_lshl_add_u32 v5, v3, 7, v5")
    A("v_and_b32 v6, 1, v3")
    A("v_lshrrev_b32 v7, 1, v3")
    A("v_and_b32 v8, 6, v7")
    A("v_or_b32 v8, v8, v6")
    A("v_xor_b32 v8, v8, v4")
    A("v_lshlrev_b32 v8, 4, v8")
    A("v_mul_u32_u24 v6, 48, v6")
    A("v_add_u32 v6, v6, v7")
    A("v_lshl_add_u32 v8, v6, 7, v8")
    A("s_lshl_b32 s44, s%d, 13" % WR)
    A("s_mul_i32 s45, s%d, 3072" % WC)
    A("s_add_u32 s45, s45, 16384")
    A("v_add_u32 v200, s44, v5")
    A("v_xor_b32 v201, 64, v200")
    A("v_add_u32 v202, s45, v8")
    A("v_xor_b32 v203, 64, v202")
    A("v_lshlrev_b32 v218, 4, v4")
    A("v_lshl_add_u32 v218, v3, 6, v218")
    CA = 10
    for i in range(4): A("v_add_u32 v%d, s%d, v%d" % (CA + i, RING, 200 + i))
    ACC1 = 32; SETS1 = [80, 108]; RSUM = 136; CSUM = 152; ONES = 20
    A("v_lshlrev_b32 v219, 4, v3")
    if cfg.csb: A("v_lshlrev_b32 v20, 4, v4")
    else:
        for i in range(4): A("v_mov_b32 v%d, 0x3f803f80" % (ONES + i))
    ids23(); lane_c23()
    srd(A, FSRD, PWS, SZ_FL, WS_FL)
    def reads1(st, ks):
        b = SETS1[st]
        P = lambda aa: "ds_read_b128 %s, v%d offset:%d" % (v(b + 4 * aa, 4), CA + ks, aa * 2048)
        Q = lambda xb: "ds_read_b128 %s, v%d offset:%d" % (v(b + 16 + 4 * xb, 4), CA + 2 + ks, xb * 1024)
        return [P(0), Q(0), Q(1), Q(2), P(1), P(2), P(3)]
    def mfmas1(st):
        b = SETS1[st]; m = []
        for aa in range(4):
            for xb in range(3):
                d = v(ACC1 + (aa * 3 + xb) * 4, 4)
                m.append(("%s %s, %s, %s, %s" % (MFMA, d, v(b + 16 + 4 * xb, 4), v(b + 4 * aa, 4), d), max(1 + xb, 3 + aa if aa else 0)))
            if aa < 3 and not cfg.csb:
                d = v(CSUM + 4 * aa, 4)
                m.append(("%s %s, %s, %s, %s" % (MFMA, d, v(b + 16 + 4 * aa, 4), v(ONES, 4), d), 0))
        return m
    def upd1():
        sa = slot_adv(1)
        return [(5, sa[0]), (6, sa[1]), (7, sa[2])] + [(8 + i, "v_add_u32 v%d, s%d, v%d" % (CA + i, RING, 200 + i)) for i in range(4)]
    def only3(fn):
        def f():
            sk = A.newlabel("w3")
            A("s_cmp_lg_u32 s%d, 3" % WAVE)
            A("s_cbranch_scc1 %s" % sk)
            fn()
            A.label(sk)
        return f
    A("s_mul_i32 s44, s%d, 6" % PT)
    A("s_mul_i32 s45, s%d, 3" % WC)
    A("s_add_u32 s44, s44, s45")
    A("s_lshl_b32 s54, s44, 6")
    A("s_add_u32 s54, s54, 16384")
    A("s_lshl_b32 s44, s44, 16")
    A("s_lshl_b32 s45, s%d, 1" % TT)
    A("s_add_u32 s45, s45, s%d" % WR)
    A("s_lshl_b32 s49, s45, 9")
    A("s_lshl_b32 s45, s45, 11")
    A("s_add_u32 s42, s44, s45")
    A("s_add_u32 s43, s42, 65536")
    A("s_add_u32 s48, s42, 131072")
    A("s_lshl_b32 s50, s%d, 4" % PT)
    A("s_add_u32 s50, s50, s%d" % TT)
    A("s_lshl_b32 s50, s50, 2")
    A("s_add_u32 s50, s50, s%d" % WAVE)
    A("s_lshl_b32 s50, s50, 3")
    A("s_add_u32 s50, s50, %d" % FL_G)
    ln_compute()
    stamp(A, cfg, 1)
    A("s_barrier")
    ln_store()
    A("s_sub_u32 s3, s%d, 19" % SLOTR)
    A("s_cmp_lt_u32 s3, 8")
    A("s_cbranch_scc1 ln_lo")
    A("s_barrier")
    stamp(A, cfg, 2)
    BIAS = 24; BF = 224
    def biasld():
        srd(A, 4, PB1, 9216)
        A("s_lshl_b32 s44, s%d, 8" % FT)
        A("s_lshl_b32 s45, s%d, 7" % WR)
        A("s_add_u32 s44, s44, s45")
        for aa in range(4):
            A("buffer_load_dwordx2 %s, v217, s[4:7], s44 offen offset:%d" % (v(BIAS + 2 * aa, 2), aa * 32))
    def biasup():
        for k in range(8):
            A("v_lshlrev_b32 v%d, 16, v%d" % (BF + 2 * k, BIAS + k))
            A("v_and_b32 v%d, 0xffff0000, v%d" % (BF + 2 * k + 1, BIAS + k))
    def statld():
        for ap in range(2):
            A("buffer_load_dwordx4 %s, v219, s[12:15], s49 offen offset:%d sc1" % (v(RSUM + 4 * ap, 4), ap * 256))
        if cfg.csb:
            for xb in range(3):
                A("buffer_load_dwordx4 %s, v20, s[12:15], s54 offen offset:%d sc1" % (v(CSUM + 4 * xb, 4), xb * 64))
    P1 = Phase(A, "c1", reads1, mfmas1, upd1, (0, 3) if cfg.csb else (0, 4), 1)
    P1.first()
    P1.it(pubH)
    P1.loop("_loop", 3)
    P1.it(lambda: (only3(lambda: wide_issue(A))(), biasld()))
    P1.it(only3(lambda: (stamp(A, cfg, 11), wide_check(A), stamp(A, cfg, 14))))
    P1.it(statld)
    P1.tail(capture(A, lambda: srd(A, 12, PWS, SZ_G, WS_G)))
    stamp(A, cfg, 3)
    MN = 80; RR = 88
    A("s_waitcnt vmcnt(0)")
    for aa in range(4):
        for q in range(2):
            A("v_sub_f32 v%d, 0, v%d" % (MN + 2 * aa + q, RSUM + 2 * aa))
            A("v_mov_b32 v%d, v%d" % (RR + 2 * aa + q, RSUM + 2 * aa + 1))
    for ap in range(2):
        for xb in range(3):
            O = 168 + 4 * (ap * 3 + xb)
            hq = [(h, q) for h in range(2) for q in range(2)]
            D_ = lambda h, q: ACC1 + ((2 * ap + h) * 3 + xb) * 4 + 2 * q
            for h, q in hq: A("v_pk_fma_f32 %s, %s, %s, %s" % (v(D_(h, q), 2), v(MN + 2 * (2 * ap + h), 2), v(CSUM + 4 * xb + 2 * q, 2), v(D_(h, q), 2)))
            for h, q in hq: A("v_pk_mul_f32 %s, %s, %s" % (v(D_(h, q), 2), v(D_(h, q), 2), v(RR + 2 * (2 * ap + h), 2)))
            for h, q in hq: A("v_cvt_pk_bf16_f32 v%d, v%d, v%d" % (O + 2 * h + q, D_(h, q), D_(h, q) + 1))
            A("buffer_store_dwordx4 %s, v218, s[12:15], s%d offen offset:%d sc1" % (v(O, 4), (42, 43, 48)[xb], ap * 1024))
    ACC2 = 32; SETS2 = [80, 108]
    biasup()
    A("s_mov_b32 s53, 1")
    A("s_mov_b32 s52, s50")
    A("s_barrier")
    if cfg.gpub:
        A("s_waitcnt vmcnt(0)")
        publish(A, 52)
        A("s_mov_b32 s53, 0")
        A("s_cmp_lt_u32 s%d, 27" % SLOTR)
        A("s_cbranch_scc1 c2_main")
    else:
        A("s_cmp_lt_u32 s%d, 27" % SLOTR)
        A("s_cbranch_scc1 c2_main")
        A("s_waitcnt vmcnt(0)")
        publish(A, 52)
    A("s_branch scan_entry")
    A.label("c2_entry")
    biasup()
    A("s_mov_b32 s53, 0")
    A("s_barrier")
    A.label("c2_main")
    for i in range(5): A("v_add_u32 v%d, s%d, v%d" % (CA + i, RING, 204 + i))
    A("s_barrier")
    stamp(A, cfg, 4)
    def reads2(st, ks):
        b = SETS2[st]
        P = lambda aa: ["ds_read_b64_tr_b16 %s, v%d offset:%d" % (v(b + 4 * aa, 2), CA + aa, ks * 8192),
                        "ds_read_b64_tr_b16 %s, v%d offset:%d" % (v(b + 4 * aa + 2, 2), CA + aa, ks * 8192 + 4096)]
        Q = lambda xb: ["ds_read_b128 %s, v%d offset:%d" % (v(b + 16 + 4 * xb, 4), CA + 4, xb * 2048 + ks * 1024)]
        if cfg.ord2 == 2: return P(0) + Q(0) + P(1) + P(2) + P(3) + Q(1) + Q(2)
        return P(0) + Q(0) + Q(1) + Q(2) + P(1) + P(2) + P(3)
    def mfmas2(st):
        b = SETS2[st]; m = []
        if cfg.ord2 == 2:
            order = [(aa if xb % 2 == 0 else 3 - aa, xb) for xb in range(3) for aa in range(4)]
            need = lambda aa, xb: max(2 + 2 * aa if aa else 2, 8 + xb if xb else 0)
        else:
            order = [(aa, xb if (cfg.ord2 == 0 or aa % 2 == 0) else 2 - xb) for aa in range(4) for xb in range(3)]
            need = lambda aa, xb: max(2 + xb, 4 + 2 * aa if aa else 0)
        for aa, xb in order:
            d = v(ACC2 + (aa * 3 + xb) * 4, 4)
            m.append(("%s %s, %s, %s, %s" % (MFMA, d, v(b + 4 * aa, 4), v(b + 16 + 4 * xb, 4), d), need(aa, xb)))
        return m
    def upd2():
        sa = slot_adv(2)
        U = lambda i: "v_add_u32 v%d, s%d, v%d" % (CA + i, RING, 204 + i)
        if cfg.ord2 == 2: return [(0, sa[0]), (1, sa[1]), (2, sa[2]), (4, U(0)), (5, U(1)), (7, U(2)), (9, U(3)), (11, U(4))]
        return [(0, sa[0]), (1, sa[1]), (2, sa[2]), (4, U(0)), (5, U(4)), (7, U(1)), (9, U(2)), (11, U(3))]
    def pubG():
        sk = A.newlabel("pg")
        A("s_cmp_eq_u32 s53, 0")
        A("s_cbranch_scc1 %s" % sk)
        A("s_waitcnt vmcnt(0)")
        publish(A, 52)
        A.label(sk)
    def gelu_setup():
        c1 = -2.0 * math.sqrt(2.0 / math.pi) * math.log2(math.e); c2 = c1 * 0.044715
        for (r, val) in ((28, c1), (136, c2), (138, 1.0)):
            A("v_mov_b32 v%d, 0x%x\nv_mov_b32 v%d, 0x%x" % (r, f2u(val), r + 1, f2u(val)))
        srd(A, 12, PWS, SZ_UF + SIDE + 128, WS_UF)
        A("s_lshl_b32 s44, s%d, 1" % FT)
        A("s_add_u32 s44, s44, s%d" % WR)
        A("s_lshl_b32 s45, s%d, 1" % DT)
        A("s_add_u32 s45, s45, s%d" % WC)
        A("s_mul_i32 s46, s44, 12")
        A("s_add_u32 s46, s46, s45")
        A("s_mul_i32 s46, s46, %d" % (3 * PAIR))
        A("s_add_u32 s47, s46, 4096")
        A("s_mul_i32 s48, s44, 3641")
        A("s_lshr_b32 s48, s48, 16")
        A("s_mul_i32 s49, s45, 21846")
        A("s_lshr_b32 s49, s49, 16")
        A("s_mul_i32 s50, s48, 18")
        A("s_sub_u32 s50, s44, s50")
        A("s_sub_u32 s50, s50, s49")
        A("s_mul_i32 s50, s50, 3")
        A("s_add_u32 s50, s50, s45")
        A("s_lshl_b32 s50, s50, 3")
        A("s_lshl_b32 s49, s49, 2")
        A("s_add_u32 s49, s49, s48")
        A("s_lshl_b32 s49, s49, 9")
        A("s_add_u32 s52, s50, s49")
        A("s_add_u32 s52, s52, %d" % FL_U)

    P2 = Phase(A, "c2", reads2, mfmas2, upd2, (0, 2, 4) if cfg.ord2 == 2 else (0, 3, 6), 2)
    assert cfg.ord2 == 0
    P2.first(cinit=(lambda i: v(BF + 4 * (i // 3), 4)) if cfg.binit else None)
    pubG(); stamp(A, cfg, 10)
    P2.loop("_loop", 30)
    P2.tail(capture(A, gelu_setup))
    stamp(A, cfg, 5)
    if not cfg.upub:
        A("v_mov_b32 v16, %d" % SIG)
        A("ds_read_b32 v16, v16 offset:8")
        A("s_waitcnt lgkmcnt(0)")
    if cfg.xpos == 0: A("s_barrier")
    else: A("s_nop 7")
    T = 80
    for ap in range(2):
        for xb in range(3):
            if cfg.xpos and ap * 3 + xb == cfg.xpos: A("s_barrier")
            prs = [ACC2 + ((ap * 2 + h) * 3 + xb) * 4 + 2 * q for h in range(2) for q in range(2)]
            if not cfg.binit:
                for i, x in enumerate(prs): A("v_pk_add_f32 %s, %s, %s" % (v(x, 2), v(x, 2), v(BF + ap * 8 + 2 * i, 2)))
            for i, x in enumerate(prs): A("v_pk_mul_f32 %s, %s, %s" % (v(T + 2 * i, 2), v(x, 2), v(x, 2)))
            for i, x in enumerate(prs): A("v_pk_fma_f32 %s, %s, v[136:137], v[28:29]" % (v(T + 2 * i, 2), v(T + 2 * i, 2)))
            for i, x in enumerate(prs): A("v_pk_mul_f32 %s, %s, %s" % (v(T + 2 * i, 2), v(T + 2 * i, 2), v(x, 2)))
            for i in range(8): A("v_exp_f32 v%d, v%d" % (T + i, T + i))
            for i, x in enumerate(prs): A("v_pk_add_f32 %s, %s, v[138:139]" % (v(T + 2 * i, 2), v(T + 2 * i, 2)))
            for i in range(8): A("v_rcp_f32 v%d, v%d" % (T + i, T + i))
            for i, x in enumerate(prs): A("v_pk_mul_f32 %s, %s, %s" % (v(T + 2 * i, 2), v(T + 2 * i, 2), v(x, 2)))
            O = 140 + 4 * (ap * 3 + xb)
            for i in range(4):
                A("v_cvt_pk_bf16_f32 v%d, v%d, v%d" % (O + i, T + 2 * i, T + 2 * i + 1))
            off = xb * 2048 + ap * 1024
            A("buffer_store_dwordx4 %s, v215, s[12:15], s%d offen offset:%d sc1" % (v(O, 4), 46 + off // 4096, off % 4096))
    ACC3 = 24; SETS3 = [96, 140]
    A("s_mov_b32 s53, 1")
    if not cfg.upub:
        A("v_readfirstlane_b32 s44, v16")
        A("s_cmp_lg_u32 s44, 0")
        A("s_cbranch_scc1 c3_main")
    pubG()
    A("s_mov_b32 s53, 0")
    A("s_branch c3_main")
    A.label("c3_entry")
    wrwc(); lane_c23()
    A("s_mov_b32 s53, 0")
    A.label("c3_main")
    A("s_barrier")
    A("s_barrier")
    stamp(A, cfg, 6)
    for i in range(4): A("v_add_u32 v%d, s%d, v%d" % (CA + i, RING, 209 + i))
    def reads3(st, ks):
        b = SETS3[st]; r = ["ds_read_b128 %s, v%d offset:0" % (v(b + 8, 4), CA + 2 + ks)]
        for aa in range(2):
            r.append("ds_read_b64_tr_b16 %s, v%d offset:%d" % (v(b + 4 * aa, 2), CA + aa, ks * 8192))
            r.append("ds_read_b64_tr_b16 %s, v%d offset:%d" % (v(b + 4 * aa + 2, 2), CA + aa, ks * 8192 + 4096))
        for xb in range(1, 9):
            if cfg.hack3 and xb % 2: continue
            r.append("ds_read_b128 %s, v%d offset:%d" % (v(b + 8 + 4 * xb, 4), CA + 2 + ks, xb * 2048))
        return r
    def mfmas3(st):
        b = SETS3[st]; m = []
        order = [(xb, aa if (cfg.ord3 == 0 or xb % 2 == 0) else 1 - aa) for xb in range(9) for aa in range(2)]
        for xb, aa in order:
            if True:
                d = v(ACC3 + (xb * 2 + aa) * 4, 4)
                m.append(("%s %s, %s, %s, %s" % (MFMA, d, v(b + 8 + 4 * (xb & ~1 if cfg.hack3 else xb), 4), v(b + 4 * aa, 4), d), max(2 + 2 * aa, (4 + xb // 2 if cfg.hack3 else 4 + xb) if xb else 0)))
        return m
    def upd3():
        sa = slot_adv(3)
        U = lambda i: "v_add_u32 v%d, s%d, v%d" % (CA + i, RING, 209 + i)
        return [(7, sa[0]), (8, sa[1]), (9, sa[2]), (11, U(0)), (13, U(1)), (14, U(2)), (15, U(3))]
    def umode():
        A("v_mov_b32 v211, v213\nv_mov_b32 v212, v214")
        A("v_add_u32 v%d, s%d, v213" % (CA + 2, RING))
        A("v_add_u32 v%d, s%d, v214" % (CA + 3, RING))
    def exsetup():
        srd(A, 12, PWS, SZ_EX, WS_EX)
        A("s_lshl_b32 s44, s%d, 2" % ST)
        A("s_add_u32 s44, s44, s%d" % D3)
        A("s_lshl_b32 s44, s44, 2")
        A("s_add_u32 s44, s44, s%d" % WAVE)
        A("s_lshl_b32 s52, s44, 7")
        A("s_lshl_b32 s45, s%d, 3" % SP)
        A("s_add_u32 s52, s52, s45")
        A("s_add_u32 s52, s52, %d" % FL_X)
        A("s_lshl_b32 s44, s44, 2")
        A("s_add_u32 s44, s44, s%d" % SP)
        A("s_mul_i32 s44, s44, 9216")

    P3 = Phase(A, "c3", reads3, mfmas3, upd3, (0, 6), 3)
    P3.first()
    pubG(); stamp(A, cfg, 12)
    P3.loop("_f", "s_sub_u32 s%d, s%d, 2" % (CNT, NF))
    P3.it(lambda: (umode(), stamp(A, cfg, 13)))
    P3.loop("_u", 17)
    def xst(xb):
        o = 96 + 4 * xb
        r = ["v_cvt_pk_bf16_f32 v%d, v%d, v%d" % (o + k, ACC3 + 8 * xb + 2 * k, ACC3 + 8 * xb + 2 * k + 1) for k in range(4)]
        r.append("buffer_store_dwordx4 %s, v216, s[12:15], s44 offen offset:%d sc1" % (v(o, 4), (xb % 4) * 1024))
        if xb % 4 == 3: r.append("s_add_u32 s44, s44, 4096")
        return r
    def xow(xb):
        return ["ds_write_b128 v16, %s offset:%d" % (v(ACC3 + 4 * t, 4), t * 1024) for t in (2 * xb, 2 * xb + 1)]
    if cfg.xint:
        work = capture(A, exsetup) + ["v_add_u32 v16, %d, v216" % LDS_OWN, "s_cmp_eq_u32 s%d, s%d" % (WAVE, SP)]
        group(A, mfmas3(0), reads3(1, 1), 13, spread(work, 18, 0, 1), (0, 6))
        A("s_cbranch_scc1 c3_own")
        def last(fn):
            ex = []
            for xb in range(9):
                ex += [(2 * xb + 9, t) for t in fn(xb)] if 2 * xb + 9 <= 17 else []
            group(A, mfmas3(1), [], 13, ex, (0, 6))
            for xb in range(5, 9):
                if xb == 8 or (xb == 7 and fn is xow): A("s_nop 3")
                for t in fn(xb): A(t)
        last(xst)
        stamp(A, cfg, 7)
    else:
        P3.tail(capture(A, exsetup))
        stamp(A, cfg, 7)
        A("s_nop 3")
        A("s_cmp_eq_u32 s%d, s%d" % (WAVE, SP))
        A("s_cbranch_scc1 c3_own")
        for xb in range(9):
            for t in xst(xb): A(t)
    A("s_waitcnt vmcnt(0)")
    publish(A, 52)
    if cfg.stamp:
        A("s_barrier")
        A("s_branch k_done")
    A("s_endpgm")
    A.label("c3_own")
    if cfg.xint:
        last(xow)
        stamp(A, cfg, 7)
    else:
        A("v_add_u32 v16, %d, v216" % LDS_OWN)
        for xb in range(9):
            for t in xow(xb): A(t)
    A("s_waitcnt lgkmcnt(0)")
    A("s_barrier")
    A("s_branch k_done")

    A.label("hi_entry")
    A("s_sub_u32 s3, s%d, 19" % SLOTR)
    A("s_cmp_lt_u32 s3, 8")
    A("s_cbranch_scc1 ln_hi")
    LW = 23
    M0P, M0Q = 40, 41
    OP, OQ = 42, 43
    A("s_sub_u32 s%d, s%d, 4" % (LW, WAVE))
    A("v_lshrrev_b32 v3, 3, v2")
    A("v_and_b32 v4, 7, v2")
    A("v_xor_b32 v6, v4, v3")
    A("s_movk_i32 s44, 1152")
    A("v_mul_lo_u32 v5, v3, s44")
    A("v_lshlrev_b32 v8, 1, v5")
    A("v_lshl_add_u32 v10, v6, 4, v8")
    A("s_lshr_b32 s44, s%d, 1" % LW)
    A("v_and_b32 v7, 6, v3")
    A("v_or_b32 v7, s44, v7")
    A("v_xor_b32 v7, v4, v7")
    A("v_lshl_add_u32 v14, v7, 4, v5")
    for m in range(1, 4):
        A("v_add_u32 v%d, 0x%x, v10" % (10 + m, (16 * (m & 1) + (m >> 1)) * 1152 - (m & 1) * 1024))
    for m in range(1, 3):
        A("v_add_u32 v%d, 0x%x, v14" % (14 + m, m * (8 * 1152 - 1024)))
    A("s_lshl_b32 s%d, s%d, 7" % (OP, TT))
    A("s_lshl_b32 s45, s%d, 5" % LW)
    A("s_add_u32 s%d, s%d, s45" % (OP, OP))
    A("s_mul_i32 s%d, s%d, 1152" % (OP, OP))
    A("s_mul_i32 s%d, s%d, 48" % (OQ, PT))
    A("s_and_b32 s45, s%d, 1" % LW)
    A("s_mul_i32 s45, s45, 24")
    A("s_add_u32 s%d, s%d, s45" % (OQ, OQ))
    A("s_mul_i32 s%d, s%d, 1152" % (OQ, OQ))
    A("s_lshl_b32 s%d, s%d, 12" % (M0P, LW))
    A("s_mul_i32 s%d, s%d, 3072" % (M0Q, LW))
    A("s_add_u32 s%d, s%d, 16384" % (M0Q, M0Q))
    if cfg.rot1:
        A("s_lshl_b32 s46, s%d, 2" % TT)
        A("s_add_u32 s46, s46, s%d" % PT)
        A("s_mul_i32 s47, s46, 7282")
        A("s_lshr_b32 s47, s47, 16")
        A("s_mul_i32 s47, s47, 9")
        A("s_sub_u32 s46, s46, s47")
        A("s_lshl_b32 s47, s46, 7")
        A("s_add_u32 s%d, s%d, s47" % (OP, OP))
        A("s_add_u32 s%d, s%d, s47" % (OQ, OQ))
    A("s_waitcnt lgkmcnt(0)")
    srd(A, 4, PX, SZ_X)
    A("s_cmp_ge_u32 s%d, 2" % LW)
    A("s_cselect_b32 s8, s%d, s%d" % (PBIM, PBRE))
    A("s_cselect_b32 s9, s%d, s%d" % (PBIM + 1, PBRE + 1))
    A("s_mov_b32 s10, %d" % SZ_C)
    A("s_mov_b32 s11, 0x00020000")
    def issue1():
        A("s_add_u32 m0, s%d, s%d" % (RING, M0P))
        A("s_add_u32 s45, s%d, s%d" % (RING, M0Q))
        for m in range(4):
            if m == 2:
                A("s_add_u32 m0, m0, 2048")
                A("s_nop 0")
            A("buffer_load_dwordx4 v%d, s[4:7], s%d offen offset:%d lds" % (10 + m, OP, (m & 1) * 1024))
        A("s_mov_b32 m0, s45")
        A("s_add_u32 s%d, s%d, 128" % (OP, OP))
        for m in range(3):
            A("buffer_load_dwordx4 v%d, s[8:11], s%d offen offset:%d lds" % (14 + m, OQ, m * 1024))
        A("s_add_u32 s%d, s%d, 128" % (OQ, OQ))
        if cfg.rot1:
            A("s_add_u32 s46, s46, 1")
            A("s_cmp_eq_u32 s46, 9")
            A("s_cselect_b32 s47, 1152, 0")
            A("s_sub_u32 s%d, s%d, s47" % (OP, OP))
            A("s_sub_u32 s%d, s%d, s47" % (OQ, OQ))
        for t in slot_adv(1): A(t)
    def lane23():
        A("v_lshrrev_b32 v3, 4, v2")
        A("v_and_b32 v4, 15, v2")
        A("v_lshlrev_b32 v6, 1, v3")
        A("v_xor_b32 v7, v4, v6")
        A("v_xor_b32 v8, 8, v7")
        for (b, stride) in ((20, 9216), (24, 4096)):
            A("s_movk_i32 s44, %d" % stride)
            A("v_mul_lo_u32 v5, v3, s44")
            A("v_lshl_add_u32 v%d, v7, 4, v5" % b)
            A("v_lshl_add_u32 v%d, v8, 4, v5" % (b + 1))
            D = 4 * stride - 1024
            A("v_add_u32 v%d, 0x%x, v%d" % (b + 2, 2 * D, b))
            A("v_add_u32 v%d, 0x%x, v%d" % (b + 3, 3 * D, b + 1))
            A("v_add_u32 v%d, 0x%x, v%d" % (b + 1, D, b + 1))
        A("v_lshlrev_b32 v28, 4, v2")
        if cfg.side:
            A("v_lshrrev_b32 v5, 3, v2")
            A("v_cmp_eq_u32 vcc, 3, v5")
            A("v_add_u32 v5, 0x%x, v28" % (SIDE + 128))
            A("s_nop 0")
            A("v_cndmask_b32 v28, v28, v5, vcc")
        A("v_lshrrev_b32 v3, 3, v2")
        A("v_and_b32 v4, 7, v2")
        A("v_xor_b32 v4, v4, v3")
        A("s_movk_i32 s44, 1152")
        A("v_mul_lo_u32 v5, v3, s44")
        A("v_lshl_add_u32 v30, v4, 4, v5")
        for m in range(1, 4):
            A("v_add_u32 v%d, 0x%x, v30" % (30 + m, m * (8 * 1152 - 1024)))
    B2P, B2Q, N2, M6 = 48, 49, 50, 51
    def setup2():
        A("s_mul_i32 s%d, s%d, %d" % (B2P, LW, 16 * 9216))
        A("s_lshl_b32 s44, s%d, 8" % FT)
        A("s_add_u32 s%d, s%d, s44" % (B2P, B2P))
        A("s_mul_i32 s%d, s%d, 12" % (B2Q, DT))
        A("s_mul_i32 s44, s%d, 3" % LW)
        A("s_add_u32 s%d, s%d, s44" % (B2Q, B2Q))
        A("s_lshl_b32 s%d, s%d, 10" % (B2Q, B2Q))
        A("s_mov_b32 s%d, 0\ns_mov_b32 s%d, 0" % (N2, M6))
        tabset()
    def tabset():
        if not cfg.tab2: return
        for dt in range(6):
            order = sorted(range(16), key=lambda p: (p - cfg.tab2 - 0.5) if (p % 6 == dt and p >= cfg.tab2) else p)
            val = sum(p << (4 * i) for i, p in enumerate(order))
            if dt == 0:
                A("s_mov_b32 s56, 0x%x\ns_mov_b32 s57, 0x%x" % (val & 0xffffffff, val >> 32))
            else:
                A("s_cmp_eq_u32 s%d, %d" % (DT, dt))
                A("s_cselect_b32 s56, 0x%x, s56" % (val & 0xffffffff))
                A("s_cselect_b32 s57, 0x%x, s57" % (val >> 32))
    def srd2():
        srd(A, 4, PW1, SZ_W)
        srd(A, 8, PWS, SZ_HF + SIDE + 128, WS_HF)
    par2 = [0]
    def issue2(which="WX", adv=True):
        odd = par2[0] & 1
        if adv: par2[0] += 1
        if cfg.tab2:
            A("s_and_b32 s44, s56, 15")
            A("s_lshl_b32 s44, s44, 1")
            if odd: A("s_add_u32 s44, s44, 1")
        elif cfg.pair2:
            A("s_add_u32 s44, s%d, 12" % N2)
            A("s_lshl_b32 s45, s%d, 1" % M6)
            if odd: A("s_add_u32 s45, s45, 1")
            A("s_cmp_lt_u32 s44, 32")
            A("s_cselect_b32 s44, s44, s45")
            A("s_cmp_eq_u32 s%d, s%d" % (M6, DT))
            A("s_cselect_b32 s44, s44, s%d" % N2)
        elif cfg.rot2 in (2, 4):
            R = cfg.rot2; ADV = cfg.adv2
            A("s_add_u32 s45, s%d, s%d" % (FT, DT))
            A("s_add_u32 s45, s45, s%d" % N2)
            A("s_and_b32 s45, s45, %d" % (R - 1))
            A("s_cselect_b32 s44, 0, %d" % ADV)
            A("s_add_u32 s44, s44, s%d" % N2)
            A("s_and_b32 s44, s44, 31")
        elif cfg.rot2:
            A("s_add_u32 s44, s%d, 6" % N2)
            A("s_cmp_lt_u32 s44, 32")
            A("s_cselect_b32 s44, s44, s%d" % M6)
            A("s_cmp_eq_u32 s%d, s%d" % (M6, DT))
            A("s_cselect_b32 s44, s44, s%d" % N2)
        else:
            A("s_mov_b32 s44, s%d" % N2)
        A("s_mul_i32 s%d, s44, %d" % (OP, 64 * 9216))
        A("s_add_u32 s%d, s%d, s%d" % (OP, OP, B2P))
        A("s_mul_i32 s%d, s44, %d" % (OQ, 36 * PAIR))
        A("s_add_u32 s%d, s%d, s%d" % (OQ, OQ, B2Q))
        def W():
            A("s_add_u32 m0, s%d, s%d" % (RING, M0P))
            A("s_nop 0")
            for m in range(4):
                A("buffer_load_dwordx4 v%d, s[4:7], s%d offen offset:%d lds" % (20 + m, OP, m * 1024))
        def X():
            A("s_add_u32 m0, s%d, s%d" % (RING, M0Q))
            A("s_nop 0")
            for m in range(3):
                A("buffer_load_dwordx4 v28, s[8:11], s%d offen offset:%d %s lds" % (OQ, m * 1024, HL))
        if which == "W": W()
        elif which == "X": X()
        elif (cfg.pair2 or cfg.tab2) and not odd: X(); W()
        else: W(); X()
        if not adv: return
        if cfg.tab2 and odd: A("s_lshr_b64 s[56:57], s[56:57], 4")
        A("s_add_u32 s%d, s%d, 1" % (N2, N2))
        if odd or not cfg.pair2:
            A("s_add_u32 s%d, s%d, 1" % (M6, M6))
            A("s_cmp_eq_u32 s%d, 6" % M6)
            A("s_cselect_b32 s%d, 0, s%d" % (M6, M6))
        for t in slot_adv(2): A(t)
    B3P, B3C, B3U, N3, PH3, M0X, M0Q3 = 52, 53, 54, 55, 46, 47, 29
    def setup3():
        A("s_lshl_b32 s%d, s%d, 16" % (B3P, LW))
        A("s_lshl_b32 s44, s%d, 8" % ST)
        A("s_add_u32 s%d, s%d, s44" % (B3P, B3P))
        A("s_mul_i32 s%d, s%d, %d" % (B3C, D3, 144 * 1152))
        A("s_mul_i32 s%d, s%d, %d" % (B3U, D3, 9 * PAIR))
        A("s_mul_i32 s44, s%d, %d" % (SP, 18 * 36 * PAIR))
        A("s_add_u32 s%d, s%d, s44" % (B3U, B3U))
        A("s_mov_b32 s%d, s%d" % (N3, F0))
        A("s_add_u32 s%d, s%d, s%d" % (PH3, D3, ST))
        A("s_and_b32 s%d, s%d, 3" % (PH3, PH3))
        A("s_lshl_b32 s%d, s%d, 10" % (M0X, LW))
        A("s_add_u32 s%d, s%d, %d" % (M0X, M0X, 32768))
        A("s_add_u32 s%d, s%d, 16384" % (M0Q3, M0P))
    def issue3f(extra):
        srd(A, 4, PWS, SZ_HT, WS_HT)
        A("s_cmp_ge_u32 s%d, 9" % N3)
        A("s_cselect_b32 s8, s%d, s%d" % (PCIM, PCRE))
        A("s_cselect_b32 s9, s%d, s%d" % (PCIM + 1, PCRE + 1))
        A("s_cselect_b32 s44, 9, 0")
        A("s_mov_b32 s10, %d" % SZ_C)
        A("s_mov_b32 s11, 0x00020000")
        A("s_lshl_b32 s%d, s%d, 18" % (OP, N3))
        A("s_add_u32 s%d, s%d, s%d" % (OP, OP, B3P))
        A("s_add_u32 m0, s%d, s%d" % (RING, M0P))
        A("s_sub_u32 s44, s%d, s44" % N3)
        for m in range(4):
            A("buffer_load_dwordx4 v%d, s[4:7], s%d offen offset:%d %s lds" % (24 + m, OP, m * 1024, HL))
        A("s_lshl_b32 s44, s44, 7")
        A("s_add_u32 s44, s44, s%d" % B3C)
        A("s_mul_i32 s%d, s%d, %d" % (OQ, LW, 32 * 1152))
        A("s_add_u32 m0, s%d, s%d" % (RING, M0Q3))
        A("s_add_u32 s%d, s%d, s44" % (OQ, OQ))
        for m in range(4):
            A("buffer_load_dwordx4 v%d, s[8:11], s%d offen offset:%d lds" % (30 + m, OQ, m * 1024))
        if extra:
            A("s_mul_i32 s%d, s%d, %d" % (OQ, LW, 8 * 1152))
            A("s_add_u32 s44, s44, %d" % (128 * 1152))
            A("s_add_u32 m0, s%d, s%d" % (RING, M0X))
            A("s_add_u32 s%d, s%d, s44" % (OQ, OQ))
            A("buffer_load_dwordx4 v30, s[8:11], s%d offen lds" % OQ)
        A("s_add_u32 s%d, s%d, 1" % (N3, N3))
        for t in slot_adv(3): A(t)
    def switch3u():
        srd(A, 4, PW2, SZ_W)
        srd(A, 8, PWS, SZ_UF + SIDE + 128, WS_UF)
        A("s_mul_i32 s44, s%d, %d" % (SP, 18 * 262144))
        A("s_add_u32 s%d, s%d, s44" % (B3P, B3P))
        A("s_mov_b32 s%d, 0" % N3)
    par3 = [0]
    def issue3u(extra, which="WX"):
        odd = par3[0] & 1; par3[0] += 1
        if cfg.pair3:
            A("s_bfe_u32 s45, s%d, 0x20001" % N3)
            A("s_add_u32 s44, s%d, 8" % N3)
            A("s_and_b32 s%d, s%d, 7" % (OP, N3))
            A("s_cmp_lt_u32 s44, 18")
            A("s_cselect_b32 s44, s44, s%d" % OP)
            A("s_cmp_eq_u32 s45, s%d" % PH3)
            A("s_cselect_b32 s44, s44, s%d" % N3)
        elif cfg.rot3:
            A("s_and_b32 s45, s%d, 3" % N3)
            A("s_add_u32 s44, s%d, 4" % N3)
            A("s_cmp_lt_u32 s44, 18")
            A("s_cselect_b32 s44, s44, s45")
            A("s_cmp_eq_u32 s45, s%d" % PH3)
            A("s_cselect_b32 s44, s44, s%d" % N3)
        else:
            A("s_mov_b32 s44, s%d" % N3)
        A("s_lshl_b32 s%d, s44, 18" % OP)
        A("s_add_u32 s%d, s%d, s%d" % (OP, OP, B3P))
        A("s_mul_i32 s45, s44, %d" % (36 * PAIR))
        A("s_add_u32 s45, s45, s%d" % B3U)
        A("s_add_u32 s%d, s45, s%d" % (OQ, M0P))
        if extra:
            A("s_add_u32 s45, s45, s%d" % M0X)
            A("s_sub_u32 s45, s45, 16384")
        def W():
            A("s_add_u32 m0, s%d, s%d" % (RING, M0P))
            A("s_nop 0")
            for m in range(4):
                A("buffer_load_dwordx4 v%d, s[4:7], s%d offen offset:%d lds" % (24 + m, OP, m * 1024))
        def X():
            A("s_add_u32 m0, s%d, s%d" % (RING, M0Q3))
            A("s_nop 0")
            for m in range(4):
                A("buffer_load_dwordx4 v28, s[8:11], s%d offen offset:%d %s lds" % (OQ, m * 1024, HL))
            if extra:
                A("s_add_u32 m0, s%d, s%d" % (RING, M0X))
                A("s_nop 0")
                A("buffer_load_dwordx4 v28, s[8:11], s45 offen %s lds" % HL)
        if which == "W": W()
        elif which == "X": X()
        elif cfg.pair3 and not odd: X(); W()
        else: W(); X()
        A("s_add_u32 s%d, s%d, 1" % (N3, N3))
        for t in slot_adv(3): A(t)
    def step(wait, issue):
        if issue and cfg.hoist:
            mark = len(A.lines)
            issue()
            body = A.lines[mark:]; del A.lines[mark:]
            k = 0
            while k < len(body) and body[k].strip().startswith("s_") and not body[k].strip().startswith(("s_cbranch", "s_branch")): k += 1
            A.lines += body[:k]
            A("s_waitcnt vmcnt(%d)" % wait)
            A("s_barrier")
            A.lines += body[k:]
            return
        A("s_waitcnt vmcnt(%d)" % wait)
        A("s_barrier")
        if issue: issue()
    def lloop(label, count, wait, issue, unroll=1):
        if isinstance(count, int): A("s_mov_b32 s%d, %d" % (CNT, count))
        else: A(count)
        align(A)
        A.label(label)
        for _ in range(unroll): step(wait, issue)
        A("s_sub_u32 s%d, s%d, 1" % (CNT, CNT))
        A("s_cmp_lg_u32 s%d, 0" % CNT)
        A("s_cbranch_scc1 %s" % label)
    def fast_loop(label, count, wait, sel, ph, vW, nX, strideW, bW, bQ, m0q, extra):
        QA = (OQ, 63); XA = (45, 3); MQ = (56, 57); MX = (58, 59)
        def prep(k):
            sel()
            if strideW == 262144: A("s_lshl_b32 s%d, s44, 18" % OP)
            else: A("s_mul_i32 s%d, s44, %d" % (OP, strideW))
            A("s_add_u32 s%d, s%d, s%d" % (OP, OP, bW))
            A("s_mul_i32 s44, s44, %d" % (36 * PAIR))
            A("s_add_u32 s%d, s44, s%d" % (QA[k], bQ))
            if extra:
                A("s_add_u32 s%d, s44, s%d" % (XA[k], extra))
                A("s_add_u32 s%d, s%d, s%d" % (MX[k], RING, M0X))
            A("s_add_u32 s%d, s%d, s%d" % (MQ[k], RING, m0q))
            A("s_add_u32 s62, s%d, s%d" % (RING, M0P))
            for t in slot_adv(ph): A(t)
        def body(k, last):
            A("s_mov_b32 m0, s62")
            A("s_waitcnt vmcnt(%d)" % wait)
            A("s_barrier")
            for m in range(4):
                A("buffer_load_dwordx4 v%d, s[4:7], s%d offen offset:%d lds" % (vW + m, OP, m * 1024))
            A("s_mov_b32 m0, s%d" % MQ[k])
            if not last: prep(1 - k)
            else: A("s_nop 0")
            if k == 1 and not last:
                A("s_sub_u32 s%d, s%d, 1" % (CNT, CNT))
                A("s_cmp_lg_u32 s%d, 0" % CNT)
            for m in range(nX):
                A("buffer_load_dwordx4 v28, s[8:11], s%d offen offset:%d %s lds" % (QA[k], m * 1024, HL))
            if extra:
                A("s_mov_b32 m0, s%d" % MX[k])
                A("s_nop 0")
                A("buffer_load_dwordx4 v28, s[8:11], s%d offen %s lds" % (XA[k], HL))
        prep(0)
        A("s_mov_b32 s%d, %d" % (CNT, count - 1))
        A.label(label)
        body(0, False); body(1, False)
        A("s_cbranch_scc1 %s" % label)
        body(0, False); body(1, True)
    def sel2():
        A("s_add_u32 s44, s%d, 6" % N2)
        A("s_cmp_lt_u32 s44, 32")
        A("s_cselect_b32 s44, s44, s%d" % M6)
        A("s_cmp_eq_u32 s%d, s%d" % (M6, DT))
        A("s_cselect_b32 s44, s44, s%d" % N2)
        A("s_add_u32 s%d, s%d, 1" % (N2, N2))
        A("s_add_u32 s%d, s%d, 1" % (M6, M6))
        A("s_cmp_eq_u32 s%d, 6" % M6)
        A("s_cselect_b32 s%d, 0, s%d" % (M6, M6))
    def sel3():
        A("s_and_b32 s%d, s%d, 3" % (OP, N3))
        A("s_add_u32 s44, s%d, 4" % N3)
        A("s_cmp_lt_u32 s44, 18")
        A("s_cselect_b32 s44, s44, s%d" % OP)
        A("s_cmp_eq_u32 s%d, s%d" % (OP, PH3))
        A("s_cselect_b32 s44, s44, s%d" % N3)
        A("s_add_u32 s%d, s%d, 1" % (N3, N3))
    issue1(); issue1()
    ids23(); lane23(); setup2()
    if cfg.pro == 5:
        issue1(); issue1(); issue1()
        step(28, None); step(21, None)
    elif cfg.pro == 4:
        issue1(); issue1()
        step(21, issue1); step(21, None)
    else:
        issue1()
        step(14, issue1); step(14, issue1)
    lloop("l1_loop", 4, 14, issue1)
    A("s_cmp_ge_u32 s%d, 27" % SLOTR)
    A("s_cbranch_scc1 l1_c")
    srd2()
    step(14, lambda: issue2("W", False))
    step(11, lambda: issue2("X"))
    step(7, lambda: (issue2(), issue2()))
    setup3()
    step(14, issue2); step(14, issue2)
    A("s_branch l2_main")
    A.label("l1_c")
    step(14, None); step(7, None); step(0, None)
    A("v_mov_b32 v41, %d" % SIG)
    A("ds_read_b64 v[%d:%d], v41" % (VT, VT + 1))
    srd(A, FSRD, PWS, SZ_FL, WS_FL)
    srd(A, 12, PWS, SZ_ST, WS_ST)
    A("s_waitcnt lgkmcnt(0)")
    A("s_barrier")
    A("s_branch scan_entry")
    A.label("l2_entry")
    A("s_sub_u32 s%d, s%d, 4" % (LW, WAVE))
    A("s_lshl_b32 s%d, s%d, 12" % (M0P, LW))
    A("s_mul_i32 s%d, s%d, 3072" % (M0Q, LW))
    A("s_add_u32 s%d, s%d, 16384" % (M0Q, M0Q))
    lane23(); setup2(); srd2()
    A("s_mov_b32 s62, s%d" % RING)
    A("s_waitcnt vmcnt(0)")
    par2[0] = 0
    issue2("W"); issue2("W"); issue2("W")
    A("s_mov_b32 s%d, s62" % RING)
    A("s_mov_b32 s%d, 0\ns_mov_b32 s%d, 0" % (N2, M6))
    tabset()
    par2[0] = 0
    setup3()
    A("s_barrier")
    issue2("X"); issue2("X"); issue2("X")
    step(6, issue2); step(10, issue2)
    A.label("l2_main")
    step(14, issue2)
    if cfg.fast: fast_loop("l2_loop", 12, 14, sel2, 2, 20, 3, 64 * 9216, B2P, B2Q, M0Q, None)
    else: lloop("l2_loop", 12, 14, issue2, 2)
    def lgate_issue(off):
        sk = A.newlabel("lg")
        A("s_cmp_lg_u32 s%d, 0" % LW)
        A("s_cbranch_scc1 %s" % sk)
        gate_issue(A, off)
        A.label(sk)
    def lgate_wait(off, mask, word, younger):
        ot = A.newlabel("lg"); dn = A.newlabel("lg"); lp = A.newlabel("lg")
        A("s_cmp_lg_u32 s%d, 0" % LW)
        A("s_cbranch_scc1 %s" % ot)
        gate_check(A, off, mask, first_wait=younger)
        A("v_mov_b32 v40, 1")
        A("ds_write_b32 v41, v40 offset:%d" % (8 + 4 * word))
        A("s_branch %s" % dn)
        A.label(ot)
        A("s_mov_b32 s59, 0")
        A.label(lp)
        A("ds_read_b32 v40, v41 offset:%d" % (8 + 4 * word))
        A("s_add_u32 s59, s59, 1")
        A("s_waitcnt lgkmcnt(0)")
        A("v_readfirstlane_b32 s58, v40")
        A("s_cmp_gt_u32 s59, %d" % (SPIN * 64))
        A("s_cbranch_scc1 %s" % dn)
        A("s_cmp_eq_u32 s58, 0")
        A("s_cbranch_scc1 %s" % lp)
        A.label(dn)
    XR = 150; DS = 162; STT = 168; B2 = 172; BASE = 48; PR = 80; OWN = 120
    def base_ld():
        A("v_and_b32 v42, 15, v2")
        A("v_lshrrev_b32 v43, 4, v2")
        A("v_mul_u32_u24 v46, 1152, v42")
        A("v_lshl_add_u32 v46, v43, 3, v46")
        A("v_lshlrev_b32 v47, 1, v46")
        A("v_lshlrev_b32 v43, 3, v43")
        A("v_lshlrev_b32 v45, 3, v42")
        A("v_lshlrev_b32 v42, 1, v42")
        A("s_lshl_b32 s44, s%d, 3" % ST)
        A("s_lshl_b32 s45, s%d, 1" % SP)
        A("s_add_u32 s44, s44, s45")
        A("s_mul_i32 s45, s%d, 9" % D3)
        A("s_add_u32 s45, s45, s%d" % LW)
        A("s_lshl_b32 s45, s45, 5")
        A("s_mul_i32 s50, s44, %d" % (16 * 1152))
        A("s_add_u32 s50, s50, s45")
        A("s_add_u32 s51, s50, %d" % (16 * 1152))
        A("s_lshl_b32 s48, s44, 7")
        A("s_lshl_b32 s49, s44, 5")
        srd(A, 12, PWS, SZ_ST, WS_ST)
        for aa in range(2):
            A("buffer_load_dwordx2 %s, v45, s[12:15], s48 offen offset:%d %s" % (v(STT + 2 * aa, 2), aa * 128, HL))
        srd(A, 12, PB2, 4096)
        for aa in range(2):
            A("buffer_load_ushort v%d, v42, s[12:15], s49 offen offset:%d" % (B2 + 2 * aa, aa * 32))
        srd(A, 12, PDSK, 1152)
        for n in range(3):
            A("buffer_load_dwordx2 %s, v43, s[12:15], s45 offen offset:%d" % (v(DS + 2 * n, 2), n * 128))
        srd(A, 12, PX, SZ_X)
        sk = A.newlabel("bl")
        for n in range(3):
            if n == 2:
                A("s_cmp_lg_u32 s%d, 0" % LW)
                A("s_cbranch_scc1 %s" % sk)
            for aa in range(2):
                A("buffer_load_dwordx2 %s, v46, s[12:15], s%d offen offset:%d" % (v(XR + 4 * n + 2 * aa, 2), (50, 51)[aa], n * 128))
        A.label(sk)
        A("s_lshl_b32 s50, s50, 1")
        A("s_lshl_b32 s51, s51, 1")
    def base_calc():
        for aa in range(2): A("v_lshlrev_b32 v%d, 16, v%d" % (B2 + 2 * aa, B2 + 2 * aa))
        for n in range(3):
            dd = 76; xx = 116; tt = 144
            for h in range(2):
                A("v_lshlrev_b32 v%d, 16, v%d" % (dd + 2 * h, DS + 2 * n + h))
                A("v_and_b32 v%d, 0xffff0000, v%d" % (dd + 2 * h + 1, DS + 2 * n + h))
            for aa in range(2):
                b = BASE + 8 * n + 4 * aa
                for h in range(2):
                    A("v_lshlrev_b32 v%d, 16, v%d" % (xx + 2 * h, XR + 4 * n + 2 * aa + h))
                    A("v_and_b32 v%d, 0xffff0000, v%d" % (xx + 2 * h + 1, XR + 4 * n + 2 * aa + h))
                for r in range(4): A("v_mul_f32 v%d, v%d, v%d" % (tt + r, dd + r, STT + 2 * aa + 1))
                for r in range(4): A("v_add_f32 v%d, v%d, v%d" % (b + r, xx + r, B2 + 2 * aa))
                for r in range(4): A("v_sub_f32 v%d, v%d, v%d" % (xx + r, xx + r, STT + 2 * aa))
                for r in range(4): A("v_fmac_f32 v%d, v%d, v%d" % (b + r, xx + r, tt + r))
    GT, GU = 60, 61
    def gates3():
        A("v_mov_b32 v41, %d" % SIG)
        A("ds_read_b64 v[%d:%d], v41" % (VT, VT + 1))
        srd(A, FSRD, PWS, SZ_FL, WS_FL)
        A("s_lshr_b32 s%d, s%d, 1" % (GT, ST))
        A("s_lshl_b32 s%d, s%d, 9" % (GT, GT))
        A("s_add_u32 s%d, s%d, %d" % (GT, GT, FL_T))
        A("s_lshl_b32 s%d, s%d, 2" % (GU, D3))
        A("s_add_u32 s%d, s%d, s%d" % (GU, GU, SP))
        A("s_lshl_b32 s%d, s%d, 9" % (GU, GU))
        A("s_add_u32 s%d, s%d, %d" % (GU, GU, FL_U))
        A("s_waitcnt lgkmcnt(0)")
    gates3()
    step(14, issue2)
    step(14, issue2)
    base_ld()
    step(14 + 11, (lambda: lgate_issue(GT)) if cfg.pollat == 29 else None)
    step(7 + 11, (lambda: lgate_issue(GT)) if cfg.pollat == 30 else None)
    A("s_cmp_lg_u32 s%d, 0" % LW)
    A("s_cbranch_scc1 l2_e1")
    A("s_waitcnt vmcnt(0)")
    A("v_cmp_ne_u64 vcc, v[%d:%d], v[%d:%d]" % (VP, VP + 1, VT, VT + 1))
    A("s_and_b32 vcc_hi, vcc_hi, 15")
    A("s_cmp_lg_u64 vcc, 0")
    A("s_cbranch_scc1 l2_e1")
    A("v_mov_b32 v40, 1")
    A("ds_write_b32 v41, v40 offset:8")
    A("s_waitcnt lgkmcnt(0)")
    A.label("l2_e1")
    step(11, None)
    A("ds_read_b32 v40, v41 offset:8")
    A("s_waitcnt lgkmcnt(0)")
    A("v_readfirstlane_b32 s58, v40")
    A("s_cmp_lg_u32 s58, 0")
    A("s_cbranch_scc1 l3_early")
    lgate_issue(GT)
    A("s_barrier")
    A.label("l3_main")
    stamp(A, cfg, 10)
    lgate_wait(GT, (1 << 36) - 1, 0, 0)
    A.label("l3_main2")
    stamp(A, cfg, 11)
    A("s_cmp_ge_u32 s%d, 2" % LW)
    A("s_cbranch_scc1 l3b")
    A("s_branch l3a")
    A.label("l3_early")
    A("s_cmp_ge_u32 s%d, 2" % LW)
    A("s_cbranch_scc1 l3b_early")
    for (sfx, extra, per) in (("a", True, 9), ("b", False, 8)):
        A.label("l3%s_early" % sfx)
        issue3f(extra)
        if cfg.xpos: issue3f(extra)
        A("s_barrier")
        A("s_branch l3%s_j" % sfx)
        A.label("l3%s" % sfx)
        issue3f(extra)
        if cfg.xpos: issue3f(extra)
        A.label("l3%s_j" % sfx)
        NT = cfg.nt3
        if NT:
            issue3f(extra); issue3f(extra)
            if not cfg.xpos: issue3f(extra)
            srd(A, 12, PW2, SZ_W)
            A("s_mul_i32 s44, s%d, 18" % SP)
            A("s_add_u32 s44, s44, s%d" % PH3)
            A("s_lshl_b32 s44, s44, 1")
            A("s_and_b32 s45, s%d, 1" % LW)
            A("s_add_u32 s44, s44, s45")
            A("s_lshr_b32 s45, s%d, 1" % LW)
            A("s_lshl_b32 s45, s45, 3")
            A("s_add_u32 s44, s44, s45")
            A("s_add_u32 s44, s44, %d" % (8 * cfg.nt3s))
            A("s_lshl_b32 s44, s44, 17")
            A("s_lshl_b32 s45, s%d, 8" % ST)
            A("s_add_u32 s44, s44, s45")
            A("v_lshrrev_b32 v42, 1, v2")
            A("v_lshlrev_b32 v42, 12, v42")
            A("v_and_b32 v43, 1, v2")
            A("v_lshl_add_u32 v42, v43, 7, v42")
            for k in range(NT):
                A("buffer_load_dword v43, v42, s[12:15], s44 offen")
                A("s_add_u32 s44, s44, %d" % (16 << 17))
            A("s_waitcnt vmcnt(%d)" % (4 * per + NT))
            base_calc()
            step(3 * per + NT, None); step(2 * per + NT, None)
            sk = A.newlabel("nf"); sk2 = A.newlabel("nf")
            A("s_cmp_eq_u32 s%d, 4" % NF)
            A("s_cbranch_scc1 %s" % sk)
            step(per + NT, lambda: issue3f(extra))
            switch3u()
            A("s_mov_b32 s62, s%d" % RING)
            step(per + NT, lambda: issue3u(extra, "W"))
            A("s_waitcnt vmcnt(4)")
            A("s_branch %s" % sk2)
            A.label(sk)
            switch3u()
            A("s_mov_b32 s62, s%d" % RING)
            par3[0] -= 1
            step(per + NT, lambda: issue3u(extra, "W"))
            A.label(sk2)
            step(4 + NT, lambda: (lgate_issue(GU), issue3u(extra, "W")))
        else:
            issue3f(extra)
            if not cfg.xpos: issue3f(extra)
            A("s_waitcnt vmcnt(%d)" % (3 * per))
            base_calc()
            step(2 * per, lambda: issue3f(extra)); step(2 * per, None)
            sk = A.newlabel("nf")
            A("s_cmp_eq_u32 s%d, 4" % NF)
            A("s_cbranch_scc1 %s" % sk)
            step(per, lambda: issue3f(extra))
            A.label(sk)
            switch3u()
            A("s_mov_b32 s62, s%d" % RING)
            step(per, lambda: issue3u(extra, "W"))
            step(4, lambda: (lgate_issue(GU), issue3u(extra, "W")))
        stamp(A, cfg, 12)
        lgate_wait(GU, (1 << 54) - 1, 1, 4)
        stamp(A, cfg, 13)
        A("s_mov_b32 s%d, s62" % RING)
        A("s_mov_b32 s%d, 0" % N3)
        issue3u(extra, "X"); issue3u(extra, "X")
        step(per - 4, lambda: issue3u(extra))
        step(per, lambda: issue3u(extra))
        if cfg.fast:
            A("s_add_u32 s60, s%d, s%d" % (B3U, M0P))
            A("s_add_u32 s61, s%d, s%d" % (B3U, M0X))
            A("s_sub_u32 s61, s61, 16384")
            fast_loop("l3%s_u" % sfx, 7, per, sel3, 3, 24, 4, 262144, B3P, 60, M0Q3, 61 if extra else None)
        else: lloop("l3%s_u" % sfx, 7, per, lambda: issue3u(extra), 2)
        step(per, None); step(0, None)
        A("s_branch fin")
    A.label("l3_entry")
    A("s_sub_u32 s%d, s%d, 4" % (LW, WAVE))
    A("s_lshl_b32 s%d, s%d, 12" % (M0P, LW))
    lane23(); setup3(); gates3()
    lgate_issue(GT)
    lgate_wait(GT, (1 << 36) - 1, 0, 0)
    base_ld()
    A("s_branch l3_main2")

    A.label("fin")
    stamp(A, cfg, 7)
    A("v_lshlrev_b32 v9, 4, v2")
    A("s_lshl_b32 s44, s%d, 2" % ST)
    A("s_add_u32 s44, s44, s%d" % D3)
    A("s_lshl_b32 s44, s44, 2")
    A("s_add_u32 s44, s44, s%d" % SP)
    A("s_lshl_b32 s43, s44, 7")
    A("s_add_u32 s43, s43, %d" % FL_X)
    A("s_mul_i32 s47, s44, %d" % (4 * 9216))
    A("s_lshl_b32 s46, s%d, 10" % LW)
    A("s_add_u32 s47, s47, s46")
    for j in range(3):
        A("s_add_u32 s48, s%d, %d" % (SP, 1 + j))
        A("s_and_b32 s48, s48, 3")
        A("s_mul_i32 s48, s48, 9216")
        A("s_add_u32 s%d, s47, s48" % (40 + j))
    A("v_add_u32 v15, 4096, v9")
    A("v_add_u32 v18, 8192, v9")
    A("s_lshl_b32 s46, s%d, 11" % LW)
    A("s_add_u32 s46, s46, %d" % LDS_OWN)
    A("v_add_u32 v10, s46, v9")
    A("s_lshl_b32 s52, 1, s%d" % SP)
    A("s_xor_b32 s52, s52, 15")
    A("s_mov_b32 s53, 0")
    srd(A, 12, PWS, SZ_EX, WS_EX)
    srd(A, 8, POUT, 2048 * 576 * 4)
    A("v_cmp_gt_u32 vcc, 4, v2")
    A("s_nop 1")
    A("v_cndmask_b32 v%d, 0, v%d, vcc" % (VL8, VL8))
    def own():
        for n in range(3):
            for aa in range(2):
                A("ds_read_b128 %s, v10 offset:%d" % (v(OWN + 8 * n + 4 * aa, 4), n * 8192 + aa * 1024))
        A("s_waitcnt lgkmcnt(0)")
        for k in range(12):
            A("v_pk_add_f32 %s, %s, %s" % (v(BASE + 2 * k, 2), v(BASE + 2 * k, 2), v(OWN + 2 * k, 2)))
    A("s_barrier")
    stamp(A, cfg, 8)
    if cfg.xpoll == 0:
        gate_issue(A, 43)
        own()
        gate_check(A, 43, "s[52:53]")
    else:
        lgate_issue(43)
        own()
        A("s_cmp_lg_u32 s%d, 0" % LW)
        A("s_cbranch_scc1 fin_w")
        gate_check(A, 43, "s[52:53]")
        A.label("fin_w")
        A("s_barrier")
    stamp(A, cfg, 9)
    def ld(n):
        for j in range(3):
            A("buffer_load_dwordx4 %s, v%d, s[12:15], s%d offen sc1" % (v(PR + (n * 3 + j) * 4, 4), (9, 15, 18)[n], 40 + j))
    def fin(n):
        b = BASE + 8 * n
        for j in range(3):
            p = PR + (n * 3 + j) * 4
            for k in range(4):
                A("v_lshlrev_b32 v%d, 16, v%d" % (28 + 2 * (k % 2), p + k))
                A("v_and_b32 v%d, 0xffff0000, v%d" % (29 + 2 * (k % 2), p + k))
                A("v_pk_add_f32 %s, %s, %s" % (v(b + 2 * k, 2), v(b + 2 * k, 2), v(28 + 2 * (k % 2), 2)))
    def st(n):
        for aa in range(2):
            A("buffer_store_dwordx4 %s, v47, s[8:11], s%d offen offset:%d %s" % (v(BASE + 8 * n + 4 * aa, 4), (50, 51)[aa], n * 256, cfg.sto))
    A("s_cmp_lg_u32 s%d, 0" % LW)
    A("s_cbranch_scc1 fin_b")
    ld(2); ld(0); ld(1)
    A("s_waitcnt vmcnt(6)"); fin(2)
    A("s_waitcnt vmcnt(3)"); fin(0)
    A("s_waitcnt vmcnt(0)"); st(2); st(0); fin(1); st(1)
    A("s_branch k_done")
    A.label("fin_b")
    ld(0); ld(1)
    A("s_waitcnt vmcnt(3)"); fin(0)
    A("s_waitcnt vmcnt(0)"); st(0); fin(1); st(1)
    A.label("k_done")
    stamp_end(A, cfg)
    A.label("k_end")
    A("s_endpgm")

    KB = 29
    PFI = 23
    def kbcalc():
        A("s_sub_u32 s%d, s%d, 19" % (KB, SLOTR))
        A("s_lshl_b32 s%d, s%d, 3" % (KB, KB))
        A("s_add_u32 s%d, s%d, s%d" % (KB, KB, XCD))
    A.label("ln_lo")
    kbcalc()
    pubH()
    biasld()
    A("s_barrier")
    stamp(A, cfg, 2)
    A("s_branch ln_join")
    A.label("ln_hi")
    kbcalc()
    A("v_mov_b32 v216, 0\nv_mov_b32 v217, 0\nv_mov_b32 v215, 0")
    ids23()
    A("v_lshlrev_b32 v120, 7, v2")
    A("s_waitcnt lgkmcnt(0)")
    srd(A, FSRD, PWS, SZ_FL, WS_FL)
    srd(A, 12, PWS, SZ_ST, WS_ST)
    A("s_lshl_b32 s44, s%d, 2" % KB)
    A("s_add_u32 s44, s44, s%d" % WAVE)
    A("s_sub_u32 s44, s44, 4")
    if cfg.csb:
        A("s_sub_u32 s45, s44, 112")
        A("s_cbranch_scc1 ln_ncs")
        A("s_cmp_ge_u32 s45, 72")
        A("s_cselect_b32 s4, s%d, s%d" % (PBIM, PBRE))
        A("s_cselect_b32 s5, s%d, s%d" % (PBIM + 1, PBRE + 1))
        A("s_cselect_b32 s46, 72, 0")
        A("s_cselect_b32 s47, 4, 0")
        A("s_mov_b32 s6, %d\ns_mov_b32 s7, 0x00020000" % SZ_C)
        A("s_sub_u32 s45, s45, s46")
        A("s_mul_i32 s46, s45, %d" % (8 * 1152))
        A("v_lshrrev_b32 v3, 3, v2")
        A("v_and_b32 v4, 7, v2")
        A("v_mul_u32_u24 v5, 1152, v3")
        A("v_lshl_add_u32 v5, v4, 4, v5")
        for j in range(9):
            A("buffer_load_dwordx4 %s, v5, s[4:7], s46 offen offset:%d" % (v(16 + 4 * j, 4), j * 128))
        A("s_lshl_b32 s45, s45, 6")
        A("s_add_u32 s45, s45, s47")
        A("s_add_u32 s45, s45, 16384")
        A("v_lshlrev_b32 v3, 3, v3")
        A("s_mov_b32 s46, 0x3f803f80")
        for q in range(4): A("v_mov_b32 v%d, 0" % (8 + q))
        for j in range(9):
            A("s_waitcnt vmcnt(%d)" % (8 - j))
            for q in range(4): A("v_dot2_f32_bf16 v%d, v%d, s46, v%d" % (8 + q, 16 + 4 * j + q, 8 + q))
        A("s_nop 2")
        A("v_add_f32 v8, v8, v9\nv_add_f32 v10, v10, v11\nv_add_f32 v8, v8, v10")
        for dpp in ("quad_perm:[1,0,3,2]", "quad_perm:[2,3,0,1]", "row_half_mirror"):
            A("s_nop 1")
            A("v_add_f32_dpp v8, v8, v8 %s row_mask:0xf bank_mask:0xf" % dpp)
        A("s_mov_b32 exec_lo, 0x01010101\ns_mov_b32 exec_hi, 0x01010101")
        A("buffer_store_dword v8, v3, s[12:15], s45 offen sc1")
        A("s_mov_b64 exec, -1")
        A("s_waitcnt vmcnt(0)")
        A("s_branch ln_nw")
        A.label("ln_ncs")
    A("s_mov_b32 s4, s%d\ns_mov_b32 s5, s%d\ns_mov_b32 s6, 0\ns_mov_b32 s45, 0" % (PB1, PB1 + 1))
    for (w, ptr, sz) in ((32, PB1, 9216), (33, PB1, 9216), (34, PB2, 4096), (35, PDSK, 1152), (36, PLRE, 1152), (37, PLIM, 1152), (38, PLOGDT, 1152)):
        A("s_cmp_eq_u32 s44, %d" % w)
        A("s_cselect_b32 s4, s%d, s4" % ptr)
        A("s_cselect_b32 s5, s%d, s5" % (ptr + 1))
        A("s_cselect_b32 s6, %d, s6" % sz)
        if w == 33: A("s_cselect_b32 s45, 8192, s45")
    A("s_mov_b32 s7, 0x00020000")
    A("s_cmp_eq_u32 s6, 0")
    A("s_cbranch_scc1 ln_nt")
    A("buffer_load_dword v121, v120, s[4:7], s45 offen")
    A.label("ln_nt")
    if cfg.codepf:
        A("s_cmp_ge_u32 s44, 32")
        A("s_cbranch_scc1 ln_nc")
        A("s_getpc_b64 s[46:47]")
        A.label("ln_pc")
        A("s_sub_u32 s46, s46, ln_pc-%s" % KN)
        A("s_subb_u32 s47, s47, 0")
        A("s_and_b32 s45, s44, 3")
        A("s_lshl_b32 s45, s45, 13")
        A("v_add_u32 v122, s45, v120")
        A("s_mov_b32 s45, text_end-%s" % KN)
        for r in range(2):
            A("v_cmp_gt_u32 vcc, s45, v122")
            A("s_and_saveexec_b64 s[48:49], vcc")
            A("s_cbranch_execz ln_nc2")
            A("global_load_dword v%d, v122, s[46:47]" % (123 + r))
            A("v_add_u32 v122, 32768, v122")
        A.label("ln_nc2")
        A("s_mov_b64 exec, -1")
        A.label("ln_nc")
    srd(A, 4, PW1, SZ_W)
    A("s_sub_u32 s45, s44, 40")
    A("s_cbranch_scc1 ln_nw")
    A("s_lshl_b32 s45, s45, 13")
    for r in range(cfg.lnpf):
        A("buffer_load_dword v121, v120, s[4:7], s45 offen")
        A("s_add_u32 s45, s45, %d" % (NLP * 8192))
    A.label("ln_nw")
    A("s_barrier")
    tag_issue(A)
    A("s_barrier")
    tag_check(A)
    A.label("ln_join")
    A("v_lshlrev_b32 v120, 7, v2")
    A("s_lshl_b32 s%d, s%d, 3" % (PFI, KB))
    A("s_add_u32 s%d, s%d, s%d" % (PFI, PFI, WAVE))
    if cfg.tlbw:
        A("s_cmp_lg_u32 s%d, %d" % (SLOTR, cfg.tlbw))
        A("s_cbranch_scc1 ln_ntl")
        A("s_mov_b32 s60, s%d\ns_mov_b32 s61, s%d\ns_mov_b32 s62, 0" % (PW1, PW1 + 1))
        for (w, ptr, sz) in ((1, PW1, SZ_W), (2, PW2, SZ_W), (3, PWS, 0x4000000 if cfg.side else WS_EX + SZ_EX), (4, POUT, 2048 * 576 * 4), (5, PCRE, SZ_C), (6, PCIM, SZ_C), (7, PLOGDT, 1152)):
            A("s_cmp_eq_u32 s%d, %d" % (WAVE, w))
            A("s_cselect_b32 s60, s%d, s60" % ptr)
            A("s_cselect_b32 s61, s%d, s61" % (ptr + 1))
            A("s_cselect_b32 s62, %d, s62" % sz)
        A("s_mov_b32 s63, 0x00020000")
        A("v_lshlrev_b32 v122, 20, v2")
        A("buffer_load_dword v121, v122, s[60:63], 0 offen offset:512 sc1")
        A.label("ln_ntl")
    for r in range(cfg.pf_a):
        if r == 0:
            A("s_add_u32 s55, s%d, %d" % (PFI, L_C))
            A("s_add_u32 s3, s%d, %d" % (PFI, (NLP * cfg.lnpf - 162) & 0xffffffff))
            A("s_cmp_lt_u32 s%d, 162" % PFI)
            A("s_cselect_b32 s3, s55, s3")
        else:
            A("s_add_u32 s3, s%d, %d" % (PFI, NLP * cfg.lnpf - 162 + 512 * r))
        pf_decode(A, 3, 60, 58, 54)
        A("buffer_load_dword v121, v120, s[60:63], s58 offen")
    A("s_cmp_ge_u32 s%d, 4" % WAVE)
    A("s_cbranch_scc1 l2_entry")
    A("s_cmp_lg_u32 s%d, 0" % WAVE)
    A("s_cbranch_scc1 ln_g")
    A("s_sleep %d" % cfg.bsleep)
    wide_issue(A)
    wide_check(A)
    A.label("ln_g")
    A("s_waitcnt vmcnt(0)")
    A("s_barrier")
    stamp(A, cfg, 3)
    A("s_branch c2_entry")

    A.label("scan_entry")
    CB = 29
    A("s_sub_u32 s%d, s%d, 27" % (CB, SLOTR))
    A("s_lshl_b32 s%d, s%d, 3" % (CB, CB))
    A("s_add_u32 s%d, s%d, s%d" % (CB, CB, XCD))
    A("s_mov_b32 s%d, 0" % RING)
    A("v_lshlrev_b32 v56, 7, v2")
    A("s_lshl_b32 s%d, s%d, 3" % (PFI, CB))
    A("s_add_u32 s%d, s%d, s%d" % (PFI, PFI, WAVE))
    A("s_add_u32 s%d, s%d, %d" % (PFI, PFI, L_W2 if cfg.pf_a else L_C))
    def scpf(lo=0):
        pf_decode(A, PFI, 60, 58, 54, lo=lo)
        A("buffer_load_dword v57, v56, s[60:63], s58 offen")
        A("s_add_u32 s%d, s%d, 320" % (PFI, PFI))
    for _ in range(cfg.pf_a2): scpf(L_C)
    A("s_cmp_lt_u32 s%d, 36" % CB)
    A("s_cbranch_scc1 scan2")
    for _ in range(sum(cfg.scm) + cfg.pf_b): scpf(L_C)
    A("s_branch scan_done")
    A.label("scan2")
    A("v_and_b32 v3, 7, v0")
    A("v_lshrrev_b32 v4, 3, v0")
    A("v_lshlrev_b32 v5, 10, v4")
    A("v_and_b32 v6, 3, v3")
    A("v_lshl_add_u32 v5, v6, 4, v5")
    A("v_lshrrev_b32 v6, 2, v3")
    A("v_lshl_add_u32 v5, v6, 16, v5")
    A("s_lshl_b32 s40, s%d, 17" % CB)
    A("v_lshlrev_b32 v9, 2, v3")
    A("s_lshl_b32 s41, s%d, 5" % CB)
    for (r, ptr) in ((10, PLRE), (11, PLIM), (12, PLOGDT)):
        srd(A, 4, ptr, 1152)
        A("buffer_load_dword v%d, v9, s[4:7], s41 offen" % r)
    L = [18, 20]; L32 = [22, 24]; L256 = [26, 28]; C2 = [30, 32]
    A("s_mov_b32 s44, 0x%x" % f2u(math.log2(math.e)))
    A("s_mov_b32 s45, 0x%x" % f2u(1.0 / (2 * math.pi)))
    A("s_waitcnt vmcnt(0)")
    def sq(d, s_):
        A("v_mul_f32 v40, v%d, v%d" % (s_ + 1, s_ + 1))
        A("v_mul_f32 v41, v%d, v%d" % (s_, s_ + 1))
        A("v_fma_f32 v%d, v%d, v%d, -v40" % (d, s_, s_))
        A("v_add_f32 v%d, v41, v41" % (d + 1))
    for c in range(2):
        for (d, s_) in ((34, 10), (35, 11), (36, 12)):
            if c == 0: A("v_lshlrev_b32 v%d, 16, v%d" % (d, s_))
            else: A("v_and_b32 v%d, 0xffff0000, v%d" % (d, s_))
        A("v_mul_f32 v36, s44, v36")
        A("v_exp_f32 v36, v36")
        A("s_nop 0")
        round_bf16(A, 36, 36)
        A("v_mul_f32 v37, v36, v34")
        A("v_mul_f32 v38, v36, v35")
        A("v_mul_f32 v37, s44, v37")
        A("v_mul_f32 v38, s45, v38")
        A("v_exp_f32 v37, v37")
        A("v_fract_f32 v38, v38")
        A("v_cos_f32 v39, v38")
        A("v_sin_f32 v38, v38")
        A("s_nop 0")
        A("v_mul_f32 v%d, v37, v39" % L[c])
        A("v_mul_f32 v%d, v37, v38" % (L[c] + 1))
        sq(L32[c], L[c])
        for _ in range(4): sq(L32[c], L32[c])
        sq(L256[c], L32[c])
        for _ in range(2): sq(L256[c], L256[c])
        A("v_add_f32 v37, -1.0, v%d" % L[c])
        A("v_mul_f32 v38, v34, v34")
        A("v_fmac_f32 v38, v35, v35")
        A("v_rcp_f32 v38, v38")
        A("v_mul_f32 v39, v37, v34")
        A("v_fmac_f32 v39, v%d, v35" % (L[c] + 1))
        A("v_mul_f32 v40, v%d, v34" % (L[c] + 1))
        A("v_fma_f32 v40, -v37, v35, v40")
        A("v_add_f32 v38, v38, v38")
        A("v_mul_f32 v%d, v39, v38" % C2[c])
        A("v_mul_f32 v%d, v40, v38" % (C2[c] + 1))
    A("s_mul_i32 s43, s%d, 21846" % CB)
    A("s_lshr_b32 s43, s43, 16")
    A("s_lshl_b32 s43, s43, 9")
    A("s_add_u32 s43, s43, %d" % FL_G)
    A("s_cmp_lg_u32 s%d, 0" % WAVE)
    A("s_cbranch_scc1 scan_g")
    gate_issue(A, 43)
    gate_check(A, 43, (1 << 64) - 1)
    if cfg.ginv == 2:
        A("buffer_inv sc1")
        A("s_waitcnt vmcnt(0)")
    A.label("scan_g")
    A("s_barrier")
    if cfg.ginv == 1: A("buffer_inv sc1")
    stamp(A, cfg, 3)
    srd(A, 4, PWS, SZ_G, WS_G)
    srd(A, 12, PWS, SZ_HT, WS_HT)
    G0 = 56; RW = 184
    for j in range(16):
        A("buffer_load_dwordx4 %s, v5, s[4:7], s40 offen offset:%d %s" % (v(RW + 4 * j, 4), j * 64, cfg.gl))
    LDS_AGG = 9216; LDS_WAGG = LDS_AGG + 8192
    H = 10; T2 = 34
    def stepf(Lr, src):
        for c in range(2):
            A("v_pk_fma_f32 %s, %s, %s, %s op_sel_hi:[0,1,1]" % (v(T2 + 2 * c, 2), v(Lr[c], 2), v(H + 2 * c, 2), v(src + 2 * c, 2)))
        for c in range(2):
            A("v_pk_fma_f32 %s, %s, %s, %s op_sel:[1,1,0] op_sel_hi:[1,0,1] neg_lo:[1,0,0]" % (v(H + 2 * c, 2), v(Lr[c], 2), v(H + 2 * c, 2), v(T2 + 2 * c, 2)))
    for i in range(4): A("v_mov_b32 v%d, 0" % (H + i))
    for j in range(16):
        A("s_waitcnt vmcnt(%d)" % (15 - j))
        for e in range(2):
            g = G0 + 4 * (2 * j + e)
            for c in range(2):
                A("v_lshlrev_b32 v%d, 16, v%d" % (g + 2 * c, RW + 4 * j + 2 * e + c))
                A("v_and_b32 v%d, 0xffff0000, v%d" % (g + 2 * c + 1, RW + 4 * j + 2 * e + c))
        for e in range(2):
            g = G0 + 4 * (2 * j + e)
            for c in range(2):
                A("v_pk_mul_f32 %s, %s, %s op_sel_hi:[0,1]" % (v(40 + 4 * e + 2 * c, 2), v(C2[c], 2), v(g + 2 * c, 2)))
        for e in range(2):
            g = G0 + 4 * (2 * j + e)
            for c in range(2):
                A("v_pk_fma_f32 %s, %s, %s, %s op_sel:[1,1,0] op_sel_hi:[1,0,1] neg_lo:[1,0,0]" % (v(g + 2 * c, 2), v(C2[c], 2), v(g + 2 * c, 2), v(40 + 4 * e + 2 * c, 2)))
        for e in range(2): stepf(L, G0 + 4 * (2 * j + e))
    A("v_lshlrev_b32 v8, 7, v2")
    def scpf2():
        pf_decode(A, PFI, 60, 58, 54, lo=L_C)
        A("buffer_load_dword v9, v8, s[60:63], s58 offen")
        A("s_add_u32 s%d, s%d, 320" % (PFI, PFI))
    for _ in range(cfg.scm[0] + cfg.scm[1]): scpf2()
    stamp(A, cfg, 4)
    A("v_lshlrev_b32 v15, 4, v3")
    A("v_lshlrev_b32 v17, 4, v0")
    A("ds_write_b128 v17, %s offset:%d" % (v(H, 4), LDS_AGG))
    A("s_lshl_b32 s44, s%d, 10" % WAVE)
    A("v_add_u32 v17, s44, v15")
    A("s_waitcnt lgkmcnt(0)")
    AG = 184; WG_ = 216
    for j in range(8): A("ds_read_b128 %s, v17 offset:%d" % (v(AG + 4 * j, 4), LDS_AGG + j * 128))
    A("s_waitcnt lgkmcnt(7)")
    for i in range(4): A("v_mov_b32 v%d, v%d" % (H + i, AG + i))
    for j in range(1, 8):
        A("s_waitcnt lgkmcnt(%d)" % (7 - j))
        stepf(L32, AG + 4 * j)
    A("s_lshl_b32 s44, s%d, 7" % WAVE)
    A("v_add_u32 v17, s44, v15")
    A("ds_write_b128 v17, %s offset:%d" % (v(H, 4), LDS_WAGG))
    A("s_waitcnt lgkmcnt(0)")
    A("s_barrier")
    for j in range(7): A("ds_read_b128 %s, v15 offset:%d" % (v(WG_ + 4 * j, 4), LDS_WAGG + j * 128))
    for i in range(4): A("v_mov_b32 v%d, 0" % (H + i))
    A("v_lshrrev_b32 v17, 3, v2")
    A("s_waitcnt lgkmcnt(0)")
    for j in range(7):
        A("s_cmp_le_u32 s%d, %d" % (WAVE, j))
        A("s_cbranch_scc1 scan_w")
        stepf(L256, WG_ + 4 * j)
    A.label("scan_w")
    for j in range(7):
        A("v_cmpx_lt_u32 vcc, %d, v17" % j)
        stepf(L32, AG + 4 * j)
    A("s_mov_b64 exec, -1")
    A("s_barrier")
    stamp(A, cfg, 10)
    for _ in range(cfg.scm[2]): scpf2()
    A("s_mul_i32 s44, s%d, %d" % (WAVE, 32 * 528))
    A("v_mul_u32_u24 v48, 528, v3")
    A("v_lshl_add_u32 v48, v17, 6, v48")
    A("v_add_u32 v48, s44, v48")
    A("v_lshrrev_b32 v49, 5, v2")
    A("v_and_b32 v50, 31, v2")
    A("v_lshlrev_b32 v50, 4, v50")
    A("v_mul_u32_u24 v51, 528, v49")
    A("v_add3_u32 v51, v51, v50, s44")
    A("v_lshl_add_u32 v50, v49, 13, v50")
    A("s_lshr_b32 s45, s%d, 1" % CB)
    A("s_lshl_b32 s45, s45, 5")
    A("s_and_b32 s46, s%d, 1" % CB)
    A("s_lshl_b32 s46, s46, 3")
    A("s_add_u32 s45, s45, s46")
    A("s_lshl_b32 s45, s45, 12")
    A("s_lshl_b32 s46, s%d, 9" % WAVE)
    A("s_add_u32 s45, s45, s46")
    PK = 184; RB = 216
    for c in range(2):
        for blk in range(4):
            for k in range(8):
                g = G0 + 4 * (blk * 8 + k)
                hp = H if (blk == 0 and k == 0) else g - 4
                A("v_pk_fma_f32 %s, %s, %s, %s op_sel_hi:[0,1,1]" % (v(g + 2 * c, 2), v(L[c], 2), v(hp + 2 * c, 2), v(g + 2 * c, 2)))
                A("v_pk_fma_f32 %s, %s, %s, %s op_sel:[1,1,0] op_sel_hi:[1,0,1] neg_lo:[1,0,0]" % (v(g + 2 * c, 2), v(L[c], 2), v(hp + 2 * c, 2), v(g + 2 * c, 2)))
            pkb = PK + blk * 8
            for part in range(2):
                q = 2 * c + part; sg = "-" if part else ""
                for k in range(4):
                    g = G0 + 4 * (blk * 8 + 2 * k)
                    A("v_cvt_pk_bf16_f32 v%d, %sv%d, %sv%d" % (pkb + 4 * part + k, sg, g + q, sg, g + 4 + q))
            for part in range(2):
                A("ds_write_b128 v48, %s offset:%d" % (v(pkb + 4 * part, 4), (2 * c + part) * 8 * 528 + blk * 16))
        A("s_waitcnt lgkmcnt(0)")
        if c == 1: stamp(A, cfg, 11)
        rb = RB if c == 0 else G0
        for n in range(8):
            A("ds_read_b128 %s, v51 offset:%d" % (v(rb + 4 * n, 4), (8 * c + n) * 2 * 528))
        for n in range(8):
            k = n & 3; part = n >> 2
            row = 16 * (k & 1) + 4 * (k >> 1) + c + 576 * part
            A("s_waitcnt lgkmcnt(%d)" % (7 - n))
            A("s_add_u32 s46, s45, %d" % (row * 4096))
            A("buffer_store_dwordx4 %s, v50, s[12:15], s46 offen sc1" % v(rb + 4 * n, 4))
    A("s_lshl_b32 s52, s%d, 9" % WAVE)
    A("s_lshl_b32 s44, s%d, 3" % CB)
    A("s_add_u32 s52, s52, s44")
    A("s_add_u32 s52, s52, %d" % FL_T)
    A("s_waitcnt vmcnt(0)")
    publish(A, 52)
    stamp(A, cfg, 5)
    A("s_barrier")
    if cfg.pfh:
        A("s_cmp_ge_u32 s%d, 4" % WAVE)
        A("s_cbranch_scc1 scan_done")
        A("s_lshl_b32 s44, s%d, 2" % CB)
        A("s_sub_u32 s%d, s%d, s44" % (PFI, PFI))
    for _ in range(cfg.pf_b): scpf2()
    A.label("scan_done")
    A("s_waitcnt vmcnt(0)")
    A("s_barrier")
    A("s_cmp_lt_u32 s%d, 4" % WAVE)
    A("s_cbranch_scc1 c3_entry")
    A("s_branch l3_entry")
    A.label("text_end")
    A("s_endpgm")

    HEADER = open("ref_header.txt").read().split("; @launch")[0]
    out = HEADER + "; @launch grid=(256,1,1) block=(512,1,1) lds=163840\n"
    out += DOC + '.amdgcn_target "amdgcn-amd-amdhsa--gfx950"\n.text\n' + A.text()
    out += '.section .rodata,"a"\n.p2align 6\n' + kd(KN, 256, 102)
    return out

if __name__ == "__main__":
    kw = {}
    for a_ in sys.argv[2:]:
        k, val = a_.split("=")
        kw[k] = ast.literal_eval(val)
    open(sys.argv[1], "w").write(gen(**kw))
```

```python
import sys, math, ast
from asmlib import *

NAME = "parallel_sum__ssm_conv_s5__mixer_token_mlp__prompt"
PAIR = 2048
SIDE = 0x3000000
WS_HF = 0x0;        SZ_HF = 32 * 36 * PAIR
WS_UF = 0x400000;   SZ_UF = 72 * 36 * PAIR
WS_G = 0xC00000;    SZ_G = 4718592
WS_HT = 0x1400000;  SZ_HT = 4718592
WS_ST = 0x1900000;  SZ_ST = 16384 + 8192
WS_FL = 0x1910000;  SZ_FL = 65536
WS_EX = 0x2000000;  SZ_EX = 64 * 16 * 9216
WS_STAMP = 0xC000000
SZ_W = 2048 * 9216; SZ_C = 576 * 1152; SZ_X = 2359296
FL_H = 0
FL_G = 2048
FL_U = FL_G + 12 * 512
FL_T = FL_U + 16 * 512
FL_X = FL_T + 8 * 512
assert FL_X + 256 * 128 <= SZ_FL

PX, PLRE, PLIM, PBRE, PBIM, PCRE, PCIM, PLOGDT, PDSK, PBX, PW1, PB1, PW2, PB2, POUT, PDBG, PWS = [64 + 2 * i for i in range(17)]
WAVE, SLOTR, XCD = 20, 21, 22
TAG = 24
RING = 26
CNT = 27
EVT = 28
NS = 4; SLOT = 34816; LDS_OWN = NS * SLOT
MFMA = "v_mfma_f32_16x16x32_bf16"
SPIN = 1 << 14
SIG = 163776
NS2 = 5; SLOT2 = 28672; LDS_LN = NS2 * SLOT2

DOC = """;
"""

class Cfg:
    stamp = False
    pf_a = 1
    scm = (0, 0, 0)
    pf_b = 1
    lnpf = 1
    rot1 = 1; rot2 = 1; rot3 = 1
    hl = "sc1"
    codepf = 1
    gl = ""
    pf_a2 = 0
    dbgst = 0
    ford = 0
    hackw = 4
    hackd = 0
    lprio = 0
    cprio = 0
    ginv = 2
    pfh = 1
    tab2 = 3
    xint = 1
    upub = 1
    xpos = 2
    binit = 1
    nt3 = 0
    nt3s = 0
    al = 0
    alp = 0
    csb = 1
    xpoll = 1
    pollat = 29
    adv2 = 4
    gpub = 1
    side = 1
    sto = ""
    tlbw = 0
    fast = 0
    hoist = 1
    hack3 = 0
    ord2 = 0
    ord3 = 0
    pair2 = 0
    pair3 = 0
    bsleep = 10
    gsleep = 4
    csleep = 0
    pro = 3
    e1 = (7,)

class G:
    pass

def stamp(A, cfg, idx):
    if cfg.stamp:
        A("s_memrealtime s[98:99]")
        A("s_memtime s[100:101]")
        A("s_waitcnt lgkmcnt(0)")
        A("v_writelane_b32 v255, s98, %d" % idx)
        A("v_writelane_b32 v255, s100, %d" % (idx + 16))

def stamp_end(A, cfg):
    if not cfg.stamp: return
    A("s_waitcnt vmcnt(0)")
    stamp(A, cfg, 15)
    srd(A, 4, PWS, 262144, WS_STAMP)
    A("s_lshl_b32 s30, s2, 3")
    A("s_add_u32 s30, s30, s%d" % WAVE)
    A("s_lshl_b32 s30, s30, 7")
    A("v_lshlrev_b32 v3, 2, v2")
    A("s_mov_b32 exec_lo, -1\ns_mov_b32 exec_hi, 0")
    A("buffer_store_dword v255, v3, s[4:7], s30 offen")
    if cfg.dbgst:
        A("s_cmp_lg_u32 s2, %d" % cfg.dbgst)
        A("s_cbranch_scc1 dbg_skip")
        srd(A, 4, PDBG, 256)
        A("v_readlane_b32 s31, v255, 0")
        A("s_nop 3")
        A("v_subrev_u32 v255, s31, v255")
        A("s_cmp_eq_u32 s%d, 3" % WAVE)
        A("s_cbranch_scc0 dbg_l")
        A("s_mov_b64 exec, 0x3ffc")
        A("buffer_store_dword v255, v3, s[4:7], 0 offen")
        A.label("dbg_l")
        A("s_cmp_eq_u32 s%d, 4" % WAVE)
        A("s_cbranch_scc0 dbg_skip")
        A("s_mov_b64 exec, 0x8000")
        A("buffer_store_dword v255, v3, s[4:7], 0 offen")
        A("s_mov_b64 exec, 0x200")
        A("buffer_store_dword v255, v3, s[4:7], 0 offen offset:20")
        A.label("dbg_skip")

def slot_adv(ph, sreg=RING):
    sl, n = (SLOT, NS) if ph == 3 else (SLOT2, NS2)
    return ["s_add_u32 s%d, s%d, %d" % (sreg, sreg, sl), "s_cmp_eq_u32 s%d, %d" % (sreg, n * sl), "s_cselect_b32 s%d, 0, s%d" % (sreg, sreg)]

def row16_sum(A, r):
    for sh in (8, 4, 2, 1):
        A("s_nop 1")
        A("v_add_f32_dpp v%d, v%d, v%d row_ror:%d row_mask:0xf bank_mask:0xf" % (r, r, r, sh))

def round_bf16(A, dst, src):
    A("v_cvt_pk_bf16_f32 v%d, v%d, v%d" % (dst, src, src))
    A("v_lshlrev_b32 v%d, 16, v%d" % (dst, dst))

L_C = 2304; L_W2 = 2304 + 162; L_END = L_W2 + 72 * 32
def pf_decode(A, idx, d, off, t, lo=0):
    A("s_sub_u32 s%d, s%d, %d" % (off, idx, L_W2))
    A("s_bfe_u32 s%d, s%d, 0x20005" % (t, off))
    A("s_mul_i32 s%d, s%d, %d" % (t, t, 18 * 32))
    A("s_lshr_b32 s%d, s%d, 7" % (t + 1, off))
    A("s_lshl_b32 s%d, s%d, 5" % (t + 1, t + 1))
    A("s_add_u32 s%d, s%d, s%d" % (t, t, t + 1))
    A("s_and_b32 s%d, s%d, 31" % (off, off))
    A("s_add_u32 s%d, s%d, s%d" % (off, off, t))
    A("s_cmp_ge_u32 s%d, %d" % (idx, L_END))
    A("s_cselect_b32 s%d, 4096, s%d" % (off, off))
    A("s_mov_b32 s%d, s%d\ns_mov_b32 s%d, s%d\ns_mov_b32 s%d, %d" % (d, PW2, d + 1, PW2 + 1, d + 2, SZ_W))
    for (hi, sub, base, sz) in ((L_W2, L_C + 81, PCIM, SZ_C), (L_C + 81, L_C, PCRE, SZ_C), (L_C, 0, PW1, SZ_W)):
        if hi <= lo: continue
        A("s_sub_u32 s%d, s%d, %d" % (t, idx, sub))
        A("s_cmp_lt_u32 s%d, %d" % (idx, hi))
        A("s_cselect_b32 s%d, s%d, s%d" % (off, t, off))
        A("s_cselect_b32 s%d, s%d, s%d" % (d, base, d))
        A("s_cselect_b32 s%d, s%d, s%d" % (d + 1, base + 1, d + 1))
        A("s_cselect_b32 s%d, %d, s%d" % (d + 2, sz, d + 2))
    A("s_mov_b32 s%d, 0x00020000" % (d + 3))
    A("s_lshl_b32 s%d, s%d, 13" % (off, off))

GSLEEP = [8]
FSRD = 16; VL8 = 248; VT = 250; VP = 252
def tag_issue(A):
    srd(A, 60, PDBG, 256)
    A("v_mov_b32 v249, 0")
    A("buffer_load_dwordx2 v[%d:%d], v249, s[60:63], 0 offen sc1" % (VT, VT + 1))
def tag_check(A):
    lp = A.newlabel("tg"); ok = A.newlabel("tg"); rt = A.newlabel("tg")
    A("s_mov_b32 s59, 0")
    A.label(lp)
    A("s_waitcnt vmcnt(0)")
    A("v_readfirstlane_b32 s58, v%d" % VT)
    A("s_add_u32 s59, s59, 1")
    A("s_cmp_eq_u32 s58, 0")
    A("s_cbranch_scc1 %s" % rt)
    A("s_sub_u32 s58, s%d, s58" % TAG)
    A("s_cmp_lt_i32 s58, 1500")
    A("s_cbranch_scc1 %s" % ok)
    A("s_cmp_gt_u32 s59, 64")
    A("s_cbranch_scc1 %s" % ok)
    A.label(rt)
    A("s_cmp_gt_u32 s59, %d" % SPIN)
    A("s_cbranch_scc1 %s" % ok)
    A("s_sleep 2")
    tag_issue(A)
    A("s_branch %s" % lp)
    A.label(ok)
def publish(A, offreg):
    A("s_mov_b64 exec, 1")
    A("buffer_store_dwordx2 v[%d:%d], v%d, s[%d:%d], s%d offen sc1" % (VT, VT + 1, VL8, FSRD, FSRD + 3, offreg))
    A("s_mov_b64 exec, -1")
def gate_issue(A, offreg):
    A("buffer_load_dwordx2 v[%d:%d], v%d, s[%d:%d], s%d offen sc1" % (VP, VP + 1, VL8, FSRD, FSRD + 3, offreg))
def gate_check(A, offreg, mask, first_wait=0):
    lp = A.newlabel("gt"); ok = A.newlabel("gt")
    A("s_mov_b32 s59, 0")
    if isinstance(mask, int):
        A("s_mov_b32 s56, 0x%x" % (mask & 0xffffffff))
        A("s_mov_b32 s57, 0x%x" % (mask >> 32))
        mask = "s[56:57]"
    A("s_waitcnt vmcnt(%d)" % first_wait)
    A.label(lp)
    A("v_cmp_ne_u64 vcc, v[%d:%d], v[%d:%d]" % (VP, VP + 1, VT, VT + 1))
    A("s_add_u32 s59, s59, 1")
    A("s_and_b64 vcc, vcc, %s" % mask)
    A("s_cbranch_scc0 %s" % ok)
    A("s_cmp_gt_u32 s59, %d" % SPIN)
    A("s_cbranch_scc1 %s" % ok)
    A("s_sleep %d" % GSLEEP[0])
    gate_issue(A, offreg)
    A("s_waitcnt vmcnt(0)")
    A("s_branch %s" % lp)
    A.label(ok)

VW = 240
def wide_issue(A):
    A("v_lshlrev_b32 v249, 4, v2")
    A("buffer_load_dwordx4 v[%d:%d], v249, s[%d:%d], 0 offen sc1" % (VW, VW + 3, FSRD, FSRD + 3))
    A("buffer_load_dwordx4 v[%d:%d], v249, s[%d:%d], 0 offen offset:1024 sc1" % (VW + 4, VW + 7, FSRD, FSRD + 3))
def wide_check(A):
    lp = A.newlabel("gw"); ok = A.newlabel("gw")
    A("s_mov_b32 s59, 0")
    A.label(lp)
    A("s_waitcnt vmcnt(0)")
    A("v_cmp_ne_u64 vcc, v[%d:%d], v[%d:%d]" % (VW, VW + 1, VT, VT + 1))
    for q in range(1, 4):
        A("v_cmp_ne_u64 s[56:57], v[%d:%d], v[%d:%d]" % (VW + 2 * q, VW + 2 * q + 1, VT, VT + 1))
        A("s_or_b64 vcc, vcc, s[56:57]")
    A("s_cbranch_scc0 %s" % ok)
    A("s_add_u32 s59, s59, 1")
    A("s_cmp_gt_u32 s59, %d" % SPIN)
    A("s_cbranch_scc1 %s" % ok)
    A("s_sleep %d" % GSLEEP[0])
    wide_issue(A)
    A("s_branch %s" % lp)
    A.label(ok)

def group(A, ms, rs, nprev, extra=(), pts=None):
    rs = list(rs); issued = 0; waited = -1
    for i, (m, need) in enumerate(ms):
        if pts is not None:
            if i in pts:
                nxt = min([p for p in pts if p > i] + [len(ms)])
                need = max(n for _, n in ms[i:nxt])
            else:
                assert need <= waited
        if need > waited:
            A("s_waitcnt lgkmcnt(%d)" % min(15, nprev - 1 - need + issued))
            waited = need
        A(m)
        if rs:
            A(rs.pop(0)); issued += 1
        for pos, t in extra:
            if pos == i: A(t)
    for r in rs: A(r)

ALN = [0, 0]
def align(A):
    if ALN[0]:
        A.raw(".p2alignl %d, 0xbf800000" % ALN[0])
        for _ in range(ALN[1]): A("s_nop 0")

def capture(A, fn):
    mark = len(A.lines); fn()
    body = [l.strip() for l in A.lines[mark:]]; del A.lines[mark:]
    return body

def spread(instrs, n, start=0, per=2):
    out = []
    for k, t in enumerate(instrs):
        out.append((min(n - 1, start + k // per), t))
    return out

class Phase:
    def __init__(self, A, pfx, reads, mfmas, upd, pts, ph):
        self.A, self.pfx, self.reads, self.mfmas, self.upd, self.pts, self.ph = A, pfx, reads, mfmas, upd, pts, ph
        self.n = len(reads(0, 0)); self.nm = len(mfmas(1))
    def first(self, xb=(), cinit=None, mid=None):
        A = self.A
        for r in self.reads(0, 0): A(r)
        m0 = [(m[:m.rindex(",")] + ", " + (cinit(i) if cinit else "0"), need) for i, (m, need) in enumerate(self.mfmas(0))]
        group(A, m0, self.reads(1, 1), self.n, self.upd(), self.pts)
        if mid: mid()
        group(A, self.mfmas(1), self.reads(0, 0), self.n, xb, self.pts)
    def it(self, pre=None, xb=()):
        A = self.A
        group(A, self.mfmas(0), self.reads(1, 1), self.n, self.upd(), self.pts)
        if pre: pre()
        A("s_barrier")
        group(A, self.mfmas(1), self.reads(0, 0), self.n, xb, self.pts)
    def loop(self, tag, count):
        A = self.A
        if isinstance(count, int): A("s_mov_b32 s%d, %d" % (CNT, count))
        else: A(count)
        align(A)
        A.label(self.pfx + tag)
        self.it(None, [(self.nm - 3, "s_sub_u32 s%d, s%d, 1" % (CNT, CNT)), (self.nm - 2, "s_cmp_lg_u32 s%d, 0" % CNT)])
        A("s_cbranch_scc1 %s%s" % (self.pfx, tag))
    def tail(self, work=()):
        A = self.A
        work = list(work)
        na = self.nm - 3
        group(A, self.mfmas(0), self.reads(1, 1), self.n, list(enumerate(slot_adv(self.ph))) + spread(work[:na], self.nm, 3, 1), self.pts)
        group(A, self.mfmas(1), [], self.n, spread(work[na:], self.nm, 0, 2), self.pts)

def gen(**kw):
    cfg = Cfg()
    for k, val in kw.items():
        assert hasattr(Cfg, k), k
        setattr(cfg, k, val)
    A = Asm()
    HL = cfg.hl
    ALN[0] = cfg.al; ALN[1] = cfg.alp
    NLP = 72 if cfg.csb else 216
    GSLEEP[0] = cfg.gsleep
    late = []
    KN = NAME + "_kernel"
    A.raw(".globl %s\n.p2align 8\n.type %s,@function" % (KN, KN))
    A.label(KN)
    A("s_cmp_ge_u32 s2, 256")
    A("s_cbranch_scc1 k_end")
    A("s_load_dwordx16 s[64:79], s[0:1], 0")
    A("s_load_dwordx16 s[80:95], s[0:1], 64")
    A("s_load_dwordx2 s[96:97], s[0:1], 128")
    A("s_memrealtime s[%d:%d]" % (TAG, TAG + 1))
    A("v_lshrrev_b32 v1, 6, v0")
    A("v_and_b32 v2, 63, v0")
    A("v_readfirstlane_b32 s%d, v1" % WAVE)
    A("s_and_b32 s%d, s2, 7" % XCD)
    A("s_lshr_b32 s%d, s2, 3" % SLOTR)
    A("s_sub_u32 s3, s%d, 19" % SLOTR)
    A("s_cmp_lt_u32 s3, 8")
    A("s_cselect_b32 s%d, %d, %d" % (RING, 3, 4))
    A("s_mul_i32 s%d, s%d, %d" % (RING, RING, SLOT2))
    A("v_lshlrev_b32 v%d, 3, v2" % VL8)
    if cfg.stamp:
        A("v_mov_b32 v255, 0")
        A("s_waitcnt lgkmcnt(0)")
        A("v_writelane_b32 v255, s%d, 0" % TAG)
    TT, PT, FT, DT, SP, ST, D3, KT3, NF, F0 = 30, 31, 32, 33, 34, 35, 36, 37, 38, 39
    A("s_cmp_ge_u32 s%d, 12" % SLOTR)
    A("s_cselect_b32 s%d, 1, 0" % TT)
    A("s_cselect_b32 s%d, 12, 0" % PT)
    A("s_cmp_ge_u32 s%d, 27" % SLOTR)
    A("s_cselect_b32 s%d, 20, s%d" % (PT, PT))
    A("s_sub_u32 s%d, s%d, s%d" % (PT, SLOTR, PT))
    A("s_lshl_b32 s3, s%d, 1" % XCD)
    A("s_add_u32 s%d, s%d, s3" % (TT, TT))
    A("s_cmp_ge_u32 s%d, 4" % WAVE)
    A("s_cbranch_scc1 hi_entry")

    def ids23():
        A("s_lshl_b32 s3, s%d, 3" % XCD)
        A("s_mov_b32 s%d, 0x%x\ns_mov_b32 s%d, 0x%x" % (FT, 0x0206090c, FT + 1, 0x0f121518))
        A("s_lshr_b64 s[%d:%d], s[%d:%d], s3" % (FT, FT + 1, FT, FT + 1))
        A("s_and_b32 s%d, s%d, 0xff" % (FT, FT))
        A("s_add_u32 s%d, s%d, s%d" % (FT, FT, SLOTR))
        A("s_cmp_ge_u32 s%d, 27" % FT)
        A("s_cselect_b32 s3, 27, 0")
        A("s_sub_u32 s%d, s%d, s3" % (FT, FT))
        A("s_mul_i32 s3, s%d, 27" % XCD)
        A("s_add_u32 s3, s3, s%d" % FT)
        A("s_mul_i32 s%d, s3, 43691" % FT)
        A("s_lshr_b32 s%d, s%d, 18" % (FT, FT))
        A("s_mul_i32 s%d, s%d, 6" % (DT, FT))
        A("s_sub_u32 s%d, s3, s%d" % (DT, DT))
        A("s_lshr_b32 s%d, s%d, 1" % (SP, XCD))
        A("s_and_b32 s3, s%d, 1" % XCD)
        A("s_lshl_b32 s3, s3, 3")
        A("s_lshr_b32 s%d, s%d, 2" % (ST, SLOTR))
        A("s_add_u32 s%d, s%d, s3" % (ST, ST))
        A("s_and_b32 s%d, s%d, 3" % (D3, SLOTR))
        A("s_cmp_ge_u32 s%d, 2" % SP)
        A("s_cselect_b32 s%d, 4, 5" % NF)
        A("s_add_u32 s%d, s%d, 18" % (KT3, NF))
        A("s_mul_i32 s%d, s%d, 5" % (F0, SP))
        A("s_cmp_eq_u32 s%d, 3" % SP)
        A("s_cselect_b32 s%d, 14, s%d" % (F0, F0))

    WR, WC = 40, 41
    KEY3 = 42
    def lane_c23():
        A("v_lshrrev_b32 v5, 2, v2")
        A("v_and_b32 v6, 7, v5")
        A("v_and_b32 v7, 3, v2")
        A("v_lshlrev_b32 v7, 3, v7")
        A("v_lshl_add_u32 v7, v5, 8, v7")
        A("s_lshl_b32 s44, s%d, 2" % WR)
        for aa in range(4):
            A("s_add_u32 s45, s44, %d" % aa)
            A("v_xor_b32 v8, s45, v6")
            A("v_lshl_add_u32 v%d, v8, 5, v7" % (204 + aa))
        A("s_mul_i32 s45, s%d, 6144" % WC)
        A("s_add_u32 s45, s45, 16384")
        A("v_lshlrev_b32 v216, 4, v2")
        A("v_add_u32 v208, s45, v216")
        A("s_lshl_b32 s44, s%d, 1" % WAVE)
        for aa in range(2):
            A("s_add_u32 s45, s44, %d" % aa)
            A("v_xor_b32 v8, s45, v6")
            A("v_lshl_add_u32 v%d, v8, 5, v7" % (209 + aa))
        A("v_and_b32 v3, 15, v2")
        A("v_lshrrev_b32 v4, 4, v2")
        A("v_and_b32 v5, 7, v3")
        A("v_xor_b32 v5, v5, v4")
        A("v_lshlrev_b32 v5, 4, v5")
        A("v_lshl_add_u32 v5, v3, 7, v5")
        A("v_add_u32 v211, 16384, v5")
        A("v_xor_b32 v212, 64, v211")
        A("v_add_u32 v213, 16384, v216")
        A("v_add_u32 v214, 17408, v216")
        A("v_lshlrev_b32 v217, 3, v4")
        A("v_mov_b32 v215, v216")
        if cfg.side:
            A("v_lshrrev_b32 v5, 3, v2")
            A("v_cmp_eq_u32 vcc, 3, v5")
            A("v_add_u32 v5, 0x%x, v215" % (SIDE + 128))
            A("s_nop 0")
            A("v_cndmask_b32 v215, v215, v5, vcc")
    def wrwc():
        A("s_and_b32 s%d, s%d, 1" % (WR, WAVE))
        A("s_lshr_b32 s%d, s%d, 1" % (WC, WAVE))
    RAW = 164; X = 174; TT_ = 220; RS = 1344
    S0, S2, M, MB, RSV = 192, 193, 194, 196, 197
    LA = 238
    def ln_load():
        A("s_lshr_b32 s44, s2, 2")
        A("s_lshl_b32 s44, s44, 5")
        A("s_and_b32 s45, s2, 3")
        A("s_lshl_b32 s45, s45, 2")
        A("s_add_u32 s44, s44, s45")
        A("s_lshr_b32 s45, s%d, 1" % WAVE)
        A("s_lshl_b32 s45, s45, 4")
        A("s_add_u32 s44, s44, s45")
        A("s_and_b32 s45, s%d, 1" % WAVE)
        A("s_lshl_b32 s45, s45, 1")
        A("s_add_u32 s51, s44, s45")
        A("s_mul_i32 s44, s51, 1152")
        A("v_lshrrev_b32 v3, 5, v2")
        A("v_and_b32 v4, 31, v2")
        A("v_mul_u32_u24 v5, 1152, v3")
        A("v_lshl_add_u32 v6, v4, 2, v5")
        A("v_lshl_add_u32 v5, v4, 3, v5")
        A("s_waitcnt lgkmcnt(0)")
        srd(A, 4, PX, SZ_X)
        for j in range(4):
            A("buffer_load_dwordx2 %s, v5, s[4:7], s44 offen offset:%d" % (v(RAW + 2 * j, 2), j * 256))
        A("buffer_load_dword v%d, v6, s[4:7], s44 offen offset:1024" % (RAW + 8))
        A("s_mul_i32 s45, s%d, %d" % (WAVE, 2 * RS))
        A("s_add_u32 s45, s45, %d" % LDS_LN)
        A("v_mul_u32_u24 v%d, %d, v3" % (LA, RS))
        A("v_add_u32 v%d, s45, v%d" % (LA, LA))
        A("v_lshl_add_u32 v195, v4, 2, v%d" % LA)
        A("v_lshl_add_u32 v%d, v4, 3, v%d" % (LA, LA))
        A("v_lshlrev_b32 v198, 3, v3")
        A("v_bfe_u32 v5, v2, 2, 2")
        A("v_mul_u32_u24 v5, %d, v5" % RS)
        A("v_and_b32 v6, 3, v2")
        A("v_lshl_add_u32 v5, v6, 3, v5")
        A("v_lshrrev_b32 v6, 4, v2")
        A("v_lshl_add_u32 v5, v6, 5, v5")
        A("v_add_u32 v%d, %d, v5" % (LA + 1, LDS_LN))
        A("v_and_b32 v5, 15, v2")
        A("v_lshlrev_b32 v5, 4, v5")
        A("v_lshl_add_u32 v199, v6, 11, v5")
        if cfg.side:
            A("s_and_b32 s45, s2, 3")
            A("s_cmp_eq_u32 s45, 1")
            A("s_cselect_b32 s45, 0x%x, 0" % (SIDE + 128))
            A("v_cmp_le_u32 vcc, 128, v5")
            A("v_add_u32 v5, s45, v199")
            A("s_nop 0")
            A("v_cndmask_b32 v199, v199, v5, vcc")
    N = 18
    def unpack(src):
        for j in range(9):
            A("v_lshlrev_b32 v%d, 16, v%d" % (X + 2 * j, src + j))
            A("v_and_b32 v%d, 0xffff0000, v%d" % (X + 2 * j + 1, src + j))
    def sum32(r):
        row16_sum(A, r)
        A("v_mov_b32 v%d, v%d" % (S2, r))
        A("s_nop 1")
        A("v_permlane16_swap_b32 v%d, v%d" % (r, S2))
        A("s_nop 1")
        A("v_add_f32 v%d, v%d, v%d" % (r, r, S2))
    def pk(op, d, a, b, mods=""):
        A("v_pk_%s_f32 %s, %s, %s %s" % (op, v(d, 2), v(a, 2), v(b, 2), mods))
    NEG = "neg_lo:[0,1] neg_hi:[0,1]"
    P0, P2, PM, PB, PR_ = 100, 102, 104, 106, 108
    def layernorm():
        pk("add", P0, X, X + 2); pk("add", P2, X + 4, X + 6)
        for j in range(8, 16, 4):
            pk("add", P0, P0, X + j); pk("add", P2, P2, X + j + 2)
        pk("add", P0, P0, X + 16)
        pk("add", P0, P0, P2)
        A("v_add_f32 v%d, v%d, v%d" % (S0, P0, P0 + 1))
        sum32(S0)
        A("v_mul_f32 v%d, s46, v%d" % (PM, S0))
        A("v_mul_f32 v%d, s46, v%d" % (PM + 1, S0))
        round_bf16(A, MB, PM)
        for j in range(0, N, 2): pk("add", TT_ + j, X + j, PM, NEG)
        A("v_mov_b32 v%d, v%d\nv_mov_b32 v%d, v%d" % (PB, MB, PB + 1, MB))
        pk("mul", P0, TT_, TT_); pk("mul", P2, TT_ + 2, TT_ + 2)
        for j in range(4, N, 2):
            d = P0 if j % 4 == 0 else P2
            A("v_pk_fma_f32 %s, %s, %s, %s" % (v(d, 2), v(TT_ + j, 2), v(TT_ + j, 2), v(d, 2)))
        pk("add", P0, P0, P2)
        A("v_add_f32 v%d, v%d, v%d" % (S0, P0, P0 + 1))
        fill = [("v_pk_add_f32 %s, %s, %s %s" % (v(X + j, 2), v(X + j, 2), v(PB, 2), NEG)) for j in range(0, N, 2)]
        fill += [("v_cvt_pk_bf16_f32 v%d, v%d, v%d" % (RAW + j, X + 2 * j, X + 2 * j + 1)) for j in range(9)]
        def F(n):
            for _ in range(n): A(fill.pop(0))
        for sh in (8, 4, 2, 1):
            F(2)
            A("v_add_f32_dpp v%d, v%d, v%d row_ror:%d row_mask:0xf bank_mask:0xf" % (S0, S0, S0, sh))
        A("v_mov_b32 v%d, v%d" % (S2, S0))
        F(2)
        A("v_permlane16_swap_b32 v%d, v%d" % (S0, S2))
        F(2)
        A("v_add_f32 v%d, v%d, v%d" % (S0, S0, S2))
        A("v_mul_f32 v%d, s46, v%d" % (S0, S0))
        round_bf16(A, S0, S0)
        A("v_add_f32 v%d, s47, v%d" % (S0, S0))
        round_bf16(A, S0, S0)
        A("v_sqrt_f32 v%d, v%d" % (S0, S0))
        F(3)
        round_bf16(A, S0, S0)
        A("v_rcp_f32 v%d, v%d" % (RSV, S0))
        F(len(fill))
        unpack(RAW)
        A("v_mov_b32 v%d, v%d\nv_mov_b32 v%d, v%d" % (PR_, RSV, PR_ + 1, RSV))
        for j in range(0, N, 2): pk("mul", X + j, X + j, PR_)
        for j in range(9): A("v_cvt_pk_bf16_f32 v%d, v%d, v%d" % (RAW + j, X + 2 * j, X + 2 * j + 1))
    def ln_compute():
        srd(A, 8, PWS, SZ_HF + SIDE + 128, WS_HF)
        srd(A, 12, PWS, SZ_ST, WS_ST)
        A("s_mov_b32 s46, 0x%x" % f2u(1.0 / 576))
        A("s_mov_b32 s47, 0x%x" % f2u(1e-5))
        A("s_lshl_b32 s51, s51, 3")
        A("s_lshr_b32 s44, s2, 3")
        A("s_mul_i32 s44, s44, %d" % (36 * 2048))
        A("s_and_b32 s45, s2, 7")
        A("s_lshl_b32 s45, s45, 8")
        A("s_add_u32 s44, s44, s45")
        A("s_mov_b32 s45, 0")
        A("s_waitcnt vmcnt(0)")
        tag_issue(A)
        A.label("ln_loop")
        unpack(RAW)
        layernorm()
        A("s_cmp_lg_u32 s45, 0")
        A("s_cbranch_scc1 ln_out")
        A("s_mov_b32 exec_lo, 1\ns_mov_b32 exec_hi, 1")
        A("buffer_store_dwordx2 v[%d:%d], v198, s[12:15], s51 offen sc1" % (MB, RSV))
        A("s_mov_b64 exec, -1")
        A("s_mov_b32 s45, 1")
        A("s_branch ln_loop")
        A.label("ln_out")
        for j in range(4):
            A("ds_write_b64 v%d, %s offset:%d" % (LA, v(RAW + 2 * j, 2), j * 256))
        A("ds_write_b32 v195, v%d offset:1024" % (RAW + 8))
        tag_check(A)
        A("s_waitcnt lgkmcnt(0)")
    def ln_store():
        sk = A.newlabel("lns")
        A("s_cmp_lg_u32 s%d, 0" % WAVE)
        A("s_cbranch_scc1 %s" % sk)
        HB = 32
        for k in range(9):
            A("ds_read_b64_tr_b16 %s, v%d offset:%d" % (v(HB + 4 * k, 2), LA + 1, k * 128))
            A("ds_read_b64_tr_b16 %s, v%d offset:%d" % (v(HB + 4 * k + 2, 2), LA + 1, k * 128 + 4 * RS))
            if k == 6: A("s_waitcnt lgkmcnt(8)")
        for k in range(9):
            A("s_waitcnt lgkmcnt(%d)" % min(15, 16 - 2 * k))
            A("buffer_store_dwordx4 %s, v199, s[8:11], s44 offen sc1" % v(HB + 4 * k, 4))
            A("s_add_u32 s44, s44, %d" % (4 * 2048))
        A("v_mov_b32 v252, 0\nv_mov_b32 v253, 0\nv_mov_b32 v249, %d" % SIG)
        A("ds_write_b128 v249, v[250:253]")
        A("s_waitcnt lgkmcnt(0)")
        A.label(sk)
    def pubH():
        sk = A.newlabel("ph")
        A("s_cmp_lg_u32 s%d, 0" % WAVE)
        A("s_cbranch_scc1 %s" % sk)
        A("s_lshl_b32 s52, s2, 3")
        A("s_waitcnt vmcnt(0)")
        publish(A, 52)
        stamp(A, cfg, 9)
        A.label(sk)
    A.label("c1_entry")
    if cfg.cprio: A("s_setprio %d" % cfg.cprio)
    ln_load()
    A("s_or_b32 s44, s2, s%d" % WAVE)
    A("s_cbranch_scc1 c1_notag")
    srd(A, 60, PDBG, 256)
    A("s_or_b32 s%d, s%d, 1" % (TAG, TAG))
    A("v_mov_b32 v4, s%d\nv_mov_b32 v5, s%d\nv_mov_b32 v6, 0" % (TAG, TAG + 1))
    A("s_mov_b64 exec, 1")
    A("buffer_store_dwordx2 v[4:5], v6, s[60:63], 0 offen sc1")
    A("s_mov_b64 exec, -1")
    A.label("c1_notag")
    wrwc()
    A("v_and_b32 v3, 15, v2")
    A("v_lshrrev_b32 v4, 4, v2")
    A("v_and_b32 v5, 7, v3")
    A("v_xor_b32 v5, v5, v4")
    A("v_lshlrev_b32 v5, 4, v5")
    A("v_lshl_add_u32 v5, v3, 7, v5")
    A("v_and_b32 v6, 1, v3")
    A("v_lshrrev_b32 v7, 1, v3")
    A("v_and_b32 v8, 6, v7")
    A("v_or_b32 v8, v8, v6")
    A("v_xor_b32 v8, v8, v4")
    A("v_lshlrev_b32 v8, 4, v8")
    A("v_mul_u32_u24 v6, 48, v6")
    A("v_add_u32 v6, v6, v7")
    A("v_lshl_add_u32 v8, v6, 7, v8")
    A("s_lshl_b32 s44, s%d, 13" % WR)
    A("s_mul_i32 s45, s%d, 3072" % WC)
    A("s_add_u32 s45, s45, 16384")
    A("v_add_u32 v200, s44, v5")
    A("v_xor_b32 v201, 64, v200")
    A("v_add_u32 v202, s45, v8")
    A("v_xor_b32 v203, 64, v202")
    A("v_lshlrev_b32 v218, 4, v4")
    A("v_lshl_add_u32 v218, v3, 6, v218")
    CA = 10
    for i in range(4): A("v_add_u32 v%d, s%d, v%d" % (CA + i, RING, 200 + i))
    ACC1 = 32; SETS1 = [80, 108]; RSUM = 136; CSUM = 152; ONES = 20
    A("v_lshlrev_b32 v219, 4, v3")
    if cfg.csb: A("v_lshlrev_b32 v20, 4, v4")
    else:
        for i in range(4): A("v_mov_b32 v%d, 0x3f803f80" % (ONES + i))
    ids23(); lane_c23()
    srd(A, FSRD, PWS, SZ_FL, WS_FL)
    def reads1(st, ks):
        b = SETS1[st]
        P = lambda aa: "ds_read_b128 %s, v%d offset:%d" % (v(b + 4 * aa, 4), CA + ks, aa * 2048)
        Q = lambda xb: "ds_read_b128 %s, v%d offset:%d" % (v(b + 16 + 4 * xb, 4), CA + 2 + ks, xb * 1024)
        return [P(0), Q(0), Q(1), Q(2), P(1), P(2), P(3)]
    def mfmas1(st):
        b = SETS1[st]; m = []
        for aa in range(4):
            for xb in range(3):
                d = v(ACC1 + (aa * 3 + xb) * 4, 4)
                m.append(("%s %s, %s, %s, %s" % (MFMA, d, v(b + 16 + 4 * xb, 4), v(b + 4 * aa, 4), d), max(1 + xb, 3 + aa if aa else 0)))
            if aa < 3 and not cfg.csb:
                d = v(CSUM + 4 * aa, 4)
                m.append(("%s %s, %s, %s, %s" % (MFMA, d, v(b + 16 + 4 * aa, 4), v(ONES, 4), d), 0))
        return m
    def upd1():
        sa = slot_adv(1)
        return [(5, sa[0]), (6, sa[1]), (7, sa[2])] + [(8 + i, "v_add_u32 v%d, s%d, v%d" % (CA + i, RING, 200 + i)) for i in range(4)]
    def only3(fn):
        def f():
            sk = A.newlabel("w3")
            A("s_cmp_lg_u32 s%d, 3" % WAVE)
            A("s_cbranch_scc1 %s" % sk)
            fn()
            A.label(sk)
        return f
    A("s_mul_i32 s44, s%d, 6" % PT)
    A("s_mul_i32 s45, s%d, 3" % WC)
    A("s_add_u32 s44, s44, s45")
    A("s_lshl_b32 s54, s44, 6")
    A("s_add_u32 s54, s54, 16384")
    A("s_lshl_b32 s44, s44, 16")
    A("s_lshl_b32 s45, s%d, 1" % TT)
    A("s_add_u32 s45, s45, s%d" % WR)
    A("s_lshl_b32 s49, s45, 9")
    A("s_lshl_b32 s45, s45, 11")
    A("s_add_u32 s42, s44, s45")
    A("s_add_u32 s43, s42, 65536")
    A("s_add_u32 s48, s42, 131072")
    A("s_lshl_b32 s50, s%d, 4" % PT)
    A("s_add_u32 s50, s50, s%d" % TT)
    A("s_lshl_b32 s50, s50, 2")
    A("s_add_u32 s50, s50, s%d" % WAVE)
    A("s_lshl_b32 s50, s50, 3")
    A("s_add_u32 s50, s50, %d" % FL_G)
    ln_compute()
    stamp(A, cfg, 1)
    A("s_barrier")
    ln_store()
    A("s_sub_u32 s3, s%d, 19" % SLOTR)
    A("s_cmp_lt_u32 s3, 8")
    A("s_cbranch_scc1 ln_lo")
    A("s_barrier")
    stamp(A, cfg, 2)
    BIAS = 24; BF = 224
    def biasld():
        srd(A, 4, PB1, 9216)
        A("s_lshl_b32 s44, s%d, 8" % FT)
        A("s_lshl_b32 s45, s%d, 7" % WR)
        A("s_add_u32 s44, s44, s45")
        for aa in range(4):
            A("buffer_load_dwordx2 %s, v217, s[4:7], s44 offen offset:%d" % (v(BIAS + 2 * aa, 2), aa * 32))
    def biasup():
        for k in range(8):
            A("v_lshlrev_b32 v%d, 16, v%d" % (BF + 2 * k, BIAS + k))
            A("v_and_b32 v%d, 0xffff0000, v%d" % (BF + 2 * k + 1, BIAS + k))
    def statld():
        for ap in range(2):
            A("buffer_load_dwordx4 %s, v219, s[12:15], s49 offen offset:%d sc1" % (v(RSUM + 4 * ap, 4), ap * 256))
        if cfg.csb:
            for xb in range(3):
                A("buffer_load_dwordx4 %s, v20, s[12:15], s54 offen offset:%d sc1" % (v(CSUM + 4 * xb, 4), xb * 64))
    P1 = Phase(A, "c1", reads1, mfmas1, upd1, (0, 3) if cfg.csb else (0, 4), 1)
    P1.first()
    P1.it(pubH)
    P1.loop("_loop", 3)
    P1.it(lambda: (only3(lambda: wide_issue(A))(), biasld()))
    P1.it(only3(lambda: (stamp(A, cfg, 11), wide_check(A), stamp(A, cfg, 14))))
    P1.it(statld)
    P1.tail(capture(A, lambda: srd(A, 12, PWS, SZ_G, WS_G)))
    stamp(A, cfg, 3)
    MN = 80; RR = 88
    A("s_waitcnt vmcnt(0)")
    for aa in range(4):
        for q in range(2):
            A("v_sub_f32 v%d, 0, v%d" % (MN + 2 * aa + q, RSUM + 2 * aa))
            A("v_mov_b32 v%d, v%d" % (RR + 2 * aa + q, RSUM + 2 * aa + 1))
    for ap in range(2):
        for xb in range(3):
            O = 168 + 4 * (ap * 3 + xb)
            hq = [(h, q) for h in range(2) for q in range(2)]
            D_ = lambda h, q: ACC1 + ((2 * ap + h) * 3 + xb) * 4 + 2 * q
            for h, q in hq: A("v_pk_fma_f32 %s, %s, %s, %s" % (v(D_(h, q), 2), v(MN + 2 * (2 * ap + h), 2), v(CSUM + 4 * xb + 2 * q, 2), v(D_(h, q), 2)))
            for h, q in hq: A("v_pk_mul_f32 %s, %s, %s" % (v(D_(h, q), 2), v(D_(h, q), 2), v(RR + 2 * (2 * ap + h), 2)))
            for h, q in hq: A("v_cvt_pk_bf16_f32 v%d, v%d, v%d" % (O + 2 * h + q, D_(h, q), D_(h, q) + 1))
            A("buffer_store_dwordx4 %s, v218, s[12:15], s%d offen offset:%d sc1" % (v(O, 4), (42, 43, 48)[xb], ap * 1024))
    ACC2 = 32; SETS2 = [80, 108]
    biasup()
    A("s_mov_b32 s53, 1")
    A("s_mov_b32 s52, s50")
    A("s_barrier")
    if cfg.gpub:
        A("s_waitcnt vmcnt(0)")
        publish(A, 52)
        A("s_mov_b32 s53, 0")
        A("s_cmp_lt_u32 s%d, 27" % SLOTR)
        A("s_cbranch_scc1 c2_main")
    else:
        A("s_cmp_lt_u32 s%d, 27" % SLOTR)
        A("s_cbranch_scc1 c2_main")
        A("s_waitcnt vmcnt(0)")
        publish(A, 52)
    A("s_branch scan_entry")
    A.label("c2_entry")
    biasup()
    A("s_mov_b32 s53, 0")
    A("s_barrier")
    A.label("c2_main")
    for i in range(5): A("v_add_u32 v%d, s%d, v%d" % (CA + i, RING, 204 + i))
    A("s_barrier")
    stamp(A, cfg, 4)
    def reads2(st, ks):
        b = SETS2[st]
        P = lambda aa: ["ds_read_b64_tr_b16 %s, v%d offset:%d" % (v(b + 4 * aa, 2), CA + aa, ks * 8192),
                        "ds_read_b64_tr_b16 %s, v%d offset:%d" % (v(b + 4 * aa + 2, 2), CA + aa, ks * 8192 + 4096)]
        Q = lambda xb: ["ds_read_b128 %s, v%d offset:%d" % (v(b + 16 + 4 * xb, 4), CA + 4, xb * 2048 + ks * 1024)]
        if cfg.ord2 == 2: return P(0) + Q(0) + P(1) + P(2) + P(3) + Q(1) + Q(2)
        return P(0) + Q(0) + Q(1) + Q(2) + P(1) + P(2) + P(3)
    def mfmas2(st):
        b = SETS2[st]; m = []
        if cfg.ord2 == 2:
            order = [(aa if xb % 2 == 0 else 3 - aa, xb) for xb in range(3) for aa in range(4)]
            need = lambda aa, xb: max(2 + 2 * aa if aa else 2, 8 + xb if xb else 0)
        else:
            order = [(aa, xb if (cfg.ord2 == 0 or aa % 2 == 0) else 2 - xb) for aa in range(4) for xb in range(3)]
            need = lambda aa, xb: max(2 + xb, 4 + 2 * aa if aa else 0)
        for aa, xb in order:
            d = v(ACC2 + (aa * 3 + xb) * 4, 4)
            m.append(("%s %s, %s, %s, %s" % (MFMA, d, v(b + 4 * aa, 4), v(b + 16 + 4 * xb, 4), d), need(aa, xb)))
        return m
    def upd2():
        sa = slot_adv(2)
        U = lambda i: "v_add_u32 v%d, s%d, v%d" % (CA + i, RING, 204 + i)
        if cfg.ord2 == 2: return [(0, sa[0]), (1, sa[1]), (2, sa[2]), (4, U(0)), (5, U(1)), (7, U(2)), (9, U(3)), (11, U(4))]
        return [(0, sa[0]), (1, sa[1]), (2, sa[2]), (4, U(0)), (5, U(4)), (7, U(1)), (9, U(2)), (11, U(3))]
    def pubG():
        sk = A.newlabel("pg")
        A("s_cmp_eq_u32 s53, 0")
        A("s_cbranch_scc1 %s" % sk)
        A("s_waitcnt vmcnt(0)")
        publish(A, 52)
        A.label(sk)
    def gelu_setup():
        c1 = -2.0 * math.sqrt(2.0 / math.pi) * math.log2(math.e); c2 = c1 * 0.044715
        for (r, val) in ((28, c1), (136, c2), (138, 1.0)):
            A("v_mov_b32 v%d, 0x%x\nv_mov_b32 v%d, 0x%x" % (r, f2u(val), r + 1, f2u(val)))
        srd(A, 12, PWS, SZ_UF + SIDE + 128, WS_UF)
        A("s_lshl_b32 s44, s%d, 1" % FT)
        A("s_add_u32 s44, s44, s%d" % WR)
        A("s_lshl_b32 s45, s%d, 1" % DT)
        A("s_add_u32 s45, s45, s%d" % WC)
        A("s_mul_i32 s46, s44, 12")
        A("s_add_u32 s46, s46, s45")
        A("s_mul_i32 s46, s46, %d" % (3 * PAIR))
        A("s_add_u32 s47, s46, 4096")
        A("s_mul_i32 s48, s44, 3641")
        A("s_lshr_b32 s48, s48, 16")
        A("s_mul_i32 s49, s45, 21846")
        A("s_lshr_b32 s49, s49, 16")
        A("s_mul_i32 s50, s48, 18")
        A("s_sub_u32 s50, s44, s50")
        A("s_sub_u32 s50, s50, s49")
        A("s_mul_i32 s50, s50, 3")
        A("s_add_u32 s50, s50, s45")
        A("s_lshl_b32 s50, s50, 3")
        A("s_lshl_b32 s49, s49, 2")
        A("s_add_u32 s49, s49, s48")
        A("s_lshl_b32 s49, s49, 9")
        A("s_add_u32 s52, s50, s49")
        A("s_add_u32 s52, s52, %d" % FL_U)

    P2 = Phase(A, "c2", reads2, mfmas2, upd2, (0, 2, 4) if cfg.ord2 == 2 else (0, 3, 6), 2)
    assert cfg.ord2 == 0
    P2.first(cinit=(lambda i: v(BF + 4 * (i // 3), 4)) if cfg.binit else None)
    pubG(); stamp(A, cfg, 10)
    P2.loop("_loop", 30)
    P2.tail(capture(A, gelu_setup))
    stamp(A, cfg, 5)
    if not cfg.upub:
        A("v_mov_b32 v16, %d" % SIG)
        A("ds_read_b32 v16, v16 offset:8")
        A("s_waitcnt lgkmcnt(0)")
    if cfg.xpos == 0: A("s_barrier")
    else: A("s_nop 7")
    T = 80
    for ap in range(2):
        for xb in range(3):
            if cfg.xpos and ap * 3 + xb == cfg.xpos: A("s_barrier")
            prs = [ACC2 + ((ap * 2 + h) * 3 + xb) * 4 + 2 * q for h in range(2) for q in range(2)]
            if not cfg.binit:
                for i, x in enumerate(prs): A("v_pk_add_f32 %s, %s, %s" % (v(x, 2), v(x, 2), v(BF + ap * 8 + 2 * i, 2)))
            for i, x in enumerate(prs): A("v_pk_mul_f32 %s, %s, %s" % (v(T + 2 * i, 2), v(x, 2), v(x, 2)))
            for i, x in enumerate(prs): A("v_pk_fma_f32 %s, %s, v[136:137], v[28:29]" % (v(T + 2 * i, 2), v(T + 2 * i, 2)))
            for i, x in enumerate(prs): A("v_pk_mul_f32 %s, %s, %s" % (v(T + 2 * i, 2), v(T + 2 * i, 2), v(x, 2)))
            for i in range(8): A("v_exp_f32 v%d, v%d" % (T + i, T + i))
            for i, x in enumerate(prs): A("v_pk_add_f32 %s, %s, v[138:139]" % (v(T + 2 * i, 2), v(T + 2 * i, 2)))
            for i in range(8): A("v_rcp_f32 v%d, v%d" % (T + i, T + i))
            for i, x in enumerate(prs): A("v_pk_mul_f32 %s, %s, %s" % (v(T + 2 * i, 2), v(T + 2 * i, 2), v(x, 2)))
            O = 140 + 4 * (ap * 3 + xb)
            for i in range(4):
                A("v_cvt_pk_bf16_f32 v%d, v%d, v%d" % (O + i, T + 2 * i, T + 2 * i + 1))
            off = xb * 2048 + ap * 1024
            A("buffer_store_dwordx4 %s, v215, s[12:15], s%d offen offset:%d sc1" % (v(O, 4), 46 + off // 4096, off % 4096))
    ACC3 = 24; SETS3 = [96, 140]
    A("s_mov_b32 s53, 1")
    if not cfg.upub:
        A("v_readfirstlane_b32 s44, v16")
        A("s_cmp_lg_u32 s44, 0")
        A("s_cbranch_scc1 c3_main")
    pubG()
    A("s_mov_b32 s53, 0")
    A("s_branch c3_main")
    A.label("c3_entry")
    wrwc(); lane_c23()
    A("s_mov_b32 s53, 0")
    A.label("c3_main")
    A("s_barrier")
    A("s_barrier")
    stamp(A, cfg, 6)
    for i in range(4): A("v_add_u32 v%d, s%d, v%d" % (CA + i, RING, 209 + i))
    def reads3(st, ks):
        b = SETS3[st]; r = ["ds_read_b128 %s, v%d offset:0" % (v(b + 8, 4), CA + 2 + ks)]
        for aa in range(2):
            r.append("ds_read_b64_tr_b16 %s, v%d offset:%d" % (v(b + 4 * aa, 2), CA + aa, ks * 8192))
            r.append("ds_read_b64_tr_b16 %s, v%d offset:%d" % (v(b + 4 * aa + 2, 2), CA + aa, ks * 8192 + 4096))
        for xb in range(1, 9):
            if cfg.hack3 and xb % 2: continue
            r.append("ds_read_b128 %s, v%d offset:%d" % (v(b + 8 + 4 * xb, 4), CA + 2 + ks, xb * 2048))
        return r
    def mfmas3(st):
        b = SETS3[st]; m = []
        order = [(xb, aa if (cfg.ord3 == 0 or xb % 2 == 0) else 1 - aa) for xb in range(9) for aa in range(2)]
        for xb, aa in order:
            if True:
                d = v(ACC3 + (xb * 2 + aa) * 4, 4)
                m.append(("%s %s, %s, %s, %s" % (MFMA, d, v(b + 8 + 4 * (xb & ~1 if cfg.hack3 else xb), 4), v(b + 4 * aa, 4), d), max(2 + 2 * aa, (4 + xb // 2 if cfg.hack3 else 4 + xb) if xb else 0)))
        return m
    def upd3():
        sa = slot_adv(3)
        U = lambda i: "v_add_u32 v%d, s%d, v%d" % (CA + i, RING, 209 + i)
        return [(7, sa[0]), (8, sa[1]), (9, sa[2]), (11, U(0)), (13, U(1)), (14, U(2)), (15, U(3))]
    def umode():
        A("v_mov_b32 v211, v213\nv_mov_b32 v212, v214")
        A("v_add_u32 v%d, s%d, v213" % (CA + 2, RING))
        A("v_add_u32 v%d, s%d, v214" % (CA + 3, RING))
    def exsetup():
        srd(A, 12, PWS, SZ_EX, WS_EX)
        A("s_lshl_b32 s44, s%d, 2" % ST)
        A("s_add_u32 s44, s44, s%d" % D3)
        A("s_lshl_b32 s44, s44, 2")
        A("s_add_u32 s44, s44, s%d" % WAVE)
        A("s_lshl_b32 s52, s44, 7")
        A("s_lshl_b32 s45, s%d, 3" % SP)
        A("s_add_u32 s52, s52, s45")
        A("s_add_u32 s52, s52, %d" % FL_X)
        A("s_lshl_b32 s44, s44, 2")
        A("s_add_u32 s44, s44, s%d" % SP)
        A("s_mul_i32 s44, s44, 9216")

    P3 = Phase(A, "c3", reads3, mfmas3, upd3, (0, 6), 3)
    P3.first(mid=pubG if cfg.ford else None)
    if not cfg.ford: pubG()
    stamp(A, cfg, 12)
    P3.loop("_f", "s_sub_u32 s%d, s%d, 2" % (CNT, NF))
    P3.it(lambda: (umode(), stamp(A, cfg, 13)))
    P3.loop("_u", 17)
    def xst(xb):
        o = 96 + 4 * xb
        r = ["v_cvt_pk_bf16_f32 v%d, v%d, v%d" % (o + k, ACC3 + 8 * xb + 2 * k, ACC3 + 8 * xb + 2 * k + 1) for k in range(4)]
        r.append("buffer_store_dwordx4 %s, v216, s[12:15], s44 offen offset:%d sc1" % (v(o, 4), (xb % 4) * 1024))
        if xb % 4 == 3: r.append("s_add_u32 s44, s44, 4096")
        return r
    def xow(xb):
        return ["ds_write_b128 v16, %s offset:%d" % (v(ACC3 + 4 * t, 4), t * 1024) for t in (2 * xb, 2 * xb + 1)]
    if cfg.xint:
        work = capture(A, exsetup) + ["v_add_u32 v16, %d, v216" % LDS_OWN, "s_cmp_eq_u32 s%d, s%d" % (WAVE, SP)]
        group(A, mfmas3(0), reads3(1, 1), 13, spread(work, 18, 0, 1), (0, 6))
        A("s_cbranch_scc1 c3_own")
        def last(fn):
            ex = []
            for xb in range(9):
                ex += [(2 * xb + 9, t) for t in fn(xb)] if 2 * xb + 9 <= 17 else []
            group(A, mfmas3(1), [], 13, ex, (0, 6))
            for xb in range(5, 9):
                if xb == 8 or (xb == 7 and fn is xow): A("s_nop 3")
                for t in fn(xb): A(t)
        last(xst)
        stamp(A, cfg, 7)
    else:
        P3.tail(capture(A, exsetup))
        stamp(A, cfg, 7)
        A("s_nop 3")
        A("s_cmp_eq_u32 s%d, s%d" % (WAVE, SP))
        A("s_cbranch_scc1 c3_own")
        for xb in range(9):
            for t in xst(xb): A(t)
    A("s_waitcnt vmcnt(0)")
    publish(A, 52)
    if cfg.stamp:
        A("s_barrier")
        A("s_branch k_done")
    A("s_endpgm")
    A.label("c3_own")
    if cfg.xint:
        last(xow)
        stamp(A, cfg, 7)
    else:
        A("v_add_u32 v16, %d, v216" % LDS_OWN)
        for xb in range(9):
            for t in xow(xb): A(t)
    A("s_waitcnt lgkmcnt(0)")
    A("s_barrier")
    A("s_branch k_done")

    A.label("hi_entry")
    if cfg.lprio: A("s_setprio %d" % cfg.lprio)
    A("s_sub_u32 s3, s%d, 19" % SLOTR)
    A("s_cmp_lt_u32 s3, 8")
    A("s_cbranch_scc1 ln_hi")
    LW = 23
    M0P, M0Q = 40, 41
    OP, OQ = 42, 43
    A("s_sub_u32 s%d, s%d, 4" % (LW, WAVE))
    A("v_lshrrev_b32 v3, 3, v2")
    A("v_and_b32 v4, 7, v2")
    A("v_xor_b32 v6, v4, v3")
    A("s_movk_i32 s44, 1152")
    A("v_mul_lo_u32 v5, v3, s44")
    A("v_lshlrev_b32 v8, 1, v5")
    A("v_lshl_add_u32 v10, v6, 4, v8")
    A("s_lshr_b32 s44, s%d, 1" % LW)
    A("v_and_b32 v7, 6, v3")
    A("v_or_b32 v7, s44, v7")
    A("v_xor_b32 v7, v4, v7")
    A("v_lshl_add_u32 v14, v7, 4, v5")
    for m in range(1, 4):
        A("v_add_u32 v%d, 0x%x, v10" % (10 + m, (16 * (m & 1) + (m >> 1)) * 1152 - (m & 1) * 1024))
    for m in range(1, 3):
        A("v_add_u32 v%d, 0x%x, v14" % (14 + m, m * (8 * 1152 - 1024)))
    A("s_lshl_b32 s%d, s%d, 7" % (OP, TT))
    A("s_lshl_b32 s45, s%d, 5" % LW)
    A("s_add_u32 s%d, s%d, s45" % (OP, OP))
    A("s_mul_i32 s%d, s%d, 1152" % (OP, OP))
    A("s_mul_i32 s%d, s%d, 48" % (OQ, PT))
    A("s_and_b32 s45, s%d, 1" % LW)
    A("s_mul_i32 s45, s45, 24")
    A("s_add_u32 s%d, s%d, s45" % (OQ, OQ))
    A("s_mul_i32 s%d, s%d, 1152" % (OQ, OQ))
    A("s_lshl_b32 s%d, s%d, 12" % (M0P, LW))
    A("s_mul_i32 s%d, s%d, 3072" % (M0Q, LW))
    A("s_add_u32 s%d, s%d, 16384" % (M0Q, M0Q))
    if cfg.rot1:
        A("s_lshl_b32 s46, s%d, 2" % TT)
        A("s_add_u32 s46, s46, s%d" % PT)
        A("s_mul_i32 s47, s46, 7282")
        A("s_lshr_b32 s47, s47, 16")
        A("s_mul_i32 s47, s47, 9")
        A("s_sub_u32 s46, s46, s47")
        A("s_lshl_b32 s47, s46, 7")
        A("s_add_u32 s%d, s%d, s47" % (OP, OP))
        A("s_add_u32 s%d, s%d, s47" % (OQ, OQ))
    A("s_waitcnt lgkmcnt(0)")
    srd(A, 4, PX, SZ_X)
    A("s_cmp_ge_u32 s%d, 2" % LW)
    A("s_cselect_b32 s8, s%d, s%d" % (PBIM, PBRE))
    A("s_cselect_b32 s9, s%d, s%d" % (PBIM + 1, PBRE + 1))
    A("s_mov_b32 s10, %d" % SZ_C)
    A("s_mov_b32 s11, 0x00020000")
    def issue1():
        A("s_add_u32 m0, s%d, s%d" % (RING, M0P))
        A("s_add_u32 s45, s%d, s%d" % (RING, M0Q))
        for m in range(4):
            if m == 2:
                A("s_add_u32 m0, m0, 2048")
                A("s_nop 0")
            A("buffer_load_dwordx4 v%d, s[4:7], s%d offen offset:%d lds" % (10 + m, OP, (m & 1) * 1024))
        A("s_mov_b32 m0, s45")
        A("s_add_u32 s%d, s%d, 128" % (OP, OP))
        for m in range(3):
            A("buffer_load_dwordx4 v%d, s[8:11], s%d offen offset:%d lds" % (14 + m, OQ, m * 1024))
        A("s_add_u32 s%d, s%d, 128" % (OQ, OQ))
        if cfg.rot1:
            A("s_add_u32 s46, s46, 1")
            A("s_cmp_eq_u32 s46, 9")
            A("s_cselect_b32 s47, 1152, 0")
            A("s_sub_u32 s%d, s%d, s47" % (OP, OP))
            A("s_sub_u32 s%d, s%d, s47" % (OQ, OQ))
        for t in slot_adv(1): A(t)
    def lane23():
        A("v_lshrrev_b32 v3, 4, v2")
        A("v_and_b32 v4, 15, v2")
        A("v_lshlrev_b32 v6, 1, v3")
        A("v_xor_b32 v7, v4, v6")
        A("v_xor_b32 v8, 8, v7")
        for (b, stride) in ((20, 9216), (24, 4096)):
            A("s_movk_i32 s44, %d" % stride)
            A("v_mul_lo_u32 v5, v3, s44")
            A("v_lshl_add_u32 v%d, v7, 4, v5" % b)
            A("v_lshl_add_u32 v%d, v8, 4, v5" % (b + 1))
            D = 4 * stride - 1024
            A("v_add_u32 v%d, 0x%x, v%d" % (b + 2, 2 * D, b))
            A("v_add_u32 v%d, 0x%x, v%d" % (b + 3, 3 * D, b + 1))
            A("v_add_u32 v%d, 0x%x, v%d" % (b + 1, D, b + 1))
        A("v_lshlrev_b32 v28, 4, v2")
        if cfg.side:
            A("v_lshrrev_b32 v5, 3, v2")
            A("v_cmp_eq_u32 vcc, 3, v5")
            A("v_add_u32 v5, 0x%x, v28" % (SIDE + 128))
            A("s_nop 0")
            A("v_cndmask_b32 v28, v28, v5, vcc")
        A("v_lshrrev_b32 v3, 3, v2")
        A("v_and_b32 v4, 7, v2")
        A("v_xor_b32 v4, v4, v3")
        A("s_movk_i32 s44, 1152")
        A("v_mul_lo_u32 v5, v3, s44")
        A("v_lshl_add_u32 v30, v4, 4, v5")
        for m in range(1, 4):
            A("v_add_u32 v%d, 0x%x, v30" % (30 + m, m * (8 * 1152 - 1024)))
    B2P, B2Q, N2, M6 = 48, 49, 50, 51
    def setup2():
        A("s_mul_i32 s%d, s%d, %d" % (B2P, LW, 16 * 9216))
        A("s_lshl_b32 s44, s%d, 8" % FT)
        A("s_add_u32 s%d, s%d, s44" % (B2P, B2P))
        A("s_mul_i32 s%d, s%d, 12" % (B2Q, DT))
        A("s_mul_i32 s44, s%d, 3" % LW)
        A("s_add_u32 s%d, s%d, s44" % (B2Q, B2Q))
        A("s_lshl_b32 s%d, s%d, 10" % (B2Q, B2Q))
        A("s_mov_b32 s%d, 0\ns_mov_b32 s%d, 0" % (N2, M6))
        tabset()
    def tabset():
        if not cfg.tab2: return
        for dt in range(6):
            order = sorted(range(16), key=lambda p: (p - cfg.tab2 - 0.5) if (p % 6 == dt and p >= cfg.tab2) else p)
            val = sum(p << (4 * i) for i, p in enumerate(order))
            if dt == 0:
                A("s_mov_b32 s56, 0x%x\ns_mov_b32 s57, 0x%x" % (val & 0xffffffff, val >> 32))
            else:
                A("s_cmp_eq_u32 s%d, %d" % (DT, dt))
                A("s_cselect_b32 s56, 0x%x, s56" % (val & 0xffffffff))
                A("s_cselect_b32 s57, 0x%x, s57" % (val >> 32))
    def srd2():
        srd(A, 4, PW1, SZ_W)
        srd(A, 8, PWS, SZ_HF + SIDE + 128, WS_HF)
    par2 = [0]
    def issue2(which="WX", adv=True):
        odd = par2[0] & 1
        if adv: par2[0] += 1
        if cfg.tab2:
            A("s_and_b32 s44, s56, 15")
            A("s_lshl_b32 s44, s44, 1")
            if odd: A("s_add_u32 s44, s44, 1")
        elif cfg.pair2:
            A("s_add_u32 s44, s%d, 12" % N2)
            A("s_lshl_b32 s45, s%d, 1" % M6)
            if odd: A("s_add_u32 s45, s45, 1")
            A("s_cmp_lt_u32 s44, 32")
            A("s_cselect_b32 s44, s44, s45")
            A("s_cmp_eq_u32 s%d, s%d" % (M6, DT))
            A("s_cselect_b32 s44, s44, s%d" % N2)
        elif cfg.rot2 in (2, 4):
            R = cfg.rot2; ADV = cfg.adv2
            A("s_add_u32 s45, s%d, s%d" % (FT, DT))
            A("s_add_u32 s45, s45, s%d" % N2)
            A("s_and_b32 s45, s45, %d" % (R - 1))
            A("s_cselect_b32 s44, 0, %d" % ADV)
            A("s_add_u32 s44, s44, s%d" % N2)
            A("s_and_b32 s44, s44, 31")
        elif cfg.rot2:
            A("s_add_u32 s44, s%d, 6" % N2)
            A("s_cmp_lt_u32 s44, 32")
            A("s_cselect_b32 s44, s44, s%d" % M6)
            A("s_cmp_eq_u32 s%d, s%d" % (M6, DT))
            A("s_cselect_b32 s44, s44, s%d" % N2)
        else:
            A("s_mov_b32 s44, s%d" % N2)
        A("s_mul_i32 s%d, s44, %d" % (OP, 64 * 9216))
        A("s_add_u32 s%d, s%d, s%d" % (OP, OP, B2P))
        A("s_mul_i32 s%d, s44, %d" % (OQ, 36 * PAIR))
        A("s_add_u32 s%d, s%d, s%d" % (OQ, OQ, B2Q))
        def W():
            A("s_add_u32 m0, s%d, s%d" % (RING, M0P))
            A("s_nop 0")
            for m in range(4):
                if m >= cfg.hackw and cfg.hackd: continue
                if m >= cfg.hackw:
                    A("s_mov_b64 exec, 1")
                    A("buffer_load_dwordx4 v%d, s[4:7], s%d offen lds" % (20, OP))
                    A("s_mov_b64 exec, -1")
                    continue
                A("buffer_load_dwordx4 v%d, s[4:7], s%d offen offset:%d lds" % (20 + m, OP, m * 1024))
        def X():
            A("s_add_u32 m0, s%d, s%d" % (RING, M0Q))
            A("s_nop 0")
            for m in range(3):
                A("buffer_load_dwordx4 v28, s[8:11], s%d offen offset:%d %s lds" % (OQ, m * 1024, HL))
        if which == "W": W()
        elif which == "X": X()
        elif (cfg.pair2 or cfg.tab2) and not odd: X(); W()
        else: W(); X()
        if not adv: return
        if cfg.tab2 and odd: A("s_lshr_b64 s[56:57], s[56:57], 4")
        A("s_add_u32 s%d, s%d, 1" % (N2, N2))
        if odd or not cfg.pair2:
            A("s_add_u32 s%d, s%d, 1" % (M6, M6))
            A("s_cmp_eq_u32 s%d, 6" % M6)
            A("s_cselect_b32 s%d, 0, s%d" % (M6, M6))
        for t in slot_adv(2): A(t)
    B3P, B3C, B3U, N3, PH3, M0X, M0Q3 = 52, 53, 54, 55, 46, 47, 29
    def setup3():
        A("s_lshl_b32 s%d, s%d, 16" % (B3P, LW))
        A("s_lshl_b32 s44, s%d, 8" % ST)
        A("s_add_u32 s%d, s%d, s44" % (B3P, B3P))
        A("s_mul_i32 s%d, s%d, %d" % (B3C, D3, 144 * 1152))
        A("s_mul_i32 s%d, s%d, %d" % (B3U, D3, 9 * PAIR))
        A("s_mul_i32 s44, s%d, %d" % (SP, 18 * 36 * PAIR))
        A("s_add_u32 s%d, s%d, s44" % (B3U, B3U))
        A("s_mov_b32 s%d, s%d" % (N3, F0))
        A("s_add_u32 s%d, s%d, s%d" % (PH3, D3, ST))
        A("s_and_b32 s%d, s%d, 3" % (PH3, PH3))
        A("s_lshl_b32 s%d, s%d, 10" % (M0X, LW))
        A("s_add_u32 s%d, s%d, %d" % (M0X, M0X, 32768))
        A("s_add_u32 s%d, s%d, 16384" % (M0Q3, M0P))
    def issue3f(extra):
        srd(A, 4, PWS, SZ_HT, WS_HT)
        A("s_cmp_ge_u32 s%d, 9" % N3)
        A("s_cselect_b32 s8, s%d, s%d" % (PCIM, PCRE))
        A("s_cselect_b32 s9, s%d, s%d" % (PCIM + 1, PCRE + 1))
        A("s_cselect_b32 s44, 9, 0")
        A("s_mov_b32 s10, %d" % SZ_C)
        A("s_mov_b32 s11, 0x00020000")
        A("s_lshl_b32 s%d, s%d, 18" % (OP, N3))
        A("s_add_u32 s%d, s%d, s%d" % (OP, OP, B3P))
        A("s_add_u32 m0, s%d, s%d" % (RING, M0P))
        A("s_sub_u32 s44, s%d, s44" % N3)
        for m in range(4):
            A("buffer_load_dwordx4 v%d, s[4:7], s%d offen offset:%d %s lds" % (24 + m, OP, m * 1024, HL))
        A("s_lshl_b32 s44, s44, 7")
        A("s_add_u32 s44, s44, s%d" % B3C)
        A("s_mul_i32 s%d, s%d, %d" % (OQ, LW, 32 * 1152))
        A("s_add_u32 m0, s%d, s%d" % (RING, M0Q3))
        A("s_add_u32 s%d, s%d, s44" % (OQ, OQ))
        for m in range(4):
            A("buffer_load_dwordx4 v%d, s[8:11], s%d offen offset:%d lds" % (30 + m, OQ, m * 1024))
        if extra:
            A("s_mul_i32 s%d, s%d, %d" % (OQ, LW, 8 * 1152))
            A("s_add_u32 s44, s44, %d" % (128 * 1152))
            A("s_add_u32 m0, s%d, s%d" % (RING, M0X))
            A("s_add_u32 s%d, s%d, s44" % (OQ, OQ))
            A("buffer_load_dwordx4 v30, s[8:11], s%d offen lds" % OQ)
        A("s_add_u32 s%d, s%d, 1" % (N3, N3))
        for t in slot_adv(3): A(t)
    def switch3u():
        srd(A, 4, PW2, SZ_W)
        srd(A, 8, PWS, SZ_UF + SIDE + 128, WS_UF)
        A("s_mul_i32 s44, s%d, %d" % (SP, 18 * 262144))
        A("s_add_u32 s%d, s%d, s44" % (B3P, B3P))
        A("s_mov_b32 s%d, 0" % N3)
    par3 = [0]
    def issue3u(extra, which="WX"):
        odd = par3[0] & 1; par3[0] += 1
        if cfg.pair3:
            A("s_bfe_u32 s45, s%d, 0x20001" % N3)
            A("s_add_u32 s44, s%d, 8" % N3)
            A("s_and_b32 s%d, s%d, 7" % (OP, N3))
            A("s_cmp_lt_u32 s44, 18")
            A("s_cselect_b32 s44, s44, s%d" % OP)
            A("s_cmp_eq_u32 s45, s%d" % PH3)
            A("s_cselect_b32 s44, s44, s%d" % N3)
        elif cfg.rot3:
            A("s_and_b32 s45, s%d, 3" % N3)
            A("s_add_u32 s44, s%d, 4" % N3)
            A("s_cmp_lt_u32 s44, 18")
            A("s_cselect_b32 s44, s44, s45")
            A("s_cmp_eq_u32 s45, s%d" % PH3)
            A("s_cselect_b32 s44, s44, s%d" % N3)
        else:
            A("s_mov_b32 s44, s%d" % N3)
        A("s_lshl_b32 s%d, s44, 18" % OP)
        A("s_add_u32 s%d, s%d, s%d" % (OP, OP, B3P))
        A("s_mul_i32 s45, s44, %d" % (36 * PAIR))
        A("s_add_u32 s45, s45, s%d" % B3U)
        A("s_add_u32 s%d, s45, s%d" % (OQ, M0P))
        if extra:
            A("s_add_u32 s45, s45, s%d" % M0X)
            A("s_sub_u32 s45, s45, 16384")
        def W():
            A("s_add_u32 m0, s%d, s%d" % (RING, M0P))
            A("s_nop 0")
            for m in range(4):
                A("buffer_load_dwordx4 v%d, s[4:7], s%d offen offset:%d lds" % (24 + m, OP, m * 1024))
        def X():
            A("s_add_u32 m0, s%d, s%d" % (RING, M0Q3))
            A("s_nop 0")
            for m in range(4):
                A("buffer_load_dwordx4 v28, s[8:11], s%d offen offset:%d %s lds" % (OQ, m * 1024, HL))
            if extra:
                A("s_add_u32 m0, s%d, s%d" % (RING, M0X))
                A("s_nop 0")
                A("buffer_load_dwordx4 v28, s[8:11], s45 offen %s lds" % HL)
        if which == "W": W()
        elif which == "X": X()
        elif cfg.pair3 and not odd: X(); W()
        else: W(); X()
        A("s_add_u32 s%d, s%d, 1" % (N3, N3))
        for t in slot_adv(3): A(t)
    def step(wait, issue):
        if issue and cfg.hoist:
            mark = len(A.lines)
            issue()
            body = A.lines[mark:]; del A.lines[mark:]
            k = 0
            while k < len(body) and body[k].strip().startswith("s_") and not body[k].strip().startswith(("s_cbranch", "s_branch")): k += 1
            A.lines += body[:k]
            A("s_waitcnt vmcnt(%d)" % wait)
            A("s_barrier")
            A.lines += body[k:]
            return
        A("s_waitcnt vmcnt(%d)" % wait)
        A("s_barrier")
        if issue: issue()
    def lloop(label, count, wait, issue, unroll=1):
        if isinstance(count, int): A("s_mov_b32 s%d, %d" % (CNT, count))
        else: A(count)
        align(A)
        A.label(label)
        for _ in range(unroll): step(wait, issue)
        A("s_sub_u32 s%d, s%d, 1" % (CNT, CNT))
        A("s_cmp_lg_u32 s%d, 0" % CNT)
        A("s_cbranch_scc1 %s" % label)
    def fast_loop(label, count, wait, sel, ph, vW, nX, strideW, bW, bQ, m0q, extra):
        QA = (OQ, 63); XA = (45, 3); MQ = (56, 57); MX = (58, 59)
        def prep(k):
            sel()
            if strideW == 262144: A("s_lshl_b32 s%d, s44, 18" % OP)
            else: A("s_mul_i32 s%d, s44, %d" % (OP, strideW))
            A("s_add_u32 s%d, s%d, s%d" % (OP, OP, bW))
            A("s_mul_i32 s44, s44, %d" % (36 * PAIR))
            A("s_add_u32 s%d, s44, s%d" % (QA[k], bQ))
            if extra:
                A("s_add_u32 s%d, s44, s%d" % (XA[k], extra))
                A("s_add_u32 s%d, s%d, s%d" % (MX[k], RING, M0X))
            A("s_add_u32 s%d, s%d, s%d" % (MQ[k], RING, m0q))
            A("s_add_u32 s62, s%d, s%d" % (RING, M0P))
            for t in slot_adv(ph): A(t)
        def body(k, last):
            A("s_mov_b32 m0, s62")
            A("s_waitcnt vmcnt(%d)" % wait)
            A("s_barrier")
            for m in range(4):
                A("buffer_load_dwordx4 v%d, s[4:7], s%d offen offset:%d lds" % (vW + m, OP, m * 1024))
            A("s_mov_b32 m0, s%d" % MQ[k])
            if not last: prep(1 - k)
            else: A("s_nop 0")
            if k == 1 and not last:
                A("s_sub_u32 s%d, s%d, 1" % (CNT, CNT))
                A("s_cmp_lg_u32 s%d, 0" % CNT)
            for m in range(nX):
                A("buffer_load_dwordx4 v28, s[8:11], s%d offen offset:%d %s lds" % (QA[k], m * 1024, HL))
            if extra:
                A("s_mov_b32 m0, s%d" % MX[k])
                A("s_nop 0")
                A("buffer_load_dwordx4 v28, s[8:11], s%d offen %s lds" % (XA[k], HL))
        prep(0)
        A("s_mov_b32 s%d, %d" % (CNT, count - 1))
        A.label(label)
        body(0, False); body(1, False)
        A("s_cbranch_scc1 %s" % label)
        body(0, False); body(1, True)
    def sel2():
        A("s_add_u32 s44, s%d, 6" % N2)
        A("s_cmp_lt_u32 s44, 32")
        A("s_cselect_b32 s44, s44, s%d" % M6)
        A("s_cmp_eq_u32 s%d, s%d" % (M6, DT))
        A("s_cselect_b32 s44, s44, s%d" % N2)
        A("s_add_u32 s%d, s%d, 1" % (N2, N2))
        A("s_add_u32 s%d, s%d, 1" % (M6, M6))
        A("s_cmp_eq_u32 s%d, 6" % M6)
        A("s_cselect_b32 s%d, 0, s%d" % (M6, M6))
    def sel3():
        A("s_and_b32 s%d, s%d, 3" % (OP, N3))
        A("s_add_u32 s44, s%d, 4" % N3)
        A("s_cmp_lt_u32 s44, 18")
        A("s_cselect_b32 s44, s44, s%d" % OP)
        A("s_cmp_eq_u32 s%d, s%d" % (OP, PH3))
        A("s_cselect_b32 s44, s44, s%d" % N3)
        A("s_add_u32 s%d, s%d, 1" % (N3, N3))
    issue1(); issue1()
    ids23(); lane23(); setup2()
    if cfg.pro == 5:
        issue1(); issue1(); issue1()
        step(28, None); step(21, None)
    elif cfg.pro == 4:
        issue1(); issue1()
        step(21, issue1); step(21, None)
    else:
        issue1()
        step(14, issue1); step(14, issue1)
    lloop("l1_loop", 4, 14, issue1)
    A("s_cmp_ge_u32 s%d, 27" % SLOTR)
    A("s_cbranch_scc1 l1_c")
    srd2()
    step(14, lambda: issue2("W", False))
    step(11, lambda: issue2("X"))
    step(7, lambda: (issue2(), issue2()))
    setup3()
    step(14, issue2); step(14, issue2)
    A("s_branch l2_main")
    A.label("l1_c")
    step(14, None); step(7, None); step(0, None)
    A("v_mov_b32 v41, %d" % SIG)
    A("ds_read_b64 v[%d:%d], v41" % (VT, VT + 1))
    srd(A, FSRD, PWS, SZ_FL, WS_FL)
    srd(A, 12, PWS, SZ_ST, WS_ST)
    A("s_waitcnt lgkmcnt(0)")
    A("s_barrier")
    A("s_branch scan_entry")
    A.label("l2_entry")
    A("s_sub_u32 s%d, s%d, 4" % (LW, WAVE))
    A("s_lshl_b32 s%d, s%d, 12" % (M0P, LW))
    A("s_mul_i32 s%d, s%d, 3072" % (M0Q, LW))
    A("s_add_u32 s%d, s%d, 16384" % (M0Q, M0Q))
    lane23(); setup2(); srd2()
    A("s_mov_b32 s62, s%d" % RING)
    A("s_waitcnt vmcnt(0)")
    par2[0] = 0
    issue2("W"); issue2("W"); issue2("W")
    A("s_mov_b32 s%d, s62" % RING)
    A("s_mov_b32 s%d, 0\ns_mov_b32 s%d, 0" % (N2, M6))
    tabset()
    par2[0] = 0
    setup3()
    A("s_barrier")
    issue2("X"); issue2("X"); issue2("X")
    step(6, issue2); step(10, issue2)
    A.label("l2_main")
    step(14, issue2)
    if cfg.fast: fast_loop("l2_loop", 12, 14, sel2, 2, 20, 3, 64 * 9216, B2P, B2Q, M0Q, None)
    else: lloop("l2_loop", 12, 2 * (3 + cfg.hackw) if cfg.hackd else 14, issue2, 2)
    def lgate_issue(off):
        sk = A.newlabel("lg")
        A("s_cmp_lg_u32 s%d, 0" % LW)
        A("s_cbranch_scc1 %s" % sk)
        gate_issue(A, off)
        A.label(sk)
    def lgate_wait(off, mask, word, younger):
        ot = A.newlabel("lg"); dn = A.newlabel("lg"); lp = A.newlabel("lg")
        A("s_cmp_lg_u32 s%d, 0" % LW)
        A("s_cbranch_scc1 %s" % ot)
        gate_check(A, off, mask, first_wait=younger)
        A("v_mov_b32 v40, 1")
        A("ds_write_b32 v41, v40 offset:%d" % (8 + 4 * word))
        A("s_branch %s" % dn)
        A.label(ot)
        A("s_mov_b32 s59, 0")
        A.label(lp)
        A("ds_read_b32 v40, v41 offset:%d" % (8 + 4 * word))
        A("s_add_u32 s59, s59, 1")
        A("s_waitcnt lgkmcnt(0)")
        A("v_readfirstlane_b32 s58, v40")
        A("s_cmp_gt_u32 s59, %d" % (SPIN * 64))
        A("s_cbranch_scc1 %s" % dn)
        A("s_cmp_eq_u32 s58, 0")
        A("s_cbranch_scc1 %s" % lp)
        A.label(dn)
    XR = 150; DS = 162; STT = 168; B2 = 172; BASE = 48; PR = 80; OWN = 120
    def base_ld():
        A("v_and_b32 v42, 15, v2")
        A("v_lshrrev_b32 v43, 4, v2")
        A("v_mul_u32_u24 v46, 1152, v42")
        A("v_lshl_add_u32 v46, v43, 3, v46")
        A("v_lshlrev_b32 v47, 1, v46")
        A("v_lshlrev_b32 v43, 3, v43")
        A("v_lshlrev_b32 v45, 3, v42")
        A("v_lshlrev_b32 v42, 1, v42")
        A("s_lshl_b32 s44, s%d, 3" % ST)
        A("s_lshl_b32 s45, s%d, 1" % SP)
        A("s_add_u32 s44, s44, s45")
        A("s_mul_i32 s45, s%d, 9" % D3)
        A("s_add_u32 s45, s45, s%d" % LW)
        A("s_lshl_b32 s45, s45, 5")
        A("s_mul_i32 s50, s44, %d" % (16 * 1152))
        A("s_add_u32 s50, s50, s45")
        A("s_add_u32 s51, s50, %d" % (16 * 1152))
        A("s_lshl_b32 s48, s44, 7")
        A("s_lshl_b32 s49, s44, 5")
        srd(A, 12, PWS, SZ_ST, WS_ST)
        for aa in range(2):
            A("buffer_load_dwordx2 %s, v45, s[12:15], s48 offen offset:%d %s" % (v(STT + 2 * aa, 2), aa * 128, HL))
        srd(A, 12, PB2, 4096)
        for aa in range(2):
            A("buffer_load_ushort v%d, v42, s[12:15], s49 offen offset:%d" % (B2 + 2 * aa, aa * 32))
        srd(A, 12, PDSK, 1152)
        for n in range(3):
            A("buffer_load_dwordx2 %s, v43, s[12:15], s45 offen offset:%d" % (v(DS + 2 * n, 2), n * 128))
        srd(A, 12, PX, SZ_X)
        sk = A.newlabel("bl")
        for n in range(3):
            if n == 2:
                A("s_cmp_lg_u32 s%d, 0" % LW)
                A("s_cbranch_scc1 %s" % sk)
            for aa in range(2):
                A("buffer_load_dwordx2 %s, v46, s[12:15], s%d offen offset:%d" % (v(XR + 4 * n + 2 * aa, 2), (50, 51)[aa], n * 128))
        A.label(sk)
        A("s_lshl_b32 s50, s50, 1")
        A("s_lshl_b32 s51, s51, 1")
    def base_calc():
        for aa in range(2): A("v_lshlrev_b32 v%d, 16, v%d" % (B2 + 2 * aa, B2 + 2 * aa))
        for n in range(3):
            dd = 76; xx = 116; tt = 144
            for h in range(2):
                A("v_lshlrev_b32 v%d, 16, v%d" % (dd + 2 * h, DS + 2 * n + h))
                A("v_and_b32 v%d, 0xffff0000, v%d" % (dd + 2 * h + 1, DS + 2 * n + h))
            for aa in range(2):
                b = BASE + 8 * n + 4 * aa
                for h in range(2):
                    A("v_lshlrev_b32 v%d, 16, v%d" % (xx + 2 * h, XR + 4 * n + 2 * aa + h))
                    A("v_and_b32 v%d, 0xffff0000, v%d" % (xx + 2 * h + 1, XR + 4 * n + 2 * aa + h))
                for r in range(4): A("v_mul_f32 v%d, v%d, v%d" % (tt + r, dd + r, STT + 2 * aa + 1))
                for r in range(4): A("v_add_f32 v%d, v%d, v%d" % (b + r, xx + r, B2 + 2 * aa))
                for r in range(4): A("v_sub_f32 v%d, v%d, v%d" % (xx + r, xx + r, STT + 2 * aa))
                for r in range(4): A("v_fmac_f32 v%d, v%d, v%d" % (b + r, xx + r, tt + r))
    GT, GU = 60, 61
    def gates3():
        A("v_mov_b32 v41, %d" % SIG)
        A("ds_read_b64 v[%d:%d], v41" % (VT, VT + 1))
        srd(A, FSRD, PWS, SZ_FL, WS_FL)
        A("s_lshr_b32 s%d, s%d, 1" % (GT, ST))
        A("s_lshl_b32 s%d, s%d, 9" % (GT, GT))
        A("s_add_u32 s%d, s%d, %d" % (GT, GT, FL_T))
        A("s_lshl_b32 s%d, s%d, 2" % (GU, D3))
        A("s_add_u32 s%d, s%d, s%d" % (GU, GU, SP))
        A("s_lshl_b32 s%d, s%d, 9" % (GU, GU))
        A("s_add_u32 s%d, s%d, %d" % (GU, GU, FL_U))
        A("s_waitcnt lgkmcnt(0)")
    gates3()
    step(14, issue2)
    step(14, issue2)
    base_ld()
    step(14 + 11, (lambda: lgate_issue(GT)) if cfg.pollat == 29 else None)
    step(7 + 11, (lambda: lgate_issue(GT)) if cfg.pollat == 30 else None)
    A("s_cmp_lg_u32 s%d, 0" % LW)
    A("s_cbranch_scc1 l2_e1")
    A("s_waitcnt vmcnt(0)")
    A("v_cmp_ne_u64 vcc, v[%d:%d], v[%d:%d]" % (VP, VP + 1, VT, VT + 1))
    A("s_and_b32 vcc_hi, vcc_hi, 15")
    A("s_cmp_lg_u64 vcc, 0")
    A("s_cbranch_scc1 l2_e1")
    A("v_mov_b32 v40, 1")
    A("ds_write_b32 v41, v40 offset:8")
    A("s_waitcnt lgkmcnt(0)")
    A.label("l2_e1")
    step(11, None)
    A("ds_read_b32 v40, v41 offset:8")
    A("s_waitcnt lgkmcnt(0)")
    A("v_readfirstlane_b32 s58, v40")
    A("s_cmp_lg_u32 s58, 0")
    A("s_cbranch_scc1 l3_early")
    lgate_issue(GT)
    A("s_barrier")
    A.label("l3_main")
    stamp(A, cfg, 10)
    lgate_wait(GT, (1 << 36) - 1, 0, 0)
    A.label("l3_main2")
    stamp(A, cfg, 11)
    A("s_cmp_ge_u32 s%d, 2" % LW)
    A("s_cbranch_scc1 l3b")
    A("s_branch l3a")
    A.label("l3_early")
    A("s_cmp_ge_u32 s%d, 2" % LW)
    A("s_cbranch_scc1 l3b_early")
    for (sfx, extra, per) in (("a", True, 9), ("b", False, 8)):
        A.label("l3%s_early" % sfx)
        issue3f(extra)
        if cfg.xpos: issue3f(extra)
        A("s_barrier")
        A("s_branch l3%s_j" % sfx)
        A.label("l3%s" % sfx)
        issue3f(extra)
        if cfg.xpos: issue3f(extra)
        A.label("l3%s_j" % sfx)
        NT = cfg.nt3
        if NT:
            issue3f(extra); issue3f(extra)
            if not cfg.xpos: issue3f(extra)
            srd(A, 12, PW2, SZ_W)
            A("s_mul_i32 s44, s%d, 18" % SP)
            A("s_add_u32 s44, s44, s%d" % PH3)
            A("s_lshl_b32 s44, s44, 1")
            A("s_and_b32 s45, s%d, 1" % LW)
            A("s_add_u32 s44, s44, s45")
            A("s_lshr_b32 s45, s%d, 1" % LW)
            A("s_lshl_b32 s45, s45, 3")
            A("s_add_u32 s44, s44, s45")
            A("s_add_u32 s44, s44, %d" % (8 * cfg.nt3s))
            A("s_lshl_b32 s44, s44, 17")
            A("s_lshl_b32 s45, s%d, 8" % ST)
            A("s_add_u32 s44, s44, s45")
            A("v_lshrrev_b32 v42, 1, v2")
            A("v_lshlrev_b32 v42, 12, v42")
            A("v_and_b32 v43, 1, v2")
            A("v_lshl_add_u32 v42, v43, 7, v42")
            for k in range(NT):
                A("buffer_load_dword v43, v42, s[12:15], s44 offen")
                A("s_add_u32 s44, s44, %d" % (16 << 17))
            A("s_waitcnt vmcnt(%d)" % (4 * per + NT))
            base_calc()
            step(3 * per + NT, None); step(2 * per + NT, None)
            sk = A.newlabel("nf"); sk2 = A.newlabel("nf")
            A("s_cmp_eq_u32 s%d, 4" % NF)
            A("s_cbranch_scc1 %s" % sk)
            step(per + NT, lambda: issue3f(extra))
            switch3u()
            A("s_mov_b32 s62, s%d" % RING)
            step(per + NT, lambda: issue3u(extra, "W"))
            A("s_waitcnt vmcnt(4)")
            A("s_branch %s" % sk2)
            A.label(sk)
            switch3u()
            A("s_mov_b32 s62, s%d" % RING)
            par3[0] -= 1
            step(per + NT, lambda: issue3u(extra, "W"))
            A.label(sk2)
            step(4 + NT, lambda: (lgate_issue(GU), issue3u(extra, "W")))
        else:
            issue3f(extra)
            if not cfg.xpos: issue3f(extra)
            if cfg.ford == 1:
                issue3f(extra)
                step(3 * per, None); step(2 * per, None)
                base_calc()
            elif cfg.ford == 2:
                step(2 * per, None); step(per, lambda: issue3f(extra))
                base_calc()
            else:
                A("s_waitcnt vmcnt(%d)" % (3 * per))
                base_calc()
                step(2 * per, lambda: issue3f(extra)); step(2 * per, None)
            sk = A.newlabel("nf")
            A("s_cmp_eq_u32 s%d, 4" % NF)
            A("s_cbranch_scc1 %s" % sk)
            step(per, lambda: issue3f(extra))
            A.label(sk)
            switch3u()
            A("s_mov_b32 s62, s%d" % RING)
            step(per, lambda: issue3u(extra, "W"))
            step(4, lambda: (lgate_issue(GU), issue3u(extra, "W")))
        stamp(A, cfg, 12)
        lgate_wait(GU, (1 << 54) - 1, 1, 4)
        stamp(A, cfg, 13)
        A("s_mov_b32 s%d, s62" % RING)
        A("s_mov_b32 s%d, 0" % N3)
        issue3u(extra, "X"); issue3u(extra, "X")
        step(per - 4, lambda: issue3u(extra))
        step(per, lambda: issue3u(extra))
        if cfg.fast:
            A("s_add_u32 s60, s%d, s%d" % (B3U, M0P))
            A("s_add_u32 s61, s%d, s%d" % (B3U, M0X))
            A("s_sub_u32 s61, s61, 16384")
            fast_loop("l3%s_u" % sfx, 7, per, sel3, 3, 24, 4, 262144, B3P, 60, M0Q3, 61 if extra else None)
        else: lloop("l3%s_u" % sfx, 7, per, lambda: issue3u(extra), 2)
        step(per, None); step(0, None)
        A("s_branch fin")
    A.label("l3_entry")
    A("s_sub_u32 s%d, s%d, 4" % (LW, WAVE))
    A("s_lshl_b32 s%d, s%d, 12" % (M0P, LW))
    lane23(); setup3(); gates3()
    lgate_issue(GT)
    lgate_wait(GT, (1 << 36) - 1, 0, 0)
    base_ld()
    A("s_branch l3_main2")

    A.label("fin")
    stamp(A, cfg, 7)
    A("v_lshlrev_b32 v9, 4, v2")
    A("s_lshl_b32 s44, s%d, 2" % ST)
    A("s_add_u32 s44, s44, s%d" % D3)
    A("s_lshl_b32 s44, s44, 2")
    A("s_add_u32 s44, s44, s%d" % SP)
    A("s_lshl_b32 s43, s44, 7")
    A("s_add_u32 s43, s43, %d" % FL_X)
    A("s_mul_i32 s47, s44, %d" % (4 * 9216))
    A("s_lshl_b32 s46, s%d, 10" % LW)
    A("s_add_u32 s47, s47, s46")
    for j in range(3):
        A("s_add_u32 s48, s%d, %d" % (SP, 1 + j))
        A("s_and_b32 s48, s48, 3")
        A("s_mul_i32 s48, s48, 9216")
        A("s_add_u32 s%d, s47, s48" % (40 + j))
    A("v_add_u32 v15, 4096, v9")
    A("v_add_u32 v18, 8192, v9")
    A("s_lshl_b32 s46, s%d, 11" % LW)
    A("s_add_u32 s46, s46, %d" % LDS_OWN)
    A("v_add_u32 v10, s46, v9")
    A("s_lshl_b32 s52, 1, s%d" % SP)
    A("s_xor_b32 s52, s52, 15")
    A("s_mov_b32 s53, 0")
    srd(A, 12, PWS, SZ_EX, WS_EX)
    srd(A, 8, POUT, 2048 * 576 * 4)
    A("v_cmp_gt_u32 vcc, 4, v2")
    A("s_nop 1")
    A("v_cndmask_b32 v%d, 0, v%d, vcc" % (VL8, VL8))
    def own():
        for n in range(3):
            for aa in range(2):
                A("ds_read_b128 %s, v10 offset:%d" % (v(OWN + 8 * n + 4 * aa, 4), n * 8192 + aa * 1024))
        A("s_waitcnt lgkmcnt(0)")
        for k in range(12):
            A("v_pk_add_f32 %s, %s, %s" % (v(BASE + 2 * k, 2), v(BASE + 2 * k, 2), v(OWN + 2 * k, 2)))
    A("s_barrier")
    stamp(A, cfg, 8)
    if cfg.xpoll == 0:
        gate_issue(A, 43)
        own()
        gate_check(A, 43, "s[52:53]")
    else:
        lgate_issue(43)
        own()
        A("s_cmp_lg_u32 s%d, 0" % LW)
        A("s_cbranch_scc1 fin_w")
        gate_check(A, 43, "s[52:53]")
        A.label("fin_w")
        A("s_barrier")
    stamp(A, cfg, 9)
    def ld(n):
        for j in range(3):
            A("buffer_load_dwordx4 %s, v%d, s[12:15], s%d offen sc1" % (v(PR + (n * 3 + j) * 4, 4), (9, 15, 18)[n], 40 + j))
    def fin(n):
        b = BASE + 8 * n
        for j in range(3):
            p = PR + (n * 3 + j) * 4
            for k in range(4):
                A("v_lshlrev_b32 v%d, 16, v%d" % (28 + 2 * (k % 2), p + k))
                A("v_and_b32 v%d, 0xffff0000, v%d" % (29 + 2 * (k % 2), p + k))
                A("v_pk_add_f32 %s, %s, %s" % (v(b + 2 * k, 2), v(b + 2 * k, 2), v(28 + 2 * (k % 2), 2)))
    def st(n):
        for aa in range(2):
            A("buffer_store_dwordx4 %s, v47, s[8:11], s%d offen offset:%d %s" % (v(BASE + 8 * n + 4 * aa, 4), (50, 51)[aa], n * 256, cfg.sto))
    A("s_cmp_lg_u32 s%d, 0" % LW)
    A("s_cbranch_scc1 fin_b")
    ld(2); ld(0); ld(1)
    A("s_waitcnt vmcnt(6)"); fin(2)
    A("s_waitcnt vmcnt(3)"); fin(0)
    A("s_waitcnt vmcnt(0)"); st(2); st(0); fin(1); st(1)
    A("s_branch k_done")
    A.label("fin_b")
    ld(0); ld(1)
    A("s_waitcnt vmcnt(3)"); fin(0)
    A("s_waitcnt vmcnt(0)"); st(0); fin(1); st(1)
    A.label("k_done")
    stamp_end(A, cfg)
    A.label("k_end")
    A("s_endpgm")

    KB = 29
    PFI = 23
    def kbcalc():
        A("s_sub_u32 s%d, s%d, 19" % (KB, SLOTR))
        A("s_lshl_b32 s%d, s%d, 3" % (KB, KB))
        A("s_add_u32 s%d, s%d, s%d" % (KB, KB, XCD))
    A.label("ln_lo")
    kbcalc()
    pubH()
    biasld()
    A("s_barrier")
    stamp(A, cfg, 2)
    A("s_branch ln_join")
    A.label("ln_hi")
    kbcalc()
    A("v_mov_b32 v216, 0\nv_mov_b32 v217, 0\nv_mov_b32 v215, 0")
    ids23()
    A("v_lshlrev_b32 v120, 7, v2")
    A("s_waitcnt lgkmcnt(0)")
    srd(A, FSRD, PWS, SZ_FL, WS_FL)
    srd(A, 12, PWS, SZ_ST, WS_ST)
    A("s_lshl_b32 s44, s%d, 2" % KB)
    A("s_add_u32 s44, s44, s%d" % WAVE)
    A("s_sub_u32 s44, s44, 4")
    if cfg.csb:
        A("s_sub_u32 s45, s44, 112")
        A("s_cbranch_scc1 ln_ncs")
        A("s_cmp_ge_u32 s45, 72")
        A("s_cselect_b32 s4, s%d, s%d" % (PBIM, PBRE))
        A("s_cselect_b32 s5, s%d, s%d" % (PBIM + 1, PBRE + 1))
        A("s_cselect_b32 s46, 72, 0")
        A("s_cselect_b32 s47, 4, 0")
        A("s_mov_b32 s6, %d\ns_mov_b32 s7, 0x00020000" % SZ_C)
        A("s_sub_u32 s45, s45, s46")
        A("s_mul_i32 s46, s45, %d" % (8 * 1152))
        A("v_lshrrev_b32 v3, 3, v2")
        A("v_and_b32 v4, 7, v2")
        A("v_mul_u32_u24 v5, 1152, v3")
        A("v_lshl_add_u32 v5, v4, 4, v5")
        for j in range(9):
            A("buffer_load_dwordx4 %s, v5, s[4:7], s46 offen offset:%d" % (v(16 + 4 * j, 4), j * 128))
        A("s_lshl_b32 s45, s45, 6")
        A("s_add_u32 s45, s45, s47")
        A("s_add_u32 s45, s45, 16384")
        A("v_lshlrev_b32 v3, 3, v3")
        A("s_mov_b32 s46, 0x3f803f80")
        for q in range(4): A("v_mov_b32 v%d, 0" % (8 + q))
        for j in range(9):
            A("s_waitcnt vmcnt(%d)" % (8 - j))
            for q in range(4): A("v_dot2_f32_bf16 v%d, v%d, s46, v%d" % (8 + q, 16 + 4 * j + q, 8 + q))
        A("s_nop 2")
        A("v_add_f32 v8, v8, v9\nv_add_f32 v10, v10, v11\nv_add_f32 v8, v8, v10")
        for dpp in ("quad_perm:[1,0,3,2]", "quad_perm:[2,3,0,1]", "row_half_mirror"):
            A("s_nop 1")
            A("v_add_f32_dpp v8, v8, v8 %s row_mask:0xf bank_mask:0xf" % dpp)
        A("s_mov_b32 exec_lo, 0x01010101\ns_mov_b32 exec_hi, 0x01010101")
        A("buffer_store_dword v8, v3, s[12:15], s45 offen sc1")
        A("s_mov_b64 exec, -1")
        A("s_waitcnt vmcnt(0)")
        A("s_branch ln_nw")
        A.label("ln_ncs")
    A("s_mov_b32 s4, s%d\ns_mov_b32 s5, s%d\ns_mov_b32 s6, 0\ns_mov_b32 s45, 0" % (PB1, PB1 + 1))
    for (w, ptr, sz) in ((32, PB1, 9216), (33, PB1, 9216), (34, PB2, 4096), (35, PDSK, 1152), (36, PLRE, 1152), (37, PLIM, 1152), (38, PLOGDT, 1152)):
        A("s_cmp_eq_u32 s44, %d" % w)
        A("s_cselect_b32 s4, s%d, s4" % ptr)
        A("s_cselect_b32 s5, s%d, s5" % (ptr + 1))
        A("s_cselect_b32 s6, %d, s6" % sz)
        if w == 33: A("s_cselect_b32 s45, 8192, s45")
    A("s_mov_b32 s7, 0x00020000")
    A("s_cmp_eq_u32 s6, 0")
    A("s_cbranch_scc1 ln_nt")
    A("buffer_load_dword v121, v120, s[4:7], s45 offen")
    A.label("ln_nt")
    if cfg.codepf:
        A("s_cmp_ge_u32 s44, 32")
        A("s_cbranch_scc1 ln_nc")
        A("s_getpc_b64 s[46:47]")
        A.label("ln_pc")
        A("s_sub_u32 s46, s46, ln_pc-%s" % KN)
        A("s_subb_u32 s47, s47, 0")
        A("s_and_b32 s45, s44, 3")
        A("s_lshl_b32 s45, s45, 13")
        A("v_add_u32 v122, s45, v120")
        A("s_mov_b32 s45, text_end-%s" % KN)
        for r in range(2):
            A("v_cmp_gt_u32 vcc, s45, v122")
            A("s_and_saveexec_b64 s[48:49], vcc")
            A("s_cbranch_execz ln_nc2")
            A("global_load_dword v%d, v122, s[46:47]" % (123 + r))
            A("v_add_u32 v122, 32768, v122")
        A.label("ln_nc2")
        A("s_mov_b64 exec, -1")
        A.label("ln_nc")
    srd(A, 4, PW1, SZ_W)
    A("s_sub_u32 s45, s44, 40")
    A("s_cbranch_scc1 ln_nw")
    A("s_lshl_b32 s45, s45, 13")
    for r in range(cfg.lnpf):
        A("buffer_load_dword v121, v120, s[4:7], s45 offen")
        A("s_add_u32 s45, s45, %d" % (NLP * 8192))
    A.label("ln_nw")
    A("s_barrier")
    tag_issue(A)
    A("s_barrier")
    tag_check(A)
    A.label("ln_join")
    A("v_lshlrev_b32 v120, 7, v2")
    A("s_lshl_b32 s%d, s%d, 3" % (PFI, KB))
    A("s_add_u32 s%d, s%d, s%d" % (PFI, PFI, WAVE))
    if cfg.tlbw:
        A("s_cmp_lg_u32 s%d, %d" % (SLOTR, cfg.tlbw))
        A("s_cbranch_scc1 ln_ntl")
        A("s_mov_b32 s60, s%d\ns_mov_b32 s61, s%d\ns_mov_b32 s62, 0" % (PW1, PW1 + 1))
        for (w, ptr, sz) in ((1, PW1, SZ_W), (2, PW2, SZ_W), (3, PWS, 0x4000000 if cfg.side else WS_EX + SZ_EX), (4, POUT, 2048 * 576 * 4), (5, PCRE, SZ_C), (6, PCIM, SZ_C), (7, PLOGDT, 1152)):
            A("s_cmp_eq_u32 s%d, %d" % (WAVE, w))
            A("s_cselect_b32 s60, s%d, s60" % ptr)
            A("s_cselect_b32 s61, s%d, s61" % (ptr + 1))
            A("s_cselect_b32 s62, %d, s62" % sz)
        A("s_mov_b32 s63, 0x00020000")
        A("v_lshlrev_b32 v122, 20, v2")
        A("buffer_load_dword v121, v122, s[60:63], 0 offen offset:512 sc1")
        A.label("ln_ntl")
    for r in range(cfg.pf_a):
        if r == 0:
            A("s_add_u32 s55, s%d, %d" % (PFI, L_C))
            A("s_add_u32 s3, s%d, %d" % (PFI, (NLP * cfg.lnpf - 162) & 0xffffffff))
            A("s_cmp_lt_u32 s%d, 162" % PFI)
            A("s_cselect_b32 s3, s55, s3")
        else:
            A("s_add_u32 s3, s%d, %d" % (PFI, NLP * cfg.lnpf - 162 + 512 * r))
        pf_decode(A, 3, 60, 58, 54)
        A("buffer_load_dword v121, v120, s[60:63], s58 offen")
    A("s_cmp_ge_u32 s%d, 4" % WAVE)
    A("s_cbranch_scc1 l2_entry")
    A("s_cmp_lg_u32 s%d, 0" % WAVE)
    A("s_cbranch_scc1 ln_g")
    A("s_sleep %d" % cfg.bsleep)
    wide_issue(A)
    wide_check(A)
    A.label("ln_g")
    A("s_waitcnt vmcnt(0)")
    A("s_barrier")
    stamp(A, cfg, 3)
    A("s_branch c2_entry")

    A.label("scan_entry")
    CB = 29
    A("s_sub_u32 s%d, s%d, 27" % (CB, SLOTR))
    A("s_lshl_b32 s%d, s%d, 3" % (CB, CB))
    A("s_add_u32 s%d, s%d, s%d" % (CB, CB, XCD))
    A("s_mov_b32 s%d, 0" % RING)
    A("v_lshlrev_b32 v56, 7, v2")
    A("s_lshl_b32 s%d, s%d, 3" % (PFI, CB))
    A("s_add_u32 s%d, s%d, s%d" % (PFI, PFI, WAVE))
    A("s_add_u32 s%d, s%d, %d" % (PFI, PFI, L_W2 if cfg.pf_a else L_C))
    def scpf(lo=0):
        pf_decode(A, PFI, 60, 58, 54, lo=lo)
        A("buffer_load_dword v57, v56, s[60:63], s58 offen")
        A("s_add_u32 s%d, s%d, 320" % (PFI, PFI))
    for _ in range(cfg.pf_a2): scpf(L_C)
    A("s_cmp_lt_u32 s%d, 36" % CB)
    A("s_cbranch_scc1 scan2")
    for _ in range(sum(cfg.scm) + cfg.pf_b): scpf(L_C)
    A("s_branch scan_done")
    A.label("scan2")
    A("v_and_b32 v3, 7, v0")
    A("v_lshrrev_b32 v4, 3, v0")
    A("v_lshlrev_b32 v5, 10, v4")
    A("v_and_b32 v6, 3, v3")
    A("v_lshl_add_u32 v5, v6, 4, v5")
    A("v_lshrrev_b32 v6, 2, v3")
    A("v_lshl_add_u32 v5, v6, 16, v5")
    A("s_lshl_b32 s40, s%d, 17" % CB)
    A("v_lshlrev_b32 v9, 2, v3")
    A("s_lshl_b32 s41, s%d, 5" % CB)
    for (r, ptr) in ((10, PLRE), (11, PLIM), (12, PLOGDT)):
        srd(A, 4, ptr, 1152)
        A("buffer_load_dword v%d, v9, s[4:7], s41 offen" % r)
    L = [18, 20]; L32 = [22, 24]; L256 = [26, 28]; C2 = [30, 32]
    A("s_mov_b32 s44, 0x%x" % f2u(math.log2(math.e)))
    A("s_mov_b32 s45, 0x%x" % f2u(1.0 / (2 * math.pi)))
    A("s_waitcnt vmcnt(0)")
    def sq(d, s_):
        A("v_mul_f32 v40, v%d, v%d" % (s_ + 1, s_ + 1))
        A("v_mul_f32 v41, v%d, v%d" % (s_, s_ + 1))
        A("v_fma_f32 v%d, v%d, v%d, -v40" % (d, s_, s_))
        A("v_add_f32 v%d, v41, v41" % (d + 1))
    for c in range(2):
        for (d, s_) in ((34, 10), (35, 11), (36, 12)):
            if c == 0: A("v_lshlrev_b32 v%d, 16, v%d" % (d, s_))
            else: A("v_and_b32 v%d, 0xffff0000, v%d" % (d, s_))
        A("v_mul_f32 v36, s44, v36")
        A("v_exp_f32 v36, v36")
        A("s_nop 0")
        round_bf16(A, 36, 36)
        A("v_mul_f32 v37, v36, v34")
        A("v_mul_f32 v38, v36, v35")
        A("v_mul_f32 v37, s44, v37")
        A("v_mul_f32 v38, s45, v38")
        A("v_exp_f32 v37, v37")
        A("v_fract_f32 v38, v38")
        A("v_cos_f32 v39, v38")
        A("v_sin_f32 v38, v38")
        A("s_nop 0")
        A("v_mul_f32 v%d, v37, v39" % L[c])
        A("v_mul_f32 v%d, v37, v38" % (L[c] + 1))
        sq(L32[c], L[c])
        for _ in range(4): sq(L32[c], L32[c])
        sq(L256[c], L32[c])
        for _ in range(2): sq(L256[c], L256[c])
        A("v_add_f32 v37, -1.0, v%d" % L[c])
        A("v_mul_f32 v38, v34, v34")
        A("v_fmac_f32 v38, v35, v35")
        A("v_rcp_f32 v38, v38")
        A("v_mul_f32 v39, v37, v34")
        A("v_fmac_f32 v39, v%d, v35" % (L[c] + 1))
        A("v_mul_f32 v40, v%d, v34" % (L[c] + 1))
        A("v_fma_f32 v40, -v37, v35, v40")
        A("v_add_f32 v38, v38, v38")
        A("v_mul_f32 v%d, v39, v38" % C2[c])
        A("v_mul_f32 v%d, v40, v38" % (C2[c] + 1))
    A("s_mul_i32 s43, s%d, 21846" % CB)
    A("s_lshr_b32 s43, s43, 16")
    A("s_lshl_b32 s43, s43, 9")
    A("s_add_u32 s43, s43, %d" % FL_G)
    A("s_cmp_lg_u32 s%d, 0" % WAVE)
    A("s_cbranch_scc1 scan_g")
    gate_issue(A, 43)
    gate_check(A, 43, (1 << 64) - 1)
    if cfg.ginv == 2:
        A("buffer_inv sc1")
        A("s_waitcnt vmcnt(0)")
    A.label("scan_g")
    A("s_barrier")
    if cfg.ginv == 1: A("buffer_inv sc1")
    stamp(A, cfg, 3)
    srd(A, 4, PWS, SZ_G, WS_G)
    srd(A, 12, PWS, SZ_HT, WS_HT)
    G0 = 56; RW = 184
    for j in range(16):
        A("buffer_load_dwordx4 %s, v5, s[4:7], s40 offen offset:%d %s" % (v(RW + 4 * j, 4), j * 64, cfg.gl))
    LDS_AGG = 9216; LDS_WAGG = LDS_AGG + 8192
    H = 10; T2 = 34
    def stepf(Lr, src):
        for c in range(2):
            A("v_pk_fma_f32 %s, %s, %s, %s op_sel_hi:[0,1,1]" % (v(T2 + 2 * c, 2), v(Lr[c], 2), v(H + 2 * c, 2), v(src + 2 * c, 2)))
        for c in range(2):
            A("v_pk_fma_f32 %s, %s, %s, %s op_sel:[1,1,0] op_sel_hi:[1,0,1] neg_lo:[1,0,0]" % (v(H + 2 * c, 2), v(Lr[c], 2), v(H + 2 * c, 2), v(T2 + 2 * c, 2)))
    for i in range(4): A("v_mov_b32 v%d, 0" % (H + i))
    for j in range(16):
        A("s_waitcnt vmcnt(%d)" % (15 - j))
        for e in range(2):
            g = G0 + 4 * (2 * j + e)
            for c in range(2):
                A("v_lshlrev_b32 v%d, 16, v%d" % (g + 2 * c, RW + 4 * j + 2 * e + c))
                A("v_and_b32 v%d, 0xffff0000, v%d" % (g + 2 * c + 1, RW + 4 * j + 2 * e + c))
        for e in range(2):
            g = G0 + 4 * (2 * j + e)
            for c in range(2):
                A("v_pk_mul_f32 %s, %s, %s op_sel_hi:[0,1]" % (v(40 + 4 * e + 2 * c, 2), v(C2[c], 2), v(g + 2 * c, 2)))
        for e in range(2):
            g = G0 + 4 * (2 * j + e)
            for c in range(2):
                A("v_pk_fma_f32 %s, %s, %s, %s op_sel:[1,1,0] op_sel_hi:[1,0,1] neg_lo:[1,0,0]" % (v(g + 2 * c, 2), v(C2[c], 2), v(g + 2 * c, 2), v(40 + 4 * e + 2 * c, 2)))
        for e in range(2): stepf(L, G0 + 4 * (2 * j + e))
    A("v_lshlrev_b32 v8, 7, v2")
    def scpf2():
        pf_decode(A, PFI, 60, 58, 54, lo=L_C)
        A("buffer_load_dword v9, v8, s[60:63], s58 offen")
        A("s_add_u32 s%d, s%d, 320" % (PFI, PFI))
    for _ in range(cfg.scm[0] + cfg.scm[1]): scpf2()
    stamp(A, cfg, 4)
    A("v_lshlrev_b32 v15, 4, v3")
    A("v_lshlrev_b32 v17, 4, v0")
    A("ds_write_b128 v17, %s offset:%d" % (v(H, 4), LDS_AGG))
    A("s_lshl_b32 s44, s%d, 10" % WAVE)
    A("v_add_u32 v17, s44, v15")
    A("s_waitcnt lgkmcnt(0)")
    AG = 184; WG_ = 216
    for j in range(8): A("ds_read_b128 %s, v17 offset:%d" % (v(AG + 4 * j, 4), LDS_AGG + j * 128))
    A("s_waitcnt lgkmcnt(7)")
    for i in range(4): A("v_mov_b32 v%d, v%d" % (H + i, AG + i))
    for j in range(1, 8):
        A("s_waitcnt lgkmcnt(%d)" % (7 - j))
        stepf(L32, AG + 4 * j)
    A("s_lshl_b32 s44, s%d, 7" % WAVE)
    A("v_add_u32 v17, s44, v15")
    A("ds_write_b128 v17, %s offset:%d" % (v(H, 4), LDS_WAGG))
    A("s_waitcnt lgkmcnt(0)")
    A("s_barrier")
    for j in range(7): A("ds_read_b128 %s, v15 offset:%d" % (v(WG_ + 4 * j, 4), LDS_WAGG + j * 128))
    for i in range(4): A("v_mov_b32 v%d, 0" % (H + i))
    A("v_lshrrev_b32 v17, 3, v2")
    A("s_waitcnt lgkmcnt(0)")
    for j in range(7):
        A("s_cmp_le_u32 s%d, %d" % (WAVE, j))
        A("s_cbranch_scc1 scan_w")
        stepf(L256, WG_ + 4 * j)
    A.label("scan_w")
    for j in range(7):
        A("v_cmpx_lt_u32 vcc, %d, v17" % j)
        stepf(L32, AG + 4 * j)
    A("s_mov_b64 exec, -1")
    A("s_barrier")
    stamp(A, cfg, 10)
    for _ in range(cfg.scm[2]): scpf2()
    A("s_mul_i32 s44, s%d, %d" % (WAVE, 32 * 528))
    A("v_mul_u32_u24 v48, 528, v3")
    A("v_lshl_add_u32 v48, v17, 6, v48")
    A("v_add_u32 v48, s44, v48")
    A("v_lshrrev_b32 v49, 5, v2")
    A("v_and_b32 v50, 31, v2")
    A("v_lshlrev_b32 v50, 4, v50")
    A("v_mul_u32_u24 v51, 528, v49")
    A("v_add3_u32 v51, v51, v50, s44")
    A("v_lshl_add_u32 v50, v49, 13, v50")
    A("s_lshr_b32 s45, s%d, 1" % CB)
    A("s_lshl_b32 s45, s45, 5")
    A("s_and_b32 s46, s%d, 1" % CB)
    A("s_lshl_b32 s46, s46, 3")
    A("s_add_u32 s45, s45, s46")
    A("s_lshl_b32 s45, s45, 12")
    A("s_lshl_b32 s46, s%d, 9" % WAVE)
    A("s_add_u32 s45, s45, s46")
    PK = 184; RB = 216
    for c in range(2):
        for blk in range(4):
            for k in range(8):
                g = G0 + 4 * (blk * 8 + k)
                hp = H if (blk == 0 and k == 0) else g - 4
                A("v_pk_fma_f32 %s, %s, %s, %s op_sel_hi:[0,1,1]" % (v(g + 2 * c, 2), v(L[c], 2), v(hp + 2 * c, 2), v(g + 2 * c, 2)))
                A("v_pk_fma_f32 %s, %s, %s, %s op_sel:[1,1,0] op_sel_hi:[1,0,1] neg_lo:[1,0,0]" % (v(g + 2 * c, 2), v(L[c], 2), v(hp + 2 * c, 2), v(g + 2 * c, 2)))
            pkb = PK + blk * 8
            for part in range(2):
                q = 2 * c + part; sg = "-" if part else ""
                for k in range(4):
                    g = G0 + 4 * (blk * 8 + 2 * k)
                    A("v_cvt_pk_bf16_f32 v%d, %sv%d, %sv%d" % (pkb + 4 * part + k, sg, g + q, sg, g + 4 + q))
            for part in range(2):
                A("ds_write_b128 v48, %s offset:%d" % (v(pkb + 4 * part, 4), (2 * c + part) * 8 * 528 + blk * 16))
        A("s_waitcnt lgkmcnt(0)")
        if c == 1: stamp(A, cfg, 11)
        rb = RB if c == 0 else G0
        for n in range(8):
            A("ds_read_b128 %s, v51 offset:%d" % (v(rb + 4 * n, 4), (8 * c + n) * 2 * 528))
        for n in range(8):
            k = n & 3; part = n >> 2
            row = 16 * (k & 1) + 4 * (k >> 1) + c + 576 * part
            A("s_waitcnt lgkmcnt(%d)" % (7 - n))
            A("s_add_u32 s46, s45, %d" % (row * 4096))
            A("buffer_store_dwordx4 %s, v50, s[12:15], s46 offen sc1" % v(rb + 4 * n, 4))
    A("s_lshl_b32 s52, s%d, 9" % WAVE)
    A("s_lshl_b32 s44, s%d, 3" % CB)
    A("s_add_u32 s52, s52, s44")
    A("s_add_u32 s52, s52, %d" % FL_T)
    A("s_waitcnt vmcnt(0)")
    publish(A, 52)
    stamp(A, cfg, 5)
    A("s_barrier")
    if cfg.pfh:
        A("s_cmp_ge_u32 s%d, 4" % WAVE)
        A("s_cbranch_scc1 scan_done")
        A("s_lshl_b32 s44, s%d, 2" % CB)
        A("s_sub_u32 s%d, s%d, s44" % (PFI, PFI))
    for _ in range(cfg.pf_b): scpf2()
    A.label("scan_done")
    A("s_waitcnt vmcnt(0)")
    A("s_barrier")
    A("s_cmp_lt_u32 s%d, 4" % WAVE)
    A("s_cbranch_scc1 c3_entry")
    A("s_branch l3_entry")
    A.label("text_end")
    A("s_endpgm")

    HEADER = open("ref_header.txt").read().split("; @launch")[0]
    out = HEADER + "; @launch grid=(256,1,1) block=(512,1,1) lds=163840\n"
    out += DOC + '.amdgcn_target "amdgcn-amd-amdhsa--gfx950"\n.text\n' + A.text()
    out += '.section .rodata,"a"\n.p2align 6\n' + kd(KN, 256, 102)
    return out

if __name__ == "__main__":
    kw = {}
    for a_ in sys.argv[2:]:
        k, val = a_.split("=")
        kw[k] = ast.literal_eval(val)
    open(sys.argv[1], "w").write(gen(**kw))
```
